```python
import torch

def _softmax(x, axis=-1):
    return torch.softmax(x, dim=axis)

def _gelu(x):
    return torch.nn.functional.gelu(x, approximate='tanh')

def _silu(x):
    return torch.nn.functional.silu(x)

def _sigmoid(x):
    return torch.sigmoid(x)

def _layernorm(x, axis=-1, eps=1e-05):
    m = x.mean(dim=axis, keepdim=True)
    v = x.var(dim=axis, keepdim=True, unbiased=False)
    return (x - m) / torch.sqrt(v + eps)

def _scatter_add(tgt, idx, src, axis=0):
    return tgt.clone().index_add_(axis, idx, src)

def _segment_sum(src, seg, n):
    out = torch.zeros((n,) + src.shape[1:], dtype=src.dtype)
    return out.index_add_(0, seg, src)

def _pad(x, pw):
    flat = tuple((v for pair in reversed(pw) for v in pair))
    return torch.nn.functional.pad(x, flat)
kernel_name = 'standalone__dilated_atrous__vision'

def setup_inputs():

    _w = lambda a: (lambda t: t.to(torch.bfloat16) if t.is_floating_point() else t)(torch.as_tensor(a))
    H = W = 224
    C = 96
    k = 5
    return {'x': _w((lambda *s: torch.randn(*s, dtype=torch.bfloat16) * 0.05)(1, H, W, C)), 'w': _w((lambda *s: torch.randn(*s, dtype=torch.bfloat16) * 0.05)(k, k, C, C) * (1.0 / (k * C ** 0.5)))}

def reference(x, w):
    B, H, W, C = x.shape
    k = 5
    rate = 2
    pad = (k - 1) * rate // 2
    xp = _pad(x, ((0, 0), (pad, pad), (pad, pad), (0, 0)))
    out = torch.zeros_like(x)
    for i in range(k):
        for j in range(k):
            tap = xp[:, i * rate:i * rate + H, j * rate:j * rate + W, :].clone()
            out = out + torch.einsum('bhwc,co->bhwo', tap, w[i, j])
    return out
```

```python
import sys, argparse

NAME = "standalone__dilated_atrous__vision"
XBYTES = 224 * 224 * 96 * 2
WBYTES = 25 * 96 * 96 * 2
ROWB = 224 * 192
PROW = 2 * ROWB
PLANE = 352 * 32
WBASE = 6 * PLANE
WBUF = 5 * 6144
LDS_TOTAL = WBASE + 3 * WBUF

class Asm:
    def __init__(self):
        self.lines = []
    def __call__(self, s):
        self.lines.append("    " + s)
    def label(self, l):
        self.lines.append(l + ":")
    def comment(self, s):
        self.lines.append("    ; " + s)
    def text(self):
        return "\n".join(self.lines) + "\n"

def vr(b, n):
    return f"v[{b}:{b+n-1}]"

V_XA = 1
V_WA0 = 2
V_WA1 = 3
V_T = 4
V_SA, V_SB, V_SC = 12, 13, 14
V_RED = 15
V_X = 16
V_W = 36
V_ACC = 96
V_END = V_ACC + 84

def acc(rho, t):
    return V_ACC + 4 * (rho * 3 + t)
def wreg(i, t):
    return V_W + 4 * (i * 3 + t)
def xreg(q):
    return V_X + 4 * (q % 5)

def mfma_list(rh):
    steps = []
    for q in range(10):
        items = []
        for i in range(5):
            rho = q - i
            if 0 <= rho <= 5:
                for t in range(3):
                    items.append((rho, i, t, q))
        if rh == 0:
            i = q - 6
            if i in (0, 1):
                items += [(6, i, t, q) for t in range(3)]
            elif i == 2:
                items += [(6, i, t, q) for t in (0, 1)]
        else:
            i = q + 1
            if i in (3, 4):
                items += [(6, i, t, q) for t in range(3)]
            elif i == 2:
                items += [(6, i, 2, q)]
        items.sort(key=lambda m: (m[1], m[2]))
        steps += items
    return steps

def schedule(rh, bar_pos, lead):
    ms = mfma_list(rh)
    n = len(ms)
    reads = []
    first_w, last_w, first_x, last_x = {}, {}, {}, {}
    for k, (rho, i, t, q) in enumerate(ms):
        first_w.setdefault((i, t), k); last_w[(i, t)] = k
        first_x.setdefault(q, k); last_x[q] = k
    for i in range(5):
        for t in range(3):
            for h in range(2):
                e = max(last_w[(i, t)], bar_pos)
                reads.append((("w", i, t, h), e, n + first_w[(i, t)]))
    for q in range(10):
        if q < 5:
            e = max(last_x[q + 5], bar_pos)
        else:
            e = n + last_x[q - 5]
        d = n + first_x[q]
        reads.append((("x", q), e, d))
    reads.sort(key=lambda r: r[2])
    placed = {}
    pending = list(reads)
    for k in range(bar_pos, n + bar_pos):
        avail = [r for r in pending if r[1] <= k]
        if not avail:
            continue
        r = min(avail, key=lambda r: r[2])
        placed[k] = r
        pending.remove(r)
        assert r[2] - k >= lead, (rh, r, k)
    assert not pending
    return ms, placed

def emit_read(a, r):
    nm = r[0]
    if nm[0] == "x":
        q = nm[1]
        a(f"ds_read_b128 {vr(xreg(q),4)}, v{V_XA} offset:{q*640}")
    else:
        _, i, t, h = nm
        base = V_WA1 if t == 1 else V_WA0
        off = i * 6144 + h * 768 + (64 if t == 2 else 0)
        a(f"ds_read_b64_tr_b16 {vr(wreg(i,t)+2*h,2)}, v{base} offset:{off}")

def emit_body(a, rh, cfg):
    bar_pos = cfg.bar_pos
    ms, placed = schedule(rh, bar_pos, cfg.lead)
    n = len(ms)
    order = sorted(placed.keys())
    pos = {placed[k][0]: k for k in order}
    def issued_after(kread, kuse):
        c = 0
        for k in order:
            for kk in (k, k + n):
                if kread < kk <= kuse - 1:
                    c += 1
        return c
    a.label(f"L_pro{rh}")
    a("s_barrier")
    if cfg.diag:
        stamp(a, 3)
    for k in order:
        if k < n:
            emit_read(a, placed[k])
    a(".p2align 6") if cfg.align else None
    a.label(f"L_body{rh}")
    done_upto = -1
    for k, (rho, i, t, q) in enumerate(ms):
        need = max(pos[("w", i, t, 0)], pos[("w", i, t, 1)], pos[("x", q)])
        if need > done_upto:
            old_enough = [kk for kk in order if kk <= n + k - 1 - cfg.safe]
            if old_enough:
                need = max(need, max(old_enough))
            cnt = issued_after(need, n + k)
            assert cnt <= 14
            a(f"s_waitcnt lgkmcnt({cnt})")
            done_upto = need
        a(f"v_mfma_f32_16x16x32_bf16 {vr(acc(rho,t),4)}, {vr(wreg(i,t),4)}, {vr(xreg(q),4)}, {vr(acc(rho,t),4)}")
        if k == bar_pos - 8:
            a("s_add_u32 s40, s40, 1")
            a("s_cmp_eq_u32 s40, 5")
        if k == bar_pos - 7:
            a(f"s_cselect_b32 s42, {2*PLANE - 4*32}, 32")
            a("s_cselect_b32 s40, 0, s40")
        if k == bar_pos - 6:
            a("s_add_u32 s41, s41, 1")
            a("s_cmp_eq_u32 s41, 3")
        if k == bar_pos - 5:
            a(f"s_cselect_b32 s43, s44, s45")
            a("s_cselect_b32 s41, 0, s41")
        if k == bar_pos - 4:
            a(f"v_add_u32 v{V_XA}, s42, v{V_XA}")
        if k == bar_pos - 3:
            a(f"v_add_u32 v{V_WA0}, s43, v{V_WA0}")
        if k == bar_pos - 2:
            a(f"v_add_u32 v{V_WA1}, s43, v{V_WA1}")
        if rh == 1 and k == bar_pos - 12:
            a("s_cmp_lg_u32 s46, 14")
            a("s_cbranch_scc1 L_nopub")
            for tt in range(3):
                a(f"ds_write_b128 v{V_RED}, {vr(acc(6,tt),4)} offset:{tt*1024}")
            a("s_waitcnt lgkmcnt(0)")
            a.label("L_nopub")
        if k == bar_pos:
            a("s_barrier")
        for kk in (k, k + n):
            if kk in placed:
                if kk >= n and kk - n >= bar_pos - 4:
                    raise AssertionError("read after address switch")
                emit_read(a, placed[kk])
        if k == n - 3:
            a("s_add_u32 s46, s46, 1")
            a("s_cmp_lt_u32 s46, 15")
    a(f"s_cbranch_scc1 L_body{rh}")

def stamp(a, idx):
    a(f"s_memtime s[{60+2*idx}:{61+2*idx}]")
    if idx in (3, 4):
        a(f"s_memrealtime s[{80+2*idx}:{81+2*idx}]")
    a("s_waitcnt lgkmcnt(0)")

def dump_stamps(a):
    a("s_memrealtime s[76:77]")
    a("s_getreg_b32 s78, hwreg(HW_REG_HW_ID)")
    a("s_getreg_b32 s79, hwreg(HW_REG_XCC_ID)")
    a("s_waitcnt lgkmcnt(0)")
    a("s_mov_b32 s80, s12")
    a("s_mov_b32 s81, s13")
    a("s_mov_b32 s82, 0x100000")
    a("s_mov_b32 s83, 0x20000")
    a("s_lshl_b32 s84, s2, 3")
    a("s_add_u32 s84, s84, s32")
    a("s_lshl_b32 s84, s84, 6")
    a("v_mov_b32 v4, 0")
    srcs = [60, 62, 64, 66, 68, 70, 72, 74, 76, 77, 78, 79, 58, 59, 86, 88]
    for k, s in enumerate(srcs):
        a(f"v_mov_b32 v5, s{s}")
        a(f"buffer_store_dword v5, v4, s[80:83], s84 offen offset:{4*k}")
        a("s_nop 1")
    a("s_waitcnt vmcnt(0)")

def emit_epilogue(a, rh, cfg):
    if cfg.diag:
        stamp(a, 4)
    T = V_X
    a("s_waitcnt lgkmcnt(0)")
    if rh == 0:
        for tt in range(3):
            a(f"ds_read_b128 {vr(V_W+4*tt,4)}, v{V_RED} offset:{tt*1024}")
    a("s_nop 7")
    nq = 0
    def quad():
        nonlocal nq
        r = V_W + 12 + 4 * (nq % 12)
        nq += 1
        return r
    def pack_pair(accA, accB):
        r = quad()
        a(f"v_cvt_pk_bf16_f32 v{r}, v{accA}, v{accA+1}")
        a(f"v_cvt_pk_bf16_f32 v{r+1}, v{accA+2}, v{accA+3}")
        a(f"v_cvt_pk_bf16_f32 v{r+2}, v{accB}, v{accB+1}")
        a(f"v_cvt_pk_bf16_f32 v{r+3}, v{accB+2}, v{accB+3}")
        a("s_nop 1")
        a(f"v_permlane16_swap_b32 v{r}, v{r+2}")
        a(f"v_permlane16_swap_b32 v{r+1}, v{r+3}")
        return r
    for rho in range(6):
        r = pack_pair(acc(rho, 0), acc(rho, 1))
        a(f"s_add_u32 s48, s47, {rho*PROW}")
        a(f"buffer_store_dwordx4 {vr(r,4)}, v{V_SA}, s[24:27], s48 offen")
        if rho % 2 == 1:
            r = pack_pair(acc(rho - 1, 2), acc(rho, 2))
            a(f"s_add_u32 s48, s47, {(rho-1)*PROW}")
            a(f"buffer_store_dwordx4 {vr(r,4)}, v{V_SB}, s[24:27], s48 offen")
    if rh == 0:
        a("s_waitcnt lgkmcnt(0)")
        for k in range(12):
            a(f"v_add_f32 v{acc(6,0)+k}, v{acc(6,0)+k}, v{V_W+k}")
        r = pack_pair(acc(6, 0), acc(6, 1))
        a(f"s_add_u32 s48, s47, {6*PROW}")
        a(f"buffer_store_dwordx4 {vr(r,4)}, v{V_SA}, s[24:27], s48 offen")
        r = quad()
        c = acc(6, 2)
        a(f"v_cvt_pk_bf16_f32 v{r}, v{c}, v{c+1}")
        a(f"v_cvt_pk_bf16_f32 v{r+1}, v{c+2}, v{c+3}")
        a(f"buffer_store_dwordx2 {vr(r,2)}, v{V_SC}, s[24:27], s48 offen")
    if cfg.diag:
        stamp(a, 5)
        a("s_waitcnt vmcnt(0)")
        stamp(a, 6)
        dump_stamps(a)
    a("s_endpgm")

def gen(cfg):
    a = Asm()
    hdr = open("standalone__dilated_atrous__vision.s.ref").read().splitlines()
    head = [l for l in hdr[:8] if l.startswith(";") and "@launch" not in l]
    out = "\n".join(head) + "\n"
    out += f"; @launch grid=(256,1,1) block=(384,1,1) lds={LDS_TOTAL}\n"
    out += f""".amdgcn_target "amdgcn-amd-amdhsa--gfx950"
.text
.globl {NAME}_kernel
.p2align 8
.type {NAME}_kernel,@function
{NAME}_kernel:
"""
    if cfg.diag:
        a("s_memtime s[60:61]")
        a("s_memrealtime s[58:59]")
        a("s_load_dwordx2 s[12:13], s[0:1], 32")
    a("s_load_dwordx4 s[4:7], s[0:1], 0")
    a("s_load_dwordx2 s[8:9], s[0:1], 16")
    a("s_cmp_ge_u32 s2, 256")
    a("s_cbranch_scc1 L_exit")
    a("s_and_b32 s28, s2, 1")
    a("s_bfe_u32 s3, s2, 0x20001")
    a("s_lshl_b32 s3, s3, 5")
    a("s_lshr_b32 s33, s2, 3")
    a("s_add_u32 s3, s3, s33")
    a("s_cmp_ge_u32 s3, 126")
    a("s_cbranch_scc1 L_exit")
    a("s_mul_i32 s33, s3, 4682")
    a("s_lshr_b32 s33, s33, 16")
    a("s_mul_i32 s34, s33, 14")
    a("s_sub_u32 s34, s3, s34")
    a("s_and_b32 s29, s34, 1")
    a("s_lshr_b32 s30, s34, 1")
    a("s_lshl_b32 s30, s30, 4")
    a("s_mul_i32 s31, s33, 99")
    a("s_lshr_b32 s31, s31, 3")
    a("v_lshrrev_b32 v2, 6, v0")
    a("v_and_b32 v1, 63, v0")
    a("v_readfirstlane_b32 s32, v2")
    a("s_lshl_b32 s35, s31, 1")
    a("s_add_u32 s35, s35, s28")
    a(f"s_mul_i32 s35, s35, {ROWB}")
    a("s_lshl_b32 s36, s30, 1")
    a("s_add_u32 s36, s36, s29")
    a("s_mul_i32 s36, s36, 192")
    a("s_cmp_ge_u32 s32, 2")
    a("s_cbranch_scc1 L_compute")
    a(f"s_mul_i32 s37, s32, {8*PROW}")
    a("s_add_u32 s37, s37, s35")
    a("s_add_u32 s37, s37, s36")
    a(f"s_sub_u32 s37, s37, {2*PROW + 2*384}")
    a("s_sub_u32 s38, s30, 2")
    a("v_lshrrev_b32 v11, 1, v1")
    a("v_and_b32 v12, 1, v1")
    a("v_lshlrev_b32 v12, 4, v12")
    a("v_add_u32 v12, s37, v12")
    a("v_mov_b32 v17, 0x80000000")
    a("s_movk_i32 s39, 3277")
    a(f"s_mov_b32 s49, {PROW}")
    a("s_movk_i32 s50, 384")
    a("s_movk_i32 s51, 112")
    for b in range(5):
        a(f"v_add_u32 v13, {32*b}, v11")
        a("v_mul_u32_u24 v14, s39, v13")
        a("v_lshrrev_b32 v14, 16, v14")
        a("v_mul_u32_u24 v15, 20, v14")
        a("v_sub_u32 v15, v13, v15")
        a("v_mad_u32_u24 v16, v14, s49, v12")
        a("v_mad_u32_u24 v16, v15, s50, v16")
        a("v_add_u32 v15, s38, v15")
        a("v_cmp_gt_u32 vcc, s51, v15")
        a("s_nop 1")
        a(f"v_cndmask_b32 v{2+b}, v17, v16, vcc")
    a(f"s_mul_i32 s37, s32, {8*PROW}")
    a(f"s_sub_u32 s37, {16*PROW}, s37")
    a("v_add_u32 v7, s37, v2")
    a("v_cmp_gt_u32 vcc, 40, v1")
    a("v_lshlrev_b32 v8, 4, v1")
    a("v_xor_b32 v10, 32, v8")
    a("v_cndmask_b32 v7, v17, v7, vcc")
    a("v_cmp_gt_u32 vcc, 32, v1")
    a("s_nop 1")
    a("v_cndmask_b32 v9, v10, v8, vcc")
    a("s_lshl_b32 s52, s29, 1")
    a("s_sub_u32 s52, 2, s52")
    a("s_mov_b32 s57, s52")
    a("s_mov_b32 s53, 0")
    a("s_mul_i32 s37, s32, 3072")
    a(f"s_add_u32 s54, s37, {WBASE}")
    a("s_mul_i32 s56, s32, 5120")
    a(f"s_mul_i32 s38, s32, {PLANE}")
    a("s_add_u32 s38, s38, 10240")
    a("s_sub_u32 s38, s38, s56")
    a("s_mov_b32 s55, 0")
    a("s_waitcnt lgkmcnt(0)")
    if cfg.diag:
        stamp(a, 1)
    a("s_mov_b32 s16, s4")
    a("s_and_b32 s17, s5, 0xffff")
    a(f"s_mov_b32 s18, {XBYTES}")
    a("s_mov_b32 s19, 0x20000")
    a("s_mov_b32 s20, s6")
    a("s_and_b32 s21, s7, 0xffff")
    a(f"s_mov_b32 s22, {WBYTES}")
    a("s_mov_b32 s23, 0x20000")
    a.label("L_ld_loop")
    a("s_mov_b32 s39, 0x19")
    a("s_bitcmp1_b32 s39, s55")
    a("s_cbranch_scc0 L_ld_nox")
    a("s_lshl_b32 s49, s57, 6")
    a("s_add_u32 s50, s49, 32")
    for b in range(5):
        for h in range(2):
            a(f"s_add_u32 m0, s56, {h*PLANE + b*1024}")
            a("s_nop 0")
            a(f"buffer_load_dwordx4 v{2+b}, s[16:19], s{49+h} offen lds")
    a("s_add_u32 m0, s56, s38")
    a("s_lshl_b32 s50, s32, 5")
    a("s_add_u32 s50, s50, s49")
    a("buffer_load_dwordx4 v7, s[16:19], s50 offen lds")
    a(f"s_add_u32 s56, s56, {2*PLANE}")
    a("s_add_u32 s57, s57, 1")
    a("s_cmp_eq_u32 s57, 3")
    a("s_cselect_b32 s57, 0, s57")
    a.label("L_ld_nox")
    a("s_cmp_ge_u32 s55, 15")
    a("s_cbranch_scc1 L_ld_last")
    a("s_mul_i32 s49, s53, 18432")
    a("s_mul_i32 s50, s52, 6144")
    a("s_add_u32 s49, s49, s50")
    a("s_add_u32 s49, s49, s37")
    for i in range(5):
        a(f"s_add_u32 m0, s54, {i*6144}")
        a(f"s_add_u32 s50, s49, {i*92160}")
        for k in range(3):
            a(f"buffer_load_dwordx4 v{8+k}, s[20:23], s50 offen offset:{k*1024} lds")
    a(f"s_add_u32 s54, s54, {WBUF}")
    a(f"s_cmp_ge_u32 s54, {WBASE + 3*WBUF}")
    a(f"s_cselect_b32 s50, {3*WBUF}, 0")
    a("s_sub_u32 s54, s54, s50")
    a("s_add_u32 s53, s53, 1")
    a("s_cmp_eq_u32 s53, 5")
    a("s_cselect_b32 s53, 0, s53")
    a("s_cselect_b32 s50, 1, 0")
    a("s_add_u32 s52, s52, s50")
    a("s_cmp_eq_u32 s52, 3")
    a("s_cselect_b32 s52, 0, s52")
    a("s_add_u32 s55, s55, 1")
    a("s_cmp_eq_u32 s55, 1")
    a("s_cbranch_scc1 L_ld_loop")
    a("s_mov_b32 s39, 0x32")
    a("s_bitcmp1_b32 s39, s55")
    a("s_cbranch_scc1 L_ld_w26")
    a("s_waitcnt vmcnt(15)")
    a.label("L_ld_w26")
    a("s_waitcnt vmcnt(26)")
    if cfg.diag:
        a("s_cmp_lg_u32 s55, 2")
        a("s_cbranch_scc1 L_ld_ns")
        stamp(a, 2)
        a.label("L_ld_ns")
    a("s_barrier")
    a("s_branch L_ld_loop")
    a.label("L_ld_last")
    a("s_waitcnt vmcnt(0)")
    a("s_barrier")
    if cfg.diag:
        stamp(a, 4)
        dump_stamps(a)
    a.label("L_exit")
    a("s_endpgm")
    a.label("L_compute")
    a("s_sub_u32 s37, s32, 2")
    a("s_and_b32 s38, s37, 1")
    a("s_lshr_b32 s37, s37, 1")
    a("v_and_b32 v4, 15, v1")
    a("v_lshrrev_b32 v5, 4, v1")
    a("v_and_b32 v6, 1, v5")
    a("v_lshrrev_b32 v7, 1, v5")
    a("v_bfe_u32 v8, v1, 2, 2")
    a("v_and_b32 v9, 3, v1")
    a("s_mul_i32 s39, s38, 3072")
    a(f"s_add_u32 s39, s39, {WBASE + WBUF}")
    a(f"v_lshlrev_b32 v{V_RED}, 4, v1")
    a(f"v_add_u32 v{V_RED}, s39, v{V_RED}")
    a("s_mul_i32 s39, s38, 96")
    a("s_add_u32 s39, s39, s36")
    a("v_mul_u32_u24 v10, 384, v4")
    a("v_add_u32 v10, s39, v10")
    a(f"v_lshl_add_u32 v{V_SA}, v6, 5, v10")
    a(f"v_lshl_add_u32 v{V_SA}, v7, 4, v{V_SA}")
    a(f"v_mul_u32_u24 v11, {PROW}, v6")
    a(f"v_lshl_add_u32 v{V_SB}, v7, 4, v10")
    a(f"v_add3_u32 v{V_SB}, v{V_SB}, 64, v11")
    a(f"v_lshl_add_u32 v{V_SC}, v5, 3, v10")
    a(f"v_add_u32 v{V_SC}, 64, v{V_SC}")
    a(f"s_mul_i32 s47, s37, {7*PROW}")
    a("s_add_u32 s47, s47, s35")
    a("v_lshl_add_u32 v10, v5, 3, v8")
    a("v_mul_u32_u24 v10, 192, v10")
    a("v_lshl_add_u32 v10, v9, 3, v10")
    a(f"v_add_u32 v10, {WBASE}, v10")
    a("s_mul_i32 s39, s38, 3")
    a("v_xor_b32 v11, s39, v6")
    a(f"v_lshl_add_u32 v{V_WA0}, v11, 5, v10")
    a("s_add_u32 s39, s39, 1")
    a("v_xor_b32 v11, s39, v6")
    a(f"v_lshl_add_u32 v{V_WA1}, v11, 5, v10")
    a(f"v_mul_u32_u24 v10, {PLANE}, v7")
    a("v_lshl_add_u32 v10, v4, 5, v10")
    a("v_lshl_add_u32 v10, v6, 4, v10")
    a(f"s_mul_i32 s39, s37, {7*640}")
    a(f"v_add_u32 v{V_XA}, s39, v10")
    for k in range(84):
        a(f"v_mov_b32 v{V_ACC+k}, 0")
    a("s_mov_b32 s40, 0")
    a("s_mov_b32 s41, 0")
    a(f"s_mov_b32 s44, {(-2*WBUF) & 0xffffffff}")
    a(f"s_mov_b32 s45, {WBUF}")
    a("s_mov_b32 s46, 0")
    a("s_waitcnt lgkmcnt(0)")
    if cfg.diag:
        stamp(a, 1)
    a("s_mov_b32 s24, s8")
    a("s_and_b32 s25, s9, 0xffff")
    a(f"s_mov_b32 s26, {XBYTES}")
    a("s_mov_b32 s27, 0x20000")
    if cfg.prio:
        a(f"s_setprio {cfg.prio}")
    a("s_cmp_eq_u32 s37, 1")
    a("s_cbranch_scc1 L_pro1")
    for rh in range(2):
        emit_body(a, rh, cfg)
        emit_epilogue(a, rh, cfg)
    out += a.text()
    nv = (V_END + 7) // 8 * 8
    out += f""".section .rodata,"a"
.p2align 6
.amdhsa_kernel {NAME}_kernel
  .amdhsa_next_free_vgpr {nv}
  .amdhsa_next_free_sgpr 96
  .amdhsa_accum_offset {nv}
  .amdhsa_group_segment_fixed_size 0
  .amdhsa_kernarg_size 40
  .amdhsa_user_sgpr_count 2
  .amdhsa_user_sgpr_kernarg_segment_ptr 1
  .amdhsa_system_sgpr_workgroup_id_x 1
.end_amdhsa_kernel
"""
    return out

if __name__ == "__main__":
    p = argparse.ArgumentParser()
    p.add_argument("-o", default="standalone__dilated_atrous__vision.s")
    p.add_argument("--diag", action="store_true")
    p.add_argument("--bar_pos", type=int, default=63)
    p.add_argument("--lead", type=int, default=8)
    p.add_argument("--prio", type=int, default=0)
    p.add_argument("--safe", type=int, default=8)
    p.add_argument("--align", type=int, default=1)
    cfg = p.parse_args()
    open(cfg.o, "w").write(gen(cfg))
```

```python
import sys, argparse

NAME = "standalone__dilated_atrous__vision"
XBYTES = 224 * 224 * 96 * 2
WBYTES = 25 * 96 * 96 * 2
ROWB = 224 * 192
PROW = 2 * ROWB
XCH = 352 * 64
XROW = 20 * 64
WBASE = 3 * XCH
WBUF = 5 * 6144
LDS_TOTAL = WBASE + 3 * WBUF

class Asm:
    def __init__(self):
        self.lines = []
    def __call__(self, s):
        self.lines.append("    " + s)
    def label(self, l):
        self.lines.append(l + ":")
    def comment(self, s):
        self.lines.append("    ; " + s)
    def text(self):
        return "\n".join(self.lines) + "\n"

def vr(b, n):
    return f"v[{b}:{b+n-1}]"

V_XL = 1
V_XA = (2, 3)
V_WA = (4, 5, 6)
V_SA, V_SB, V_SC = 7, 8, 9
V_RED = 10
V_T = 11
V_P = 12
V_X = 24
V_W = 64
V_ACC = 124
V_END = V_ACC + 84

def acc(rho, t):
    return V_ACC + 4 * (rho * 3 + t)
def wreg(i, t):
    return V_W + 4 * (i * 3 + t)
def xreg(q):
    return V_X + 4 * q

def chain(rho, t, snake):
    r = list(range(5))
    if snake and rho % 2 == 1:
        r.reverse()
    return [(rho, i, t, rho + i) for i in r]

def shared_chain(var, t):
    if var == 0:
        taps = [0, 1] + ([2] if t in (0, 1) else [])
        return [(6, i, t, 6 + i) for i in taps]
    if var == 1:
        taps = ([2] if t == 2 else []) + [3, 4]
        return [(6, i, t, i - 1) for i in taps]
    return []

def steady_order(var, cfg):
    ms = []
    for t in range(3):
        if var == 1: ms += shared_chain(var, t)
        for rho in range(6): ms += chain(rho, t, cfg.snake)
        if var == 0: ms += shared_chain(var, t)
    return ms

def last_order(var, cfg):
    ms = []
    if var == 1: ms += shared_chain(var, 0)
    for rho in range(6): ms += chain(rho, 0, cfg.snake)
    if var == 0: ms += shared_chain(var, 0)
    ms += shared_chain(var, 1) + shared_chain(var, 2)
    for rho in range(6):
        ms += chain(rho, 1, cfg.snake) + chain(rho, 2, cfg.snake)
    return ms

def uses(ms):
    first, last = {}, {}
    for k, (rho, i, t, q) in enumerate(ms):
        for key in (("w", i, t, 0), ("w", i, t, 1), ("x", q)):
            first.setdefault(key, k); last[key] = k
    return first, last

def read_text(nm):
    if nm[0] == "x":
        q = nm[1]
        return f"ds_read_b128 {vr(xreg(q),4)}, v{V_XA[q & 1]} offset:{q*XROW}"
    _, i, t, h = nm
    return f"ds_read_b64_tr_b16 {vr(wreg(i,t)+2*h,2)}, v{V_WA[t]} offset:{i*6144 + h*768}"

def edf(reads, lo, hi, lead, busy=()):
    placed, pending = {}, list(reads)
    for k in range(lo, hi):
        if k in busy: continue
        avail = [r for r in pending if r[1] <= k]
        if not avail: continue
        r = min(avail, key=lambda r: r[2])
        placed[k] = r[0]
        pending.remove(r)
        assert r[2] - k >= lead, (r, k)
    assert not pending, pending
    return placed

def mfma_text(m):
    rho, i, t, q = m
    return f"v_mfma_f32_16x16x32_bf16 {vr(acc(rho,t),4)}, {vr(wreg(i,t),4)}, {vr(xreg(q),4)}, {vr(acc(rho,t),4)}"

class LdsQ:
    def __init__(self, a, safe):
        self.a, self.safe = a, safe
        self.ops = []
        self.done = 0
    def issue(self, name, time, text=None):
        self.ops.append((name, time))
        if text: self.a(text)
    def need(self, names, time):
        idx = max(max(j for j, (nm, _) in enumerate(self.ops) if nm == n) for n in names) + 1
        if idx <= self.done: return
        for j, (nm, tm) in enumerate(self.ops):
            if tm <= time - 1 - self.safe: idx = max(idx, j + 1)
        cnt = len(self.ops) - idx
        if cnt > 14:
            idx += cnt - 14; cnt = 14
        self.a(f"s_waitcnt lgkmcnt({cnt})")
        self.done = idx
    def drain(self):
        if self.done < len(self.ops):
            self.a("s_waitcnt lgkmcnt(0)")
            self.done = len(self.ops)

def emit_variant(a, var, cfg):
    bar = cfg.bar_pos if var != 2 else cfg.bar_pos - 5
    ms = steady_order(var, cfg)
    n = len(ms)
    first, last = uses(ms)
    reads = [(key, max(last[key], bar), n + first[key]) for key in first]
    placed = edf(reads, bar, n + bar - 12, cfg.lead)
    tail = [(k, placed[k]) for k in sorted(placed) if k < n]
    head = [(k - n, placed[k]) for k in sorted(placed) if k >= n]
    a.label(f"L_pro{var}")
    a("s_barrier")
    if cfg.diag: stamp(a, 3)
    for k, nm in tail: a(read_text(nm))
    if cfg.align: a(".p2align 6")
    a.label(f"L_body{var}")
    q = LdsQ(a, cfg.safe)
    for k, nm in tail: q.issue(nm, k - n)
    headd, taild = dict(head), dict(tail)
    extra = {}
    def put(k, s): extra.setdefault(k, []).append(s)
    b0 = bar - 11
    put(b0, "s_add_u32 s40, s40, 1"); put(b0, "s_cmp_eq_u32 s40, 5")
    put(b0 + 1, f"s_cselect_b32 s42, {XCH - 4*64}, 64"); put(b0 + 1, "s_cselect_b32 s40, 0, s40")
    put(b0 + 2, "s_add_u32 s41, s41, 1"); put(b0 + 2, "s_cmp_eq_u32 s41, 3")
    put(b0 + 3, "s_cselect_b32 s43, s44, s45"); put(b0 + 3, "s_cselect_b32 s41, 0, s41")
    put(b0 + 3, f"v_add_u32 v{V_XL}, s42, v{V_XL}")
    put(b0 + 4, f"v_lshrrev_b32 v{V_T}, 3, v{V_XL}")
    put(b0 + 5, f"v_and_b32 v{V_T}, 32, v{V_T}")
    put(b0 + 6, f"v_xor_b32 v{V_XA[0]}, v{V_XL}, v{V_T}")
    put(b0 + 7, f"v_xor_b32 v{V_XA[1]}, 32, v{V_XA[0]}")
    for t in range(3): put(b0 + 8 + t, f"v_add_u32 v{V_WA[t]}, s43, v{V_WA[t]}")
    put(n - 3, "s_add_u32 s46, s46, 1"); put(n - 3, "s_cmp_lt_u32 s46, 14")
    for k, m in enumerate(ms):
        rho, i, t, qq = m
        names = [nm for nm in (("w", i, t, 0), ("w", i, t, 1), ("x", qq))]
        q.need(names, k)
        a(mfma_text(m))
        for s in extra.get(k, []): a(s)
        if k == bar:
            q.drain()
            a("s_barrier")
        if k in headd: q.issue(headd[k], k, read_text(headd[k]))
        if k in taild: q.issue(("next",) + taild[k], k, read_text(taild[k]))
    a(f"s_cbranch_scc1 L_body{var}")
    if cfg.diag: stamp_nowait(a, 4)
    ls = last_order(var, cfg)
    lf, ll = uses(ls)
    hreads = [(nm, 0, lf[nm]) for _, nm in head]
    lplaced = edf(hreads, 0, n, min(cfg.lead, 6))
    q = LdsQ(a, cfg.safe)
    for k, nm in tail: q.issue(nm, k - n)
    endk = {}
    for k, (rho, i, t, qq) in enumerate(ls): endk[(rho, t)] = k
    ex = []
    def pack(A, B, kA, kB, store):
        e = []
        e.append((kA + 8, f"v_cvt_pk_bf16_f32 v{A}, v{A}, v{A+1}"))
        e.append((kA + 8, f"v_cvt_pk_bf16_f32 v{A+1}, v{A+2}, v{A+3}"))
        e.append((kB + 8, f"v_cvt_pk_bf16_f32 v{A+2}, v{B}, v{B+1}"))
        e.append((kB + 8, f"v_cvt_pk_bf16_f32 v{A+3}, v{B+2}, v{B+3}"))
        e.append((0, store[0]))
        e.append((0, "GAP"))
        e.append((0, f"v_permlane16_swap_b32 v{A}, v{A+2}"))
        e.append((0, f"v_permlane16_swap_b32 v{A+1}, v{A+3}"))
        e.append((0, store[1]))
        return e
    def st(reg, va, rho, w=4):
        return (f"s_add_u32 s48, s47, {rho*PROW}",
                f"buffer_store_dwordx{w} {vr(reg,w)}, v{va}, s[24:27], s48 offen{cfg.stflag}")
    jobs = []
    for r in (0, 2, 4):
        A, B = acc(r, 0), acc(r + 1, 0)
        jobs.append((endk[(r + 1, 0)], pack(A, B, endk[(r, 0)], endk[(r + 1, 0)], st(A, V_SB, r))))
    for r in range(6):
        A, B = acc(r, 1), acc(r, 2)
        jobs.append((endk[(r, 2)], pack(A, B, endk[(r, 1)], endk[(r, 2)], st(A, V_SA, r))))
    if var != 2:
        ksh = max(endk[(6, t)] for t in range(3))
        kb = cfg.xbar
        if var == 1:
            j = [(ksh + 8, ("ldsw", tt)) for tt in range(3)] + [(kb, "DRAINBAR")]
            jobs.append((ksh, j))
        else:
            j = [(kb, "BAR")] + [(kb, ("ldsr", tt)) for tt in range(3)]
            jobs.append((kb - 8, j))
            j = [(kb + 12, "NEEDP")]
            j += [(0, f"v_add_f32 v{acc(6,0)+k}, v{acc(6,0)+k}, v{V_P+k}") for k in range(12)]
            A, B, S = acc(6, 1), acc(6, 2), acc(6, 0)
            j += pack(A, B, 0, 0, st(A, V_SA, 6))
            j += [(0, f"v_cvt_pk_bf16_f32 v{S}, v{S}, v{S+1}"), (0, f"v_cvt_pk_bf16_f32 v{S+1}, v{S+2}, v{S+3}"),
                  (0, st(S, V_SC, 6, 2)[1])]
            jobs.append((kb + 4, j))
    jobs.sort(key=lambda j: j[0])
    seq = [e for _, j in jobs for e in j]
    def emit_ex(e, k):
        if e == "BAR": a("s_barrier")
        elif e == "DRAINBAR":
            q.drain(); a("s_barrier")
        elif e == "NEEDP": q.need([("p", 2)], k)
        elif isinstance(e, tuple) and e[0] == "ldsw":
            q.issue(("pw", e[1]), k, f"ds_write_b128 v{V_RED}, {vr(acc(6,e[1]),4)} offset:{e[1]*1024}")
        elif isinstance(e, tuple) and e[0] == "ldsr":
            q.issue(("p", e[1]), k, f"ds_read_b128 {vr(V_P+4*e[1],4)}, v{V_RED} offset:{e[1]*1024}")
        else: a(e)
    for k, m in enumerate(ls):
        rho, i, t, qq = m
        q.need([("w", i, t, 0), ("w", i, t, 1), ("x", qq)], k)
        a(mfma_text(m))
        cnt = 0
        if k in lplaced:
            q.issue(lplaced[k], k, read_text(lplaced[k])); cnt += 1
        while seq and cnt < cfg.exper and seq[0][0] <= k:
            _, e = seq.pop(0)
            if e == "GAP": break
            emit_ex(e, k); cnt += 1
    k = n - 1
    while seq:
        e0, e = seq.pop(0)
        if e0 > k:
            a(f"s_nop {e0 - k - 1}"); k = e0
        if e == "GAP": a("s_nop 0")
        else: emit_ex(e, k)
        k += 1
    if cfg.diag:
        stamp(a, 5)
        a("s_waitcnt vmcnt(0)")
        stamp(a, 6)
        dump_stamps(a)
    a("s_endpgm")

def stamp(a, idx):
    a(f"s_memtime s[{60+2*idx}:{61+2*idx}]")
    if idx in (3, 5):
        a(f"s_memrealtime s[{86 if idx == 3 else 88}:{87 if idx == 3 else 89}]")
    a("s_waitcnt lgkmcnt(0)")
def stamp_nowait(a, idx):
    stamp(a, idx)

def dump_stamps(a):
    a("s_memrealtime s[76:77]")
    a("s_getreg_b32 s78, hwreg(HW_REG_HW_ID)")
    a("s_getreg_b32 s79, hwreg(HW_REG_XCC_ID)")
    a("s_waitcnt lgkmcnt(0)")
    a("s_mov_b32 s80, s12")
    a("s_mov_b32 s81, s13")
    a("s_mov_b32 s82, 0x100000")
    a("s_mov_b32 s83, 0x20000")
    a("s_lshl_b32 s84, s2, 3")
    a("s_add_u32 s84, s84, s32")
    a("s_lshl_b32 s84, s84, 6")
    a("v_mov_b32 v4, 0")
    for k, s in enumerate([60, 62, 64, 66, 68, 70, 72, 74, 76, 77, 78, 79, 58, 59, 86, 88]):
        a(f"v_mov_b32 v5, s{s}")
        a(f"buffer_store_dword v5, v4, s[80:83], s84 offen offset:{4*k}")
        a("s_nop 1")
    a("s_waitcnt vmcnt(0)")

def gen(cfg):
    a = Asm()
    hdr = open("standalone__dilated_atrous__vision.s.ref").read().splitlines()
    head = [l for l in hdr[:8] if l.startswith(";") and "@launch" not in l]
    out = "\n".join(head) + "\n"
    out += f"; @launch grid=(256,1,1) block=(384,1,1) lds={LDS_TOTAL}\n"
    out += f""".amdgcn_target "amdgcn-amd-amdhsa--gfx950"
.text
.globl {NAME}_kernel
.p2align 8
.type {NAME}_kernel,@function
{NAME}_kernel:
"""
    if cfg.diag:
        a("s_memtime s[60:61]")
        a("s_memrealtime s[58:59]")
        a("s_load_dwordx2 s[12:13], s[0:1], 32")
    a("s_load_dwordx4 s[4:7], s[0:1], 0")
    a("s_load_dwordx2 s[8:9], s[0:1], 16")
    a("s_cmp_ge_u32 s2, 256")
    a("s_cbranch_scc1 L_exit")
    a("s_and_b32 s28, s2, 1")
    a("s_bfe_u32 s3, s2, 0x20001")
    a("s_lshl_b32 s3, s3, 5")
    a("s_lshr_b32 s33, s2, 3")
    a("s_add_u32 s3, s3, s33")
    a("s_cmp_ge_u32 s3, 126")
    a("s_cbranch_scc1 L_exit")
    a("s_mul_i32 s33, s3, 4682")
    a("s_lshr_b32 s33, s33, 16")
    a("s_mul_i32 s34, s33, 14")
    a("s_sub_u32 s34, s3, s34")
    a("s_and_b32 s29, s34, 1")
    a("s_lshr_b32 s30, s34, 1")
    a("s_lshl_b32 s30, s30, 4")
    a("s_mul_i32 s31, s33, 25")
    a("s_lshr_b32 s31, s31, 1")
    a("v_lshrrev_b32 v2, 6, v0")
    a("v_and_b32 v1, 63, v0")
    a("v_readfirstlane_b32 s32, v2")
    a("s_lshl_b32 s35, s31, 1")
    a("s_add_u32 s35, s35, s28")
    a(f"s_mul_i32 s35, s35, {ROWB}")
    a("s_lshl_b32 s36, s30, 1")
    a("s_add_u32 s36, s36, s29")
    a("s_mul_i32 s36, s36, 192")
    a("s_cmp_ge_u32 s32, 2")
    a("s_cbranch_scc1 L_compute")
    a("s_add_u32 s37, s35, s36")
    a(f"s_sub_u32 s37, s37, {2*PROW + 2*384}")
    a("s_sub_u32 s38, s30, 2")
    a("s_cmp_eq_u32 s29, 0")
    a("s_cselect_b32 s14, 32, -32")
    a("s_cselect_b32 s15, 0, 320")
    a(f"s_mul_i32 s10, s14, {8*PROW//32}")
    a("s_lshl_b32 s39, s32, 4")
    a("s_add_u32 s15, s15, s39")
    a("v_lshrrev_b32 v13, 2, v1")
    a("v_add_u32 v13, s15, v13")
    a("v_lshrrev_b32 v14, 3, v1")
    a("v_and_b32 v14, 2, v14")
    a("v_and_b32 v15, 3, v1")
    a("v_xor_b32 v14, v14, v15")
    a("v_lshlrev_b32 v14, 4, v14")
    a("v_add_u32 v14, s37, v14")
    a("v_mov_b32 v19, 0x80000000")
    a("s_movk_i32 s39, 3277")
    a(f"s_mov_b32 s49, {PROW}")
    a("s_movk_i32 s50, 384")
    a("s_movk_i32 s51, 112")
    for b in range(5):
        a("v_mul_u32_u24 v15, s39, v13")
        a("v_lshrrev_b32 v15, 16, v15")
        a("v_mul_u32_u24 v16, 20, v15")
        a("v_sub_u32 v16, v13, v16")
        a("v_add_u32 v17, s38, v16")
        a("v_cmp_gt_u32 vcc, s51, v17")
        a("v_mad_u32_u24 v18, v15, s49, v14")
        a("v_mad_u32_u24 v18, v16, s50, v18")
        a(f"v_cndmask_b32 v{2+b}, v19, v18, vcc")
        if b < 4: a("v_add_u32 v13, s14, v13")
        a(f"v_add_u32 v{7+b}, s10, v{2+b}")
    a("v_add_u32 v12, s10, v7")
    a("v_lshlrev_b32 v20, 4, v1")
    a("v_cmp_gt_u32 vcc, 32, v1")
    a("v_xor_b32 v22, 32, v20")
    a("s_lshl_b32 s52, s29, 1")
    a("v_cndmask_b32 v21, v22, v20, vcc")
    a("s_sub_u32 s52, 2, s52")
    a("s_lshl_b32 s57, s52, 6")
    a("s_mov_b32 s53, 0")
    a("s_mul_i32 s37, s32, 3072")
    a(f"s_add_u32 s54, s37, {WBASE}")
    a("s_lshl_b32 s56, s15, 6")
    a("s_lshl_b32 s14, s14, 6")
    a("s_mul_i32 s15, s14, -11")
    a(f"s_add_u32 s15, s15, {XCH}")
    a("s_lshr_b32 s39, s2, 4")
    a("s_mul_i32 s38, s39, 52")
    a("s_lshr_b32 s38, s38, 8")
    a("s_mul_i32 s38, s38, 5")
    a("s_sub_u32 s38, s39, s38")
    a("s_mov_b32 s55, 0")
    xm = [0x3, 0xC] + [1, 2, 4, 8, 1, 2, 4, 8] + [0] * 6
    if cfg.xsched == 1:
        xm = [0xF, 0x0] + xm[2:]
    C = sum(m << (4 * s) for s, m in enumerate(xm))
    a(f"s_mov_b32 s92, {C & 0xffffffff:#x}")
    a(f"s_mov_b32 s93, {C >> 32:#x}")
    a("s_waitcnt lgkmcnt(0)")
    if cfg.diag: stamp(a, 1)
    a("s_mov_b32 s16, s4")
    a("s_and_b32 s17, s5, 0xffff")
    a(f"s_mov_b32 s18, {XBYTES}")
    a("s_mov_b32 s19, 0x20000")
    a("s_mov_b32 s20, s6")
    a("s_and_b32 s21, s7, 0xffff")
    a(f"s_mov_b32 s22, {WBYTES}")
    a("s_mov_b32 s23, 0x20000")
    def trace(reg):
        if cfg.trace:
            a("s_memtime s[90:91]")
            a("s_mov_b32 m0, s55")
            a("s_waitcnt lgkmcnt(0)")
            a(f"v_writelane_b32 v{reg}, s90, m0")
    a.label("L_ld_loop")
    for blk in range(4):
        a(f"s_bitcmp1_b32 s92, {blk}")
        a(f"s_cbranch_scc0 L_ld_x{blk}")
        for k in range(3 * blk, min(3 * blk + 3, 11)):
            a("s_mov_b32 m0, s56")
            a("s_add_u32 s56, s56, s14")
            a(f"buffer_load_dwordx4 v{2+k}, s[16:19], s57 offen lds")
        if blk == 3:
            a("s_add_u32 s56, s56, s15")
            a("s_add_u32 s57, s57, 64")
            a("s_cmp_eq_u32 s57, 192")
            a("s_cselect_b32 s57, 0, s57")
        a.label(f"L_ld_x{blk}")
    a("s_cmp_ge_u32 s55, 15")
    a("s_cbranch_scc1 L_ld_last")
    a("s_mul_i32 s49, s53, 18432")
    a("s_mul_i32 s50, s52, 6144")
    a("s_add_u32 s49, s49, s50")
    a("s_add_u32 s49, s49, s37")
    for i in range(5):
        a("s_mul_i32 s50, s38, 6144")
        a("s_add_u32 m0, s54, s50")
        a("s_mul_i32 s50, s38, 92160")
        a("s_add_u32 s50, s50, s49")
        for k in range(3):
            a(f"buffer_load_dwordx4 v{20+k}, s[20:23], s50 offen offset:{k*1024} lds")
        a("s_add_u32 s38, s38, 1")
        a("s_cmp_eq_u32 s38, 5")
        a("s_cselect_b32 s38, 0, s38")
    a(f"s_add_u32 s54, s54, {WBUF}")
    a(f"s_cmp_ge_u32 s54, {WBASE + 3*WBUF}")
    a(f"s_cselect_b32 s50, {3*WBUF}, 0")
    a("s_sub_u32 s54, s54, s50")
    a("s_add_u32 s53, s53, 1")
    a("s_cmp_eq_u32 s53, 5")
    a("s_cselect_b32 s53, 0, s53")
    a("s_cselect_b32 s50, 1, 0")
    a("s_add_u32 s52, s52, s50")
    a("s_cmp_eq_u32 s52, 3")
    a("s_cselect_b32 s52, 0, s52")
    a("s_and_b32 s50, s92, 15")
    a("s_lshr_b64 s[92:93], s[92:93], 4")
    a("s_add_u32 s55, s55, 1")
    a("s_cmp_eq_u32 s55, 1")
    a("s_cbranch_scc1 L_ld_loop")
    trace(24)
    a("s_cmp_eq_u32 s50, 8")
    a("s_cbranch_scc1 L_ld_w17")
    a("s_sub_u32 s50, s50, 1")
    a("s_cmp_lt_u32 s50, 4")
    a("s_cbranch_scc1 L_ld_w18")
    a("s_waitcnt vmcnt(15)")
    a.label("L_ld_w17")
    a("s_waitcnt vmcnt(17)")
    a.label("L_ld_w18")
    a("s_waitcnt vmcnt(18)")
    trace(25)
    a("s_barrier")
    trace(26)
    a("s_branch L_ld_loop")
    a.label("L_ld_last")
    a("s_waitcnt vmcnt(0)")
    a("s_barrier")
    if cfg.diag:
        stamp(a, 4)
        dump_stamps(a)
        if cfg.trace:
            a("v_lshlrev_b32 v4, 2, v1")
            a("v_cmp_gt_u32 vcc, 16, v1")
            a("s_and_saveexec_b64 s[92:93], vcc")
            a("s_lshl_b32 s84, s84, 2")
            a("s_add_u32 s84, s84, 0x40000")
            for k in range(3):
                a(f"buffer_store_dword v{24+k}, v4, s[80:83], s84 offen offset:{64*k}")
            a("s_waitcnt vmcnt(0)")
    a.label("L_exit")
    a("s_endpgm")
    a.label("L_compute")
    a("s_sub_u32 s37, s32, 2")
    a("s_and_b32 s38, s37, 1")
    a("s_lshr_b32 s37, s37, 1")
    a("s_and_b32 s34, s33, 1")
    a("s_add_u32 s39, s34, 6")
    a("s_mul_i32 s49, s37, s39")
    a("v_and_b32 v12, 15, v1")
    a("v_lshrrev_b32 v13, 4, v1")
    a("v_and_b32 v14, 1, v13")
    a("v_lshrrev_b32 v15, 1, v13")
    a("v_bfe_u32 v16, v1, 2, 2")
    a("v_and_b32 v17, 3, v1")
    a("s_mul_i32 s39, s38, 3072")
    a(f"s_add_u32 s39, s39, {WBASE + WBUF}")
    a(f"v_lshlrev_b32 v{V_RED}, 4, v1")
    a(f"v_add_u32 v{V_RED}, s39, v{V_RED}")
    a("v_mul_u32_u24 v18, 384, v12")
    a("v_add_u32 v18, s36, v18")
    a("s_lshl_b32 s39, s38, 7")
    a(f"v_lshl_add_u32 v{V_SA}, v14, 5, v18")
    a(f"v_lshl_add_u32 v{V_SA}, v15, 4, v{V_SA}")
    a(f"v_add_u32 v{V_SA}, s39, v{V_SA}")
    a("s_lshl_b32 s39, s38, 5")
    a("s_add_u32 s39, s39, 64")
    a("v_add_u32 v18, s39, v18")
    a(f"v_mul_u32_u24 v19, {PROW}, v14")
    a(f"v_lshl_add_u32 v{V_SB}, v15, 4, v18")
    a(f"v_add_u32 v{V_SB}, v{V_SB}, v19")
    a(f"v_lshl_add_u32 v{V_SC}, v13, 3, v18")
    a(f"s_mul_i32 s47, s49, {PROW}")
    a("s_add_u32 s47, s47, s35")
    a("v_lshl_add_u32 v18, v13, 3, v16")
    a("v_mul_u32_u24 v18, 192, v18")
    a("v_lshl_add_u32 v18, v17, 3, v18")
    a(f"v_add_u32 v18, {WBASE}, v18")
    a("s_add_u32 s39, s38, 2")
    a("v_xor_b32 v19, s39, v14")
    a(f"v_lshl_add_u32 v{V_WA[0]}, v19, 5, v18")
    a("s_lshl_b32 s39, s38, 2")
    a("v_xor_b32 v19, s39, v14")
    a(f"v_lshl_add_u32 v{V_WA[1]}, v19, 5, v18")
    a("v_xor_b32 v19, 1, v19")
    a(f"v_lshl_add_u32 v{V_WA[2]}, v19, 5, v18")
    a("v_lshlrev_b32 v18, 6, v12")
    a("v_lshl_add_u32 v18, v13, 4, v18")
    a(f"s_mul_i32 s39, s49, {XROW}")
    a(f"v_add_u32 v{V_XL}, s39, v18")
    a(f"v_lshrrev_b32 v{V_T}, 3, v{V_XL}")
    a(f"v_and_b32 v{V_T}, 32, v{V_T}")
    a(f"v_xor_b32 v{V_XA[0]}, v{V_XL}, v{V_T}")
    a(f"v_xor_b32 v{V_XA[1]}, 32, v{V_XA[0]}")
    for k in range(84):
        a(f"v_mov_b32 v{V_ACC+k}, 0")
    a("s_mov_b32 s40, 0")
    a("s_mov_b32 s41, 0")
    a(f"s_mov_b32 s44, {(-2*WBUF) & 0xffffffff}")
    a(f"s_mov_b32 s45, {WBUF}")
    a("s_mov_b32 s46, 0")
    a("s_waitcnt lgkmcnt(0)")
    if cfg.diag: stamp(a, 1)
    a("s_mov_b32 s24, s8")
    a("s_and_b32 s25, s9, 0xffff")
    a(f"s_mov_b32 s26, {XBYTES}")
    a("s_mov_b32 s27, 0x20000")
    if cfg.prio: a(f"s_setprio {cfg.prio}")
    a("s_cmp_eq_u32 s34, 0")
    a("s_cbranch_scc1 L_pro2")
    a("s_cmp_eq_u32 s37, 1")
    a("s_cbranch_scc1 L_pro1")
    for var in range(3):
        emit_variant(a, var, cfg)
    out += a.text()
    nv = (V_END + 7) // 8 * 8
    out += f""".section .rodata,"a"
.p2align 6
.amdhsa_kernel {NAME}_kernel
  .amdhsa_next_free_vgpr {nv}
  .amdhsa_next_free_sgpr 96
  .amdhsa_accum_offset {nv}
  .amdhsa_group_segment_fixed_size 0
  .amdhsa_kernarg_size 40
  .amdhsa_user_sgpr_count 2
  .amdhsa_user_sgpr_kernarg_segment_ptr 1
  .amdhsa_system_sgpr_workgroup_id_x 1
.end_amdhsa_kernel
"""
    return out

if __name__ == "__main__":
    p = argparse.ArgumentParser()
    p.add_argument("-o", default="standalone__dilated_atrous__vision.s")
    p.add_argument("--diag", action="store_true")
    p.add_argument("--trace", action="store_true")
    p.add_argument("--bar_pos", type=int, default=60)
    p.add_argument("--xbar", type=int, default=56)
    p.add_argument("--lead", type=int, default=8)
    p.add_argument("--safe", type=int, default=8)
    p.add_argument("--prio", type=int, default=0)
    p.add_argument("--align", type=int, default=1)
    p.add_argument("--snake", type=int, default=0)
    p.add_argument("--exper", type=int, default=2)
    p.add_argument("--xsched", type=int, default=0)
    p.add_argument("--stflag", default="")
    cfg = p.parse_args()
    if cfg.stflag: cfg.stflag = " " + cfg.stflag
    open(cfg.o, "w").write(gen(cfg))
```

```python
import sys, argparse

NAME = "standalone__dilated_atrous__vision"
XBYTES = 224 * 224 * 96 * 2
WBYTES = 25 * 96 * 96 * 2
ROWB = 224 * 192
PROW = 2 * ROWB
XCH = 352 * 64
XROW = 20 * 64
WBASE = 3 * XCH
WBUF = 5 * 6144
FLAGS = WBASE + 3 * WBUF
LDS_TOTAL = FLAGS + 2048
SROW = 16 * 208
PART = 11 * SROW
assert PART + 6144 <= 2 * XCH

class Asm:
    def __init__(self):
        self.lines = []
    def __call__(self, s):
        self.lines.append("    " + s)
    def label(self, l):
        self.lines.append(l + ":")
    def comment(self, s):
        self.lines.append("    ; " + s)
    def text(self):
        return "\n".join(self.lines) + "\n"

def vr(b, n):
    return f"v[{b}:{b+n-1}]"

V_XL = 1
V_XA = (2, 3)
V_WA = (4, 5, 6)
V_SA, V_SC = 7, 8
V_GA, V_GB = 9, 10
V_T = 11
V_P = 12
V_RED = 24
V_CP = 25
V_LF = 26
V_PV = 27
V_F = 28
V_PF = 29
V_X = 32
V_W = 72
V_ACC = 132
V_END = V_ACC + 84

def acc(rho, t): return V_ACC + 4 * (rho * 3 + t)
def wreg(i, t): return V_W + 4 * (i * 3 + t)
def xreg(q): return V_X + 4 * q

def chain(rho, t, snake):
    r = list(range(5))
    if snake and rho % 2 == 1: r.reverse()
    return [(rho, i, t, rho + i) for i in r]

def shared_chain(var, t):
    if var == 0:
        return [(6, i, t, 6 + i) for i in [0, 1] + ([2] if t in (0, 1) else [])]
    if var == 1:
        return [(6, i, t, i - 1) for i in ([2] if t == 2 else []) + [3, 4]]
    return []

def steady_order(var, cfg):
    ms = []
    for t in range(3):
        if var == 1: ms += shared_chain(var, t)
        for rho in range(6): ms += chain(rho, t, cfg.snake)
        if var == 0: ms += shared_chain(var, t)
    return ms

def last_order(var, cfg):
    order = [(0, 0), (0, 1), (1, 0), "S", (0, 2), (1, 1), (1, 2)] + [(r, t) for r in range(2, 6) for t in range(3)]
    ms = []
    for o in order:
        if o == "S":
            for t in range(3): ms += shared_chain(var, t)
        else:
            ms += chain(o[0], o[1], cfg.snake)
    return ms

def uses(ms):
    first, last = {}, {}
    for k, (rho, i, t, q) in enumerate(ms):
        for key in (("w", i, t, 0), ("w", i, t, 1), ("x", q)):
            first.setdefault(key, k); last[key] = k
    return first, last

def read_text(nm):
    if nm[0] == "x":
        q = nm[1]
        return f"ds_read_b128 {vr(xreg(q),4)}, v{V_XA[q & 1]} offset:{q*XROW}"
    _, i, t, h = nm
    return f"ds_read_b64_tr_b16 {vr(wreg(i,t)+2*h,2)}, v{V_WA[t]} offset:{i*6144 + h*768}"

def edf(reads, lo, hi, lead):
    placed, pending = {}, list(reads)
    for k in range(lo, hi):
        avail = [r for r in pending if r[1] <= k]
        if not avail: continue
        r = min(avail, key=lambda r: r[2])
        placed[k] = r[0]
        pending.remove(r)
        assert r[2] - k >= lead, (r, k)
    assert not pending, pending
    return placed

def mfma_text(m):
    rho, i, t, q = m
    return f"v_mfma_f32_16x16x32_bf16 {vr(acc(rho,t),4)}, {vr(wreg(i,t),4)}, {vr(xreg(q),4)}, {vr(acc(rho,t),4)}"

class LdsQ:
    def __init__(self, a, safe):
        self.a, self.safe = a, safe
        self.ops = []
        self.done = 0
    def issue(self, name, time, text=None):
        self.ops.append((name, time))
        if text: self.a(text)
    def need(self, names, time):
        idx = max(max(j for j, (nm, _) in enumerate(self.ops) if nm == n) for n in names) + 1
        if idx <= self.done: return
        for j, (nm, tm) in enumerate(self.ops):
            if tm <= time - 1 - self.safe: idx = max(idx, j + 1)
        cnt = len(self.ops) - idx
        if cnt > 14:
            idx += cnt - 14; cnt = 14
        self.a(f"s_waitcnt lgkmcnt({cnt})")
        self.done = idx

WD = 1
def poll(a, label, vaddr, vtmp, sneed, sleep):
    a.label(label)
    if WD:
        a("s_add_u32 s94, s94, 1")
        a("s_bitcmp1_b32 s94, 18")
        a("s_cbranch_scc1 L_exit")
    a(f"ds_read_b32 v{vtmp}, v{vaddr}")
    a("s_waitcnt lgkmcnt(0)")
    a(f"v_cmp_gt_u32 vcc, {sneed}, v{vtmp}")
    if sleep:
        a(f"s_cbranch_vccz {label}_ok")
        a(f"s_sleep {sleep}")
        a(f"s_branch {label}")
        a.label(label + "_ok")
    else:
        a(f"s_cbranch_vccnz {label}")

def emit_variant(a, var, cfg):
    bar = cfg.bar_pos if var != 2 else cfg.bar_pos - 5
    ms = steady_order(var, cfg)
    n = len(ms)
    first, last = uses(ms)
    reads = [(key, max(last[key], bar), n + first[key]) for key in first]
    placed = edf(reads, bar, n + bar - 16, cfg.lead)
    tail = [(k, placed[k]) for k in sorted(placed) if k < n]
    head = [(k - n, placed[k]) for k in sorted(placed) if k >= n]
    slow = []
    a.label(f"L_pro{var}")
    poll(a, f"L_p0_{var}", V_LF, V_F, 1, 0)
    if cfg.diag: stamp(a, 3)
    for k, nm in tail: a(read_text(nm))
    a(f"s_branch L_head{var}")
    hb, tb = Asm(), Asm()
    q = LdsQ(hb, cfg.safe)
    for k, nm in tail: q.issue(nm, k - n)
    headd, taild = dict(head), dict(tail)
    extra = {}
    def put(k, s): extra.setdefault(k, []).append(s)
    krel = max(k for k, nm in head) + 1
    put(krel - 1, f"v_add_u32 v{V_PV}, 1, v{V_PV}")
    upd = ["s_bitcmp1_b32 s40, s46", f"s_cselect_b32 s42, {XCH - 4*64}, 64",
           "s_bitcmp1_b32 s41, s46", "s_cselect_b32 s43, s44, s45",
           "s_cmp_eq_u32 s46, 15", "s_cselect_b32 s49, 1000, s46",
           f"v_add_u32 v{V_XL}, s42, v{V_XL}", f"v_lshrrev_b32 v{V_T}, 3, v{V_XL}", f"v_and_b32 v{V_T}, 32, v{V_T}",
           f"v_xor_b32 v{V_XA[0]}, v{V_XL}, v{V_T}", f"v_xor_b32 v{V_XA[1]}, 32, v{V_XA[0]}"]
    upd += [f"v_add_u32 v{V_WA[t]}, s43, v{V_WA[t]}" for t in range(3)]
    b0 = krel + 2
    for j, u in enumerate(upd): put(b0 + cfg.updstep * j, u)
    kflag = bar - cfg.cmpd - 9
    assert b0 + cfg.updstep * len(upd) <= kflag
    cur = hb
    for k, m in enumerate(ms):
        rho, i, t, qq = m
        q.need([("w", i, t, 0), ("w", i, t, 1), ("x", qq)], k)
        cur(mfma_text(m))
        D = cfg.drop
        for s in extra.get(k, []): cur(s)
        if k == krel: q.issue(("rel",), k, f"ds_write_b32 v{V_CP}, v{V_PV}")
        if k == kflag: q.issue(("flag",), k, f"ds_read_b32 v{V_F}, v{V_LF}")
        if k == bar - cfg.cmpd - 1: q.need([("flag",)], k)
        if k == bar - cfg.cmpd: cur(f"v_cmp_gt_u32 vcc, s49, v{V_F}")
        if k == bar:
            cur = tb; q.a = tb
        if k in headd: q.issue(headd[k], k, read_text(headd[k]))
        if k in taild: q.issue(("next",) + taild[k], k, read_text(taild[k]))
        if k == n - 9: cur("s_add_u32 s46, s46, 1")
    if cfg.align: a(".p2align 6")
    a.label(f"L_top{var}")
    a.lines += tb.lines
    a.label(f"L_head{var}")
    a.lines += hb.lines
    a(f"s_cbranch_vccz L_top{var}")
    a(f"v_cmp_gt_u32 vcc, s46, v{V_F}")
    a(f"s_cbranch_vccnz L_slow{var}")
    a.label(f"L_fin{var}")
    a.lines += tb.lines
    if cfg.diag: stamp(a, 4)
    if cfg.cpf: a("s_waitcnt vmcnt(0)")
    ls = last_order(var, cfg)
    lf, ll = uses(ls)
    lplaced = edf([(nm, 0, lf[nm]) for _, nm in head], 0, n, min(cfg.lead, 6))
    q = LdsQ(a, cfg.safe)
    for k, nm in tail: q.issue(nm, k - n)
    endk = {}
    for k, (rho, i, t, qq) in enumerate(ls): endk[(rho, t)] = k
    def cvt2(D, S, e):
        return [(e, f"v_cvt_pk_bf16_f32 v{D}, v{S}, v{S+1}"), (e, f"v_cvt_pk_bf16_f32 v{D+1}, v{S+2}, v{S+3}")]
    def row_job(r, slot, pv, ready):
        S, A, B = acc(r, 0), acc(r, 1), acc(r, 2)
        e = cvt2(S, S, ready(0))
        if slot is not None: e.append((0, ("lds", f"ds_write_b64 v{V_GB}, {vr(S,2)} offset:{slot*SROW}")))
        else:
            e.append((0, f"s_add_u32 s48, s47, {r*PROW}"))
            e.append((0, f"buffer_store_dwordx2 {vr(S,2)}, v{V_SC}, s[24:27], s48 offen{cfg.stflag}"))
        e += cvt2(A, A, ready(1)) + cvt2(A + 2, B, ready(2))
        e.append((0, f"v_mov_b32 v{V_PV}, {pv}" if slot is not None else "s_nop 0"))
        e.append((0, "GAP"))
        e.append((0, f"v_permlane16_swap_b32 v{A}, v{A+2}"))
        e.append((0, f"v_permlane16_swap_b32 v{A+1}, v{A+3}"))
        if slot is not None:
            e.append((0, ("lds", f"ds_write_b128 v{V_GA}, {vr(A,4)} offset:{slot*SROW}")))
            e.append((0, ("lds", f"ds_write_b32 v{V_CP}, v{V_PV}")))
        else:
            e.append((0, f"buffer_store_dwordx4 {vr(A,4)}, v{V_SA}, s[24:27], s48 offen{cfg.stflag}"))
        return e
    seq = []
    for r in range(6):
        job = row_job(r, r if r < 5 else None, 18 + 2 * r, lambda t: endk[(r, t)] + 8)
        if r == 0 and var == 1:
            ksh = max(endk[(6, t)] for t in range(3))
            pub = [(ksh + 8, ("lds", f"ds_write_b128 v{V_RED}, {vr(acc(6,tt),4)} offset:{tt*1024}")) for tt in range(3)]
            pub += [(0, f"v_mov_b32 v{V_PV}, 17"), (0, ("lds", f"ds_write_b32 v{V_CP}, v{V_PV}"))]
            job = job[:5] + pub + job[5:]
        seq += job
        if r == 0 and var == 0:
            seq += [(cfg.xbar, ("ldsn", "flag", f"ds_read_b32 v{V_F}, v{V_PF}"))]
        if r == 1 and var == 0:
            tailjob = seq[-8:]; seq = seq[:-8]
            seq += [(cfg.xbar + 6, ("need", "flag")), (0, f"v_cmp_gt_u32 vcc, 17, v{V_F}")]
            seq += tailjob
            seq += [(0, ("br", "L_slowp", "L_okp"))]
            slow.append(("L_slowp", V_PF, "17", "L_okp"))
            seq += [(0, ("ldsn", f"p{tt}", f"ds_read_b128 {vr(V_P+4*tt,4)}, v{V_RED} offset:{tt*1024}")) for tt in range(3)]
        if r == 2 and var == 0:
            seq += [(0, ("need", "p2"))]
            seq += [(0, f"v_add_f32 v{acc(6,0)+k}, v{acc(6,0)+k}, v{V_P+k}") for k in range(12)]
            seq += row_job(6, 10, 23, lambda t: 0)
    nl = [0]
    def emit_ex(e, k):
        if isinstance(e, tuple):
            if e[0] == "lds":
                nl[0] += 1; q.issue(("st", nl[0]), k, e[1])
            elif e[0] == "ldsn": q.issue((e[1],), k, e[2])
            elif e[0] == "need": q.need([(e[1],)], k)
            elif e[0] == "br":
                a(f"s_cbranch_vccnz {e[1]}"); a.label(e[2])
        else: a(e)
    for k, m in enumerate(ls):
        rho, i, t, qq = m
        q.need([("w", i, t, 0), ("w", i, t, 1), ("x", qq)], k)
        a(mfma_text(m))
        cnt = 0
        if k in lplaced:
            q.issue(lplaced[k], k, read_text(lplaced[k])); cnt += 1
        while seq and cnt < cfg.exper and seq[0][0] <= k:
            _, e = seq.pop(0)
            if e == "GAP": break
            emit_ex(e, k); cnt += 1
    k = n - 1
    while seq:
        e0, e = seq.pop(0)
        if e0 > k:
            a(f"s_nop {e0 - k - 1}"); k = e0
        if e == "GAP": a("s_nop 0")
        else: emit_ex(e, k)
        k += 1
    if cfg.diag:
        stamp(a, 5)
        a("s_waitcnt vmcnt(0)")
        stamp(a, 6)
        a("s_branch L_dump")
    else:
        a("s_endpgm")
    poll(a, f"L_slow{var}", V_LF, V_F, "s46", 0)
    a("s_cmp_eq_u32 s46, 15")
    a(f"s_cbranch_scc1 L_fin{var}")
    a(f"s_branch L_top{var}")
    for lab, va, need, back in slow:
        poll(a, lab, va, V_F, need, 0)
        a(f"s_branch {back}")

def stamp(a, idx):
    a(f"s_memtime s[{60+2*idx}:{61+2*idx}]")
    if idx in (3, 5):
        a(f"s_memrealtime s[{86 if idx == 3 else 88}:{87 if idx == 3 else 89}]")
    a("s_waitcnt lgkmcnt(0)")

def dump_stamps(a, cfg):
    a.label("L_dump")
    a("s_memrealtime s[76:77]")
    a("s_getreg_b32 s78, hwreg(HW_REG_HW_ID)")
    a("s_getreg_b32 s79, hwreg(HW_REG_XCC_ID)")
    a("s_waitcnt lgkmcnt(0)")
    a("s_mov_b32 s80, s12")
    a("s_mov_b32 s81, s13")
    a("s_mov_b32 s82, 0x100000")
    a("s_mov_b32 s83, 0x20000")
    a("s_lshl_b32 s84, s2, 3")
    a("s_add_u32 s84, s84, s32")
    a("s_lshl_b32 s84, s84, 6")
    a("v_mov_b32 v4, 0")
    for k, s in enumerate([60, 62, 64, 66, 68, 70, 72, 74, 76, 77, 78, 79, 58, 59, 86, 88]):
        a(f"v_mov_b32 v5, s{s}")
        a(f"buffer_store_dword v5, v4, s[80:83], s84 offen offset:{4*k}")
        a("s_nop 1")
    a("v_and_b32 v1, 63, v0")
    a("v_lshlrev_b32 v4, 2, v1")
    a("v_cmp_gt_u32 vcc, 16, v1")
    a("s_and_saveexec_b64 s[92:93], vcc")
    a("s_lshl_b32 s84, s84, 2")
    a("s_add_u32 s84, s84, 0x40000")
    for k in range(3):
        a(f"buffer_store_dword v{44+k}, v4, s[80:83], s84 offen offset:{64*k}")
    a("s_waitcnt vmcnt(0)")
    a("s_endpgm")

def srd(a, d, p, size):
    a(f"s_mov_b32 s{d}, s{p}")
    a(f"s_and_b32 s{d+1}, s{p+1}, 0xffff")
    a(f"s_mov_b32 s{d+2}, {size}")
    a(f"s_mov_b32 s{d+3}, 0x20000")

def gen(cfg):
    a = Asm()
    hdr = open("standalone__dilated_atrous__vision.s.ref").read().splitlines()
    head = [l for l in hdr[:8] if l.startswith(";") and "@launch" not in l]
    out = "\n".join(head) + "\n"
    out += f"; @launch grid=(256,1,1) block=(512,1,1) lds={LDS_TOTAL}\n"
    out += f""".amdgcn_target "amdgcn-amd-amdhsa--gfx950"
.text
.globl {NAME}_kernel
.p2align 8
.type {NAME}_kernel,@function
{NAME}_kernel:
"""
    def trace(reg, idx):
        if cfg.trace:
            a("s_memtime s[90:91]")
            a(f"s_mov_b32 m0, {idx}")
            a("s_waitcnt lgkmcnt(0)")
            a(f"v_writelane_b32 v{reg}, s90, m0")
    if cfg.diag:
        a("s_memtime s[60:61]")
        a("s_memrealtime s[58:59]")
        a("s_load_dwordx2 s[12:13], s[0:1], 32")
    a("s_load_dwordx4 s[4:7], s[0:1], 0")
    a("s_load_dwordx2 s[8:9], s[0:1], 16")
    if WD: a("s_mov_b32 s94, 0")
    a("s_cmp_ge_u32 s2, 256")
    a("s_cbranch_scc1 L_exit")
    a("s_and_b32 s28, s2, 1")
    a("s_bfe_u32 s3, s2, 0x20001")
    a("s_lshl_b32 s3, s3, 5")
    a("s_lshr_b32 s33, s2, 3")
    a("s_add_u32 s3, s3, s33")
    a("s_cmp_ge_u32 s3, 126")
    a("s_cbranch_scc1 L_exit")
    a("v_lshrrev_b32 v2, 6, v0")
    a("v_and_b32 v1, 63, v0")
    a("v_readfirstlane_b32 s32, v2")
    a("v_lshlrev_b32 v30, 2, v0")
    a(f"v_add_u32 v30, {FLAGS}, v30")
    a("v_mov_b32 v31, 0")
    a("ds_write_b32 v30, v31")
    a("s_mul_i32 s33, s3, 4682")
    a("s_lshr_b32 s33, s33, 16")
    a("s_mul_i32 s34, s33, 14")
    a("s_sub_u32 s34, s3, s34")
    a("s_and_b32 s29, s34, 1")
    a("s_lshr_b32 s30, s34, 1")
    a("s_lshl_b32 s30, s30, 4")
    a("s_mul_i32 s31, s33, 25")
    a("s_lshr_b32 s31, s31, 1")
    a("s_and_b32 s34, s33, 1")
    a("s_lshl_b32 s35, s31, 1")
    a("s_add_u32 s35, s35, s28")
    a(f"s_mul_i32 s35, s35, {ROWB}")
    a("s_lshl_b32 s36, s30, 1")
    a("s_add_u32 s36, s36, s29")
    a("s_mul_i32 s36, s36, 192")
    a("s_lshl_b32 s52, s29, 1")
    a("s_sub_u32 s52, 2, s52")
    a("s_cmp_ge_u32 s32, 4")
    if cfg.cpf:
        a("s_cbranch_scc0 L_ld")
        a("s_getpc_b64 s[38:39]")
        a.label("L_pc")
        a("s_lshr_b32 s37, s2, 1")
        a("s_and_b32 s37, s37, 0x7c")
        a("s_add_u32 s37, s37, s32")
        a("s_min_u32 s37, s37, (L_end-L_pc)/128")
        a("s_lshl_b32 s37, s37, 7")
        a("s_add_u32 s38, s38, s37")
        a("s_addc_u32 s39, s39, 0")
        a("v_mov_b32 v12, s38")
        a("v_mov_b32 v13, s39")
        a("global_load_dword v14, v[12:13], off")
        a("s_branch L_compute")
        a.label("L_ld")
    else:
        a("s_cbranch_scc1 L_compute")
    if cfg.bench:
        a("v_mov_b32 v31, 100")
        a("ds_write_b32 v30, v31")
        a("s_waitcnt lgkmcnt(0)")
        a("s_barrier")
        a("s_branch L_dump")
    a("s_add_u32 s37, s35, s36")
    a(f"s_sub_u32 s37, s37, {2*PROW + 2*384}")
    a("s_sub_u32 s38, s30, 2")
    a("s_cmp_eq_u32 s29, 0")
    a("s_cselect_b32 s14, 32, -32")
    a("s_cselect_b32 s15, 0, 320")
    a(f"s_mul_i32 s10, s14, {8*PROW//32}")
    a("s_and_b32 s11, s32, 1")
    a("s_lshl_b32 s39, s11, 4")
    a("s_add_u32 s15, s15, s39")
    a("v_lshrrev_b32 v13, 2, v1")
    a("v_add_u32 v13, s15, v13")
    a("v_lshrrev_b32 v14, 3, v1")
    a("v_and_b32 v14, 2, v14")
    a("v_and_b32 v15, 3, v1")
    a("v_xor_b32 v14, v14, v15")
    a("v_lshlrev_b32 v14, 4, v14")
    a("v_add_u32 v14, s37, v14")
    a("v_bfrev_b32 v19, 1")
    a("s_movk_i32 s39, 3277")
    a(f"s_mov_b32 s49, {PROW}")
    a("s_movk_i32 s50, 384")
    a("s_movk_i32 s51, 112")
    for b in range(5):
        a("v_mul_u32_u24 v15, s39, v13")
        a("v_lshrrev_b32 v15, 16, v15")
        a("v_mul_u32_u24 v16, 20, v15")
        a("v_sub_u32 v16, v13, v16")
        a("v_add_u32 v17, s38, v16")
        a("v_cmp_gt_u32 vcc, s51, v17")
        a("v_mad_u32_u24 v18, v15, s49, v14")
        a("v_mad_u32_u24 v18, v16, s50, v18")
        a(f"v_cndmask_b32 v{2+b}, v19, v18, vcc")
        if b < 4: a("v_add_u32 v13, s14, v13")
        a(f"v_add_u32 v{7+b}, s10, v{2+b}")
    a("v_add_u32 v12, s10, v7")
    a("s_lshl_b32 s57, s52, 6")
    a("s_lshl_b32 s56, s15, 6")
    a("s_lshl_b32 s14, s14, 6")
    a("s_lshr_b32 s39, s2, 4")
    a("v_mul_u32_u24 v24, 43, v1")
    a("v_lshrrev_b32 v24, 9, v24")
    a("v_mul_u32_u24 v25, 12, v24")
    a("v_sub_u32 v25, v1, v25")
    a("v_mul_u32_u24 v24, 92160, v24")
    a("v_lshl_add_u32 v24, v25, 7, v24")
    a("s_bfe_u32 s49, s39, 0x10002")
    a("s_add_u32 s49, s49, 1")
    a("s_mul_i32 s49, s49, 18432")
    a("s_and_b32 s50, s39, 3")
    a("s_mul_i32 s50, s50, 1536")
    a("s_add_u32 s49, s49, s50")
    a("s_mul_i32 s37, s52, 6144")
    a("s_add_u32 s49, s49, s37")
    a("s_mov_b32 s10, s49")
    C = sum(((thr << 4) | m) << (8 * k) for k, (thr, m) in enumerate(cfg.xb))
    assert len(cfg.xb) <= 8
    a(f"s_mov_b32 s92, {C & 0xffffffff:#x}")
    a(f"s_mov_b32 s93, {C >> 32:#x}")
    a("s_mov_b32 s15, 15")
    a("s_cmp_ge_u32 s32, 2")
    a("s_cselect_b32 s95, 1, 0")
    a("s_cmp_eq_u32 s95, 1")
    a("s_cbranch_scc1 L_k")
    a.label("L_wsetup")
    a("v_lshlrev_b32 v20, 4, v1")
    a("v_cmp_gt_u32 vcc, 32, v1")
    a("v_xor_b32 v22, 32, v20")
    a("s_mul_i32 s38, s39, 52")
    a("v_cndmask_b32 v21, v22, v20, vcc")
    a("s_lshr_b32 s38, s38, 8")
    a("s_mul_i32 s38, s38, 5")
    a("s_sub_u32 s38, s39, s38")
    for i in range(5):
        a(f"s_mul_i32 s{40+i}, s38, 6144")
        a(f"s_mul_i32 s{45+i}, s{40+i}, 15")
        if i < 4:
            a("s_add_u32 s38, s38, 1")
            a("s_cmp_eq_u32 s38, 5")
            a("s_cselect_b32 s38, 0, s38")
    a(f"s_mul_i32 s54, s95, {WBUF}")
    a(f"s_add_u32 s54, s54, {WBASE}")
    a("s_mul_i32 s50, s95, 18432")
    a("s_add_u32 s37, s37, s50")
    a("s_mov_b32 s55, 0")
    a("s_cmp_eq_u32 s95, 1")
    a("s_cbranch_scc1 L_xret")
    a.label("L_k")
    a("s_waitcnt lgkmcnt(0)")
    if cfg.diag: stamp(a, 1)
    srd(a, 16, 4, XBYTES)
    srd(a, 20, 6, WBYTES)
    a("s_cmp_eq_u32 s95, 1")
    a("s_cbranch_scc0 L_wld")
    if cfg.order:
        a("s_cmp_eq_u32 s34, 1")
        a("s_cbranch_scc1 L_x_loop")
        if cfg.epf:
            a("s_cmp_lg_u32 s32, 2")
            a("s_cbranch_scc1 L_x_np")
            a("buffer_load_dword v25, v24, s[20:23], s10 offen")
            a.label("L_x_np")
        a("s_barrier")
    a.label("L_x_loop")
    for blk in range(4):
        a(f"s_bitcmp1_b32 s15, {blk}")
        a(f"s_cbranch_scc0 L_x{blk}")
        for k in range(3 * blk, min(3 * blk + 3, 11)):
            a("s_mov_b32 m0, s56")
            a("s_add_u32 s56, s56, s14")
            a(f"buffer_load_dwordx4 v{2+k}, s[16:19], s57 offen lds")
        if blk == 3:
            a("s_mul_i32 s50, s14, -11")
            a("s_add_u32 s56, s56, s50")
            a(f"s_add_u32 s56, s56, {XCH}")
            a("s_add_u32 s57, s57, 64")
            a("s_cmp_eq_u32 s57, 192")
            a("s_cselect_b32 s57, 0, s57")
            a(f"s_cmp_ge_u32 s56, {2*XCH}")
            a("s_cbranch_scc1 L_x_sig")
            if cfg.diag: stamp(a, 2)
            if cfg.order:
                a("s_cmp_eq_u32 s34, 0")
                a("s_cbranch_scc1 L_wsetup")
            a("s_barrier")
            a("s_branch L_wsetup")
            a.label("L_xret")
            a("v_mov_b32 v26, 1")
            a("s_waitcnt vmcnt(0)")
            a("ds_write_b32 v30, v26")
            trace(45, 0)
            a("s_branch L_w_go")
            a.label("L_x_w1")
            a("s_lshr_b32 s39, s2, 3")
            a("s_lshl_b32 s39, s39, 1")
            a("s_add_u32 s39, s39, s11")
            a("s_mul_i32 s39, s39, 57")
            a("v_add_u32 v19, s39, v1")
            a("v_lshlrev_b32 v19, 7, v19")
            a("v_and_b32 v22, 1, v1")
            a(f"v_lshlrev_b32 v22, 8, v22")
            a(f"v_add_u32 v22, {FLAGS}, v22")
            a.label("L_x_sig")
            a("v_add_u32 v31, 5, v31")
            a("s_waitcnt vmcnt(0)")
            a("ds_write_b32 v30, v31")
            trace(45, "s51")
        a.label(f"L_x{blk}")
    a("s_and_b32 s15, s92, 15")
    a("s_cbranch_scc0 L_store")
    a("s_bfe_u32 s51, s92, 0x40004")
    a("s_lshr_b64 s[92:93], s[92:93], 8")
    poll(a, "L_x_poll", 22, 23, "s51", cfg.sleep)
    trace(44, "s51")
    if cfg.wpf:
        a(f"s_cmp_lg_u32 s51, {cfg.xb[0][0]}")
        a("s_cbranch_scc1 L_x_loop")
        a("buffer_load_dword v21, v19, s[20:23], 0 offen")
    a("s_branch L_x_loop")
    a.label("L_wld")
    if cfg.order:
        a("s_cmp_eq_u32 s34, 0")
        a("s_cbranch_scc1 L_w_go")
        a("s_barrier")
    a.label("L_w_go")
    a("s_cmp_eq_u32 s11, 1")
    a("s_cbranch_scc1 L_w_half")
    a.label("L_w_loop")
    for hh in range(10):
        i, h = hh >> 1, hh & 1
        if hh == 5:
            a("s_cmp_eq_u32 s55, 0")
            a("s_cbranch_scc1 L_w_first")
            a.label("L_w_half")
        if h == 0 or hh == 5:
            a(f"s_add_u32 m0, s54, s{40+i}")
            a(f"s_add_u32 s50, s37, s{45+i}")
        if h == 1:
            a("s_add_u32 m0, m0, 3072")
            a("s_add_u32 s50, s50, 3072")
        for k in range(3):
            a(f"buffer_load_dwordx4 v{20+k}, s[20:23], s50 offen offset:{k*1024} lds")
    a("s_cmp_lg_u32 s55, 0")
    a("s_cbranch_scc1 L_w_adv")
    a.label("L_w_first")
    if cfg.trace: a("s_mov_b32 s51, 1")
    a("s_cmp_eq_u32 s95, 1")
    a("s_cbranch_scc1 L_x_w1")
    if cfg.order:
        a("s_cmp_eq_u32 s34, 1")
        a("s_cbranch_scc1 L_w_nb1")
    a("s_barrier")
    a.label("L_w_nb1")
    a("v_and_b32 v23, 3, v1")
    a("v_lshlrev_b32 v23, 8, v23")
    a(f"v_add_u32 v23, {FLAGS + 1024}, v23")
    a("s_mov_b32 s55, s32")
    a("s_mov_b32 s53, s32")
    a(f"s_mul_i32 s50, s32, {WBUF}")
    a("s_add_u32 s54, s54, s50")
    a("v_mov_b32 v31, s32")
    a.label("L_w_adv")
    trace(44, "s55")
    a(f"s_sub_u32 s54, s54, {WBUF}")
    a(f"s_cmp_lt_u32 s54, {WBASE}")
    a(f"s_cselect_b32 s50, {3*WBUF}, 0")
    a("s_add_u32 s54, s54, s50")
    a("s_add_u32 s53, s53, 2")
    a("s_cmp_ge_u32 s53, 5")
    a("s_cselect_b32 s50, 5, 0")
    a("s_sub_u32 s53, s53, s50")
    a("s_lshr_b32 s50, s50, 2")
    a("s_add_u32 s52, s52, s50")
    a("s_cmp_eq_u32 s52, 3")
    a("s_cselect_b32 s52, 0, s52")
    a("s_mul_i32 s37, s53, 18432")
    a("s_mul_i32 s50, s52, 6144")
    a("s_add_u32 s37, s37, s50")
    a("v_add_u32 v31, 2, v31")
    a("s_waitcnt vmcnt(0)")
    a("ds_write_b32 v30, v31")
    trace(45, "s55")
    a("s_add_u32 s55, s55, 2")
    a("s_cmp_ge_u32 s55, 15")
    a("s_cbranch_scc1 L_store")
    a("s_sub_u32 s51, s55, 2")
    a("s_cmp_eq_u32 s51, 0")
    a("s_cbranch_scc1 L_w_loop")
    poll(a, "L_w_poll", 23, 24, "s51", cfg.sleep)
    trace(46, "s55")
    a("s_branch L_w_loop")
    a.label("L_store")
    srd(a, 24, 8, XBYTES)
    a("s_lshr_b32 s37, s32, 1")
    a("s_and_b32 s38, s32, 1")
    a("s_movk_i32 s39, 171")
    a("s_movk_i32 s49, 208")
    a("s_movk_i32 s50, 384")
    for k in range(3):
        a(f"v_add_u32 v10, {64*k}, v1")
        a("v_mul_u32_u24 v11, s39, v10")
        a("v_lshrrev_b32 v11, 11, v11")
        a("v_mul_u32_u24 v12, 12, v11")
        a("v_sub_u32 v12, v10, v12")
        a("v_lshlrev_b32 v12, 4, v12")
        a(f"v_mad_u32_u24 v{2+k}, v11, s49, v12")
        a(f"v_mad_u32_u24 v{5+k}, v11, s50, v12")
    a("v_and_b32 v10, 1, v1")
    a("v_lshlrev_b32 v10, 8, v10")
    a("s_lshl_b32 s39, s37, 9")
    a(f"s_add_u32 s39, s39, {FLAGS + 1024}")
    a("v_add_u32 v10, s39, v10")
    a("s_add_u32 s39, s34, 6")
    a("s_mul_i32 s39, s39, s37")
    a("s_add_u32 s39, s39, s38")
    a(f"s_mul_i32 s47, s39, {PROW}")
    a("s_add_u32 s47, s47, s35")
    a("s_add_u32 s47, s47, s36")
    a("s_mul_i32 s39, s37, 5")
    a("s_add_u32 s39, s39, s38")
    a(f"s_mul_i32 s48, s39, {SROW}")
    a("s_lshl_b32 s51, s38, 1")
    a("s_add_u32 s51, s51, 18")
    a.label("L_st_loop")
    for k in range(3): a(f"v_add_u32 v{12+k}, s48, v{2+k}")
    poll(a, "L_st_poll", 10, 11, "s51", cfg.sleep2)
    for k in range(3): a(f"ds_read_b128 {vr(16+4*k,4)}, v{12+k}")
    for k in range(3):
        a(f"s_waitcnt lgkmcnt({2-k})")
        a(f"buffer_store_dwordx4 {vr(16+4*k,4)}, v{5+k}, s[24:27], s47 offen{cfg.stflag}")
    a(f"s_add_u32 s47, s47, {2*PROW}")
    a(f"s_add_u32 s48, s48, {2*SROW}")
    a("s_add_u32 s51, s51, 4")
    a("s_cmp_lt_u32 s51, 27")
    a("s_cbranch_scc1 L_st_loop")
    a("s_cmp_lg_u32 s51, 28")
    a("s_cbranch_scc1 L_st_end")
    a("s_cmp_lg_u32 s32, s34")
    a("s_cbranch_scc1 L_st_end")
    a(f"s_add_u32 s47, s47, {PROW}")
    a(f"s_mov_b32 s48, {10*SROW}")
    a("s_mov_b32 s51, 23")
    a("s_branch L_st_loop")
    a.label("L_st_end")
    if cfg.diag:
        stamp(a, 5)
        a("s_waitcnt vmcnt(0)")
        stamp(a, 6)
        dump_stamps(a, cfg)
    a.label("L_exit")
    a("s_endpgm")
    a.label("L_compute")
    if cfg.cbar == 0:
        a("s_waitcnt lgkmcnt(0)")
        a("s_barrier")
    a("s_sub_u32 s37, s32, 4")
    a("s_and_b32 s38, s37, 1")
    a("s_lshr_b32 s37, s37, 1")
    a("s_add_u32 s39, s34, 6")
    a("s_mul_i32 s49, s37, s39")
    a(f"v_mov_b32 v{V_CP}, v30")
    a(f"v_xor_b32 v{V_PF}, 512, v30")
    a(f"v_mov_b32 v{V_PV}, 0")
    a("v_and_b32 v32, 15, v1")
    a("v_lshrrev_b32 v33, 4, v1")
    a("v_and_b32 v34, 1, v33")
    a("v_lshrrev_b32 v35, 1, v33")
    a("v_bfe_u32 v36, v1, 2, 2")
    a("v_and_b32 v37, 3, v1")
    a(f"v_lshlrev_b32 v{V_LF}, 8, v37")
    a(f"v_add_u32 v{V_LF}, {FLAGS}, v{V_LF}")
    a("s_mul_i32 s39, s38, 3072")
    a(f"s_add_u32 s39, s39, {PART}")
    a(f"v_lshlrev_b32 v{V_RED}, 4, v1")
    a(f"v_add_u32 v{V_RED}, s39, v{V_RED}")
    a("s_lshl_b32 s39, s38, 7")
    a("v_lshlrev_b32 v40, 5, v34")
    a("v_lshl_add_u32 v40, v35, 4, v40")
    a("v_add_u32 v40, s39, v40")
    a("s_lshl_b32 s39, s38, 5")
    a("s_add_u32 s39, s39, 64")
    a("v_lshlrev_b32 v41, 3, v33")
    a("v_add_u32 v41, s39, v41")
    a("v_mul_u32_u24 v38, 384, v32")
    a("v_add_u32 v38, s36, v38")
    a(f"v_add_u32 v{V_SA}, v38, v40")
    a(f"v_add_u32 v{V_SC}, v38, v41")
    a("v_mul_u32_u24 v38, 208, v32")
    a(f"s_mul_i32 s39, s37, {5*SROW}")
    a("v_add_u32 v38, s39, v38")
    a(f"v_add_u32 v{V_GA}, v38, v40")
    a(f"v_add_u32 v{V_GB}, v38, v41")
    a(f"s_mul_i32 s47, s49, {PROW}")
    a("s_add_u32 s47, s47, s35")
    a("v_lshl_add_u32 v38, v33, 3, v36")
    a("v_mul_u32_u24 v38, 192, v38")
    a("v_lshl_add_u32 v38, v37, 3, v38")
    a(f"v_add_u32 v38, {WBASE}, v38")
    a("s_add_u32 s39, s38, 2")
    a("v_xor_b32 v39, s39, v34")
    a(f"v_lshl_add_u32 v{V_WA[0]}, v39, 5, v38")
    a("s_lshl_b32 s39, s38, 2")
    a("v_xor_b32 v39, s39, v34")
    a(f"v_lshl_add_u32 v{V_WA[1]}, v39, 5, v38")
    a("v_xor_b32 v39, 1, v39")
    a(f"v_lshl_add_u32 v{V_WA[2]}, v39, 5, v38")
    a("v_lshlrev_b32 v38, 6, v32")
    a("v_lshl_add_u32 v38, v33, 4, v38")
    a(f"s_mul_i32 s39, s49, {XROW}")
    a(f"v_add_u32 v{V_XL}, s39, v38")
    a(f"v_lshrrev_b32 v{V_T}, 3, v{V_XL}")
    a(f"v_and_b32 v{V_T}, 32, v{V_T}")
    a(f"v_xor_b32 v{V_XA[0]}, v{V_XL}, v{V_T}")
    a(f"v_xor_b32 v{V_XA[1]}, 32, v{V_XA[0]}")
    for k in range(84):
        a(f"v_mov_b32 v{V_ACC+k}, 0")
    a(f"s_mov_b32 s40, {(1 << 6) | (1 << 11)}")
    a(f"s_mov_b32 s41, {sum(1 << (h + 1) for h in (3, 6, 9, 12))}")
    a(f"s_mov_b32 s44, {(-2*WBUF) & 0xffffffff}")
    a(f"s_mov_b32 s45, {WBUF}")
    a("s_mov_b32 s46, 2")
    if cfg.cbar == 1:
        a("s_waitcnt lgkmcnt(0)")
        a("s_barrier")
    if cfg.diag: stamp(a, 1)
    srd(a, 24, 8, XBYTES)
    if cfg.prio: a(f"s_setprio {cfg.prio}")
    a("s_cmp_eq_u32 s34, 0")
    a("s_cbranch_scc1 L_pro2")
    a("s_cmp_eq_u32 s37, 1")
    a("s_cbranch_scc1 L_pro1")
    for var in range(3):
        emit_variant(a, var, cfg)
    a.label("L_end")
    a("s_endpgm")
    out += a.text()
    nv = (V_END + 7) // 8 * 8
    out += f""".section .rodata,"a"
.p2align 6
.amdhsa_kernel {NAME}_kernel
  .amdhsa_next_free_vgpr {nv}
  .amdhsa_next_free_sgpr 96
  .amdhsa_accum_offset {nv}
  .amdhsa_group_segment_fixed_size 0
  .amdhsa_kernarg_size 40
  .amdhsa_user_sgpr_count 2
  .amdhsa_user_sgpr_kernarg_segment_ptr 1
  .amdhsa_system_sgpr_workgroup_id_x 1
.end_amdhsa_kernel
"""
    return out

if __name__ == "__main__":
    p = argparse.ArgumentParser()
    p.add_argument("-o", default="standalone__dilated_atrous__vision.s")
    p.add_argument("--diag", action="store_true")
    p.add_argument("--trace", action="store_true")
    p.add_argument("--bar_pos", type=int, default=60)
    p.add_argument("--xbar", type=int, default=40)
    p.add_argument("--lead", type=int, default=8)
    p.add_argument("--safe", type=int, default=8)
    p.add_argument("--prio", type=int, default=1)
    p.add_argument("--align", type=int, default=1)
    p.add_argument("--snake", type=int, default=0)
    p.add_argument("--exper", type=int, default=2)
    p.add_argument("--order", type=int, default=1)
    p.add_argument("--wpf", type=int, default=1)
    p.add_argument("--epf", type=int, default=1)
    p.add_argument("--cpf", type=int, default=1)
    p.add_argument("--sleep", type=int, default=2)
    p.add_argument("--sleep2", type=int, default=1)
    p.add_argument("--stflag", default="nt")
    p.add_argument("--wd", type=int, default=1)
    p.add_argument("--bench", action="store_true")
    p.add_argument("--drop", default="")
    p.add_argument("--cmpd", type=int, default=4)
    p.add_argument("--updstep", type=int, default=1)
    p.add_argument("--xthr", type=int, default=2)
    p.add_argument("--cbar", type=int, default=0)
    p.add_argument("--w2wait", type=int, default=1)
    p.add_argument("--xb", default="4:3,5:12,8:3,9:12")
    cfg = p.parse_args()
    cfg.xb = [tuple(int(v) for v in e.split(":")) for e in cfg.xb.split(",")]
    WD = cfg.wd
    if cfg.stflag: cfg.stflag = " " + cfg.stflag
    open(cfg.o, "w").write(gen(cfg))
```

```python
import sys, argparse

NAME = "standalone__dilated_atrous__vision"
XBYTES = 224 * 224 * 96 * 2
WBYTES = 25 * 96 * 96 * 2
ROWB = 224 * 192
PROW = 2 * ROWB
XCH = 352 * 64
XROW = 20 * 64
WBASE = 3 * XCH
WBUF = 5 * 6144
FLAGS = WBASE + 3 * WBUF
LDS_TOTAL = FLAGS + 2048
SROW = 16 * 208
PART = 11 * SROW
assert PART + 6144 <= 2 * XCH

class Asm:
    def __init__(self):
        self.lines = []
    def __call__(self, s):
        self.lines.append("    " + s)
    def label(self, l):
        self.lines.append(l + ":")
    def comment(self, s):
        self.lines.append("    ; " + s)
    def text(self):
        return "\n".join(self.lines) + "\n"

def vr(b, n):
    return f"v[{b}:{b+n-1}]"

V_XL = 1
V_XA = (2, 3)
V_WA = (4, 5, 6)
V_SA, V_SC = 7, 8
V_GA, V_GB = 9, 10
V_T = 11
V_P = 12
V_RED = 24
V_CP = 25
V_LF = 26
V_PV = 27
V_F = 28
V_PF = 29
V_X = 32
V_W = 72
V_ACC = 132
V_END = V_ACC + 84

def acc(rho, t): return V_ACC + 4 * (rho * 3 + t)
def wreg(i, t): return V_W + 4 * (i * 3 + t)
def xreg(q): return V_X + 4 * q

def chain(rho, t, snake):
    r = list(range(5))
    if snake and rho % 2 == 1: r.reverse()
    return [(rho, i, t, rho + i) for i in r]

def shared_chain(var, t):
    if var == 0:
        return [(6, i, t, 6 + i) for i in [0, 1] + ([2] if t in (0, 1) else [])]
    if var == 1:
        return [(6, i, t, i - 1) for i in ([2] if t == 2 else []) + [3, 4]]
    return []

def steady_order(var, cfg):
    ms = []
    for t in range(3):
        if var == 1: ms += shared_chain(var, t)
        for rho in range(6): ms += chain(rho, t, cfg.snake)
        if var == 0: ms += shared_chain(var, t)
    return ms

def last_order(var, cfg):
    order = [(0, 0), (0, 1), (1, 0), "S", (0, 2), (1, 1), (1, 2)] + [(r, t) for r in range(2, 6) for t in range(3)]
    ms = []
    for o in order:
        if o == "S":
            for t in range(3): ms += shared_chain(var, t)
        else:
            ms += chain(o[0], o[1], cfg.snake)
    return ms

def uses(ms):
    first, last = {}, {}
    for k, (rho, i, t, q) in enumerate(ms):
        for key in (("w", i, t, 0), ("w", i, t, 1), ("x", q)):
            first.setdefault(key, k); last[key] = k
    return first, last

def read_text(nm):
    if nm[0] == "x":
        q = nm[1]
        return f"ds_read_b128 {vr(xreg(q),4)}, v{V_XA[q & 1]} offset:{q*XROW}"
    _, i, t, h = nm
    return f"ds_read_b64_tr_b16 {vr(wreg(i,t)+2*h,2)}, v{V_WA[t]} offset:{i*6144 + h*768}"

def edf(reads, lo, hi, lead):
    placed, pending = {}, list(reads)
    for k in range(lo, hi):
        avail = [r for r in pending if r[1] <= k]
        if not avail: continue
        r = min(avail, key=lambda r: r[2])
        placed[k] = r[0]
        pending.remove(r)
        assert r[2] - k >= lead, (r, k)
    assert not pending, pending
    return placed

def mfma_text(m):
    rho, i, t, q = m
    return f"v_mfma_f32_16x16x32_bf16 {vr(acc(rho,t),4)}, {vr(wreg(i,t),4)}, {vr(xreg(q),4)}, {vr(acc(rho,t),4)}"

class LdsQ:
    def __init__(self, a, safe):
        self.a, self.safe = a, safe
        self.ops = []
        self.done = 0
    def issue(self, name, time, text=None):
        self.ops.append((name, time))
        if text: self.a(text)
    def need(self, names, time):
        idx = max(max(j for j, (nm, _) in enumerate(self.ops) if nm == n) for n in names) + 1
        if idx <= self.done: return
        for j, (nm, tm) in enumerate(self.ops):
            if tm <= time - 1 - self.safe: idx = max(idx, j + 1)
        cnt = len(self.ops) - idx
        if cnt > 14:
            idx += cnt - 14; cnt = 14
        self.a(f"s_waitcnt lgkmcnt({cnt})")
        self.done = idx

WD = 1
def poll(a, label, vaddr, vtmp, sneed, sleep):
    a.label(label)
    if WD:
        a("s_add_u32 s94, s94, 1")
        a("s_bitcmp1_b32 s94, 18")
        a("s_cbranch_scc1 L_exit")
    a(f"ds_read_b32 v{vtmp}, v{vaddr}")
    a("s_waitcnt lgkmcnt(0)")
    a(f"v_cmp_gt_u32 vcc, {sneed}, v{vtmp}")
    if sleep:
        a(f"s_cbranch_vccz {label}_ok")
        a(f"s_sleep {sleep}")
        a(f"s_branch {label}")
        a.label(label + "_ok")
    else:
        a(f"s_cbranch_vccnz {label}")

def emit_variant(a, var, cfg):
    bar = cfg.bar_pos if var != 2 else cfg.bar_pos - 5
    ms = steady_order(var, cfg)
    n = len(ms)
    first, last = uses(ms)
    reads = [(key, max(last[key], bar), n + first[key]) for key in first]
    placed = edf(reads, bar, n + bar - 16, cfg.lead)
    tail = [(k, placed[k]) for k in sorted(placed) if k < n]
    head = [(k - n, placed[k]) for k in sorted(placed) if k >= n]
    slow = []
    a.label(f"L_pro{var}")
    poll(a, f"L_p0_{var}", V_LF, V_F, 1, 0)
    if cfg.diag: stamp(a, 3)
    if cfg.amp:
        a("s_memrealtime s[86:87]")
        a("s_waitcnt lgkmcnt(0)")
    for k, nm in tail: a(read_text(nm))
    a(f"s_branch L_head{var}")
    hb, tb = Asm(), Asm()
    q = LdsQ(hb, cfg.safe)
    for k, nm in tail: q.issue(nm, k - n)
    headd, taild = dict(head), dict(tail)
    extra = {}
    def put(k, s): extra.setdefault(k, []).append(s)
    krel = max(k for k, nm in head) + 1
    put(krel - 1, f"v_add_u32 v{V_PV}, 1, v{V_PV}")
    upd = ["s_bitcmp1_b32 s40, s46", f"s_cselect_b32 s42, {XCH - 4*64}, 64",
           "s_bitcmp1_b32 s41, s46", "s_cselect_b32 s43, s44, s45",
           "s_cmp_eq_u32 s46, 15", "s_cselect_b32 s49, 1000, s46",
           f"v_add_u32 v{V_XL}, s42, v{V_XL}", f"v_lshrrev_b32 v{V_T}, 3, v{V_XL}", f"v_and_b32 v{V_T}, 32, v{V_T}",
           f"v_xor_b32 v{V_XA[0]}, v{V_XL}, v{V_T}", f"v_xor_b32 v{V_XA[1]}, 32, v{V_XA[0]}"]
    upd += [f"v_add_u32 v{V_WA[t]}, s43, v{V_WA[t]}" for t in range(3)]
    b0 = krel + 2
    for j, u in enumerate(upd): put(b0 + cfg.updstep * j, u)
    kflag = bar - cfg.cmpd - 9
    assert b0 + cfg.updstep * len(upd) <= kflag
    cur = hb
    for k, m in enumerate(ms):
        rho, i, t, qq = m
        q.need([("w", i, t, 0), ("w", i, t, 1), ("x", qq)], k)
        cur(mfma_text(m))
        D = cfg.drop
        for s in extra.get(k, []): cur(s)
        if k == krel: q.issue(("rel",), k, f"ds_write_b32 v{V_CP}, v{V_PV}")
        if k == kflag: q.issue(("flag",), k, f"ds_read_b32 v{V_F}, v{V_LF}")
        if k == bar - cfg.cmpd - 1: q.need([("flag",)], k)
        if k == bar - cfg.cmpd: cur(f"v_cmp_gt_u32 vcc, s49, v{V_F}")
        if k == bar:
            cur = tb; q.a = tb
        if k in headd: q.issue(headd[k], k, read_text(headd[k]))
        if k in taild: q.issue(("next",) + taild[k], k, read_text(taild[k]))
        if k == n - 9: cur("s_add_u32 s46, s46, 1")
    if cfg.align: a(".p2align 6")
    a.label(f"L_top{var}")
    a.lines += tb.lines
    a.label(f"L_head{var}")
    a.lines += hb.lines
    a(f"s_cbranch_vccz L_top{var}")
    a(f"v_cmp_gt_u32 vcc, s46, v{V_F}")
    a(f"s_cbranch_vccnz L_slow{var}")
    a.label(f"L_fin{var}")
    a.lines += tb.lines
    if cfg.diag: stamp(a, 4)
    if cfg.cpf: a("s_waitcnt vmcnt(0)")
    ls = last_order(var, cfg)
    lf, ll = uses(ls)
    lplaced = edf([(nm, 0, lf[nm]) for _, nm in head], 0, n, min(cfg.lead, 6))
    q = LdsQ(a, cfg.safe)
    for k, nm in tail: q.issue(nm, k - n)
    endk = {}
    for k, (rho, i, t, qq) in enumerate(ls): endk[(rho, t)] = k
    def cvt2(D, S, e):
        return [(e, f"v_cvt_pk_bf16_f32 v{D}, v{S}, v{S+1}"), (e, f"v_cvt_pk_bf16_f32 v{D+1}, v{S+2}, v{S+3}")]
    def row_job(r, slot, pv, ready):
        S, A, B = acc(r, 0), acc(r, 1), acc(r, 2)
        e = cvt2(S, S, ready(0))
        if slot is not None: e.append((0, ("lds", f"ds_write_b64 v{V_GB}, {vr(S,2)} offset:{slot*SROW}")))
        else:
            e.append((0, f"s_add_u32 s48, s47, {r*PROW}"))
            e.append((0, f"buffer_store_dwordx2 {vr(S,2)}, v{V_SC}, s[24:27], s48 offen{cfg.stflag}"))
        e += cvt2(A, A, ready(1)) + cvt2(A + 2, B, ready(2))
        e.append((0, f"v_mov_b32 v{V_PV}, {pv}" if slot is not None else "s_nop 0"))
        e.append((0, "GAP"))
        e.append((0, f"v_permlane16_swap_b32 v{A}, v{A+2}"))
        e.append((0, f"v_permlane16_swap_b32 v{A+1}, v{A+3}"))
        if slot is not None:
            e.append((0, ("lds", f"ds_write_b128 v{V_GA}, {vr(A,4)} offset:{slot*SROW}")))
            e.append((0, ("lds", f"ds_write_b32 v{V_CP}, v{V_PV}")))
        else:
            e.append((0, f"buffer_store_dwordx4 {vr(A,4)}, v{V_SA}, s[24:27], s48 offen{cfg.stflag}"))
        return e
    seq = []
    for r in range(6):
        job = row_job(r, r if r < 5 else None, 18 + 2 * r, lambda t: endk[(r, t)] + 8)
        if r == 0 and var == 1:
            ksh = max(endk[(6, t)] for t in range(3))
            pub = [(ksh + 8, ("lds", f"ds_write_b128 v{V_RED}, {vr(acc(6,tt),4)} offset:{tt*1024}")) for tt in range(3)]
            pub += [(0, f"v_mov_b32 v{V_PV}, 17"), (0, ("lds", f"ds_write_b32 v{V_CP}, v{V_PV}"))]
            job = job[:5] + pub + job[5:]
        seq += job
        if r == 0 and var == 0:
            seq += [(cfg.xbar, ("ldsn", "flag", f"ds_read_b32 v{V_F}, v{V_PF}"))]
        if r == 1 and var == 0:
            tailjob = seq[-8:]; seq = seq[:-8]
            seq += [(cfg.xbar + 6, ("need", "flag")), (0, f"v_cmp_gt_u32 vcc, 17, v{V_F}")]
            seq += tailjob
            seq += [(0, ("br", "L_slowp", "L_okp"))]
            slow.append(("L_slowp", V_PF, "17", "L_okp"))
            seq += [(0, ("ldsn", f"p{tt}", f"ds_read_b128 {vr(V_P+4*tt,4)}, v{V_RED} offset:{tt*1024}")) for tt in range(3)]
        if r == 2 and var == 0:
            seq += [(0, ("need", "p2"))]
            seq += [(0, f"v_add_f32 v{acc(6,0)+k}, v{acc(6,0)+k}, v{V_P+k}") for k in range(12)]
            seq += row_job(6, 10, 23, lambda t: 0)
    nl = [0]
    def emit_ex(e, k):
        if isinstance(e, tuple):
            if e[0] == "lds":
                nl[0] += 1; q.issue(("st", nl[0]), k, e[1])
            elif e[0] == "ldsn": q.issue((e[1],), k, e[2])
            elif e[0] == "need": q.need([(e[1],)], k)
            elif e[0] == "br":
                a(f"s_cbranch_vccnz {e[1]}"); a.label(e[2])
        else: a(e)
    for k, m in enumerate(ls):
        rho, i, t, qq = m
        q.need([("w", i, t, 0), ("w", i, t, 1), ("x", qq)], k)
        a(mfma_text(m))
        cnt = 0
        if k in lplaced:
            q.issue(lplaced[k], k, read_text(lplaced[k])); cnt += 1
        while seq and cnt < cfg.exper and seq[0][0] <= k:
            _, e = seq.pop(0)
            if e == "GAP": break
            emit_ex(e, k); cnt += 1
    k = n - 1
    while seq:
        e0, e = seq.pop(0)
        if e0 > k:
            a(f"s_nop {e0 - k - 1}"); k = e0
        if e == "GAP": a("s_nop 0")
        else: emit_ex(e, k)
        k += 1
    if cfg.diag:
        stamp(a, 5)
        a("s_waitcnt vmcnt(0)")
        stamp(a, 6)
        a("s_branch L_dump")
    elif cfg.amp:
        a("s_waitcnt vmcnt(0)")
        a("s_memrealtime s[88:89]")
        a("s_waitcnt lgkmcnt(0)")
        lo, hi = {"pro": (58, 86), "all": (58, 88), "loop": (86, 88), "none": (58, 58)}[cfg.amp]
        a(f"s_sub_u32 s90, s{hi}, s{lo}")
        a("s_mul_i32 s90, s90, 10")
        a.label(f"L_amp{var}")
        a("s_memrealtime s[76:77]")
        a("s_waitcnt lgkmcnt(0)")
        a("s_sub_u32 s91, s76, s88")
        a("s_cmp_lt_u32 s91, s90")
        a(f"s_cbranch_scc1 L_amp{var}")
        a("s_endpgm")
    else:
        a("s_endpgm")
    poll(a, f"L_slow{var}", V_LF, V_F, "s46", 0)
    a("s_cmp_eq_u32 s46, 15")
    a(f"s_cbranch_scc1 L_fin{var}")
    a(f"s_branch L_top{var}")
    for lab, va, need, back in slow:
        poll(a, lab, va, V_F, need, 0)
        a(f"s_branch {back}")

def stamp(a, idx):
    a(f"s_memtime s[{60+2*idx}:{61+2*idx}]")
    if idx in (3, 5):
        a(f"s_memrealtime s[{86 if idx == 3 else 88}:{87 if idx == 3 else 89}]")
    a("s_waitcnt lgkmcnt(0)")

def dump_stamps(a, cfg):
    a.label("L_dump")
    a("s_memrealtime s[76:77]")
    a("s_getreg_b32 s78, hwreg(HW_REG_HW_ID)")
    a("s_getreg_b32 s79, hwreg(HW_REG_XCC_ID)")
    a("s_waitcnt lgkmcnt(0)")
    a("s_mov_b32 s80, s12")
    a("s_mov_b32 s81, s13")
    a("s_mov_b32 s82, 0x100000")
    a("s_mov_b32 s83, 0x20000")
    a("s_lshl_b32 s84, s2, 3")
    a("s_add_u32 s84, s84, s32")
    a("s_lshl_b32 s84, s84, 6")
    a("v_mov_b32 v4, 0")
    for k, s in enumerate([60, 62, 64, 66, 68, 70, 72, 74, 76, 77, 78, 79, 58, 59, 86, 88]):
        a(f"v_mov_b32 v5, s{s}")
        a(f"buffer_store_dword v5, v4, s[80:83], s84 offen offset:{4*k}")
        a("s_nop 1")
    a("v_and_b32 v1, 63, v0")
    a("v_lshlrev_b32 v4, 2, v1")
    a("v_cmp_gt_u32 vcc, 16, v1")
    a("s_and_saveexec_b64 s[92:93], vcc")
    a("s_lshl_b32 s84, s84, 2")
    a("s_add_u32 s84, s84, 0x40000")
    for k in range(3):
        a(f"buffer_store_dword v{44+k}, v4, s[80:83], s84 offen offset:{64*k}")
    a("s_waitcnt vmcnt(0)")
    a("s_endpgm")

def srd(a, d, p, size):
    a(f"s_mov_b32 s{d}, s{p}")
    a(f"s_and_b32 s{d+1}, s{p+1}, 0xffff")
    a(f"s_mov_b32 s{d+2}, {size}")
    a(f"s_mov_b32 s{d+3}, 0x20000")

def gen(cfg):
    a = Asm()
    hdr = open("standalone__dilated_atrous__vision.s.ref").read().splitlines()
    head = [l for l in hdr[:8] if l.startswith(";") and "@launch" not in l]
    out = "\n".join(head) + "\n"
    out += f"; @launch grid=(256,1,1) block=(512,1,1) lds={LDS_TOTAL}\n"
    out += f""".amdgcn_target "amdgcn-amd-amdhsa--gfx950"
.text
.globl {NAME}_kernel
.p2align 8
.type {NAME}_kernel,@function
{NAME}_kernel:
"""
    def trace(reg, idx):
        if cfg.trace:
            a("s_memtime s[90:91]")
            a(f"s_mov_b32 m0, {idx}")
            a("s_waitcnt lgkmcnt(0)")
            a(f"v_writelane_b32 v{reg}, s90, m0")
    if cfg.diag:
        a("s_memtime s[60:61]")
        a("s_memrealtime s[58:59]")
        a("s_load_dwordx2 s[12:13], s[0:1], 32")
    if cfg.amp: a("s_memrealtime s[58:59]")
    a("s_load_dwordx4 s[4:7], s[0:1], 0")
    a("s_load_dwordx2 s[8:9], s[0:1], 16")
    if WD: a("s_mov_b32 s94, 0")
    a("s_cmp_ge_u32 s2, 256")
    a("s_cbranch_scc1 L_exit")
    a("s_and_b32 s28, s2, 1")
    a("s_bfe_u32 s3, s2, 0x20001")
    a("s_lshl_b32 s3, s3, 5")
    a("s_lshr_b32 s33, s2, 3")
    a("s_add_u32 s3, s3, s33")
    a("s_cmp_ge_u32 s3, 126")
    a("s_cbranch_scc1 L_exit")
    a("v_lshrrev_b32 v2, 6, v0")
    a("v_and_b32 v1, 63, v0")
    a("v_readfirstlane_b32 s32, v2")
    a("v_lshlrev_b32 v30, 2, v0")
    a(f"v_add_u32 v30, {FLAGS}, v30")
    a("v_mov_b32 v31, 0")
    a("ds_write_b32 v30, v31")
    a("s_mul_i32 s33, s3, 4682")
    a("s_lshr_b32 s33, s33, 16")
    a("s_mul_i32 s34, s33, 14")
    a("s_sub_u32 s34, s3, s34")
    a("s_and_b32 s29, s34, 1")
    a("s_lshr_b32 s30, s34, 1")
    a("s_lshl_b32 s30, s30, 4")
    a("s_mul_i32 s31, s33, 25")
    a("s_lshr_b32 s31, s31, 1")
    a("s_and_b32 s34, s33, 1")
    a("s_lshl_b32 s35, s31, 1")
    a("s_add_u32 s35, s35, s28")
    a(f"s_mul_i32 s35, s35, {ROWB}")
    a("s_lshl_b32 s36, s30, 1")
    a("s_add_u32 s36, s36, s29")
    a("s_mul_i32 s36, s36, 192")
    a("s_lshl_b32 s52, s29, 1")
    a("s_sub_u32 s52, 2, s52")
    a("s_cmp_ge_u32 s32, 4")
    if cfg.cpf:
        a("s_cbranch_scc0 L_ld")
        a("s_getpc_b64 s[38:39]")
        a.label("L_pc")
        a("s_lshr_b32 s37, s2, 1")
        a("s_and_b32 s37, s37, 0x7c")
        a("s_add_u32 s37, s37, s32")
        a("s_min_u32 s37, s37, (L_end-L_pc)/128")
        a("s_lshl_b32 s37, s37, 7")
        a("s_add_u32 s38, s38, s37")
        a("s_addc_u32 s39, s39, 0")
        a("v_mov_b32 v12, s38")
        a("v_mov_b32 v13, s39")
        a("global_load_dword v14, v[12:13], off")
        a("s_branch L_compute")
        a.label("L_ld")
    else:
        a("s_cbranch_scc1 L_compute")
    if cfg.bench:
        a("v_mov_b32 v31, 100")
        a("ds_write_b32 v30, v31")
        a("s_waitcnt lgkmcnt(0)")
        a("s_barrier")
        a("s_branch L_dump")
    a("s_add_u32 s37, s35, s36")
    a(f"s_sub_u32 s37, s37, {2*PROW + 2*384}")
    a("s_sub_u32 s38, s30, 2")
    a("s_cmp_eq_u32 s29, 0")
    a("s_cselect_b32 s14, 32, -32")
    a("s_cselect_b32 s15, 0, 320")
    a(f"s_mul_i32 s10, s14, {8*PROW//32}")
    a("s_and_b32 s11, s32, 1")
    a("s_lshl_b32 s39, s11, 4")
    a("s_add_u32 s15, s15, s39")
    a("v_lshrrev_b32 v13, 2, v1")
    a("v_add_u32 v13, s15, v13")
    a("v_lshrrev_b32 v14, 3, v1")
    a("v_and_b32 v14, 2, v14")
    a("v_and_b32 v15, 3, v1")
    a("v_xor_b32 v14, v14, v15")
    a("v_lshlrev_b32 v14, 4, v14")
    a("v_add_u32 v14, s37, v14")
    a("v_bfrev_b32 v19, 1")
    a("s_movk_i32 s39, 3277")
    a(f"s_mov_b32 s49, {PROW}")
    a("s_movk_i32 s50, 384")
    a("s_movk_i32 s51, 112")
    for b in range(5):
        a("v_mul_u32_u24 v15, s39, v13")
        a("v_lshrrev_b32 v15, 16, v15")
        a("v_mul_u32_u24 v16, 20, v15")
        a("v_sub_u32 v16, v13, v16")
        a("v_add_u32 v17, s38, v16")
        a("v_cmp_gt_u32 vcc, s51, v17")
        a("v_mad_u32_u24 v18, v15, s49, v14")
        a("v_mad_u32_u24 v18, v16, s50, v18")
        a(f"v_cndmask_b32 v{2+b}, v19, v18, vcc")
        if b < 4: a("v_add_u32 v13, s14, v13")
        a(f"v_add_u32 v{7+b}, s10, v{2+b}")
    a("v_add_u32 v12, s10, v7")
    a("s_lshl_b32 s57, s52, 6")
    a("s_lshl_b32 s56, s15, 6")
    a("s_lshl_b32 s14, s14, 6")
    a("s_lshr_b32 s39, s2, 4")
    a("v_mul_u32_u24 v24, 43, v1")
    a("v_lshrrev_b32 v24, 9, v24")
    a("v_mul_u32_u24 v25, 12, v24")
    a("v_sub_u32 v25, v1, v25")
    a("v_mul_u32_u24 v24, 92160, v24")
    a("v_lshl_add_u32 v24, v25, 7, v24")
    a("s_bfe_u32 s49, s39, 0x10002")
    a("s_add_u32 s49, s49, 1")
    a("s_mul_i32 s49, s49, 18432")
    a("s_and_b32 s50, s39, 3")
    a("s_mul_i32 s50, s50, 1536")
    a("s_add_u32 s49, s49, s50")
    a("s_mul_i32 s37, s52, 6144")
    a("s_add_u32 s49, s49, s37")
    a("s_mov_b32 s10, s49")
    C = sum(((thr << 4) | m) << (8 * k) for k, (thr, m) in enumerate(cfg.xb))
    assert len(cfg.xb) <= 8
    a(f"s_mov_b32 s92, {C & 0xffffffff:#x}")
    a(f"s_mov_b32 s93, {C >> 32:#x}")
    a("s_mov_b32 s15, 15")
    a("s_cmp_ge_u32 s32, 2")
    a("s_cselect_b32 s95, 1, 0")
    a("s_cmp_eq_u32 s95, 1")
    a("s_cbranch_scc1 L_k")
    a.label("L_wsetup")
    a("v_lshlrev_b32 v20, 4, v1")
    a("v_cmp_gt_u32 vcc, 32, v1")
    a("v_xor_b32 v22, 32, v20")
    a("s_mul_i32 s38, s39, 52")
    a("v_cndmask_b32 v21, v22, v20, vcc")
    a("s_lshr_b32 s38, s38, 8")
    a("s_mul_i32 s38, s38, 5")
    a("s_sub_u32 s38, s39, s38")
    for i in range(5):
        a(f"s_mul_i32 s{40+i}, s38, 6144")
        a(f"s_mul_i32 s{45+i}, s{40+i}, 15")
        if i < 4:
            a("s_add_u32 s38, s38, 1")
            a("s_cmp_eq_u32 s38, 5")
            a("s_cselect_b32 s38, 0, s38")
    a(f"s_mul_i32 s54, s95, {WBUF}")
    a(f"s_add_u32 s54, s54, {WBASE}")
    a("s_mul_i32 s50, s95, 18432")
    a("s_add_u32 s37, s37, s50")
    a("s_mov_b32 s55, 0")
    a("s_cmp_eq_u32 s95, 1")
    a("s_cbranch_scc1 L_xret")
    a.label("L_k")
    a("s_waitcnt lgkmcnt(0)")
    if cfg.diag: stamp(a, 1)
    srd(a, 16, 4, XBYTES)
    srd(a, 20, 6, WBYTES)
    a("s_cmp_eq_u32 s95, 1")
    a("s_cbranch_scc0 L_wld")
    if cfg.order:
        a("s_cmp_eq_u32 s34, 1")
        a("s_cbranch_scc1 L_x_loop")
        if cfg.epf:
            a("s_cmp_lg_u32 s32, 2")
            a("s_cbranch_scc1 L_x_np")
            a("buffer_load_dword v25, v24, s[20:23], s10 offen")
            a.label("L_x_np")
        a("s_barrier")
    a.label("L_x_loop")
    for blk in range(4):
        a(f"s_bitcmp1_b32 s15, {blk}")
        a(f"s_cbranch_scc0 L_x{blk}")
        for k in range(3 * blk, min(3 * blk + 3, 11)):
            a("s_mov_b32 m0, s56")
            a("s_add_u32 s56, s56, s14")
            a(f"buffer_load_dwordx4 v{2+k}, s[16:19], s57 offen lds")
        if blk == 3:
            a("s_mul_i32 s50, s14, -11")
            a("s_add_u32 s56, s56, s50")
            a(f"s_add_u32 s56, s56, {XCH}")
            a("s_add_u32 s57, s57, 64")
            a("s_cmp_eq_u32 s57, 192")
            a("s_cselect_b32 s57, 0, s57")
            a(f"s_cmp_ge_u32 s56, {2*XCH}")
            a("s_cbranch_scc1 L_x_sig")
            if cfg.diag: stamp(a, 2)
            if cfg.order:
                a("s_cmp_eq_u32 s34, 0")
                a("s_cbranch_scc1 L_wsetup")
            a("s_barrier")
            a("s_branch L_wsetup")
            a.label("L_xret")
            a("v_mov_b32 v26, 1")
            a("s_waitcnt vmcnt(0)")
            a("ds_write_b32 v30, v26")
            trace(45, 0)
            a("s_branch L_w_go")
            a.label("L_x_w1")
            a("s_lshr_b32 s39, s2, 3")
            a("s_lshl_b32 s39, s39, 1")
            a("s_add_u32 s39, s39, s11")
            a("s_mul_i32 s39, s39, 57")
            a("v_add_u32 v19, s39, v1")
            a("v_lshlrev_b32 v19, 7, v19")
            a("v_and_b32 v22, 1, v1")
            a(f"v_lshlrev_b32 v22, 8, v22")
            a(f"v_add_u32 v22, {FLAGS}, v22")
            a.label("L_x_sig")
            a("v_add_u32 v31, 5, v31")
            a("s_waitcnt vmcnt(0)")
            a("ds_write_b32 v30, v31")
            trace(45, "s51")
        a.label(f"L_x{blk}")
    a("s_and_b32 s15, s92, 15")
    a("s_cbranch_scc0 L_store")
    a("s_bfe_u32 s51, s92, 0x40004")
    a("s_lshr_b64 s[92:93], s[92:93], 8")
    poll(a, "L_x_poll", 22, 23, "s51", cfg.sleep)
    trace(44, "s51")
    if cfg.wpf:
        a(f"s_cmp_lg_u32 s51, {cfg.xb[0][0]}")
        a("s_cbranch_scc1 L_x_loop")
        a("buffer_load_dword v21, v19, s[20:23], 0 offen")
    a("s_branch L_x_loop")
    a.label("L_wld")
    if cfg.order:
        a("s_cmp_eq_u32 s34, 0")
        a("s_cbranch_scc1 L_w_go")
        a("s_barrier")
    a.label("L_w_go")
    a("s_cmp_eq_u32 s11, 1")
    a("s_cbranch_scc1 L_w_half")
    a.label("L_w_loop")
    for hh in range(10):
        i, h = hh >> 1, hh & 1
        if hh == 5:
            a("s_cmp_eq_u32 s55, 0")
            a("s_cbranch_scc1 L_w_first")
            a.label("L_w_half")
        if h == 0 or hh == 5:
            a(f"s_add_u32 m0, s54, s{40+i}")
            a(f"s_add_u32 s50, s37, s{45+i}")
        if h == 1:
            a("s_add_u32 m0, m0, 3072")
            a("s_add_u32 s50, s50, 3072")
        for k in range(3):
            a(f"buffer_load_dwordx4 v{20+k}, s[20:23], s50 offen offset:{k*1024} lds")
    a("s_cmp_lg_u32 s55, 0")
    a("s_cbranch_scc1 L_w_adv")
    a.label("L_w_first")
    if cfg.trace: a("s_mov_b32 s51, 1")
    a("s_cmp_eq_u32 s95, 1")
    a("s_cbranch_scc1 L_x_w1")
    if cfg.order:
        a("s_cmp_eq_u32 s34, 1")
        a("s_cbranch_scc1 L_w_nb1")
    a("s_barrier")
    a.label("L_w_nb1")
    a("v_and_b32 v23, 3, v1")
    a("v_lshlrev_b32 v23, 8, v23")
    a(f"v_add_u32 v23, {FLAGS + 1024}, v23")
    a("s_mov_b32 s55, s32")
    a("s_mov_b32 s53, s32")
    a(f"s_mul_i32 s50, s32, {WBUF}")
    a("s_add_u32 s54, s54, s50")
    a("v_mov_b32 v31, s32")
    a.label("L_w_adv")
    trace(44, "s55")
    a(f"s_sub_u32 s54, s54, {WBUF}")
    a(f"s_cmp_lt_u32 s54, {WBASE}")
    a(f"s_cselect_b32 s50, {3*WBUF}, 0")
    a("s_add_u32 s54, s54, s50")
    a("s_add_u32 s53, s53, 2")
    a("s_cmp_ge_u32 s53, 5")
    a("s_cselect_b32 s50, 5, 0")
    a("s_sub_u32 s53, s53, s50")
    a("s_lshr_b32 s50, s50, 2")
    a("s_add_u32 s52, s52, s50")
    a("s_cmp_eq_u32 s52, 3")
    a("s_cselect_b32 s52, 0, s52")
    a("s_mul_i32 s37, s53, 18432")
    a("s_mul_i32 s50, s52, 6144")
    a("s_add_u32 s37, s37, s50")
    a("v_add_u32 v31, 2, v31")
    a("s_waitcnt vmcnt(0)")
    a("ds_write_b32 v30, v31")
    trace(45, "s55")
    a("s_add_u32 s55, s55, 2")
    a("s_cmp_ge_u32 s55, 15")
    a("s_cbranch_scc1 L_store")
    a("s_sub_u32 s51, s55, 2")
    a("s_cmp_eq_u32 s51, 0")
    a("s_cbranch_scc1 L_w_loop")
    poll(a, "L_w_poll", 23, 24, "s51", cfg.sleep)
    trace(46, "s55")
    a("s_branch L_w_loop")
    a.label("L_store")
    srd(a, 24, 8, XBYTES)
    a("s_lshr_b32 s37, s32, 1")
    a("s_and_b32 s38, s32, 1")
    a("s_movk_i32 s39, 171")
    a("s_movk_i32 s49, 208")
    a("s_movk_i32 s50, 384")
    for k in range(3):
        a(f"v_add_u32 v10, {64*k}, v1")
        a("v_mul_u32_u24 v11, s39, v10")
        a("v_lshrrev_b32 v11, 11, v11")
        a("v_mul_u32_u24 v12, 12, v11")
        a("v_sub_u32 v12, v10, v12")
        a("v_lshlrev_b32 v12, 4, v12")
        a(f"v_mad_u32_u24 v{2+k}, v11, s49, v12")
        a(f"v_mad_u32_u24 v{5+k}, v11, s50, v12")
    a("v_and_b32 v10, 1, v1")
    a("v_lshlrev_b32 v10, 8, v10")
    a("s_lshl_b32 s39, s37, 9")
    a(f"s_add_u32 s39, s39, {FLAGS + 1024}")
    a("v_add_u32 v10, s39, v10")
    a("s_add_u32 s39, s34, 6")
    a("s_mul_i32 s39, s39, s37")
    a("s_add_u32 s39, s39, s38")
    a(f"s_mul_i32 s47, s39, {PROW}")
    a("s_add_u32 s47, s47, s35")
    a("s_add_u32 s47, s47, s36")
    a("s_mul_i32 s39, s37, 5")
    a("s_add_u32 s39, s39, s38")
    a(f"s_mul_i32 s48, s39, {SROW}")
    a("s_lshl_b32 s51, s38, 1")
    a("s_add_u32 s51, s51, 18")
    a.label("L_st_loop")
    for k in range(3): a(f"v_add_u32 v{12+k}, s48, v{2+k}")
    poll(a, "L_st_poll", 10, 11, "s51", cfg.sleep2)
    for k in range(3): a(f"ds_read_b128 {vr(16+4*k,4)}, v{12+k}")
    for k in range(3):
        a(f"s_waitcnt lgkmcnt({2-k})")
        a(f"buffer_store_dwordx4 {vr(16+4*k,4)}, v{5+k}, s[24:27], s47 offen{cfg.stflag}")
    a(f"s_add_u32 s47, s47, {2*PROW}")
    a(f"s_add_u32 s48, s48, {2*SROW}")
    a("s_add_u32 s51, s51, 4")
    a("s_cmp_lt_u32 s51, 27")
    a("s_cbranch_scc1 L_st_loop")
    a("s_cmp_lg_u32 s51, 28")
    a("s_cbranch_scc1 L_st_end")
    a("s_cmp_lg_u32 s32, s34")
    a("s_cbranch_scc1 L_st_end")
    a(f"s_add_u32 s47, s47, {PROW}")
    a(f"s_mov_b32 s48, {10*SROW}")
    a("s_mov_b32 s51, 23")
    a("s_branch L_st_loop")
    a.label("L_st_end")
    if cfg.diag:
        stamp(a, 5)
        a("s_waitcnt vmcnt(0)")
        stamp(a, 6)
        dump_stamps(a, cfg)
    a.label("L_exit")
    a("s_endpgm")
    a.label("L_compute")
    if cfg.cbar == 0:
        a("s_waitcnt lgkmcnt(0)")
        a("s_barrier")
    a("s_sub_u32 s37, s32, 4")
    a("s_and_b32 s38, s37, 1")
    a("s_lshr_b32 s37, s37, 1")
    a("s_add_u32 s39, s34, 6")
    a("s_mul_i32 s49, s37, s39")
    a(f"v_mov_b32 v{V_CP}, v30")
    a(f"v_xor_b32 v{V_PF}, 512, v30")
    a(f"v_mov_b32 v{V_PV}, 0")
    a("v_and_b32 v32, 15, v1")
    a("v_lshrrev_b32 v33, 4, v1")
    a("v_and_b32 v34, 1, v33")
    a("v_lshrrev_b32 v35, 1, v33")
    a("v_bfe_u32 v36, v1, 2, 2")
    a("v_and_b32 v37, 3, v1")
    a(f"v_lshlrev_b32 v{V_LF}, 8, v37")
    a(f"v_add_u32 v{V_LF}, {FLAGS}, v{V_LF}")
    a("s_mul_i32 s39, s38, 3072")
    a(f"s_add_u32 s39, s39, {PART}")
    a(f"v_lshlrev_b32 v{V_RED}, 4, v1")
    a(f"v_add_u32 v{V_RED}, s39, v{V_RED}")
    a("s_lshl_b32 s39, s38, 7")
    a("v_lshlrev_b32 v40, 5, v34")
    a("v_lshl_add_u32 v40, v35, 4, v40")
    a("v_add_u32 v40, s39, v40")
    a("s_lshl_b32 s39, s38, 5")
    a("s_add_u32 s39, s39, 64")
    a("v_lshlrev_b32 v41, 3, v33")
    a("v_add_u32 v41, s39, v41")
    a("v_mul_u32_u24 v38, 384, v32")
    a("v_add_u32 v38, s36, v38")
    a(f"v_add_u32 v{V_SA}, v38, v40")
    a(f"v_add_u32 v{V_SC}, v38, v41")
    a("v_mul_u32_u24 v38, 208, v32")
    a(f"s_mul_i32 s39, s37, {5*SROW}")
    a("v_add_u32 v38, s39, v38")
    a(f"v_add_u32 v{V_GA}, v38, v40")
    a(f"v_add_u32 v{V_GB}, v38, v41")
    a(f"s_mul_i32 s47, s49, {PROW}")
    a("s_add_u32 s47, s47, s35")
    a("v_lshl_add_u32 v38, v33, 3, v36")
    a("v_mul_u32_u24 v38, 192, v38")
    a("v_lshl_add_u32 v38, v37, 3, v38")
    a(f"v_add_u32 v38, {WBASE}, v38")
    a("s_add_u32 s39, s38, 2")
    a("v_xor_b32 v39, s39, v34")
    a(f"v_lshl_add_u32 v{V_WA[0]}, v39, 5, v38")
    a("s_lshl_b32 s39, s38, 2")
    a("v_xor_b32 v39, s39, v34")
    a(f"v_lshl_add_u32 v{V_WA[1]}, v39, 5, v38")
    a("v_xor_b32 v39, 1, v39")
    a(f"v_lshl_add_u32 v{V_WA[2]}, v39, 5, v38")
    a("v_lshlrev_b32 v38, 6, v32")
    a("v_lshl_add_u32 v38, v33, 4, v38")
    a(f"s_mul_i32 s39, s49, {XROW}")
    a(f"v_add_u32 v{V_XL}, s39, v38")
    a(f"v_lshrrev_b32 v{V_T}, 3, v{V_XL}")
    a(f"v_and_b32 v{V_T}, 32, v{V_T}")
    a(f"v_xor_b32 v{V_XA[0]}, v{V_XL}, v{V_T}")
    a(f"v_xor_b32 v{V_XA[1]}, 32, v{V_XA[0]}")
    for k in range(84):
        a(f"v_mov_b32 v{V_ACC+k}, 0")
    a(f"s_mov_b32 s40, {(1 << 6) | (1 << 11)}")
    a(f"s_mov_b32 s41, {sum(1 << (h + 1) for h in (3, 6, 9, 12))}")
    a(f"s_mov_b32 s44, {(-2*WBUF) & 0xffffffff}")
    a(f"s_mov_b32 s45, {WBUF}")
    a("s_mov_b32 s46, 2")
    if cfg.cbar == 1:
        a("s_waitcnt lgkmcnt(0)")
        a("s_barrier")
    if cfg.diag: stamp(a, 1)
    srd(a, 24, 8, XBYTES)
    if cfg.prio: a(f"s_setprio {cfg.prio}")
    a("s_cmp_eq_u32 s34, 0")
    a("s_cbranch_scc1 L_pro2")
    a("s_cmp_eq_u32 s37, 1")
    a("s_cbranch_scc1 L_pro1")
    for var in range(3):
        emit_variant(a, var, cfg)
    a.label("L_end")
    a("s_endpgm")
    out += a.text()
    nv = (V_END + 7) // 8 * 8
    out += f""".section .rodata,"a"
.p2align 6
.amdhsa_kernel {NAME}_kernel
  .amdhsa_next_free_vgpr {nv}
  .amdhsa_next_free_sgpr 96
  .amdhsa_accum_offset {nv}
  .amdhsa_group_segment_fixed_size 0
  .amdhsa_kernarg_size 40
  .amdhsa_user_sgpr_count 2
  .amdhsa_user_sgpr_kernarg_segment_ptr 1
  .amdhsa_system_sgpr_workgroup_id_x 1
.end_amdhsa_kernel
"""
    return out

if __name__ == "__main__":
    p = argparse.ArgumentParser()
    p.add_argument("-o", default="standalone__dilated_atrous__vision.s")
    p.add_argument("--diag", action="store_true")
    p.add_argument("--trace", action="store_true")
    p.add_argument("--bar_pos", type=int, default=60)
    p.add_argument("--xbar", type=int, default=40)
    p.add_argument("--lead", type=int, default=8)
    p.add_argument("--safe", type=int, default=8)
    p.add_argument("--prio", type=int, default=1)
    p.add_argument("--align", type=int, default=1)
    p.add_argument("--snake", type=int, default=0)
    p.add_argument("--exper", type=int, default=2)
    p.add_argument("--order", type=int, default=1)
    p.add_argument("--wpf", type=int, default=0)
    p.add_argument("--epf", type=int, default=0)
    p.add_argument("--cpf", type=int, default=1)
    p.add_argument("--sleep", type=int, default=2)
    p.add_argument("--sleep2", type=int, default=1)
    p.add_argument("--stflag", default="nt")
    p.add_argument("--wd", type=int, default=1)
    p.add_argument("--amp", default="")
    p.add_argument("--bench", action="store_true")
    p.add_argument("--drop", default="")
    p.add_argument("--cmpd", type=int, default=4)
    p.add_argument("--updstep", type=int, default=1)
    p.add_argument("--xthr", type=int, default=2)
    p.add_argument("--cbar", type=int, default=0)
    p.add_argument("--w2wait", type=int, default=1)
    p.add_argument("--xb", default="3:1,4:2,5:4,6:8,8:3,9:12")
    cfg = p.parse_args()
    cfg.xb = [tuple(int(v) for v in e.split(":")) for e in cfg.xb.split(",")]
    WD = cfg.wd
    if cfg.stflag: cfg.stflag = " " + cfg.stflag
    open(cfg.o, "w").write(gen(cfg))
```

```python
import sys, argparse

NAME = "standalone__dilated_atrous__vision"
XBYTES = 224 * 224 * 96 * 2
WBYTES = 25 * 96 * 96 * 2
ROWB = 224 * 192
PROW = 2 * ROWB
XCH = 352 * 64
XROW = 20 * 64
WBASE = 3 * XCH
WBUF = 5 * 6144
FLAGS = WBASE + 3 * WBUF
LDS_TOTAL = FLAGS + 2048
SROW = 16 * 208
PART = 11 * SROW
assert PART + 6144 <= 2 * XCH

class Asm:
    def __init__(self):
        self.lines = []
    def __call__(self, s):
        self.lines.append("    " + s)
    def label(self, l):
        self.lines.append(l + ":")
    def comment(self, s):
        self.lines.append("    ; " + s)
    def text(self):
        return "\n".join(self.lines) + "\n"

def vr(b, n):
    return f"v[{b}:{b+n-1}]"

V_XL = 1
V_XA = (2, 3)
V_WA = (4, 5, 6)
V_SA, V_SC = 7, 8
V_GA, V_GB = 9, 10
V_T = 11
V_P = 12
V_RED = 24
V_CP = 25
V_LF = 26
V_PV = 27
V_F = 28
V_PF = 29
V_X = 32
V_W = 72
V_ACC = 132
V_END = V_ACC + 84

def acc(rho, t): return V_ACC + 4 * (rho * 3 + t)
def wreg(i, t): return V_W + 4 * (i * 3 + t)
def xreg(q): return V_X + 4 * q

def chain(rho, t, snake):
    r = list(range(5))
    if snake and rho % 2 == 1: r.reverse()
    return [(rho, i, t, rho + i) for i in r]

def shared_chain(var, t):
    if var == 0:
        return [(6, i, t, 6 + i) for i in [0, 1] + ([2] if t in (0, 1) else [])]
    if var == 1:
        return [(6, i, t, i - 1) for i in ([2] if t == 2 else []) + [3, 4]]
    return []

def steady_order(var, cfg):
    ms = []
    for t in range(3):
        if var == 1: ms += shared_chain(var, t)
        for rho in range(6): ms += chain(rho, t, cfg.snake)
        if var == 0: ms += shared_chain(var, t)
    return ms

def last_order(var, cfg):
    order = [(0, 0), (0, 1), (1, 0), "S", (0, 2), (1, 1), (1, 2)] + [(r, t) for r in range(2, 6) for t in range(3)]
    ms = []
    for o in order:
        if o == "S":
            for t in range(3): ms += shared_chain(var, t)
        else:
            ms += chain(o[0], o[1], cfg.snake)
    return ms

def uses(ms):
    first, last = {}, {}
    for k, (rho, i, t, q) in enumerate(ms):
        for key in (("w", i, t, 0), ("w", i, t, 1), ("x", q)):
            first.setdefault(key, k); last[key] = k
    return first, last

def read_text(nm):
    if nm[0] == "x":
        q = nm[1]
        return f"ds_read_b128 {vr(xreg(q),4)}, v{V_XA[q & 1]} offset:{q*XROW}"
    _, i, t, h = nm
    return f"ds_read_b64_tr_b16 {vr(wreg(i,t)+2*h,2)}, v{V_WA[t]} offset:{i*6144 + h*768}"

def edf(reads, lo, hi, lead):
    placed, pending = {}, list(reads)
    for k in range(lo, hi):
        avail = [r for r in pending if r[1] <= k]
        if not avail: continue
        r = min(avail, key=lambda r: r[2])
        placed[k] = r[0]
        pending.remove(r)
        assert r[2] - k >= lead, (r, k)
    assert not pending, pending
    return placed

def mfma_text(m):
    rho, i, t, q = m
    return f"v_mfma_f32_16x16x32_bf16 {vr(acc(rho,t),4)}, {vr(wreg(i,t),4)}, {vr(xreg(q),4)}, {vr(acc(rho,t),4)}"

class LdsQ:
    def __init__(self, a, safe):
        self.a, self.safe = a, safe
        self.ops = []
        self.done = 0
    def issue(self, name, time, text=None):
        self.ops.append((name, time))
        if text: self.a(text)
    def need(self, names, time):
        idx = max(max(j for j, (nm, _) in enumerate(self.ops) if nm == n) for n in names) + 1
        if idx <= self.done: return
        for j, (nm, tm) in enumerate(self.ops):
            if tm <= time - 1 - self.safe: idx = max(idx, j + 1)
        cnt = len(self.ops) - idx
        if cnt > 14:
            idx += cnt - 14; cnt = 14
        self.a(f"s_waitcnt lgkmcnt({cnt})")
        self.done = idx

WD = 1
def poll(a, label, vaddr, vtmp, sneed, sleep):
    a.label(label)
    if WD:
        a("s_add_u32 s94, s94, 1")
        a("s_bitcmp1_b32 s94, 18")
        a("s_cbranch_scc1 L_exit")
    a(f"ds_read_b32 v{vtmp}, v{vaddr}")
    a("s_waitcnt lgkmcnt(0)")
    a(f"v_cmp_gt_u32 vcc, {sneed}, v{vtmp}")
    if sleep:
        a(f"s_cbranch_vccz {label}_ok")
        a(f"s_sleep {sleep}")
        a(f"s_branch {label}")
        a.label(label + "_ok")
    else:
        a(f"s_cbranch_vccnz {label}")

def emit_variant(a, var, cfg):
    bar = cfg.bar_pos if var != 2 else cfg.bar_pos - 5
    ms = steady_order(var, cfg)
    n = len(ms)
    first, last = uses(ms)
    reads = [(key, max(last[key], bar), n + first[key]) for key in first]
    placed = edf(reads, bar, n + bar - 16, cfg.lead)
    tail = [(k, placed[k]) for k in sorted(placed) if k < n]
    head = [(k - n, placed[k]) for k in sorted(placed) if k >= n]
    slow = []
    a.label(f"L_pro{var}")
    poll(a, f"L_p0_{var}", V_LF, V_F, 1, 0)
    if cfg.diag: stamp(a, 3)
    if cfg.amp:
        a("s_memrealtime s[86:87]")
        a("s_waitcnt lgkmcnt(0)")
    for k, nm in tail: a(read_text(nm))
    if cfg.amp in ("span", "skew"):
        a("s_mov_b64 exec, 1")
        a("v_mov_b32 v12, 0")
        a("v_mov_b32 v13, s58")
        a("v_not_b32 v15, v13")
        a("buffer_atomic_umax v13, v12, s[80:83], 0 offen")
        a("buffer_atomic_umax v15, v12, s[80:83], 0 offen offset:4")
        a("s_mov_b64 exec, -1")
    a(f"s_branch L_head{var}")
    hb, tb = Asm(), Asm()
    q = LdsQ(hb, cfg.safe)
    for k, nm in tail: q.issue(nm, k - n)
    headd, taild = dict(head), dict(tail)
    extra = {}
    def put(k, s): extra.setdefault(k, []).append(s)
    krel = max(k for k, nm in head) + 1
    put(krel - 1, f"v_add_u32 v{V_PV}, 1, v{V_PV}")
    upd = ["s_bitcmp1_b32 s40, s46", f"s_cselect_b32 s42, {XCH - 4*64}, 64",
           "s_bitcmp1_b32 s41, s46", "s_cselect_b32 s43, s44, s45",
           "s_cmp_eq_u32 s46, 15", "s_cselect_b32 s49, 1000, s46",
           f"v_add_u32 v{V_XL}, s42, v{V_XL}", f"v_lshrrev_b32 v{V_T}, 3, v{V_XL}", f"v_and_b32 v{V_T}, 32, v{V_T}",
           f"v_xor_b32 v{V_XA[0]}, v{V_XL}, v{V_T}", f"v_xor_b32 v{V_XA[1]}, 32, v{V_XA[0]}"]
    upd += [f"v_add_u32 v{V_WA[t]}, s43, v{V_WA[t]}" for t in range(3)]
    b0 = krel + 2
    for j, u in enumerate(upd): put(b0 + cfg.updstep * j, u)
    kflag = bar - cfg.cmpd - 9
    assert b0 + cfg.updstep * len(upd) <= kflag
    cur = hb
    for k, m in enumerate(ms):
        rho, i, t, qq = m
        q.need([("w", i, t, 0), ("w", i, t, 1), ("x", qq)], k)
        cur(mfma_text(m))
        D = cfg.drop
        for s in extra.get(k, []): cur(s)
        if k == krel: q.issue(("rel",), k, f"ds_write_b32 v{V_CP}, v{V_PV}")
        if k == kflag: q.issue(("flag",), k, f"ds_read_b32 v{V_F}, v{V_LF}")
        if k == bar - cfg.cmpd - 1: q.need([("flag",)], k)
        if k == bar - cfg.cmpd: cur(f"v_cmp_gt_u32 vcc, s49, v{V_F}")
        if k == bar:
            cur = tb; q.a = tb
        if k in headd: q.issue(headd[k], k, read_text(headd[k]))
        if k in taild: q.issue(("next",) + taild[k], k, read_text(taild[k]))
        if k == n - 9: cur("s_add_u32 s46, s46, 1")
    if cfg.align: a(".p2align 6")
    a.label(f"L_top{var}")
    a.lines += tb.lines
    a.label(f"L_head{var}")
    a.lines += hb.lines
    a(f"s_cbranch_vccz L_top{var}")
    a(f"v_cmp_gt_u32 vcc, s46, v{V_F}")
    a(f"s_cbranch_vccnz L_slow{var}")
    a.label(f"L_fin{var}")
    a.lines += tb.lines
    if cfg.diag: stamp(a, 4)
    if cfg.cpf: a("s_waitcnt vmcnt(0)")
    ls = last_order(var, cfg)
    lf, ll = uses(ls)
    lplaced = edf([(nm, 0, lf[nm]) for _, nm in head], 0, n, min(cfg.lead, 6))
    q = LdsQ(a, cfg.safe)
    for k, nm in tail: q.issue(nm, k - n)
    endk = {}
    for k, (rho, i, t, qq) in enumerate(ls): endk[(rho, t)] = k
    def cvt2(D, S, e):
        return [(e, f"v_cvt_pk_bf16_f32 v{D}, v{S}, v{S+1}"), (e, f"v_cvt_pk_bf16_f32 v{D+1}, v{S+2}, v{S+3}")]
    def row_job(r, slot, pv, ready):
        S, A, B = acc(r, 0), acc(r, 1), acc(r, 2)
        e = cvt2(S, S, ready(0))
        if slot is not None: e.append((0, ("lds", f"ds_write_b64 v{V_GB}, {vr(S,2)} offset:{slot*SROW}")))
        else:
            e.append((0, f"s_add_u32 s48, s47, {r*PROW}"))
            e.append((0, f"buffer_store_dwordx2 {vr(S,2)}, v{V_SC}, s[24:27], s48 offen{cfg.stflag}"))
        e += cvt2(A, A, ready(1)) + cvt2(A + 2, B, ready(2))
        e.append((0, f"v_mov_b32 v{V_PV}, {pv}" if slot is not None else "s_nop 0"))
        e.append((0, "GAP"))
        e.append((0, f"v_permlane16_swap_b32 v{A}, v{A+2}"))
        e.append((0, f"v_permlane16_swap_b32 v{A+1}, v{A+3}"))
        if slot is not None:
            e.append((0, ("lds", f"ds_write_b128 v{V_GA}, {vr(A,4)} offset:{slot*SROW}")))
            e.append((0, ("lds", f"ds_write_b32 v{V_CP}, v{V_PV}")))
        else:
            e.append((0, f"buffer_store_dwordx4 {vr(A,4)}, v{V_SA}, s[24:27], s48 offen{cfg.stflag}"))
        return e
    seq = []
    for r in range(6):
        job = row_job(r, r if r < 5 else None, 18 + 2 * r, lambda t: endk[(r, t)] + 8)
        if r == 0 and var == 1:
            ksh = max(endk[(6, t)] for t in range(3))
            pub = [(ksh + 8, ("lds", f"ds_write_b128 v{V_RED}, {vr(acc(6,tt),4)} offset:{tt*1024}")) for tt in range(3)]
            pub += [(0, f"v_mov_b32 v{V_PV}, 17"), (0, ("lds", f"ds_write_b32 v{V_CP}, v{V_PV}"))]
            job = job[:5] + pub + job[5:]
        seq += job
        if r == 0 and var == 0:
            seq += [(cfg.xbar, ("ldsn", "flag", f"ds_read_b32 v{V_F}, v{V_PF}"))]
        if r == 1 and var == 0:
            tailjob = seq[-8:]; seq = seq[:-8]
            seq += [(cfg.xbar + 6, ("need", "flag")), (0, f"v_cmp_gt_u32 vcc, 17, v{V_F}")]
            seq += tailjob
            seq += [(0, ("br", "L_slowp", "L_okp"))]
            slow.append(("L_slowp", V_PF, "17", "L_okp"))
            seq += [(0, ("ldsn", f"p{tt}", f"ds_read_b128 {vr(V_P+4*tt,4)}, v{V_RED} offset:{tt*1024}")) for tt in range(3)]
        if r == 2 and var == 0:
            seq += [(0, ("need", "p2"))]
            seq += [(0, f"v_add_f32 v{acc(6,0)+k}, v{acc(6,0)+k}, v{V_P+k}") for k in range(12)]
            seq += row_job(6, 10, 23, lambda t: 0)
    nl = [0]
    def emit_ex(e, k):
        if isinstance(e, tuple):
            if e[0] == "lds":
                nl[0] += 1; q.issue(("st", nl[0]), k, e[1])
            elif e[0] == "ldsn": q.issue((e[1],), k, e[2])
            elif e[0] == "need": q.need([(e[1],)], k)
            elif e[0] == "br":
                a(f"s_cbranch_vccnz {e[1]}"); a.label(e[2])
        else: a(e)
    for k, m in enumerate(ls):
        rho, i, t, qq = m
        q.need([("w", i, t, 0), ("w", i, t, 1), ("x", qq)], k)
        a(mfma_text(m))
        cnt = 0
        if k in lplaced:
            q.issue(lplaced[k], k, read_text(lplaced[k])); cnt += 1
        while seq and cnt < cfg.exper and seq[0][0] <= k:
            _, e = seq.pop(0)
            if e == "GAP": break
            emit_ex(e, k); cnt += 1
    k = n - 1
    while seq:
        e0, e = seq.pop(0)
        if e0 > k:
            a(f"s_nop {e0 - k - 1}"); k = e0
        if e == "GAP": a("s_nop 0")
        else: emit_ex(e, k)
        k += 1
    if cfg.diag:
        stamp(a, 5)
        a("s_waitcnt vmcnt(0)")
        stamp(a, 6)
        a("s_branch L_dump")
    elif cfg.amp:
        a("s_waitcnt vmcnt(0)")
        a("s_memrealtime s[88:89]")
        a("s_waitcnt lgkmcnt(0)")
        if cfg.amp in ("span", "skew"):
            a("v_mov_b32 v4, 0")
            a("buffer_load_dwordx2 v[6:7], v4, s[80:83], 0 offen sc0 sc1")
            a("s_waitcnt vmcnt(0)")
            a("v_readfirstlane_b32 s86, v6")
            a("v_readfirstlane_b32 s58, v7")
            a("s_nop 3")
            a("s_not_b32 s58, s58")
        lo, hi = {"pro": (58, 86), "all": (58, 88), "loop": (86, 88), "none": (58, 58), "span": (58, 88), "skew": (58, 86)}[cfg.amp]
        a(f"s_sub_u32 s90, s{hi}, s{lo}")
        a("s_mul_i32 s90, s90, 10")
        if cfg.fixd: a(f"s_mov_b32 s90, {cfg.fixd}")
        if cfg.wbl2:
            a("buffer_wbl2 sc1")
        a.label(f"L_amp{var}")
        a("s_memrealtime s[76:77]")
        a("s_waitcnt lgkmcnt(0)")
        a("s_sub_u32 s91, s76, s88")
        a("s_cmp_lt_u32 s91, s90")
        a(f"s_cbranch_scc1 L_amp{var}")
        a("s_endpgm")
    else:
        a("s_endpgm")
    poll(a, f"L_slow{var}", V_LF, V_F, "s46", 0)
    a("s_cmp_eq_u32 s46, 15")
    a(f"s_cbranch_scc1 L_fin{var}")
    a(f"s_branch L_top{var}")
    for lab, va, need, back in slow:
        poll(a, lab, va, V_F, need, 0)
        a(f"s_branch {back}")

def stamp(a, idx):
    a(f"s_memtime s[{60+2*idx}:{61+2*idx}]")
    if idx in (3, 5):
        a(f"s_memrealtime s[{86 if idx == 3 else 88}:{87 if idx == 3 else 89}]")
    a("s_waitcnt lgkmcnt(0)")

def dump_stamps(a, cfg):
    a.label("L_dump")
    a("s_memrealtime s[76:77]")
    a("s_getreg_b32 s78, hwreg(HW_REG_HW_ID)")
    a("s_getreg_b32 s79, hwreg(HW_REG_XCC_ID)")
    a("s_waitcnt lgkmcnt(0)")
    a("s_mov_b32 s80, s12")
    a("s_mov_b32 s81, s13")
    a("s_mov_b32 s82, 0x100000")
    a("s_mov_b32 s83, 0x20000")
    a("s_lshl_b32 s84, s2, 3")
    a("s_add_u32 s84, s84, s32")
    a("s_lshl_b32 s84, s84, 6")
    a("v_mov_b32 v4, 0")
    for k, s in enumerate([60, 62, 64, 66, 68, 70, 72, 74, 76, 77, 78, 79, 58, 59, 86, 88]):
        a(f"v_mov_b32 v5, s{s}")
        a(f"buffer_store_dword v5, v4, s[80:83], s84 offen offset:{4*k}")
        a("s_nop 1")
    a("v_and_b32 v1, 63, v0")
    a("v_lshlrev_b32 v4, 2, v1")
    a("v_cmp_gt_u32 vcc, 16, v1")
    a("s_and_saveexec_b64 s[92:93], vcc")
    a("s_lshl_b32 s84, s84, 2")
    a("s_add_u32 s84, s84, 0x40000")
    for k in range(3):
        a(f"buffer_store_dword v{44+k}, v4, s[80:83], s84 offen offset:{64*k}")
    a("s_waitcnt vmcnt(0)")
    a("s_endpgm")

def srd(a, d, p, size):
    a(f"s_mov_b32 s{d}, s{p}")
    a(f"s_and_b32 s{d+1}, s{p+1}, 0xffff")
    a(f"s_mov_b32 s{d+2}, {size}")
    a(f"s_mov_b32 s{d+3}, 0x20000")

def gen(cfg):
    a = Asm()
    hdr = open("standalone__dilated_atrous__vision.s.ref").read().splitlines()
    head = [l for l in hdr[:8] if l.startswith(";") and "@launch" not in l]
    out = "\n".join(head) + "\n"
    out += f"; @launch grid=(256,1,1) block=(512,1,1) lds={LDS_TOTAL}\n"
    out += f""".amdgcn_target "amdgcn-amd-amdhsa--gfx950"
.text
.globl {NAME}_kernel
.p2align 8
.type {NAME}_kernel,@function
{NAME}_kernel:
"""
    def trace(reg, idx):
        if cfg.trace:
            a("s_memtime s[90:91]")
            a(f"s_mov_b32 m0, {idx}")
            a("s_waitcnt lgkmcnt(0)")
            a(f"v_writelane_b32 v{reg}, s90, m0")
    if cfg.diag:
        a("s_memtime s[60:61]")
        a("s_memrealtime s[58:59]")
        a("s_load_dwordx2 s[12:13], s[0:1], 32")
    if cfg.amp: a("s_memrealtime s[58:59]")
    if cfg.amp in ("span", "skew"): a("s_load_dwordx2 s[12:13], s[0:1], 24")
    a("s_load_dwordx4 s[4:7], s[0:1], 0")
    a("s_load_dwordx2 s[8:9], s[0:1], 16")
    if WD: a("s_mov_b32 s94, 0")
    a("s_cmp_ge_u32 s2, 256")
    a("s_cbranch_scc1 L_exit")
    a("s_and_b32 s28, s2, 1")
    a("s_bfe_u32 s3, s2, 0x20001")
    a("s_lshl_b32 s3, s3, 5")
    a("s_lshr_b32 s33, s2, 3")
    a("s_add_u32 s3, s3, s33")
    a("s_cmp_ge_u32 s3, 126")
    a("s_cbranch_scc1 L_exit")
    a("v_lshrrev_b32 v2, 6, v0")
    a("v_and_b32 v1, 63, v0")
    a("v_readfirstlane_b32 s32, v2")
    a("v_lshlrev_b32 v30, 2, v0")
    a(f"v_add_u32 v30, {FLAGS}, v30")
    a("v_mov_b32 v31, 0")
    a("ds_write_b32 v30, v31")
    a("s_mul_i32 s33, s3, 4682")
    a("s_lshr_b32 s33, s33, 16")
    a("s_mul_i32 s34, s33, 14")
    a("s_sub_u32 s34, s3, s34")
    a("s_and_b32 s29, s34, 1")
    a("s_lshr_b32 s30, s34, 1")
    a("s_lshl_b32 s30, s30, 4")
    a("s_mul_i32 s31, s33, 25")
    a("s_lshr_b32 s31, s31, 1")
    a("s_and_b32 s34, s33, 1")
    a("s_lshl_b32 s35, s31, 1")
    a("s_add_u32 s35, s35, s28")
    a(f"s_mul_i32 s35, s35, {ROWB}")
    a("s_lshl_b32 s36, s30, 1")
    a("s_add_u32 s36, s36, s29")
    a("s_mul_i32 s36, s36, 192")
    a("s_lshl_b32 s52, s29, 1")
    a("s_sub_u32 s52, 2, s52")
    a("s_cmp_ge_u32 s32, 4")
    if cfg.cpf:
        a("s_cbranch_scc0 L_ld")
        a("s_getpc_b64 s[38:39]")
        a.label("L_pc")
        a("s_lshr_b32 s37, s2, 1")
        a("s_and_b32 s37, s37, 0x7c")
        a("s_add_u32 s37, s37, s32")
        a("s_min_u32 s37, s37, (L_end-L_pc)/128")
        a("s_lshl_b32 s37, s37, 7")
        a("s_add_u32 s38, s38, s37")
        a("s_addc_u32 s39, s39, 0")
        a("v_mov_b32 v12, s38")
        a("v_mov_b32 v13, s39")
        a("global_load_dword v14, v[12:13], off")
        a("s_branch L_compute")
        a.label("L_ld")
    else:
        a("s_cbranch_scc1 L_compute")
    if cfg.bench:
        a("v_mov_b32 v31, 100")
        a("ds_write_b32 v30, v31")
        a("s_waitcnt lgkmcnt(0)")
        a("s_barrier")
        a("s_branch L_dump")
    a("s_add_u32 s37, s35, s36")
    a(f"s_sub_u32 s37, s37, {2*PROW + 2*384}")
    a("s_sub_u32 s38, s30, 2")
    a("s_cmp_eq_u32 s29, 0")
    a("s_cselect_b32 s14, 32, -32")
    a("s_cselect_b32 s15, 0, 320")
    a(f"s_mul_i32 s10, s14, {8*PROW//32}")
    a("s_and_b32 s11, s32, 1")
    a("s_lshl_b32 s39, s11, 4")
    a("s_add_u32 s15, s15, s39")
    a("v_lshrrev_b32 v13, 2, v1")
    a("v_add_u32 v13, s15, v13")
    a("v_lshrrev_b32 v14, 3, v1")
    a("v_and_b32 v14, 2, v14")
    a("v_and_b32 v15, 3, v1")
    a("v_xor_b32 v14, v14, v15")
    a("v_lshlrev_b32 v14, 4, v14")
    a("v_add_u32 v14, s37, v14")
    a("v_bfrev_b32 v19, 1")
    a("s_movk_i32 s39, 3277")
    a(f"s_mov_b32 s49, {PROW}")
    a("s_movk_i32 s50, 384")
    a("s_movk_i32 s51, 112")
    for b in range(5):
        a("v_mul_u32_u24 v15, s39, v13")
        a("v_lshrrev_b32 v15, 16, v15")
        a("v_mul_u32_u24 v16, 20, v15")
        a("v_sub_u32 v16, v13, v16")
        a("v_add_u32 v17, s38, v16")
        a("v_cmp_gt_u32 vcc, s51, v17")
        a("v_mad_u32_u24 v18, v15, s49, v14")
        a("v_mad_u32_u24 v18, v16, s50, v18")
        a(f"v_cndmask_b32 v{2+b}, v19, v18, vcc")
        if b < 4: a("v_add_u32 v13, s14, v13")
        a(f"v_add_u32 v{7+b}, s10, v{2+b}")
    a("v_add_u32 v12, s10, v7")
    a("s_lshl_b32 s57, s52, 6")
    a("s_lshl_b32 s56, s15, 6")
    a("s_lshl_b32 s14, s14, 6")
    a("s_lshr_b32 s39, s2, 4")
    a("v_mul_u32_u24 v24, 43, v1")
    a("v_lshrrev_b32 v24, 9, v24")
    a("v_mul_u32_u24 v25, 12, v24")
    a("v_sub_u32 v25, v1, v25")
    a("v_mul_u32_u24 v24, 92160, v24")
    a("v_lshl_add_u32 v24, v25, 7, v24")
    a("s_bfe_u32 s49, s39, 0x10002")
    a("s_add_u32 s49, s49, 1")
    a("s_mul_i32 s49, s49, 18432")
    a("s_and_b32 s50, s39, 3")
    a("s_mul_i32 s50, s50, 1536")
    a("s_add_u32 s49, s49, s50")
    a("s_mul_i32 s37, s52, 6144")
    a("s_add_u32 s49, s49, s37")
    a("s_mov_b32 s10, s49")
    C = sum(((thr << 4) | m) << (8 * k) for k, (thr, m) in enumerate(cfg.xb))
    assert len(cfg.xb) <= 8
    a(f"s_mov_b32 s92, {C & 0xffffffff:#x}")
    a(f"s_mov_b32 s93, {C >> 32:#x}")
    a("s_mov_b32 s15, 15")
    a("s_cmp_ge_u32 s32, 2")
    a("s_cselect_b32 s95, 1, 0")
    a("s_cmp_eq_u32 s95, 1")
    a("s_cbranch_scc1 L_k")
    a.label("L_wsetup")
    a("v_lshlrev_b32 v20, 4, v1")
    a("v_cmp_gt_u32 vcc, 32, v1")
    a("v_xor_b32 v22, 32, v20")
    a("s_mul_i32 s38, s39, 52")
    a("v_cndmask_b32 v21, v22, v20, vcc")
    a("s_lshr_b32 s38, s38, 8")
    a("s_mul_i32 s38, s38, 5")
    a("s_sub_u32 s38, s39, s38")
    for i in range(5):
        a(f"s_mul_i32 s{40+i}, s38, 6144")
        a(f"s_mul_i32 s{45+i}, s{40+i}, 15")
        if i < 4:
            a("s_add_u32 s38, s38, 1")
            a("s_cmp_eq_u32 s38, 5")
            a("s_cselect_b32 s38, 0, s38")
    a(f"s_mul_i32 s54, s95, {WBUF}")
    a(f"s_add_u32 s54, s54, {WBASE}")
    a("s_mul_i32 s50, s95, 18432")
    a("s_add_u32 s37, s37, s50")
    a("s_mov_b32 s55, 0")
    a("s_cmp_eq_u32 s95, 1")
    a("s_cbranch_scc1 L_xret")
    a.label("L_k")
    a("s_waitcnt lgkmcnt(0)")
    if cfg.diag: stamp(a, 1)
    srd(a, 16, 4, XBYTES)
    srd(a, 20, 6, WBYTES)
    a("s_cmp_eq_u32 s95, 1")
    a("s_cbranch_scc0 L_wld")
    if cfg.order:
        a("s_cmp_eq_u32 s34, 1")
        a("s_cbranch_scc1 L_x_loop")
        if cfg.epf:
            a("s_cmp_lg_u32 s32, 2")
            a("s_cbranch_scc1 L_x_np")
            a("buffer_load_dword v25, v24, s[20:23], s10 offen")
            a.label("L_x_np")
        a("s_barrier")
    a.label("L_x_loop")
    for blk in range(4):
        a(f"s_bitcmp1_b32 s15, {blk}")
        a(f"s_cbranch_scc0 L_x{blk}")
        for k in range(3 * blk, min(3 * blk + 3, 11)):
            a("s_mov_b32 m0, s56")
            a("s_add_u32 s56, s56, s14")
            a(f"buffer_load_dwordx4 v{2+k}, s[16:19], s57 offen lds")
        if blk == 3:
            a("s_mul_i32 s50, s14, -11")
            a("s_add_u32 s56, s56, s50")
            a(f"s_add_u32 s56, s56, {XCH}")
            a("s_add_u32 s57, s57, 64")
            a("s_cmp_eq_u32 s57, 192")
            a("s_cselect_b32 s57, 0, s57")
            a(f"s_cmp_ge_u32 s56, {2*XCH}")
            a("s_cbranch_scc1 L_x_sig")
            if cfg.diag: stamp(a, 2)
            if cfg.order:
                a("s_cmp_eq_u32 s34, 0")
                a("s_cbranch_scc1 L_wsetup")
            a("s_barrier")
            a("s_branch L_wsetup")
            a.label("L_xret")
            a("v_mov_b32 v26, 1")
            a("s_waitcnt vmcnt(0)")
            a("ds_write_b32 v30, v26")
            trace(45, 0)
            a("s_branch L_w_go")
            a.label("L_x_w1")
            a("s_lshr_b32 s39, s2, 3")
            a("s_lshl_b32 s39, s39, 1")
            a("s_add_u32 s39, s39, s11")
            a("s_mul_i32 s39, s39, 57")
            a("v_add_u32 v19, s39, v1")
            a("v_lshlrev_b32 v19, 7, v19")
            a("v_and_b32 v22, 1, v1")
            a(f"v_lshlrev_b32 v22, 8, v22")
            a(f"v_add_u32 v22, {FLAGS}, v22")
            a.label("L_x_sig")
            a("v_add_u32 v31, 5, v31")
            a("s_waitcnt vmcnt(0)")
            a("ds_write_b32 v30, v31")
            trace(45, "s51")
        a.label(f"L_x{blk}")
    a("s_and_b32 s15, s92, 15")
    a("s_cbranch_scc0 L_store")
    a("s_bfe_u32 s51, s92, 0x40004")
    a("s_lshr_b64 s[92:93], s[92:93], 8")
    poll(a, "L_x_poll", 22, 23, "s51", cfg.sleep)
    trace(44, "s51")
    if cfg.wpf:
        a(f"s_cmp_lg_u32 s51, {cfg.xb[0][0]}")
        a("s_cbranch_scc1 L_x_loop")
        a("buffer_load_dword v21, v19, s[20:23], 0 offen")
    a("s_branch L_x_loop")
    a.label("L_wld")
    if cfg.order:
        a("s_cmp_eq_u32 s34, 0")
        a("s_cbranch_scc1 L_w_go")
        a("s_barrier")
    a.label("L_w_go")
    a("s_cmp_eq_u32 s11, 1")
    a("s_cbranch_scc1 L_w_half")
    a.label("L_w_loop")
    for hh in range(10):
        i, h = hh >> 1, hh & 1
        if hh == 5:
            a("s_cmp_eq_u32 s55, 0")
            a("s_cbranch_scc1 L_w_first")
            a.label("L_w_half")
        if h == 0 or hh == 5:
            a(f"s_add_u32 m0, s54, s{40+i}")
            a(f"s_add_u32 s50, s37, s{45+i}")
        if h == 1:
            a("s_add_u32 m0, m0, 3072")
            a("s_add_u32 s50, s50, 3072")
        for k in range(3):
            a(f"buffer_load_dwordx4 v{20+k}, s[20:23], s50 offen offset:{k*1024} lds")
    a("s_cmp_lg_u32 s55, 0")
    a("s_cbranch_scc1 L_w_adv")
    a.label("L_w_first")
    if cfg.trace: a("s_mov_b32 s51, 1")
    a("s_cmp_eq_u32 s95, 1")
    a("s_cbranch_scc1 L_x_w1")
    if cfg.order:
        a("s_cmp_eq_u32 s34, 1")
        a("s_cbranch_scc1 L_w_nb1")
    a("s_barrier")
    a.label("L_w_nb1")
    a("v_and_b32 v23, 3, v1")
    a("v_lshlrev_b32 v23, 8, v23")
    a(f"v_add_u32 v23, {FLAGS + 1024}, v23")
    a("s_mov_b32 s55, s32")
    a("s_mov_b32 s53, s32")
    a(f"s_mul_i32 s50, s32, {WBUF}")
    a("s_add_u32 s54, s54, s50")
    a("v_mov_b32 v31, s32")
    a.label("L_w_adv")
    trace(44, "s55")
    a(f"s_sub_u32 s54, s54, {WBUF}")
    a(f"s_cmp_lt_u32 s54, {WBASE}")
    a(f"s_cselect_b32 s50, {3*WBUF}, 0")
    a("s_add_u32 s54, s54, s50")
    a("s_add_u32 s53, s53, 2")
    a("s_cmp_ge_u32 s53, 5")
    a("s_cselect_b32 s50, 5, 0")
    a("s_sub_u32 s53, s53, s50")
    a("s_lshr_b32 s50, s50, 2")
    a("s_add_u32 s52, s52, s50")
    a("s_cmp_eq_u32 s52, 3")
    a("s_cselect_b32 s52, 0, s52")
    a("s_mul_i32 s37, s53, 18432")
    a("s_mul_i32 s50, s52, 6144")
    a("s_add_u32 s37, s37, s50")
    a("v_add_u32 v31, 2, v31")
    a("s_waitcnt vmcnt(0)")
    a("ds_write_b32 v30, v31")
    trace(45, "s55")
    a("s_add_u32 s55, s55, 2")
    a("s_cmp_ge_u32 s55, 15")
    a("s_cbranch_scc1 L_store")
    a("s_sub_u32 s51, s55, 2")
    a("s_cmp_eq_u32 s51, 0")
    a("s_cbranch_scc1 L_w_loop")
    poll(a, "L_w_poll", 23, 24, "s51", cfg.sleep)
    trace(46, "s55")
    a("s_branch L_w_loop")
    a.label("L_store")
    srd(a, 24, 8, XBYTES)
    a("s_lshr_b32 s37, s32, 1")
    a("s_and_b32 s38, s32, 1")
    a("s_movk_i32 s39, 171")
    a("s_movk_i32 s49, 208")
    a("s_movk_i32 s50, 384")
    for k in range(3):
        a(f"v_add_u32 v10, {64*k}, v1")
        a("v_mul_u32_u24 v11, s39, v10")
        a("v_lshrrev_b32 v11, 11, v11")
        a("v_mul_u32_u24 v12, 12, v11")
        a("v_sub_u32 v12, v10, v12")
        a("v_lshlrev_b32 v12, 4, v12")
        a(f"v_mad_u32_u24 v{2+k}, v11, s49, v12")
        a(f"v_mad_u32_u24 v{5+k}, v11, s50, v12")
    a("v_and_b32 v10, 1, v1")
    a("v_lshlrev_b32 v10, 8, v10")
    a("s_lshl_b32 s39, s37, 9")
    a(f"s_add_u32 s39, s39, {FLAGS + 1024}")
    a("v_add_u32 v10, s39, v10")
    a("s_add_u32 s39, s34, 6")
    a("s_mul_i32 s39, s39, s37")
    a("s_add_u32 s39, s39, s38")
    a(f"s_mul_i32 s47, s39, {PROW}")
    a("s_add_u32 s47, s47, s35")
    a("s_add_u32 s47, s47, s36")
    a("s_mul_i32 s39, s37, 5")
    a("s_add_u32 s39, s39, s38")
    a(f"s_mul_i32 s48, s39, {SROW}")
    a("s_lshl_b32 s51, s38, 1")
    a("s_add_u32 s51, s51, 18")
    a.label("L_st_loop")
    for k in range(3): a(f"v_add_u32 v{12+k}, s48, v{2+k}")
    poll(a, "L_st_poll", 10, 11, "s51", cfg.sleep2)
    for k in range(3): a(f"ds_read_b128 {vr(16+4*k,4)}, v{12+k}")
    for k in range(3):
        a(f"s_waitcnt lgkmcnt({2-k})")
        a(f"buffer_store_dwordx4 {vr(16+4*k,4)}, v{5+k}, s[24:27], s47 offen{cfg.stflag}")
    a(f"s_add_u32 s47, s47, {2*PROW}")
    a(f"s_add_u32 s48, s48, {2*SROW}")
    a("s_add_u32 s51, s51, 4")
    a("s_cmp_lt_u32 s51, 27")
    a("s_cbranch_scc1 L_st_loop")
    a("s_cmp_lg_u32 s51, 28")
    a("s_cbranch_scc1 L_st_end")
    a("s_cmp_lg_u32 s32, s34")
    a("s_cbranch_scc1 L_st_end")
    a(f"s_add_u32 s47, s47, {PROW}")
    a(f"s_mov_b32 s48, {10*SROW}")
    a("s_mov_b32 s51, 23")
    a("s_branch L_st_loop")
    a.label("L_st_end")
    if cfg.diag:
        stamp(a, 5)
        a("s_waitcnt vmcnt(0)")
        stamp(a, 6)
        dump_stamps(a, cfg)
    a.label("L_exit")
    a("s_endpgm")
    a.label("L_compute")
    if cfg.cbar == 0:
        a("s_waitcnt lgkmcnt(0)")
        a("s_barrier")
    a("s_sub_u32 s37, s32, 4")
    a("s_and_b32 s38, s37, 1")
    a("s_lshr_b32 s37, s37, 1")
    a("s_add_u32 s39, s34, 6")
    a("s_mul_i32 s49, s37, s39")
    a(f"v_mov_b32 v{V_CP}, v30")
    a(f"v_xor_b32 v{V_PF}, 512, v30")
    a(f"v_mov_b32 v{V_PV}, 0")
    a("v_and_b32 v32, 15, v1")
    a("v_lshrrev_b32 v33, 4, v1")
    a("v_and_b32 v34, 1, v33")
    a("v_lshrrev_b32 v35, 1, v33")
    a("v_bfe_u32 v36, v1, 2, 2")
    a("v_and_b32 v37, 3, v1")
    a(f"v_lshlrev_b32 v{V_LF}, 8, v37")
    a(f"v_add_u32 v{V_LF}, {FLAGS}, v{V_LF}")
    a("s_mul_i32 s39, s38, 3072")
    a(f"s_add_u32 s39, s39, {PART}")
    a(f"v_lshlrev_b32 v{V_RED}, 4, v1")
    a(f"v_add_u32 v{V_RED}, s39, v{V_RED}")
    a("s_lshl_b32 s39, s38, 7")
    a("v_lshlrev_b32 v40, 5, v34")
    a("v_lshl_add_u32 v40, v35, 4, v40")
    a("v_add_u32 v40, s39, v40")
    a("s_lshl_b32 s39, s38, 5")
    a("s_add_u32 s39, s39, 64")
    a("v_lshlrev_b32 v41, 3, v33")
    a("v_add_u32 v41, s39, v41")
    a("v_mul_u32_u24 v38, 384, v32")
    a("v_add_u32 v38, s36, v38")
    a(f"v_add_u32 v{V_SA}, v38, v40")
    a(f"v_add_u32 v{V_SC}, v38, v41")
    a("v_mul_u32_u24 v38, 208, v32")
    a(f"s_mul_i32 s39, s37, {5*SROW}")
    a("v_add_u32 v38, s39, v38")
    a(f"v_add_u32 v{V_GA}, v38, v40")
    a(f"v_add_u32 v{V_GB}, v38, v41")
    a(f"s_mul_i32 s47, s49, {PROW}")
    a("s_add_u32 s47, s47, s35")
    a("v_lshl_add_u32 v38, v33, 3, v36")
    a("v_mul_u32_u24 v38, 192, v38")
    a("v_lshl_add_u32 v38, v37, 3, v38")
    a(f"v_add_u32 v38, {WBASE}, v38")
    a("s_add_u32 s39, s38, 2")
    a("v_xor_b32 v39, s39, v34")
    a(f"v_lshl_add_u32 v{V_WA[0]}, v39, 5, v38")
    a("s_lshl_b32 s39, s38, 2")
    a("v_xor_b32 v39, s39, v34")
    a(f"v_lshl_add_u32 v{V_WA[1]}, v39, 5, v38")
    a("v_xor_b32 v39, 1, v39")
    a(f"v_lshl_add_u32 v{V_WA[2]}, v39, 5, v38")
    a("v_lshlrev_b32 v38, 6, v32")
    a("v_lshl_add_u32 v38, v33, 4, v38")
    a(f"s_mul_i32 s39, s49, {XROW}")
    a(f"v_add_u32 v{V_XL}, s39, v38")
    a(f"v_lshrrev_b32 v{V_T}, 3, v{V_XL}")
    a(f"v_and_b32 v{V_T}, 32, v{V_T}")
    a(f"v_xor_b32 v{V_XA[0]}, v{V_XL}, v{V_T}")
    a(f"v_xor_b32 v{V_XA[1]}, 32, v{V_XA[0]}")
    for k in range(84):
        a(f"v_mov_b32 v{V_ACC+k}, 0")
    a(f"s_mov_b32 s40, {(1 << 6) | (1 << 11)}")
    a(f"s_mov_b32 s41, {sum(1 << (h + 1) for h in (3, 6, 9, 12))}")
    a(f"s_mov_b32 s44, {(-2*WBUF) & 0xffffffff}")
    a(f"s_mov_b32 s45, {WBUF}")
    a("s_mov_b32 s46, 2")
    if cfg.cbar == 1:
        a("s_waitcnt lgkmcnt(0)")
        a("s_barrier")
    if cfg.diag: stamp(a, 1)
    srd(a, 24, 8, XBYTES)
    if cfg.prio: a(f"s_setprio {cfg.prio}")
    if cfg.amp in ("span", "skew"): srd(a, 80, 12, 256)
    a("s_cmp_eq_u32 s34, 0")
    a("s_cbranch_scc1 L_pro2")
    a("s_cmp_eq_u32 s37, 1")
    a("s_cbranch_scc1 L_pro1")
    for var in range(3):
        emit_variant(a, var, cfg)
    a.label("L_end")
    a("s_endpgm")
    out += a.text()
    nv = (V_END + 7) // 8 * 8
    out += f""".section .rodata,"a"
.p2align 6
.amdhsa_kernel {NAME}_kernel
  .amdhsa_next_free_vgpr {nv}
  .amdhsa_next_free_sgpr 96
  .amdhsa_accum_offset {nv}
  .amdhsa_group_segment_fixed_size 0
  .amdhsa_kernarg_size 40
  .amdhsa_user_sgpr_count 2
  .amdhsa_user_sgpr_kernarg_segment_ptr 1
  .amdhsa_system_sgpr_workgroup_id_x 1
.end_amdhsa_kernel
"""
    return out

if __name__ == "__main__":
    p = argparse.ArgumentParser()
    p.add_argument("-o", default="standalone__dilated_atrous__vision.s")
    p.add_argument("--diag", action="store_true")
    p.add_argument("--trace", action="store_true")
    p.add_argument("--bar_pos", type=int, default=60)
    p.add_argument("--xbar", type=int, default=40)
    p.add_argument("--lead", type=int, default=8)
    p.add_argument("--safe", type=int, default=8)
    p.add_argument("--prio", type=int, default=1)
    p.add_argument("--align", type=int, default=1)
    p.add_argument("--snake", type=int, default=0)
    p.add_argument("--exper", type=int, default=2)
    p.add_argument("--order", type=int, default=1)
    p.add_argument("--wpf", type=int, default=0)
    p.add_argument("--epf", type=int, default=0)
    p.add_argument("--cpf", type=int, default=1)
    p.add_argument("--sleep", type=int, default=2)
    p.add_argument("--sleep2", type=int, default=1)
    p.add_argument("--stflag", default="nt")
    p.add_argument("--wd", type=int, default=1)
    p.add_argument("--amp", default="")
    p.add_argument("--fixd", type=int, default=0)
    p.add_argument("--wbl2", type=int, default=0)
    p.add_argument("--bench", action="store_true")
    p.add_argument("--drop", default="")
    p.add_argument("--cmpd", type=int, default=4)
    p.add_argument("--updstep", type=int, default=1)
    p.add_argument("--xthr", type=int, default=2)
    p.add_argument("--cbar", type=int, default=0)
    p.add_argument("--w2wait", type=int, default=1)
    p.add_argument("--xb", default="3:1,4:2,5:4,6:8,8:3,9:12")
    cfg = p.parse_args()
    cfg.xb = [tuple(int(v) for v in e.split(":")) for e in cfg.xb.split(",")]
    WD = cfg.wd
    if cfg.stflag: cfg.stflag = " " + cfg.stflag
    open(cfg.o, "w").write(gen(cfg))
```

```python
import sys, argparse

NAME = "standalone__dilated_atrous__vision"
XBYTES = 224 * 224 * 96 * 2
WBYTES = 25 * 96 * 96 * 2
ROWB = 224 * 192
PROW = 2 * ROWB
XCH = 352 * 64
XROW = 20 * 64
WBASE = 3 * XCH
WBUF = 5 * 6144
FLAGS = WBASE + 3 * WBUF
LDS_TOTAL = FLAGS + 2048
SROW = 16 * 208
PART = 11 * SROW
assert PART + 6144 <= 2 * XCH

class Asm:
    def __init__(self):
        self.lines = []
    def __call__(self, s):
        self.lines.append("    " + s)
    def label(self, l):
        self.lines.append(l + ":")
    def comment(self, s):
        self.lines.append("    ; " + s)
    def text(self):
        return "\n".join(self.lines) + "\n"

def vr(b, n):
    return f"v[{b}:{b+n-1}]"

V_XL = 1
V_XA = (2, 3)
V_WA = (4, 5, 6)
V_SA, V_SC = 7, 8
V_GA, V_GB = 9, 10
V_T = 11
V_P = 12
V_RED = 24
V_CP = 25
V_LF = 26
V_PV = 27
V_F = 28
V_PF = 29
V_X = 32
V_W = 72
V_ACC = 132
V_END = V_ACC + 84

def acc(rho, t): return V_ACC + 4 * (rho * 3 + t)
def wreg(i, t): return V_W + 4 * (i * 3 + t)
def xreg(q): return V_X + 4 * q

def chain(rho, t, snake):
    r = list(range(5))
    if snake and rho % 2 == 1: r.reverse()
    return [(rho, i, t, rho + i) for i in r]

def shared_chain(var, t):
    if var == 0:
        return [(6, i, t, 6 + i) for i in [0, 1] + ([2] if t in (0, 1) else [])]
    if var == 1:
        return [(6, i, t, i - 1) for i in ([2] if t == 2 else []) + [3, 4]]
    return []

def steady_order(var, cfg):
    ms = []
    for t in range(3):
        if var == 1: ms += shared_chain(var, t)
        for rho in range(6): ms += chain(rho, t, cfg.snake)
        if var == 0: ms += shared_chain(var, t)
    return ms

def last_order(var, cfg):
    order = [(0, 0), (0, 1), (1, 0), "S", (0, 2), (1, 1), (1, 2)] + [(r, t) for r in range(2, 6) for t in range(3)]
    ms = []
    for o in order:
        if o == "S":
            for t in range(3): ms += shared_chain(var, t)
        else:
            ms += chain(o[0], o[1], cfg.snake)
    return ms

def uses(ms):
    first, last = {}, {}
    for k, (rho, i, t, q) in enumerate(ms):
        for key in (("w", i, t, 0), ("w", i, t, 1), ("x", q)):
            first.setdefault(key, k); last[key] = k
    return first, last

def read_text(nm):
    if nm[0] == "x":
        q = nm[1]
        return f"ds_read_b128 {vr(xreg(q),4)}, v{V_XA[q & 1]} offset:{q*XROW}"
    _, i, t, h = nm
    return f"ds_read_b64_tr_b16 {vr(wreg(i,t)+2*h,2)}, v{V_WA[t]} offset:{i*6144 + h*768}"

def edf(reads, lo, hi, lead):
    placed, pending = {}, list(reads)
    for k in range(lo, hi):
        avail = [r for r in pending if r[1] <= k]
        if not avail: continue
        r = min(avail, key=lambda r: r[2])
        placed[k] = r[0]
        pending.remove(r)
        assert r[2] - k >= lead, (r, k)
    assert not pending, pending
    return placed

def mfma_text(m):
    rho, i, t, q = m
    return f"v_mfma_f32_16x16x32_bf16 {vr(acc(rho,t),4)}, {vr(wreg(i,t),4)}, {vr(xreg(q),4)}, {vr(acc(rho,t),4)}"

class LdsQ:
    def __init__(self, a, safe):
        self.a, self.safe = a, safe
        self.ops = []
        self.done = 0
    def issue(self, name, time, text=None):
        self.ops.append((name, time))
        if text: self.a(text)
    def need(self, names, time):
        idx = max(max(j for j, (nm, _) in enumerate(self.ops) if nm == n) for n in names) + 1
        if idx <= self.done: return
        for j, (nm, tm) in enumerate(self.ops):
            if tm <= time - 1 - self.safe: idx = max(idx, j + 1)
        cnt = len(self.ops) - idx
        if cnt > 14:
            idx += cnt - 14; cnt = 14
        self.a(f"s_waitcnt lgkmcnt({cnt})")
        self.done = idx

WD = 1
def poll(a, label, vaddr, vtmp, sneed, sleep):
    a.label(label)
    if WD:
        a("s_add_u32 s94, s94, 1")
        a("s_bitcmp1_b32 s94, 18")
        a("s_cbranch_scc1 L_exit")
    a(f"ds_read_b32 v{vtmp}, v{vaddr}")
    a("s_waitcnt lgkmcnt(0)")
    a(f"v_cmp_gt_u32 vcc, {sneed}, v{vtmp}")
    if sleep:
        a(f"s_cbranch_vccz {label}_ok")
        a(f"s_sleep {sleep}")
        a(f"s_branch {label}")
        a.label(label + "_ok")
    else:
        a(f"s_cbranch_vccnz {label}")

def emit_variant(a, var, cfg):
    bar = cfg.bar_pos if var != 2 else cfg.bar_pos - 5
    ms = steady_order(var, cfg)
    n = len(ms)
    first, last = uses(ms)
    reads = [(key, max(last[key], bar), n + first[key]) for key in first]
    placed = edf(reads, bar, n + bar - 16, cfg.lead)
    tail = [(k, placed[k]) for k in sorted(placed) if k < n]
    head = [(k - n, placed[k]) for k in sorted(placed) if k >= n]
    slow = []
    a.label(f"L_pro{var}")
    poll(a, f"L_p0_{var}", V_LF, V_F, 1, 0)
    if cfg.diag: stamp(a, 3)
    if cfg.amp:
        a("s_memrealtime s[86:87]")
        a("s_waitcnt lgkmcnt(0)")
    for k, nm in tail: a(read_text(nm))
    if cfg.amp in ("span", "skew"):
        a("s_mov_b64 exec, 1")
        a("v_mov_b32 v12, 0")
        a("v_mov_b32 v13, s58")
        a("v_not_b32 v15, v13")
        a("buffer_atomic_umax v13, v12, s[80:83], 0 offen")
        a("buffer_atomic_umax v15, v12, s[80:83], 0 offen offset:4")
        a("s_mov_b64 exec, -1")
    a(f"s_branch L_head{var}")
    hb, tb = Asm(), Asm()
    q = LdsQ(hb, cfg.safe)
    for k, nm in tail: q.issue(nm, k - n)
    headd, taild = dict(head), dict(tail)
    extra = {}
    def put(k, s): extra.setdefault(k, []).append(s)
    krel = max(k for k, nm in head) + 1
    put(krel - 1, f"v_add_u32 v{V_PV}, 1, v{V_PV}")
    upd = ["s_bitcmp1_b32 s40, s46", f"s_cselect_b32 s42, {XCH - 4*64}, 64",
           "s_bitcmp1_b32 s41, s46", "s_cselect_b32 s43, s44, s45",
           "s_cmp_eq_u32 s46, 15", "s_cselect_b32 s49, 1000, s46",
           f"v_add_u32 v{V_XL}, s42, v{V_XL}", f"v_lshrrev_b32 v{V_T}, 3, v{V_XL}", f"v_and_b32 v{V_T}, 32, v{V_T}",
           f"v_xor_b32 v{V_XA[0]}, v{V_XL}, v{V_T}", f"v_xor_b32 v{V_XA[1]}, 32, v{V_XA[0]}"]
    upd += [f"v_add_u32 v{V_WA[t]}, s43, v{V_WA[t]}" for t in range(3)]
    b0 = krel + 2
    for j, u in enumerate(upd): put(b0 + cfg.updstep * j, u)
    kflag = bar - cfg.cmpd - 9
    assert b0 + cfg.updstep * len(upd) <= kflag
    cur = hb
    for k, m in enumerate(ms):
        rho, i, t, qq = m
        q.need([("w", i, t, 0), ("w", i, t, 1), ("x", qq)], k)
        cur(mfma_text(m))
        D = cfg.drop
        for s in extra.get(k, []): cur(s)
        if k == krel: q.issue(("rel",), k, f"ds_write_b32 v{V_CP}, v{V_PV}")
        if k == kflag: q.issue(("flag",), k, f"ds_read_b32 v{V_F}, v{V_LF}")
        if k == bar - cfg.cmpd - 1: q.need([("flag",)], k)
        if k == bar - cfg.cmpd: cur(f"v_cmp_gt_u32 vcc, s49, v{V_F}")
        if k == bar:
            cur = tb; q.a = tb
        drop = lambda nm: ("l" in D and k in taild) or ("w" in D and nm[0] == "w" and k in taild) or ("x" in D and nm[0] == "x")
        if k in headd: q.issue(headd[k], k, read_text(headd[k]) if not drop(headd[k]) else None)
        if k in taild: q.issue(("next",) + taild[k], k, read_text(taild[k]) if not drop(taild[k]) else None)
        if k == n - 9: cur("s_add_u32 s46, s46, 1")
    if cfg.align: a(".p2align 6")
    a.label(f"L_top{var}")
    a.lines += tb.lines
    a.label(f"L_head{var}")
    a.lines += hb.lines
    a(f"s_cbranch_vccz L_top{var}")
    a(f"v_cmp_gt_u32 vcc, s46, v{V_F}")
    a(f"s_cbranch_vccnz L_slow{var}")
    a.label(f"L_fin{var}")
    a.lines += tb.lines
    if cfg.diag: stamp(a, 4)
    if cfg.cpf: a("s_waitcnt vmcnt(0)")
    ls = last_order(var, cfg)
    lf, ll = uses(ls)
    lplaced = edf([(nm, 0, lf[nm]) for _, nm in head], 0, n, min(cfg.lead, 6))
    q = LdsQ(a, cfg.safe)
    for k, nm in tail: q.issue(nm, k - n)
    endk = {}
    for k, (rho, i, t, qq) in enumerate(ls): endk[(rho, t)] = k
    def cvt2(D, S, e):
        return [(e, f"v_cvt_pk_bf16_f32 v{D}, v{S}, v{S+1}"), (e, f"v_cvt_pk_bf16_f32 v{D+1}, v{S+2}, v{S+3}")]
    def row_job(r, slot, pv, ready):
        S, A, B = acc(r, 0), acc(r, 1), acc(r, 2)
        e = cvt2(S, S, ready(0))
        if slot is not None: e.append((0, ("lds", f"ds_write_b64 v{V_GB}, {vr(S,2)} offset:{slot*SROW}")))
        else:
            e.append((0, f"s_add_u32 s48, s47, {r*PROW}"))
            e.append((0, f"buffer_store_dwordx2 {vr(S,2)}, v{V_SC}, s[24:27], s48 offen{cfg.stflag}"))
        e += cvt2(A, A, ready(1)) + cvt2(A + 2, B, ready(2))
        e.append((0, f"v_mov_b32 v{V_PV}, {pv}" if slot is not None else "s_nop 0"))
        e.append((0, "GAP"))
        e.append((0, f"v_permlane16_swap_b32 v{A}, v{A+2}"))
        e.append((0, f"v_permlane16_swap_b32 v{A+1}, v{A+3}"))
        if slot is not None:
            e.append((0, ("lds", f"ds_write_b128 v{V_GA}, {vr(A,4)} offset:{slot*SROW}")))
            e.append((0, ("lds", f"ds_write_b32 v{V_CP}, v{V_PV}")))
        else:
            e.append((0, f"buffer_store_dwordx4 {vr(A,4)}, v{V_SA}, s[24:27], s48 offen{cfg.stflag}"))
        return e
    seq = []
    for r in range(6):
        job = row_job(r, r if r < 5 else None, 18 + 2 * r, lambda t: endk[(r, t)] + 8)
        if r == 0 and var == 1:
            ksh = max(endk[(6, t)] for t in range(3))
            pub = [(ksh + 8, ("lds", f"ds_write_b128 v{V_RED}, {vr(acc(6,tt),4)} offset:{tt*1024}")) for tt in range(3)]
            pub += [(0, f"v_mov_b32 v{V_PV}, 17"), (0, ("lds", f"ds_write_b32 v{V_CP}, v{V_PV}"))]
            job = job[:5] + pub + job[5:]
        seq += job
        if r == 0 and var == 0:
            seq += [(cfg.xbar, ("ldsn", "flag", f"ds_read_b32 v{V_F}, v{V_PF}"))]
        if r == 1 and var == 0:
            tailjob = seq[-8:]; seq = seq[:-8]
            seq += [(cfg.xbar + 6, ("need", "flag")), (0, f"v_cmp_gt_u32 vcc, 17, v{V_F}")]
            seq += tailjob
            seq += [(0, ("br", "L_slowp", "L_okp"))]
            slow.append(("L_slowp", V_PF, "17", "L_okp"))
            seq += [(0, ("ldsn", f"p{tt}", f"ds_read_b128 {vr(V_P+4*tt,4)}, v{V_RED} offset:{tt*1024}")) for tt in range(3)]
        if r == 2 and var == 0:
            seq += [(0, ("need", "p2"))]
            seq += [(0, f"v_add_f32 v{acc(6,0)+k}, v{acc(6,0)+k}, v{V_P+k}") for k in range(12)]
            seq += row_job(6, 10, 23, lambda t: 0)
    nl = [0]
    def emit_ex(e, k):
        if isinstance(e, tuple):
            if e[0] == "lds":
                nl[0] += 1; q.issue(("st", nl[0]), k, e[1])
            elif e[0] == "ldsn": q.issue((e[1],), k, e[2])
            elif e[0] == "need": q.need([(e[1],)], k)
            elif e[0] == "br":
                a(f"s_cbranch_vccnz {e[1]}"); a.label(e[2])
        else: a(e)
    for k, m in enumerate(ls):
        rho, i, t, qq = m
        q.need([("w", i, t, 0), ("w", i, t, 1), ("x", qq)], k)
        a(mfma_text(m))
        cnt = 0
        if k in lplaced:
            q.issue(lplaced[k], k, read_text(lplaced[k])); cnt += 1
        while seq and cnt < cfg.exper and seq[0][0] <= k:
            _, e = seq.pop(0)
            if e == "GAP": break
            emit_ex(e, k); cnt += 1
    k = n - 1
    while seq:
        e0, e = seq.pop(0)
        if e0 > k:
            a(f"s_nop {e0 - k - 1}"); k = e0
        if e == "GAP": a("s_nop 0")
        else: emit_ex(e, k)
        k += 1
    if cfg.diag:
        stamp(a, 5)
        a("s_waitcnt vmcnt(0)")
        stamp(a, 6)
        a("s_branch L_dump")
    elif cfg.amp:
        a("s_waitcnt vmcnt(0)")
        a("s_memrealtime s[88:89]")
        a("s_waitcnt lgkmcnt(0)")
        if cfg.amp in ("span", "skew"):
            a("v_mov_b32 v4, 0")
            a("buffer_load_dwordx2 v[6:7], v4, s[80:83], 0 offen sc0 sc1")
            a("s_waitcnt vmcnt(0)")
            a("v_readfirstlane_b32 s86, v6")
            a("v_readfirstlane_b32 s58, v7")
            a("s_nop 3")
            a("s_not_b32 s58, s58")
        lo, hi = {"pro": (58, 86), "all": (58, 88), "loop": (86, 88), "none": (58, 58), "span": (58, 88), "skew": (58, 86)}[cfg.amp]
        a(f"s_sub_u32 s90, s{hi}, s{lo}")
        a("s_mul_i32 s90, s90, 10")
        if cfg.fixd: a(f"s_mov_b32 s90, {cfg.fixd}")
        if cfg.wbl2:
            a("buffer_wbl2 sc1")
        a.label(f"L_amp{var}")
        a("s_memrealtime s[76:77]")
        a("s_waitcnt lgkmcnt(0)")
        a("s_sub_u32 s91, s76, s88")
        a("s_cmp_lt_u32 s91, s90")
        a(f"s_cbranch_scc1 L_amp{var}")
        a("s_endpgm")
    else:
        a("s_endpgm")
    poll(a, f"L_slow{var}", V_LF, V_F, "s46", 0)
    a("s_cmp_eq_u32 s46, 15")
    a(f"s_cbranch_scc1 L_fin{var}")
    a(f"s_branch L_top{var}")
    for lab, va, need, back in slow:
        poll(a, lab, va, V_F, need, 0)
        a(f"s_branch {back}")

def stamp(a, idx):
    a(f"s_memtime s[{60+2*idx}:{61+2*idx}]")
    if idx in (3, 5):
        a(f"s_memrealtime s[{86 if idx == 3 else 88}:{87 if idx == 3 else 89}]")
    a("s_waitcnt lgkmcnt(0)")

def dump_stamps(a, cfg):
    a.label("L_dump")
    a("s_memrealtime s[76:77]")
    a("s_getreg_b32 s78, hwreg(HW_REG_HW_ID)")
    a("s_getreg_b32 s79, hwreg(HW_REG_XCC_ID)")
    a("s_waitcnt lgkmcnt(0)")
    a("s_mov_b32 s80, s12")
    a("s_mov_b32 s81, s13")
    a("s_mov_b32 s82, 0x100000")
    a("s_mov_b32 s83, 0x20000")
    a("s_lshl_b32 s84, s2, 3")
    a("s_add_u32 s84, s84, s32")
    a("s_lshl_b32 s84, s84, 6")
    a("v_mov_b32 v4, 0")
    for k, s in enumerate([60, 62, 64, 66, 68, 70, 72, 74, 76, 77, 78, 79, 58, 59, 86, 88]):
        a(f"v_mov_b32 v5, s{s}")
        a(f"buffer_store_dword v5, v4, s[80:83], s84 offen offset:{4*k}")
        a("s_nop 1")
    a("v_and_b32 v1, 63, v0")
    a("v_lshlrev_b32 v4, 2, v1")
    a("v_cmp_gt_u32 vcc, 16, v1")
    a("s_and_saveexec_b64 s[92:93], vcc")
    a("s_lshl_b32 s84, s84, 2")
    a("s_add_u32 s84, s84, 0x40000")
    for k in range(3):
        a(f"buffer_store_dword v{44+k}, v4, s[80:83], s84 offen offset:{64*k}")
    a("s_waitcnt vmcnt(0)")
    a("s_endpgm")

def srd(a, d, p, size):
    a(f"s_mov_b32 s{d}, s{p}")
    a(f"s_and_b32 s{d+1}, s{p+1}, 0xffff")
    a(f"s_mov_b32 s{d+2}, {size}")
    a(f"s_mov_b32 s{d+3}, 0x20000")

def gen(cfg):
    a = Asm()
    hdr = open("standalone__dilated_atrous__vision.s.ref").read().splitlines()
    head = [l for l in hdr[:8] if l.startswith(";") and "@launch" not in l]
    out = "\n".join(head) + "\n"
    out += f"; @launch grid=(256,1,1) block=(512,1,1) lds={LDS_TOTAL}\n"
    out += f""".amdgcn_target "amdgcn-amd-amdhsa--gfx950"
.text
.globl {NAME}_kernel
.p2align 8
.type {NAME}_kernel,@function
{NAME}_kernel:
"""
    def trace(reg, idx):
        if cfg.trace:
            a("s_memtime s[90:91]")
            a(f"s_mov_b32 m0, {idx}")
            a("s_waitcnt lgkmcnt(0)")
            a(f"v_writelane_b32 v{reg}, s90, m0")
    if cfg.diag:
        a("s_memtime s[60:61]")
        a("s_memrealtime s[58:59]")
        a("s_load_dwordx2 s[12:13], s[0:1], 32")
    if cfg.amp: a("s_memrealtime s[58:59]")
    if cfg.amp in ("span", "skew"): a("s_load_dwordx2 s[12:13], s[0:1], 24")
    a("s_load_dwordx4 s[4:7], s[0:1], 0")
    a("s_load_dwordx2 s[8:9], s[0:1], 16")
    if WD: a("s_mov_b32 s94, 0")
    a("s_cmp_ge_u32 s2, 256")
    a("s_cbranch_scc1 L_exit")
    a("s_and_b32 s28, s2, 1")
    a("s_bfe_u32 s3, s2, 0x20001")
    a("s_lshl_b32 s3, s3, 5")
    a("s_lshr_b32 s33, s2, 3")
    a("s_add_u32 s3, s3, s33")
    a("s_cmp_ge_u32 s3, 126")
    a("s_cbranch_scc1 L_exit")
    a("v_lshrrev_b32 v2, 6, v0")
    a("v_and_b32 v1, 63, v0")
    a("v_readfirstlane_b32 s32, v2")
    a("v_lshlrev_b32 v30, 2, v0")
    a(f"v_add_u32 v30, {FLAGS}, v30")
    a("v_mov_b32 v31, 0")
    a("ds_write_b32 v30, v31")
    a("s_mul_i32 s33, s3, 4682")
    a("s_lshr_b32 s33, s33, 16")
    a("s_mul_i32 s34, s33, 14")
    a("s_sub_u32 s34, s3, s34")
    a("s_and_b32 s29, s34, 1")
    a("s_lshr_b32 s30, s34, 1")
    a("s_lshl_b32 s30, s30, 4")
    a("s_mul_i32 s31, s33, 25")
    a("s_lshr_b32 s31, s31, 1")
    a("s_and_b32 s34, s33, 1")
    a("s_lshl_b32 s35, s31, 1")
    a("s_add_u32 s35, s35, s28")
    a(f"s_mul_i32 s35, s35, {ROWB}")
    a("s_lshl_b32 s36, s30, 1")
    a("s_add_u32 s36, s36, s29")
    a("s_mul_i32 s36, s36, 192")
    a("s_lshl_b32 s52, s29, 1")
    a("s_sub_u32 s52, 2, s52")
    a("s_cmp_ge_u32 s32, 4")
    if cfg.cpf:
        a("s_cbranch_scc0 L_ld")
        a("s_getpc_b64 s[38:39]")
        a.label("L_pc")
        a("s_lshr_b32 s37, s2, 1")
        a("s_and_b32 s37, s37, 0x7c")
        a("s_add_u32 s37, s37, s32")
        a("s_min_u32 s37, s37, (L_end-L_pc)/128")
        a("s_lshl_b32 s37, s37, 7")
        a("s_add_u32 s38, s38, s37")
        a("s_addc_u32 s39, s39, 0")
        a("v_mov_b32 v12, s38")
        a("v_mov_b32 v13, s39")
        a("global_load_dword v14, v[12:13], off")
        a("s_branch L_compute")
        a.label("L_ld")
    else:
        a("s_cbranch_scc1 L_compute")
    if cfg.bench:
        a("v_mov_b32 v31, 100")
        a("ds_write_b32 v30, v31")
        a("s_waitcnt lgkmcnt(0)")
        a("s_barrier")
        a("s_branch L_dump")
    a("s_add_u32 s37, s35, s36")
    a(f"s_sub_u32 s37, s37, {2*PROW + 2*384}")
    a("s_sub_u32 s38, s30, 2")
    a("s_cmp_eq_u32 s29, 0")
    a("s_cselect_b32 s14, 32, -32")
    a("s_cselect_b32 s15, 0, 320")
    a(f"s_mul_i32 s10, s14, {8*PROW//32}")
    a("s_and_b32 s11, s32, 1")
    a("s_lshl_b32 s39, s11, 4")
    a("s_add_u32 s15, s15, s39")
    a("v_lshrrev_b32 v13, 2, v1")
    a("v_add_u32 v13, s15, v13")
    a("v_lshrrev_b32 v14, 3, v1")
    a("v_and_b32 v14, 2, v14")
    a("v_and_b32 v15, 3, v1")
    a("v_xor_b32 v14, v14, v15")
    a("v_lshlrev_b32 v14, 4, v14")
    a("v_add_u32 v14, s37, v14")
    a("v_bfrev_b32 v19, 1")
    a("s_movk_i32 s39, 3277")
    a(f"s_mov_b32 s49, {PROW}")
    a("s_movk_i32 s50, 384")
    a("s_movk_i32 s51, 112")
    for b in range(5):
        a("v_mul_u32_u24 v15, s39, v13")
        a("v_lshrrev_b32 v15, 16, v15")
        a("v_mul_u32_u24 v16, 20, v15")
        a("v_sub_u32 v16, v13, v16")
        a("v_add_u32 v17, s38, v16")
        a("v_cmp_gt_u32 vcc, s51, v17")
        a("v_mad_u32_u24 v18, v15, s49, v14")
        a("v_mad_u32_u24 v18, v16, s50, v18")
        a(f"v_cndmask_b32 v{2+b}, v19, v18, vcc")
        if b < 4: a("v_add_u32 v13, s14, v13")
        a(f"v_add_u32 v{7+b}, s10, v{2+b}")
    a("v_add_u32 v12, s10, v7")
    a("s_lshl_b32 s57, s52, 6")
    a("s_lshl_b32 s56, s15, 6")
    a("s_lshl_b32 s14, s14, 6")
    a("s_lshr_b32 s39, s2, 4")
    a("v_mul_u32_u24 v24, 43, v1")
    a("v_lshrrev_b32 v24, 9, v24")
    a("v_mul_u32_u24 v25, 12, v24")
    a("v_sub_u32 v25, v1, v25")
    a("v_mul_u32_u24 v24, 92160, v24")
    a("v_lshl_add_u32 v24, v25, 7, v24")
    a("s_bfe_u32 s49, s39, 0x10002")
    a("s_add_u32 s49, s49, 1")
    a("s_mul_i32 s49, s49, 18432")
    a("s_and_b32 s50, s39, 3")
    a("s_mul_i32 s50, s50, 1536")
    a("s_add_u32 s49, s49, s50")
    a("s_mul_i32 s37, s52, 6144")
    a("s_add_u32 s49, s49, s37")
    a("s_mov_b32 s10, s49")
    C = sum(((thr << 4) | m) << (8 * k) for k, (thr, m) in enumerate(cfg.xb))
    assert len(cfg.xb) <= 8
    a(f"s_mov_b32 s92, {C & 0xffffffff:#x}")
    a(f"s_mov_b32 s93, {C >> 32:#x}")
    a("s_mov_b32 s15, 15")
    a("s_cmp_ge_u32 s32, 2")
    a("s_cselect_b32 s95, 1, 0")
    a("s_cmp_eq_u32 s95, 1")
    a("s_cbranch_scc1 L_k")
    a.label("L_wsetup")
    a("v_lshlrev_b32 v20, 4, v1")
    a("v_cmp_gt_u32 vcc, 32, v1")
    a("v_xor_b32 v22, 32, v20")
    a("s_mul_i32 s38, s39, 52")
    a("v_cndmask_b32 v21, v22, v20, vcc")
    a("s_lshr_b32 s38, s38, 8")
    a("s_mul_i32 s38, s38, 5")
    a("s_sub_u32 s38, s39, s38")
    for i in range(5):
        a(f"s_mul_i32 s{40+i}, s38, 6144")
        a(f"s_mul_i32 s{45+i}, s{40+i}, 15")
        if i < 4:
            a("s_add_u32 s38, s38, 1")
            a("s_cmp_eq_u32 s38, 5")
            a("s_cselect_b32 s38, 0, s38")
    a(f"s_mul_i32 s54, s95, {WBUF}")
    a(f"s_add_u32 s54, s54, {WBASE}")
    a("s_mul_i32 s50, s95, 18432")
    a("s_add_u32 s37, s37, s50")
    a("s_mov_b32 s55, 0")
    a("s_cmp_eq_u32 s95, 1")
    a("s_cbranch_scc1 L_xret")
    a.label("L_k")
    a("s_waitcnt lgkmcnt(0)")
    if cfg.diag: stamp(a, 1)
    srd(a, 16, 4, XBYTES)
    srd(a, 20, 6, WBYTES)
    a("s_cmp_eq_u32 s95, 1")
    a("s_cbranch_scc0 L_wld")
    if cfg.order:
        a("s_cmp_eq_u32 s34, 1")
        a("s_cbranch_scc1 L_x_loop")
        if cfg.epf:
            a("s_cmp_lg_u32 s32, 2")
            a("s_cbranch_scc1 L_x_np")
            a("buffer_load_dword v25, v24, s[20:23], s10 offen")
            a.label("L_x_np")
        a("s_barrier")
    a.label("L_x_loop")
    for blk in range(4):
        a(f"s_bitcmp1_b32 s15, {blk}")
        a(f"s_cbranch_scc0 L_x{blk}")
        for k in range(3 * blk, min(3 * blk + 3, 11)):
            a("s_mov_b32 m0, s56")
            a("s_add_u32 s56, s56, s14")
            a(f"buffer_load_dwordx4 v{2+k}, s[16:19], s57 offen{cfg.xflag} lds")
        if blk == 3:
            a("s_mul_i32 s50, s14, -11")
            a("s_add_u32 s56, s56, s50")
            a(f"s_add_u32 s56, s56, {XCH}")
            a("s_add_u32 s57, s57, 64")
            a("s_cmp_eq_u32 s57, 192")
            a("s_cselect_b32 s57, 0, s57")
            a(f"s_cmp_ge_u32 s56, {2*XCH}")
            a("s_cbranch_scc1 L_x_sig")
            if cfg.diag: stamp(a, 2)
            if cfg.order:
                a("s_cmp_eq_u32 s34, 0")
                a("s_cbranch_scc1 L_wsetup")
            a("s_barrier")
            a("s_branch L_wsetup")
            a.label("L_xret")
            a("v_mov_b32 v26, 1")
            a("s_waitcnt vmcnt(0)")
            a("ds_write_b32 v30, v26")
            trace(45, 0)
            a("s_branch L_w_go")
            a.label("L_x_w1")
            a("s_lshr_b32 s39, s2, 3")
            a("s_lshl_b32 s39, s39, 1")
            a("s_add_u32 s39, s39, s11")
            a("s_mul_i32 s39, s39, 57")
            a("v_add_u32 v19, s39, v1")
            a("v_lshlrev_b32 v19, 7, v19")
            a("v_and_b32 v22, 1, v1")
            a(f"v_lshlrev_b32 v22, 8, v22")
            a(f"v_add_u32 v22, {FLAGS}, v22")
            a.label("L_x_sig")
            a("v_add_u32 v31, 5, v31")
            a("s_waitcnt vmcnt(0)")
            a("ds_write_b32 v30, v31")
            trace(45, "s51")
        a.label(f"L_x{blk}")
    a("s_and_b32 s15, s92, 15")
    a("s_cbranch_scc0 L_store")
    a("s_bfe_u32 s51, s92, 0x40004")
    a("s_lshr_b64 s[92:93], s[92:93], 8")
    poll(a, "L_x_poll", 22, 23, "s51", cfg.sleep)
    trace(44, "s51")
    if cfg.wpf:
        a(f"s_cmp_lg_u32 s51, {cfg.xb[0][0]}")
        a("s_cbranch_scc1 L_x_loop")
        a("buffer_load_dword v21, v19, s[20:23], 0 offen")
    a("s_branch L_x_loop")
    a.label("L_wld")
    if cfg.order:
        a("s_cmp_eq_u32 s34, 0")
        a("s_cbranch_scc1 L_w_go")
        a("s_barrier")
    a.label("L_w_go")
    a("s_cmp_eq_u32 s11, 1")
    a("s_cbranch_scc1 L_w_half")
    a.label("L_w_loop")
    for hh in range(10):
        i, h = hh >> 1, hh & 1
        if hh == 5:
            a("s_cmp_eq_u32 s55, 0")
            a("s_cbranch_scc1 L_w_first")
            a.label("L_w_half")
        if h == 0 or hh == 5:
            a(f"s_add_u32 m0, s54, s{40+i}")
            a(f"s_add_u32 s50, s37, s{45+i}")
        if h == 1:
            a("s_add_u32 m0, m0, 3072")
            a("s_add_u32 s50, s50, 3072")
        for k in range(3):
            a(f"buffer_load_dwordx4 v{20+k}, s[20:23], s50 offen offset:{k*1024}{cfg.wflag} lds")
    a("s_cmp_lg_u32 s55, 0")
    a("s_cbranch_scc1 L_w_adv")
    a.label("L_w_first")
    if cfg.trace: a("s_mov_b32 s51, 1")
    a("s_cmp_eq_u32 s95, 1")
    a("s_cbranch_scc1 L_x_w1")
    if cfg.order:
        a("s_cmp_eq_u32 s34, 1")
        a("s_cbranch_scc1 L_w_nb1")
    a("s_barrier")
    a.label("L_w_nb1")
    a("v_and_b32 v23, 3, v1")
    a("v_lshlrev_b32 v23, 8, v23")
    a(f"v_add_u32 v23, {FLAGS + 1024}, v23")
    a("s_mov_b32 s55, s32")
    a("s_mov_b32 s53, s32")
    a(f"s_mul_i32 s50, s32, {WBUF}")
    a("s_add_u32 s54, s54, s50")
    a("v_mov_b32 v31, s32")
    a.label("L_w_adv")
    trace(44, "s55")
    a(f"s_sub_u32 s54, s54, {WBUF}")
    a(f"s_cmp_lt_u32 s54, {WBASE}")
    a(f"s_cselect_b32 s50, {3*WBUF}, 0")
    a("s_add_u32 s54, s54, s50")
    a("s_add_u32 s53, s53, 2")
    a("s_cmp_ge_u32 s53, 5")
    a("s_cselect_b32 s50, 5, 0")
    a("s_sub_u32 s53, s53, s50")
    a("s_lshr_b32 s50, s50, 2")
    a("s_add_u32 s52, s52, s50")
    a("s_cmp_eq_u32 s52, 3")
    a("s_cselect_b32 s52, 0, s52")
    a("s_mul_i32 s37, s53, 18432")
    a("s_mul_i32 s50, s52, 6144")
    a("s_add_u32 s37, s37, s50")
    a("v_add_u32 v31, 2, v31")
    a("s_waitcnt vmcnt(0)")
    a("ds_write_b32 v30, v31")
    trace(45, "s55")
    a("s_add_u32 s55, s55, 2")
    a("s_cmp_ge_u32 s55, 15")
    a("s_cbranch_scc1 L_store")
    a("s_sub_u32 s51, s55, 2")
    a("s_cmp_eq_u32 s51, 0")
    a("s_cbranch_scc1 L_w_loop")
    poll(a, "L_w_poll", 23, 24, "s51", cfg.sleep)
    trace(46, "s55")
    a("s_branch L_w_loop")
    a.label("L_store")
    srd(a, 24, 8, XBYTES)
    a("s_lshr_b32 s37, s32, 1")
    a("s_and_b32 s38, s32, 1")
    a("s_movk_i32 s39, 171")
    a("s_movk_i32 s49, 208")
    a("s_movk_i32 s50, 384")
    for k in range(3):
        a(f"v_add_u32 v10, {64*k}, v1")
        a("v_mul_u32_u24 v11, s39, v10")
        a("v_lshrrev_b32 v11, 11, v11")
        a("v_mul_u32_u24 v12, 12, v11")
        a("v_sub_u32 v12, v10, v12")
        a("v_lshlrev_b32 v12, 4, v12")
        a(f"v_mad_u32_u24 v{2+k}, v11, s49, v12")
        a(f"v_mad_u32_u24 v{5+k}, v11, s50, v12")
    a("v_and_b32 v10, 1, v1")
    a("v_lshlrev_b32 v10, 8, v10")
    a("s_lshl_b32 s39, s37, 9")
    a(f"s_add_u32 s39, s39, {FLAGS + 1024}")
    a("v_add_u32 v10, s39, v10")
    a("s_add_u32 s39, s34, 6")
    a("s_mul_i32 s39, s39, s37")
    a("s_add_u32 s39, s39, s38")
    a(f"s_mul_i32 s47, s39, {PROW}")
    a("s_add_u32 s47, s47, s35")
    a("s_add_u32 s47, s47, s36")
    a("s_mul_i32 s39, s37, 5")
    a("s_add_u32 s39, s39, s38")
    a(f"s_mul_i32 s48, s39, {SROW}")
    a("s_lshl_b32 s51, s38, 1")
    a("s_add_u32 s51, s51, 18")
    a.label("L_st_loop")
    for k in range(3): a(f"v_add_u32 v{12+k}, s48, v{2+k}")
    poll(a, "L_st_poll", 10, 11, "s51", cfg.sleep2)
    for k in range(3): a(f"ds_read_b128 {vr(16+4*k,4)}, v{12+k}")
    for k in range(3):
        a(f"s_waitcnt lgkmcnt({2-k})")
        a(f"buffer_store_dwordx4 {vr(16+4*k,4)}, v{5+k}, s[24:27], s47 offen{cfg.stflag}")
    a(f"s_add_u32 s47, s47, {2*PROW}")
    a(f"s_add_u32 s48, s48, {2*SROW}")
    a("s_add_u32 s51, s51, 4")
    a("s_cmp_lt_u32 s51, 27")
    a("s_cbranch_scc1 L_st_loop")
    a("s_cmp_lg_u32 s51, 28")
    a("s_cbranch_scc1 L_st_end")
    a("s_cmp_lg_u32 s32, s34")
    a("s_cbranch_scc1 L_st_end")
    a(f"s_add_u32 s47, s47, {PROW}")
    a(f"s_mov_b32 s48, {10*SROW}")
    a("s_mov_b32 s51, 23")
    a("s_branch L_st_loop")
    a.label("L_st_end")
    if cfg.diag:
        stamp(a, 5)
        a("s_waitcnt vmcnt(0)")
        stamp(a, 6)
        dump_stamps(a, cfg)
    a.label("L_exit")
    a("s_endpgm")
    a.label("L_compute")
    if cfg.cbar == 0:
        a("s_waitcnt lgkmcnt(0)")
        a("s_barrier")
    a("s_sub_u32 s37, s32, 4")
    a("s_and_b32 s38, s37, 1")
    a("s_lshr_b32 s37, s37, 1")
    a("s_add_u32 s39, s34, 6")
    a("s_mul_i32 s49, s37, s39")
    a(f"v_mov_b32 v{V_CP}, v30")
    a(f"v_xor_b32 v{V_PF}, 512, v30")
    a(f"v_mov_b32 v{V_PV}, 0")
    a("v_and_b32 v32, 15, v1")
    a("v_lshrrev_b32 v33, 4, v1")
    a("v_and_b32 v34, 1, v33")
    a("v_lshrrev_b32 v35, 1, v33")
    a("v_bfe_u32 v36, v1, 2, 2")
    a("v_and_b32 v37, 3, v1")
    a(f"v_lshlrev_b32 v{V_LF}, 8, v37")
    a(f"v_add_u32 v{V_LF}, {FLAGS}, v{V_LF}")
    a("s_mul_i32 s39, s38, 3072")
    a(f"s_add_u32 s39, s39, {PART}")
    a(f"v_lshlrev_b32 v{V_RED}, 4, v1")
    a(f"v_add_u32 v{V_RED}, s39, v{V_RED}")
    a("s_lshl_b32 s39, s38, 7")
    a("v_lshlrev_b32 v40, 5, v34")
    a("v_lshl_add_u32 v40, v35, 4, v40")
    a("v_add_u32 v40, s39, v40")
    a("s_lshl_b32 s39, s38, 5")
    a("s_add_u32 s39, s39, 64")
    a("v_lshlrev_b32 v41, 3, v33")
    a("v_add_u32 v41, s39, v41")
    a("v_mul_u32_u24 v38, 384, v32")
    a("v_add_u32 v38, s36, v38")
    a(f"v_add_u32 v{V_SA}, v38, v40")
    a(f"v_add_u32 v{V_SC}, v38, v41")
    a("v_mul_u32_u24 v38, 208, v32")
    a(f"s_mul_i32 s39, s37, {5*SROW}")
    a("v_add_u32 v38, s39, v38")
    a(f"v_add_u32 v{V_GA}, v38, v40")
    a(f"v_add_u32 v{V_GB}, v38, v41")
    a(f"s_mul_i32 s47, s49, {PROW}")
    a("s_add_u32 s47, s47, s35")
    a("v_lshl_add_u32 v38, v33, 3, v36")
    a("v_mul_u32_u24 v38, 192, v38")
    a("v_lshl_add_u32 v38, v37, 3, v38")
    a(f"v_add_u32 v38, {WBASE}, v38")
    a("s_add_u32 s39, s38, 2")
    a("v_xor_b32 v39, s39, v34")
    a(f"v_lshl_add_u32 v{V_WA[0]}, v39, 5, v38")
    a("s_lshl_b32 s39, s38, 2")
    a("v_xor_b32 v39, s39, v34")
    a(f"v_lshl_add_u32 v{V_WA[1]}, v39, 5, v38")
    a("v_xor_b32 v39, 1, v39")
    a(f"v_lshl_add_u32 v{V_WA[2]}, v39, 5, v38")
    a("v_lshlrev_b32 v38, 6, v32")
    a("v_lshl_add_u32 v38, v33, 4, v38")
    a(f"s_mul_i32 s39, s49, {XROW}")
    a(f"v_add_u32 v{V_XL}, s39, v38")
    a(f"v_lshrrev_b32 v{V_T}, 3, v{V_XL}")
    a(f"v_and_b32 v{V_T}, 32, v{V_T}")
    a(f"v_xor_b32 v{V_XA[0]}, v{V_XL}, v{V_T}")
    a(f"v_xor_b32 v{V_XA[1]}, 32, v{V_XA[0]}")
    for k in range(84):
        a(f"v_mov_b32 v{V_ACC+k}, 0")
    a(f"s_mov_b32 s40, {(1 << 6) | (1 << 11)}")
    a(f"s_mov_b32 s41, {sum(1 << (h + 1) for h in (3, 6, 9, 12))}")
    a(f"s_mov_b32 s44, {(-2*WBUF) & 0xffffffff}")
    a(f"s_mov_b32 s45, {WBUF}")
    a("s_mov_b32 s46, 2")
    if cfg.cbar == 1:
        a("s_waitcnt lgkmcnt(0)")
        a("s_barrier")
    if cfg.diag: stamp(a, 1)
    srd(a, 24, 8, XBYTES)
    if cfg.prio: a(f"s_setprio {cfg.prio}")
    if cfg.amp in ("span", "skew"): srd(a, 80, 12, 256)
    a("s_cmp_eq_u32 s34, 0")
    a("s_cbranch_scc1 L_pro2")
    a("s_cmp_eq_u32 s37, 1")
    a("s_cbranch_scc1 L_pro1")
    for var in range(3):
        emit_variant(a, var, cfg)
    a.label("L_end")
    a("s_endpgm")
    out += a.text()
    nv = (V_END + 7) // 8 * 8
    out += f""".section .rodata,"a"
.p2align 6
.amdhsa_kernel {NAME}_kernel
  .amdhsa_next_free_vgpr {nv}
  .amdhsa_next_free_sgpr 96
  .amdhsa_accum_offset {nv}
  .amdhsa_group_segment_fixed_size 0
  .amdhsa_kernarg_size 40
  .amdhsa_user_sgpr_count 2
  .amdhsa_user_sgpr_kernarg_segment_ptr 1
  .amdhsa_system_sgpr_workgroup_id_x 1
.end_amdhsa_kernel
"""
    return out

if __name__ == "__main__":
    p = argparse.ArgumentParser()
    p.add_argument("-o", default="standalone__dilated_atrous__vision.s")
    p.add_argument("--diag", action="store_true")
    p.add_argument("--trace", action="store_true")
    p.add_argument("--bar_pos", type=int, default=60)
    p.add_argument("--xbar", type=int, default=40)
    p.add_argument("--lead", type=int, default=8)
    p.add_argument("--safe", type=int, default=8)
    p.add_argument("--prio", type=int, default=1)
    p.add_argument("--align", type=int, default=1)
    p.add_argument("--snake", type=int, default=0)
    p.add_argument("--exper", type=int, default=2)
    p.add_argument("--order", type=int, default=1)
    p.add_argument("--wpf", type=int, default=0)
    p.add_argument("--epf", type=int, default=0)
    p.add_argument("--cpf", type=int, default=1)
    p.add_argument("--sleep", type=int, default=2)
    p.add_argument("--sleep2", type=int, default=1)
    p.add_argument("--stflag", default="nt")
    p.add_argument("--wd", type=int, default=1)
    p.add_argument("--amp", default="")
    p.add_argument("--xflag", default="")
    p.add_argument("--wflag", default="")
    p.add_argument("--fixd", type=int, default=0)
    p.add_argument("--wbl2", type=int, default=0)
    p.add_argument("--bench", action="store_true")
    p.add_argument("--drop", default="")
    p.add_argument("--cmpd", type=int, default=4)
    p.add_argument("--updstep", type=int, default=1)
    p.add_argument("--xthr", type=int, default=2)
    p.add_argument("--cbar", type=int, default=0)
    p.add_argument("--w2wait", type=int, default=1)
    p.add_argument("--xb", default="3:1,4:2,5:4,6:8,8:3,9:12")
    cfg = p.parse_args()
    cfg.xb = [tuple(int(v) for v in e.split(":")) for e in cfg.xb.split(",")]
    WD = cfg.wd
    if cfg.stflag: cfg.stflag = " " + cfg.stflag
    if cfg.xflag: cfg.xflag = " " + cfg.xflag
    if cfg.wflag: cfg.wflag = " " + cfg.wflag
    open(cfg.o, "w").write(gen(cfg))
```

```python
import sys, argparse

NAME = "standalone__dilated_atrous__vision"
XBYTES = 224 * 224 * 96 * 2
WBYTES = 25 * 96 * 96 * 2
ROWB = 224 * 192
PROW = 2 * ROWB
XCH = 352 * 64
XROW = 20 * 64
WBASE = 3 * XCH
WBUF = 5 * 6144
FLAGS = WBASE + 3 * WBUF
LDS_TOTAL = FLAGS + 2048
SROW = 16 * 208
PART = 11 * SROW
assert PART + 6144 <= 2 * XCH

class Asm:
    def __init__(self):
        self.lines = []
    def __call__(self, s):
        self.lines.append("    " + s)
    def label(self, l):
        self.lines.append(l + ":")
    def comment(self, s):
        self.lines.append("    ; " + s)
    def text(self):
        return "\n".join(self.lines) + "\n"

def vr(b, n):
    return f"v[{b}:{b+n-1}]"

V_XL = 1
V_XA = (2, 3)
V_WA = (4, 5, 6)
V_SA, V_SC = 7, 8
V_GA, V_GB = 9, 10
V_T = 11
V_CP = 25
V_LF = 26
V_PV = 27
V_F = 28
V_X = 32
V_W = 76
V_ACC = 136
V_END = V_ACC + 84

TYPES = {
    0: (range(0, 6), range(0, 7), range(0, 6)),
    1: (range(0, 6), range(1, 7), range(0, 7)),
    2: (range(0, 7), range(1, 7), range(1, 7)),
    3: (range(0, 6), range(0, 6), range(0, 6)),
}
OFF = {0: 0, 1: 1, 2: 1, 3: 0}
SPECIAL = {0: 6, 1: 0, 2: 0, 3: None}
LASTHEAD = {
    0: [(0, 0), (0, 1), (6, 1), (0, 2)],
    1: [(0, 0), (1, 0), (1, 1), (0, 2), (1, 2)],
    2: [(0, 0), (1, 0), (1, 1), (2, 0), (1, 2), (2, 1), (2, 2)],
    3: [(0, 0), (0, 1), (1, 0), (0, 2), (1, 1), (1, 2)],
}

def acc(rho, t): return V_ACC + 4 * (rho * 3 + t)
def wreg(i, t): return V_W + 4 * (i * 3 + t)
def xreg(q): return V_X + 4 * q

def chain(rho, t, rev):
    r = list(range(5))
    if rev: r.reverse()
    return [(rho, i, t, rho + i) for i in r]

def steady_order(var, cfg, par=(1, 1, 1)):
    ms = []
    for t in range(3):
        for j, rho in enumerate(TYPES[var][t]): ms += chain(rho, t, cfg.snake and j % 2 == par[t])
    return ms

def last_tiles(var):
    order = list(LASTHEAD[var])
    lastrow = OFF[var] + 5
    for r in range(7):
        for t in ((0, 1, 2) if r != lastrow else (1, 2, 0)):
            if r in TYPES[var][t] and (r, t) not in order: order.append((r, t))
    return order

def last_order(var, cfg, par=1):
    ms = []
    for j, (r, t) in enumerate(last_tiles(var)): ms += chain(r, t, cfg.snake and j % 2 == par and j >= 4)
    return ms

def uses(ms):
    first, last = {}, {}
    for k, (rho, i, t, q) in enumerate(ms):
        for key in (("w", i, t, 0), ("w", i, t, 1), ("x", q)):
            first.setdefault(key, k); last[key] = k
    return first, last

def read_text(nm):
    if nm[0] == "x":
        q = nm[1]
        return f"ds_read_b128 {vr(xreg(q),4)}, v{V_XA[q & 1]} offset:{q*XROW}"
    _, i, t, h = nm
    return f"ds_read_b64_tr_b16 {vr(wreg(i,t)+2*h,2)}, v{V_WA[t]} offset:{i*6144 + h*768}"

def edf(reads, lo, hi, lead):
    placed, pending = {}, list(reads)
    for k in range(lo, hi):
        avail = [r for r in pending if r[1] <= k]
        if not avail: continue
        r = min(avail, key=lambda r: r[2])
        placed[k] = r[0]
        pending.remove(r)
        assert r[2] - k >= lead, (r, k)
    assert not pending, pending
    return placed

def mfma_text(m):
    rho, i, t, q = m
    return f"v_mfma_f32_16x16x32_bf16 {vr(acc(rho,t),4)}, {vr(wreg(i,t),4)}, {vr(xreg(q),4)}, {vr(acc(rho,t),4)}"

class LdsQ:
    def __init__(self, a, safe):
        self.a, self.safe = a, safe
        self.ops = []
        self.done = 0
        self.waits = []
    def issue(self, name, time, text=None):
        self.ops.append((name, time))
        if text: self.a(text)
    def need(self, names, time):
        idx = max(max(j for j, (nm, _) in enumerate(self.ops) if nm == n) for n in names) + 1
        if idx <= self.done: return
        for j, (nm, tm) in enumerate(self.ops):
            if tm <= time - 1 - self.safe: idx = max(idx, j + 1)
        cnt = len(self.ops) - idx
        if cnt > 14:
            idx += cnt - 14; cnt = 14
        self.a(f"s_waitcnt lgkmcnt({cnt})")
        self.waits.append((time, cnt, len(self.ops)))
        self.done = idx

WD = 1
def poll(a, label, vaddr, vtmp, sneed, sleep, wd=True):
    a.label(label)
    if WD and wd:
        a("s_add_u32 s94, s94, 1")
        a("s_bitcmp1_b32 s94, 18")
        a("s_cbranch_scc1 L_exit")
    a(f"ds_read_b32 v{vtmp}, v{vaddr}")
    a("s_waitcnt lgkmcnt(0)")
    a(f"v_cmp_gt_u32 vcc, {sneed}, v{vtmp}")
    if sleep:
        a(f"s_cbranch_vccz {label}_ok")
        a(f"s_sleep {sleep}")
        a(f"s_branch {label}")
        a.label(label + "_ok")
    else:
        a(f"s_cbranch_vccnz {label}")

def isize(l):
    l = l.strip()
    op = l.split()[0]
    if op.startswith(("v_mfma", "ds_", "buffer_", "v_cvt_pk")) or op.endswith("_e64"): return 8
    import re
    for tok in re.split(r"[ ,]+", l)[1:]:
        if re.fullmatch(r"-?\d+|0x[0-9a-f]+", tok) and not op.startswith(("s_waitcnt", "s_nop")):
            v = int(tok, 0)
            if not (-16 <= v <= 64): return 8
    return 4

def align8(lines):
    out = []
    for l in lines:
        op = l.strip().split()[0]
        if op.startswith("v_") and isize(l) == 4:
            l = l.replace(op, op + "_e64", 1)
        out.append(l)
    res, off = [], 0
    for l in out:
        sz = isize(l)
        if sz == 8 and off % 8 == 4:
            res.append("    s_nop 0"); off += 4
        res.append(l); off += sz
    if off % 8 == 4: res.append("    s_nop 0")
    return res

def emit_variant(a, var, cfg):
    bar = cfg.bar_pos if var != 3 else cfg.bar_pos - 3
    best = None
    for par in [(p0, 1, p2) for p0 in (1, 0) for p2 in (1, 0)]:
        ms = steady_order(var, cfg, par)
        n = len(ms)
        first, last = uses(ms)
        reads = [(key, max(last[key], bar), n + first[key]) for key in first]
        placed = edf(reads, bar, n + bar - 16, 0)
        ld = min(n + first[nm] - k for k, nm in placed.items())
        if best is None or ld > best[0]: best = (ld, par, ms, first, last, placed)
    ld, par, ms, first, last, placed = best
    print(f"variant {var}: snake parity {par}, min lead {ld}", file=sys.stderr)
    tail = [(k, placed[k]) for k in sorted(placed) if k < n]
    head = [(k - n, placed[k]) for k in sorted(placed) if k >= n]
    slow = []
    hb, tb = Asm(), Asm()
    q = LdsQ(hb, cfg.safe)
    for k, nm in tail: q.issue(nm, k - n)
    headd, taild = dict(head), dict(tail)
    extra = {}
    def put(k, s): extra.setdefault(k, []).append(s)
    krel = max(k for k, nm in head) + 1
    put(krel - 1, f"v_add_u32 v{V_PV}, 1, v{V_PV}")
    upd = ["s_bitcmp1_b32 s40, s46", f"s_cselect_b32 s42, {XCH - 4*64}, 64",
           "s_bitcmp1_b32 s41, s46", "s_cselect_b32 s43, s44, s45",
           "s_cmp_eq_u32 s46, 15", "s_cselect_b32 s49, 1000, s46",
           f"v_add_u32 v{V_XL}, s42, v{V_XL}", f"v_lshrrev_b32 v{V_T}, 3, v{V_XL}", f"v_and_b32 v{V_T}, 32, v{V_T}",
           f"v_xor_b32 v{V_XA[0]}, v{V_XL}, v{V_T}", f"v_xor_b32 v{V_XA[1]}, 32, v{V_XA[0]}"]
    upd += [f"v_add_u32 v{V_WA[t]}, s43, v{V_WA[t]}" for t in range(3)]
    b0 = krel + 2
    for j, u in enumerate(upd): put(b0 + cfg.updstep * j, u)
    kflag = bar - cfg.cmpd - 9
    assert b0 + cfg.updstep * len(upd) <= kflag
    cur = hb
    for k, m in enumerate(ms):
        rho, i, t, qq = m
        q.need([("w", i, t, 0), ("w", i, t, 1), ("x", qq)], k)
        cur(mfma_text(m))
        D = cfg.drop
        for s in extra.get(k, []): cur(s)
        if k == krel: q.issue(("rel",), k, f"ds_write_b32 v{V_CP}, v{V_PV}")
        if k == kflag: q.issue(("flag",), k, f"ds_read_b32 v{V_F}, v{V_LF}")
        if k == bar - cfg.cmpd - 1: q.need([("flag",)], k + 1)
        if k == bar - cfg.cmpd: cur(f"v_cmp_gt_u32 vcc, s49, v{V_F}")
        if k == bar:
            cur = tb; q.a = tb
        drop = lambda nm: ("l" in D and k in taild) or ("w" in D and nm[0] == "w" and k in taild) or ("x" in D and nm[0] == "x")
        if k in headd: q.issue(headd[k], k, read_text(headd[k]) if not drop(headd[k]) else None)
        if k in taild: q.issue(("next",) + taild[k], k, read_text(taild[k]) if not drop(taild[k]) else None)
        if k == n - 9: cur("s_add_u32 s46, s46, 1")
    kinds = ("w", "x") if (var < 2 and cfg.order) else ("x", "w")
    ent = [[nm for _, nm in sorted(tail, key=lambda e: first[e[1]]) if nm[0] == kd] for kd in kinds]
    late = ent[1]
    def entry_ok(m):
        done = len(late) - m
        wi = 0
        for k, (rho, i, t, qq) in enumerate(ms):
            while wi < len(q.waits) and q.waits[wi][0] <= k:
                _, cnt, nops = q.waits[wi]; wi += 1
                body_ops = nops - len(tail)
                done = max(done, len(late) - max(0, cnt - body_ops))
            for nm in (("w", i, t, 0), ("w", i, t, 1), ("x", qq)):
                if nm in late and late.index(nm) >= done: return False
        return True
    m = max(mm for mm in range(min(len(late), 14) + 1) if entry_ok(mm))
    if cfg.pads:
        a.label(f"L_pad{var}")
        a("s_branch L_compute")
    a.label(f"L_pro{var}")
    poll(a, f"L_p0_{var}", 16 if kinds[0] == "x" else 17, V_F, 1, 0)
    for nm in ent[0]: a(read_text(nm))
    poll(a, f"L_p1_{var}", 16 if kinds[1] == "x" else 17, V_F, 1, 0)
    if cfg.diag: stamp(a, 3)
    if cfg.amp:
        a("s_memrealtime s[86:87]")
        a("s_waitcnt lgkmcnt(0)")
    for nm in late: a(read_text(nm))
    a(f"s_waitcnt lgkmcnt({m})")
    a(f"s_branch L_head{var}")
    if cfg.al8:
        hb.lines = align8(hb.lines); tb.lines = align8(tb.lines)
    if cfg.align: a(".p2align 6")
    if cfg.shift4: a("s_nop 0")
    a.label(f"L_top{var}")
    a.lines += tb.lines
    a.label(f"L_head{var}")
    a.lines += hb.lines
    a(f"s_cbranch_vccz L_top{var}")
    a(f"v_cmp_gt_u32 vcc, s46, v{V_F}")
    a(f"s_cbranch_vccnz L_slow{var}")
    a.label(f"L_fin{var}")
    a.lines += tb.lines
    if cfg.diag: stamp(a, 4)
    if cfg.cpf: a("s_waitcnt vmcnt(0)")
    ls = last_order(var, cfg)
    lf, ll = uses(ls)
    lplaced = edf([(nm, 0, lf[nm]) for _, nm in head], 0, n, min(cfg.lead, 6))
    print(f"   last body: min lead head {min(lf[nm] - k for k, nm in lplaced.items())} tail {min(n + lf[nm] - k for k, nm in tail)}", file=sys.stderr)
    q = LdsQ(a, cfg.safe)
    for k, nm in tail: q.issue(nm, k - n)
    endk = {}
    for k, (rho, i, t, qq) in enumerate(ls): endk[(rho, t)] = k
    lastrow = OFF[var] + 5
    seq = []
    left = {r: sum(r in TYPES[var][t] for t in range(3)) for r in range(7)}
    def cvt2(D, S, tile):
        return [(tile, f"v_cvt_pk_bf16_f32 v{D}, v{S}, v{S+1}"), (tile, f"v_cvt_pk_bf16_f32 v{D+1}, v{S+2}, v{S+3}")]
    for (r, t) in last_tiles(var):
        S = acc(r, t)
        if r != lastrow:
            slot = 10 - 5 * (var == 1) if r == SPECIAL[var] else r - OFF[var]
            seq += cvt2(S, S, (r, t))
            off = slot * SROW + (32 if t == 2 else 0)
            seq.append((None, f"ds_write_b64 v{V_GB if t == 0 else V_GA}, {vr(S,2)} offset:{off}"))
            left[r] -= 1
            if left[r] == 0:
                pv = 18 if r == SPECIAL[var] else 19 + r - OFF[var]
                seq.insert(len(seq) - 1, (None, f"v_mov_b32 v{V_PV}, {pv}"))
                seq.append((None, f"ds_write_b32 v{V_CP}, v{V_PV}"))
        elif t == 1:
            seq += cvt2(S, S, (r, t))
            seq.append((None, f"s_add_u32 s48, s47, {r*PROW}"))
        elif t == 2:
            A = acc(r, 1)
            seq += cvt2(A + 2, S, (r, t))
            seq.append(("W2", f"v_permlane16_swap_b32 v{A}, v{A+2}"))
            seq.append((None, f"v_permlane16_swap_b32 v{A+1}, v{A+3}"))
            seq.append((None, f"buffer_store_dwordx4 {vr(A,4)}, v{V_SA}, s[24:27], s48 offen{cfg.stflag}"))
        else:
            seq += cvt2(S, S, (r, t))
            seq.append((None, f"buffer_store_dwordx2 {vr(S,2)}, v{V_SC}, s[24:27], s48 offen{cfg.stflag}"))
    def states(frm):
        c = 0
        for l in a.lines[frm + 1:]:
            l = l.strip()
            if l.endswith(":") or l.startswith(";") or l.startswith("."): continue
            c += int(l.split()[1]) + 1 if l.startswith("s_nop") else 1
        return c
    done_at = {}
    last_valu = [0]
    def missing(dep):
        if dep is None: return 0
        if dep == "W2": return max(0, 2 - states(last_valu[0]))
        if dep not in done_at: return None
        return max(0, 8 - states(done_at[dep]))
    nl = [0]
    def emit_ex(txt, k):
        for key, pat in (("C", "v_cvt"), ("P", "v_permlane"), ("V", "ds_write_b64"), ("F", "ds_write_b32"), ("S", "buffer_store")):
            if key in cfg.drop and txt.startswith(pat): return
        if txt.startswith("ds_"):
            nl[0] += 1; q.issue(("st", nl[0]), k, txt)
        else: a(txt)
        if txt.startswith("v_cvt"): last_valu[0] = len(a.lines) - 1
    for k, m in enumerate(ls):
        rho, i, t, qq = m
        q.need([("w", i, t, 0), ("w", i, t, 1), ("x", qq)], k)
        a(mfma_text(m))
        if endk[(rho, t)] == k: done_at[(rho, t)] = len(a.lines) - 1
        cnt = 0
        if k in lplaced:
            q.issue(lplaced[k], k, read_text(lplaced[k])); cnt += 1
        lim = cfg.exper if k >= n - cfg.rush else 1
        while seq and cnt < lim and k < n - 1:
            miss = missing(seq[0][0])
            if miss == 0:
                emit_ex(seq.pop(0)[1], k); cnt += 1
            else:
                if miss is not None and miss > 1 and cnt == 0 and k >= n - cfg.fill: a("s_nop 1")
                break
    while seq:
        miss = missing(seq[0][0])
        if miss: a(f"s_nop {miss - 1}")
        emit_ex(seq.pop(0)[1], n)
    if cfg.diag:
        stamp(a, 5)
        a("s_waitcnt vmcnt(0)")
        stamp(a, 6)
        a("s_branch L_dump")
    elif cfg.amp:
        if var == 0: a.label("L_ampall")
        a("s_waitcnt vmcnt(0)")
        a("s_memrealtime s[88:89]")
        a("s_waitcnt lgkmcnt(0)")
        if cfg.amp in ("span", "skew"):
            a("v_mov_b32 v4, 0")
            a("buffer_load_dwordx2 v[6:7], v4, s[80:83], 0 offen sc0 sc1")
            a("s_waitcnt vmcnt(0)")
            a("v_readfirstlane_b32 s86, v6")
            a("v_readfirstlane_b32 s58, v7")
            a("s_nop 3")
            a("s_not_b32 s58, s58")
        lo, hi = {"pro": (58, 86), "all": (58, 88), "loop": (86, 88), "none": (58, 58), "span": (58, 88), "skew": (58, 86)}[cfg.amp]
        a(f"s_sub_u32 s90, s{hi}, s{lo}")
        a("s_mul_i32 s90, s90, 10")
        if cfg.fixd: a(f"s_mov_b32 s90, {cfg.fixd}")
        if cfg.wbl2:
            a("buffer_wbl2 sc1")
        a.label(f"L_amp{var}")
        a("s_memrealtime s[76:77]")
        a("s_waitcnt lgkmcnt(0)")
        a("s_sub_u32 s91, s76, s88")
        a("s_cmp_lt_u32 s91, s90")
        a(f"s_cbranch_scc1 L_amp{var}")
        a("s_endpgm")
    else:
        a("s_endpgm")
    poll(a, f"L_slow{var}", V_LF, V_F, "s46", 0)
    a("s_cmp_eq_u32 s46, 15")
    a(f"s_cbranch_scc1 L_fin{var}")
    a(f"s_branch L_top{var}")
    for lab, va, need, back in slow:
        poll(a, lab, va, V_F, need, 0)
        a(f"s_branch {back}")

def stamp(a, idx):
    a(f"s_memtime s[{60+2*idx}:{61+2*idx}]")
    if idx in (3, 5):
        a(f"s_memrealtime s[{86 if idx == 3 else 88}:{87 if idx == 3 else 89}]")
    a("s_waitcnt lgkmcnt(0)")

def dump_stamps(a, cfg):
    a.label("L_dump")
    a("s_memrealtime s[76:77]")
    a("s_getreg_b32 s78, hwreg(HW_REG_HW_ID)")
    a("s_getreg_b32 s79, hwreg(HW_REG_XCC_ID)")
    a("s_waitcnt lgkmcnt(0)")
    a("s_mov_b32 s80, s12")
    a("s_mov_b32 s81, s13")
    a("s_mov_b32 s82, 0x100000")
    a("s_mov_b32 s83, 0x20000")
    a("s_lshl_b32 s84, s2, 3")
    a("s_add_u32 s84, s84, s32")
    a("s_lshl_b32 s84, s84, 6")
    a("v_mov_b32 v4, 0")
    for k, s in enumerate([60, 62, 64, 66, 68, 70, 72, 74, 76, 77, 78, 79, 58, 59, 86, 88]):
        a(f"v_mov_b32 v5, s{s}")
        a(f"buffer_store_dword v5, v4, s[80:83], s84 offen offset:{4*k}")
        a("s_nop 1")
    a("v_and_b32 v1, 63, v0")
    a("v_lshlrev_b32 v4, 2, v1")
    a("v_cmp_gt_u32 vcc, 16, v1")
    a("s_and_saveexec_b64 s[92:93], vcc")
    a("s_lshl_b32 s84, s84, 2")
    a("s_add_u32 s84, s84, 0x40000")
    for k in range(3):
        a(f"buffer_store_dword v{44+k}, v4, s[80:83], s84 offen offset:{64*k}")
    a("s_waitcnt vmcnt(0)")
    a("s_endpgm")

def srd(a, d, p, size):
    a(f"s_mov_b32 s{d}, s{p}")
    a(f"s_and_b32 s{d+1}, s{p+1}, 0xffff")
    a(f"s_mov_b32 s{d+2}, {size}")
    a(f"s_mov_b32 s{d+3}, 0x20000")

def gen(cfg):
    a = Asm()
    hdr = open("standalone__dilated_atrous__vision.s.ref").read().splitlines()
    head = [l for l in hdr[:8] if l.startswith(";") and "@launch" not in l]
    out = "\n".join(head) + "\n"
    out += f"; @launch grid=(256,1,1) block=(512,1,1) lds={LDS_TOTAL}\n"
    out += f""".amdgcn_target "amdgcn-amd-amdhsa--gfx950"
.text
.globl {NAME}_kernel
.p2align 8
.type {NAME}_kernel,@function
{NAME}_kernel:
"""
    def trace(reg, idx):
        if cfg.trace:
            a("s_memtime s[90:91]")
            a(f"s_mov_b32 m0, {idx}")
            a("s_waitcnt lgkmcnt(0)")
            a(f"v_writelane_b32 v{reg}, s90, m0")
    if cfg.diag:
        a("s_memtime s[60:61]")
        a("s_memrealtime s[58:59]")
        a("s_load_dwordx2 s[12:13], s[0:1], 32")
    if cfg.amp: a("s_memrealtime s[58:59]")
    if cfg.amp in ("span", "skew"): a("s_load_dwordx2 s[12:13], s[0:1], 24")
    a("s_load_dwordx4 s[4:7], s[0:1], 0")
    a("s_load_dwordx2 s[8:9], s[0:1], 16")
    if WD: a("s_mov_b32 s94, 0")
    a("s_cmp_ge_u32 s2, 256")
    a("s_cbranch_scc1 L_exit")
    a("s_and_b32 s28, s2, 1")
    a("s_bfe_u32 s3, s2, 0x20001")
    a("s_lshl_b32 s3, s3, 5")
    a("s_lshr_b32 s33, s2, 3")
    a("s_add_u32 s3, s3, s33")
    a("s_cmp_ge_u32 s3, 126")
    a("s_cbranch_scc1 L_exit")
    a("v_lshrrev_b32 v2, 6, v0")
    a("v_and_b32 v1, 63, v0")
    a("v_readfirstlane_b32 s32, v2")
    a("v_lshlrev_b32 v30, 2, v0")
    a(f"v_add_u32 v30, {FLAGS}, v30")
    a("v_mov_b32 v31, 0")
    a("ds_write_b32 v30, v31")
    a("s_mul_i32 s33, s3, 4682")
    a("s_lshr_b32 s33, s33, 16")
    a("s_mul_i32 s34, s33, 14")
    a("s_sub_u32 s34, s3, s34")
    a("s_and_b32 s29, s34, 1")
    a("s_lshr_b32 s30, s34, 1")
    a("s_lshl_b32 s30, s30, 4")
    a("s_mul_i32 s31, s33, 25")
    a("s_lshr_b32 s31, s31, 1")
    a("s_and_b32 s34, s33, 1")
    a("s_lshl_b32 s35, s31, 1")
    a("s_add_u32 s35, s35, s28")
    a(f"s_mul_i32 s35, s35, {ROWB}")
    a("s_lshl_b32 s36, s30, 1")
    a("s_add_u32 s36, s36, s29")
    a("s_mul_i32 s36, s36, 192")
    a("s_lshl_b32 s52, s29, 1")
    a("s_sub_u32 s52, 2, s52")
    a("s_cmp_ge_u32 s32, 4")
    if cfg.cpf:
        a("s_cbranch_scc0 L_ld")
        a("s_bfe_u32 s31, s32, 0x10001")
        a("s_lshl1_add_u32 s31, s34, s31")
        a("s_cmp_eq_u32 s33, 8")
        a("s_cselect_b32 s31, 3, s31")
        a("s_getpc_b64 s[38:39]")
        a.label("L_pc")
        a("s_lshr_b32 s37, s2, 1")
        a("s_and_b32 s37, s37, 0x7c")
        a("s_add_u32 s37, s37, s32")
        a("s_min_u32 s37, s37, (L_end-L_pc)/128")
        a("s_lshl_b32 s37, s37, 7")
        a("s_add_u32 s38, s38, s37")
        a("s_addc_u32 s39, s39, 0")
        a("v_mov_b32 v12, s38")
        a("v_mov_b32 v13, s39")
        a("global_load_dword v14, v[12:13], off")
        if cfg.pads:
            a("s_bitcmp1_b32 s32, 0")
            a("s_cbranch_scc0 L_compute")
            a("s_cmp_eq_u32 s31, 0")
            a("s_cbranch_scc1 L_pad0")
            a("s_cmp_eq_u32 s31, 1")
            a("s_cbranch_scc1 L_pad1")
            a("s_cmp_eq_u32 s31, 2")
            a("s_cbranch_scc1 L_pad2")
            a("s_branch L_pad3")
        else:
            a("s_branch L_compute")
        a.label("L_ld")
    else:
        a("s_cbranch_scc1 L_compute")
    if cfg.bench:
        a("v_mov_b32 v31, 100")
        a("ds_write_b32 v30, v31")
        a("s_waitcnt lgkmcnt(0)")
        a("s_barrier")
        a("s_branch L_dump")
    a("s_add_u32 s37, s35, s36")
    a(f"s_sub_u32 s37, s37, {2*PROW + 2*384}")
    a("s_sub_u32 s38, s30, 2")
    a("s_cmp_eq_u32 s29, 0")
    a("s_cselect_b32 s14, 32, -32")
    a("s_cselect_b32 s15, 0, 320")
    a(f"s_mul_i32 s10, s14, {8*PROW//32}")
    a("s_and_b32 s11, s32, 1")
    a("s_lshl_b32 s39, s11, 4")
    a("s_add_u32 s15, s15, s39")
    a("v_lshrrev_b32 v13, 2, v1")
    a("v_add_u32 v13, s15, v13")
    a("v_lshrrev_b32 v14, 3, v1")
    a("v_and_b32 v14, 2, v14")
    a("v_and_b32 v15, 3, v1")
    a("v_xor_b32 v14, v14, v15")
    a("v_lshlrev_b32 v14, 4, v14")
    a("v_add_u32 v14, s37, v14")
    a("v_bfrev_b32 v19, 1")
    a("s_movk_i32 s39, 3277")
    a(f"s_mov_b32 s49, {PROW}")
    a("s_movk_i32 s50, 384")
    a("s_movk_i32 s51, 112")
    for b in range(5):
        a("v_mul_u32_u24 v15, s39, v13")
        a("v_lshrrev_b32 v15, 16, v15")
        a("v_mul_u32_u24 v16, 20, v15")
        a("v_sub_u32 v16, v13, v16")
        a("v_add_u32 v17, s38, v16")
        a("v_cmp_gt_u32 vcc, s51, v17")
        a("v_mad_u32_u24 v18, v15, s49, v14")
        a("v_mad_u32_u24 v18, v16, s50, v18")
        a(f"v_cndmask_b32 v{2+b}, v19, v18, vcc")
        if b < 4: a("v_add_u32 v13, s14, v13")
        a(f"v_add_u32 v{7+b}, s10, v{2+b}")
    a("v_add_u32 v12, s10, v7")
    a("s_lshl_b32 s57, s52, 6")
    a("s_lshl_b32 s56, s15, 6")
    a("s_lshl_b32 s14, s14, 6")
    a("v_lshlrev_b32 v20, 4, v1")
    a("v_cmp_gt_u32 vcc, 32, v1")
    a("v_xor_b32 v22, 32, v20")
    a("s_lshr_b32 s39, s2, 3")
    a("v_cndmask_b32 v21, v22, v20, vcc")
    a("s_and_b32 s39, s39, 30")
    a("s_mul_i32 s38, s11, 5")
    a("s_add_u32 s39, s39, s38")
    a("s_mul_i32 s38, s39, 26")
    a("s_lshr_b32 s38, s38, 8")
    a("s_mul_i32 s38, s38, 10")
    a("s_sub_u32 s39, s39, s38")
    a("s_mul_i32 s40, s39, 3072")
    a("s_lshr_b32 s41, s39, 1")
    a(f"s_mul_i32 s41, s41, {92160 - 6144}")
    a("s_add_u32 s41, s41, s40")
    a("s_movk_i32 s42, 3072")
    a("s_bitcmp1_b32 s39, 0")
    a(f"s_cselect_b32 s42, {92160 - 3072}, s42")
    a("s_mov_b32 s43, 4")
    a("s_cmp_ge_u32 s32, 2")
    a("s_cselect_b32 s95, 1, 0")
    a(f"s_mul_i32 s54, s95, {WBUF}")
    a(f"s_add_u32 s54, s54, {WBASE}")
    a("s_mul_i32 s37, s95, 3")
    a("s_add_u32 s37, s37, s52")
    a("s_mul_i32 s37, s37, 6144")
    a("s_mov_b32 s55, 0")
    a("s_mov_b32 s15, 15")
    a("s_waitcnt lgkmcnt(0)")
    if cfg.diag: stamp(a, 1)
    srd(a, 16, 4, XBYTES)
    srd(a, 20, 6, WBYTES)
    if cfg.order:
        a("s_cmp_eq_u32 s95, s34")
        a("s_cbranch_scc1 L_go")
        a("s_barrier")
        a.label("L_go")
    a("s_cmp_eq_u32 s95, 1")
    a("s_cbranch_scc0 L_w_it")
    a.label("L_x_loop")
    for blk in range(4):
        a(f"s_bitcmp1_b32 s15, {blk}")
        a(f"s_cbranch_scc0 " + (f"L_x{blk}" if blk < 3 else "L_x_next"))
        for k in range(3 * blk, min(3 * blk + 3, 11)):
            a("s_mov_b32 m0, s56")
            a("s_add_u32 s56, s56, s14")
            a(f"buffer_load_dwordx4 v{2+k}, s[16:19], s57 offen{cfg.xflag} lds")
        if blk < 3: a.label(f"L_x{blk}")
    a("s_cmp_lg_u32 s55, 0")
    a("s_cbranch_scc1 L_x_sig")
    if cfg.diag: stamp(a, 2)
    if cfg.order:
        a("s_cmp_eq_u32 s34, 0")
        a("s_cbranch_scc1 L_x_nb")
    a("s_barrier")
    a.label("L_x_nb")
    a("v_mov_b32 v26, 1")
    a("s_waitcnt vmcnt(0)")
    a("ds_write_b32 v30, v26")
    trace(45, 0)
    a.label("L_w_it")
    a("s_add_u32 m0, s54, s40")
    a("s_add_u32 s50, s37, s41")
    for k in range(3):
        a(f"buffer_load_dwordx4 v{20+k}, s[20:23], s50 offen offset:{k*1024}{cfg.wflag} lds")
    a("s_addk_i32 s40, 3072")
    a("s_add_u32 s41, s41, s42")
    a(f"s_xor_b32 s42, s42, {3072 ^ (92160 - 3072)}")
    a(f"s_cmpk_eq_u32 s40, {WBUF}")
    a("s_cselect_b32 s40, 0, s40")
    a("s_cselect_b32 s41, 0, s41")
    a("s_sub_u32 s43, s43, 1")
    a("s_cbranch_scc0 L_w_it")
    a("s_cmp_lg_u32 s55, 0")
    a("s_cbranch_scc1 L_w_adv")
    a("s_cmp_eq_u32 s95, 1")
    a("s_cbranch_scc1 L_x_w1")
    if cfg.order:
        a("s_cmp_eq_u32 s34, 1")
        a("s_cbranch_scc1 L_w_nb1")
    a("s_barrier")
    a.label("L_w_nb1")
    a("s_mov_b32 s55, s32")
    a("s_mov_b32 s53, s32")
    a(f"s_mul_i32 s50, s32, {WBUF}")
    a("s_add_u32 s54, s54, s50")
    a("v_mov_b32 v31, s32")
    a.label("L_w_adv")
    trace(44, "s55")
    a("v_add_u32 v31, 2, v31")
    a("s_waitcnt vmcnt(0)")
    a("ds_write_b32 v30, v31")
    trace(45, "s55")
    a(f"s_sub_u32 s54, s54, {WBUF}")
    a(f"s_cmp_lt_u32 s54, {WBASE}")
    a(f"s_cselect_b32 s50, {3*WBUF}, 0")
    a("s_add_u32 s54, s54, s50")
    a("s_add_u32 s53, s53, 2")
    a("s_cmp_ge_u32 s53, 5")
    a("s_cselect_b32 s50, 5, 0")
    a("s_sub_u32 s53, s53, s50")
    a("s_lshr_b32 s50, s50, 2")
    a("s_add_u32 s52, s52, s50")
    a("s_cmp_eq_u32 s52, 3")
    a("s_cselect_b32 s52, 0, s52")
    a("s_mul_i32 s37, s53, 3")
    a("s_add_u32 s37, s37, s52")
    a("s_mul_i32 s37, s37, 6144")
    a("s_mov_b32 s43, 9")
    a("s_mov_b32 s51, s55")
    a("s_add_u32 s55, s55, 2")
    a("s_cmp_eq_u32 s51, 0")
    a("s_cbranch_scc1 L_w_it")
    a("s_cmp_ge_u32 s55, 15")
    a("s_cbranch_scc1 L_store")
    a("v_and_b32 v23, 3, v1")
    a("v_lshlrev_b32 v23, 8, v23")
    a(f"v_add_u32 v23, {FLAGS + 1024}, v23")
    poll(a, "L_w_poll", 23, 24, "s51", cfg.sleep)
    trace(46, "s55")
    a("s_branch L_w_it")
    a.label("L_x_w1")
    C = sum(((thr << 4) | m) << (8 * k) for k, (thr, m) in enumerate(cfg.xb))
    assert len(cfg.xb) <= 8
    a(f"s_mov_b32 s92, {C & 0xffffffff:#x}")
    a(f"s_mov_b32 s93, {C >> 32:#x}")
    a("s_mov_b32 s55, 1")
    if cfg.trace: a("s_mov_b32 s51, 1")
    a.label("L_x_sig")
    a("v_add_u32 v31, 5, v31")
    a("s_waitcnt vmcnt(0)")
    a("ds_write_b32 v30, v31")
    trace(45, "s51")
    a("s_mul_i32 s50, s14, -11")
    a("s_add_u32 s56, s56, s50")
    a(f"s_add_u32 s56, s56, {XCH}")
    a("s_add_u32 s57, s57, 64")
    a("s_cmp_eq_u32 s57, 192")
    a("s_cselect_b32 s57, 0, s57")
    a.label("L_x_next")
    a("s_and_b32 s15, s92, 15")
    a("s_cbranch_scc0 L_store")
    a("s_bfe_u32 s51, s92, 0x40004")
    a("s_lshr_b64 s[92:93], s[92:93], 8")
    a("v_and_b32 v22, 1, v1")
    a(f"v_lshlrev_b32 v22, 8, v22")
    a(f"v_add_u32 v22, {FLAGS}, v22")
    poll(a, "L_x_poll", 22, 23, "s51", cfg.sleep)
    trace(44, "s51")
    a("s_branch L_x_loop")
    a.label("L_store")
    srd(a, 24, 8, XBYTES)
    a("s_movk_i32 s39, 171")
    a("s_movk_i32 s49, 208")
    a("s_movk_i32 s50, 384")
    for k in range(3):
        a(f"v_add_u32 v10, {64*k}, v1")
        a("v_mul_u32_u24 v11, s39, v10")
        a("v_lshrrev_b32 v11, 11, v11")
        a("v_mul_u32_u24 v12, 12, v11")
        a("v_sub_u32 v12, v10, v12")
        a("v_lshlrev_b32 v12, 4, v12")
        a(f"v_mad_u32_u24 v{2+k}, v11, s49, v12")
        a(f"v_mad_u32_u24 v{5+k}, v11, s50, v12")
    a("v_and_b32 v10, 1, v1")
    a("v_lshlrev_b32 v10, 8, v10")
    a("s_lshl_b32 s39, s95, 9")
    a(f"s_add_u32 s39, s39, {FLAGS + 1024}")
    a("v_add_u32 v10, s39, v10")
    a("s_cmp_eq_u32 s33, 8")
    a("s_cselect_b32 s39, 6, 7")
    a("s_cmp_eq_u32 s95, 1")
    a("s_cselect_b32 s39, s39, s34")
    a("s_add_u32 s45, s35, s36")
    a(f"s_mul_i32 s46, s39, {PROW}")
    a("s_add_u32 s46, s46, s45")
    def spec_try(label, nrd):
        a.label(label)
        if WD:
            a("s_add_u32 s94, s94, 1")
            a("s_bitcmp1_b32 s94, 18")
            a("s_cbranch_scc1 L_exit")
        a("ds_read_b32 v11, v10")
        for k in range(nrd): a(f"ds_read_b128 {vr(16+4*k,4)}, v{12+k}")
        a(f"s_waitcnt lgkmcnt({nrd})")
        a("v_cmp_gt_u32 vcc, s51, v11")
        a(f"s_cbranch_vccnz {label}")
    poll(a, "L_st_pre", 10, 11, 14, cfg.sleep)
    if cfg.stprio: a(f"s_setprio {cfg.stprio}")
    a("s_mov_b32 s44, s11")
    a("s_cmp_lg_u32 s32, 1")
    a("s_cbranch_scc1 L_st_loop")
    a("s_cmp_eq_u32 s33, 8")
    a("s_cbranch_scc1 L_st_loop")
    a("s_mov_b32 s51, 18")
    a("s_cmp_eq_u32 s34, 1")
    a("s_cbranch_scc1 L_st_mid")
    a("v_and_b32 v28, 3, v1")
    a("v_lshlrev_b32 v28, 8, v28")
    a(f"v_add_u32 v28, {FLAGS + 1024}, v28")
    poll(a, "L_st_sp", 28, 11, "s51", cfg.sleep2)
    a(f"s_add_u32 s47, s45, {6*PROW}")
    a(f"s_mov_b32 s48, {10*SROW}")
    a("s_mov_b32 s44, -1")
    a("s_branch L_st_row")
    a.label("L_st_mid")
    a("v_lshrrev_b32 v11, 2, v1")
    a("v_and_b32 v12, 3, v1")
    a("v_lshlrev_b32 v12, 4, v12")
    a("v_mad_u32_u24 v28, v11, s50, v12")
    a("v_mad_u32_u24 v12, v11, s49, v12")
    poll(a, "L_st_sm", 10, 11, "s51", cfg.sleep2)
    a(f"ds_read_b128 {vr(16,4)}, v12 offset:{10*SROW + 64}")
    a("s_waitcnt lgkmcnt(0)")
    a(f"buffer_store_dwordx4 {vr(16,4)}, v28, s[24:27], s45 offen offset:64{cfg.stflag}")
    a.label("L_st_loop")
    a(f"s_mul_i32 s47, s44, {PROW}")
    a("s_add_u32 s47, s47, s46")
    a("s_mul_i32 s48, s95, 5")
    a("s_add_u32 s48, s48, s44")
    a(f"s_mul_i32 s48, s48, {SROW}")
    a("s_add_u32 s51, s44, 19")
    a.label("L_st_row")
    for k in range(3): a(f"v_add_u32 v{12+k}, s48, v{2+k}")
    if cfg.spec:
        a("s_sub_u32 s39, s51, 1")
        poll(a, "L_st_poll", 10, 11, "s39", cfg.sleep2)
        spec_try("L_st_try", 3)
    else:
        poll(a, "L_st_poll", 10, 11, "s51", cfg.sleep2)
        for k in range(3): a(f"ds_read_b128 {vr(16+4*k,4)}, v{12+k}")
    for k in range(3):
        a(f"s_waitcnt lgkmcnt({2-k})")
        a(f"buffer_store_dwordx4 {vr(16+4*k,4)}, v{5+k}, s[24:27], s47 offen{cfg.stflag}")
    a("s_add_u32 s44, s44, 2")
    a("s_cmp_lt_u32 s44, 5")
    a("s_cbranch_scc1 L_st_loop")
    a.label("L_st_end")
    if cfg.amp == "all": a("s_branch L_ampall")
    if cfg.diag:
        stamp(a, 5)
        a("s_waitcnt vmcnt(0)")
        stamp(a, 6)
        dump_stamps(a, cfg)
    a.label("L_exit")
    a("s_endpgm")
    a.label("L_compute")
    if cfg.cbar == 0:
        a("s_waitcnt lgkmcnt(0)")
        a("s_barrier")
    a("s_sub_u32 s37, s32, 4")
    a("s_and_b32 s38, s37, 1")
    a("s_lshr_b32 s37, s37, 1")
    a("s_add_u32 s39, s34, 6")
    a("s_mul_i32 s49, s37, s39")
    a(f"v_mov_b32 v{V_CP}, v30")
    a(f"v_mov_b32 v{V_PV}, 0")
    a("v_and_b32 v32, 15, v1")
    a("v_lshrrev_b32 v33, 4, v1")
    a("v_and_b32 v34, 1, v33")
    a("v_lshrrev_b32 v35, 1, v33")
    a("v_bfe_u32 v36, v1, 2, 2")
    a("v_and_b32 v37, 3, v1")
    a(f"v_lshlrev_b32 v{V_LF}, 8, v37")
    a(f"v_add_u32 v{V_LF}, {FLAGS}, v{V_LF}")
    a(f"v_or_b32 v16, 512, v{V_LF}")
    a(f"v_xor_b32 v17, 512, v16")
    a("s_lshl_b32 s39, s38, 7")
    a("v_lshlrev_b32 v40, 5, v34")
    a("v_lshl_add_u32 v40, v35, 4, v40")
    a("v_add_u32 v40, s39, v40")
    a("s_lshl_b32 s39, s38, 5")
    a("s_add_u32 s39, s39, 64")
    a("v_lshlrev_b32 v41, 3, v33")
    a("v_add_u32 v41, s39, v41")
    a("v_mul_u32_u24 v38, 384, v32")
    a("v_add_u32 v38, s36, v38")
    a(f"v_add_u32 v{V_SA}, v38, v40")
    a(f"v_add_u32 v{V_SC}, v38, v41")
    a("v_mul_u32_u24 v38, 208, v32")
    a(f"s_mul_i32 s39, s37, {5*SROW}")
    a("v_add_u32 v38, s39, v38")
    a("s_lshl_b32 s39, s38, 7")
    a(f"v_lshl_add_u32 v{V_GA}, v33, 3, v38")
    a(f"v_add_u32 v{V_GA}, s39, v{V_GA}")
    a(f"v_add_u32 v{V_GB}, v38, v41")
    a(f"s_mul_i32 s47, s49, {PROW}")
    a("s_add_u32 s47, s47, s35")
    a("v_lshl_add_u32 v38, v33, 3, v36")
    a("v_mul_u32_u24 v38, 192, v38")
    a("v_lshl_add_u32 v38, v37, 3, v38")
    a(f"v_add_u32 v38, {WBASE}, v38")
    a("s_add_u32 s39, s38, 2")
    a("v_xor_b32 v39, s39, v34")
    a(f"v_lshl_add_u32 v{V_WA[0]}, v39, 5, v38")
    a("s_lshl_b32 s39, s38, 2")
    a("v_xor_b32 v39, s39, v34")
    a(f"v_lshl_add_u32 v{V_WA[1]}, v39, 5, v38")
    a("v_xor_b32 v39, 1, v39")
    a(f"v_lshl_add_u32 v{V_WA[2]}, v39, 5, v38")
    a("v_lshlrev_b32 v38, 6, v32")
    a("v_lshl_add_u32 v38, v33, 4, v38")
    a(f"s_mul_i32 s39, s49, {XROW}")
    a(f"v_add_u32 v{V_XL}, s39, v38")
    a(f"v_lshrrev_b32 v{V_T}, 3, v{V_XL}")
    a(f"v_and_b32 v{V_T}, 32, v{V_T}")
    a(f"v_xor_b32 v{V_XA[0]}, v{V_XL}, v{V_T}")
    a(f"v_xor_b32 v{V_XA[1]}, 32, v{V_XA[0]}")
    if cfg.mov64:
        for k in range(0, 84, 2): a(f"v_mov_b64 {vr(V_ACC+k,2)}, 0")
    else:
        for k in range(84): a(f"v_mov_b32 v{V_ACC+k}, 0")
    a(f"s_mov_b32 s40, {(1 << 6) | (1 << 11)}")
    a(f"s_mov_b32 s41, {sum(1 << (h + 1) for h in (3, 6, 9, 12))}")
    a(f"s_mov_b32 s44, {(-2*WBUF) & 0xffffffff}")
    a(f"s_mov_b32 s45, {WBUF}")
    a("s_mov_b32 s46, 2")
    if cfg.cbar == 1:
        a("s_waitcnt lgkmcnt(0)")
        a("s_barrier")
    if cfg.diag: stamp(a, 1)
    srd(a, 24, 8, XBYTES)
    if cfg.prio: a(f"s_setprio {cfg.prio}")
    if cfg.amp in ("span", "skew"): srd(a, 80, 12, 256)
    for var in (1, 2, 3):
        a(f"s_cmp_eq_u32 s31, {var}")
        a(f"s_cbranch_scc1 L_pro{var}")
    if cfg.pads: a("s_branch L_pro0")
    for var in range(4):
        emit_variant(a, var, cfg)
    a.label("L_end")
    a("s_endpgm")
    out += a.text()
    nv = (V_END + 7) // 8 * 8
    out += f""".section .rodata,"a"
.p2align 6
.amdhsa_kernel {NAME}_kernel
  .amdhsa_next_free_vgpr {nv}
  .amdhsa_next_free_sgpr 96
  .amdhsa_accum_offset {nv}
  .amdhsa_group_segment_fixed_size 0
  .amdhsa_kernarg_size 40
  .amdhsa_user_sgpr_count 2
  .amdhsa_user_sgpr_kernarg_segment_ptr 1
  .amdhsa_system_sgpr_workgroup_id_x 1
.end_amdhsa_kernel
"""
    return out

if __name__ == "__main__":
    p = argparse.ArgumentParser()
    p.add_argument("-o", default="standalone__dilated_atrous__vision.s")
    p.add_argument("--diag", action="store_true")
    p.add_argument("--trace", action="store_true")
    p.add_argument("--bar_pos", type=int, default=58)
    p.add_argument("--xbar", type=int, default=40)
    p.add_argument("--lead", type=int, default=5)
    p.add_argument("--safe", type=int, default=8)
    p.add_argument("--prio", type=int, default=1)
    p.add_argument("--align", type=int, default=1)
    p.add_argument("--snake", type=int, default=1)
    p.add_argument("--exper", type=int, default=2)
    p.add_argument("--order", type=int, default=1)
    p.add_argument("--wpf", type=int, default=0)
    p.add_argument("--epf", type=int, default=0)
    p.add_argument("--cpf", type=int, default=1)
    p.add_argument("--sleep", type=int, default=2)
    p.add_argument("--sleep2", type=int, default=1)
    p.add_argument("--stflag", default="nt")
    p.add_argument("--wd", type=int, default=1)
    p.add_argument("--amp", default="")
    p.add_argument("--al8", type=int, default=0)
    p.add_argument("--shift4", type=int, default=0)
    p.add_argument("--rush", type=int, default=30)
    p.add_argument("--fill", type=int, default=0)
    p.add_argument("--pads", type=int, default=1)
    p.add_argument("--nstage", type=int, default=5)
    p.add_argument("--spec", type=int, default=1)
    p.add_argument("--stprio", type=int, default=0)
    p.add_argument("--mov64", type=int, default=1)
    p.add_argument("--xflag", default="")
    p.add_argument("--wflag", default="")
    p.add_argument("--fixd", type=int, default=0)
    p.add_argument("--wbl2", type=int, default=0)
    p.add_argument("--bench", action="store_true")
    p.add_argument("--drop", default="")
    p.add_argument("--cmpd", type=int, default=4)
    p.add_argument("--updstep", type=int, default=1)
    p.add_argument("--xthr", type=int, default=2)
    p.add_argument("--cbar", type=int, default=0)
    p.add_argument("--w2wait", type=int, default=1)
    p.add_argument("--xb", default="3:1,4:2,5:4,6:8,8:3,9:12")
    cfg = p.parse_args()
    cfg.xb = [tuple(int(v) for v in e.split(":")) for e in cfg.xb.split(",")]
    WD = cfg.wd
    if cfg.stflag: cfg.stflag = " " + cfg.stflag
    if cfg.xflag: cfg.xflag = " " + cfg.xflag
    if cfg.wflag: cfg.wflag = " " + cfg.wflag
    open(cfg.o, "w").write(gen(cfg))
```

```python
import sys, argparse

NAME = "standalone__dilated_atrous__vision"
XBYTES = 224 * 224 * 96 * 2
WBYTES = 25 * 96 * 96 * 2
ROWB = 224 * 192
PROW = 2 * ROWB
XCH = 352 * 64
XROW = 20 * 64
WBASE = 3 * XCH
WBUF = 5 * 6144
FLAGS = WBASE + 3 * WBUF
LDS_TOTAL = FLAGS + 2048
SROW = 16 * 208
PART = 11 * SROW
assert PART + 6144 <= 2 * XCH

class Asm:
    def __init__(self):
        self.lines = []
    def __call__(self, s):
        self.lines.append("    " + s)
    def label(self, l):
        self.lines.append(l + ":")
    def comment(self, s):
        self.lines.append("    ; " + s)
    def text(self):
        return "\n".join(self.lines) + "\n"

def vr(b, n):
    return f"v[{b}:{b+n-1}]"

V_XL = 1
V_XA = (2, 3)
V_WA = (4, 5, 6)
V_SA, V_SC = 7, 8
V_GA, V_GB = 9, 10
V_T = 11
V_CP = 25
V_LF = 26
V_PV = 27
V_F = 28
V_X = 32
V_W = 76
V_ACC = 136
V_END = V_ACC + 84

TYPES = {
    0: (range(0, 6), range(0, 7), range(0, 6)),
    1: (range(0, 6), range(1, 7), range(0, 7)),
    2: (range(0, 7), range(1, 7), range(1, 7)),
    3: (range(0, 6), range(0, 6), range(0, 6)),
}
OFF = {0: 0, 1: 1, 2: 1, 3: 0}
SPECIAL = {0: 6, 1: 0, 2: 0, 3: None}
LASTHEAD = {
    0: [(0, 0), (0, 1), (6, 1), (0, 2)],
    1: [(0, 0), (1, 0), (1, 1), (0, 2), (1, 2)],
    2: [(0, 0), (1, 0), (1, 1), (2, 0), (1, 2), (2, 1), (2, 2)],
    3: [(0, 0), (0, 1), (1, 0), (0, 2), (1, 1), (1, 2)],
}

def acc(rho, t): return V_ACC + 4 * (rho * 3 + t)
def wreg(i, t): return V_W + 4 * (i * 3 + t)
def xreg(q): return V_X + 4 * q

def chain(rho, t, rev):
    r = list(range(5))
    if rev: r.reverse()
    return [(rho, i, t, rho + i) for i in r]

def steady_order(var, cfg, par=(1, 1, 1)):
    ms = []
    for t in range(3):
        for j, rho in enumerate(TYPES[var][t]): ms += chain(rho, t, cfg.snake and j % 2 == par[t])
    return ms

DIRECT = {0: (5,), 1: (6, 5), 2: (6,), 3: (5,)}

def last_tiles(var):
    order = list(LASTHEAD[var])
    rows = [r for r in range(7) if r not in DIRECT[var]] + list(DIRECT[var])
    for r in rows:
        for t in ((0, 1, 2) if r not in DIRECT[var] else (1, 2, 0)):
            if r in TYPES[var][t] and (r, t) not in order: order.append((r, t))
    return order

def last_order(var, cfg, par=1):
    ms = []
    for j, (r, t) in enumerate(last_tiles(var)): ms += chain(r, t, cfg.snake and j % 2 == par and j >= 4)
    return ms

def uses(ms):
    first, last = {}, {}
    for k, (rho, i, t, q) in enumerate(ms):
        for key in (("w", i, t, 0), ("w", i, t, 1), ("x", q)):
            first.setdefault(key, k); last[key] = k
    return first, last

def read_text(nm):
    if nm[0] == "x":
        q = nm[1]
        return f"ds_read_b128 {vr(xreg(q),4)}, v{V_XA[q & 1]} offset:{q*XROW}"
    _, i, t, h = nm
    return f"ds_read_b64_tr_b16 {vr(wreg(i,t)+2*h,2)}, v{V_WA[t]} offset:{i*6144 + h*768}"

def edf(reads, lo, hi, lead):
    placed, pending = {}, list(reads)
    for k in range(lo, hi):
        avail = [r for r in pending if r[1] <= k]
        if not avail: continue
        r = min(avail, key=lambda r: r[2])
        placed[k] = r[0]
        pending.remove(r)
        assert r[2] - k >= lead, (r, k)
    assert not pending, pending
    return placed

def mfma_text(m):
    rho, i, t, q = m
    return f"v_mfma_f32_16x16x32_bf16 {vr(acc(rho,t),4)}, {vr(wreg(i,t),4)}, {vr(xreg(q),4)}, {vr(acc(rho,t),4)}"

class LdsQ:
    def __init__(self, a, safe):
        self.a, self.safe = a, safe
        self.ops = []
        self.done = 0
        self.waits = []
    def issue(self, name, time, text=None):
        self.ops.append((name, time))
        if text: self.a(text)
    def need(self, names, time):
        idx = max(max(j for j, (nm, _) in enumerate(self.ops) if nm == n) for n in names) + 1
        if idx <= self.done: return
        for j, (nm, tm) in enumerate(self.ops):
            if tm <= time - 1 - self.safe: idx = max(idx, j + 1)
        cnt = len(self.ops) - idx
        if cnt > 14:
            idx += cnt - 14; cnt = 14
        self.a(f"s_waitcnt lgkmcnt({cnt})")
        self.waits.append((time, cnt, len(self.ops)))
        self.done = idx

WD = 1
def poll(a, label, vaddr, vtmp, sneed, sleep, wd=True):
    a.label(label)
    if WD and wd:
        a("s_add_u32 s94, s94, 1")
        a("s_bitcmp1_b32 s94, 18")
        a("s_cbranch_scc1 L_exit")
    a(f"ds_read_b32 v{vtmp}, v{vaddr}")
    a("s_waitcnt lgkmcnt(0)")
    a(f"v_cmp_gt_u32 vcc, {sneed}, v{vtmp}")
    if sleep:
        a(f"s_cbranch_vccz {label}_ok")
        a(f"s_sleep {sleep}")
        a(f"s_branch {label}")
        a.label(label + "_ok")
    else:
        a(f"s_cbranch_vccnz {label}")

def isize(l):
    l = l.strip()
    op = l.split()[0]
    if op.startswith(("v_mfma", "ds_", "buffer_", "v_cvt_pk")) or op.endswith("_e64"): return 8
    import re
    for tok in re.split(r"[ ,]+", l)[1:]:
        if re.fullmatch(r"-?\d+|0x[0-9a-f]+", tok) and not op.startswith(("s_waitcnt", "s_nop")):
            v = int(tok, 0)
            if not (-16 <= v <= 64): return 8
    return 4

def align8(lines):
    out = []
    for l in lines:
        op = l.strip().split()[0]
        if op.startswith("v_") and isize(l) == 4:
            l = l.replace(op, op + "_e64", 1)
        out.append(l)
    res, off = [], 0
    for l in out:
        sz = isize(l)
        if sz == 8 and off % 8 == 4:
            res.append("    s_nop 0"); off += 4
        res.append(l); off += sz
    if off % 8 == 4: res.append("    s_nop 0")
    return res

def emit_variant(a, var, cfg):
    bar = cfg.bar_pos if var != 3 else cfg.bar_pos - 3
    best = None
    for par in [(p0, 1, p2) for p0 in (1, 0) for p2 in (1, 0)]:
        ms = steady_order(var, cfg, par)
        n = len(ms)
        first, last = uses(ms)
        reads = [(key, max(last[key], bar), n + first[key]) for key in first]
        placed = edf(reads, bar, n + bar - 16, 0)
        ld = min(n + first[nm] - k for k, nm in placed.items())
        if best is None or ld > best[0]: best = (ld, par, ms, first, last, placed)
    ld, par, ms, first, last, placed = best
    print(f"variant {var}: snake parity {par}, min lead {ld}", file=sys.stderr)
    tail = [(k, placed[k]) for k in sorted(placed) if k < n]
    head = [(k - n, placed[k]) for k in sorted(placed) if k >= n]
    slow = []
    hb, tb = Asm(), Asm()
    q = LdsQ(hb, cfg.safe)
    for k, nm in tail: q.issue(nm, k - n)
    headd, taild = dict(head), dict(tail)
    extra = {}
    def put(k, s): extra.setdefault(k, []).append(s)
    krel = max(k for k, nm in head) + 1
    put(krel - 1, f"v_add_u32 v{V_PV}, 1, v{V_PV}")
    upd = ["s_bitcmp1_b32 s40, s46", f"s_cselect_b32 s42, {XCH - 4*64}, 64",
           "s_bitcmp1_b32 s41, s46", "s_cselect_b32 s43, s44, s45",
           "s_cmp_eq_u32 s46, 15", "s_cselect_b32 s49, 1000, s46",
           f"v_add_u32 v{V_XL}, s42, v{V_XL}", f"v_lshrrev_b32 v{V_T}, 3, v{V_XL}", f"v_and_b32 v{V_T}, 32, v{V_T}",
           f"v_xor_b32 v{V_XA[0]}, v{V_XL}, v{V_T}", f"v_xor_b32 v{V_XA[1]}, 32, v{V_XA[0]}"]
    upd += [f"v_add_u32 v{V_WA[t]}, s43, v{V_WA[t]}" for t in range(3)]
    b0 = krel + 2
    for j, u in enumerate(upd): put(b0 + cfg.updstep * j, u)
    kflag = bar - cfg.cmpd - 9
    assert b0 + cfg.updstep * len(upd) <= kflag
    cur = hb
    for k, m in enumerate(ms):
        rho, i, t, qq = m
        q.need([("w", i, t, 0), ("w", i, t, 1), ("x", qq)], k)
        cur(mfma_text(m))
        D = cfg.drop
        for s in extra.get(k, []): cur(s)
        if k == krel: q.issue(("rel",), k, f"ds_write_b32 v{V_CP}, v{V_PV}")
        if k == kflag: q.issue(("flag",), k, f"ds_read_b32 v{V_F}, v{V_LF}")
        if k == bar - cfg.cmpd - 1: q.need([("flag",)], k + 1)
        if k == bar - cfg.cmpd: cur(f"v_cmp_gt_u32 vcc, s49, v{V_F}")
        if k == bar:
            cur = tb; q.a = tb
        drop = lambda nm: ("l" in D and k in taild) or ("w" in D and nm[0] == "w" and k in taild) or ("x" in D and nm[0] == "x")
        if k in headd: q.issue(headd[k], k, read_text(headd[k]) if not drop(headd[k]) else None)
        if k in taild: q.issue(("next",) + taild[k], k, read_text(taild[k]) if not drop(taild[k]) else None)
        if k == n - 9: cur("s_add_u32 s46, s46, 1")
    kinds = ("w", "x") if ((var < 2 and cfg.order == 1) or cfg.order == 3) else ("x", "w")
    ent = [[nm for _, nm in sorted(tail, key=lambda e: first[e[1]]) if nm[0] == kd] for kd in kinds]
    late = ent[1]
    def entry_ok(m):
        done = len(late) - m
        wi = 0
        for k, (rho, i, t, qq) in enumerate(ms):
            while wi < len(q.waits) and q.waits[wi][0] <= k:
                _, cnt, nops = q.waits[wi]; wi += 1
                body_ops = nops - len(tail)
                done = max(done, len(late) - max(0, cnt - body_ops))
            for nm in (("w", i, t, 0), ("w", i, t, 1), ("x", qq)):
                if nm in late and late.index(nm) >= done: return False
        return True
    ment = max(mm for mm in range(min(len(late), 14) + 1) if entry_ok(mm))
    def emit_entry():
        a.label(f"L_pro{var}")
        poll(a, f"L_p0_{var}", 16 if kinds[0] == "x" else 17, V_F, 1, 0)
        for nm in ent[0]: a(read_text(nm))
        poll(a, f"L_p1_{var}", 16 if kinds[1] == "x" else 17, V_F, 1, 0)
        if cfg.diag: stamp(a, 3)
        if cfg.amp:
            a("s_memrealtime s[86:87]")
            a("s_waitcnt lgkmcnt(0)")
        for nm in late: a(read_text(nm))
        a(f"s_waitcnt lgkmcnt({ment})")
        a(f"s_branch L_head{var}")
    if not cfg.entry_last: emit_entry()
    if cfg.al8:
        hb.lines = align8(hb.lines); tb.lines = align8(tb.lines)
    if cfg.align: a(".p2align 6")
    if cfg.pads:
        a.label(f"L_pad{var}")
        a("s_branch L_compute")
        a("s_nop 0")
    a.label(f"L_top{var}")
    a.lines += tb.lines
    a.label(f"L_head{var}")
    a.lines += hb.lines
    a(f"s_cbranch_vccz L_top{var}")
    a(f"v_cmp_gt_u32 vcc, s46, v{V_F}")
    a(f"s_cbranch_vccnz L_slow{var}")
    a.label(f"L_fin{var}")
    a.lines += tb.lines
    if cfg.diag: stamp(a, 4)
    if cfg.cpf: a("s_waitcnt vmcnt(0)")
    ls = last_order(var, cfg)
    lf, ll = uses(ls)
    lplaced = edf([(nm, 0, lf[nm]) for _, nm in head], 0, n, min(cfg.lead, 6))
    print(f"   last body: min lead head {min(lf[nm] - k for k, nm in lplaced.items())} tail {min(n + lf[nm] - k for k, nm in tail)}", file=sys.stderr)
    q = LdsQ(a, cfg.safe)
    for k, nm in tail: q.issue(nm, k - n)
    endk = {}
    for k, (rho, i, t, qq) in enumerate(ls): endk[(rho, t)] = k
    seq = []
    left = {r: sum(r in TYPES[var][t] for t in range(3)) for r in range(7)}
    def cvt2(D, S, tile):
        return [(tile, f"v_cvt_pk_bf16_f32 v{D}, v{S}, v{S+1}"), (tile, f"v_cvt_pk_bf16_f32 v{D+1}, v{S+2}, v{S+3}")]
    for (r, t) in last_tiles(var):
        S = acc(r, t)
        if r not in DIRECT[var]:
            slot = 10 - 5 * (var == 1) if r == SPECIAL[var] else r - OFF[var]
            seq += cvt2(S, S, (r, t))
            off = slot * SROW + (32 if t == 2 else 0)
            seq.append((None, f"ds_write_b64 v{V_GB if t == 0 else V_GA}, {vr(S,2)} offset:{off}"))
            left[r] -= 1
            if left[r] == 0:
                pv = 18 if r == SPECIAL[var] else 19 + r - OFF[var]
                seq.insert(len(seq) - 1, (None, f"v_mov_b32 v{V_PV}, {pv}"))
                seq.append((None, f"ds_write_b32 v{V_CP}, v{V_PV}"))
        elif t == 1:
            seq += cvt2(S, S, (r, t))
            seq.append((None, f"s_add_u32 s48, s47, {r*PROW}"))
        elif t == 2:
            A = acc(r, 1)
            seq += cvt2(A + 2, S, (r, t))
            seq.append(("W2", f"v_permlane16_swap_b32 v{A}, v{A+2}"))
            seq.append((None, f"v_permlane16_swap_b32 v{A+1}, v{A+3}"))
            seq.append((None, f"buffer_store_dwordx4 {vr(A,4)}, v{V_SA}, s[24:27], s48 offen{cfg.stflag}"))
        else:
            seq += cvt2(S, S, (r, t))
            seq.append((None, f"buffer_store_dwordx2 {vr(S,2)}, v{V_SC}, s[24:27], s48 offen{cfg.stflag}"))
    def states(frm):
        c = 0
        for l in a.lines[frm + 1:]:
            l = l.strip()
            if l.endswith(":") or l.startswith(";") or l.startswith("."): continue
            c += int(l.split()[1]) + 1 if l.startswith("s_nop") else 1
        return c
    done_at = {}
    last_valu = [0]
    def missing(dep):
        if dep is None: return 0
        if dep == "W2": return max(0, 2 - states(last_valu[0]))
        if dep not in done_at: return None
        return max(0, 8 - states(done_at[dep]))
    nl = [0]
    def emit_ex(txt, k):
        for key, pat in (("C", "v_cvt"), ("P", "v_permlane"), ("V", "ds_write_b64"), ("F", "ds_write_b32"), ("S", "buffer_store")):
            if key in cfg.drop and txt.startswith(pat): return
        if txt.startswith("ds_"):
            nl[0] += 1; q.issue(("st", nl[0]), k, txt)
        else: a(txt)
        if txt.startswith("v_cvt"): last_valu[0] = len(a.lines) - 1
    for k, m in enumerate(ls):
        rho, i, t, qq = m
        q.need([("w", i, t, 0), ("w", i, t, 1), ("x", qq)], k)
        a(mfma_text(m))
        if endk[(rho, t)] == k: done_at[(rho, t)] = len(a.lines) - 1
        cnt = 0
        if k in lplaced:
            q.issue(lplaced[k], k, read_text(lplaced[k])); cnt += 1
        lim = cfg.exper if k >= n - cfg.rush else 1
        while seq and cnt < lim and k < n - 1:
            miss = missing(seq[0][0])
            if miss == 0:
                emit_ex(seq.pop(0)[1], k); cnt += 1
            else:
                if miss is not None and miss > 1 and cnt == 0 and k >= n - cfg.fill: a("s_nop 1")
                break
    while seq:
        miss = missing(seq[0][0])
        if miss: a(f"s_nop {miss - 1}")
        emit_ex(seq.pop(0)[1], n)
    if cfg.diag:
        stamp(a, 5)
        a("s_waitcnt vmcnt(0)")
        stamp(a, 6)
        a("s_branch L_dump")
    elif cfg.amp:
        if var == 0: a.label("L_ampall")
        a("s_waitcnt vmcnt(0)")
        a("s_memrealtime s[88:89]")
        a("s_waitcnt lgkmcnt(0)")
        if cfg.amp in ("span", "skew"):
            a("v_mov_b32 v4, 0")
            a("buffer_load_dwordx2 v[6:7], v4, s[80:83], 0 offen sc0 sc1")
            a("s_waitcnt vmcnt(0)")
            a("v_readfirstlane_b32 s86, v6")
            a("v_readfirstlane_b32 s58, v7")
            a("s_nop 3")
            a("s_not_b32 s58, s58")
        lo, hi = {"pro": (58, 86), "all": (58, 88), "loop": (86, 88), "none": (58, 58), "span": (58, 88), "skew": (58, 86)}[cfg.amp]
        a(f"s_sub_u32 s90, s{hi}, s{lo}")
        a("s_mul_i32 s90, s90, 10")
        if cfg.fixd: a(f"s_mov_b32 s90, {cfg.fixd}")
        if cfg.onlyx >= 0:
            a("s_and_b32 s91, s2, 7")
            a(f"s_cmp_eq_u32 s91, {cfg.onlyx}")
            a("s_cselect_b32 s90, s90, 0")
        if cfg.wbl2:
            a("buffer_wbl2 sc1")
        a.label(f"L_amp{var}")
        a("s_memrealtime s[76:77]")
        a("s_waitcnt lgkmcnt(0)")
        a("s_sub_u32 s91, s76, s88")
        a("s_cmp_lt_u32 s91, s90")
        a(f"s_cbranch_scc1 L_amp{var}")
        a("s_endpgm")
    else:
        a("s_endpgm")
    poll(a, f"L_slow{var}", V_LF, V_F, "s46", 0)
    a("s_cmp_eq_u32 s46, 15")
    a(f"s_cbranch_scc1 L_fin{var}")
    a(f"s_branch L_top{var}")
    for lab, va, need, back in slow:
        poll(a, lab, va, V_F, need, 0)
        a(f"s_branch {back}")
    if cfg.entry_last: emit_entry()

def stamp(a, idx):
    a(f"s_memtime s[{60+2*idx}:{61+2*idx}]")
    if idx in (3, 5):
        a(f"s_memrealtime s[{86 if idx == 3 else 88}:{87 if idx == 3 else 89}]")
    a("s_waitcnt lgkmcnt(0)")

def dump_stamps(a, cfg):
    a.label("L_dump")
    a("s_memrealtime s[76:77]")
    a("s_getreg_b32 s78, hwreg(HW_REG_HW_ID)")
    a("s_getreg_b32 s79, hwreg(HW_REG_XCC_ID)")
    a("s_waitcnt lgkmcnt(0)")
    a("s_mov_b32 s80, s12")
    a("s_mov_b32 s81, s13")
    a("s_mov_b32 s82, 0x100000")
    a("s_mov_b32 s83, 0x20000")
    a("s_lshl_b32 s84, s2, 3")
    a("s_add_u32 s84, s84, s32")
    a("s_lshl_b32 s84, s84, 6")
    a("v_mov_b32 v4, 0")
    for k, s in enumerate([60, 62, 64, 66, 68, 70, 72, 74, 76, 77, 78, 79, 58, 59, 86, 88]):
        a(f"v_mov_b32 v5, s{s}")
        a(f"buffer_store_dword v5, v4, s[80:83], s84 offen offset:{4*k}")
        a("s_nop 1")
    a("v_and_b32 v1, 63, v0")
    a("v_lshlrev_b32 v4, 2, v1")
    a("v_cmp_gt_u32 vcc, 16, v1")
    a("s_and_saveexec_b64 s[92:93], vcc")
    a("s_lshl_b32 s84, s84, 2")
    a("s_add_u32 s84, s84, 0x40000")
    for k in range(3):
        a(f"buffer_store_dword v{44+k}, v4, s[80:83], s84 offen offset:{64*k}")
    a("s_waitcnt vmcnt(0)")
    a("s_endpgm")

def srd(a, d, p, size):
    a(f"s_mov_b32 s{d}, s{p}")
    a(f"s_and_b32 s{d+1}, s{p+1}, 0xffff")
    a(f"s_mov_b32 s{d+2}, {size}")
    a(f"s_mov_b32 s{d+3}, 0x20000")

def gen(cfg):
    a = Asm()
    hdr = open("standalone__dilated_atrous__vision.s.ref").read().splitlines()
    head = [l for l in hdr[:8] if l.startswith(";") and "@launch" not in l]
    out = "\n".join(head) + "\n"
    out += f"; @launch grid=(256,1,1) block=(512,1,1) lds={LDS_TOTAL}\n"
    out += f""".amdgcn_target "amdgcn-amd-amdhsa--gfx950"
.text
.globl {NAME}_kernel
.p2align 8
.type {NAME}_kernel,@function
{NAME}_kernel:
"""
    def trace(reg, idx):
        if cfg.trace:
            a("s_memtime s[90:91]")
            a(f"s_mov_b32 m0, {idx}")
            a("s_waitcnt lgkmcnt(0)")
            a(f"v_writelane_b32 v{reg}, s90, m0")
    if cfg.diag:
        a("s_memtime s[60:61]")
        a("s_memrealtime s[58:59]")
        a("s_load_dwordx2 s[12:13], s[0:1], 32")
    if cfg.amp: a("s_memrealtime s[58:59]")
    if cfg.amp in ("span", "skew"): a("s_load_dwordx2 s[12:13], s[0:1], 24")
    a("s_load_dwordx4 s[4:7], s[0:1], 0")
    a("s_load_dwordx2 s[8:9], s[0:1], 16")
    if WD: a("s_mov_b32 s94, 0")
    a("s_cmp_ge_u32 s2, 256")
    a("s_cbranch_scc1 L_exit")
    if cfg.lx < 0:
        a("s_and_b32 s28, s2, 1")
        a("s_bfe_u32 s3, s2, 0x20001")
        a("s_lshl_b32 s3, s3, 5")
        a("s_lshr_b32 s33, s2, 3")
        a("s_add_u32 s3, s3, s33")
        a("s_cmp_ge_u32 s3, 126")
        a("s_cbranch_scc1 L_exit")
    else:
        a("s_and_b32 s3, s2, 7")
        a(f"s_sub_u32 s3, s3, {cfg.lx + 1}")
        a("s_and_b32 s3, s3, 7")
        a("s_lshl_b32 s3, s3, 5")
        a("s_lshr_b32 s33, s2, 3")
        a("s_add_u32 s3, s3, s33")
        a("s_cmp_ge_u32 s3, 252")
        a("s_cbranch_scc1 L_exit")
        a("s_cmp_ge_u32 s3, 224")
        a("s_cselect_b32 s33, 14, 112")
        a("s_cselect_b32 s34, 224, 0")
        a("s_cselect_b32 s29, 112, 0")
        a("s_sub_u32 s3, s3, s34")
        a("s_cmp_ge_u32 s3, s33")
        a("s_cselect_b32 s28, 1, 0")
        a("s_cselect_b32 s33, s33, 0")
        a("s_sub_u32 s3, s3, s33")
        a("s_add_u32 s3, s3, s29")
    a("v_lshrrev_b32 v2, 6, v0")
    a("v_and_b32 v1, 63, v0")
    a("v_readfirstlane_b32 s32, v2")
    a("v_lshlrev_b32 v30, 2, v0")
    a(f"v_add_u32 v30, {FLAGS}, v30")
    a("v_mov_b32 v31, 0")
    a("ds_write_b32 v30, v31")
    a("s_mul_i32 s33, s3, 4682")
    a("s_lshr_b32 s33, s33, 16")
    a("s_mul_i32 s34, s33, 14")
    a("s_sub_u32 s34, s3, s34")
    a("s_and_b32 s29, s34, 1")
    a("s_lshr_b32 s30, s34, 1")
    a("s_lshl_b32 s30, s30, 4")
    a("s_mul_i32 s31, s33, 25")
    a("s_lshr_b32 s31, s31, 1")
    a("s_and_b32 s34, s33, 1")
    a("s_lshl_b32 s35, s31, 1")
    a("s_add_u32 s35, s35, s28")
    a(f"s_mul_i32 s35, s35, {ROWB}")
    a("s_lshl_b32 s36, s30, 1")
    a("s_add_u32 s36, s36, s29")
    a("s_mul_i32 s36, s36, 192")
    a("s_lshl_b32 s52, s29, 1")
    a("s_sub_u32 s52, 2, s52")
    if cfg.order == 1: a("s_mov_b32 s3, s34")
    elif cfg.order == 2: a("s_mov_b32 s3, 1")
    elif cfg.order == 3: a("s_mov_b32 s3, 0")
    elif cfg.order == 4:
        a("s_and_b32 s3, s2, 0x30")
        a("s_min_u32 s3, s3, 1")
    a("s_cmp_ge_u32 s32, 4")
    if cfg.cpf:
        a("s_cbranch_scc0 L_ld")
        a("s_bfe_u32 s31, s32, 0x10001")
        a("s_lshl1_add_u32 s31, s34, s31")
        a("s_cmp_eq_u32 s33, 8")
        a("s_cselect_b32 s31, 3, s31")
        a("s_getpc_b64 s[38:39]")
        a.label("L_pc")
        a("s_lshr_b32 s37, s2, 1")
        a("s_and_b32 s37, s37, 0x7c")
        a("s_add_u32 s37, s37, s32")
        a("s_min_u32 s37, s37, (L_end-L_pc)/128")
        a("s_lshl_b32 s37, s37, 7")
        a("s_add_u32 s38, s38, s37")
        a("s_addc_u32 s39, s39, 0")
        a("v_mov_b32 v12, s38")
        a("v_mov_b32 v13, s39")
        a("global_load_dword v14, v[12:13], off")
        if cfg.pads:
            if cfg.pad4:
                a("s_cmp_eq_u32 s32, 4")
                a("s_cbranch_scc1 L_padl")
            a("s_bitcmp1_b32 s32, 0")
            a("s_cbranch_scc0 L_compute")
            a("s_cmp_eq_u32 s31, 0")
            a("s_cbranch_scc1 L_pad0")
            a("s_cmp_eq_u32 s31, 1")
            a("s_cbranch_scc1 L_pad1")
            a("s_cmp_eq_u32 s31, 2")
            a("s_cbranch_scc1 L_pad2")
            a("s_branch L_pad3")
        else:
            a("s_branch L_compute")
        a.label("L_ld")
    else:
        a("s_cbranch_scc1 L_compute")
    if cfg.bench:
        a("v_mov_b32 v31, 100")
        a("ds_write_b32 v30, v31")
        a("s_waitcnt lgkmcnt(0)")
        a("s_barrier")
        a("s_branch L_dump")
    a("s_add_u32 s37, s35, s36")
    a(f"s_sub_u32 s37, s37, {2*PROW + 2*384}")
    a("s_sub_u32 s38, s30, 2")
    a("s_cmp_eq_u32 s29, 0")
    a("s_cselect_b32 s14, 32, -32")
    a("s_cselect_b32 s15, 0, 320")
    a(f"s_mul_i32 s10, s14, {8*PROW//32}")
    a("s_and_b32 s11, s32, 1")
    a("s_lshl_b32 s39, s11, 4")
    a("s_add_u32 s15, s15, s39")
    a("v_lshrrev_b32 v13, 2, v1")
    a("v_add_u32 v13, s15, v13")
    a("v_lshrrev_b32 v14, 3, v1")
    a("v_and_b32 v14, 2, v14")
    a("v_and_b32 v15, 3, v1")
    a("v_xor_b32 v14, v14, v15")
    a("v_lshlrev_b32 v14, 4, v14")
    a("v_add_u32 v14, s37, v14")
    a("v_bfrev_b32 v19, 1")
    a("s_movk_i32 s39, 3277")
    a(f"s_mov_b32 s49, {PROW}")
    a("s_movk_i32 s50, 384")
    a("s_movk_i32 s51, 112")
    for b in range(5):
        a("v_mul_u32_u24 v15, s39, v13")
        a("v_lshrrev_b32 v15, 16, v15")
        a("v_mul_u32_u24 v16, 20, v15")
        a("v_sub_u32 v16, v13, v16")
        a("v_add_u32 v17, s38, v16")
        a("v_cmp_gt_u32 vcc, s51, v17")
        a("v_mad_u32_u24 v18, v15, s49, v14")
        a("v_mad_u32_u24 v18, v16, s50, v18")
        a(f"v_cndmask_b32 v{2+b}, v19, v18, vcc")
        if b < 4: a("v_add_u32 v13, s14, v13")
        a(f"v_add_u32 v{7+b}, s10, v{2+b}")
    a("v_add_u32 v12, s10, v7")
    a("s_lshl_b32 s57, s52, 6")
    a("s_lshl_b32 s56, s15, 6")
    a("s_lshl_b32 s14, s14, 6")
    a("v_lshlrev_b32 v20, 4, v1")
    a("v_cmp_gt_u32 vcc, 32, v1")
    a("v_xor_b32 v22, 32, v20")
    a("s_lshr_b32 s39, s2, 3")
    a("v_cndmask_b32 v21, v22, v20, vcc")
    a("s_and_b32 s39, s39, 30")
    a("s_mul_i32 s38, s11, 5")
    a("s_add_u32 s39, s39, s38")
    a("s_mul_i32 s38, s39, 26")
    a("s_lshr_b32 s38, s38, 8")
    a("s_mul_i32 s38, s38, 10")
    a("s_sub_u32 s39, s39, s38")
    a("s_mul_i32 s40, s39, 3072")
    a("s_lshr_b32 s41, s39, 1")
    a(f"s_mul_i32 s41, s41, {92160 - 6144}")
    a("s_add_u32 s41, s41, s40")
    a("s_movk_i32 s42, 3072")
    a("s_bitcmp1_b32 s39, 0")
    a(f"s_cselect_b32 s42, {92160 - 3072}, s42")
    a("s_mov_b32 s43, 4")
    a("s_cmp_ge_u32 s32, 2")
    a("s_cselect_b32 s95, 1, 0")
    a(f"s_mul_i32 s54, s95, {WBUF}")
    a(f"s_add_u32 s54, s54, {WBASE}")
    a("s_mul_i32 s37, s95, 3")
    a("s_add_u32 s37, s37, s52")
    a("s_mul_i32 s37, s37, 6144")
    a("s_mov_b32 s55, 0")
    a("s_mov_b32 s15, 15")
    a("s_waitcnt lgkmcnt(0)")
    if cfg.diag: stamp(a, 1)
    srd(a, 16, 4, XBYTES)
    srd(a, 20, 6, WBYTES)
    if cfg.order:
        a("s_cmp_eq_u32 s95, s3")
        a("s_cbranch_scc1 L_go")
        a("s_barrier")
        a.label("L_go")
    a("s_cmp_eq_u32 s95, 1")
    a("s_cbranch_scc0 L_w_it")
    a.label("L_x_loop")
    for blk in range(4):
        a(f"s_bitcmp1_b32 s15, {blk}")
        a(f"s_cbranch_scc0 " + (f"L_x{blk}" if blk < 3 else "L_x_next"))
        for k in range(3 * blk, min(3 * blk + 3, 11)):
            a("s_mov_b32 m0, s56")
            a("s_add_u32 s56, s56, s14")
            a(f"buffer_load_dwordx4 v{2+k}, s[16:19], s57 offen{cfg.xflag} lds")
        if blk < 3: a.label(f"L_x{blk}")
    a("s_cmp_lg_u32 s55, 0")
    a("s_cbranch_scc1 L_x_sig")
    if cfg.diag: stamp(a, 2)
    if cfg.order:
        a("s_cmp_eq_u32 s3, 0")
        a("s_cbranch_scc1 L_x_nb")
    a("s_barrier")
    a.label("L_x_nb")
    a("v_mov_b32 v26, 1")
    a("s_waitcnt vmcnt(0)")
    a("ds_write_b32 v30, v26")
    trace(45, 0)
    a.label("L_w_it")
    a("s_add_u32 m0, s54, s40")
    a("s_add_u32 s50, s37, s41")
    for k in range(3):
        a(f"buffer_load_dwordx4 v{20+k}, s[20:23], s50 offen offset:{k*1024}{cfg.wflag} lds")
    a("s_addk_i32 s40, 3072")
    a("s_add_u32 s41, s41, s42")
    a(f"s_xor_b32 s42, s42, {3072 ^ (92160 - 3072)}")
    a(f"s_cmpk_eq_u32 s40, {WBUF}")
    a("s_cselect_b32 s40, 0, s40")
    a("s_cselect_b32 s41, 0, s41")
    a("s_sub_u32 s43, s43, 1")
    a("s_cbranch_scc0 L_w_it")
    a("s_cmp_lg_u32 s55, 0")
    a("s_cbranch_scc1 L_w_adv")
    a("s_cmp_eq_u32 s95, 1")
    a("s_cbranch_scc1 L_x_w1")
    if cfg.order:
        a("s_cmp_eq_u32 s3, 1")
        a("s_cbranch_scc1 L_w_nb1")
    a("s_barrier")
    a.label("L_w_nb1")
    a("s_mov_b32 s55, s32")
    a("s_mov_b32 s53, s32")
    a(f"s_mul_i32 s50, s32, {WBUF}")
    a("s_add_u32 s54, s54, s50")
    a("v_mov_b32 v31, s32")
    a.label("L_w_adv")
    trace(44, "s55")
    a("v_add_u32 v31, 2, v31")
    a("s_waitcnt vmcnt(0)")
    a("ds_write_b32 v30, v31")
    trace(45, "s55")
    a(f"s_sub_u32 s54, s54, {WBUF}")
    a(f"s_cmp_lt_u32 s54, {WBASE}")
    a(f"s_cselect_b32 s50, {3*WBUF}, 0")
    a("s_add_u32 s54, s54, s50")
    a("s_add_u32 s53, s53, 2")
    a("s_cmp_ge_u32 s53, 5")
    a("s_cselect_b32 s50, 5, 0")
    a("s_sub_u32 s53, s53, s50")
    a("s_lshr_b32 s50, s50, 2")
    a("s_add_u32 s52, s52, s50")
    a("s_cmp_eq_u32 s52, 3")
    a("s_cselect_b32 s52, 0, s52")
    a("s_mul_i32 s37, s53, 3")
    a("s_add_u32 s37, s37, s52")
    a("s_mul_i32 s37, s37, 6144")
    a("s_mov_b32 s43, 9")
    a("s_mov_b32 s51, s55")
    a("s_add_u32 s55, s55, 2")
    a("s_cmp_eq_u32 s51, 0")
    a("s_cbranch_scc1 L_w_it")
    a("s_cmp_ge_u32 s55, 15")
    a("s_cbranch_scc1 L_store")
    a("v_and_b32 v23, 3, v1")
    a("v_lshlrev_b32 v23, 8, v23")
    a(f"v_add_u32 v23, {FLAGS + 1024}, v23")
    poll(a, "L_w_poll", 23, 24, "s51", cfg.sleep)
    trace(46, "s55")
    a("s_branch L_w_it")
    if cfg.pad4:
        a.label("L_padl")
        a("s_branch L_compute")
    a.label("L_x_w1")
    C = sum(((thr << 4) | m) << (8 * k) for k, (thr, m) in enumerate(cfg.xb))
    assert len(cfg.xb) <= 8
    a(f"s_mov_b32 s92, {C & 0xffffffff:#x}")
    a(f"s_mov_b32 s93, {C >> 32:#x}")
    a("s_mov_b32 s55, 1")
    if cfg.trace: a("s_mov_b32 s51, 1")
    a.label("L_x_sig")
    a("v_add_u32 v31, 5, v31")
    a("s_waitcnt vmcnt(0)")
    a("ds_write_b32 v30, v31")
    trace(45, "s51")
    a("s_mul_i32 s50, s14, -11")
    a("s_add_u32 s56, s56, s50")
    a(f"s_add_u32 s56, s56, {XCH}")
    a("s_add_u32 s57, s57, 64")
    a("s_cmp_eq_u32 s57, 192")
    a("s_cselect_b32 s57, 0, s57")
    a.label("L_x_next")
    a("s_and_b32 s15, s92, 15")
    a("s_cbranch_scc0 L_store")
    a("s_bfe_u32 s51, s92, 0x40004")
    a("s_lshr_b64 s[92:93], s[92:93], 8")
    a("v_and_b32 v22, 1, v1")
    a(f"v_lshlrev_b32 v22, 8, v22")
    a(f"v_add_u32 v22, {FLAGS}, v22")
    poll(a, "L_x_poll", 22, 23, "s51", cfg.sleep)
    trace(44, "s51")
    a("s_branch L_x_loop")
    a.label("L_store")
    srd(a, 24, 8, XBYTES)
    a("s_movk_i32 s39, 171")
    a("s_movk_i32 s49, 208")
    a("s_movk_i32 s50, 384")
    for k in range(3):
        a(f"v_add_u32 v10, {64*k}, v1")
        a("v_mul_u32_u24 v11, s39, v10")
        a("v_lshrrev_b32 v11, 11, v11")
        a("v_mul_u32_u24 v12, 12, v11")
        a("v_sub_u32 v12, v10, v12")
        a("v_lshlrev_b32 v12, 4, v12")
        a(f"v_mad_u32_u24 v{2+k}, v11, s49, v12")
        a(f"v_mad_u32_u24 v{5+k}, v11, s50, v12")
    a("v_and_b32 v10, 1, v1")
    a("v_lshlrev_b32 v10, 8, v10")
    a("s_lshl_b32 s39, s95, 9")
    a(f"s_add_u32 s39, s39, {FLAGS + 1024}")
    a("v_add_u32 v10, s39, v10")
    a("s_cmp_eq_u32 s33, 8")
    a("s_cselect_b32 s39, 6, 7")
    a("s_cmp_eq_u32 s95, 1")
    a("s_cselect_b32 s39, s39, s34")
    a("s_add_u32 s45, s35, s36")
    a(f"s_mul_i32 s46, s39, {PROW}")
    a("s_add_u32 s46, s46, s45")
    def spec_try(label, nrd):
        a.label(label)
        if WD:
            a("s_add_u32 s94, s94, 1")
            a("s_bitcmp1_b32 s94, 18")
            a("s_cbranch_scc1 L_exit")
        a("ds_read_b32 v11, v10")
        for k in range(nrd): a(f"ds_read_b128 {vr(16+4*k,4)}, v{12+k}")
        a(f"s_waitcnt lgkmcnt({nrd})")
        a("v_cmp_gt_u32 vcc, s51, v11")
        a(f"s_cbranch_vccnz {label}")
    poll(a, "L_st_pre", 10, 11, 14, cfg.sleep)
    if cfg.stprio: a(f"s_setprio {cfg.stprio}")
    a("s_mul_i32 s48, s95, 5")
    a("s_add_u32 s48, s48, s11")
    a(f"s_mul_i32 s48, s48, {SROW}")
    a(f"s_mul_i32 s47, s11, {PROW}")
    a("s_add_u32 s47, s47, s46")
    a("s_cmp_eq_u32 s39, 7")
    a("s_cselect_b32 s44, s34, 1")
    a("s_add_u32 s44, s44, 23")
    a("s_cmp_lg_u32 s32, 1")
    a("s_cbranch_scc1 L_st_go")
    a("s_cmp_eq_u32 s33, 8")
    a("s_cbranch_scc1 L_st_go")
    a("s_cmp_eq_u32 s34, 1")
    a("s_cbranch_scc1 L_st_mid")
    a("v_and_b32 v28, 3, v1")
    a("v_lshlrev_b32 v28, 8, v28")
    a(f"v_add_u32 v28, {FLAGS + 1024}, v28")
    a(f"s_add_u32 s45, s45, {6*PROW}")
    poll(a, "L_st_sp", 28, 11, 18, cfg.sleep2)
    for k in range(3): a(f"ds_read_b128 {vr(16+4*k,4)}, v{2+k} offset:{10*SROW}")
    for k in range(3):
        a(f"s_waitcnt lgkmcnt({2-k})")
        a(f"buffer_store_dwordx4 {vr(16+4*k,4)}, v{5+k}, s[24:27], s45 offen{cfg.stflag}")
    a("s_branch L_st_go")
    a.label("L_st_mid")
    a("v_lshrrev_b32 v11, 2, v1")
    a("v_and_b32 v12, 3, v1")
    a("v_lshlrev_b32 v12, 4, v12")
    a("v_mad_u32_u24 v28, v11, s50, v12")
    a("v_mad_u32_u24 v12, v11, s49, v12")
    poll(a, "L_st_sm", 10, 11, 18, cfg.sleep2)
    a(f"ds_read_b128 {vr(16,4)}, v12 offset:{10*SROW + 64}")
    a("s_waitcnt lgkmcnt(0)")
    a(f"buffer_store_dwordx4 {vr(16,4)}, v28, s[24:27], s45 offen offset:64{cfg.stflag}")
    a.label("L_st_go")
    for k in range(3): a(f"v_add_u32 v{12+k}, s48, v{2+k}")
    a("s_add_u32 s51, s11, 19")
    poll(a, "L_st_p1", 10, 11, 18, cfg.sleep2)
    a.label("L_st_try")
    if WD:
        a("s_add_u32 s94, s94, 1")
        a("s_bitcmp1_b32 s94, 18")
        a("s_cbranch_scc1 L_exit")
    a("ds_read_b32 v11, v10")
    for k in range(3): a(f"ds_read_b128 {vr(16+4*k,4)}, v{12+k}")
    a("s_waitcnt lgkmcnt(3)")
    a("v_cmp_gt_u32 vcc, s51, v11")
    a("s_cbranch_vccnz L_st_try")
    for k in range(3):
        a(f"s_waitcnt lgkmcnt({2-k})")
        a(f"buffer_store_dwordx4 {vr(16+4*k,4)}, v{5+k}, s[24:27], s47 offen{cfg.stflag}")
        a(f"v_add_u32 v{12+k}, {2*SROW}, v{12+k}")
    a(f"s_add_u32 s47, s47, {2*PROW}")
    a("s_add_u32 s51, s51, 2")
    a("s_cmp_lt_u32 s51, s44")
    a("s_cbranch_scc1 L_st_try")
    a.label("L_st_end")
    if cfg.amp == "all": a("s_branch L_ampall")
    if cfg.diag:
        stamp(a, 5)
        a("s_waitcnt vmcnt(0)")
        stamp(a, 6)
        dump_stamps(a, cfg)
    a.label("L_exit")
    a("s_endpgm")
    a.label("L_compute")
    if cfg.cbar == 0:
        a("s_waitcnt lgkmcnt(0)")
        a("s_barrier")
    a("s_sub_u32 s37, s32, 4")
    a("s_and_b32 s38, s37, 1")
    a("s_lshr_b32 s37, s37, 1")
    a("s_add_u32 s39, s34, 6")
    a("s_mul_i32 s49, s37, s39")
    a(f"v_mov_b32 v{V_CP}, v30")
    a(f"v_mov_b32 v{V_PV}, 0")
    a("v_and_b32 v32, 15, v1")
    a("v_lshrrev_b32 v33, 4, v1")
    a("v_and_b32 v34, 1, v33")
    a("v_lshrrev_b32 v35, 1, v33")
    a("v_bfe_u32 v36, v1, 2, 2")
    a("v_and_b32 v37, 3, v1")
    a(f"v_lshlrev_b32 v{V_LF}, 8, v37")
    a(f"v_add_u32 v{V_LF}, {FLAGS}, v{V_LF}")
    a(f"v_or_b32 v16, 512, v{V_LF}")
    a(f"v_xor_b32 v17, 512, v16")
    a("s_lshl_b32 s39, s38, 7")
    a("v_lshlrev_b32 v40, 5, v34")
    a("v_lshl_add_u32 v40, v35, 4, v40")
    a("v_add_u32 v40, s39, v40")
    a("s_lshl_b32 s39, s38, 5")
    a("s_add_u32 s39, s39, 64")
    a("v_lshlrev_b32 v41, 3, v33")
    a("v_add_u32 v41, s39, v41")
    a("v_mul_u32_u24 v38, 384, v32")
    a("v_add_u32 v38, s36, v38")
    a(f"v_add_u32 v{V_SA}, v38, v40")
    a(f"v_add_u32 v{V_SC}, v38, v41")
    a("v_mul_u32_u24 v38, 208, v32")
    a(f"s_mul_i32 s39, s37, {5*SROW}")
    a("v_add_u32 v38, s39, v38")
    a("s_lshl_b32 s39, s38, 7")
    a(f"v_lshl_add_u32 v{V_GA}, v33, 3, v38")
    a(f"v_add_u32 v{V_GA}, s39, v{V_GA}")
    a(f"v_add_u32 v{V_GB}, v38, v41")
    a(f"s_mul_i32 s47, s49, {PROW}")
    a("s_add_u32 s47, s47, s35")
    a("v_lshl_add_u32 v38, v33, 3, v36")
    a("v_mul_u32_u24 v38, 192, v38")
    a("v_lshl_add_u32 v38, v37, 3, v38")
    a(f"v_add_u32 v38, {WBASE}, v38")
    a("s_add_u32 s39, s38, 2")
    a("v_xor_b32 v39, s39, v34")
    a(f"v_lshl_add_u32 v{V_WA[0]}, v39, 5, v38")
    a("s_lshl_b32 s39, s38, 2")
    a("v_xor_b32 v39, s39, v34")
    a(f"v_lshl_add_u32 v{V_WA[1]}, v39, 5, v38")
    a("v_xor_b32 v39, 1, v39")
    a(f"v_lshl_add_u32 v{V_WA[2]}, v39, 5, v38")
    a("v_lshlrev_b32 v38, 6, v32")
    a("v_lshl_add_u32 v38, v33, 4, v38")
    a(f"s_mul_i32 s39, s49, {XROW}")
    a(f"v_add_u32 v{V_XL}, s39, v38")
    a(f"v_lshrrev_b32 v{V_T}, 3, v{V_XL}")
    a(f"v_and_b32 v{V_T}, 32, v{V_T}")
    a(f"v_xor_b32 v{V_XA[0]}, v{V_XL}, v{V_T}")
    a(f"v_xor_b32 v{V_XA[1]}, 32, v{V_XA[0]}")
    if cfg.mov64:
        for k in range(0, 84, 2): a(f"v_mov_b64 {vr(V_ACC+k,2)}, 0")
    else:
        for k in range(84): a(f"v_mov_b32 v{V_ACC+k}, 0")
    a(f"s_mov_b32 s40, {(1 << 6) | (1 << 11)}")
    a(f"s_mov_b32 s41, {sum(1 << (h + 1) for h in (3, 6, 9, 12))}")
    a(f"s_mov_b32 s44, {(-2*WBUF) & 0xffffffff}")
    a(f"s_mov_b32 s45, {WBUF}")
    a("s_mov_b32 s46, 2")
    if cfg.cbar == 1:
        a("s_waitcnt lgkmcnt(0)")
        a("s_barrier")
    if cfg.diag: stamp(a, 1)
    srd(a, 24, 8, XBYTES)
    if cfg.prio: a(f"s_setprio {cfg.prio}")
    if cfg.amp in ("span", "skew"): srd(a, 80, 12, 256)
    for var in (1, 2, 3):
        a(f"s_cmp_eq_u32 s31, {var}")
        a(f"s_cbranch_scc1 L_pro{var}")
    if cfg.pads: a("s_branch L_pro0")
    for var in range(4):
        emit_variant(a, var, cfg)
    a.label("L_end")
    a("s_endpgm")
    out += a.text()
    nv = (V_END + 7) // 8 * 8
    out += f""".section .rodata,"a"
.p2align 6
.amdhsa_kernel {NAME}_kernel
  .amdhsa_next_free_vgpr {nv}
  .amdhsa_next_free_sgpr 96
  .amdhsa_accum_offset {nv}
  .amdhsa_group_segment_fixed_size 0
  .amdhsa_kernarg_size 40
  .amdhsa_user_sgpr_count 2
  .amdhsa_user_sgpr_kernarg_segment_ptr 1
  .amdhsa_system_sgpr_workgroup_id_x 1
.end_amdhsa_kernel
"""
    return out

if __name__ == "__main__":
    p = argparse.ArgumentParser()
    p.add_argument("-o", default="standalone__dilated_atrous__vision.s")
    p.add_argument("--diag", action="store_true")
    p.add_argument("--trace", action="store_true")
    p.add_argument("--bar_pos", type=int, default=58)
    p.add_argument("--xbar", type=int, default=40)
    p.add_argument("--lead", type=int, default=5)
    p.add_argument("--safe", type=int, default=8)
    p.add_argument("--prio", type=int, default=1)
    p.add_argument("--align", type=int, default=1)
    p.add_argument("--snake", type=int, default=1)
    p.add_argument("--exper", type=int, default=2)
    p.add_argument("--order", type=int, default=1)
    p.add_argument("--wpf", type=int, default=0)
    p.add_argument("--epf", type=int, default=0)
    p.add_argument("--cpf", type=int, default=1)
    p.add_argument("--sleep", type=int, default=2)
    p.add_argument("--sleep2", type=int, default=1)
    p.add_argument("--stflag", default="nt")
    p.add_argument("--wd", type=int, default=1)
    p.add_argument("--amp", default="")
    p.add_argument("--onlyx", type=int, default=-1)
    p.add_argument("--entry_last", type=int, default=0)
    p.add_argument("--pad4", type=int, default=0)
    p.add_argument("--lx", type=int, default=-1)
    p.add_argument("--al8", type=int, default=0)
    p.add_argument("--shift4", type=int, default=0)
    p.add_argument("--rush", type=int, default=30)
    p.add_argument("--fill", type=int, default=0)
    p.add_argument("--pads", type=int, default=1)
    p.add_argument("--nstage", type=int, default=5)
    p.add_argument("--spec", type=int, default=1)
    p.add_argument("--stprio", type=int, default=0)
    p.add_argument("--mov64", type=int, default=1)
    p.add_argument("--xflag", default="")
    p.add_argument("--wflag", default="")
    p.add_argument("--fixd", type=int, default=0)
    p.add_argument("--wbl2", type=int, default=0)
    p.add_argument("--bench", action="store_true")
    p.add_argument("--drop", default="")
    p.add_argument("--cmpd", type=int, default=4)
    p.add_argument("--updstep", type=int, default=1)
    p.add_argument("--xthr", type=int, default=2)
    p.add_argument("--cbar", type=int, default=0)
    p.add_argument("--w2wait", type=int, default=1)
    p.add_argument("--xb", default="3:1,4:2,5:4,6:8,8:3,9:12")
    cfg = p.parse_args()
    cfg.xb = [tuple(int(v) for v in e.split(":")) for e in cfg.xb.split(",")]
    WD = cfg.wd
    if cfg.stflag: cfg.stflag = " " + cfg.stflag
    if cfg.xflag: cfg.xflag = " " + cfg.xflag
    if cfg.wflag: cfg.wflag = " " + cfg.wflag
    open(cfg.o, "w").write(gen(cfg))
```

```python
import sys, argparse

NAME = "standalone__dilated_atrous__vision"
XBYTES = 224 * 224 * 96 * 2
WBYTES = 25 * 96 * 96 * 2
ROWB = 224 * 192
PROW = 2 * ROWB
XCH = 352 * 64
XROW = 20 * 64
WBASE = 3 * XCH
WBUF = 5 * 6144
FLAGS = WBASE + 3 * WBUF
LDS_TOTAL = FLAGS + 2048
SROW = 16 * 208
assert 13 * SROW <= 2 * XCH

class Asm:
    def __init__(self):
        self.lines = []
    def __call__(self, s):
        self.lines.append("    " + s)
    def label(self, l):
        self.lines.append(l + ":")
    def comment(self, s):
        self.lines.append("    ; " + s)
    def text(self):
        return "\n".join(self.lines) + "\n"

def vr(b, n):
    return f"v[{b}:{b+n-1}]"

V_XL = 1
V_XA = (2, 3)
V_WA = (4, 5, 6)
V_SA, V_SC = 7, 8
V_GA, V_GB = 9, 10
V_T = 11
V_XB = (22, 23)
V_CP = 25
V_LF = 26
V_PV = 27
V_F = 28
V_X = 32
V_W = 76
V_ACC = 136
V_END = V_ACC + 84

TYPES = {
    0: (range(0, 6), range(0, 7), range(0, 6)),
    1: (range(0, 6), range(1, 7), range(0, 7)),
    2: (range(0, 7), range(1, 7), range(1, 7)),
    3: (range(0, 6), range(0, 6), range(0, 6)),
}
OFF = {0: 0, 1: 1, 2: 1, 3: 0}
SPECIAL = {0: 6, 1: 0, 2: 0, 3: None}
LASTHEAD = {
    0: [(0, 0), (0, 1), (6, 1), (0, 2)],
    1: [(0, 0), (1, 0), (1, 1), (0, 2), (1, 2)],
    2: [(0, 0), (1, 0), (1, 1), (2, 0), (1, 2), (2, 1), (2, 2)],
    3: [(0, 0), (0, 1), (1, 0), (0, 2), (1, 1), (1, 2)],
}

def acc(rho, t): return V_ACC + 4 * (rho * 3 + t)
def wreg(i, t): return V_W + 4 * (i * 3 + t)
def xreg(q): return V_X + 4 * q

def chain(rho, t, rev):
    r = list(range(5))
    if rev: r.reverse()
    return [(rho, i, t, rho + i) for i in r]

def steady_order(var, cfg, par=(1, 1, 1)):
    ms = []
    for t in range(3):
        for j, rho in enumerate(TYPES[var][t]): ms += chain(rho, t, cfg.snake and j % 2 == par[t])
    return ms

DIRECT = {0: (5,), 1: (6, 5), 2: (6,), 3: (5,)}

def last_tiles(var):
    order = list(LASTHEAD[var])
    rows = [r for r in range(7) if r not in DIRECT[var]] + list(DIRECT[var])
    for r in rows:
        for t in ((0, 1, 2) if r not in DIRECT[var] else (1, 2, 0)):
            if r in TYPES[var][t] and (r, t) not in order: order.append((r, t))
    return order

def last_order(var, cfg, par=1):
    ms = []
    for j, (r, t) in enumerate(last_tiles(var)): ms += chain(r, t, cfg.snake and j % 2 == par and j >= 4)
    return ms

def uses(ms):
    first, last = {}, {}
    for k, (rho, i, t, q) in enumerate(ms):
        for key in (("w", i, t, 0), ("w", i, t, 1), ("x", q)):
            first.setdefault(key, k); last[key] = k
    return first, last

def read_text(nm):
    if nm[0] == "x":
        q = nm[1]
        return f"ds_read_b128 {vr(xreg(q),4)}, v{V_XA[q & 1]} offset:{q*XROW}"
    _, i, t, h = nm
    return f"ds_read_b64_tr_b16 {vr(wreg(i,t)+2*h,2)}, v{V_WA[t]} offset:{i*6144 + h*768}"

def edf(reads, lo, hi, lead, busy=()):
    placed, pending = {}, list(reads)
    for k in range(lo, hi):
        avail = [r for r in pending if r[1] <= k]
        if not avail: continue
        r = min(avail, key=lambda r: r[2])
        placed[k] = r[0]
        pending.remove(r)
        assert r[2] - k >= lead, (r, k)
    assert not pending, pending
    return placed

def mfma_text(m):
    rho, i, t, q = m
    return f"v_mfma_f32_16x16x32_bf16 {vr(acc(rho,t),4)}, {vr(wreg(i,t),4)}, {vr(xreg(q),4)}, {vr(acc(rho,t),4)}"

class LdsQ:
    def __init__(self, a, safe):
        self.a, self.safe = a, safe
        self.ops = []
        self.done = 0
        self.waits = []
    def issue(self, name, time, text=None):
        self.ops.append((name, time))
        if text: self.a(text)
    def need(self, names, time):
        idx = max(max(j for j, (nm, _) in enumerate(self.ops) if nm == n) for n in names) + 1
        if idx <= self.done: return
        for j, (nm, tm) in enumerate(self.ops):
            if tm <= time - 1 - self.safe: idx = max(idx, j + 1)
        cnt = len(self.ops) - idx
        if cnt > 14:
            idx += cnt - 14; cnt = 14
        self.a(f"s_waitcnt lgkmcnt({cnt})")
        self.waits.append((time, cnt, len(self.ops)))
        self.done = idx

WD = 1
def poll(a, label, vaddr, vtmp, sneed, sleep, wd=True):
    a.label(label)
    if WD and wd:
        a("s_add_u32 s94, s94, 1")
        a("s_bitcmp1_b32 s94, 18")
        a("s_cbranch_scc1 L_exit")
    a(f"ds_read_b32 v{vtmp}, v{vaddr}")
    a("s_waitcnt lgkmcnt(0)")
    a(f"v_cmp_gt_u32 vcc, {sneed}, v{vtmp}")
    if sleep:
        a(f"s_cbranch_vccz {label}_ok")
        a(f"s_sleep {sleep}")
        a(f"s_branch {label}")
        a.label(label + "_ok")
    else:
        a(f"s_cbranch_vccnz {label}")

def isize(l):
    l = l.strip()
    op = l.split()[0]
    if op.startswith(("v_mfma", "ds_", "buffer_", "v_cvt_pk")) or op.endswith("_e64"): return 8
    import re
    for tok in re.split(r"[ ,]+", l)[1:]:
        if re.fullmatch(r"-?\d+|0x[0-9a-f]+", tok) and not op.startswith(("s_waitcnt", "s_nop")):
            v = int(tok, 0)
            if not (-16 <= v <= 64): return 8
    return 4

def align8(lines):
    out = []
    for l in lines:
        op = l.strip().split()[0]
        if op.startswith("v_") and isize(l) == 4:
            l = l.replace(op, op + "_e64", 1)
        out.append(l)
    res, off = [], 0
    for l in out:
        sz = isize(l)
        if sz == 8 and off % 8 == 4:
            res.append("    s_nop 0"); off += 4
        res.append(l); off += sz
    if off % 8 == 4: res.append("    s_nop 0")
    return res

def emit_variant(a, var, cfg):
    bar = cfg.bar_pos if var != 3 else cfg.bar_pos - 3
    best = None
    for par in [(p0, 1, p2) for p0 in (1, 0) for p2 in (1, 0)]:
        ms = steady_order(var, cfg, par)
        n = len(ms)
        first, last = uses(ms)
        reads = [(key, max(last[key], bar, n if (key[0] == "w" and key[2] == 2) else 0), n + first[key]) for key in first]
        placed = edf(reads, bar, n + bar - 16, 0)
        ld = min(n + first[nm] - k for k, nm in placed.items())
        if best is None or ld > best[0]: best = (ld, par, ms, first, last, placed)
    ld, par, ms, first, last, placed = best
    print(f"variant {var}: snake parity {par}, min lead {ld}", file=sys.stderr)
    tail = [(k, placed[k]) for k in sorted(placed) if k < n]
    head = [(k - n, placed[k]) for k in sorted(placed) if k >= n]
    slow = []
    hb, tb = Asm(), Asm()
    q = LdsQ(hb, cfg.safe)
    for k, nm in tail: q.issue(nm, k - n)
    headd, taild = dict(head), dict(tail)
    extra = {}
    def put(k, s): extra.setdefault(k, []).append(s)
    krel = max(k for k, nm in head) + 1
    put(krel - 1, f"v_add_u32 v{V_PV}, 1, v{V_PV}")
    upd = ["s_bitcmp1_b32 s40, s46", f"s_cselect_b32 s42, {XCH - 4*64}, 64",
           "s_bitcmp1_b32 s41, s46", "s_cselect_b32 s43, s44, s45",
           "s_cmp_eq_u32 s46, 14", "s_cselect_b32 s49, 1000, s46",
           f"v_add_u32 v{V_XL}, s42, v{V_XL}", f"v_lshrrev_b32 v{V_T}, 3, v{V_XL}", f"v_and_b32 v{V_T}, 32, v{V_T}",
           f"v_xor_b32 v{V_XA[0]}, v{V_XL}, v{V_T}", f"v_xor_b32 v{V_XA[1]}, 32, v{V_XA[0]}"]
    upd += [f"v_add_u32 v{V_WA[t]}, s43, v{V_WA[t]}" for t in range(3)]
    b0 = krel + 2
    for j, u in enumerate(upd): put(b0 + cfg.updstep * j, u)
    kflag = bar - cfg.cmpd - 9
    assert b0 + cfg.updstep * len(upd) <= kflag
    cur = hb
    for k, m in enumerate(ms):
        rho, i, t, qq = m
        q.need([("w", i, t, 0), ("w", i, t, 1), ("x", qq)], k)
        cur(mfma_text(m))
        D = cfg.drop
        for s in extra.get(k, []): cur(s)
        if k == krel: q.issue(("rel",), k, f"ds_write_b32 v{V_CP}, v{V_PV}")
        if k == kflag: q.issue(("flag",), k, f"ds_read_b32 v{V_F}, v{V_LF}")
        if k == bar - cfg.cmpd - 1: q.need([("flag",)], k + 1)
        if k == bar - cfg.cmpd: cur(f"v_cmp_gt_u32 vcc, s49, v{V_F}")
        if k == bar:
            cur = tb; q.a = tb
        drop = lambda nm: ("l" in D and k in taild) or ("w" in D and nm[0] == "w" and k in taild) or ("x" in D and nm[0] == "x")
        if k in headd: q.issue(headd[k], k, read_text(headd[k]) if not drop(headd[k]) else None)
        if k in taild: q.issue(("next",) + taild[k], k, read_text(taild[k]) if not drop(taild[k]) else None)
        if k == n - 9: cur("s_add_u32 s46, s46, 1")
    kinds = ("w", "x") if ((var < 2 and cfg.order == 1) or cfg.order == 3) else ("x", "w")
    ent = [[nm for _, nm in sorted(tail, key=lambda e: first[e[1]]) if nm[0] == kd] for kd in kinds]
    late = ent[1]
    def entry_ok(m):
        done = len(late) - m
        wi = 0
        for k, (rho, i, t, qq) in enumerate(ms):
            while wi < len(q.waits) and q.waits[wi][0] <= k:
                _, cnt, nops = q.waits[wi]; wi += 1
                body_ops = nops - len(tail)
                done = max(done, len(late) - max(0, cnt - body_ops))
            for nm in (("w", i, t, 0), ("w", i, t, 1), ("x", qq)):
                if nm in late and late.index(nm) >= done: return False
        return True
    ment = max(mm for mm in range(min(len(late), 14) + 1) if entry_ok(mm))
    def emit_entry():
        a.label(f"L_pro{var}")
        poll(a, f"L_p0_{var}", 16 if kinds[0] == "x" else 17, V_F, 1, 0)
        for nm in ent[0]: a(read_text(nm))
        poll(a, f"L_p1_{var}", 16 if kinds[1] == "x" else 17, V_F, 1, 0)
        if cfg.diag: stamp(a, 3)
        if cfg.amp:
            a("s_memrealtime s[86:87]")
            a("s_waitcnt lgkmcnt(0)")
        for nm in late: a(read_text(nm))
        a(f"s_waitcnt lgkmcnt({ment})")
        a(f"s_branch L_head{var}")
    if not cfg.entry_last: emit_entry()
    if cfg.al8:
        hb.lines = align8(hb.lines); tb.lines = align8(tb.lines)
    if cfg.align: a(".p2align 6")
    if cfg.pads:
        a.label(f"L_pad{var}")
        a("s_branch L_compute")
        a("s_nop 0")
    a.label(f"L_top{var}")
    a.lines += tb.lines
    a.label(f"L_head{var}")
    a.lines += hb.lines
    a(f"s_cbranch_vccz L_top{var}")
    a("s_min_u32 s49, s49, 15")
    a(f"v_cmp_gt_u32 vcc, s49, v{V_F}")
    a(f"s_cbranch_vccnz L_slow{var}")
    a.label(f"L_fin{var}")
    a.lines += tb.lines
    if cfg.diag: stamp(a, 4)
    if cfg.cpf: a("s_waitcnt vmcnt(0)")
    rows = TYPES[var]
    WSET = {(13, 0): 0, (14, 0): 2, (13, 1): 1, (13, 2): 0, (14, 1): 2, (14, 2): 1}
    lastrow = OFF[var] + 5
    pair_order = []
    if SPECIAL[var] is not None:
        pair_order += [(SPECIAL[var], t) for t in (1, 2) if SPECIAL[var] in rows[t]]
    pair_order += [(r, t) for r in range(OFF[var], lastrow + 1) for t in (1, 2)]
    if var == 0: pair_order = pair_order[1:3] + pair_order[:1] + pair_order[3:]
    phases = [(13, 0, [(r, 0) for r in rows[0]]), (14, 0, [(r, 0) for r in rows[0]]),
              (13, 1, [(r, 1) for r in rows[1]] + [(r, 2) for r in rows[2]]), (14, 1, pair_order)]
    def build(pars):
        out = []
        for (g, occ, tiles), pr in zip(phases, pars):
            for j, (r, t) in enumerate(tiles):
                for (rho, i, tt, qq) in chain(r, t, cfg.snake and j % 2 == pr):
                    out.append((rho, i, tt, qq, g, occ))
        return out
    def names(m):
        rho, i, t, qq, g, occ = m
        return [("w", g, i, t, 0), ("w", g, i, t, 1), ("x", g, qq, occ)]
    def reg_of(nm):
        return xreg(nm[2]) if nm[0] == "x" else wreg(nm[2], WSET[(nm[1], nm[3])]) + 2 * nm[4]
    def rd_text(nm):
        if nm[0] == "x":
            _, g, qq, occ = nm
            return f"ds_read_b128 {vr(xreg(qq),4)}, v{(V_XA if g == 13 else V_XB)[qq & 1]} offset:{qq*XROW}"
        _, g, i, t, h = nm
        return f"ds_read_b64_tr_b16 {vr(reg_of(nm),2)}, v{V_WA[t]} offset:{(g-13)*WBUF + i*6144 + h*768}"
    conv = lambda nm: ("x", 13, nm[1], 0) if nm[0] == "x" else ("w", 13) + nm[1:]
    pre = [(k - n, conv(nm)) for k, nm in tail]
    prenames = set(nm for _, nm in pre)
    best = None
    import itertools
    for pars in itertools.product((1, 0), repeat=4):
        ls = build(pars)
        lf, ll = {}, {}
        for k, m in enumerate(ls):
            for nm in names(m):
                lf.setdefault(nm, k); ll[nm] = k
        rds = []
        for nm in lf:
            if nm in prenames: continue
            prev = [ll[o] for o in lf if reg_of(o) == reg_of(nm) and lf[o] < lf[nm]]
            e = max(prev) if prev else 0
            if nm[0] == "x" and nm[1] == 14: e = max(e, 6)
            rds.append((nm, e, lf[nm]))
        try: lp = edf(rds, 0, len(ls), 0, busy=set(range(0, 0)))
        except AssertionError: continue
        ld2 = min([lf[nm] - k for k, nm in lp.items()] + [lf[nm] - k for k, nm in pre if nm in lf])
        if best is None or ld2 > best[0]: best = (ld2, pars, ls, lf, lp)
    ld2, pars, ls, lf, lplaced = best
    print(f"   final segment: parity {pars} min lead {ld2}", file=sys.stderr)
    n2 = len(ls)
    q = LdsQ(a, cfg.safe)
    for k, nm in pre: q.issue(nm, k)
    endk = {}
    for k, m in enumerate(ls): endk[(m[0], m[2])] = k
    def cvt2(D, S, tile):
        return [(tile, f"v_cvt_pk_bf16_f32 v{D}, v{S}, v{S+1}"), (tile, f"v_cvt_pk_bf16_f32 v{D+1}, v{S+2}, v{S+3}")]
    seq = [(None, f"v_add_u32 v{V_XL}, 64, v{V_XL}"), (None, f"v_lshrrev_b32 v{V_T}, 3, v{V_XL}"), (None, f"v_and_b32 v{V_T}, 32, v{V_T}"),
           (None, f"v_xor_b32 v{V_XB[0]}, v{V_XL}, v{V_T}"), (None, f"v_xor_b32 v{V_XB[1]}, 32, v{V_XB[0]}")]
    for r in rows[0]:
        S = acc(r, 0)
        seq += cvt2(S, S, (r, 0))
        seq += [(None, f"v_mov_b32 v{V_PV}, {16 + r}"), (None, f"ds_write_b64 v{V_GB}, {vr(S,2)} offset:{r*SROW}"),
                (None, f"ds_write_b32 v{V_CP}, v{V_PV}")]
    for (r, t) in pair_order:
        S = acc(r, t)
        if r != lastrow:
            seq += cvt2(S, S, (r, t))
            pv = None
            if r == SPECIAL[var]: pv = 26 if var == 0 else 24
            elif t == 2: pv = 25 + 2 * (r - OFF[var])
            if pv: seq.append((None, f"v_mov_b32 v{V_PV}, {pv}"))
            seq.append((None, f"ds_write_b64 v{V_GA}, {vr(S,2)} offset:{r*SROW + (32 if t == 2 else 0)}"))
            if pv: seq.append((None, f"ds_write_b32 v{V_CP}, v{V_PV}"))
        elif t == 1:
            seq += cvt2(S, S, (r, t))
            seq.append((None, f"s_add_u32 s48, s47, {r*PROW}"))
        else:
            A = acc(r, 1)
            seq += cvt2(A + 2, S, (r, t))
            seq.append(("W2", f"v_permlane16_swap_b32 v{A}, v{A+2}"))
            seq.append((None, f"v_permlane16_swap_b32 v{A+1}, v{A+3}"))
            seq.append((None, f"buffer_store_dwordx4 {vr(A,4)}, v{V_SA}, s[24:27], s48 offen{cfg.stflag}"))
    def states(frm):
        c = 0
        for l in a.lines[frm + 1:]:
            l = l.strip()
            if l.endswith(":") or l.startswith(";") or l.startswith("."): continue
            c += int(l.split()[1]) + 1 if l.startswith("s_nop") else 1
        return c
    done_at = {}
    last_valu = [0]
    def missing(dep):
        if dep is None: return 0
        if dep == "W2": return max(0, 2 - states(last_valu[0]))
        if dep not in done_at: return None
        return max(0, 8 - states(done_at[dep]))
    nl = [0]
    def emit_ex(txt, k):
        for key, pat in (("C", "v_cvt"), ("P", "v_permlane"), ("V", "ds_write_b64"), ("F", "ds_write_b32"), ("S", "buffer_store")):
            if key in cfg.drop and txt.startswith(pat): return
        if txt.startswith("ds_"):
            nl[0] += 1; q.issue(("st", nl[0]), k, txt)
        else: a(txt)
        if txt.startswith("v_cvt"): last_valu[0] = len(a.lines) - 1
    for k, m in enumerate(ls):
        rho, i, t, qq, g, occ = m
        q.need(names(m), k)
        a(f"v_mfma_f32_16x16x32_bf16 {vr(acc(rho,t),4)}, {vr(wreg(i,WSET[(g,t)]),4)}, {vr(xreg(qq),4)}, {vr(acc(rho,t),4)}")
        if endk[(rho, t)] == k: done_at[(rho, t)] = len(a.lines) - 1
        cnt = 0
        if k in lplaced:
            q.issue(lplaced[k], k, rd_text(lplaced[k])); cnt += 1
        lim = cfg.exper if (k >= n2 - cfg.rush or k < 6) else 1
        if k < 6: cnt = 1
        while seq and cnt < lim and k < n2 - 1:
            miss = missing(seq[0][0])
            if miss == 0:
                emit_ex(seq.pop(0)[1], k); cnt += 1
            else:
                if miss is not None and miss > 1 and cnt == 0 and k >= n2 - cfg.fill: a("s_nop 1")
                break
    while seq:
        miss = missing(seq[0][0])
        if miss: a(f"s_nop {miss - 1}")
        emit_ex(seq.pop(0)[1], n2)
    if cfg.diag:
        stamp(a, 5)
        a("s_waitcnt vmcnt(0)")
        stamp(a, 6)
        a("s_branch L_dump")
    elif cfg.amp:
        if var == 0: a.label("L_ampall")
        a("s_waitcnt vmcnt(0)")
        a("s_memrealtime s[88:89]")
        a("s_waitcnt lgkmcnt(0)")
        if cfg.amp in ("span", "skew"):
            a("v_mov_b32 v4, 0")
            a("buffer_load_dwordx2 v[6:7], v4, s[80:83], 0 offen sc0 sc1")
            a("s_waitcnt vmcnt(0)")
            a("v_readfirstlane_b32 s86, v6")
            a("v_readfirstlane_b32 s58, v7")
            a("s_nop 3")
            a("s_not_b32 s58, s58")
        lo, hi = {"pro": (58, 86), "all": (58, 88), "loop": (86, 88), "none": (58, 58), "span": (58, 88), "skew": (58, 86)}[cfg.amp]
        a(f"s_sub_u32 s90, s{hi}, s{lo}")
        a("s_mul_i32 s90, s90, 10")
        if cfg.fixd: a(f"s_mov_b32 s90, {cfg.fixd}")
        if cfg.wbl2:
            a("buffer_wbl2 sc1")
        a.label(f"L_amp{var}")
        a("s_memrealtime s[76:77]")
        a("s_waitcnt lgkmcnt(0)")
        a("s_sub_u32 s91, s76, s88")
        a("s_cmp_lt_u32 s91, s90")
        a(f"s_cbranch_scc1 L_amp{var}")
        a("s_endpgm")
    else:
        a("s_endpgm")
    poll(a, f"L_slow{var}", V_LF, V_F, "s49", 0)
    a("s_cmp_eq_u32 s46, 14")
    a(f"s_cbranch_scc1 L_fin{var}")
    a(f"s_branch L_top{var}")
    for lab, va, need, back in slow:
        poll(a, lab, va, V_F, need, 0)
        a(f"s_branch {back}")
    if cfg.entry_last: emit_entry()

def stamp(a, idx):
    a(f"s_memtime s[{60+2*idx}:{61+2*idx}]")
    if idx in (3, 5):
        a(f"s_memrealtime s[{86 if idx == 3 else 88}:{87 if idx == 3 else 89}]")
    a("s_waitcnt lgkmcnt(0)")

def dump_stamps(a, cfg):
    a.label("L_dump")
    a("s_memrealtime s[76:77]")
    a("s_getreg_b32 s78, hwreg(HW_REG_HW_ID)")
    a("s_getreg_b32 s79, hwreg(HW_REG_XCC_ID)")
    a("s_waitcnt lgkmcnt(0)")
    a("s_mov_b32 s80, s12")
    a("s_mov_b32 s81, s13")
    a("s_mov_b32 s82, 0x100000")
    a("s_mov_b32 s83, 0x20000")
    a("s_lshl_b32 s84, s2, 3")
    a("s_add_u32 s84, s84, s32")
    a("s_lshl_b32 s84, s84, 6")
    a("v_mov_b32 v4, 0")
    for k, s in enumerate([60, 62, 64, 66, 68, 70, 72, 74, 76, 77, 78, 79, 58, 59, 86, 88]):
        a(f"v_mov_b32 v5, s{s}")
        a(f"buffer_store_dword v5, v4, s[80:83], s84 offen offset:{4*k}")
        a("s_nop 1")
    a("v_and_b32 v1, 63, v0")
    a("v_lshlrev_b32 v4, 2, v1")
    a("v_cmp_gt_u32 vcc, 16, v1")
    a("s_and_saveexec_b64 s[92:93], vcc")
    a("s_lshl_b32 s84, s84, 2")
    a("s_add_u32 s84, s84, 0x40000")
    for k in range(3):
        a(f"buffer_store_dword v{44+k}, v4, s[80:83], s84 offen offset:{64*k}")
    a("s_waitcnt vmcnt(0)")
    a("s_endpgm")

def srd(a, d, p, size):
    a(f"s_mov_b32 s{d}, s{p}")
    a(f"s_and_b32 s{d+1}, s{p+1}, 0xffff")
    a(f"s_mov_b32 s{d+2}, {size}")
    a(f"s_mov_b32 s{d+3}, 0x20000")

def gen(cfg):
    a = Asm()
    hdr = open("standalone__dilated_atrous__vision.s.ref").read().splitlines()
    head = [l for l in hdr[:8] if l.startswith(";") and "@launch" not in l]
    out = "\n".join(head) + "\n"
    out += f"; @launch grid=(256,1,1) block=(512,1,1) lds={LDS_TOTAL}\n"
    out += f""".amdgcn_target "amdgcn-amd-amdhsa--gfx950"
.text
.globl {NAME}_kernel
.p2align 8
.type {NAME}_kernel,@function
{NAME}_kernel:
"""
    def trace(reg, idx):
        if cfg.trace:
            a("s_memtime s[90:91]")
            a(f"s_mov_b32 m0, {idx}")
            a("s_waitcnt lgkmcnt(0)")
            a(f"v_writelane_b32 v{reg}, s90, m0")
    if cfg.diag:
        a("s_memtime s[60:61]")
        a("s_memrealtime s[58:59]")
        a("s_load_dwordx2 s[12:13], s[0:1], 32")
    if cfg.amp: a("s_memrealtime s[58:59]")
    if cfg.amp in ("span", "skew"): a("s_load_dwordx2 s[12:13], s[0:1], 24")
    a("s_load_dwordx4 s[4:7], s[0:1], 0")
    a("s_load_dwordx2 s[8:9], s[0:1], 16")
    if WD: a("s_mov_b32 s94, 0")
    a("s_cmp_ge_u32 s2, 256")
    a("s_cbranch_scc1 L_exit")
    if cfg.lx < 0:
        a("s_and_b32 s28, s2, 1")
        a("s_bfe_u32 s3, s2, 0x20001")
        a("s_lshl_b32 s3, s3, 5")
        a("s_lshr_b32 s33, s2, 3")
        a("s_add_u32 s3, s3, s33")
        a("s_cmp_ge_u32 s3, 126")
        a("s_cbranch_scc1 L_exit")
    else:
        a("s_and_b32 s3, s2, 7")
        a(f"s_sub_u32 s3, s3, {cfg.lx + 1}")
        a("s_and_b32 s3, s3, 7")
        a("s_lshl_b32 s3, s3, 5")
        a("s_lshr_b32 s33, s2, 3")
        a("s_add_u32 s3, s3, s33")
        a("s_cmp_ge_u32 s3, 252")
        a("s_cbranch_scc1 L_exit")
        a("s_cmp_ge_u32 s3, 224")
        a("s_cselect_b32 s33, 14, 112")
        a("s_cselect_b32 s34, 224, 0")
        a("s_cselect_b32 s29, 112, 0")
        a("s_sub_u32 s3, s3, s34")
        a("s_cmp_ge_u32 s3, s33")
        a("s_cselect_b32 s28, 1, 0")
        a("s_cselect_b32 s33, s33, 0")
        a("s_sub_u32 s3, s3, s33")
        a("s_add_u32 s3, s3, s29")
    a("v_lshrrev_b32 v2, 6, v0")
    a("v_and_b32 v1, 63, v0")
    a("v_readfirstlane_b32 s32, v2")
    a("v_lshlrev_b32 v30, 2, v0")
    a(f"v_add_u32 v30, {FLAGS}, v30")
    a("v_mov_b32 v31, 0")
    a("ds_write_b32 v30, v31")
    a("s_mul_i32 s33, s3, 4682")
    a("s_lshr_b32 s33, s33, 16")
    a("s_mul_i32 s34, s33, 14")
    a("s_sub_u32 s34, s3, s34")
    a("s_and_b32 s29, s34, 1")
    a("s_lshr_b32 s30, s34, 1")
    a("s_lshl_b32 s30, s30, 4")
    a("s_mul_i32 s31, s33, 25")
    a("s_lshr_b32 s31, s31, 1")
    a("s_and_b32 s34, s33, 1")
    a("s_lshl_b32 s35, s31, 1")
    a("s_add_u32 s35, s35, s28")
    a(f"s_mul_i32 s35, s35, {ROWB}")
    a("s_lshl_b32 s36, s30, 1")
    a("s_add_u32 s36, s36, s29")
    a("s_mul_i32 s36, s36, 192")
    a("s_lshl_b32 s52, s29, 1")
    a("s_sub_u32 s52, 2, s52")
    if cfg.order == 1: a("s_mov_b32 s3, s34")
    elif cfg.order == 2: a("s_mov_b32 s3, 1")
    elif cfg.order == 3: a("s_mov_b32 s3, 0")
    elif cfg.order == 4:
        a("s_and_b32 s3, s2, 0x30")
        a("s_min_u32 s3, s3, 1")
    a("s_cmp_ge_u32 s32, 4")
    if cfg.cpf:
        a("s_cbranch_scc0 L_ld")
        a("s_bfe_u32 s31, s32, 0x10001")
        a("s_lshl1_add_u32 s31, s34, s31")
        a("s_cmp_eq_u32 s33, 8")
        a("s_cselect_b32 s31, 3, s31")
        a("s_getpc_b64 s[38:39]")
        a.label("L_pc")
        a("s_lshr_b32 s37, s2, 1")
        a("s_and_b32 s37, s37, 0x7c")
        a("s_add_u32 s37, s37, s32")
        a("s_min_u32 s37, s37, (L_end-L_pc)/256-1")
        a("s_lshl_b32 s37, s37, 8")
        a("s_add_u32 s38, s38, s37")
        a("s_addc_u32 s39, s39, 0")
        a("v_mov_b32 v12, s38")
        a("v_mov_b32 v13, s39")
        a("global_load_dword v14, v[12:13], off")
        a("global_load_dword v15, v[12:13], off offset:128")
        if cfg.pads:
            if cfg.pad4:
                a("s_cmp_eq_u32 s32, 4")
                a("s_cbranch_scc1 L_padl")
            a("s_bitcmp1_b32 s32, 0")
            a("s_cbranch_scc0 L_compute")
            a("s_cmp_eq_u32 s31, 0")
            a("s_cbranch_scc1 L_pad0")
            a("s_cmp_eq_u32 s31, 1")
            a("s_cbranch_scc1 L_pad1")
            a("s_cmp_eq_u32 s31, 2")
            a("s_cbranch_scc1 L_pad2")
            a("s_branch L_pad3")
        else:
            a("s_branch L_compute")
        a.label("L_ld")
    else:
        a("s_cbranch_scc1 L_compute")
    if cfg.bench:
        a("v_mov_b32 v31, 100")
        a("ds_write_b32 v30, v31")
        a("s_waitcnt lgkmcnt(0)")
        a("s_barrier")
        a("s_branch L_dump")
    a("s_add_u32 s37, s35, s36")
    a(f"s_sub_u32 s37, s37, {2*PROW + 2*384}")
    a("s_sub_u32 s38, s30, 2")
    a("s_cmp_eq_u32 s29, 0")
    a("s_cselect_b32 s14, 32, -32")
    a("s_cselect_b32 s15, 0, 320")
    a(f"s_mul_i32 s10, s14, {8*PROW//32}")
    a("s_and_b32 s11, s32, 1")
    a("s_lshl_b32 s39, s11, 4")
    a("s_add_u32 s15, s15, s39")
    a("v_lshrrev_b32 v13, 2, v1")
    a("v_add_u32 v13, s15, v13")
    a("v_lshrrev_b32 v14, 3, v1")
    a("v_and_b32 v14, 2, v14")
    a("v_and_b32 v15, 3, v1")
    a("v_xor_b32 v14, v14, v15")
    a("v_lshlrev_b32 v14, 4, v14")
    a("v_add_u32 v14, s37, v14")
    a("v_bfrev_b32 v19, 1")
    a("s_movk_i32 s39, 3277")
    a(f"s_mov_b32 s49, {PROW}")
    a("s_movk_i32 s50, 384")
    a("s_movk_i32 s51, 112")
    for b in range(5):
        a("v_mul_u32_u24 v15, s39, v13")
        a("v_lshrrev_b32 v15, 16, v15")
        a("v_mul_u32_u24 v16, 20, v15")
        a("v_sub_u32 v16, v13, v16")
        a("v_add_u32 v17, s38, v16")
        a("v_cmp_gt_u32 vcc, s51, v17")
        a("v_mad_u32_u24 v18, v15, s49, v14")
        a("v_mad_u32_u24 v18, v16, s50, v18")
        a(f"v_cndmask_b32 v{2+b}, v19, v18, vcc")
        if b < 4: a("v_add_u32 v13, s14, v13")
        a(f"v_add_u32 v{7+b}, s10, v{2+b}")
    a("v_add_u32 v12, s10, v7")
    a("s_lshl_b32 s57, s52, 6")
    a("s_lshl_b32 s56, s15, 6")
    a("s_lshl_b32 s14, s14, 6")
    a("v_lshlrev_b32 v20, 4, v1")
    a("v_cmp_gt_u32 vcc, 32, v1")
    a("v_xor_b32 v22, 32, v20")
    a("s_lshr_b32 s39, s2, 3")
    a("v_cndmask_b32 v21, v22, v20, vcc")
    a("s_and_b32 s39, s39, 30")
    a("s_mul_i32 s38, s11, 5")
    a("s_add_u32 s39, s39, s38")
    a("s_mul_i32 s38, s39, 26")
    a("s_lshr_b32 s38, s38, 8")
    a("s_mul_i32 s38, s38, 10")
    a("s_sub_u32 s39, s39, s38")
    a("s_mul_i32 s40, s39, 3072")
    a("s_lshr_b32 s41, s39, 1")
    a(f"s_mul_i32 s41, s41, {92160 - 6144}")
    a("s_add_u32 s41, s41, s40")
    a("s_movk_i32 s42, 3072")
    a("s_bitcmp1_b32 s39, 0")
    a(f"s_cselect_b32 s42, {92160 - 3072}, s42")
    a("s_mov_b32 s43, 4")
    a("s_cmp_ge_u32 s32, 2")
    a("s_cselect_b32 s95, 1, 0")
    a(f"s_mul_i32 s54, s95, {WBUF}")
    a(f"s_add_u32 s54, s54, {WBASE}")
    a("s_mul_i32 s37, s95, 3")
    a("s_add_u32 s37, s37, s52")
    a("s_mul_i32 s37, s37, 6144")
    a("s_mov_b32 s55, 0")
    a("s_mov_b32 s15, 15")
    a("s_waitcnt lgkmcnt(0)")
    if cfg.diag: stamp(a, 1)
    srd(a, 16, 4, XBYTES)
    srd(a, 20, 6, WBYTES)
    if cfg.order:
        a("s_cmp_eq_u32 s95, s3")
        a("s_cbranch_scc1 L_go")
        a("s_barrier")
        a.label("L_go")
    a("s_cmp_eq_u32 s95, 1")
    a("s_cbranch_scc0 L_w_it")
    a.label("L_x_loop")
    for blk in range(4):
        a(f"s_bitcmp1_b32 s15, {blk}")
        a(f"s_cbranch_scc0 " + (f"L_x{blk}" if blk < 3 else "L_x_next"))
        for k in range(3 * blk, min(3 * blk + 3, 11)):
            a("s_mov_b32 m0, s56")
            a("s_add_u32 s56, s56, s14")
            a(f"buffer_load_dwordx4 v{2+k}, s[16:19], s57 offen{cfg.xflag} lds")
        if blk < 3: a.label(f"L_x{blk}")
    a("s_cmp_lg_u32 s55, 0")
    a("s_cbranch_scc1 L_x_sig")
    if cfg.diag: stamp(a, 2)
    if cfg.order:
        a("s_cmp_eq_u32 s3, 0")
        a("s_cbranch_scc1 L_x_nb")
    a("s_barrier")
    a.label("L_x_nb")
    a("v_mov_b32 v26, 1")
    a("s_waitcnt vmcnt(0)")
    a("ds_write_b32 v30, v26")
    trace(45, 0)
    a.label("L_w_it")
    a("s_add_u32 m0, s54, s40")
    a("s_add_u32 s50, s37, s41")
    for k in range(3):
        a(f"buffer_load_dwordx4 v{20+k}, s[20:23], s50 offen offset:{k*1024}{cfg.wflag} lds")
    a("s_addk_i32 s40, 3072")
    a("s_add_u32 s41, s41, s42")
    a(f"s_xor_b32 s42, s42, {3072 ^ (92160 - 3072)}")
    a(f"s_cmpk_eq_u32 s40, {WBUF}")
    a("s_cselect_b32 s40, 0, s40")
    a("s_cselect_b32 s41, 0, s41")
    a("s_sub_u32 s43, s43, 1")
    a("s_cbranch_scc0 L_w_it")
    a("s_cmp_lg_u32 s55, 0")
    a("s_cbranch_scc1 L_w_adv")
    a("s_cmp_eq_u32 s95, 1")
    a("s_cbranch_scc1 L_x_w1")
    if cfg.order:
        a("s_cmp_eq_u32 s3, 1")
        a("s_cbranch_scc1 L_w_nb1")
    a("s_barrier")
    a.label("L_w_nb1")
    a("s_mov_b32 s55, s32")
    a("s_mov_b32 s53, s32")
    a(f"s_mul_i32 s50, s32, {WBUF}")
    a("s_add_u32 s54, s54, s50")
    a("v_mov_b32 v31, s32")
    a.label("L_w_adv")
    trace(44, "s55")
    a("v_add_u32 v31, 2, v31")
    a("s_waitcnt vmcnt(0)")
    a("ds_write_b32 v30, v31")
    trace(45, "s55")
    a(f"s_sub_u32 s54, s54, {WBUF}")
    a(f"s_cmp_lt_u32 s54, {WBASE}")
    a(f"s_cselect_b32 s50, {3*WBUF}, 0")
    a("s_add_u32 s54, s54, s50")
    a("s_add_u32 s53, s53, 2")
    a("s_cmp_ge_u32 s53, 5")
    a("s_cselect_b32 s50, 5, 0")
    a("s_sub_u32 s53, s53, s50")
    a("s_lshr_b32 s50, s50, 2")
    a("s_add_u32 s52, s52, s50")
    a("s_cmp_eq_u32 s52, 3")
    a("s_cselect_b32 s52, 0, s52")
    a("s_mul_i32 s37, s53, 3")
    a("s_add_u32 s37, s37, s52")
    a("s_mul_i32 s37, s37, 6144")
    a("s_mov_b32 s43, 9")
    a("s_mov_b32 s51, s55")
    a("s_add_u32 s55, s55, 2")
    a("s_cmp_eq_u32 s51, 0")
    a("s_cbranch_scc1 L_w_it")
    a("s_cmp_ge_u32 s55, 15")
    a("s_cbranch_scc1 L_store")
    a("v_and_b32 v23, 3, v1")
    a("v_lshlrev_b32 v23, 8, v23")
    a(f"v_add_u32 v23, {FLAGS + 1024}, v23")
    poll(a, "L_w_poll", 23, 24, "s51", cfg.sleep)
    trace(46, "s55")
    a("s_branch L_w_it")
    if cfg.pad4:
        a.label("L_padl")
        a("s_branch L_compute")
    a.label("L_x_w1")
    C = sum(((thr << 4) | m) << (8 * k) for k, (thr, m) in enumerate(cfg.xb))
    assert len(cfg.xb) <= 8
    a(f"s_mov_b32 s92, {C & 0xffffffff:#x}")
    a(f"s_mov_b32 s93, {C >> 32:#x}")
    a("s_mov_b32 s55, 1")
    if cfg.trace: a("s_mov_b32 s51, 1")
    a.label("L_x_sig")
    a("v_add_u32 v31, 5, v31")
    a("s_waitcnt vmcnt(0)")
    a("ds_write_b32 v30, v31")
    trace(45, "s51")
    a("s_mul_i32 s50, s14, -11")
    a("s_add_u32 s56, s56, s50")
    a(f"s_add_u32 s56, s56, {XCH}")
    a("s_add_u32 s57, s57, 64")
    a("s_cmp_eq_u32 s57, 192")
    a("s_cselect_b32 s57, 0, s57")
    a.label("L_x_next")
    a("s_and_b32 s15, s92, 15")
    a("s_cbranch_scc0 L_store")
    a("s_bfe_u32 s51, s92, 0x40004")
    a("s_lshr_b64 s[92:93], s[92:93], 8")
    a("v_and_b32 v22, 1, v1")
    a(f"v_lshlrev_b32 v22, 8, v22")
    a(f"v_add_u32 v22, {FLAGS}, v22")
    poll(a, "L_x_poll", 22, 23, "s51", cfg.sleep)
    trace(44, "s51")
    a("s_branch L_x_loop")
    a.label("L_store")
    srd(a, 24, 8, XBYTES)
    a("s_movk_i32 s49, 208")
    a("s_movk_i32 s50, 384")
    a("v_lshrrev_b32 v11, 2, v1")
    a("v_and_b32 v12, 3, v1")
    a("v_lshlrev_b32 v12, 4, v12")
    a("v_mad_u32_u24 v5, v11, s50, v12")
    a("v_mad_u32_u24 v2, v11, s49, v12")
    a("v_and_b32 v10, 1, v1")
    a("v_lshlrev_b32 v10, 8, v10")
    a("s_lshl_b32 s39, s95, 9")
    a(f"s_add_u32 s39, s39, {FLAGS + 1024}")
    a("v_add_u32 v10, s39, v10")
    a("s_add_u32 s45, s35, s36")
    a("s_add_u32 s39, s34, 6")
    a("s_mul_i32 s39, s39, s95")
    a("s_add_u32 s39, s39, s11")
    a(f"s_mul_i32 s47, s39, {PROW}")
    a("s_add_u32 s47, s47, s45")
    a(f"s_mul_i32 s48, s39, {SROW}")
    a("v_add_u32 v12, s48, v2")
    a("s_add_u32 s51, s11, 16")
    a("s_andn2_b32 s44, s34, s95")
    a("s_add_u32 s44, s44, 22")
    a.label("L_st_m")
    poll(a, "L_st_mp", 10, 11, "s51", cfg.sleep)
    a(f"ds_read_b128 {vr(16,4)}, v12 offset:64")
    a(f"v_add_u32 v12, {2*SROW}, v12")
    a("s_add_u32 s51, s51, 2")
    a("s_waitcnt lgkmcnt(0)")
    a(f"buffer_store_dwordx4 {vr(16,4)}, v5, s[24:27], s47 offen offset:64{cfg.stflag}")
    a(f"s_add_u32 s47, s47, {2*PROW}")
    a("s_cmp_lt_u32 s51, s44")
    a("s_cbranch_scc1 L_st_m")
    if cfg.stprio: a(f"s_setprio {cfg.stprio}")
    a("s_cmp_eq_u32 s33, 8")
    a("s_cselect_b32 s39, 6, 7")
    a("s_cselect_b32 s38, 1, s34")
    a("s_cmp_eq_u32 s95, 1")
    a("s_cselect_b32 s39, s39, s34")
    a("s_add_u32 s39, s39, s11")
    a(f"s_mul_i32 s47, s39, {PROW}")
    a("s_add_u32 s47, s47, s45")
    a(f"s_mul_i32 s48, s39, {SROW}")
    a("v_add_u32 v12, s48, v2")
    a("s_lshl_b32 s51, s11, 1")
    a("s_add_u32 s51, s51, 25")
    a("s_lshl_b32 s38, s38, 2")
    a("s_add_u32 s38, s38, s32")
    a("s_cmp_lg_u32 s38, 1")
    a("s_cbranch_scc1 L_st_go")
    a("v_and_b32 v28, 3, v1")
    a("v_lshlrev_b32 v28, 8, v28")
    a(f"v_add_u32 v28, {FLAGS + 1024}, v28")
    a(f"s_add_u32 s45, s45, {6*PROW}")
    poll(a, "L_st_s1", 28, 11, 24, cfg.sleep2)
    poll(a, "L_st_s2", 10, 11, 26, cfg.sleep2)
    for k in range(2): a(f"ds_read_b128 {vr(16+4*k,4)}, v2 offset:{6*SROW + 128*k}")
    for k in range(2):
        a(f"s_waitcnt lgkmcnt({1-k})")
        a(f"buffer_store_dwordx4 {vr(16+4*k,4)}, v5, s[24:27], s45 offen offset:{128*k}{cfg.stflag}")
    a.label("L_st_go")
    poll(a, "L_st_p1", 10, 11, 24, cfg.sleep2)
    a.label("L_st_try")
    if WD:
        a("s_add_u32 s94, s94, 1")
        a("s_bitcmp1_b32 s94, 18")
        a("s_cbranch_scc1 L_exit")
    a("ds_read_b32 v11, v10")
    for k in range(2): a(f"ds_read_b128 {vr(16+4*k,4)}, v12 offset:{128*k}")
    a("s_waitcnt lgkmcnt(2)")
    a("v_cmp_gt_u32 vcc, s51, v11")
    a("s_cbranch_vccnz L_st_try")
    for k in range(2):
        a(f"s_waitcnt lgkmcnt({1-k})")
        a(f"buffer_store_dwordx4 {vr(16+4*k,4)}, v5, s[24:27], s47 offen offset:{128*k}{cfg.stflag}")
    a(f"v_add_u32 v12, {2*SROW}, v12")
    a(f"s_add_u32 s47, s47, {2*PROW}")
    a("s_add_u32 s51, s51, 4")
    a("s_cmp_lt_u32 s51, 34")
    a("s_cbranch_scc1 L_st_try")
    a.label("L_st_end")
    if cfg.amp == "all": a("s_branch L_ampall")
    if cfg.diag:
        stamp(a, 5)
        a("s_waitcnt vmcnt(0)")
        stamp(a, 6)
        dump_stamps(a, cfg)
    a.label("L_exit")
    a("s_endpgm")
    a.label("L_compute")
    if cfg.cbar == 0:
        a("s_waitcnt lgkmcnt(0)")
        a("s_barrier")
    a("s_sub_u32 s37, s32, 4")
    a("s_and_b32 s38, s37, 1")
    a("s_lshr_b32 s37, s37, 1")
    a("s_add_u32 s39, s34, 6")
    a("s_mul_i32 s49, s37, s39")
    a(f"v_mov_b32 v{V_CP}, v30")
    a(f"v_mov_b32 v{V_PV}, 0")
    a("v_and_b32 v32, 15, v1")
    a("v_lshrrev_b32 v33, 4, v1")
    a("v_and_b32 v34, 1, v33")
    a("v_lshrrev_b32 v35, 1, v33")
    a("v_bfe_u32 v36, v1, 2, 2")
    a("v_and_b32 v37, 3, v1")
    a(f"v_lshlrev_b32 v{V_LF}, 8, v37")
    a(f"v_add_u32 v{V_LF}, {FLAGS}, v{V_LF}")
    a(f"v_or_b32 v16, 512, v{V_LF}")
    a(f"v_xor_b32 v17, 512, v16")
    a("s_lshl_b32 s39, s38, 7")
    a("v_lshlrev_b32 v40, 5, v34")
    a("v_lshl_add_u32 v40, v35, 4, v40")
    a("v_add_u32 v40, s39, v40")
    a("s_lshl_b32 s39, s38, 5")
    a("s_add_u32 s39, s39, 64")
    a("v_lshlrev_b32 v41, 3, v33")
    a("v_add_u32 v41, s39, v41")
    a("v_mul_u32_u24 v38, 384, v32")
    a("v_add_u32 v38, s36, v38")
    a(f"v_add_u32 v{V_SA}, v38, v40")
    a(f"v_add_u32 v{V_SC}, v38, v41")
    a("v_mul_u32_u24 v38, 208, v32")
    a(f"s_mul_i32 s39, s49, {SROW}")
    a("v_add_u32 v38, s39, v38")
    a("s_lshl_b32 s39, s38, 7")
    a(f"v_lshl_add_u32 v{V_GA}, v33, 3, v38")
    a(f"v_add_u32 v{V_GA}, s39, v{V_GA}")
    a(f"v_add_u32 v{V_GB}, v38, v41")
    a(f"s_mul_i32 s47, s49, {PROW}")
    a("s_add_u32 s47, s47, s35")
    a("v_lshl_add_u32 v38, v33, 3, v36")
    a("v_mul_u32_u24 v38, 192, v38")
    a("v_lshl_add_u32 v38, v37, 3, v38")
    a(f"v_add_u32 v38, {WBASE}, v38")
    a("s_add_u32 s39, s38, 2")
    a("v_xor_b32 v39, s39, v34")
    a(f"v_lshl_add_u32 v{V_WA[0]}, v39, 5, v38")
    a("s_lshl_b32 s39, s38, 2")
    a("v_xor_b32 v39, s39, v34")
    a(f"v_lshl_add_u32 v{V_WA[1]}, v39, 5, v38")
    a("v_xor_b32 v39, 1, v39")
    a(f"v_lshl_add_u32 v{V_WA[2]}, v39, 5, v38")
    a("v_lshlrev_b32 v38, 6, v32")
    a("v_lshl_add_u32 v38, v33, 4, v38")
    a(f"s_mul_i32 s39, s49, {XROW}")
    a(f"v_add_u32 v{V_XL}, s39, v38")
    a(f"v_lshrrev_b32 v{V_T}, 3, v{V_XL}")
    a(f"v_and_b32 v{V_T}, 32, v{V_T}")
    a(f"v_xor_b32 v{V_XA[0]}, v{V_XL}, v{V_T}")
    a(f"v_xor_b32 v{V_XA[1]}, 32, v{V_XA[0]}")
    if cfg.mov64:
        for k in range(0, 84, 2): a(f"v_mov_b64 {vr(V_ACC+k,2)}, 0")
    else:
        for k in range(84): a(f"v_mov_b32 v{V_ACC+k}, 0")
    a(f"s_mov_b32 s40, {(1 << 6) | (1 << 11)}")
    a(f"s_mov_b32 s41, {sum(1 << (h + 1) for h in (3, 6, 9, 12))}")
    a(f"s_mov_b32 s44, {(-2*WBUF) & 0xffffffff}")
    a(f"s_mov_b32 s45, {WBUF}")
    a("s_mov_b32 s46, 2")
    if cfg.cbar == 1:
        a("s_waitcnt lgkmcnt(0)")
        a("s_barrier")
    if cfg.diag: stamp(a, 1)
    srd(a, 24, 8, XBYTES)
    if cfg.prio: a(f"s_setprio {cfg.prio}")
    if cfg.amp in ("span", "skew"): srd(a, 80, 12, 256)
    for var in (1, 2, 3):
        a(f"s_cmp_eq_u32 s31, {var}")
        a(f"s_cbranch_scc1 L_pro{var}")
    if cfg.pads: a("s_branch L_pro0")
    for var in range(4):
        emit_variant(a, var, cfg)
    a.label("L_end")
    a("s_endpgm")
    out += a.text()
    nv = (V_END + 7) // 8 * 8
    out += f""".section .rodata,"a"
.p2align 6
.amdhsa_kernel {NAME}_kernel
  .amdhsa_next_free_vgpr {nv}
  .amdhsa_next_free_sgpr 96
  .amdhsa_accum_offset {nv}
  .amdhsa_group_segment_fixed_size 0
  .amdhsa_kernarg_size 40
  .amdhsa_user_sgpr_count 2
  .amdhsa_user_sgpr_kernarg_segment_ptr 1
  .amdhsa_system_sgpr_workgroup_id_x 1
.end_amdhsa_kernel
"""
    return out

if __name__ == "__main__":
    p = argparse.ArgumentParser()
    p.add_argument("-o", default="standalone__dilated_atrous__vision.s")
    p.add_argument("--diag", action="store_true")
    p.add_argument("--trace", action="store_true")
    p.add_argument("--bar_pos", type=int, default=58)
    p.add_argument("--xbar", type=int, default=40)
    p.add_argument("--lead", type=int, default=5)
    p.add_argument("--safe", type=int, default=8)
    p.add_argument("--prio", type=int, default=1)
    p.add_argument("--align", type=int, default=1)
    p.add_argument("--snake", type=int, default=1)
    p.add_argument("--exper", type=int, default=2)
    p.add_argument("--order", type=int, default=1)
    p.add_argument("--wpf", type=int, default=0)
    p.add_argument("--epf", type=int, default=0)
    p.add_argument("--cpf", type=int, default=1)
    p.add_argument("--sleep", type=int, default=2)
    p.add_argument("--sleep2", type=int, default=1)
    p.add_argument("--stflag", default="nt")
    p.add_argument("--wd", type=int, default=1)
    p.add_argument("--amp", default="")
    p.add_argument("--entry_last", type=int, default=0)
    p.add_argument("--pad4", type=int, default=0)
    p.add_argument("--lx", type=int, default=-1)
    p.add_argument("--al8", type=int, default=0)
    p.add_argument("--shift4", type=int, default=0)
    p.add_argument("--rush", type=int, default=30)
    p.add_argument("--fill", type=int, default=0)
    p.add_argument("--pads", type=int, default=1)
    p.add_argument("--nstage", type=int, default=5)
    p.add_argument("--spec", type=int, default=1)
    p.add_argument("--stprio", type=int, default=0)
    p.add_argument("--mov64", type=int, default=1)
    p.add_argument("--xflag", default="")
    p.add_argument("--wflag", default="")
    p.add_argument("--fixd", type=int, default=0)
    p.add_argument("--wbl2", type=int, default=0)
    p.add_argument("--bench", action="store_true")
    p.add_argument("--drop", default="")
    p.add_argument("--cmpd", type=int, default=4)
    p.add_argument("--updstep", type=int, default=1)
    p.add_argument("--xthr", type=int, default=2)
    p.add_argument("--cbar", type=int, default=0)
    p.add_argument("--w2wait", type=int, default=1)
    p.add_argument("--xb", default="3:1,4:2,5:4,6:8,8:3,9:12")
    cfg = p.parse_args()
    cfg.xb = [tuple(int(v) for v in e.split(":")) for e in cfg.xb.split(",")]
    WD = cfg.wd
    if cfg.stflag: cfg.stflag = " " + cfg.stflag
    if cfg.xflag: cfg.xflag = " " + cfg.xflag
    if cfg.wflag: cfg.wflag = " " + cfg.wflag
    open(cfg.o, "w").write(gen(cfg))
```

```python
import sys, argparse

NAME = "standalone__dilated_atrous__vision"
XBYTES = 224 * 224 * 96 * 2
WBYTES = 25 * 96 * 96 * 2
ROWB = 224 * 192
PROW = 2 * ROWB
XCH = 352 * 64
XROW = 20 * 64
WBASE = 3 * XCH
WBUF = 5 * 6144
FLAGS = WBASE + 3 * WBUF
LDS_TOTAL = FLAGS + 2048
SROW = 16 * 208
assert 13 * SROW <= 2 * XCH

class Asm:
    def __init__(self):
        self.lines = []
    def __call__(self, s):
        self.lines.append("    " + s)
    def label(self, l):
        self.lines.append(l + ":")
    def comment(self, s):
        self.lines.append("    ; " + s)
    def text(self):
        return "\n".join(self.lines) + "\n"

def vr(b, n):
    return f"v[{b}:{b+n-1}]"

V_XL = 1
V_XA = (2, 3)
V_WA = (4, 5, 6)
V_SA, V_SC = 7, 8
V_GA, V_GB = 9, 10
V_T = 11
V_XB = (22, 23)
V_CP = 25
V_LF = 26
V_PV = 27
V_F = 28
V_X = 32
V_W = 76
V_ACC = 136
V_EXTRA = V_ACC + 84
V_END = V_EXTRA + 32

TYPES = {
    0: (range(0, 6), range(0, 7), range(0, 6)),
    1: (range(0, 6), range(1, 7), range(0, 7)),
    2: (range(0, 7), range(1, 7), range(1, 7)),
    3: (range(0, 6), range(0, 6), range(0, 6)),
}
OFF = {0: 0, 1: 1, 2: 1, 3: 0}
SPECIAL = {0: 6, 1: 0, 2: 0, 3: None}
LASTHEAD = {
    0: [(0, 0), (0, 1), (6, 1), (0, 2)],
    1: [(0, 0), (1, 0), (1, 1), (0, 2), (1, 2)],
    2: [(0, 0), (1, 0), (1, 1), (2, 0), (1, 2), (2, 1), (2, 2)],
    3: [(0, 0), (0, 1), (1, 0), (0, 2), (1, 1), (1, 2)],
}

def acc(rho, t): return V_ACC + 4 * (rho * 3 + t)
def wreg(i, t): return V_W + 4 * (i * 3 + t)
def xreg(q): return V_X + 4 * q

def chain(rho, t, rev):
    r = list(range(5))
    if rev: r.reverse()
    return [(rho, i, t, rho + i) for i in r]

def steady_order(var, cfg, par=(1, 1, 1)):
    ms = []
    for t in range(3):
        for j, rho in enumerate(TYPES[var][t]): ms += chain(rho, t, cfg.snake and j % 2 == par[t])
    return ms

DIRECT = {0: (5,), 1: (6, 5), 2: (6,), 3: (5,)}

def last_tiles(var):
    order = list(LASTHEAD[var])
    rows = [r for r in range(7) if r not in DIRECT[var]] + list(DIRECT[var])
    for r in rows:
        for t in ((0, 1, 2) if r not in DIRECT[var] else (1, 2, 0)):
            if r in TYPES[var][t] and (r, t) not in order: order.append((r, t))
    return order

def last_order(var, cfg, par=1):
    ms = []
    for j, (r, t) in enumerate(last_tiles(var)): ms += chain(r, t, cfg.snake and j % 2 == par and j >= 4)
    return ms

def uses(ms):
    first, last = {}, {}
    for k, (rho, i, t, q) in enumerate(ms):
        for key in (("w", i, t, 0), ("w", i, t, 1), ("x", q)):
            first.setdefault(key, k); last[key] = k
    return first, last

def read_text(nm):
    if nm[0] == "x":
        q = nm[1]
        return f"ds_read_b128 {vr(xreg(q),4)}, v{V_XA[q & 1]} offset:{q*XROW}"
    _, i, t, h = nm
    return f"ds_read_b64_tr_b16 {vr(wreg(i,t)+2*h,2)}, v{V_WA[t]} offset:{i*6144 + h*768}"

def edf(reads, lo, hi, lead, busy=()):
    placed, pending = {}, list(reads)
    for k in range(lo, hi):
        avail = [r for r in pending if r[1] <= k]
        if not avail: continue
        r = min(avail, key=lambda r: r[2])
        placed[k] = r[0]
        pending.remove(r)
        assert r[2] - k >= lead, (r, k)
    assert not pending, pending
    return placed

def mfma_text(m):
    rho, i, t, q = m
    return f"v_mfma_f32_16x16x32_bf16 {vr(acc(rho,t),4)}, {vr(wreg(i,t),4)}, {vr(xreg(q),4)}, {vr(acc(rho,t),4)}"

class LdsQ:
    def __init__(self, a, safe):
        self.a, self.safe = a, safe
        self.ops = []
        self.done = 0
        self.waits = []
    def issue(self, name, time, text=None):
        self.ops.append((name, time))
        if text: self.a(text)
    def need(self, names, time):
        idx = max(max(j for j, (nm, _) in enumerate(self.ops) if nm == n) for n in names) + 1
        if idx <= self.done: return
        for j, (nm, tm) in enumerate(self.ops):
            if tm <= time - 1 - self.safe: idx = max(idx, j + 1)
        cnt = len(self.ops) - idx
        if cnt > 14:
            idx += cnt - 14; cnt = 14
        self.a(f"s_waitcnt lgkmcnt({cnt})")
        self.waits.append((time, cnt, len(self.ops)))
        self.done = idx

WD = 1
def poll(a, label, vaddr, vtmp, sneed, sleep, wd=True):
    a.label(label)
    if WD and wd:
        a("s_add_u32 s94, s94, 1")
        a("s_bitcmp1_b32 s94, 18")
        a("s_cbranch_scc1 L_exit")
    a(f"ds_read_b32 v{vtmp}, v{vaddr}")
    a("s_waitcnt lgkmcnt(0)")
    a(f"v_cmp_gt_u32 vcc, {sneed}, v{vtmp}")
    if sleep:
        a(f"s_cbranch_vccz {label}_ok")
        a(f"s_sleep {sleep}")
        a(f"s_branch {label}")
        a.label(label + "_ok")
    else:
        a(f"s_cbranch_vccnz {label}")

def isize(l):
    l = l.strip()
    op = l.split()[0]
    if op.startswith(("v_mfma", "ds_", "buffer_", "v_cvt_pk")) or op.endswith("_e64"): return 8
    import re
    for tok in re.split(r"[ ,]+", l)[1:]:
        if re.fullmatch(r"-?\d+|0x[0-9a-f]+", tok) and not op.startswith(("s_waitcnt", "s_nop")):
            v = int(tok, 0)
            if not (-16 <= v <= 64): return 8
    return 4

def align8(lines):
    out = []
    for l in lines:
        op = l.strip().split()[0]
        if op.startswith("v_") and isize(l) == 4:
            l = l.replace(op, op + "_e64", 1)
        out.append(l)
    res, off = [], 0
    for l in out:
        sz = isize(l)
        if sz == 8 and off % 8 == 4:
            res.append("    s_nop 0"); off += 4
        res.append(l); off += sz
    if off % 8 == 4: res.append("    s_nop 0")
    return res

def emit_variant(a, var, cfg):
    bar = cfg.bar_pos if var != 3 else cfg.bar_pos - 3
    best = None
    for par in [(p0, 1, p2) for p0 in (1, 0) for p2 in (1, 0)]:
        ms = steady_order(var, cfg, par)
        n = len(ms)
        first, last = uses(ms)
        reads = [(key, max(last[key], bar, n if (key[0] == "w" and key[2] == 2) else 0), n + first[key]) for key in first]
        placed = edf(reads, bar, n + bar - 16, 0)
        ld = min(n + first[nm] - k for k, nm in placed.items())
        if best is None or ld > best[0]: best = (ld, par, ms, first, last, placed)
    ld, par, ms, first, last, placed = best
    print(f"variant {var}: snake parity {par}, min lead {ld}", file=sys.stderr)
    tail = [(k, placed[k]) for k in sorted(placed) if k < n]
    head = [(k - n, placed[k]) for k in sorted(placed) if k >= n]
    slow = []
    hb, tb = Asm(), Asm()
    q = LdsQ(hb, cfg.safe)
    for k, nm in tail: q.issue(nm, k - n)
    headd, taild = dict(head), dict(tail)
    extra = {}
    def put(k, s): extra.setdefault(k, []).append(s)
    krel = max(k for k, nm in head) + 1
    put(krel - 1, f"v_add_u32 v{V_PV}, 1, v{V_PV}")
    upd = ["s_bitcmp1_b32 s40, s46", f"s_cselect_b32 s42, {XCH - 4*64}, 64",
           "s_bitcmp1_b32 s41, s46", "s_cselect_b32 s43, s44, s45",
           "s_cmp_eq_u32 s46, 14", "s_cselect_b32 s49, 1000, s46",
           f"v_add_u32 v{V_XL}, s42, v{V_XL}", f"v_lshrrev_b32 v{V_T}, 3, v{V_XL}", f"v_and_b32 v{V_T}, 32, v{V_T}",
           f"v_xor_b32 v{V_XA[0]}, v{V_XL}, v{V_T}", f"v_xor_b32 v{V_XA[1]}, 32, v{V_XA[0]}"]
    upd += [f"v_add_u32 v{V_WA[t]}, s43, v{V_WA[t]}" for t in range(3)]
    b0 = krel + 2
    for j, u in enumerate(upd): put(b0 + cfg.updstep * j, u)
    kflag = bar - cfg.cmpd - 9
    assert b0 + cfg.updstep * len(upd) <= kflag
    cur = hb
    for k, m in enumerate(ms):
        rho, i, t, qq = m
        q.need([("w", i, t, 0), ("w", i, t, 1), ("x", qq)], k)
        cur(mfma_text(m))
        D = cfg.drop
        for s in extra.get(k, []): cur(s)
        if k == krel: q.issue(("rel",), k, f"ds_write_b32 v{V_CP}, v{V_PV}")
        if k == kflag: q.issue(("flag",), k, f"ds_read_b32 v{V_F}, v{V_LF}")
        if k == bar - cfg.cmpd - 1: q.need([("flag",)], k + 1)
        if k == bar - cfg.cmpd: cur(f"v_cmp_gt_u32 vcc, s49, v{V_F}")
        if k == bar:
            cur = tb; q.a = tb
        drop = lambda nm: ("l" in D and k in taild) or ("w" in D and nm[0] == "w" and k in taild) or ("x" in D and nm[0] == "x")
        if k in headd: q.issue(headd[k], k, read_text(headd[k]) if not drop(headd[k]) else None)
        if k in taild: q.issue(("next",) + taild[k], k, read_text(taild[k]) if not drop(taild[k]) else None)
        if k == n - 9: cur("s_add_u32 s46, s46, 1")
    kinds = ("w", "x") if ((var < 2 and cfg.order == 1) or cfg.order == 3) else ("x", "w")
    ent = [[nm for _, nm in sorted(tail, key=lambda e: first[e[1]]) if nm[0] == kd] for kd in kinds]
    late = ent[1]
    def entry_ok(m):
        done = len(late) - m
        wi = 0
        for k, (rho, i, t, qq) in enumerate(ms):
            while wi < len(q.waits) and q.waits[wi][0] <= k:
                _, cnt, nops = q.waits[wi]; wi += 1
                body_ops = nops - len(tail)
                done = max(done, len(late) - max(0, cnt - body_ops))
            for nm in (("w", i, t, 0), ("w", i, t, 1), ("x", qq)):
                if nm in late and late.index(nm) >= done: return False
        return True
    ment = max(mm for mm in range(min(len(late), 14) + 1) if entry_ok(mm))
    def emit_entry():
        a.label(f"L_pro{var}")
        poll(a, f"L_p0_{var}", 16 if kinds[0] == "x" else 17, V_F, 1, 0)
        for nm in ent[0]: a(read_text(nm))
        poll(a, f"L_p1_{var}", 16 if kinds[1] == "x" else 17, V_F, 1, 0)
        if cfg.diag: stamp(a, 3)
        if cfg.amp:
            a("s_memrealtime s[86:87]")
            a("s_waitcnt lgkmcnt(0)")
        for nm in late: a(read_text(nm))
        a(f"s_waitcnt lgkmcnt({ment})")
        a(f"s_branch L_head{var}")
    if not cfg.entry_last: emit_entry()
    if cfg.al8:
        hb.lines = align8(hb.lines); tb.lines = align8(tb.lines)
    if cfg.align: a(".p2align 6")
    if cfg.pads:
        a.label(f"L_pad{var}")
        a("s_branch L_compute")
        a("s_nop 0")
    a.label(f"L_top{var}")
    a.lines += tb.lines
    a.label(f"L_head{var}")
    a.lines += hb.lines
    a(f"s_cbranch_vccz L_top{var}")
    a("s_min_u32 s49, s49, 15")
    a(f"v_cmp_gt_u32 vcc, s49, v{V_F}")
    a(f"s_cbranch_vccnz L_slow{var}")
    a.label(f"L_fin{var}")
    a.lines += tb.lines
    if cfg.diag: stamp(a, 4)
    if cfg.cpf: a("s_waitcnt vmcnt(0)")
    rows = TYPES[var]
    down = var == 0
    prow = sorted(set(rows[1]) | set(rows[2]), reverse=down)
    lastrow = prow[-1]
    srow2 = sorted(rows[0], reverse=not down)
    def build(pa, pb):
        out = []
        for j, r in enumerate(rows[0]):
            out += [m + (13, 0) for m in chain(r, 0, cfg.snake and j % 2 == pa)]
        for j, r in enumerate(srow2):
            out += [m + (14, 0) for m in chain(r, 0, cfg.snake and j % 2 == pb)]
        keep = set(range(srow2[-1], srow2[-1] + 5))
        flip = 0
        tiles = []
        for r in prow:
            ts = [t for t in ((1, 2) if flip == 0 else (2, 1)) if r in rows[t]]
            if r == lastrow: ts = [1, 2]
            for j, t in enumerate(ts):
                gs = (14, 13) if j == 0 else (13, 14)
                for g in gs:
                    for m in chain(r, t, (j == 1) != down):
                        out.append(m + (g, 0 if (g == 14 and m[3] in keep) else 1))
                tiles.append((r, t))
            flip = 0 if ts[-1] == 1 else 1
        return out, tiles
    def names(m):
        rho, i, t, qq, g, occ = m
        return [("w", g, i, t, 0), ("w", g, i, t, 1), ("x", g, qq, occ)]
    frag = lambda nm: nm if nm[0] == "x" else nm[:4]
    conv = lambda nm: ("x", 13, nm[1], 0) if nm[0] == "x" else ("w", 13) + nm[1:]
    pre = [(k - n, conv(nm)) for k, nm in tail]
    prenames = set(nm for _, nm in pre)
    slots = [V_X + 4 * j for j in range(26)] + [V_EXTRA + 4 * j for j in range(8)]
    best = None
    for pa in (1, 0):
      for pb in (1, 0):
        ls, ptiles = build(pa, pb)
        lf, ll = {}, {}
        for k, m in enumerate(ls):
            for nm in names(m):
                lf.setdefault(nm, k); ll[nm] = k
        free = {sl: 0 for sl in slots}
        regs = {}
        for nm in prenames:
            sl = xreg(nm[2]) if nm[0] == "x" else wreg(nm[2], nm[3])
            regs[frag(nm)] = sl
            free[sl] = max(free[sl], ll.get(nm, 0))
        rds, early = [], {}
        for nm in sorted(lf, key=lambda v: lf[v]):
            if nm in prenames: continue
            fr = frag(nm)
            if fr not in regs:
                ok = [sl for sl in slots if free[sl] <= lf[nm] - cfg.alead]
                sl = max(ok, key=lambda v: free[v]) if ok else min(slots, key=lambda v: free[v])
                regs[fr] = sl; early[fr] = free[sl]; free[sl] = ll[nm]
            e = early.get(fr, 0)
            if nm[0] == "x" and nm[1] == 14: e = max(e, 6)
            rds.append((nm, e, lf[nm]))
        try: lp = edf(rds, 0, len(ls), 0)
        except AssertionError: continue
        ld2 = min([lf[nm] - k for k, nm in lp.items()] + [lf[nm] - k for k, nm in pre if nm in lf])
        if best is None or ld2 > best[0]: best = (ld2, (pa, pb), ls, lf, lp, regs, ptiles)
    ld2, pars, ls, lf, lplaced, regs, ptiles = best
    print(f"   final segment: parity {pars} min lead {ld2} reads {len(lplaced)}", file=sys.stderr)
    def rd_text(nm):
        if nm[0] == "x":
            _, g, qq, occ = nm
            return f"ds_read_b128 {vr(regs[nm],4)}, v{(V_XA if g == 13 else V_XB)[qq & 1]} offset:{qq*XROW}"
        _, g, i, t, h = nm
        return f"ds_read_b64_tr_b16 {vr(regs[frag(nm)]+2*h,2)}, v{V_WA[t]} offset:{(g-13)*WBUF + i*6144 + h*768}"
    n2 = len(ls)
    q = LdsQ(a, cfg.safe)
    for k, nm in pre: q.issue(nm, k)
    endk = {}
    for k, m in enumerate(ls): endk[(m[0], m[2])] = k
    def cvt2(D, S, tile):
        return [(tile, f"v_cvt_pk_bf16_f32 v{D}, v{S}, v{S+1}"), (tile, f"v_cvt_pk_bf16_f32 v{D+1}, v{S+2}, v{S+3}")]
    seq = [(None, f"v_add_u32 v{V_XL}, 64, v{V_XL}"), (None, f"v_lshrrev_b32 v{V_T}, 3, v{V_XL}"), (None, f"v_and_b32 v{V_T}, 32, v{V_T}"),
           (None, f"v_xor_b32 v{V_XB[0]}, v{V_XL}, v{V_T}"), (None, f"v_xor_b32 v{V_XB[1]}, 32, v{V_XB[0]}")]
    for j, r in enumerate(srow2):
        S = acc(r, 0)
        seq += cvt2(S, S, (r, 0))
        seq += [(None, f"v_mov_b32 v{V_PV}, {16 + j}"), (None, f"ds_write_b64 v{V_GB}, {vr(S,2)} offset:{r*SROW}"),
                (None, f"ds_write_b32 v{V_CP}, v{V_PV}")]
    kfull, seen = 0, set()
    for (r, t) in ptiles:
        S = acc(r, t)
        if r != lastrow:
            seq += cvt2(S, S, (r, t))
            pv = None
            if not (r in rows[1] and r in rows[2]): pv = 24
            elif r in seen:
                pv = 25 + kfull; kfull += 1
            seen.add(r)
            if pv: seq.append((None, f"v_mov_b32 v{V_PV}, {pv}"))
            seq.append((None, f"ds_write_b64 v{V_GA}, {vr(S,2)} offset:{r*SROW + (32 if t == 2 else 0)}"))
            if pv: seq.append((None, f"ds_write_b32 v{V_CP}, v{V_PV}"))
        elif t == 1:
            seq += cvt2(S, S, (r, t))
            seq.append((None, f"s_add_u32 s48, s47, {r*PROW}"))
        else:
            A = acc(r, 1)
            seq += cvt2(A + 2, S, (r, t))
            seq.append(("W2", f"v_permlane16_swap_b32 v{A}, v{A+2}"))
            seq.append((None, f"v_permlane16_swap_b32 v{A+1}, v{A+3}"))
            seq.append((None, f"buffer_store_dwordx4 {vr(A,4)}, v{V_SA}, s[24:27], s48 offen{cfg.stflag}"))
    assert kfull == 5
    def states(frm):
        c = 0
        for l in a.lines[frm + 1:]:
            l = l.strip()
            if l.endswith(":") or l.startswith(";") or l.startswith("."): continue
            c += int(l.split()[1]) + 1 if l.startswith("s_nop") else 1
        return c
    done_at = {}
    last_valu = [0]
    def missing(dep):
        if dep is None: return 0
        if dep == "W2": return max(0, 2 - states(last_valu[0]))
        if dep not in done_at: return None
        return max(0, 8 - states(done_at[dep]))
    nl = [0]
    def emit_ex(txt, k):
        for key, pat in (("C", "v_cvt"), ("P", "v_permlane"), ("V", "ds_write_b64"), ("F", "ds_write_b32"), ("S", "buffer_store")):
            if key in cfg.drop and txt.startswith(pat): return
        if txt.startswith("ds_"):
            nl[0] += 1; q.issue(("st", nl[0]), k, txt)
        else: a(txt)
        if txt.startswith("v_cvt"): last_valu[0] = len(a.lines) - 1
    for k, m in enumerate(ls):
        rho, i, t, qq, g, occ = m
        q.need(names(m), k)
        a(f"v_mfma_f32_16x16x32_bf16 {vr(acc(rho,t),4)}, {vr(regs[('w',g,i,t)],4)}, {vr(regs[('x',g,qq,occ)],4)}, {vr(acc(rho,t),4)}")
        if endk[(rho, t)] == k: done_at[(rho, t)] = len(a.lines) - 1
        cnt = 0
        if k in lplaced:
            q.issue(lplaced[k], k, rd_text(lplaced[k])); cnt += 1
        lim = cfg.exper if (k >= n2 - cfg.rush or k < 6) else 1
        if k < 6: cnt = 1
        while seq and cnt < lim and k < n2 - 1:
            miss = missing(seq[0][0])
            if miss == 0:
                emit_ex(seq.pop(0)[1], k); cnt += 1
            else:
                if miss is not None and miss > 1 and cnt == 0 and k >= n2 - cfg.fill: a("s_nop 1")
                break
    while seq:
        miss = missing(seq[0][0])
        if miss: a(f"s_nop {miss - 1}")
        emit_ex(seq.pop(0)[1], n2)
    if cfg.diag:
        stamp(a, 5)
        a("s_waitcnt vmcnt(0)")
        stamp(a, 6)
        a("s_branch L_dump")
    elif cfg.amp:
        if var == 0: a.label("L_ampall")
        a("s_waitcnt vmcnt(0)")
        a("s_memrealtime s[88:89]")
        a("s_waitcnt lgkmcnt(0)")
        if cfg.amp in ("span", "skew"):
            a("v_mov_b32 v4, 0")
            a("buffer_load_dwordx2 v[6:7], v4, s[80:83], 0 offen sc0 sc1")
            a("s_waitcnt vmcnt(0)")
            a("v_readfirstlane_b32 s86, v6")
            a("v_readfirstlane_b32 s58, v7")
            a("s_nop 3")
            a("s_not_b32 s58, s58")
        lo, hi = {"pro": (58, 86), "all": (58, 88), "loop": (86, 88), "none": (58, 58), "span": (58, 88), "skew": (58, 86)}[cfg.amp]
        a(f"s_sub_u32 s90, s{hi}, s{lo}")
        a("s_mul_i32 s90, s90, 10")
        if cfg.fixd: a(f"s_mov_b32 s90, {cfg.fixd}")
        if cfg.wbl2:
            a("buffer_wbl2 sc1")
        a.label(f"L_amp{var}")
        a("s_memrealtime s[76:77]")
        a("s_waitcnt lgkmcnt(0)")
        a("s_sub_u32 s91, s76, s88")
        a("s_cmp_lt_u32 s91, s90")
        a(f"s_cbranch_scc1 L_amp{var}")
        a("s_endpgm")
    else:
        a("s_endpgm")
    poll(a, f"L_slow{var}", V_LF, V_F, "s49", 0)
    a("s_cmp_eq_u32 s46, 14")
    a(f"s_cbranch_scc1 L_fin{var}")
    a(f"s_branch L_top{var}")
    for lab, va, need, back in slow:
        poll(a, lab, va, V_F, need, 0)
        a(f"s_branch {back}")
    if cfg.entry_last: emit_entry()

def stamp(a, idx):
    a(f"s_memtime s[{60+2*idx}:{61+2*idx}]")
    if idx in (3, 5):
        a(f"s_memrealtime s[{86 if idx == 3 else 88}:{87 if idx == 3 else 89}]")
    a("s_waitcnt lgkmcnt(0)")

def dump_stamps(a, cfg):
    a.label("L_dump")
    a("s_memrealtime s[76:77]")
    a("s_getreg_b32 s78, hwreg(HW_REG_HW_ID)")
    a("s_getreg_b32 s79, hwreg(HW_REG_XCC_ID)")
    a("s_waitcnt lgkmcnt(0)")
    a("s_mov_b32 s80, s12")
    a("s_mov_b32 s81, s13")
    a("s_mov_b32 s82, 0x100000")
    a("s_mov_b32 s83, 0x20000")
    a("s_lshl_b32 s84, s2, 3")
    a("s_add_u32 s84, s84, s32")
    a("s_lshl_b32 s84, s84, 6")
    a("v_mov_b32 v4, 0")
    for k, s in enumerate([60, 62, 64, 66, 68, 70, 72, 74, 76, 77, 78, 79, 58, 59, 86, 88]):
        a(f"v_mov_b32 v5, s{s}")
        a(f"buffer_store_dword v5, v4, s[80:83], s84 offen offset:{4*k}")
        a("s_nop 1")
    a("v_and_b32 v1, 63, v0")
    a("v_lshlrev_b32 v4, 2, v1")
    a("v_cmp_gt_u32 vcc, 16, v1")
    a("s_and_saveexec_b64 s[92:93], vcc")
    a("s_lshl_b32 s84, s84, 2")
    a("s_add_u32 s84, s84, 0x40000")
    for k in range(3):
        a(f"buffer_store_dword v{44+k}, v4, s[80:83], s84 offen offset:{64*k}")
    a("s_waitcnt vmcnt(0)")
    a("s_endpgm")

def srd(a, d, p, size):
    a(f"s_mov_b32 s{d}, s{p}")
    a(f"s_and_b32 s{d+1}, s{p+1}, 0xffff")
    a(f"s_mov_b32 s{d+2}, {size}")
    a(f"s_mov_b32 s{d+3}, 0x20000")

def gen(cfg):
    a = Asm()
    hdr = open("standalone__dilated_atrous__vision.s.ref").read().splitlines()
    head = [l for l in hdr[:8] if l.startswith(";") and "@launch" not in l]
    out = "\n".join(head) + "\n"
    out += f"; @launch grid=(256,1,1) block=(512,1,1) lds={LDS_TOTAL}\n"
    out += f""".amdgcn_target "amdgcn-amd-amdhsa--gfx950"
.text
.globl {NAME}_kernel
.p2align 8
.type {NAME}_kernel,@function
{NAME}_kernel:
"""
    def trace(reg, idx):
        if cfg.trace:
            a("s_memtime s[90:91]")
            a(f"s_mov_b32 m0, {idx}")
            a("s_waitcnt lgkmcnt(0)")
            a(f"v_writelane_b32 v{reg}, s90, m0")
    if cfg.diag:
        a("s_memtime s[60:61]")
        a("s_memrealtime s[58:59]")
        a("s_load_dwordx2 s[12:13], s[0:1], 32")
    if cfg.amp: a("s_memrealtime s[58:59]")
    if cfg.amp in ("span", "skew"): a("s_load_dwordx2 s[12:13], s[0:1], 24")
    a("s_load_dwordx4 s[4:7], s[0:1], 0")
    a("s_load_dwordx2 s[8:9], s[0:1], 16")
    if WD: a("s_mov_b32 s94, 0")
    a("s_cmp_ge_u32 s2, 256")
    a("s_cbranch_scc1 L_exit")
    if cfg.lx < 0:
        a("s_and_b32 s28, s2, 1")
        a("s_bfe_u32 s3, s2, 0x20001")
        a("s_lshl_b32 s3, s3, 5")
        a("s_lshr_b32 s33, s2, 3")
        a("s_add_u32 s3, s3, s33")
        a("s_cmp_ge_u32 s3, 126")
        a("s_cbranch_scc1 L_exit")
    else:
        a("s_and_b32 s3, s2, 7")
        a(f"s_sub_u32 s3, s3, {cfg.lx + 1}")
        a("s_and_b32 s3, s3, 7")
        a("s_lshl_b32 s3, s3, 5")
        a("s_lshr_b32 s33, s2, 3")
        a("s_add_u32 s3, s3, s33")
        a("s_cmp_ge_u32 s3, 252")
        a("s_cbranch_scc1 L_exit")
        a("s_cmp_ge_u32 s3, 224")
        a("s_cselect_b32 s33, 14, 112")
        a("s_cselect_b32 s34, 224, 0")
        a("s_cselect_b32 s29, 112, 0")
        a("s_sub_u32 s3, s3, s34")
        a("s_cmp_ge_u32 s3, s33")
        a("s_cselect_b32 s28, 1, 0")
        a("s_cselect_b32 s33, s33, 0")
        a("s_sub_u32 s3, s3, s33")
        a("s_add_u32 s3, s3, s29")
    a("v_lshrrev_b32 v2, 6, v0")
    a("v_and_b32 v1, 63, v0")
    a("v_readfirstlane_b32 s32, v2")
    a("v_lshlrev_b32 v30, 2, v0")
    a(f"v_add_u32 v30, {FLAGS}, v30")
    a("v_mov_b32 v31, 0")
    a("ds_write_b32 v30, v31")
    a("s_mul_i32 s33, s3, 4682")
    a("s_lshr_b32 s33, s33, 16")
    a("s_mul_i32 s34, s33, 14")
    a("s_sub_u32 s34, s3, s34")
    a("s_and_b32 s29, s34, 1")
    a("s_lshr_b32 s30, s34, 1")
    a("s_lshl_b32 s30, s30, 4")
    a("s_mul_i32 s31, s33, 25")
    a("s_lshr_b32 s31, s31, 1")
    a("s_and_b32 s34, s33, 1")
    a("s_lshl_b32 s35, s31, 1")
    a("s_add_u32 s35, s35, s28")
    a(f"s_mul_i32 s35, s35, {ROWB}")
    a("s_lshl_b32 s36, s30, 1")
    a("s_add_u32 s36, s36, s29")
    a("s_mul_i32 s36, s36, 192")
    a("s_lshl_b32 s52, s29, 1")
    a("s_sub_u32 s52, 2, s52")
    if cfg.order == 1: a("s_mov_b32 s3, s34")
    elif cfg.order == 2: a("s_mov_b32 s3, 1")
    elif cfg.order == 3: a("s_mov_b32 s3, 0")
    elif cfg.order == 4:
        a("s_and_b32 s3, s2, 0x30")
        a("s_min_u32 s3, s3, 1")
    a("s_cmp_ge_u32 s32, 4")
    if cfg.cpf:
        a("s_cbranch_scc0 L_ld")
        a("s_bfe_u32 s31, s32, 0x10001")
        a("s_lshl1_add_u32 s31, s34, s31")
        a("s_cmp_eq_u32 s33, 8")
        a("s_cselect_b32 s31, 3, s31")
        a("s_getpc_b64 s[38:39]")
        a.label("L_pc")
        a("s_lshr_b32 s37, s2, 1")
        a("s_and_b32 s37, s37, 0x7c")
        a("s_add_u32 s37, s37, s32")
        a("s_min_u32 s37, s37, (L_end-L_pc)/256-1")
        a("s_lshl_b32 s37, s37, 8")
        a("s_add_u32 s38, s38, s37")
        a("s_addc_u32 s39, s39, 0")
        a("v_mov_b32 v12, s38")
        a("v_mov_b32 v13, s39")
        a("global_load_dword v14, v[12:13], off")
        a("global_load_dword v15, v[12:13], off offset:128")
        if cfg.pads:
            if cfg.pad4:
                a("s_cmp_eq_u32 s32, 4")
                a("s_cbranch_scc1 L_padl")
            a("s_bitcmp1_b32 s32, 0")
            a("s_cbranch_scc0 L_compute")
            a("s_cmp_eq_u32 s31, 0")
            a("s_cbranch_scc1 L_pad0")
            a("s_cmp_eq_u32 s31, 1")
            a("s_cbranch_scc1 L_pad1")
            a("s_cmp_eq_u32 s31, 2")
            a("s_cbranch_scc1 L_pad2")
            a("s_branch L_pad3")
        else:
            a("s_branch L_compute")
        a.label("L_ld")
    else:
        a("s_cbranch_scc1 L_compute")
    if cfg.bench:
        a("v_mov_b32 v31, 100")
        a("ds_write_b32 v30, v31")
        a("s_waitcnt lgkmcnt(0)")
        a("s_barrier")
        a("s_branch L_dump")
    a("s_add_u32 s37, s35, s36")
    a(f"s_sub_u32 s37, s37, {2*PROW + 2*384}")
    a("s_sub_u32 s38, s30, 2")
    a("s_cmp_eq_u32 s29, 0")
    a("s_cselect_b32 s14, 32, -32")
    a("s_cselect_b32 s15, 0, 320")
    a(f"s_mul_i32 s10, s14, {8*PROW//32}")
    a("s_and_b32 s11, s32, 1")
    a("s_lshl_b32 s39, s11, 4")
    a("s_add_u32 s15, s15, s39")
    a("v_lshrrev_b32 v13, 2, v1")
    a("v_add_u32 v13, s15, v13")
    a("v_lshrrev_b32 v14, 3, v1")
    a("v_and_b32 v14, 2, v14")
    a("v_and_b32 v15, 3, v1")
    a("v_xor_b32 v14, v14, v15")
    a("v_lshlrev_b32 v14, 4, v14")
    a("v_add_u32 v14, s37, v14")
    a("v_bfrev_b32 v19, 1")
    a("s_movk_i32 s39, 3277")
    a(f"s_mov_b32 s49, {PROW}")
    a("s_movk_i32 s50, 384")
    a("s_movk_i32 s51, 112")
    for b in range(5):
        a("v_mul_u32_u24 v15, s39, v13")
        a("v_lshrrev_b32 v15, 16, v15")
        a("v_mul_u32_u24 v16, 20, v15")
        a("v_sub_u32 v16, v13, v16")
        a("v_add_u32 v17, s38, v16")
        a("v_cmp_gt_u32 vcc, s51, v17")
        a("v_mad_u32_u24 v18, v15, s49, v14")
        a("v_mad_u32_u24 v18, v16, s50, v18")
        a(f"v_cndmask_b32 v{2+b}, v19, v18, vcc")
        if b < 4: a("v_add_u32 v13, s14, v13")
        a(f"v_add_u32 v{7+b}, s10, v{2+b}")
    a("v_add_u32 v12, s10, v7")
    a("s_lshl_b32 s57, s52, 6")
    a("s_lshl_b32 s56, s15, 6")
    a("s_lshl_b32 s14, s14, 6")
    a("v_lshlrev_b32 v20, 4, v1")
    a("v_cmp_gt_u32 vcc, 32, v1")
    a("v_xor_b32 v22, 32, v20")
    a("s_lshr_b32 s39, s2, 3")
    a("v_cndmask_b32 v21, v22, v20, vcc")
    a("s_and_b32 s39, s39, 30")
    a("s_mul_i32 s38, s11, 5")
    a("s_add_u32 s39, s39, s38")
    a("s_mul_i32 s38, s39, 26")
    a("s_lshr_b32 s38, s38, 8")
    a("s_mul_i32 s38, s38, 10")
    a("s_sub_u32 s39, s39, s38")
    a("s_mul_i32 s40, s39, 3072")
    a("s_lshr_b32 s41, s39, 1")
    a(f"s_mul_i32 s41, s41, {92160 - 6144}")
    a("s_add_u32 s41, s41, s40")
    a("s_movk_i32 s42, 3072")
    a("s_bitcmp1_b32 s39, 0")
    a(f"s_cselect_b32 s42, {92160 - 3072}, s42")
    a("s_mov_b32 s43, 4")
    a("s_cmp_ge_u32 s32, 2")
    a("s_cselect_b32 s95, 1, 0")
    a(f"s_mul_i32 s54, s95, {WBUF}")
    a(f"s_add_u32 s54, s54, {WBASE}")
    a("s_mul_i32 s37, s95, 3")
    a("s_add_u32 s37, s37, s52")
    a("s_mul_i32 s37, s37, 6144")
    a("s_mov_b32 s55, 0")
    a("s_mov_b32 s15, 15")
    a("s_waitcnt lgkmcnt(0)")
    if cfg.diag: stamp(a, 1)
    srd(a, 16, 4, XBYTES)
    srd(a, 20, 6, WBYTES)
    if cfg.order:
        a("s_cmp_eq_u32 s95, s3")
        a("s_cbranch_scc1 L_go")
        a("s_barrier")
        a.label("L_go")
    a("s_cmp_eq_u32 s95, 1")
    a("s_cbranch_scc0 L_w_it")
    a.label("L_x_loop")
    for blk in range(4):
        a(f"s_bitcmp1_b32 s15, {blk}")
        a(f"s_cbranch_scc0 " + (f"L_x{blk}" if blk < 3 else "L_x_next"))
        for k in range(3 * blk, min(3 * blk + 3, 11)):
            a("s_mov_b32 m0, s56")
            a("s_add_u32 s56, s56, s14")
            a(f"buffer_load_dwordx4 v{2+k}, s[16:19], s57 offen{cfg.xflag} lds")
        if blk < 3: a.label(f"L_x{blk}")
    a("s_cmp_lg_u32 s55, 0")
    a("s_cbranch_scc1 L_x_sig")
    if cfg.diag: stamp(a, 2)
    if cfg.order:
        a("s_cmp_eq_u32 s3, 0")
        a("s_cbranch_scc1 L_x_nb")
    a("s_barrier")
    a.label("L_x_nb")
    a("v_mov_b32 v26, 1")
    a("s_waitcnt vmcnt(0)")
    a("ds_write_b32 v30, v26")
    trace(45, 0)
    a.label("L_w_it")
    a("s_add_u32 m0, s54, s40")
    a("s_add_u32 s50, s37, s41")
    for k in range(3):
        a(f"buffer_load_dwordx4 v{20+k}, s[20:23], s50 offen offset:{k*1024}{cfg.wflag} lds")
    a("s_addk_i32 s40, 3072")
    a("s_add_u32 s41, s41, s42")
    a(f"s_xor_b32 s42, s42, {3072 ^ (92160 - 3072)}")
    a(f"s_cmpk_eq_u32 s40, {WBUF}")
    a("s_cselect_b32 s40, 0, s40")
    a("s_cselect_b32 s41, 0, s41")
    a("s_sub_u32 s43, s43, 1")
    a("s_cbranch_scc0 L_w_it")
    a("s_cmp_lg_u32 s55, 0")
    a("s_cbranch_scc1 L_w_adv")
    a("s_cmp_eq_u32 s95, 1")
    a("s_cbranch_scc1 L_x_w1")
    if cfg.order:
        a("s_cmp_eq_u32 s3, 1")
        a("s_cbranch_scc1 L_w_nb1")
    a("s_barrier")
    a.label("L_w_nb1")
    a("s_mov_b32 s55, s32")
    a("s_mov_b32 s53, s32")
    a(f"s_mul_i32 s50, s32, {WBUF}")
    a("s_add_u32 s54, s54, s50")
    a("v_mov_b32 v31, s32")
    a.label("L_w_adv")
    trace(44, "s55")
    a("v_add_u32 v31, 2, v31")
    a("s_waitcnt vmcnt(0)")
    a("ds_write_b32 v30, v31")
    trace(45, "s55")
    a(f"s_sub_u32 s54, s54, {WBUF}")
    a(f"s_cmp_lt_u32 s54, {WBASE}")
    a(f"s_cselect_b32 s50, {3*WBUF}, 0")
    a("s_add_u32 s54, s54, s50")
    a("s_add_u32 s53, s53, 2")
    a("s_cmp_ge_u32 s53, 5")
    a("s_cselect_b32 s50, 5, 0")
    a("s_sub_u32 s53, s53, s50")
    a("s_lshr_b32 s50, s50, 2")
    a("s_add_u32 s52, s52, s50")
    a("s_cmp_eq_u32 s52, 3")
    a("s_cselect_b32 s52, 0, s52")
    a("s_mul_i32 s37, s53, 3")
    a("s_add_u32 s37, s37, s52")
    a("s_mul_i32 s37, s37, 6144")
    a("s_mov_b32 s43, 9")
    a("s_mov_b32 s51, s55")
    a("s_add_u32 s55, s55, 2")
    a("s_cmp_eq_u32 s51, 0")
    a("s_cbranch_scc1 L_w_it")
    a("s_cmp_ge_u32 s55, 15")
    a("s_cbranch_scc1 L_store")
    a("v_and_b32 v23, 3, v1")
    a("v_lshlrev_b32 v23, 8, v23")
    a(f"v_add_u32 v23, {FLAGS + 1024}, v23")
    poll(a, "L_w_poll", 23, 24, "s51", cfg.sleep)
    trace(46, "s55")
    a("s_branch L_w_it")
    if cfg.pad4:
        a.label("L_padl")
        a("s_branch L_compute")
    a.label("L_x_w1")
    C = sum(((thr << 4) | m) << (8 * k) for k, (thr, m) in enumerate(cfg.xb))
    assert len(cfg.xb) <= 8
    a(f"s_mov_b32 s92, {C & 0xffffffff:#x}")
    a(f"s_mov_b32 s93, {C >> 32:#x}")
    a("s_mov_b32 s55, 1")
    if cfg.trace: a("s_mov_b32 s51, 1")
    a.label("L_x_sig")
    a("v_add_u32 v31, 5, v31")
    a("s_waitcnt vmcnt(0)")
    a("ds_write_b32 v30, v31")
    trace(45, "s51")
    a("s_mul_i32 s50, s14, -11")
    a("s_add_u32 s56, s56, s50")
    a(f"s_add_u32 s56, s56, {XCH}")
    a("s_add_u32 s57, s57, 64")
    a("s_cmp_eq_u32 s57, 192")
    a("s_cselect_b32 s57, 0, s57")
    a.label("L_x_next")
    a("s_and_b32 s15, s92, 15")
    a("s_cbranch_scc0 L_store")
    a("s_bfe_u32 s51, s92, 0x40004")
    a("s_lshr_b64 s[92:93], s[92:93], 8")
    a("v_and_b32 v22, 1, v1")
    a(f"v_lshlrev_b32 v22, 8, v22")
    a(f"v_add_u32 v22, {FLAGS}, v22")
    poll(a, "L_x_poll", 22, 23, "s51", cfg.sleep)
    trace(44, "s51")
    a("s_branch L_x_loop")
    a.label("L_store")
    srd(a, 24, 8, XBYTES)
    a("s_movk_i32 s49, 208")
    a("s_movk_i32 s50, 384")
    a("v_lshrrev_b32 v11, 2, v1")
    a("v_and_b32 v12, 3, v1")
    a("v_lshlrev_b32 v12, 4, v12")
    a("v_mad_u32_u24 v5, v11, s50, v12")
    a("v_mad_u32_u24 v2, v11, s49, v12")
    a("v_and_b32 v10, 1, v1")
    a("v_lshlrev_b32 v10, 8, v10")
    a("s_lshl_b32 s39, s95, 9")
    a(f"s_add_u32 s39, s39, {FLAGS + 1024}")
    a("v_add_u32 v10, s39, v10")
    a("s_add_u32 s45, s35, s36")
    a("s_or_b32 s38, s34, s95")
    a("s_cmp_eq_u32 s33, 8")
    a("s_cselect_b32 s38, 1, s38")
    a("s_cselect_b32 s43, 6, 7")
    a("s_xor_b32 s38, s38, 1")
    a("s_andn2_b32 s44, s34, s95")
    a("s_add_u32 s39, s34, 6")
    a("s_mul_i32 s39, s39, s95")
    a("s_add_u32 s39, s39, s44")
    a("s_add_u32 s39, s39, 5")
    a("s_cmp_eq_u32 s38, 1")
    a("s_cselect_b32 s39, 0, s39")
    a("s_cselect_b32 s42, 1, -1")
    def rowsetup():
        a("s_mul_i32 s40, s11, s42")
        a("s_add_u32 s39, s39, s40")
        a(f"s_mul_i32 s47, s39, {PROW}")
        a("s_add_u32 s47, s47, s45")
        a(f"s_mul_i32 s48, s39, {SROW}")
        a("v_add_u32 v12, s48, v2")
        a(f"s_mul_i32 s40, s42, {2*PROW}")
        a(f"s_mul_i32 s41, s42, {2*SROW}")
    rowsetup()
    a("s_add_u32 s51, s11, 16")
    a("s_add_u32 s44, s44, 22")
    a.label("L_st_m")
    poll(a, "L_st_mp", 10, 11, "s51", cfg.sleep)
    a(f"ds_read_b128 {vr(16,4)}, v12 offset:64")
    a("v_add_u32 v12, s41, v12")
    a("s_add_u32 s51, s51, 2")
    a("s_waitcnt lgkmcnt(0)")
    a(f"buffer_store_dwordx4 {vr(16,4)}, v5, s[24:27], s47 offen offset:64{cfg.stflag}")
    a("s_add_u32 s47, s47, s40")
    a("s_cmp_lt_u32 s51, s44")
    a("s_cbranch_scc1 L_st_m")
    if cfg.stprio: a(f"s_setprio {cfg.stprio}")
    a("s_cmp_eq_u32 s95, 1")
    a("s_cselect_b32 s39, s43, s34")
    a("s_cmp_eq_u32 s38, 1")
    a("s_cselect_b32 s39, 5, s39")
    a("s_sub_u32 s42, 0, s42")
    rowsetup()
    a("s_add_u32 s51, s11, 25")
    a("s_and_b32 s38, s38, s11")
    a("s_cbranch_scc0 L_st_go")
    a("v_and_b32 v28, 3, v1")
    a("v_lshlrev_b32 v28, 8, v28")
    a(f"v_add_u32 v28, {FLAGS + 1024}, v28")
    a(f"s_add_u32 s45, s45, {6*PROW}")
    poll(a, "L_st_s1", 28, 11, 24, cfg.sleep2)
    for k in range(2): a(f"ds_read_b128 {vr(16+4*k,4)}, v2 offset:{6*SROW + 128*k}")
    for k in range(2):
        a(f"s_waitcnt lgkmcnt({1-k})")
        a(f"buffer_store_dwordx4 {vr(16+4*k,4)}, v5, s[24:27], s45 offen offset:{128*k}{cfg.stflag}")
    a.label("L_st_go")
    poll(a, "L_st_p1", 10, 11, "s51", cfg.sleep2)
    for k in range(2): a(f"ds_read_b128 {vr(16+4*k,4)}, v12 offset:{128*k}")
    a("v_add_u32 v12, s41, v12")
    a("s_add_u32 s51, s51, 2")
    for k in range(2):
        a(f"s_waitcnt lgkmcnt({1-k})")
        a(f"buffer_store_dwordx4 {vr(16+4*k,4)}, v5, s[24:27], s47 offen offset:{128*k}{cfg.stflag}")
    a("s_add_u32 s47, s47, s40")
    a("s_cmp_lt_u32 s51, 30")
    a("s_cbranch_scc1 L_st_go")
    a.label("L_st_end")
    if cfg.amp == "all": a("s_branch L_ampall")
    if cfg.diag:
        stamp(a, 5)
        a("s_waitcnt vmcnt(0)")
        stamp(a, 6)
        dump_stamps(a, cfg)
    a.label("L_exit")
    a("s_endpgm")
    a.label("L_compute")
    if cfg.cbar == 0:
        a("s_waitcnt lgkmcnt(0)")
        a("s_barrier")
    a("s_sub_u32 s37, s32, 4")
    a("s_and_b32 s38, s37, 1")
    a("s_lshr_b32 s37, s37, 1")
    a("s_add_u32 s39, s34, 6")
    a("s_mul_i32 s49, s37, s39")
    a(f"v_mov_b32 v{V_CP}, v30")
    a(f"v_mov_b32 v{V_PV}, 0")
    a("v_and_b32 v32, 15, v1")
    a("v_lshrrev_b32 v33, 4, v1")
    a("v_and_b32 v34, 1, v33")
    a("v_lshrrev_b32 v35, 1, v33")
    a("v_bfe_u32 v36, v1, 2, 2")
    a("v_and_b32 v37, 3, v1")
    a(f"v_lshlrev_b32 v{V_LF}, 8, v37")
    a(f"v_add_u32 v{V_LF}, {FLAGS}, v{V_LF}")
    a(f"v_or_b32 v16, 512, v{V_LF}")
    a(f"v_xor_b32 v17, 512, v16")
    a("s_lshl_b32 s39, s38, 7")
    a("v_lshlrev_b32 v40, 5, v34")
    a("v_lshl_add_u32 v40, v35, 4, v40")
    a("v_add_u32 v40, s39, v40")
    a("s_lshl_b32 s39, s38, 5")
    a("s_add_u32 s39, s39, 64")
    a("v_lshlrev_b32 v41, 3, v33")
    a("v_add_u32 v41, s39, v41")
    a("v_mul_u32_u24 v38, 384, v32")
    a("v_add_u32 v38, s36, v38")
    a(f"v_add_u32 v{V_SA}, v38, v40")
    a(f"v_add_u32 v{V_SC}, v38, v41")
    a("v_mul_u32_u24 v38, 208, v32")
    a(f"s_mul_i32 s39, s49, {SROW}")
    a("v_add_u32 v38, s39, v38")
    a("s_lshl_b32 s39, s38, 7")
    a(f"v_lshl_add_u32 v{V_GA}, v33, 3, v38")
    a(f"v_add_u32 v{V_GA}, s39, v{V_GA}")
    a(f"v_add_u32 v{V_GB}, v38, v41")
    a(f"s_mul_i32 s47, s49, {PROW}")
    a("s_add_u32 s47, s47, s35")
    a("v_lshl_add_u32 v38, v33, 3, v36")
    a("v_mul_u32_u24 v38, 192, v38")
    a("v_lshl_add_u32 v38, v37, 3, v38")
    a(f"v_add_u32 v38, {WBASE}, v38")
    a("s_add_u32 s39, s38, 2")
    a("v_xor_b32 v39, s39, v34")
    a(f"v_lshl_add_u32 v{V_WA[0]}, v39, 5, v38")
    a("s_lshl_b32 s39, s38, 2")
    a("v_xor_b32 v39, s39, v34")
    a(f"v_lshl_add_u32 v{V_WA[1]}, v39, 5, v38")
    a("v_xor_b32 v39, 1, v39")
    a(f"v_lshl_add_u32 v{V_WA[2]}, v39, 5, v38")
    a("v_lshlrev_b32 v38, 6, v32")
    a("v_lshl_add_u32 v38, v33, 4, v38")
    a(f"s_mul_i32 s39, s49, {XROW}")
    a(f"v_add_u32 v{V_XL}, s39, v38")
    a(f"v_lshrrev_b32 v{V_T}, 3, v{V_XL}")
    a(f"v_and_b32 v{V_T}, 32, v{V_T}")
    a(f"v_xor_b32 v{V_XA[0]}, v{V_XL}, v{V_T}")
    a(f"v_xor_b32 v{V_XA[1]}, 32, v{V_XA[0]}")
    if cfg.mov64:
        for k in range(0, 84, 2): a(f"v_mov_b64 {vr(V_ACC+k,2)}, 0")
    else:
        for k in range(84): a(f"v_mov_b32 v{V_ACC+k}, 0")
    a(f"s_mov_b32 s40, {(1 << 6) | (1 << 11)}")
    a(f"s_mov_b32 s41, {sum(1 << (h + 1) for h in (3, 6, 9, 12))}")
    a(f"s_mov_b32 s44, {(-2*WBUF) & 0xffffffff}")
    a(f"s_mov_b32 s45, {WBUF}")
    a("s_mov_b32 s46, 2")
    if cfg.cbar == 1:
        a("s_waitcnt lgkmcnt(0)")
        a("s_barrier")
    if cfg.diag: stamp(a, 1)
    srd(a, 24, 8, XBYTES)
    if cfg.prio: a(f"s_setprio {cfg.prio}")
    if cfg.amp in ("span", "skew"): srd(a, 80, 12, 256)
    for var in (1, 2, 3):
        a(f"s_cmp_eq_u32 s31, {var}")
        a(f"s_cbranch_scc1 L_pro{var}")
    if cfg.pads: a("s_branch L_pro0")
    for var in range(4):
        emit_variant(a, var, cfg)
    a.label("L_end")
    a("s_endpgm")
    out += a.text()
    nv = (V_END + 7) // 8 * 8
    out += f""".section .rodata,"a"
.p2align 6
.amdhsa_kernel {NAME}_kernel
  .amdhsa_next_free_vgpr {nv}
  .amdhsa_next_free_sgpr 96
  .amdhsa_accum_offset {nv}
  .amdhsa_group_segment_fixed_size 0
  .amdhsa_kernarg_size 40
  .amdhsa_user_sgpr_count 2
  .amdhsa_user_sgpr_kernarg_segment_ptr 1
  .amdhsa_system_sgpr_workgroup_id_x 1
.end_amdhsa_kernel
"""
    return out

if __name__ == "__main__":
    p = argparse.ArgumentParser()
    p.add_argument("-o", default="standalone__dilated_atrous__vision.s")
    p.add_argument("--diag", action="store_true")
    p.add_argument("--trace", action="store_true")
    p.add_argument("--bar_pos", type=int, default=58)
    p.add_argument("--xbar", type=int, default=40)
    p.add_argument("--lead", type=int, default=5)
    p.add_argument("--safe", type=int, default=8)
    p.add_argument("--prio", type=int, default=1)
    p.add_argument("--align", type=int, default=1)
    p.add_argument("--snake", type=int, default=1)
    p.add_argument("--exper", type=int, default=2)
    p.add_argument("--order", type=int, default=1)
    p.add_argument("--wpf", type=int, default=0)
    p.add_argument("--epf", type=int, default=0)
    p.add_argument("--cpf", type=int, default=1)
    p.add_argument("--sleep", type=int, default=2)
    p.add_argument("--sleep2", type=int, default=1)
    p.add_argument("--stflag", default="nt")
    p.add_argument("--wd", type=int, default=1)
    p.add_argument("--amp", default="")
    p.add_argument("--alead", type=int, default=20)
    p.add_argument("--entry_last", type=int, default=0)
    p.add_argument("--pad4", type=int, default=0)
    p.add_argument("--lx", type=int, default=-1)
    p.add_argument("--al8", type=int, default=0)
    p.add_argument("--shift4", type=int, default=0)
    p.add_argument("--rush", type=int, default=30)
    p.add_argument("--fill", type=int, default=0)
    p.add_argument("--pads", type=int, default=1)
    p.add_argument("--nstage", type=int, default=5)
    p.add_argument("--spec", type=int, default=1)
    p.add_argument("--stprio", type=int, default=0)
    p.add_argument("--mov64", type=int, default=1)
    p.add_argument("--xflag", default="")
    p.add_argument("--wflag", default="")
    p.add_argument("--fixd", type=int, default=0)
    p.add_argument("--wbl2", type=int, default=0)
    p.add_argument("--bench", action="store_true")
    p.add_argument("--drop", default="")
    p.add_argument("--cmpd", type=int, default=4)
    p.add_argument("--updstep", type=int, default=1)
    p.add_argument("--xthr", type=int, default=2)
    p.add_argument("--cbar", type=int, default=0)
    p.add_argument("--w2wait", type=int, default=1)
    p.add_argument("--xb", default="3:1,4:2,5:4,6:8,8:3,9:12")
    cfg = p.parse_args()
    cfg.xb = [tuple(int(v) for v in e.split(":")) for e in cfg.xb.split(",")]
    WD = cfg.wd
    if cfg.stflag: cfg.stflag = " " + cfg.stflag
    if cfg.xflag: cfg.xflag = " " + cfg.xflag
    if cfg.wflag: cfg.wflag = " " + cfg.wflag
    open(cfg.o, "w").write(gen(cfg))
```

```python
import sys, argparse

NAME = "standalone__dilated_atrous__vision"
XBYTES = 224 * 224 * 96 * 2
WBYTES = 25 * 96 * 96 * 2
ROWB = 224 * 192
PROW = 2 * ROWB
XCH = 352 * 64
XROW = 20 * 64
WBASE = 3 * XCH
WBUF = 5 * 6144
FLAGS = WBASE + 3 * WBUF
LDS_TOTAL = FLAGS + 2048
SROW = 16 * 208
assert 13 * SROW <= 2 * XCH

class Asm:
    def __init__(self):
        self.lines = []
    def __call__(self, s):
        self.lines.append("    " + s)
    def label(self, l):
        self.lines.append(l + ":")
    def comment(self, s):
        self.lines.append("    ; " + s)
    def text(self):
        return "\n".join(self.lines) + "\n"

def vr(b, n):
    return f"v[{b}:{b+n-1}]"

V_XL = 1
V_XA = (2, 3)
V_WA = (4, 5, 6)
V_SA, V_SC = 7, 8
V_GA, V_GB = 9, 10
V_T = 11
V_XB = (22, 23)
V_CP = 25
V_LF = 26
V_PV = 27
V_F = 28
V_X = 32
V_W = 76
V_ACC = 136
V_EXTRA = V_ACC + 84
V_END = V_EXTRA + 32

TYPES = {
    0: (range(0, 6), range(0, 7), range(0, 6)),
    1: (range(0, 6), range(1, 7), range(0, 7)),
    2: (range(0, 7), range(1, 7), range(1, 7)),
    3: (range(0, 6), range(0, 6), range(0, 6)),
}
OFF = {0: 0, 1: 1, 2: 1, 3: 0}
SPECIAL = {0: 6, 1: 0, 2: 0, 3: None}
LASTHEAD = {
    0: [(0, 0), (0, 1), (6, 1), (0, 2)],
    1: [(0, 0), (1, 0), (1, 1), (0, 2), (1, 2)],
    2: [(0, 0), (1, 0), (1, 1), (2, 0), (1, 2), (2, 1), (2, 2)],
    3: [(0, 0), (0, 1), (1, 0), (0, 2), (1, 1), (1, 2)],
}

def acc(rho, t): return V_ACC + 4 * (rho * 3 + t)
def wreg(i, t): return V_W + 4 * (i * 3 + t)
def xreg(q): return V_X + 4 * q

def chain(rho, t, rev):
    r = list(range(5))
    if rev: r.reverse()
    return [(rho, i, t, rho + i) for i in r]

def steady_order(var, cfg, par=(1, 1, 1)):
    ms = []
    for t in range(3):
        for j, rho in enumerate(TYPES[var][t]): ms += chain(rho, t, cfg.snake and j % 2 == par[t])
    return ms

DIRECT = {0: (5,), 1: (6, 5), 2: (6,), 3: (5,)}

def last_tiles(var):
    order = list(LASTHEAD[var])
    rows = [r for r in range(7) if r not in DIRECT[var]] + list(DIRECT[var])
    for r in rows:
        for t in ((0, 1, 2) if r not in DIRECT[var] else (1, 2, 0)):
            if r in TYPES[var][t] and (r, t) not in order: order.append((r, t))
    return order

def last_order(var, cfg, par=1):
    ms = []
    for j, (r, t) in enumerate(last_tiles(var)): ms += chain(r, t, cfg.snake and j % 2 == par and j >= 4)
    return ms

def uses(ms):
    first, last = {}, {}
    for k, (rho, i, t, q) in enumerate(ms):
        for key in (("w", i, t, 0), ("w", i, t, 1), ("x", q)):
            first.setdefault(key, k); last[key] = k
    return first, last

def read_text(nm):
    if nm[0] == "x":
        q = nm[1]
        return f"ds_read_b128 {vr(xreg(q),4)}, v{V_XA[q & 1]} offset:{q*XROW}"
    _, i, t, h = nm
    return f"ds_read_b64_tr_b16 {vr(wreg(i,t)+2*h,2)}, v{V_WA[t]} offset:{i*6144 + h*768}"

def edf(reads, lo, hi, lead, busy=()):
    placed, pending = {}, list(reads)
    for k in range(lo, hi):
        avail = [r for r in pending if r[1] <= k]
        if not avail: continue
        r = min(avail, key=lambda r: r[2])
        placed[k] = r[0]
        pending.remove(r)
        assert r[2] - k >= lead, (r, k)
    assert not pending, pending
    return placed

def mfma_text(m):
    rho, i, t, q = m
    return f"v_mfma_f32_16x16x32_bf16 {vr(acc(rho,t),4)}, {vr(wreg(i,t),4)}, {vr(xreg(q),4)}, {vr(acc(rho,t),4)}"

class LdsQ:
    def __init__(self, a, safe):
        self.a, self.safe = a, safe
        self.ops = []
        self.done = 0
        self.waits = []
    def issue(self, name, time, text=None):
        self.ops.append((name, time))
        if text: self.a(text)
    def need(self, names, time):
        idx = max(max(j for j, (nm, _) in enumerate(self.ops) if nm == n) for n in names) + 1
        if idx <= self.done: return
        for j, (nm, tm) in enumerate(self.ops):
            if tm <= time - 1 - self.safe: idx = max(idx, j + 1)
        cnt = len(self.ops) - idx
        if cnt > 14:
            idx += cnt - 14; cnt = 14
        self.a(f"s_waitcnt lgkmcnt({cnt})")
        self.waits.append((time, cnt, len(self.ops)))
        self.done = idx

WD = 1
def poll(a, label, vaddr, vtmp, sneed, sleep, wd=True):
    a.label(label)
    if WD and wd:
        a("s_add_u32 s94, s94, 1")
        a("s_bitcmp1_b32 s94, 18")
        a("s_cbranch_scc1 L_exit")
    a(f"ds_read_b32 v{vtmp}, v{vaddr}")
    a("s_waitcnt lgkmcnt(0)")
    a(f"v_cmp_gt_u32 vcc, {sneed}, v{vtmp}")
    if sleep:
        a(f"s_cbranch_vccz {label}_ok")
        a(f"s_sleep {sleep}")
        a(f"s_branch {label}")
        a.label(label + "_ok")
    else:
        a(f"s_cbranch_vccnz {label}")

def isize(l):
    l = l.strip()
    op = l.split()[0]
    if op.startswith(("v_mfma", "ds_", "buffer_", "v_cvt_pk")) or op.endswith("_e64"): return 8
    import re
    for tok in re.split(r"[ ,]+", l)[1:]:
        if re.fullmatch(r"-?\d+|0x[0-9a-f]+", tok) and not op.startswith(("s_waitcnt", "s_nop")):
            v = int(tok, 0)
            if not (-16 <= v <= 64): return 8
    return 4

def align8(lines):
    out = []
    for l in lines:
        op = l.strip().split()[0]
        if op.startswith("v_") and isize(l) == 4:
            l = l.replace(op, op + "_e64", 1)
        out.append(l)
    res, off = [], 0
    for l in out:
        sz = isize(l)
        if sz == 8 and off % 8 == 4:
            res.append("    s_nop 0"); off += 4
        res.append(l); off += sz
    if off % 8 == 4: res.append("    s_nop 0")
    return res

def emit_variant(a, var, cfg):
    bar = cfg.bar_pos if var != 3 else cfg.bar_pos - 3
    best = None
    for par in [(p0, 1, p2) for p0 in (1, 0) for p2 in (1, 0)]:
        ms = steady_order(var, cfg, par)
        n = len(ms)
        first, last = uses(ms)
        reads = [(key, max(last[key], bar, n if (key[0] == "w" and key[2] == 2) else 0), n + first[key]) for key in first]
        placed = edf(reads, bar, n + bar - 16, 0)
        ld = min(n + first[nm] - k for k, nm in placed.items())
        if best is None or ld > best[0]: best = (ld, par, ms, first, last, placed)
    ld, par, ms, first, last, placed = best
    print(f"variant {var}: snake parity {par}, min lead {ld}", file=sys.stderr)
    tail = [(k, placed[k]) for k in sorted(placed) if k < n]
    head = [(k - n, placed[k]) for k in sorted(placed) if k >= n]
    slow = []
    hb, tb = Asm(), Asm()
    q = LdsQ(hb, cfg.safe)
    for k, nm in tail: q.issue(nm, k - n)
    headd, taild = dict(head), dict(tail)
    extra = {}
    def put(k, s): extra.setdefault(k, []).append(s)
    krel = max(k for k, nm in head) + 1
    put(krel - 1, f"v_add_u32 v{V_PV}, 1, v{V_PV}")
    upd = ["s_bitcmp1_b32 s40, s46", f"s_cselect_b32 s42, {XCH - 4*64}, 64",
           "s_bitcmp1_b32 s41, s46", "s_cselect_b32 s43, s44, s45",
           "s_cmp_eq_u32 s46, 16", "s_cselect_b32 s49, 1000, s46",
           f"v_add_u32 v{V_XL}, s42, v{V_XL}", f"v_lshrrev_b32 v{V_T}, 3, v{V_XL}", f"v_and_b32 v{V_T}, 32, v{V_T}",
           f"v_xor_b32 v{V_XA[0]}, v{V_XL}, v{V_T}", f"v_xor_b32 v{V_XA[1]}, 32, v{V_XA[0]}"]
    upd += [f"v_add_u32 v{V_WA[t]}, s43, v{V_WA[t]}" for t in range(3)]
    b0 = krel + 2
    for j, u in enumerate(upd): put(b0 + cfg.updstep * j, u)
    kflag = bar - cfg.cmpd - 9
    assert b0 + cfg.updstep * len(upd) <= kflag
    cur = hb
    for k, m in enumerate(ms):
        rho, i, t, qq = m
        q.need([("w", i, t, 0), ("w", i, t, 1), ("x", qq)], k)
        cur(mfma_text(m))
        D = cfg.drop
        for s in extra.get(k, []): cur(s)
        if k == krel: q.issue(("rel",), k, f"ds_write_b32 v{V_CP}, v{V_PV}")
        if k == kflag: q.issue(("flag",), k, f"ds_read_b32 v{V_F}, v{V_LF}")
        if k == bar - cfg.cmpd - 1: q.need([("flag",)], k + 1)
        if k == bar - cfg.cmpd: cur(f"v_cmp_gt_u32 vcc, s49, v{V_F}")
        if k == bar:
            cur = tb; q.a = tb
        drop = lambda nm: ("l" in D and k in taild) or ("w" in D and nm[0] == "w" and k in taild) or ("x" in D and nm[0] == "x")
        if k in headd: q.issue(headd[k], k, read_text(headd[k]) if not drop(headd[k]) else None)
        if k in taild: q.issue(("next",) + taild[k], k, read_text(taild[k]) if not drop(taild[k]) else None)
        if k == n - 9: cur("s_add_u32 s46, s46, 1")
    bases = {0: (0,), 1: (6,), 2: (0,), 3: (0, 6, 7)}[var]
    def rowstage(r): return 1 if (r <= 2 or 5 <= r <= 10) else (2 if r <= 11 else 3)
    def stage(nm):
        if nm[0] == "w": return 1 if nm[1] <= 2 else 2
        return max(rowstage(b + nm[1]) for b in bases)
    opsof = lambda m: [("w", m[1], m[2], 0), ("w", m[1], m[2], 1), ("x", m[3])]
    hm = list(enumerate(ms[:bar + 1]))
    hm.sort(key=lambda e: (max(stage(nm) for nm in opsof(e[1])), e[0]))
    hm = [m for _, m in hm]
    nH = len(hm)
    hf, _ = uses(hm)
    st_first = {}
    for k, m in enumerate(hm): st_first.setdefault(max(stage(nm) for nm in opsof(m)), k)
    stages = sorted(set(stage(nm) for nm in first))
    kb = {1: -1}
    for sg in stages[1:]:
        kb[sg] = max(st_first.get(sg, nH - 30) - cfg.hlead, kb[max(x for x in kb)] + cfg.fd + 2, cfg.fd)
    def emit_entry():
        a.label(f"L_pro{var}")
        poll(a, f"L_p0_{var}", V_LF, V_F, 1, 0)
        if cfg.diag: stamp(a, 3)
        if cfg.amp:
            a("s_memrealtime s[86:87]")
            a("s_waitcnt lgkmcnt(0)")
        q1 = LdsQ(a, cfg.safe)
        pend = sorted(first, key=lambda nm: hf.get(nm, nH + first[nm]))
        for nm in [p for p in pend if hf.get(p, 999) < cfg.burst and stage(p) == 1]:
            q1.issue(nm, -1, read_text(nm)); pend.remove(nm)
        fixed = {}
        for sg in stages[1:]:
            fixed.setdefault(kb[sg] - cfg.fd, []).append(("flag", sg))
            fixed.setdefault(kb[sg] - 1, []).append(("cmp", sg))
            fixed.setdefault(kb[sg], []).append(("br", sg))
        todo = [f"v_add_u32 v{V_PV}, 1, v{V_PV}", "REL"] + upd
        kf = nH - 1 - cfg.cmpd - 9
        for k, m in enumerate(hm):
            q1.need(opsof(m), k)
            a(mfma_text(m))
            cnt = 0
            for what, sg in fixed.get(k, []):
                cnt += 1
                if what == "flag": q1.issue(("fl", sg), k, f"ds_read_b32 v{V_F}, v{V_LF}")
                elif what == "cmp":
                    q1.need([("fl", sg)], k + 1 - cfg.safe)
                    a(f"v_cmp_gt_u32 vcc, {sg}, v{V_F}")
                else:
                    a(f"s_cbranch_vccnz L_sl{var}_{sg}")
                    a.label(f"L_sk{var}_{sg}")
                    slow.append((f"L_sl{var}_{sg}", V_LF, sg, f"L_sk{var}_{sg}"))
            if k == kf:
                q1.issue(("flag",), k, f"ds_read_b32 v{V_F}, v{V_LF}"); cnt += 1
            if k == nH - 1 - cfg.cmpd - 1:
                a("s_waitcnt lgkmcnt(0)"); q1.done = len(q1.ops); cnt += 1
            if k == nH - 1 - cfg.cmpd:
                assert not any(t.startswith("s_c") for t in todo)
                a(f"v_cmp_gt_u32 vcc, s49, v{V_F}"); cnt += 1
            while cnt < (cfg.hcap if k >= 8 else 2):
                av = [p for p in pend if kb[stage(p)] <= k]
                if av:
                    q1.issue(av[0], k, read_text(av[0])); pend.remove(av[0])
                elif not pend and todo and cnt < (2 if len(todo) > nH - 6 - k else 1):
                    t = todo.pop(0)
                    if t == "REL": q1.issue(("rel",), k, f"ds_write_b32 v{V_CP}, v{V_PV}")
                    else: a(t)
                else: break
                cnt += 1
            assert not (k >= kf and pend)
        assert not pend and not todo, (pend, todo)
        if cfg.diag: a("s_memtime s[64:65]")
        a(f"s_branch L_sync{var}")
    print(f"   first head: {nH} mfmas, stage starts {st_first}, checks {kb}", file=sys.stderr)
    if cfg.pads:
        a.label(f"L_pad{var}")
        a("s_branch L_compute")
    def emit_slow():
        poll(a, f"L_slow{var}", V_LF, V_F, "s49", 0)
        if cfg.diag:
            a("s_bitset1_b32 s95, s46")
            a("s_cmp_lg_u32 s46, 4")
            a(f"s_cbranch_scc1 L_dg{var}")
            a("s_memtime s[74:75]")
            a("s_waitcnt lgkmcnt(0)")
            a.label(f"L_dg{var}")
        a("s_cmp_eq_u32 s46, 16")
        a(f"s_cbranch_scc1 L_fin{var}")
        a(f"s_branch L_top{var}")
        for lab, va, need, back in slow:
            poll(a, lab, va, V_F, need, 0)
            if cfg.diag: a(f"s_bitset1_b32 s95, {need}")
            a(f"s_branch {back}")
    if not cfg.entry_last: emit_entry()
    if cfg.slow_near: emit_slow()
    if cfg.al8:
        hb.lines = align8(hb.lines); tb.lines = align8(tb.lines)
    if cfg.align: a(".p2align 6")
    a.label(f"L_top{var}")
    a.lines += tb.lines
    a.label(f"L_head{var}")
    a.lines += hb.lines
    a.label(f"L_sync{var}")
    a(f"s_cbranch_vccz L_top{var}")
    a("s_min_u32 s49, s49, 17")
    a(f"v_cmp_gt_u32 vcc, s49, v{V_F}")
    a(f"s_cbranch_vccnz L_slow{var}")
    a.label(f"L_fin{var}")
    a.lines += tb.lines
    if cfg.diag: stamp(a, 4)
    if cfg.cpf: a("s_waitcnt vmcnt(0)")
    rows = TYPES[var]
    down = var == 0
    prow = sorted(set(rows[1]) | set(rows[2]), reverse=down)
    lastrow = prow[-1]
    srow2 = sorted(rows[0], reverse=not down)
    def build(pa, pb):
        out = []
        for j, r in enumerate(rows[0]):
            out += [m + (13, 0) for m in chain(r, 0, cfg.snake and j % 2 == pa)]
        for j, r in enumerate(srow2):
            out += [m + (14, 0) for m in chain(r, 0, cfg.snake and j % 2 == pb)]
        keep = set(range(srow2[-1], srow2[-1] + 5))
        flip = 0
        tiles = []
        for r in prow:
            ts = [t for t in ((1, 2) if flip == 0 else (2, 1)) if r in rows[t]]
            if r == lastrow: ts = [1, 2]
            for j, t in enumerate(ts):
                gs = (14, 13) if j == 0 else (13, 14)
                for g in gs:
                    for m in chain(r, t, (j == 1) != down):
                        out.append(m + (g, 0 if (g == 14 and m[3] in keep) else 1))
                tiles.append((r, t))
            flip = 0 if ts[-1] == 1 else 1
        return out, tiles
    def names(m):
        rho, i, t, qq, g, occ = m
        return [("w", g, i, t, 0), ("w", g, i, t, 1), ("x", g, qq, occ)]
    frag = lambda nm: nm if nm[0] == "x" else nm[:4]
    conv = lambda nm: ("x", 13, nm[1], 0) if nm[0] == "x" else ("w", 13) + nm[1:]
    pre = [(k - n, conv(nm)) for k, nm in tail]
    prenames = set(nm for _, nm in pre)
    slots = [V_X + 4 * j for j in range(26)] + [V_EXTRA + 4 * j for j in range(8)]
    best = None
    for pa in (1, 0):
      for pb in (1, 0):
        ls, ptiles = build(pa, pb)
        lf, ll = {}, {}
        for k, m in enumerate(ls):
            for nm in names(m):
                lf.setdefault(nm, k); ll[nm] = k
        free = {sl: 0 for sl in slots}
        regs = {}
        for nm in prenames:
            sl = xreg(nm[2]) if nm[0] == "x" else wreg(nm[2], nm[3])
            regs[frag(nm)] = sl
            free[sl] = max(free[sl], ll.get(nm, 0))
        rds, early = [], {}
        for nm in sorted(lf, key=lambda v: lf[v]):
            if nm in prenames: continue
            fr = frag(nm)
            if fr not in regs:
                ok = [sl for sl in slots if free[sl] <= lf[nm] - cfg.alead]
                sl = max(ok, key=lambda v: free[v]) if ok else min(slots, key=lambda v: free[v])
                regs[fr] = sl; early[fr] = free[sl]; free[sl] = ll[nm]
            e = early.get(fr, 0)
            if nm[0] == "x" and nm[1] == 14: e = max(e, 6)
            rds.append((nm, e, lf[nm]))
        try: lp = edf(rds, 0, len(ls), 0)
        except AssertionError: continue
        ld2 = min([lf[nm] - k for k, nm in lp.items()] + [lf[nm] - k for k, nm in pre if nm in lf])
        if best is None or ld2 > best[0]: best = (ld2, (pa, pb), ls, lf, lp, regs, ptiles)
    ld2, pars, ls, lf, lplaced, regs, ptiles = best
    print(f"   final segment: parity {pars} min lead {ld2} reads {len(lplaced)}", file=sys.stderr)
    def rd_text(nm):
        if nm[0] == "x":
            _, g, qq, occ = nm
            return f"ds_read_b128 {vr(regs[nm],4)}, v{(V_XA if g == 13 else V_XB)[qq & 1]} offset:{qq*XROW}"
        _, g, i, t, h = nm
        return f"ds_read_b64_tr_b16 {vr(regs[frag(nm)]+2*h,2)}, v{V_WA[t]} offset:{(g-13)*WBUF + i*6144 + h*768}"
    n2 = len(ls)
    q = LdsQ(a, cfg.safe)
    for k, nm in pre: q.issue(nm, k)
    endk = {}
    for k, m in enumerate(ls): endk[(m[0], m[2])] = k
    def cvt2(D, S, tile):
        return [(tile, f"v_cvt_pk_bf16_f32 v{D}, v{S}, v{S+1}"), (tile, f"v_cvt_pk_bf16_f32 v{D+1}, v{S+2}, v{S+3}")]
    seq = [(None, f"v_add_u32 v{V_XL}, 64, v{V_XL}"), (None, f"v_lshrrev_b32 v{V_T}, 3, v{V_XL}"), (None, f"v_and_b32 v{V_T}, 32, v{V_T}"),
           (None, f"v_xor_b32 v{V_XB[0]}, v{V_XL}, v{V_T}"), (None, f"v_xor_b32 v{V_XB[1]}, 32, v{V_XB[0]}")]
    for j, r in enumerate(srow2):
        S = acc(r, 0)
        seq += cvt2(S, S, (r, 0))
        seq += [(None, f"v_mov_b32 v{V_PV}, {16 + j}"), (None, f"ds_write_b64 v{V_GB}, {vr(S,2)} offset:{r*SROW}"),
                (None, f"ds_write_b32 v{V_CP}, v{V_PV}")]
    kfull, seen = 0, set()
    for (r, t) in ptiles:
        S = acc(r, t)
        if r != lastrow:
            seq += cvt2(S, S, (r, t))
            pv = None
            if not (r in rows[1] and r in rows[2]): pv = 24
            elif r in seen:
                pv = 25 + kfull; kfull += 1
            seen.add(r)
            if pv: seq.append((None, f"v_mov_b32 v{V_PV}, {pv}"))
            seq.append((None, f"ds_write_b64 v{V_GA}, {vr(S,2)} offset:{r*SROW + (32 if t == 2 else 0)}"))
            if pv: seq.append((None, f"ds_write_b32 v{V_CP}, v{V_PV}"))
        elif t == 1:
            seq += cvt2(S, S, (r, t))
            seq.append((None, f"s_add_u32 s48, s47, {r*PROW}"))
        else:
            A = acc(r, 1)
            seq += cvt2(A + 2, S, (r, t))
            seq.append(("W2", f"v_permlane16_swap_b32 v{A}, v{A+2}"))
            seq.append((None, f"v_permlane16_swap_b32 v{A+1}, v{A+3}"))
            seq.append((None, f"buffer_store_dwordx4 {vr(A,4)}, v{V_SA}, s[24:27], s48 offen{cfg.stflag}"))
    assert kfull == 5
    def states(frm):
        c = 0
        for l in a.lines[frm + 1:]:
            l = l.strip()
            if l.endswith(":") or l.startswith(";") or l.startswith("."): continue
            c += int(l.split()[1]) + 1 if l.startswith("s_nop") else 1
        return c
    done_at = {}
    last_valu = [0]
    def missing(dep):
        if dep is None: return 0
        if dep == "W2": return max(0, 2 - states(last_valu[0]))
        if dep not in done_at: return None
        return max(0, 8 - states(done_at[dep]))
    nl = [0]
    def emit_ex(txt, k):
        for key, pat in (("C", "v_cvt"), ("P", "v_permlane"), ("V", "ds_write_b64"), ("F", "ds_write_b32"), ("S", "buffer_store")):
            if key in cfg.drop and txt.startswith(pat): return
        if txt.startswith("ds_"):
            nl[0] += 1; q.issue(("st", nl[0]), k, txt)
        else: a(txt)
        if txt.startswith("v_cvt"): last_valu[0] = len(a.lines) - 1
    for k, m in enumerate(ls):
        rho, i, t, qq, g, occ = m
        q.need(names(m), k)
        a(f"v_mfma_f32_16x16x32_bf16 {vr(acc(rho,t),4)}, {vr(regs[('w',g,i,t)],4)}, {vr(regs[('x',g,qq,occ)],4)}, {vr(acc(rho,t),4)}")
        if endk[(rho, t)] == k: done_at[(rho, t)] = len(a.lines) - 1
        cnt = 0
        if k in lplaced:
            q.issue(lplaced[k], k, rd_text(lplaced[k])); cnt += 1
        lim = cfg.exper if (k >= n2 - cfg.rush or k < 6) else 1
        if k < 6: cnt = 1
        while seq and cnt < lim and k < n2 - 1:
            miss = missing(seq[0][0])
            if miss == 0:
                emit_ex(seq.pop(0)[1], k); cnt += 1
            else:
                if miss is not None and miss > 1 and cnt == 0 and k >= n2 - cfg.fill: a("s_nop 1")
                break
    while seq:
        miss = missing(seq[0][0])
        if miss: a(f"s_nop {miss - 1}")
        emit_ex(seq.pop(0)[1], n2)
    if cfg.diag:
        stamp(a, 5)
        a("s_waitcnt vmcnt(0)")
        stamp(a, 6)
        a("s_branch L_dump")
    elif cfg.amp:
        if var == 0: a.label("L_ampall")
        a("s_waitcnt vmcnt(0)")
        a("s_memrealtime s[88:89]")
        a("s_waitcnt lgkmcnt(0)")
        if cfg.amp in ("span", "skew"):
            a("v_mov_b32 v4, 0")
            a("buffer_load_dwordx2 v[6:7], v4, s[80:83], 0 offen sc0 sc1")
            a("s_waitcnt vmcnt(0)")
            a("v_readfirstlane_b32 s86, v6")
            a("v_readfirstlane_b32 s58, v7")
            a("s_nop 3")
            a("s_not_b32 s58, s58")
        lo, hi = {"pro": (58, 86), "all": (58, 88), "loop": (86, 88), "none": (58, 58), "span": (58, 88), "skew": (58, 86)}[cfg.amp]
        a(f"s_sub_u32 s90, s{hi}, s{lo}")
        a("s_mul_i32 s90, s90, 10")
        if cfg.fixd: a(f"s_mov_b32 s90, {cfg.fixd}")
        if cfg.wbl2:
            a("buffer_wbl2 sc1")
        a.label(f"L_amp{var}")
        a("s_memrealtime s[76:77]")
        a("s_waitcnt lgkmcnt(0)")
        a("s_sub_u32 s91, s76, s88")
        a("s_cmp_lt_u32 s91, s90")
        a(f"s_cbranch_scc1 L_amp{var}")
        a("s_endpgm")
    else:
        a("s_endpgm")
    if not cfg.slow_near: emit_slow()
    if cfg.entry_last: emit_entry()

def stamp(a, idx):
    a(f"s_memtime s[{60+2*idx}:{61+2*idx}]")
    if idx in (3, 5):
        a(f"s_memrealtime s[{86 if idx == 3 else 88}:{87 if idx == 3 else 89}]")
    a("s_waitcnt lgkmcnt(0)")

def dump_stamps(a, cfg):
    a.label("L_dump")
    a("s_memrealtime s[76:77]")
    a("s_mov_b32 s78, s95")
    a("s_getreg_b32 s79, hwreg(HW_REG_XCC_ID)")
    a("s_waitcnt lgkmcnt(0)")
    a("s_mov_b32 s80, s12")
    a("s_mov_b32 s81, s13")
    a("s_mov_b32 s82, 0x100000")
    a("s_mov_b32 s83, 0x20000")
    a("s_lshl_b32 s84, s2, 3")
    a("s_add_u32 s84, s84, s32")
    a("s_lshl_b32 s84, s84, 6")
    a("v_mov_b32 v4, 0")
    for k, s in enumerate([60, 62, 64, 66, 68, 70, 72, 74, 76, 77, 78, 79, 58, 59, 86, 88]):
        a(f"v_mov_b32 v5, s{s}")
        a(f"buffer_store_dword v5, v4, s[80:83], s84 offen offset:{4*k}")
        a("s_nop 1")
    a("v_and_b32 v1, 63, v0")
    a("v_lshlrev_b32 v4, 2, v1")
    a("v_cmp_gt_u32 vcc, 16, v1")
    a("s_and_saveexec_b64 s[92:93], vcc")
    a("s_lshl_b32 s84, s84, 2")
    a("s_add_u32 s84, s84, 0x40000")
    for k in range(3):
        a(f"buffer_store_dword v{44+k}, v4, s[80:83], s84 offen offset:{64*k}")
    a("s_waitcnt vmcnt(0)")
    a("s_endpgm")

def srd(a, d, p, size):
    a(f"s_mov_b32 s{d}, s{p}")
    a(f"s_and_b32 s{d+1}, s{p+1}, 0xffff")
    a(f"s_mov_b32 s{d+2}, {size}")
    a(f"s_mov_b32 s{d+3}, 0x20000")

def gen(cfg):
    a = Asm()
    hdr = open("standalone__dilated_atrous__vision.s.ref").read().splitlines()
    head = [l for l in hdr[:8] if l.startswith(";") and "@launch" not in l]
    out = "\n".join(head) + "\n"
    out += f"; @launch grid=(256,1,1) block=(512,1,1) lds={LDS_TOTAL}\n"
    out += f""".amdgcn_target "amdgcn-amd-amdhsa--gfx950"
.text
.globl {NAME}_kernel
.p2align 8
.type {NAME}_kernel,@function
{NAME}_kernel:
"""
    def trace(reg, idx):
        if cfg.trace:
            a("s_memtime s[90:91]")
            a(f"s_mov_b32 m0, {idx}")
            a("s_waitcnt lgkmcnt(0)")
            a(f"v_writelane_b32 v{reg}, s90, m0")
    if cfg.diag:
        a("s_memtime s[60:61]")
        a("s_memrealtime s[58:59]")
        a("s_load_dwordx2 s[12:13], s[0:1], 32")
    if cfg.amp: a("s_memrealtime s[58:59]")
    if cfg.amp in ("span", "skew"): a("s_load_dwordx2 s[12:13], s[0:1], 24")
    a("s_load_dwordx4 s[4:7], s[0:1], 0")
    a("s_load_dwordx2 s[8:9], s[0:1], 16")
    if WD: a("s_mov_b32 s94, 0")
    a("s_cmp_ge_u32 s2, 256")
    a("s_cbranch_scc1 L_exit")
    if cfg.lx < 0:
        a("s_and_b32 s28, s2, 1")
        a("s_bfe_u32 s3, s2, 0x20001")
        a("s_lshl_b32 s3, s3, 5")
        a("s_lshr_b32 s33, s2, 3")
        a("s_add_u32 s3, s3, s33")
        a("s_cmp_ge_u32 s3, 126")
        a("s_cbranch_scc1 L_exit")
    else:
        a("s_and_b32 s3, s2, 7")
        a(f"s_sub_u32 s3, s3, {cfg.lx + 1}")
        a("s_and_b32 s3, s3, 7")
        a("s_lshl_b32 s3, s3, 5")
        a("s_lshr_b32 s33, s2, 3")
        a("s_add_u32 s3, s3, s33")
        a("s_cmp_ge_u32 s3, 252")
        a("s_cbranch_scc1 L_exit")
        a("s_cmp_ge_u32 s3, 224")
        a("s_cselect_b32 s33, 14, 112")
        a("s_cselect_b32 s34, 224, 0")
        a("s_cselect_b32 s29, 112, 0")
        a("s_sub_u32 s3, s3, s34")
        a("s_cmp_ge_u32 s3, s33")
        a("s_cselect_b32 s28, 1, 0")
        a("s_cselect_b32 s33, s33, 0")
        a("s_sub_u32 s3, s3, s33")
        a("s_add_u32 s3, s3, s29")
    a("v_lshrrev_b32 v2, 6, v0")
    a("v_and_b32 v1, 63, v0")
    a("v_readfirstlane_b32 s32, v2")
    a("v_lshlrev_b32 v30, 2, v0")
    a(f"v_add_u32 v30, {FLAGS}, v30")
    a("v_mov_b32 v31, 0")
    a("ds_write_b32 v30, v31")
    a("s_mul_i32 s33, s3, 4682")
    a("s_lshr_b32 s33, s33, 16")
    a("s_mul_i32 s34, s33, 14")
    a("s_sub_u32 s34, s3, s34")
    a("s_and_b32 s29, s34, 1")
    a("s_lshr_b32 s30, s34, 1")
    a("s_lshl_b32 s30, s30, 4")
    a("s_mul_i32 s31, s33, 25")
    a("s_lshr_b32 s31, s31, 1")
    a("s_and_b32 s34, s33, 1")
    a("s_lshl_b32 s35, s31, 1")
    a("s_add_u32 s35, s35, s28")
    a(f"s_mul_i32 s35, s35, {ROWB}")
    a("s_lshl_b32 s36, s30, 1")
    a("s_add_u32 s36, s36, s29")
    a("s_mul_i32 s36, s36, 192")
    a("s_lshl_b32 s52, s29, 1")
    a("s_sub_u32 s52, 2, s52")
    a("s_cmp_ge_u32 s32, 4")
    if cfg.cpf:
        a("s_cbranch_scc0 L_ld")
        a("s_bfe_u32 s31, s32, 0x10001")
        a("s_lshl1_add_u32 s31, s34, s31")
        a("s_cmp_eq_u32 s33, 8")
        a("s_cselect_b32 s31, 3, s31")
        a("s_getpc_b64 s[38:39]")
        a.label("L_pc")
        a("s_lshr_b32 s37, s2, 1")
        a("s_and_b32 s37, s37, 0x7c")
        a("s_add_u32 s37, s37, s32")
        a("s_min_u32 s37, s37, (L_end-L_pc)/256-1")
        a("s_lshl_b32 s37, s37, 8")
        a("s_add_u32 s38, s38, s37")
        a("s_addc_u32 s39, s39, 0")
        a("v_mov_b32 v12, s38")
        a("v_mov_b32 v13, s39")
        a("global_load_dword v14, v[12:13], off")
        a("global_load_dword v15, v[12:13], off offset:128")
        if cfg.pads:
            if cfg.pad4:
                a("s_cmp_eq_u32 s32, 4")
                a("s_cbranch_scc1 L_padl")
            a("s_bitcmp1_b32 s32, 0")
            a("s_cbranch_scc0 L_compute")
            a("s_cmp_eq_u32 s31, 0")
            a("s_cbranch_scc1 L_pad0")
            a("s_cmp_eq_u32 s31, 1")
            a("s_cbranch_scc1 L_pad1")
            a("s_cmp_eq_u32 s31, 2")
            a("s_cbranch_scc1 L_pad2")
            a("s_branch L_pad3")
        else:
            a("s_branch L_compute")
        a.label("L_ld")
    else:
        a("s_cbranch_scc1 L_compute")
    if cfg.bench:
        a("v_mov_b32 v31, 100")
        a("ds_write_b32 v30, v31")
        a("s_waitcnt lgkmcnt(0)")
        a("s_barrier")
        a("s_branch L_dump")
    a("s_add_u32 s37, s35, s36")
    a(f"s_sub_u32 s37, s37, {2*PROW + 2*384}")
    a("s_sub_u32 s38, s30, 2")
    a(f"s_mov_b32 s10, {8*PROW}")
    a("s_and_b32 s11, s32, 1")
    a("s_lshl_b32 s15, s11, 4")
    a("v_lshrrev_b32 v13, 2, v1")
    a("v_add_u32 v13, s15, v13")
    a("v_lshrrev_b32 v14, 3, v1")
    a("v_and_b32 v14, 2, v14")
    a("v_and_b32 v15, 3, v1")
    a("v_xor_b32 v14, v14, v15")
    a("v_lshlrev_b32 v14, 4, v14")
    a("v_add_u32 v14, s37, v14")
    a("v_bfrev_b32 v19, 1")
    a("s_movk_i32 s39, 3277")
    a(f"s_mov_b32 s49, {PROW}")
    a("s_movk_i32 s50, 384")
    a("s_movk_i32 s51, 112")
    for b in range(5):
        a("v_mul_u32_u24 v15, s39, v13")
        a("v_lshrrev_b32 v15, 16, v15")
        a("v_mul_u32_u24 v16, 20, v15")
        a("v_sub_u32 v16, v13, v16")
        a("v_add_u32 v17, s38, v16")
        a("v_cmp_gt_u32 vcc, s51, v17")
        a("v_mad_u32_u24 v18, v15, s49, v14")
        a("v_mad_u32_u24 v18, v16, s50, v18")
        a(f"v_cndmask_b32 v{2+b}, v19, v18, vcc")
        if b < 4: a("v_add_u32 v13, 32, v13")
        a(f"v_add_u32 v{7+b}, s10, v{2+b}")
    a("v_add_u32 v12, s10, v7")
    a("s_lshl_b32 s57, s52, 6")
    a("s_lshl_b32 s56, s11, 10")
    a("v_lshlrev_b32 v20, 4, v1")
    a("v_cmp_gt_u32 vcc, 32, v1")
    a("v_xor_b32 v22, 32, v20")
    a("s_mul_i32 s40, s11, 3072")
    a("v_cndmask_b32 v21, v22, v20, vcc")
    a("s_mov_b32 s41, s40")
    a("s_mov_b32 s43, 0")
    assert cfg.wlag <= 4
    a(f"s_movk_i32 s42, {sum(1 << b for b in set([3, 5, 10] + [b + cfg.wlag for b in (3, 5, 10)])):#x}")
    a("s_cmp_ge_u32 s32, 2")
    a("s_cselect_b32 s95, 1, 0")
    a(f"s_mov_b32 s54, {WBASE}")
    a("s_mul_i32 s37, s52, 6144")
    a("s_mov_b32 s55, 0")
    a("s_mov_b32 s15, 15")
    a("v_mov_b32 v26, 1")
    a("s_waitcnt lgkmcnt(0)")
    if cfg.diag: stamp(a, 1)
    srd(a, 16, 4, XBYTES)
    srd(a, 20, 6, WBYTES)
    a("s_cmp_eq_u32 s95, 1")
    a("s_cbranch_scc0 L_ws")
    a.label("L_x_loop")
    for blk, pcs in enumerate(((0, 1, 3), (4, 5, 6), (2, 7), (8, 9, 10))):
        a(f"s_bitcmp1_b32 s15, {blk}")
        a(f"s_cbranch_scc0 " + (f"L_x{blk}" if blk < 3 else "L_x_next"))
        for j, k in enumerate(pcs):
            if j == 0: a(f"s_add_u32 m0, s56, {k*2048}")
            else: a(f"s_addk_i32 m0, {(k - pcs[j-1])*2048}")
            a("s_nop 0")
            a(f"buffer_load_dwordx4 v{2+k}, s[16:19], s57 offen{cfg.xflag} lds")
        if blk in (1, 2):
            a("s_cmp_lg_u32 s55, 0")
            a(f"s_cbranch_scc1 L_x{blk}")
            if blk == 1:
                if cfg.diag: stamp(a, 2)
                a("s_barrier")
            else:
                a("s_waitcnt vmcnt(2)")
                a("ds_write_b32 v30, v26")
                trace(45, 0)
        if blk < 3: a.label(f"L_x{blk}")
    a("s_cmp_lg_u32 s55, 0")
    a("s_cbranch_scc1 L_x_sig")
    a("v_mov_b32 v31, 2")
    a("s_waitcnt vmcnt(3)")
    a("ds_write_b32 v30, v31")
    trace(45, 2)
    a("s_branch L_x_w1")
    a.label("L_ws_act")
    a("s_cmp_lg_u32 s43, 3")
    a("s_cbranch_scc1 L_ws_sig")
    a("s_barrier")
    a("s_branch L_ws")
    a.label("L_ws_sig")
    a(f"s_cmp_ge_u32 s41, {5*92160}")
    a(f"s_cselect_b32 s50, {5*92160 - 18432}, 0")
    a("s_sub_u32 s41, s41, s50")
    L = cfg.wlag
    a(f"s_bitcmp0_b32 {sum(1 << (b + L) for b in (3, 5, 10))}, s43")
    a("s_cbranch_scc1 L_ws")
    a(f"s_sub_u32 s50, s43, {L + 2}")
    a("s_min_u32 s50, s50, 4")
    a("v_mov_b32 v27, s50")
    a(f"s_waitcnt vmcnt({3*L})")
    a("ds_write_b32 v30, v27")
    trace(46, "s50")
    a.label("L_ws")
    a("s_add_u32 m0, s54, s40")
    a("s_add_u32 s50, s37, s41")
    for k in range(3):
        a(f"buffer_load_dwordx4 v{20+k}, s[20:23], s50 offen offset:{k*1024}{cfg.wflag} lds")
    a("s_addk_i32 s40, 6144")
    a("s_add_u32 s41, s41, 92160")
    a("s_add_u32 s43, s43, 1")
    a("s_bitcmp1_b32 s42, s43")
    a("s_cbranch_scc1 L_ws_act")
    a("s_cmp_lt_u32 s43, 15")
    a("s_cbranch_scc1 L_ws")
    a("s_sub_u32 s55, 2, s32")
    a("s_add_u32 s50, s55, 2")
    a("v_mov_b32 v31, s50")
    a("s_mov_b32 s53, s55")
    a(f"s_mul_i32 s50, s55, {WBUF}")
    a("s_add_u32 s54, s54, s50")
    a("s_lshr_b32 s39, s2, 4")
    a("s_mul_i32 s38, s39, 52")
    a("s_lshr_b32 s38, s38, 8")
    a("s_mul_i32 s38, s38, 5")
    a("s_sub_u32 s39, s39, s38")
    if cfg.wun:
        for i in range(5):
            a(f"s_mul_i32 s{40+i}, s39, 6144")
            a(f"s_mul_i32 s{45+i}, s{40+i}, 15")
            if i < 4:
                a("s_add_u32 s39, s39, 1")
                a("s_cmp_eq_u32 s39, 5")
                a("s_cselect_b32 s39, 0, s39")
        a("s_branch L_w_adv")
        a.label("L_w_it")
        for i in range(5):
            a(f"s_add_u32 m0, s54, s{40+i}")
            a(f"s_add_u32 s50, s37, s{45+i}")
            for k in range(3):
                a(f"buffer_load_dwordx4 v{20+k}, s[20:23], s50 offen offset:{k*1024}{cfg.wflag} lds")
            a("s_addk_i32 m0, 3072")
            a("s_addk_i32 s50, 3072")
            for k in range(3):
                a(f"buffer_load_dwordx4 v{20+k}, s[20:23], s50 offen offset:{k*1024}{cfg.wflag} lds")
    else:
        a("s_mul_i32 s40, s39, 6144")
        a("s_mul_i32 s41, s39, 92160")
        a("s_movk_i32 s42, 3072")
        a("s_branch L_w_adv")
        a.label("L_w_it")
        a("s_add_u32 m0, s54, s40")
        a("s_add_u32 s50, s37, s41")
        for k in range(3):
            a(f"buffer_load_dwordx4 v{20+k}, s[20:23], s50 offen offset:{k*1024}{cfg.wflag} lds")
        a("s_addk_i32 s40, 3072")
        a("s_add_u32 s41, s41, s42")
        a(f"s_xor_b32 s42, s42, {3072 ^ (92160 - 3072)}")
        a(f"s_cmpk_eq_u32 s40, {WBUF}")
        a("s_cselect_b32 s40, 0, s40")
        a("s_cselect_b32 s41, 0, s41")
        a("s_sub_u32 s43, s43, 1")
        a("s_cbranch_scc0 L_w_it")
    a.label("L_w_adv")
    trace(44, "s55")
    a("v_add_u32 v31, 2, v31")
    a("s_waitcnt vmcnt(0)")
    a("ds_write_b32 v30, v31")
    trace(45, "s55")
    a(f"s_sub_u32 s54, s54, {WBUF}")
    a(f"s_cmp_lt_u32 s54, {WBASE}")
    a(f"s_cselect_b32 s50, {3*WBUF}, 0")
    a("s_add_u32 s54, s54, s50")
    a("s_add_u32 s53, s53, 2")
    a("s_cmp_ge_u32 s53, 5")
    a("s_cselect_b32 s50, 5, 0")
    a("s_sub_u32 s53, s53, s50")
    a("s_lshr_b32 s50, s50, 2")
    a("s_add_u32 s52, s52, s50")
    a("s_cmp_eq_u32 s52, 3")
    a("s_cselect_b32 s52, 0, s52")
    a("s_mul_i32 s37, s53, 3")
    a("s_add_u32 s37, s37, s52")
    a("s_mul_i32 s37, s37, 6144")
    if not cfg.wun: a("s_mov_b32 s43, 9")
    a("s_mov_b32 s51, s55")
    a("s_add_u32 s55, s55, 2")
    a("s_cmp_ge_u32 s55, 15")
    a("s_cbranch_scc1 L_store")
    a("v_and_b32 v23, 3, v1")
    a("v_lshlrev_b32 v23, 8, v23")
    a(f"v_add_u32 v23, {FLAGS + 1024}, v23")
    poll(a, "L_w_poll", 23, 24, "s51", cfg.sleep)
    trace(46, "s55")
    a("s_branch L_w_it")
    if cfg.pad4:
        a.label("L_padl")
        a("s_branch L_compute")
    a.label("L_x_w1")
    C = sum((((thr + 2) << 4) | m) << (8 * k) for k, (thr, m) in enumerate(cfg.xb))
    assert len(cfg.xb) <= 8
    a(f"s_mov_b32 s92, {C & 0xffffffff:#x}")
    a(f"s_mov_b32 s93, {C >> 32:#x}")
    a("s_mov_b32 s55, 1")
    if cfg.trace: a("s_mov_b32 s51, 3")
    a.label("L_x_sig")
    a("v_add_u32 v31, 5, v31")
    a("s_waitcnt vmcnt(0)")
    a("ds_write_b32 v30, v31")
    trace(45, "s51")
    a(f"s_add_u32 s56, s56, {XCH}")
    a("s_add_u32 s57, s57, 64")
    a("s_cmp_eq_u32 s57, 192")
    a("s_cselect_b32 s57, 0, s57")
    a.label("L_x_next")
    a("s_and_b32 s15, s92, 15")
    a("s_cbranch_scc0 L_store")
    a("s_bfe_u32 s51, s92, 0x40004")
    a("s_lshr_b64 s[92:93], s[92:93], 8")
    a("v_and_b32 v22, 1, v1")
    a(f"v_lshlrev_b32 v22, 8, v22")
    a(f"v_add_u32 v22, {FLAGS}, v22")
    poll(a, "L_x_poll", 22, 23, "s51", cfg.sleep)
    trace(44, "s51")
    a("s_branch L_x_loop")
    a.label("L_store")
    srd(a, 24, 8, XBYTES)
    a("s_movk_i32 s49, 208")
    a("s_movk_i32 s50, 384")
    a("v_lshrrev_b32 v11, 2, v1")
    a("v_and_b32 v12, 3, v1")
    a("v_lshlrev_b32 v12, 4, v12")
    a("v_mad_u32_u24 v5, v11, s50, v12")
    a("v_mad_u32_u24 v2, v11, s49, v12")
    a("v_and_b32 v10, 1, v1")
    a("v_lshlrev_b32 v10, 8, v10")
    a("s_lshl_b32 s39, s95, 9")
    a(f"s_add_u32 s39, s39, {FLAGS + 1024}")
    a("v_add_u32 v10, s39, v10")
    a("s_add_u32 s45, s35, s36")
    a("s_or_b32 s38, s34, s95")
    a("s_cmp_eq_u32 s33, 8")
    a("s_cselect_b32 s38, 1, s38")
    a("s_cselect_b32 s43, 6, 7")
    a("s_xor_b32 s38, s38, 1")
    a("s_andn2_b32 s44, s34, s95")
    a("s_add_u32 s39, s34, 6")
    a("s_mul_i32 s39, s39, s95")
    a("s_add_u32 s39, s39, s44")
    a("s_add_u32 s39, s39, 5")
    a("s_cmp_eq_u32 s38, 1")
    a("s_cselect_b32 s39, 0, s39")
    a("s_cselect_b32 s42, 1, -1")
    def rowsetup():
        a("s_mul_i32 s40, s11, s42")
        a("s_add_u32 s39, s39, s40")
        a(f"s_mul_i32 s47, s39, {PROW}")
        a("s_add_u32 s47, s47, s45")
        a(f"s_mul_i32 s48, s39, {SROW}")
        a("v_add_u32 v12, s48, v2")
        a(f"s_mul_i32 s40, s42, {2*PROW}")
        a(f"s_mul_i32 s41, s42, {2*SROW}")
    rowsetup()
    a("s_add_u32 s51, s11, 16")
    a("s_add_u32 s44, s44, 22")
    a.label("L_st_m")
    poll(a, "L_st_mp", 10, 11, "s51", cfg.sleep)
    a(f"ds_read_b128 {vr(16,4)}, v12 offset:64")
    a("v_add_u32 v12, s41, v12")
    a("s_add_u32 s51, s51, 2")
    a("s_waitcnt lgkmcnt(0)")
    a(f"buffer_store_dwordx4 {vr(16,4)}, v5, s[24:27], s47 offen offset:64{cfg.stflag}")
    a("s_add_u32 s47, s47, s40")
    a("s_cmp_lt_u32 s51, s44")
    a("s_cbranch_scc1 L_st_m")
    if cfg.stprio: a(f"s_setprio {cfg.stprio}")
    a("s_cmp_eq_u32 s95, 1")
    a("s_cselect_b32 s39, s43, s34")
    a("s_cmp_eq_u32 s38, 1")
    a("s_cselect_b32 s39, 5, s39")
    a("s_sub_u32 s42, 0, s42")
    rowsetup()
    a("s_add_u32 s51, s11, 25")
    a("s_and_b32 s38, s38, s11")
    a("s_cbranch_scc0 L_st_go")
    a("v_and_b32 v28, 3, v1")
    a("v_lshlrev_b32 v28, 8, v28")
    a(f"v_add_u32 v28, {FLAGS + 1024}, v28")
    a(f"s_add_u32 s45, s45, {6*PROW}")
    poll(a, "L_st_s1", 28, 11, 24, cfg.sleep2)
    for k in range(2): a(f"ds_read_b128 {vr(16+4*k,4)}, v2 offset:{6*SROW + 128*k}")
    for k in range(2):
        a(f"s_waitcnt lgkmcnt({1-k})")
        a(f"buffer_store_dwordx4 {vr(16+4*k,4)}, v5, s[24:27], s45 offen offset:{128*k}{cfg.stflag}")
    a.label("L_st_go")
    poll(a, "L_st_p1", 10, 11, "s51", cfg.sleep2)
    for k in range(2): a(f"ds_read_b128 {vr(16+4*k,4)}, v12 offset:{128*k}")
    a("v_add_u32 v12, s41, v12")
    a("s_add_u32 s51, s51, 2")
    for k in range(2):
        a(f"s_waitcnt lgkmcnt({1-k})")
        a(f"buffer_store_dwordx4 {vr(16+4*k,4)}, v5, s[24:27], s47 offen offset:{128*k}{cfg.stflag}")
    a("s_add_u32 s47, s47, s40")
    a("s_cmp_lt_u32 s51, 30")
    a("s_cbranch_scc1 L_st_go")
    a.label("L_st_end")
    if cfg.amp == "all": a("s_branch L_ampall")
    if cfg.diag:
        stamp(a, 5)
        a("s_waitcnt vmcnt(0)")
        stamp(a, 6)
        dump_stamps(a, cfg)
    a.label("L_exit")
    a("s_endpgm")
    a.label("L_compute")
    if cfg.cbar == 0:
        a("s_waitcnt lgkmcnt(0)")
        a("s_barrier")
    a("s_sub_u32 s37, s32, 4")
    a("s_and_b32 s38, s37, 1")
    a("s_lshr_b32 s37, s37, 1")
    a("s_add_u32 s39, s34, 6")
    a("s_mul_i32 s49, s37, s39")
    a(f"v_mov_b32 v{V_CP}, v30")
    a(f"v_mov_b32 v{V_PV}, 0")
    a("v_and_b32 v32, 15, v1")
    a("v_lshrrev_b32 v33, 4, v1")
    a("v_and_b32 v34, 1, v33")
    a("v_lshrrev_b32 v35, 1, v33")
    a("v_bfe_u32 v36, v1, 2, 2")
    a("v_and_b32 v37, 3, v1")
    a(f"v_lshlrev_b32 v{V_LF}, 8, v37")
    a(f"v_add_u32 v{V_LF}, {FLAGS}, v{V_LF}")
    a("s_lshl_b32 s39, s38, 7")
    a("v_lshlrev_b32 v40, 5, v34")
    a("v_lshl_add_u32 v40, v35, 4, v40")
    a("v_add_u32 v40, s39, v40")
    a("s_lshl_b32 s39, s38, 5")
    a("s_add_u32 s39, s39, 64")
    a("v_lshlrev_b32 v41, 3, v33")
    a("v_add_u32 v41, s39, v41")
    a("v_mul_u32_u24 v38, 384, v32")
    a("v_add_u32 v38, s36, v38")
    a(f"v_add_u32 v{V_SA}, v38, v40")
    a(f"v_add_u32 v{V_SC}, v38, v41")
    a("v_mul_u32_u24 v38, 208, v32")
    a(f"s_mul_i32 s39, s49, {SROW}")
    a("v_add_u32 v38, s39, v38")
    a("s_lshl_b32 s39, s38, 7")
    a(f"v_lshl_add_u32 v{V_GA}, v33, 3, v38")
    a(f"v_add_u32 v{V_GA}, s39, v{V_GA}")
    a(f"v_add_u32 v{V_GB}, v38, v41")
    a(f"s_mul_i32 s47, s49, {PROW}")
    a("s_add_u32 s47, s47, s35")
    a("v_lshl_add_u32 v38, v33, 3, v36")
    a("v_mul_u32_u24 v38, 192, v38")
    a("v_lshl_add_u32 v38, v37, 3, v38")
    a(f"v_add_u32 v38, {WBASE}, v38")
    a("s_add_u32 s39, s38, 2")
    a("v_xor_b32 v39, s39, v34")
    a(f"v_lshl_add_u32 v{V_WA[0]}, v39, 5, v38")
    a("s_lshl_b32 s39, s38, 2")
    a("v_xor_b32 v39, s39, v34")
    a(f"v_lshl_add_u32 v{V_WA[1]}, v39, 5, v38")
    a("v_xor_b32 v39, 1, v39")
    a(f"v_lshl_add_u32 v{V_WA[2]}, v39, 5, v38")
    a("v_lshlrev_b32 v38, 6, v32")
    a("v_lshl_add_u32 v38, v33, 4, v38")
    a(f"s_mul_i32 s39, s49, {XROW}")
    a(f"v_add_u32 v{V_XL}, s39, v38")
    a(f"v_lshrrev_b32 v{V_T}, 3, v{V_XL}")
    a(f"v_and_b32 v{V_T}, 32, v{V_T}")
    a(f"v_xor_b32 v{V_XA[0]}, v{V_XL}, v{V_T}")
    a(f"v_xor_b32 v{V_XA[1]}, 32, v{V_XA[0]}")
    if cfg.mov64:
        for k in range(0, 84, 2): a(f"v_mov_b64 {vr(V_ACC+k,2)}, 0")
    else:
        for k in range(84): a(f"v_mov_b32 v{V_ACC+k}, 0")
    a(f"s_mov_b32 s40, {(1 << 8) | (1 << 13)}")
    a(f"s_mov_b32 s41, {sum(1 << (h + 3) for h in (3, 6, 9, 12))}")
    a(f"s_mov_b32 s44, {(-2*WBUF) & 0xffffffff}")
    a(f"s_mov_b32 s45, {WBUF}")
    a("s_mov_b32 s46, 4")
    if cfg.diag: a("s_mov_b32 s95, 0")
    if cfg.cbar == 1:
        a("s_waitcnt lgkmcnt(0)")
        a("s_barrier")
    if cfg.diag: stamp(a, 1)
    srd(a, 24, 8, XBYTES)
    if cfg.prio: a(f"s_setprio {cfg.prio}")
    if cfg.amp in ("span", "skew"): srd(a, 80, 12, 256)
    for var in (1, 2, 3):
        a(f"s_cmp_eq_u32 s31, {var}")
        a(f"s_cbranch_scc1 L_pro{var}")
    if cfg.pads: a("s_branch L_pro0")
    for var in range(4):
        emit_variant(a, var, cfg)
    a.label("L_end")
    a("s_endpgm")
    out += a.text()
    nv = (V_END + 7) // 8 * 8
    out += f""".section .rodata,"a"
.p2align 6
.amdhsa_kernel {NAME}_kernel
  .amdhsa_next_free_vgpr {nv}
  .amdhsa_next_free_sgpr 96
  .amdhsa_accum_offset {nv}
  .amdhsa_group_segment_fixed_size 0
  .amdhsa_kernarg_size 40
  .amdhsa_user_sgpr_count 2
  .amdhsa_user_sgpr_kernarg_segment_ptr 1
  .amdhsa_system_sgpr_workgroup_id_x 1
.end_amdhsa_kernel
"""
    return out

if __name__ == "__main__":
    p = argparse.ArgumentParser()
    p.add_argument("-o", default="standalone__dilated_atrous__vision.s")
    p.add_argument("--diag", action="store_true")
    p.add_argument("--trace", action="store_true")
    p.add_argument("--bar_pos", type=int, default=58)
    p.add_argument("--xbar", type=int, default=40)
    p.add_argument("--lead", type=int, default=5)
    p.add_argument("--safe", type=int, default=8)
    p.add_argument("--prio", type=int, default=1)
    p.add_argument("--align", type=int, default=1)
    p.add_argument("--snake", type=int, default=1)
    p.add_argument("--exper", type=int, default=2)
    p.add_argument("--order", type=int, default=1)
    p.add_argument("--wpf", type=int, default=0)
    p.add_argument("--epf", type=int, default=0)
    p.add_argument("--cpf", type=int, default=1)
    p.add_argument("--sleep", type=int, default=2)
    p.add_argument("--sleep2", type=int, default=0)
    p.add_argument("--stflag", default="nt")
    p.add_argument("--wd", type=int, default=1)
    p.add_argument("--amp", default="")
    p.add_argument("--slow_near", type=int, default=1)
    p.add_argument("--hcap", type=int, default=2)
    p.add_argument("--wlag", type=int, default=2)
    p.add_argument("--wun", type=int, default=0)
    p.add_argument("--hlead", type=int, default=7)
    p.add_argument("--fd", type=int, default=6)
    p.add_argument("--burst", type=int, default=6)
    p.add_argument("--alead", type=int, default=20)
    p.add_argument("--entry_last", type=int, default=0)
    p.add_argument("--pad4", type=int, default=0)
    p.add_argument("--lx", type=int, default=-1)
    p.add_argument("--al8", type=int, default=0)
    p.add_argument("--shift4", type=int, default=0)
    p.add_argument("--rush", type=int, default=30)
    p.add_argument("--fill", type=int, default=0)
    p.add_argument("--pads", type=int, default=1)
    p.add_argument("--nstage", type=int, default=5)
    p.add_argument("--spec", type=int, default=1)
    p.add_argument("--stprio", type=int, default=0)
    p.add_argument("--mov64", type=int, default=1)
    p.add_argument("--xflag", default="")
    p.add_argument("--wflag", default="")
    p.add_argument("--fixd", type=int, default=0)
    p.add_argument("--wbl2", type=int, default=0)
    p.add_argument("--bench", action="store_true")
    p.add_argument("--drop", default="")
    p.add_argument("--cmpd", type=int, default=4)
    p.add_argument("--updstep", type=int, default=1)
    p.add_argument("--xthr", type=int, default=2)
    p.add_argument("--cbar", type=int, default=0)
    p.add_argument("--w2wait", type=int, default=1)
    p.add_argument("--xb", default="3:1,4:2,5:4,6:8,8:3,9:12")
    cfg = p.parse_args()
    cfg.xb = [tuple(int(v) for v in e.split(":")) for e in cfg.xb.split(",")]
    WD = cfg.wd
    if cfg.stflag: cfg.stflag = " " + cfg.stflag
    if cfg.xflag: cfg.xflag = " " + cfg.xflag
    if cfg.wflag: cfg.wflag = " " + cfg.wflag
    open(cfg.o, "w").write(gen(cfg))
```

```python
import sys, argparse

NAME = "standalone__dilated_atrous__vision"
XBYTES = 224 * 224 * 96 * 2
WBYTES = 25 * 96 * 96 * 2
ROWB = 224 * 192
PROW = 2 * ROWB
XCH = 352 * 64
XROW = 20 * 64
WBASE = 3 * XCH
WBUF = 5 * 6144
FLAGS = WBASE + 3 * WBUF
LDS_TOTAL = FLAGS + 2048
SROW = 16 * 208
assert 13 * SROW <= 2 * XCH

class Asm:
    def __init__(self):
        self.lines = []
    def __call__(self, s):
        self.lines.append("    " + s)
    def label(self, l):
        self.lines.append(l + ":")
    def comment(self, s):
        self.lines.append("    ; " + s)
    def text(self):
        return "\n".join(self.lines) + "\n"

def vr(b, n):
    return f"v[{b}:{b+n-1}]"

V_XL = 1
V_XA = (2, 3)
V_WA = (4, 5, 6)
V_SA, V_SC = 7, 8
V_GA, V_GB = 9, 10
V_T = 11
V_XB = (22, 23)
V_CP = 25
V_LF = 26
V_PV = 27
V_F = 28
V_X = 32
V_W = 76
V_ACC = 136
V_EXTRA = V_ACC + 84
V_END = V_EXTRA + 32

TYPES = {
    0: (range(0, 6), range(0, 7), range(0, 6)),
    1: (range(0, 6), range(1, 7), range(0, 7)),
    2: (range(0, 7), range(1, 7), range(1, 7)),
    3: (range(0, 6), range(0, 6), range(0, 6)),
}
OFF = {0: 0, 1: 1, 2: 1, 3: 0}
SPECIAL = {0: 6, 1: 0, 2: 0, 3: None}
LASTHEAD = {
    0: [(0, 0), (0, 1), (6, 1), (0, 2)],
    1: [(0, 0), (1, 0), (1, 1), (0, 2), (1, 2)],
    2: [(0, 0), (1, 0), (1, 1), (2, 0), (1, 2), (2, 1), (2, 2)],
    3: [(0, 0), (0, 1), (1, 0), (0, 2), (1, 1), (1, 2)],
}

def acc(rho, t): return V_ACC + 4 * (rho * 3 + t)
def wreg(i, t): return V_W + 4 * (i * 3 + t)
def xreg(q): return V_X + 4 * q

def chain(rho, t, rev):
    r = list(range(5))
    if rev: r.reverse()
    return [(rho, i, t, rho + i) for i in r]

def steady_order(var, cfg, par=(1, 1, 1)):
    ms = []
    for t in range(3):
        for j, rho in enumerate(TYPES[var][t]): ms += chain(rho, t, cfg.snake and j % 2 == par[t])
    return ms

DIRECT = {0: (5,), 1: (6, 5), 2: (6,), 3: (5,)}

def last_tiles(var):
    order = list(LASTHEAD[var])
    rows = [r for r in range(7) if r not in DIRECT[var]] + list(DIRECT[var])
    for r in rows:
        for t in ((0, 1, 2) if r not in DIRECT[var] else (1, 2, 0)):
            if r in TYPES[var][t] and (r, t) not in order: order.append((r, t))
    return order

def last_order(var, cfg, par=1):
    ms = []
    for j, (r, t) in enumerate(last_tiles(var)): ms += chain(r, t, cfg.snake and j % 2 == par and j >= 4)
    return ms

def uses(ms):
    first, last = {}, {}
    for k, (rho, i, t, q) in enumerate(ms):
        for key in (("w", i, t, 0), ("w", i, t, 1), ("x", q)):
            first.setdefault(key, k); last[key] = k
    return first, last

def read_text(nm):
    if nm[0] == "x":
        q = nm[1]
        return f"ds_read_b128 {vr(xreg(q),4)}, v{V_XA[q & 1]} offset:{q*XROW}"
    _, i, t, h = nm
    return f"ds_read_b64_tr_b16 {vr(wreg(i,t)+2*h,2)}, v{V_WA[t]} offset:{i*6144 + h*768}"

def edf(reads, lo, hi, lead, busy=()):
    placed, pending = {}, list(reads)
    for k in range(lo, hi):
        avail = [r for r in pending if r[1] <= k]
        if not avail: continue
        r = min(avail, key=lambda r: r[2])
        placed[k] = r[0]
        pending.remove(r)
        assert r[2] - k >= lead, (r, k)
    assert not pending, pending
    return placed

def mfma_text(m):
    rho, i, t, q = m
    return f"v_mfma_f32_16x16x32_bf16 {vr(acc(rho,t),4)}, {vr(wreg(i,t),4)}, {vr(xreg(q),4)}, {vr(acc(rho,t),4)}"

class LdsQ:
    def __init__(self, a, safe):
        self.a, self.safe = a, safe
        self.ops = []
        self.done = 0
        self.waits = []
    def issue(self, name, time, text=None):
        self.ops.append((name, time))
        if text: self.a(text)
    def need(self, names, time):
        idx = max(max(j for j, (nm, _) in enumerate(self.ops) if nm == n) for n in names) + 1
        if idx <= self.done: return
        for j, (nm, tm) in enumerate(self.ops):
            if tm <= time - 1 - self.safe: idx = max(idx, j + 1)
        cnt = len(self.ops) - idx
        if cnt > 14:
            idx += cnt - 14; cnt = 14
        self.a(f"s_waitcnt lgkmcnt({cnt})")
        self.waits.append((time, cnt, len(self.ops)))
        self.done = idx

WD = 1
def poll(a, label, vaddr, vtmp, sneed, sleep, wd=True):
    a.label(label)
    if WD and wd:
        a("s_add_u32 s94, s94, 1")
        a("s_bitcmp1_b32 s94, 18")
        a("s_cbranch_scc1 L_exit")
    a(f"ds_read_b32 v{vtmp}, v{vaddr}")
    a("s_waitcnt lgkmcnt(0)")
    a(f"v_cmp_gt_u32 vcc, {sneed}, v{vtmp}")
    if sleep:
        a(f"s_cbranch_vccz {label}_ok")
        a(f"s_sleep {sleep}")
        a(f"s_branch {label}")
        a.label(label + "_ok")
    else:
        a(f"s_cbranch_vccnz {label}")

def isize(l):
    l = l.strip()
    op = l.split()[0]
    if op.startswith(("v_mfma", "ds_", "buffer_", "v_cvt_pk")) or op.endswith("_e64"): return 8
    import re
    for tok in re.split(r"[ ,]+", l)[1:]:
        if re.fullmatch(r"-?\d+|0x[0-9a-f]+", tok) and not op.startswith(("s_waitcnt", "s_nop")):
            v = int(tok, 0)
            if not (-16 <= v <= 64): return 8
    return 4

def align8(lines):
    out = []
    for l in lines:
        op = l.strip().split()[0]
        if op.startswith("v_") and isize(l) == 4:
            l = l.replace(op, op + "_e64", 1)
        out.append(l)
    res, off = [], 0
    for l in out:
        sz = isize(l)
        if sz == 8 and off % 8 == 4:
            res.append("    s_nop 0"); off += 4
        res.append(l); off += sz
    if off % 8 == 4: res.append("    s_nop 0")
    return res

def emit_variant(a, var, cfg):
    bar = cfg.bar_pos if var != 3 else cfg.bar_pos - 3
    best = None
    for par in [(p0, 1, p2) for p0 in (1, 0) for p2 in (1, 0)]:
        ms = steady_order(var, cfg, par)
        n = len(ms)
        first, last = uses(ms)
        reads = [(key, max(last[key], bar, n if (key[0] == "w" and key[2] == 2) else 0), n + first[key]) for key in first]
        placed = edf(reads, bar, n + bar - 16, 0)
        ld = min(n + first[nm] - k for k, nm in placed.items())
        if best is None or ld > best[0]: best = (ld, par, ms, first, last, placed)
    ld, par, ms, first, last, placed = best
    print(f"variant {var}: snake parity {par}, min lead {ld}", file=sys.stderr)
    tail = [(k, placed[k]) for k in sorted(placed) if k < n]
    head = [(k - n, placed[k]) for k in sorted(placed) if k >= n]
    slow = []
    hb, tb = Asm(), Asm()
    q = LdsQ(hb, cfg.safe)
    for k, nm in tail: q.issue(nm, k - n)
    headd, taild = dict(head), dict(tail)
    extra = {}
    def put(k, s): extra.setdefault(k, []).append(s)
    krel = max(k for k, nm in head) + 1
    put(krel - 1, f"v_add_u32 v{V_PV}, 1, v{V_PV}")
    upd = ["s_bitcmp1_b32 s40, s46", f"s_cselect_b32 s42, {XCH - 4*64}, 64",
           "s_bitcmp1_b32 s41, s46", "s_cselect_b32 s43, s44, s45",
           "s_cmp_eq_u32 s46, 16", "s_cselect_b32 s49, 1000, s46",
           f"v_add_u32 v{V_XL}, s42, v{V_XL}", f"v_lshrrev_b32 v{V_T}, 3, v{V_XL}", f"v_and_b32 v{V_T}, 32, v{V_T}",
           f"v_xor_b32 v{V_XA[0]}, v{V_XL}, v{V_T}", f"v_xor_b32 v{V_XA[1]}, 32, v{V_XA[0]}"]
    upd += [f"v_add_u32 v{V_WA[t]}, s43, v{V_WA[t]}" for t in range(3)]
    b0 = krel + 2
    for j, u in enumerate(upd): put(b0 + cfg.updstep * j, u)
    kflag = bar - cfg.cmpd - 9
    assert b0 + cfg.updstep * len(upd) <= kflag
    cur = hb
    for k, m in enumerate(ms):
        rho, i, t, qq = m
        q.need([("w", i, t, 0), ("w", i, t, 1), ("x", qq)], k)
        cur(mfma_text(m))
        D = cfg.drop
        for s in extra.get(k, []): cur(s)
        if k == krel: q.issue(("rel",), k, f"ds_write_b32 v{V_CP}, v{V_PV}")
        if k == kflag: q.issue(("flag",), k, f"ds_read_b32 v{V_F}, v{V_LF}")
        if k == bar - cfg.cmpd - 1: q.need([("flag",)], k + 1)
        if k == bar - cfg.cmpd: cur(f"v_cmp_gt_u32 vcc, s49, v{V_F}")
        if k == bar:
            cur = tb; q.a = tb
        drop = lambda nm: ("l" in D and k in taild) or ("w" in D and nm[0] == "w" and k in taild) or ("x" in D and nm[0] == "x")
        if k in headd: q.issue(headd[k], k, read_text(headd[k]) if not drop(headd[k]) else None)
        if k in taild: q.issue(("next",) + taild[k], k, read_text(taild[k]) if not drop(taild[k]) else None)
        if k == n - 9: cur("s_add_u32 s46, s46, 1")
    bases = {0: (0,), 1: (6,), 2: (0,), 3: (0, 6, 7)}[var]
    def rowstage(r): return 1 if (r <= 2 or 5 <= r <= 10) else (2 if r <= 11 else 3)
    def stage(nm):
        if nm[0] == "w": return 1 if nm[1] <= 2 else 2
        return max(rowstage(b + nm[1]) for b in bases)
    opsof = lambda m: [("w", m[1], m[2], 0), ("w", m[1], m[2], 1), ("x", m[3])]
    hm = list(enumerate(ms[:bar + 1]))
    hm.sort(key=lambda e: (max(stage(nm) for nm in opsof(e[1])), e[0]))
    hm = [m for _, m in hm]
    nH = len(hm)
    hf, _ = uses(hm)
    st_first = {}
    for k, m in enumerate(hm): st_first.setdefault(max(stage(nm) for nm in opsof(m)), k)
    stages = sorted(set(stage(nm) for nm in first))
    kb = {1: -1}
    for sg in stages[1:]:
        kb[sg] = max(st_first.get(sg, nH - 30) - cfg.hlead, kb[max(x for x in kb)] + cfg.fd + 2, cfg.fd)
    def emit_entry():
        a.label(f"L_pro{var}")
        poll(a, f"L_p0_{var}", V_LF, V_F, 1, 0)
        if cfg.diag: stamp(a, 3)
        if cfg.amp and (cfg.amp != "pt" or cfg.pt == "t0"):
            a("s_memrealtime s[86:87]")
            a("s_waitcnt lgkmcnt(0)")
        q1 = LdsQ(a, cfg.safe)
        pend = sorted(first, key=lambda nm: hf.get(nm, nH + first[nm]))
        for nm in [p for p in pend if hf.get(p, 999) < cfg.burst and stage(p) == 1]:
            q1.issue(nm, -1, read_text(nm)); pend.remove(nm)
        fixed = {}
        for sg in stages[1:]:
            fixed.setdefault(kb[sg] - cfg.fd, []).append(("flag", sg))
            fixed.setdefault(kb[sg] - 1, []).append(("cmp", sg))
            fixed.setdefault(kb[sg], []).append(("br", sg))
        todo = [f"v_add_u32 v{V_PV}, 1, v{V_PV}", "REL"] + upd
        kf = nH - 1 - cfg.cmpd - 9
        for k, m in enumerate(hm):
            q1.need(opsof(m), k)
            a(mfma_text(m))
            cnt = 0
            for what, sg in fixed.get(k, []):
                cnt += 1
                if what == "flag": q1.issue(("fl", sg), k, f"ds_read_b32 v{V_F}, v{V_LF}")
                elif what == "cmp":
                    q1.need([("fl", sg)], k + 1 - cfg.safe)
                    a(f"v_cmp_gt_u32 vcc, {sg}, v{V_F}")
                else:
                    a(f"s_cbranch_vccnz L_sl{var}_{sg}")
                    a.label(f"L_sk{var}_{sg}")
                    slow.append((f"L_sl{var}_{sg}", V_LF, sg, f"L_sk{var}_{sg}"))
            if k == kf:
                q1.issue(("flag",), k, f"ds_read_b32 v{V_F}, v{V_LF}"); cnt += 1
            if k == nH - 1 - cfg.cmpd - 1:
                a("s_waitcnt lgkmcnt(0)"); q1.done = len(q1.ops); cnt += 1
            if k == nH - 1 - cfg.cmpd:
                assert not any(t.startswith("s_c") for t in todo)
                a(f"v_cmp_gt_u32 vcc, s49, v{V_F}"); cnt += 1
            while cnt < (cfg.hcap if k >= 8 else 2):
                av = [p for p in pend if kb[stage(p)] <= k]
                if av:
                    q1.issue(av[0], k, read_text(av[0])); pend.remove(av[0])
                elif not pend and todo and cnt < (2 if len(todo) > nH - 6 - k else 1):
                    t = todo.pop(0)
                    if t == "REL": q1.issue(("rel",), k, f"ds_write_b32 v{V_CP}, v{V_PV}")
                    else: a(t)
                else: break
                cnt += 1
            assert not (k >= kf and pend)
        assert not pend and not todo, (pend, todo)
        if cfg.diag: a("s_memtime s[64:65]")
        if cfg.amp == "pt" and cfg.pt == "hend":
            a("s_memrealtime s[86:87]")
            a("s_waitcnt lgkmcnt(0)")
        a(f"s_branch L_sync{var}")
    print(f"   first head: {nH} mfmas, stage starts {st_first}, checks {kb}", file=sys.stderr)
    if cfg.pads:
        a.label(f"L_pad{var}")
        a("s_branch L_compute")
    def emit_slow():
        poll(a, f"L_slow{var}", V_LF, V_F, "s49", 0)
        if cfg.diag:
            a("s_bitset1_b32 s95, s46")
            a("s_cmp_lg_u32 s46, 4")
            a(f"s_cbranch_scc1 L_dg{var}")
            a("s_memtime s[74:75]")
            a("s_waitcnt lgkmcnt(0)")
            a.label(f"L_dg{var}")
        a("s_cmp_eq_u32 s46, 16")
        a(f"s_cbranch_scc1 L_fin{var}")
        a(f"s_branch L_top{var}")
        for lab, va, need, back in slow:
            poll(a, lab, va, V_F, need, 0)
            if cfg.diag: a(f"s_bitset1_b32 s95, {need}")
            a(f"s_branch {back}")
    if not cfg.entry_last: emit_entry()
    if cfg.slow_near: emit_slow()
    if cfg.al8:
        hb.lines = align8(hb.lines); tb.lines = align8(tb.lines)
    if cfg.align: a(".p2align 6")
    a.label(f"L_top{var}")
    a.lines += tb.lines
    a.label(f"L_head{var}")
    a.lines += hb.lines
    a.label(f"L_sync{var}")
    a(f"s_cbranch_vccz L_top{var}")
    a("s_min_u32 s49, s49, 17")
    a(f"v_cmp_gt_u32 vcc, s49, v{V_F}")
    a(f"s_cbranch_vccnz L_slow{var}")
    a.label(f"L_fin{var}")
    a.lines += tb.lines
    if cfg.diag: stamp(a, 4)
    if cfg.amp == "pt" and cfg.pt == "fin":
        a("s_memrealtime s[86:87]")
        a("s_waitcnt lgkmcnt(0)")
    if cfg.cpf: a("s_waitcnt vmcnt(0)")
    rows = TYPES[var]
    down = var == 0
    prow = sorted(set(rows[1]) | set(rows[2]), reverse=down)
    lastrow = prow[-1]
    srow2 = sorted(rows[0], reverse=not down)
    def build(pa, pb):
        out = []
        for j, r in enumerate(rows[0]):
            out += [m + (13, 0) for m in chain(r, 0, cfg.snake and j % 2 == pa)]
        for j, r in enumerate(srow2):
            out += [m + (14, 0) for m in chain(r, 0, cfg.snake and j % 2 == pb)]
        keep = set(range(srow2[-1], srow2[-1] + 5))
        flip = 0
        tiles = []
        for r in prow:
            ts = [t for t in ((1, 2) if flip == 0 else (2, 1)) if r in rows[t]]
            if r == lastrow: ts = [1, 2]
            for j, t in enumerate(ts):
                gs = (14, 13) if j == 0 else (13, 14)
                for g in gs:
                    for m in chain(r, t, (j == 1) != down):
                        out.append(m + (g, 0 if (g == 14 and m[3] in keep) else 1))
                tiles.append((r, t))
            flip = 0 if ts[-1] == 1 else 1
        return out, tiles
    def names(m):
        rho, i, t, qq, g, occ = m
        return [("w", g, i, t, 0), ("w", g, i, t, 1), ("x", g, qq, occ)]
    frag = lambda nm: nm if nm[0] == "x" else nm[:4]
    conv = lambda nm: ("x", 13, nm[1], 0) if nm[0] == "x" else ("w", 13) + nm[1:]
    pre = [(k - n, conv(nm)) for k, nm in tail]
    prenames = set(nm for _, nm in pre)
    slots = [V_X + 4 * j for j in range(26)] + [V_EXTRA + 4 * j for j in range(8)]
    best = None
    for pa in (1, 0):
      for pb in (1, 0):
        ls, ptiles = build(pa, pb)
        lf, ll = {}, {}
        for k, m in enumerate(ls):
            for nm in names(m):
                lf.setdefault(nm, k); ll[nm] = k
        free = {sl: 0 for sl in slots}
        regs = {}
        for nm in prenames:
            sl = xreg(nm[2]) if nm[0] == "x" else wreg(nm[2], nm[3])
            regs[frag(nm)] = sl
            free[sl] = max(free[sl], ll.get(nm, 0))
        rds, early = [], {}
        for nm in sorted(lf, key=lambda v: lf[v]):
            if nm in prenames: continue
            fr = frag(nm)
            if fr not in regs:
                ok = [sl for sl in slots if free[sl] <= lf[nm] - cfg.alead]
                sl = max(ok, key=lambda v: free[v]) if ok else min(slots, key=lambda v: free[v])
                regs[fr] = sl; early[fr] = free[sl]; free[sl] = ll[nm]
            e = early.get(fr, 0)
            if nm[0] == "x" and nm[1] == 14: e = max(e, 6)
            rds.append((nm, e, lf[nm]))
        try: lp = edf(rds, 0, len(ls), 0)
        except AssertionError: continue
        ld2 = min([lf[nm] - k for k, nm in lp.items()] + [lf[nm] - k for k, nm in pre if nm in lf])
        if best is None or ld2 > best[0]: best = (ld2, (pa, pb), ls, lf, lp, regs, ptiles)
    ld2, pars, ls, lf, lplaced, regs, ptiles = best
    print(f"   final segment: parity {pars} min lead {ld2} reads {len(lplaced)}", file=sys.stderr)
    def rd_text(nm):
        if nm[0] == "x":
            _, g, qq, occ = nm
            return f"ds_read_b128 {vr(regs[nm],4)}, v{(V_XA if g == 13 else V_XB)[qq & 1]} offset:{qq*XROW}"
        _, g, i, t, h = nm
        return f"ds_read_b64_tr_b16 {vr(regs[frag(nm)]+2*h,2)}, v{V_WA[t]} offset:{(g-13)*WBUF + i*6144 + h*768}"
    n2 = len(ls)
    q = LdsQ(a, cfg.safe)
    for k, nm in pre: q.issue(nm, k)
    endk = {}
    for k, m in enumerate(ls): endk[(m[0], m[2])] = k
    def cvt2(D, S, tile):
        return [(tile, f"v_cvt_pk_bf16_f32 v{D}, v{S}, v{S+1}"), (tile, f"v_cvt_pk_bf16_f32 v{D+1}, v{S+2}, v{S+3}")]
    seq = [(None, f"v_add_u32 v{V_XL}, 64, v{V_XL}"), (None, f"v_lshrrev_b32 v{V_T}, 3, v{V_XL}"), (None, f"v_and_b32 v{V_T}, 32, v{V_T}"),
           (None, f"v_xor_b32 v{V_XB[0]}, v{V_XL}, v{V_T}"), (None, f"v_xor_b32 v{V_XB[1]}, 32, v{V_XB[0]}")]
    for j, r in enumerate(srow2):
        S = acc(r, 0)
        seq += cvt2(S, S, (r, 0))
        seq += [(None, f"v_mov_b32 v{V_PV}, {16 + j}"), (None, f"ds_write_b64 v{V_GB}, {vr(S,2)} offset:{r*SROW}"),
                (None, f"ds_write_b32 v{V_CP}, v{V_PV}")]
    kfull, seen = 0, set()
    for (r, t) in ptiles:
        S = acc(r, t)
        if r != lastrow:
            seq += cvt2(S, S, (r, t))
            pv = None
            if not (r in rows[1] and r in rows[2]): pv = 24
            elif r in seen:
                pv = 25 + kfull; kfull += 1
            seen.add(r)
            if pv: seq.append((None, f"v_mov_b32 v{V_PV}, {pv}"))
            seq.append((None, f"ds_write_b64 v{V_GA}, {vr(S,2)} offset:{r*SROW + (32 if t == 2 else 0)}"))
            if pv: seq.append((None, f"ds_write_b32 v{V_CP}, v{V_PV}"))
        elif t == 1:
            seq += cvt2(S, S, (r, t))
            seq.append((None, f"s_add_u32 s48, s47, {r*PROW}"))
        else:
            A = acc(r, 1)
            seq += cvt2(A + 2, S, (r, t))
            seq.append(("W2", f"v_permlane16_swap_b32 v{A}, v{A+2}"))
            seq.append((None, f"v_permlane16_swap_b32 v{A+1}, v{A+3}"))
            seq.append((None, f"buffer_store_dwordx4 {vr(A,4)}, v{V_SA}, s[24:27], s48 offen{cfg.stflag}"))
    assert kfull == 5
    def states(frm):
        c = 0
        for l in a.lines[frm + 1:]:
            l = l.strip()
            if l.endswith(":") or l.startswith(";") or l.startswith("."): continue
            c += int(l.split()[1]) + 1 if l.startswith("s_nop") else 1
        return c
    done_at = {}
    last_valu = [0]
    def missing(dep):
        if dep is None: return 0
        if dep == "W2": return max(0, 2 - states(last_valu[0]))
        if dep not in done_at: return None
        return max(0, 8 - states(done_at[dep]))
    nl = [0]
    def emit_ex(txt, k):
        for key, pat in (("C", "v_cvt"), ("P", "v_permlane"), ("V", "ds_write_b64"), ("F", "ds_write_b32"), ("S", "buffer_store")):
            if key in cfg.drop and txt.startswith(pat): return
        if txt.startswith("ds_"):
            nl[0] += 1; q.issue(("st", nl[0]), k, txt)
        else: a(txt)
        if txt.startswith("v_cvt"): last_valu[0] = len(a.lines) - 1
    for k, m in enumerate(ls):
        rho, i, t, qq, g, occ = m
        q.need(names(m), k)
        a(f"v_mfma_f32_16x16x32_bf16 {vr(acc(rho,t),4)}, {vr(regs[('w',g,i,t)],4)}, {vr(regs[('x',g,qq,occ)],4)}, {vr(acc(rho,t),4)}")
        if endk[(rho, t)] == k: done_at[(rho, t)] = len(a.lines) - 1
        cnt = 0
        if k in lplaced:
            q.issue(lplaced[k], k, rd_text(lplaced[k])); cnt += 1
        lim = cfg.exper if (k >= n2 - cfg.rush or k < 6) else 1
        if k < 6: cnt = 1
        while seq and cnt < lim and k < n2 - 1:
            miss = missing(seq[0][0])
            if miss == 0:
                emit_ex(seq.pop(0)[1], k); cnt += 1
            else:
                if miss is not None and miss > 1 and cnt == 0 and k >= n2 - cfg.fill: a("s_nop 1")
                break
    while seq:
        miss = missing(seq[0][0])
        if miss: a(f"s_nop {miss - 1}")
        emit_ex(seq.pop(0)[1], n2)
    if cfg.diag:
        stamp(a, 5)
        a("s_waitcnt vmcnt(0)")
        stamp(a, 6)
        a("s_branch L_dump")
    elif cfg.amp:
        if var == 0: a.label("L_ampall")
        a("s_waitcnt vmcnt(0)")
        a("s_memrealtime s[88:89]")
        a("s_waitcnt lgkmcnt(0)")
        if cfg.amp in ("span", "skew"):
            a("v_mov_b32 v4, 0")
            a("buffer_load_dwordx2 v[6:7], v4, s[80:83], 0 offen sc0 sc1")
            a("s_waitcnt vmcnt(0)")
            a("v_readfirstlane_b32 s86, v6")
            a("v_readfirstlane_b32 s58, v7")
            a("s_nop 3")
            a("s_not_b32 s58, s58")
        lo, hi = {"pro": (58, 86), "all": (58, 88), "loop": (86, 88), "none": (58, 58), "span": (58, 88), "skew": (58, 86), "pt": (58, 86)}[cfg.amp]
        a(f"s_sub_u32 s90, s{hi}, s{lo}")
        a("s_mul_i32 s90, s90, 10")
        if cfg.fixd: a(f"s_mov_b32 s90, {cfg.fixd}")
        if cfg.onlyb >= 0:
            a(f"s_cmp_eq_u32 s2, {cfg.onlyb}")
            a("s_cselect_b32 s90, s90, 0")
        if cfg.wbl2:
            a("buffer_wbl2 sc1")
        a.label(f"L_amp{var}")
        a("s_memrealtime s[76:77]")
        a("s_waitcnt lgkmcnt(0)")
        a("s_sub_u32 s91, s76, s88")
        a("s_cmp_lt_u32 s91, s90")
        a(f"s_cbranch_scc1 L_amp{var}")
        a("s_endpgm")
    else:
        a("s_endpgm")
    if not cfg.slow_near: emit_slow()
    if cfg.entry_last: emit_entry()

def stamp(a, idx):
    a(f"s_memtime s[{60+2*idx}:{61+2*idx}]")
    if idx in (3, 5):
        a(f"s_memrealtime s[{86 if idx == 3 else 88}:{87 if idx == 3 else 89}]")
    a("s_waitcnt lgkmcnt(0)")

def dump_stamps(a, cfg):
    a.label("L_dump")
    a("s_memrealtime s[76:77]")
    a("s_mov_b32 s78, s95")
    a("s_getreg_b32 s79, hwreg(HW_REG_XCC_ID)")
    a("s_waitcnt lgkmcnt(0)")
    a("s_mov_b32 s80, s12")
    a("s_mov_b32 s81, s13")
    a("s_mov_b32 s82, 0x100000")
    a("s_mov_b32 s83, 0x20000")
    a("s_lshl_b32 s84, s2, 3")
    a("s_add_u32 s84, s84, s32")
    a("s_lshl_b32 s84, s84, 6")
    a("v_mov_b32 v4, 0")
    for k, s in enumerate([60, 62, 64, 66, 68, 70, 72, 74, 76, 77, 78, 79, 58, 59, 86, 88]):
        a(f"v_mov_b32 v5, s{s}")
        a(f"buffer_store_dword v5, v4, s[80:83], s84 offen offset:{4*k}")
        a("s_nop 1")
    a("v_and_b32 v1, 63, v0")
    a("v_lshlrev_b32 v4, 2, v1")
    a("v_cmp_gt_u32 vcc, 16, v1")
    a("s_and_saveexec_b64 s[92:93], vcc")
    a("s_lshl_b32 s84, s84, 2")
    a("s_add_u32 s84, s84, 0x40000")
    for k in range(3):
        a(f"buffer_store_dword v{44+k}, v4, s[80:83], s84 offen offset:{64*k}")
    a("s_waitcnt vmcnt(0)")
    a("s_endpgm")

def srd(a, d, p, size):
    a(f"s_mov_b32 s{d}, s{p}")
    a(f"s_and_b32 s{d+1}, s{p+1}, 0xffff")
    a(f"s_mov_b32 s{d+2}, {size}")
    a(f"s_mov_b32 s{d+3}, 0x20000")

def gen(cfg):
    a = Asm()
    hdr = open("standalone__dilated_atrous__vision.s.ref").read().splitlines()
    head = [l for l in hdr[:8] if l.startswith(";") and "@launch" not in l]
    out = "\n".join(head) + "\n"
    out += f"; @launch grid=(256,1,1) block=(512,1,1) lds={LDS_TOTAL}\n"
    out += f""".amdgcn_target "amdgcn-amd-amdhsa--gfx950"
.text
.globl {NAME}_kernel
.p2align 8
.type {NAME}_kernel,@function
{NAME}_kernel:
"""
    def mark(name):
        if cfg.amp == "pt" and cfg.pt == name:
            a("s_memrealtime s[86:87]")
            a("s_waitcnt lgkmcnt(0)")
    def trace(reg, idx):
        if cfg.trace:
            a("s_memtime s[90:91]")
            a(f"s_mov_b32 m0, {idx}")
            a("s_waitcnt lgkmcnt(0)")
            a(f"v_writelane_b32 v{reg}, s90, m0")
    if cfg.diag:
        a("s_memtime s[60:61]")
        a("s_memrealtime s[58:59]")
        a("s_load_dwordx2 s[12:13], s[0:1], 32")
    if cfg.amp: a("s_memrealtime s[58:59]")
    if cfg.amp == "pt": a("s_memrealtime s[86:87]")
    if cfg.amp in ("span", "skew"): a("s_load_dwordx2 s[12:13], s[0:1], 24")
    a("s_load_dwordx4 s[4:7], s[0:1], 0")
    a("s_load_dwordx2 s[8:9], s[0:1], 16")
    if WD: a("s_mov_b32 s94, 0")
    a("s_cmp_ge_u32 s2, 256")
    a("s_cbranch_scc1 L_exit")
    if cfg.lx < 0:
        a("s_and_b32 s28, s2, 1")
        a("s_bfe_u32 s3, s2, 0x20001")
        a("s_lshl_b32 s3, s3, 5")
        a("s_lshr_b32 s33, s2, 3")
        a("s_add_u32 s3, s3, s33")
        a("s_cmp_ge_u32 s3, 126")
        a("s_cbranch_scc1 L_exit")
    else:
        a("s_and_b32 s3, s2, 7")
        a(f"s_sub_u32 s3, s3, {cfg.lx + 1}")
        a("s_and_b32 s3, s3, 7")
        a("s_lshl_b32 s3, s3, 5")
        a("s_lshr_b32 s33, s2, 3")
        a("s_add_u32 s3, s3, s33")
        a("s_cmp_ge_u32 s3, 252")
        a("s_cbranch_scc1 L_exit")
        a("s_cmp_ge_u32 s3, 224")
        a("s_cselect_b32 s33, 14, 112")
        a("s_cselect_b32 s34, 224, 0")
        a("s_cselect_b32 s29, 112, 0")
        a("s_sub_u32 s3, s3, s34")
        a("s_cmp_ge_u32 s3, s33")
        a("s_cselect_b32 s28, 1, 0")
        a("s_cselect_b32 s33, s33, 0")
        a("s_sub_u32 s3, s3, s33")
        a("s_add_u32 s3, s3, s29")
    a("v_lshrrev_b32 v2, 6, v0")
    a("v_and_b32 v1, 63, v0")
    a("v_readfirstlane_b32 s32, v2")
    a("v_lshlrev_b32 v30, 2, v0")
    a(f"v_add_u32 v30, {FLAGS}, v30")
    a("v_mov_b32 v31, 0")
    a("ds_write_b32 v30, v31")
    a("s_mul_i32 s33, s3, 4682")
    a("s_lshr_b32 s33, s33, 16")
    a("s_mul_i32 s34, s33, 14")
    a("s_sub_u32 s34, s3, s34")
    a("s_and_b32 s29, s34, 1")
    a("s_lshr_b32 s30, s34, 1")
    a("s_lshl_b32 s30, s30, 4")
    a("s_mul_i32 s31, s33, 25")
    a("s_lshr_b32 s31, s31, 1")
    a("s_and_b32 s34, s33, 1")
    a("s_lshl_b32 s35, s31, 1")
    a("s_add_u32 s35, s35, s28")
    a(f"s_mul_i32 s35, s35, {ROWB}")
    a("s_lshl_b32 s36, s30, 1")
    a("s_add_u32 s36, s36, s29")
    a("s_mul_i32 s36, s36, 192")
    a("s_lshl_b32 s52, s29, 1")
    a("s_sub_u32 s52, 2, s52")
    a("s_cmp_ge_u32 s32, 4")
    if cfg.cpf:
        a("s_cbranch_scc0 L_ld")
        a("s_bfe_u32 s31, s32, 0x10001")
        a("s_lshl1_add_u32 s31, s34, s31")
        a("s_cmp_eq_u32 s33, 8")
        a("s_cselect_b32 s31, 3, s31")
        a("s_getpc_b64 s[38:39]")
        a.label("L_pc")
        a("s_lshr_b32 s37, s2, 1")
        a("s_and_b32 s37, s37, 0x7c")
        a("s_add_u32 s37, s37, s32")
        a("s_min_u32 s37, s37, (L_end-L_pc)/256-1")
        a("s_lshl_b32 s37, s37, 8")
        a("s_add_u32 s38, s38, s37")
        a("s_addc_u32 s39, s39, 0")
        a("v_mov_b32 v12, s38")
        a("v_mov_b32 v13, s39")
        a("global_load_dword v14, v[12:13], off")
        a("global_load_dword v15, v[12:13], off offset:128")
        if cfg.pads:
            if cfg.pad4:
                a("s_cmp_eq_u32 s32, 4")
                a("s_cbranch_scc1 L_padl")
            a("s_bitcmp1_b32 s32, 0")
            a("s_cbranch_scc0 L_compute")
            a("s_cmp_eq_u32 s31, 0")
            a("s_cbranch_scc1 L_pad0")
            a("s_cmp_eq_u32 s31, 1")
            a("s_cbranch_scc1 L_pad1")
            a("s_cmp_eq_u32 s31, 2")
            a("s_cbranch_scc1 L_pad2")
            a("s_branch L_pad3")
        else:
            a("s_branch L_compute")
        a.label("L_ld")
    else:
        a("s_cbranch_scc1 L_compute")
    if cfg.bench:
        a("v_mov_b32 v31, 100")
        a("ds_write_b32 v30, v31")
        a("s_waitcnt lgkmcnt(0)")
        a("s_barrier")
        a("s_branch L_dump")
    a("s_add_u32 s37, s35, s36")
    a(f"s_sub_u32 s37, s37, {2*PROW + 2*384}")
    a("s_sub_u32 s38, s30, 2")
    a(f"s_mov_b32 s10, {8*PROW}")
    a("s_and_b32 s11, s32, 1")
    a("s_lshl_b32 s15, s11, 4")
    a("v_lshrrev_b32 v13, 2, v1")
    a("v_add_u32 v13, s15, v13")
    a("v_lshrrev_b32 v14, 3, v1")
    a("v_and_b32 v14, 2, v14")
    a("v_and_b32 v15, 3, v1")
    a("v_xor_b32 v14, v14, v15")
    a("v_lshlrev_b32 v14, 4, v14")
    a("v_add_u32 v14, s37, v14")
    a("v_bfrev_b32 v19, 1")
    a("s_movk_i32 s39, 3277")
    a(f"s_mov_b32 s49, {PROW}")
    a("s_movk_i32 s50, 384")
    a("s_movk_i32 s51, 112")
    for b in range(5):
        a("v_mul_u32_u24 v15, s39, v13")
        a("v_lshrrev_b32 v15, 16, v15")
        a("v_mul_u32_u24 v16, 20, v15")
        a("v_sub_u32 v16, v13, v16")
        a("v_add_u32 v17, s38, v16")
        a("v_cmp_gt_u32 vcc, s51, v17")
        a("v_mad_u32_u24 v18, v15, s49, v14")
        a("v_mad_u32_u24 v18, v16, s50, v18")
        a(f"v_cndmask_b32 v{2+b}, v19, v18, vcc")
        if b < 4: a("v_add_u32 v13, 32, v13")
        a(f"v_add_u32 v{7+b}, s10, v{2+b}")
    a("v_add_u32 v12, s10, v7")
    a("s_lshl_b32 s57, s52, 6")
    a("s_lshl_b32 s56, s11, 10")
    a("v_lshlrev_b32 v20, 4, v1")
    a("v_cmp_gt_u32 vcc, 32, v1")
    a("v_xor_b32 v22, 32, v20")
    a("s_mul_i32 s40, s11, 3072")
    a("v_cndmask_b32 v21, v22, v20, vcc")
    a("s_mov_b32 s41, s40")
    a("s_mov_b32 s43, 0")
    assert cfg.wlag <= 4
    a(f"s_movk_i32 s42, {sum(1 << b for b in set([3, 5, 10] + [b + cfg.wlag for b in (3, 5, 10)])):#x}")
    a("s_cmp_ge_u32 s32, 2")
    a("s_cselect_b32 s95, 1, 0")
    a(f"s_mov_b32 s54, {WBASE}")
    a("s_mul_i32 s37, s52, 6144")
    a("s_mov_b32 s55, 0")
    a("s_mov_b32 s15, 15")
    a("v_mov_b32 v26, 1")
    a("s_waitcnt lgkmcnt(0)")
    if cfg.diag: stamp(a, 1)
    mark("karg")
    srd(a, 16, 4, XBYTES)
    srd(a, 20, 6, WBYTES)
    a("s_cmp_eq_u32 s95, 1")
    a("s_cbranch_scc0 L_ws")
    a.label("L_x_loop")
    for blk, pcs in enumerate(((0, 1, 3), (4, 5, 6), (2, 7), (8, 9, 10))):
        a(f"s_bitcmp1_b32 s15, {blk}")
        a(f"s_cbranch_scc0 " + (f"L_x{blk}" if blk < 3 else "L_x_next"))
        for j, k in enumerate(pcs):
            if j == 0: a(f"s_add_u32 m0, s56, {k*2048}")
            else: a(f"s_addk_i32 m0, {(k - pcs[j-1])*2048}")
            a("s_nop 0")
            a(f"buffer_load_dwordx4 v{2+k}, s[16:19], s57 offen{cfg.xflag} lds")
        if blk in (1, 2):
            a("s_cmp_lg_u32 s55, 0")
            a(f"s_cbranch_scc1 L_x{blk}")
            if blk == 1:
                if cfg.diag: stamp(a, 2)
                a("s_barrier")
            else:
                a("s_waitcnt vmcnt(2)")
                a("ds_write_b32 v30, v26")
                mark("x1")
                trace(45, 0)
        if blk < 3: a.label(f"L_x{blk}")
    a("s_cmp_lg_u32 s55, 0")
    a("s_cbranch_scc1 L_x_sig")
    a("v_mov_b32 v31, 2")
    a("s_waitcnt vmcnt(3)")
    a("ds_write_b32 v30, v31")
    mark("x2")
    trace(45, 2)
    a("s_branch L_x_w1")
    a.label("L_ws_act")
    a("s_cmp_lg_u32 s43, 3")
    a("s_cbranch_scc1 L_ws_sig")
    a("s_barrier")
    a("s_branch L_ws")
    a.label("L_ws_sig")
    a(f"s_cmp_ge_u32 s41, {5*92160}")
    a(f"s_cselect_b32 s50, {5*92160 - 18432}, 0")
    a("s_sub_u32 s41, s41, s50")
    L = cfg.wlag
    a(f"s_bitcmp0_b32 {sum(1 << (b + L) for b in (3, 5, 10))}, s43")
    a("s_cbranch_scc1 L_ws")
    a(f"s_sub_u32 s50, s43, {L + 2}")
    a("s_min_u32 s50, s50, 4")
    a("v_mov_b32 v27, s50")
    a(f"s_waitcnt vmcnt({3*L})")
    a("ds_write_b32 v30, v27")
    trace(46, "s50")
    if cfg.amp == "pt" and cfg.pt in ("w1", "w3", "w4"):
        a(f"s_cmp_lg_u32 s50, {cfg.pt[1]}")
        a("s_cbranch_scc1 L_ws")
        mark(cfg.pt)
    a.label("L_ws")
    a("s_add_u32 m0, s54, s40")
    a("s_add_u32 s50, s37, s41")
    for k in range(3):
        a(f"buffer_load_dwordx4 v{20+k}, s[20:23], s50 offen offset:{k*1024}{cfg.wflag} lds")
    a("s_addk_i32 s40, 6144")
    a("s_add_u32 s41, s41, 92160")
    a("s_add_u32 s43, s43, 1")
    a("s_bitcmp1_b32 s42, s43")
    a("s_cbranch_scc1 L_ws_act")
    a("s_cmp_lt_u32 s43, 15")
    a("s_cbranch_scc1 L_ws")
    a("s_sub_u32 s55, 2, s32")
    a("s_add_u32 s50, s55, 2")
    a("v_mov_b32 v31, s50")
    a("s_mov_b32 s53, s55")
    a(f"s_mul_i32 s50, s55, {WBUF}")
    a("s_add_u32 s54, s54, s50")
    a("s_lshr_b32 s39, s2, 4")
    a("s_mul_i32 s38, s39, 52")
    a("s_lshr_b32 s38, s38, 8")
    a("s_mul_i32 s38, s38, 5")
    a("s_sub_u32 s39, s39, s38")
    if cfg.wun:
        for i in range(5):
            a(f"s_mul_i32 s{40+i}, s39, 6144")
            a(f"s_mul_i32 s{45+i}, s{40+i}, 15")
            if i < 4:
                a("s_add_u32 s39, s39, 1")
                a("s_cmp_eq_u32 s39, 5")
                a("s_cselect_b32 s39, 0, s39")
        a("s_branch L_w_adv")
        a.label("L_w_it")
        for i in range(5):
            a(f"s_add_u32 m0, s54, s{40+i}")
            a(f"s_add_u32 s50, s37, s{45+i}")
            for k in range(3):
                a(f"buffer_load_dwordx4 v{20+k}, s[20:23], s50 offen offset:{k*1024}{cfg.wflag} lds")
            a("s_addk_i32 m0, 3072")
            a("s_addk_i32 s50, 3072")
            for k in range(3):
                a(f"buffer_load_dwordx4 v{20+k}, s[20:23], s50 offen offset:{k*1024}{cfg.wflag} lds")
    else:
        a("s_mul_i32 s40, s39, 6144")
        a("s_mul_i32 s41, s39, 92160")
        a("s_movk_i32 s42, 3072")
        a("s_branch L_w_adv")
        a.label("L_w_it")
        a("s_add_u32 m0, s54, s40")
        a("s_add_u32 s50, s37, s41")
        for k in range(3):
            a(f"buffer_load_dwordx4 v{20+k}, s[20:23], s50 offen offset:{k*1024}{cfg.wflag} lds")
        a("s_addk_i32 s40, 3072")
        a("s_add_u32 s41, s41, s42")
        a(f"s_xor_b32 s42, s42, {3072 ^ (92160 - 3072)}")
        a(f"s_cmpk_eq_u32 s40, {WBUF}")
        a("s_cselect_b32 s40, 0, s40")
        a("s_cselect_b32 s41, 0, s41")
        a("s_sub_u32 s43, s43, 1")
        a("s_cbranch_scc0 L_w_it")
    a.label("L_w_adv")
    trace(44, "s55")
    a("v_add_u32 v31, 2, v31")
    a("s_waitcnt vmcnt(0)")
    a("ds_write_b32 v30, v31")
    trace(45, "s55")
    a(f"s_sub_u32 s54, s54, {WBUF}")
    a(f"s_cmp_lt_u32 s54, {WBASE}")
    a(f"s_cselect_b32 s50, {3*WBUF}, 0")
    a("s_add_u32 s54, s54, s50")
    a("s_add_u32 s53, s53, 2")
    a("s_cmp_ge_u32 s53, 5")
    a("s_cselect_b32 s50, 5, 0")
    a("s_sub_u32 s53, s53, s50")
    a("s_lshr_b32 s50, s50, 2")
    a("s_add_u32 s52, s52, s50")
    a("s_cmp_eq_u32 s52, 3")
    a("s_cselect_b32 s52, 0, s52")
    a("s_mul_i32 s37, s53, 3")
    a("s_add_u32 s37, s37, s52")
    a("s_mul_i32 s37, s37, 6144")
    if not cfg.wun: a("s_mov_b32 s43, 9")
    a("s_mov_b32 s51, s55")
    a("s_add_u32 s55, s55, 2")
    a("s_cmp_ge_u32 s55, 15")
    a("s_cbranch_scc1 L_store")
    a("v_and_b32 v23, 3, v1")
    a("v_lshlrev_b32 v23, 8, v23")
    a(f"v_add_u32 v23, {FLAGS + 1024}, v23")
    poll(a, "L_w_poll", 23, 24, "s51", cfg.sleep)
    trace(46, "s55")
    a("s_branch L_w_it")
    if cfg.pad4:
        a.label("L_padl")
        a("s_branch L_compute")
    a.label("L_x_w1")
    C = sum((((thr + 2) << 4) | m) << (8 * k) for k, (thr, m) in enumerate(cfg.xb))
    assert len(cfg.xb) <= 8
    a(f"s_mov_b32 s92, {C & 0xffffffff:#x}")
    a(f"s_mov_b32 s93, {C >> 32:#x}")
    a("s_mov_b32 s55, 1")
    if cfg.trace: a("s_mov_b32 s51, 3")
    a.label("L_x_sig")
    a("v_add_u32 v31, 5, v31")
    a("s_waitcnt vmcnt(0)")
    a("ds_write_b32 v30, v31")
    trace(45, "s51")
    a(f"s_add_u32 s56, s56, {XCH}")
    a("s_add_u32 s57, s57, 64")
    a("s_cmp_eq_u32 s57, 192")
    a("s_cselect_b32 s57, 0, s57")
    a.label("L_x_next")
    a("s_and_b32 s15, s92, 15")
    a("s_cbranch_scc0 L_store")
    a("s_bfe_u32 s51, s92, 0x40004")
    a("s_lshr_b64 s[92:93], s[92:93], 8")
    a("v_and_b32 v22, 1, v1")
    a(f"v_lshlrev_b32 v22, 8, v22")
    a(f"v_add_u32 v22, {FLAGS}, v22")
    poll(a, "L_x_poll", 22, 23, "s51", cfg.sleep)
    trace(44, "s51")
    a("s_branch L_x_loop")
    a.label("L_store")
    srd(a, 24, 8, XBYTES)
    a("s_movk_i32 s49, 208")
    a("s_movk_i32 s50, 384")
    a("v_lshrrev_b32 v11, 2, v1")
    a("v_and_b32 v12, 3, v1")
    a("v_lshlrev_b32 v12, 4, v12")
    a("v_mad_u32_u24 v5, v11, s50, v12")
    a("v_mad_u32_u24 v2, v11, s49, v12")
    a("v_and_b32 v10, 1, v1")
    a("v_lshlrev_b32 v10, 8, v10")
    a("s_lshl_b32 s39, s95, 9")
    a(f"s_add_u32 s39, s39, {FLAGS + 1024}")
    a("v_add_u32 v10, s39, v10")
    a("s_add_u32 s45, s35, s36")
    a("s_or_b32 s38, s34, s95")
    a("s_cmp_eq_u32 s33, 8")
    a("s_cselect_b32 s38, 1, s38")
    a("s_cselect_b32 s43, 6, 7")
    a("s_xor_b32 s38, s38, 1")
    a("s_andn2_b32 s44, s34, s95")
    a("s_add_u32 s39, s34, 6")
    a("s_mul_i32 s39, s39, s95")
    a("s_add_u32 s39, s39, s44")
    a("s_add_u32 s39, s39, 5")
    a("s_cmp_eq_u32 s38, 1")
    a("s_cselect_b32 s39, 0, s39")
    a("s_cselect_b32 s42, 1, -1")
    def rowsetup():
        a("s_mul_i32 s40, s11, s42")
        a("s_add_u32 s39, s39, s40")
        a(f"s_mul_i32 s47, s39, {PROW}")
        a("s_add_u32 s47, s47, s45")
        a(f"s_mul_i32 s48, s39, {SROW}")
        a("v_add_u32 v12, s48, v2")
        a(f"s_mul_i32 s40, s42, {2*PROW}")
        a(f"s_mul_i32 s41, s42, {2*SROW}")
    rowsetup()
    a("s_add_u32 s51, s11, 16")
    a("s_add_u32 s44, s44, 22")
    a.label("L_st_m")
    poll(a, "L_st_mp", 10, 11, "s51", cfg.sleep)
    a(f"ds_read_b128 {vr(16,4)}, v12 offset:64")
    a("v_add_u32 v12, s41, v12")
    a("s_add_u32 s51, s51, 2")
    a("s_waitcnt lgkmcnt(0)")
    a(f"buffer_store_dwordx4 {vr(16,4)}, v5, s[24:27], s47 offen offset:64{cfg.stflag}")
    a("s_add_u32 s47, s47, s40")
    a("s_cmp_lt_u32 s51, s44")
    a("s_cbranch_scc1 L_st_m")
    if cfg.stprio: a(f"s_setprio {cfg.stprio}")
    a("s_cmp_eq_u32 s95, 1")
    a("s_cselect_b32 s39, s43, s34")
    a("s_cmp_eq_u32 s38, 1")
    a("s_cselect_b32 s39, 5, s39")
    a("s_sub_u32 s42, 0, s42")
    rowsetup()
    a("s_add_u32 s51, s11, 25")
    a("s_and_b32 s38, s38, s11")
    a("s_cbranch_scc0 L_st_go")
    a("v_and_b32 v28, 3, v1")
    a("v_lshlrev_b32 v28, 8, v28")
    a(f"v_add_u32 v28, {FLAGS + 1024}, v28")
    a(f"s_add_u32 s45, s45, {6*PROW}")
    poll(a, "L_st_s1", 28, 11, 24, cfg.sleep2)
    for k in range(2): a(f"ds_read_b128 {vr(16+4*k,4)}, v2 offset:{6*SROW + 128*k}")
    for k in range(2):
        a(f"s_waitcnt lgkmcnt({1-k})")
        a(f"buffer_store_dwordx4 {vr(16+4*k,4)}, v5, s[24:27], s45 offen offset:{128*k}{cfg.stflag}")
    a.label("L_st_go")
    poll(a, "L_st_p1", 10, 11, "s51", cfg.sleep2)
    for k in range(2): a(f"ds_read_b128 {vr(16+4*k,4)}, v12 offset:{128*k}")
    a("v_add_u32 v12, s41, v12")
    a("s_add_u32 s51, s51, 2")
    for k in range(2):
        a(f"s_waitcnt lgkmcnt({1-k})")
        a(f"buffer_store_dwordx4 {vr(16+4*k,4)}, v5, s[24:27], s47 offen offset:{128*k}{cfg.stflag}")
    a("s_add_u32 s47, s47, s40")
    a("s_cmp_lt_u32 s51, 30")
    a("s_cbranch_scc1 L_st_go")
    a.label("L_st_end")
    if cfg.amp in ("all", "pt"): a("s_branch L_ampall")
    if cfg.diag:
        stamp(a, 5)
        a("s_waitcnt vmcnt(0)")
        stamp(a, 6)
        dump_stamps(a, cfg)
    a.label("L_exit")
    a("s_endpgm")
    a.label("L_compute")
    if cfg.cbar == 0:
        a("s_waitcnt lgkmcnt(0)")
        a("s_barrier")
    a("s_sub_u32 s37, s32, 4")
    a("s_and_b32 s38, s37, 1")
    a("s_lshr_b32 s37, s37, 1")
    a("s_add_u32 s39, s34, 6")
    a("s_mul_i32 s49, s37, s39")
    a(f"v_mov_b32 v{V_CP}, v30")
    a(f"v_mov_b32 v{V_PV}, 0")
    a("v_and_b32 v32, 15, v1")
    a("v_lshrrev_b32 v33, 4, v1")
    a("v_and_b32 v34, 1, v33")
    a("v_lshrrev_b32 v35, 1, v33")
    a("v_bfe_u32 v36, v1, 2, 2")
    a("v_and_b32 v37, 3, v1")
    a(f"v_lshlrev_b32 v{V_LF}, 8, v37")
    a(f"v_add_u32 v{V_LF}, {FLAGS}, v{V_LF}")
    a("s_lshl_b32 s39, s38, 7")
    a("v_lshlrev_b32 v40, 5, v34")
    a("v_lshl_add_u32 v40, v35, 4, v40")
    a("v_add_u32 v40, s39, v40")
    a("s_lshl_b32 s39, s38, 5")
    a("s_add_u32 s39, s39, 64")
    a("v_lshlrev_b32 v41, 3, v33")
    a("v_add_u32 v41, s39, v41")
    a("v_mul_u32_u24 v38, 384, v32")
    a("v_add_u32 v38, s36, v38")
    a(f"v_add_u32 v{V_SA}, v38, v40")
    a(f"v_add_u32 v{V_SC}, v38, v41")
    a("v_mul_u32_u24 v38, 208, v32")
    a(f"s_mul_i32 s39, s49, {SROW}")
    a("v_add_u32 v38, s39, v38")
    a("s_lshl_b32 s39, s38, 7")
    a(f"v_lshl_add_u32 v{V_GA}, v33, 3, v38")
    a(f"v_add_u32 v{V_GA}, s39, v{V_GA}")
    a(f"v_add_u32 v{V_GB}, v38, v41")
    a(f"s_mul_i32 s47, s49, {PROW}")
    a("s_add_u32 s47, s47, s35")
    a("v_lshl_add_u32 v38, v33, 3, v36")
    a("v_mul_u32_u24 v38, 192, v38")
    a("v_lshl_add_u32 v38, v37, 3, v38")
    a(f"v_add_u32 v38, {WBASE}, v38")
    a("s_add_u32 s39, s38, 2")
    a("v_xor_b32 v39, s39, v34")
    a(f"v_lshl_add_u32 v{V_WA[0]}, v39, 5, v38")
    a("s_lshl_b32 s39, s38, 2")
    a("v_xor_b32 v39, s39, v34")
    a(f"v_lshl_add_u32 v{V_WA[1]}, v39, 5, v38")
    a("v_xor_b32 v39, 1, v39")
    a(f"v_lshl_add_u32 v{V_WA[2]}, v39, 5, v38")
    a("v_lshlrev_b32 v38, 6, v32")
    a("v_lshl_add_u32 v38, v33, 4, v38")
    a(f"s_mul_i32 s39, s49, {XROW}")
    a(f"v_add_u32 v{V_XL}, s39, v38")
    a(f"v_lshrrev_b32 v{V_T}, 3, v{V_XL}")
    a(f"v_and_b32 v{V_T}, 32, v{V_T}")
    a(f"v_xor_b32 v{V_XA[0]}, v{V_XL}, v{V_T}")
    a(f"v_xor_b32 v{V_XA[1]}, 32, v{V_XA[0]}")
    if cfg.mov64:
        for k in range(0, 84, 2): a(f"v_mov_b64 {vr(V_ACC+k,2)}, 0")
    else:
        for k in range(84): a(f"v_mov_b32 v{V_ACC+k}, 0")
    a(f"s_mov_b32 s40, {(1 << 8) | (1 << 13)}")
    a(f"s_mov_b32 s41, {sum(1 << (h + 3) for h in (3, 6, 9, 12))}")
    a(f"s_mov_b32 s44, {(-2*WBUF) & 0xffffffff}")
    a(f"s_mov_b32 s45, {WBUF}")
    a("s_mov_b32 s46, 4")
    if cfg.diag: a("s_mov_b32 s95, 0")
    if cfg.cbar == 1:
        a("s_waitcnt lgkmcnt(0)")
        a("s_barrier")
    if cfg.diag: stamp(a, 1)
    mark("setup")
    srd(a, 24, 8, XBYTES)
    if cfg.prio: a(f"s_setprio {cfg.prio}")
    if cfg.amp in ("span", "skew"): srd(a, 80, 12, 256)
    for var in (1, 2, 3):
        a(f"s_cmp_eq_u32 s31, {var}")
        a(f"s_cbranch_scc1 L_pro{var}")
    if cfg.pads: a("s_branch L_pro0")
    for var in range(4):
        emit_variant(a, var, cfg)
    a.label("L_end")
    a("s_endpgm")
    out += a.text()
    nv = (V_END + 7) // 8 * 8
    out += f""".section .rodata,"a"
.p2align 6
.amdhsa_kernel {NAME}_kernel
  .amdhsa_next_free_vgpr {nv}
  .amdhsa_next_free_sgpr 96
  .amdhsa_accum_offset {nv}
  .amdhsa_group_segment_fixed_size 0
  .amdhsa_kernarg_size 40
  .amdhsa_user_sgpr_count 2
  .amdhsa_user_sgpr_kernarg_segment_ptr 1
  .amdhsa_system_sgpr_workgroup_id_x 1
.end_amdhsa_kernel
"""
    return out

if __name__ == "__main__":
    p = argparse.ArgumentParser()
    p.add_argument("-o", default="standalone__dilated_atrous__vision.s")
    p.add_argument("--diag", action="store_true")
    p.add_argument("--trace", action="store_true")
    p.add_argument("--bar_pos", type=int, default=58)
    p.add_argument("--xbar", type=int, default=40)
    p.add_argument("--lead", type=int, default=5)
    p.add_argument("--safe", type=int, default=8)
    p.add_argument("--prio", type=int, default=1)
    p.add_argument("--align", type=int, default=1)
    p.add_argument("--snake", type=int, default=1)
    p.add_argument("--exper", type=int, default=2)
    p.add_argument("--order", type=int, default=1)
    p.add_argument("--wpf", type=int, default=0)
    p.add_argument("--epf", type=int, default=0)
    p.add_argument("--cpf", type=int, default=1)
    p.add_argument("--sleep", type=int, default=2)
    p.add_argument("--sleep2", type=int, default=0)
    p.add_argument("--stflag", default="sc0 sc1 nt")
    p.add_argument("--wd", type=int, default=1)
    p.add_argument("--amp", default="")
    p.add_argument("--pt", default="")
    p.add_argument("--onlyb", type=int, default=-1)
    p.add_argument("--slow_near", type=int, default=1)
    p.add_argument("--hcap", type=int, default=2)
    p.add_argument("--wlag", type=int, default=2)
    p.add_argument("--wun", type=int, default=0)
    p.add_argument("--hlead", type=int, default=7)
    p.add_argument("--fd", type=int, default=6)
    p.add_argument("--burst", type=int, default=12)
    p.add_argument("--alead", type=int, default=20)
    p.add_argument("--entry_last", type=int, default=0)
    p.add_argument("--pad4", type=int, default=0)
    p.add_argument("--lx", type=int, default=-1)
    p.add_argument("--al8", type=int, default=0)
    p.add_argument("--shift4", type=int, default=0)
    p.add_argument("--rush", type=int, default=30)
    p.add_argument("--fill", type=int, default=0)
    p.add_argument("--pads", type=int, default=1)
    p.add_argument("--nstage", type=int, default=5)
    p.add_argument("--spec", type=int, default=1)
    p.add_argument("--stprio", type=int, default=0)
    p.add_argument("--mov64", type=int, default=1)
    p.add_argument("--xflag", default="")
    p.add_argument("--wflag", default="")
    p.add_argument("--fixd", type=int, default=0)
    p.add_argument("--wbl2", type=int, default=0)
    p.add_argument("--bench", action="store_true")
    p.add_argument("--drop", default="")
    p.add_argument("--cmpd", type=int, default=4)
    p.add_argument("--updstep", type=int, default=1)
    p.add_argument("--xthr", type=int, default=2)
    p.add_argument("--cbar", type=int, default=0)
    p.add_argument("--w2wait", type=int, default=1)
    p.add_argument("--xb", default="3:1,4:2,5:4,6:8,8:3,9:12")
    cfg = p.parse_args()
    cfg.xb = [tuple(int(v) for v in e.split(":")) for e in cfg.xb.split(",")]
    WD = cfg.wd
    if cfg.stflag: cfg.stflag = " " + cfg.stflag
    if cfg.xflag: cfg.xflag = " " + cfg.xflag
    if cfg.wflag: cfg.wflag = " " + cfg.wflag
    open(cfg.o, "w").write(gen(cfg))
```

```python
import sys, argparse

NAME = "standalone__dilated_atrous__vision"
XBYTES = 224 * 224 * 96 * 2
WBYTES = 25 * 96 * 96 * 2
ROWB = 224 * 192
PROW = 2 * ROWB
XCH = 352 * 64
XROW = 20 * 64
WBASE = 3 * XCH
WBUF = 5 * 6144
FLAGS = WBASE + 3 * WBUF
LDS_TOTAL = FLAGS + 2048
SROW = 16 * 208
assert 13 * SROW <= 2 * XCH

class Asm:
    def __init__(self):
        self.lines = []
    def __call__(self, s):
        self.lines.append("    " + s)
    def label(self, l):
        self.lines.append(l + ":")
    def comment(self, s):
        self.lines.append("    ; " + s)
    def text(self):
        return "\n".join(self.lines) + "\n"

def vr(b, n):
    return f"v[{b}:{b+n-1}]"

V_XL = 1
V_XA = (2, 3)
V_WA = (4, 5, 6)
V_SA, V_SC = 7, 8
V_GA, V_GB = 9, 10
V_T = 11
V_XB = (22, 23)
V_CP = 25
V_LF = 26
V_PV = 27
V_F = 28
V_X = 32
V_W = 76
V_ACC = 136
V_EXTRA = V_ACC + 84
V_END = V_EXTRA + 32

TYPES = {
    0: (range(0, 6), range(0, 7), range(0, 6)),
    1: (range(0, 6), range(1, 7), range(0, 7)),
    2: (range(0, 7), range(1, 7), range(1, 7)),
    3: (range(0, 6), range(0, 6), range(0, 6)),
}
OFF = {0: 0, 1: 1, 2: 1, 3: 0}
SPECIAL = {0: 6, 1: 0, 2: 0, 3: None}
LASTHEAD = {
    0: [(0, 0), (0, 1), (6, 1), (0, 2)],
    1: [(0, 0), (1, 0), (1, 1), (0, 2), (1, 2)],
    2: [(0, 0), (1, 0), (1, 1), (2, 0), (1, 2), (2, 1), (2, 2)],
    3: [(0, 0), (0, 1), (1, 0), (0, 2), (1, 1), (1, 2)],
}

def acc(rho, t): return V_ACC + 4 * (rho * 3 + t)
def wreg(i, t): return V_W + 4 * (i * 3 + t)
def xreg(q): return V_X + 4 * q

def chain(rho, t, rev):
    r = list(range(5))
    if rev: r.reverse()
    return [(rho, i, t, rho + i) for i in r]

def steady_order(var, cfg, par=(1, 1, 1)):
    ms = []
    for t in range(3):
        for j, rho in enumerate(TYPES[var][t]): ms += chain(rho, t, cfg.snake and j % 2 == par[t])
    return ms

DIRECT = {0: (5,), 1: (6, 5), 2: (6,), 3: (5,)}

def last_tiles(var):
    order = list(LASTHEAD[var])
    rows = [r for r in range(7) if r not in DIRECT[var]] + list(DIRECT[var])
    for r in rows:
        for t in ((0, 1, 2) if r not in DIRECT[var] else (1, 2, 0)):
            if r in TYPES[var][t] and (r, t) not in order: order.append((r, t))
    return order

def last_order(var, cfg, par=1):
    ms = []
    for j, (r, t) in enumerate(last_tiles(var)): ms += chain(r, t, cfg.snake and j % 2 == par and j >= 4)
    return ms

def uses(ms):
    first, last = {}, {}
    for k, (rho, i, t, q) in enumerate(ms):
        for key in (("w", i, t, 0), ("w", i, t, 1), ("x", q)):
            first.setdefault(key, k); last[key] = k
    return first, last

def read_text(nm):
    if nm[0] == "x":
        q = nm[1]
        return f"ds_read_b128 {vr(xreg(q),4)}, v{V_XA[q & 1]} offset:{q*XROW}"
    _, i, t, h = nm
    return f"ds_read_b64_tr_b16 {vr(wreg(i,t)+2*h,2)}, v{V_WA[t]} offset:{i*6144 + h*768}"

def edf(reads, lo, hi, lead, busy=()):
    placed, pending = {}, list(reads)
    for k in range(lo, hi):
        avail = [r for r in pending if r[1] <= k]
        if not avail: continue
        r = min(avail, key=lambda r: r[2])
        placed[k] = r[0]
        pending.remove(r)
        assert r[2] - k >= lead, (r, k)
    assert not pending, pending
    return placed

def mfma_text(m):
    rho, i, t, q = m
    return f"v_mfma_f32_16x16x32_bf16 {vr(acc(rho,t),4)}, {vr(wreg(i,t),4)}, {vr(xreg(q),4)}, {vr(acc(rho,t),4)}"

class LdsQ:
    def __init__(self, a, safe):
        self.a, self.safe = a, safe
        self.ops = []
        self.done = 0
        self.waits = []
    def issue(self, name, time, text=None):
        self.ops.append((name, time))
        if text: self.a(text)
    def need(self, names, time):
        idx = max(max(j for j, (nm, _) in enumerate(self.ops) if nm == n) for n in names) + 1
        if idx <= self.done: return
        for j, (nm, tm) in enumerate(self.ops):
            if tm <= time - 1 - self.safe: idx = max(idx, j + 1)
        cnt = len(self.ops) - idx
        if cnt > 14:
            idx += cnt - 14; cnt = 14
        self.a(f"s_waitcnt lgkmcnt({cnt})")
        self.waits.append((time, cnt, len(self.ops)))
        self.done = idx

WD = 1
def poll(a, label, vaddr, vtmp, sneed, sleep, wd=True):
    a.label(label)
    if WD and wd:
        a("s_add_u32 s94, s94, 1")
        a("s_bitcmp1_b32 s94, 18")
        a("s_cbranch_scc1 L_exit")
    a(f"ds_read_b32 v{vtmp}, v{vaddr}")
    a("s_waitcnt lgkmcnt(0)")
    a(f"v_cmp_gt_u32 vcc, {sneed}, v{vtmp}")
    if sleep:
        a(f"s_cbranch_vccz {label}_ok")
        a(f"s_sleep {sleep}")
        a(f"s_branch {label}")
        a.label(label + "_ok")
    else:
        a(f"s_cbranch_vccnz {label}")

def isize(l):
    l = l.strip()
    op = l.split()[0]
    if op.startswith(("v_mfma", "ds_", "buffer_", "v_cvt_pk")) or op.endswith("_e64"): return 8
    import re
    for tok in re.split(r"[ ,]+", l)[1:]:
        if re.fullmatch(r"-?\d+|0x[0-9a-f]+", tok) and not op.startswith(("s_waitcnt", "s_nop")):
            v = int(tok, 0)
            if not (-16 <= v <= 64): return 8
    return 4

def align8(lines):
    out = []
    for l in lines:
        op = l.strip().split()[0]
        if op.startswith("v_") and isize(l) == 4:
            l = l.replace(op, op + "_e64", 1)
        out.append(l)
    res, off = [], 0
    for l in out:
        sz = isize(l)
        if sz == 8 and off % 8 == 4:
            res.append("    s_nop 0"); off += 4
        res.append(l); off += sz
    if off % 8 == 4: res.append("    s_nop 0")
    return res

def emit_variant(a, var, cfg):
    bar = cfg.bar_pos if var != 3 else cfg.bar_pos - 3
    best = None
    for par in [(p0, 1, p2) for p0 in (1, 0) for p2 in (1, 0)]:
        ms = steady_order(var, cfg, par)
        n = len(ms)
        first, last = uses(ms)
        reads = [(key, max(last[key], bar, n if (key[0] == "w" and key[2] == 2) else 0), n + first[key]) for key in first]
        placed = edf(reads, bar, n + bar - 16, 0)
        ld = min(n + first[nm] - k for k, nm in placed.items())
        if best is None or ld > best[0]: best = (ld, par, ms, first, last, placed)
    ld, par, ms, first, last, placed = best
    print(f"variant {var}: snake parity {par}, min lead {ld}", file=sys.stderr)
    tail = [(k, placed[k]) for k in sorted(placed) if k < n]
    head = [(k - n, placed[k]) for k in sorted(placed) if k >= n]
    slow = []
    hb, tb = Asm(), Asm()
    q = LdsQ(hb, cfg.safe)
    for k, nm in tail: q.issue(nm, k - n)
    headd, taild = dict(head), dict(tail)
    extra = {}
    def put(k, s): extra.setdefault(k, []).append(s)
    krel = max(k for k, nm in head) + 1
    put(krel - 1, f"v_add_u32 v{V_PV}, 1, v{V_PV}")
    upd = ["s_bitcmp1_b32 s40, s46", f"s_cselect_b32 s42, {XCH - 4*64}, 64",
           "s_bitcmp1_b32 s41, s46", "s_cselect_b32 s43, s44, s45",
           "s_cmp_eq_u32 s46, 16", "s_cselect_b32 s49, 1000, s46",
           f"v_add_u32 v{V_XL}, s42, v{V_XL}", f"v_lshrrev_b32 v{V_T}, 3, v{V_XL}", f"v_and_b32 v{V_T}, 32, v{V_T}",
           f"v_xor_b32 v{V_XA[0]}, v{V_XL}, v{V_T}", f"v_xor_b32 v{V_XA[1]}, 32, v{V_XA[0]}"]
    upd += [f"v_add_u32 v{V_WA[t]}, s43, v{V_WA[t]}" for t in range(3)]
    b0 = krel + 2
    for j, u in enumerate(upd): put(b0 + cfg.updstep * j, u)
    kflag = bar - cfg.cmpd - 9
    assert b0 + cfg.updstep * len(upd) <= kflag
    cur = hb
    for k, m in enumerate(ms):
        rho, i, t, qq = m
        q.need([("w", i, t, 0), ("w", i, t, 1), ("x", qq)], k)
        cur(mfma_text(m))
        D = cfg.drop
        for s in extra.get(k, []): cur(s)
        if k == krel: q.issue(("rel",), k, f"ds_write_b32 v{V_CP}, v{V_PV}")
        if k == kflag: q.issue(("flag",), k, f"ds_read_b32 v{V_F}, v{V_LF}")
        if k == bar - cfg.cmpd - 1: q.need([("flag",)], k + 1)
        if k == bar - cfg.cmpd: cur(f"v_cmp_gt_u32 vcc, s49, v{V_F}")
        if k == bar:
            cur = tb; q.a = tb
        drop = lambda nm: ("l" in D and k in taild) or ("w" in D and nm[0] == "w" and k in taild) or ("x" in D and nm[0] == "x")
        if k in headd: q.issue(headd[k], k, read_text(headd[k]) if not drop(headd[k]) else None)
        if k in taild: q.issue(("next",) + taild[k], k, read_text(taild[k]) if not drop(taild[k]) else None)
        if k == n - 9: cur("s_add_u32 s46, s46, 1")
    bases = {0: (0,), 1: (6,), 2: (0,), 3: (0, 6, 7)}[var]
    def rowstage(r): return 1 if (r <= 2 or 5 <= r <= 10) else (2 if r <= 11 else 3)
    def stage(nm):
        if nm[0] == "w": return 1 if nm[1] <= 2 else 2
        return max(rowstage(b + nm[1]) for b in bases)
    opsof = lambda m: [("w", m[1], m[2], 0), ("w", m[1], m[2], 1), ("x", m[3])]
    hm = list(enumerate(ms[:bar + 1]))
    hm.sort(key=lambda e: (max(stage(nm) for nm in opsof(e[1])), e[0]))
    hm = [m for _, m in hm]
    nH = len(hm)
    hf, _ = uses(hm)
    st_first = {}
    for k, m in enumerate(hm): st_first.setdefault(max(stage(nm) for nm in opsof(m)), k)
    stages = sorted(set(stage(nm) for nm in first))
    kb = {1: -1}
    for sg in stages[1:]:
        kb[sg] = max(st_first.get(sg, nH - 30) - cfg.hlead, kb[max(x for x in kb)] + cfg.fd + 2, cfg.fd)
    def emit_entry():
        a.label(f"L_pro{var}")
        poll(a, f"L_p0_{var}", V_LF, V_F, 1, 0)
        if cfg.diag: stamp(a, 3)
        if cfg.amp and (cfg.amp != "pt" or cfg.pt == "t0"):
            a("s_memrealtime s[86:87]")
            a("s_waitcnt lgkmcnt(0)")
        q1 = LdsQ(a, cfg.safe)
        pend = sorted(first, key=lambda nm: hf.get(nm, nH + first[nm]))
        for nm in [p for p in pend if hf.get(p, 999) < cfg.burst and stage(p) == 1]:
            q1.issue(nm, -1, read_text(nm)); pend.remove(nm)
        fixed = {}
        for sg in stages[1:]:
            fixed.setdefault(kb[sg] - cfg.fd, []).append(("flag", sg))
            fixed.setdefault(kb[sg] - 1, []).append(("cmp", sg))
            fixed.setdefault(kb[sg], []).append(("br", sg))
        todo = [f"v_add_u32 v{V_PV}, 1, v{V_PV}", "REL"] + upd
        kf = nH - 1 - cfg.cmpd - 9
        for k, m in enumerate(hm):
            q1.need(opsof(m), k)
            a(mfma_text(m))
            cnt = 0
            for what, sg in fixed.get(k, []):
                cnt += 1
                if what == "flag": q1.issue(("fl", sg), k, f"ds_read_b32 v{V_F}, v{V_LF}")
                elif what == "cmp":
                    q1.need([("fl", sg)], k + 1 - cfg.safe)
                    a(f"v_cmp_gt_u32 vcc, {sg}, v{V_F}")
                else:
                    a(f"s_cbranch_vccnz L_sl{var}_{sg}")
                    a.label(f"L_sk{var}_{sg}")
                    slow.append((f"L_sl{var}_{sg}", V_LF, sg, f"L_sk{var}_{sg}"))
            if k == kf:
                q1.issue(("flag",), k, f"ds_read_b32 v{V_F}, v{V_LF}"); cnt += 1
            if k == nH - 1 - cfg.cmpd - 1:
                a("s_waitcnt lgkmcnt(0)"); q1.done = len(q1.ops); cnt += 1
            if k == nH - 1 - cfg.cmpd:
                assert not any(t.startswith("s_c") for t in todo)
                a(f"v_cmp_gt_u32 vcc, s49, v{V_F}"); cnt += 1
            while cnt < (cfg.hcap if k >= 8 else 2):
                av = [p for p in pend if kb[stage(p)] <= k]
                if av:
                    q1.issue(av[0], k, read_text(av[0])); pend.remove(av[0])
                elif not pend and todo and cnt < (2 if len(todo) > nH - 6 - k else 1):
                    t = todo.pop(0)
                    if t == "REL": q1.issue(("rel",), k, f"ds_write_b32 v{V_CP}, v{V_PV}")
                    else: a(t)
                else: break
                cnt += 1
            assert not (k >= kf and pend)
        assert not pend and not todo, (pend, todo)
        if cfg.diag: a("s_memtime s[64:65]")
        if cfg.amp == "pt" and cfg.pt == "hend":
            a("s_memrealtime s[86:87]")
            a("s_waitcnt lgkmcnt(0)")
        a(f"s_branch L_sync{var}")
    print(f"   first head: {nH} mfmas, stage starts {st_first}, checks {kb}", file=sys.stderr)
    if cfg.pads:
        a.label(f"L_pad{var}")
        a("s_branch L_compute")
    def emit_slow():
        poll(a, f"L_slow{var}", V_LF, V_F, "s49", 0)
        if cfg.diag:
            a("s_bitset1_b32 s95, s46")
            a("s_cmp_lg_u32 s46, 4")
            a(f"s_cbranch_scc1 L_dg{var}")
            a("s_memtime s[74:75]")
            a("s_waitcnt lgkmcnt(0)")
            a.label(f"L_dg{var}")
        a("s_cmp_eq_u32 s46, 16")
        a(f"s_cbranch_scc1 L_fin{var}")
        a(f"s_branch L_top{var}")
        for lab, va, need, back in slow:
            poll(a, lab, va, V_F, need, 0)
            if cfg.diag: a(f"s_bitset1_b32 s95, {need}")
            a(f"s_branch {back}")
    if not cfg.entry_last: emit_entry()
    if cfg.slow_near: emit_slow()
    if cfg.al8:
        hb.lines = align8(hb.lines); tb.lines = align8(tb.lines)
    if cfg.align: a(".p2align 6")
    a.label(f"L_top{var}")
    a.lines += tb.lines
    a.label(f"L_head{var}")
    a.lines += hb.lines
    a.label(f"L_sync{var}")
    a(f"s_cbranch_vccz L_top{var}")
    a("s_min_u32 s49, s49, 17")
    a(f"v_cmp_gt_u32 vcc, s49, v{V_F}")
    a(f"s_cbranch_vccnz L_slow{var}")
    a.label(f"L_fin{var}")
    a.lines += tb.lines
    if cfg.diag: stamp(a, 4)
    if cfg.amp == "pt" and cfg.pt == "fin":
        a("s_memrealtime s[86:87]")
        a("s_waitcnt lgkmcnt(0)")
    if cfg.cpf: a("s_waitcnt vmcnt(0)")
    rows = TYPES[var]
    down = var == 0
    prow = sorted(set(rows[1]) | set(rows[2]), reverse=down)
    lastrow = prow[-1]
    srow2 = sorted(rows[0], reverse=not down)
    def build(pa, pb):
        out = []
        for j, r in enumerate(rows[0]):
            out += [m + (13, 0) for m in chain(r, 0, cfg.snake and j % 2 == pa)]
        for j, r in enumerate(srow2):
            out += [m + (14, 0) for m in chain(r, 0, cfg.snake and j % 2 == pb)]
        keep = set(range(srow2[-1], srow2[-1] + 5))
        flip = 0
        tiles = []
        for r in prow:
            ts = [t for t in ((1, 2) if flip == 0 else (2, 1)) if r in rows[t]]
            if r == lastrow: ts = [1, 2]
            for j, t in enumerate(ts):
                gs = (14, 13) if j == 0 else (13, 14)
                for g in gs:
                    for m in chain(r, t, (j == 1) != down):
                        out.append(m + (g, 0 if (g == 14 and m[3] in keep) else 1))
                tiles.append((r, t))
            flip = 0 if ts[-1] == 1 else 1
        return out, tiles
    def names(m):
        rho, i, t, qq, g, occ = m
        return [("w", g, i, t, 0), ("w", g, i, t, 1), ("x", g, qq, occ)]
    frag = lambda nm: nm if nm[0] == "x" else nm[:4]
    conv = lambda nm: ("x", 13, nm[1], 0) if nm[0] == "x" else ("w", 13) + nm[1:]
    pre = [(k - n, conv(nm)) for k, nm in tail]
    prenames = set(nm for _, nm in pre)
    slots = [V_X + 4 * j for j in range(26)] + [V_EXTRA + 4 * j for j in range(8)]
    best = None
    for pa in (1, 0):
      for pb in (1, 0):
        ls, ptiles = build(pa, pb)
        lf, ll = {}, {}
        for k, m in enumerate(ls):
            for nm in names(m):
                lf.setdefault(nm, k); ll[nm] = k
        free = {sl: 0 for sl in slots}
        regs = {}
        for nm in prenames:
            sl = xreg(nm[2]) if nm[0] == "x" else wreg(nm[2], nm[3])
            regs[frag(nm)] = sl
            free[sl] = max(free[sl], ll.get(nm, 0))
        rds, early = [], {}
        for nm in sorted(lf, key=lambda v: lf[v]):
            if nm in prenames: continue
            fr = frag(nm)
            if fr not in regs:
                ok = [sl for sl in slots if free[sl] <= lf[nm] - cfg.alead]
                sl = max(ok, key=lambda v: free[v]) if ok else min(slots, key=lambda v: free[v])
                regs[fr] = sl; early[fr] = free[sl]; free[sl] = ll[nm]
            e = early.get(fr, 0)
            if nm[0] == "x" and nm[1] == 14: e = max(e, 6)
            rds.append((nm, e, lf[nm]))
        try: lp = edf(rds, 0, len(ls), 0)
        except AssertionError: continue
        ld2 = min([lf[nm] - k for k, nm in lp.items()] + [lf[nm] - k for k, nm in pre if nm in lf])
        if best is None or ld2 > best[0]: best = (ld2, (pa, pb), ls, lf, lp, regs, ptiles)
    ld2, pars, ls, lf, lplaced, regs, ptiles = best
    print(f"   final segment: parity {pars} min lead {ld2} reads {len(lplaced)}", file=sys.stderr)
    def rd_text(nm):
        if nm[0] == "x":
            _, g, qq, occ = nm
            return f"ds_read_b128 {vr(regs[nm],4)}, v{(V_XA if g == 13 else V_XB)[qq & 1]} offset:{qq*XROW}"
        _, g, i, t, h = nm
        return f"ds_read_b64_tr_b16 {vr(regs[frag(nm)]+2*h,2)}, v{V_WA[t]} offset:{(g-13)*WBUF + i*6144 + h*768}"
    n2 = len(ls)
    q = LdsQ(a, cfg.safe)
    for k, nm in pre: q.issue(nm, k)
    endk = {}
    for k, m in enumerate(ls): endk[(m[0], m[2])] = k
    def cvt2(D, S, tile):
        return [(tile, f"v_cvt_pk_bf16_f32 v{D}, v{S}, v{S+1}"), (tile, f"v_cvt_pk_bf16_f32 v{D+1}, v{S+2}, v{S+3}")]
    seq = [(None, f"v_add_u32 v{V_XL}, 64, v{V_XL}"), (None, f"v_lshrrev_b32 v{V_T}, 3, v{V_XL}"), (None, f"v_and_b32 v{V_T}, 32, v{V_T}"),
           (None, f"v_xor_b32 v{V_XB[0]}, v{V_XL}, v{V_T}"), (None, f"v_xor_b32 v{V_XB[1]}, 32, v{V_XB[0]}")]
    for j, r in enumerate(srow2):
        S = acc(r, 0)
        seq += cvt2(S, S, (r, 0))
        seq += [(None, f"v_mov_b32 v{V_PV}, {16 + j}"), (None, f"ds_write_b64 v{V_GB}, {vr(S,2)} offset:{r*SROW}"),
                (None, f"ds_write_b32 v{V_CP}, v{V_PV}")]
    kfull, seen = 0, set()
    for (r, t) in ptiles:
        S = acc(r, t)
        if r != lastrow:
            seq += cvt2(S, S, (r, t))
            pv = None
            if not (r in rows[1] and r in rows[2]): pv = 24
            elif r in seen:
                pv = 25 + kfull; kfull += 1
            seen.add(r)
            if pv: seq.append((None, f"v_mov_b32 v{V_PV}, {pv}"))
            seq.append((None, f"ds_write_b64 v{V_GA}, {vr(S,2)} offset:{r*SROW + (32 if t == 2 else 0)}"))
            if pv: seq.append((None, f"ds_write_b32 v{V_CP}, v{V_PV}"))
        elif t == 1:
            seq += cvt2(S, S, (r, t))
            seq.append((None, f"s_add_u32 s48, s47, {r*PROW}"))
        else:
            A = acc(r, 1)
            seq += cvt2(A + 2, S, (r, t))
            seq.append(("W2", f"v_permlane16_swap_b32 v{A}, v{A+2}"))
            seq.append((None, f"v_permlane16_swap_b32 v{A+1}, v{A+3}"))
            seq.append((None, f"buffer_store_dwordx4 {vr(A,4)}, v{V_SA}, s[24:27], s48 offen{cfg.stflag}"))
    assert kfull == 5
    def states(frm):
        c = 0
        for l in a.lines[frm + 1:]:
            l = l.strip()
            if l.endswith(":") or l.startswith(";") or l.startswith("."): continue
            c += int(l.split()[1]) + 1 if l.startswith("s_nop") else 1
        return c
    done_at = {}
    last_valu = [0]
    def missing(dep):
        if dep is None: return 0
        if dep == "W2": return max(0, 2 - states(last_valu[0]))
        if dep not in done_at: return None
        return max(0, 8 - states(done_at[dep]))
    nl = [0]
    def emit_ex(txt, k):
        for key, pat in (("C", "v_cvt"), ("P", "v_permlane"), ("V", "ds_write_b64"), ("F", "ds_write_b32"), ("S", "buffer_store")):
            if key in cfg.drop and txt.startswith(pat): return
        if txt.startswith("ds_"):
            nl[0] += 1; q.issue(("st", nl[0]), k, txt)
        else: a(txt)
        if txt.startswith("v_cvt"): last_valu[0] = len(a.lines) - 1
    for k, m in enumerate(ls):
        rho, i, t, qq, g, occ = m
        q.need(names(m), k)
        a(f"v_mfma_f32_16x16x32_bf16 {vr(acc(rho,t),4)}, {vr(regs[('w',g,i,t)],4)}, {vr(regs[('x',g,qq,occ)],4)}, {vr(acc(rho,t),4)}")
        if endk[(rho, t)] == k: done_at[(rho, t)] = len(a.lines) - 1
        cnt = 0
        if k in lplaced:
            q.issue(lplaced[k], k, rd_text(lplaced[k])); cnt += 1
        lim = cfg.exper if (k >= n2 - cfg.rush or k < 6) else 1
        if k < 6: cnt = 1
        while seq and cnt < lim and k < n2 - 1:
            miss = missing(seq[0][0])
            if miss == 0:
                emit_ex(seq.pop(0)[1], k); cnt += 1
            else:
                if miss is not None and miss > 1 and cnt == 0 and k >= n2 - cfg.fill: a("s_nop 1")
                break
    while seq:
        miss = missing(seq[0][0])
        if miss: a(f"s_nop {miss - 1}")
        emit_ex(seq.pop(0)[1], n2)
    if cfg.diag:
        stamp(a, 5)
        a("s_waitcnt vmcnt(0)")
        stamp(a, 6)
        a("s_branch L_dump")
    elif cfg.amp:
        if var == 0: a.label("L_ampall")
        a("s_waitcnt vmcnt(0)")
        a("s_memrealtime s[88:89]")
        a("s_waitcnt lgkmcnt(0)")
        if cfg.amp in ("span", "skew"):
            a("v_mov_b32 v4, 0")
            a("buffer_load_dwordx2 v[6:7], v4, s[80:83], 0 offen sc0 sc1")
            a("s_waitcnt vmcnt(0)")
            a("v_readfirstlane_b32 s86, v6")
            a("v_readfirstlane_b32 s58, v7")
            a("s_nop 3")
            a("s_not_b32 s58, s58")
        lo, hi = {"pro": (58, 86), "all": (58, 88), "loop": (86, 88), "none": (58, 58), "span": (58, 88), "skew": (58, 86), "pt": (58, 86)}[cfg.amp]
        a(f"s_sub_u32 s90, s{hi}, s{lo}")
        a("s_mul_i32 s90, s90, 10")
        if cfg.fixd: a(f"s_mov_b32 s90, {cfg.fixd}")
        if cfg.onlyb >= 0:
            a(f"s_cmp_eq_u32 s2, {cfg.onlyb}")
            a("s_cselect_b32 s90, s90, 0")
        if cfg.wbl2:
            a("buffer_wbl2 sc1")
        a.label(f"L_amp{var}")
        a("s_memrealtime s[76:77]")
        a("s_waitcnt lgkmcnt(0)")
        a("s_sub_u32 s91, s76, s88")
        a("s_cmp_lt_u32 s91, s90")
        a(f"s_cbranch_scc1 L_amp{var}")
        a("s_endpgm")
    else:
        a("s_endpgm")
    if not cfg.slow_near: emit_slow()
    if cfg.entry_last: emit_entry()

def stamp(a, idx):
    a(f"s_memtime s[{60+2*idx}:{61+2*idx}]")
    if idx in (3, 5):
        a(f"s_memrealtime s[{86 if idx == 3 else 88}:{87 if idx == 3 else 89}]")
    a("s_waitcnt lgkmcnt(0)")

def dump_stamps(a, cfg):
    a.label("L_dump")
    a("s_memrealtime s[76:77]")
    a("s_mov_b32 s78, s95")
    a("s_getreg_b32 s79, hwreg(HW_REG_XCC_ID)")
    a("s_waitcnt lgkmcnt(0)")
    a("s_mov_b32 s80, s12")
    a("s_mov_b32 s81, s13")
    a("s_mov_b32 s82, 0x100000")
    a("s_mov_b32 s83, 0x20000")
    a("s_lshl_b32 s84, s2, 3")
    a("s_add_u32 s84, s84, s32")
    a("s_lshl_b32 s84, s84, 6")
    a("v_mov_b32 v4, 0")
    for k, s in enumerate([60, 62, 64, 66, 68, 70, 72, 74, 76, 77, 78, 79, 58, 59, 86, 88]):
        a(f"v_mov_b32 v5, s{s}")
        a(f"buffer_store_dword v5, v4, s[80:83], s84 offen offset:{4*k}")
        a("s_nop 1")
    a("v_and_b32 v1, 63, v0")
    a("v_lshlrev_b32 v4, 2, v1")
    a("v_cmp_gt_u32 vcc, 16, v1")
    a("s_and_saveexec_b64 s[92:93], vcc")
    a("s_lshl_b32 s84, s84, 2")
    a("s_add_u32 s84, s84, 0x40000")
    for k in range(3):
        a(f"buffer_store_dword v{44+k}, v4, s[80:83], s84 offen offset:{64*k}")
    a("s_waitcnt vmcnt(0)")
    a("s_endpgm")

def srd(a, d, p, size):
    a(f"s_mov_b32 s{d}, s{p}")
    a(f"s_and_b32 s{d+1}, s{p+1}, 0xffff")
    a(f"s_mov_b32 s{d+2}, {size}")
    a(f"s_mov_b32 s{d+3}, 0x20000")

def gen(cfg):
    a = Asm()
    hdr = open("standalone__dilated_atrous__vision.s.ref").read().splitlines()
    head = [l for l in hdr[:8] if l.startswith(";") and "@launch" not in l]
    out = "\n".join(head) + "\n"
    out += f"; @launch grid=(256,1,1) block=(512,1,1) lds={LDS_TOTAL}\n"
    out += f""".amdgcn_target "amdgcn-amd-amdhsa--gfx950"
.text
.globl {NAME}_kernel
.p2align 8
.type {NAME}_kernel,@function
{NAME}_kernel:
"""
    def mark(name):
        if cfg.amp == "pt" and cfg.pt == name:
            a("s_memrealtime s[86:87]")
            a("s_waitcnt lgkmcnt(0)")
    def trace(reg, idx):
        if cfg.trace:
            a("s_memtime s[90:91]")
            a(f"s_mov_b32 m0, {idx}")
            a("s_waitcnt lgkmcnt(0)")
            a(f"v_writelane_b32 v{reg}, s90, m0")
    if cfg.diag:
        a("s_memtime s[60:61]")
        a("s_memrealtime s[58:59]")
        a("s_load_dwordx2 s[12:13], s[0:1], 32")
    if cfg.amp: a("s_memrealtime s[58:59]")
    if cfg.amp == "pt": a("s_memrealtime s[86:87]")
    if cfg.amp in ("span", "skew"): a("s_load_dwordx2 s[12:13], s[0:1], 24")
    a("s_load_dwordx4 s[4:7], s[0:1], 0")
    a("s_load_dwordx2 s[8:9], s[0:1], 16")
    if cfg.amp == "pt" and cfg.pt == "k0":
        a("s_waitcnt lgkmcnt(0)")
        mark("k0")
    if WD: a("s_mov_b32 s94, 0")
    a("s_cmp_ge_u32 s2, 256")
    a("s_cbranch_scc1 L_exit")
    if cfg.lx < 0:
        a("s_and_b32 s28, s2, 1")
        a("s_bfe_u32 s3, s2, 0x20001")
        a("s_lshl_b32 s3, s3, 5")
        a("s_lshr_b32 s33, s2, 3")
        a("s_add_u32 s3, s3, s33")
        a("s_cmp_ge_u32 s3, 126")
        a("s_cbranch_scc1 L_exit")
    else:
        a("s_and_b32 s3, s2, 7")
        a(f"s_sub_u32 s3, s3, {cfg.lx + 1}")
        a("s_and_b32 s3, s3, 7")
        a("s_lshl_b32 s3, s3, 5")
        a("s_lshr_b32 s33, s2, 3")
        a("s_add_u32 s3, s3, s33")
        a("s_cmp_ge_u32 s3, 252")
        a("s_cbranch_scc1 L_exit")
        a("s_cmp_ge_u32 s3, 224")
        a("s_cselect_b32 s33, 14, 112")
        a("s_cselect_b32 s34, 224, 0")
        a("s_cselect_b32 s29, 112, 0")
        a("s_sub_u32 s3, s3, s34")
        a("s_cmp_ge_u32 s3, s33")
        a("s_cselect_b32 s28, 1, 0")
        a("s_cselect_b32 s33, s33, 0")
        a("s_sub_u32 s3, s3, s33")
        a("s_add_u32 s3, s3, s29")
    a("v_lshrrev_b32 v2, 6, v0")
    a("v_and_b32 v1, 63, v0")
    a("v_readfirstlane_b32 s32, v2")
    a("v_lshlrev_b32 v30, 2, v0")
    a(f"v_add_u32 v30, {FLAGS}, v30")
    a("v_mov_b32 v31, 0")
    a("ds_write_b32 v30, v31")
    a("s_mul_i32 s33, s3, 4682")
    a("s_lshr_b32 s33, s33, 16")
    a("s_mul_i32 s34, s33, 14")
    a("s_sub_u32 s34, s3, s34")
    a("s_and_b32 s29, s34, 1")
    a("s_lshr_b32 s30, s34, 1")
    a("s_lshl_b32 s30, s30, 4")
    a("s_mul_i32 s31, s33, 25")
    a("s_lshr_b32 s31, s31, 1")
    a("s_and_b32 s34, s33, 1")
    a("s_lshl_b32 s35, s31, 1")
    a("s_add_u32 s35, s35, s28")
    a(f"s_mul_i32 s35, s35, {ROWB}")
    a("s_lshl_b32 s36, s30, 1")
    a("s_add_u32 s36, s36, s29")
    a("s_mul_i32 s36, s36, 192")
    a("s_lshl_b32 s52, s29, 1")
    a("s_sub_u32 s52, 2, s52")
    a("s_cmp_ge_u32 s32, 4")
    if cfg.cpf:
        a("s_cbranch_scc0 L_ld")
        a("s_bfe_u32 s31, s32, 0x10001")
        a("s_lshl1_add_u32 s31, s34, s31")
        a("s_cmp_eq_u32 s33, 8")
        a("s_cselect_b32 s31, 3, s31")
        a("s_getpc_b64 s[38:39]")
        a.label("L_pc")
        a("s_lshr_b32 s37, s2, 1")
        a("s_and_b32 s37, s37, 0x7c")
        a("s_add_u32 s37, s37, s32")
        a("s_min_u32 s37, s37, (L_end-L_pc)/256-1")
        a("s_lshl_b32 s37, s37, 8")
        a("s_add_u32 s38, s38, s37")
        a("s_addc_u32 s39, s39, 0")
        a("v_mov_b32 v12, s38")
        a("v_mov_b32 v13, s39")
        a("global_load_dword v14, v[12:13], off")
        a("global_load_dword v15, v[12:13], off offset:128")
        if cfg.pads:
            if cfg.pad4:
                a("s_cmp_eq_u32 s32, 4")
                a("s_cbranch_scc1 L_padl")
            a("s_bitcmp1_b32 s32, 0")
            a("s_cbranch_scc0 L_compute")
            a("s_cmp_eq_u32 s31, 0")
            a("s_cbranch_scc1 L_pad0")
            a("s_cmp_eq_u32 s31, 1")
            a("s_cbranch_scc1 L_pad1")
            a("s_cmp_eq_u32 s31, 2")
            a("s_cbranch_scc1 L_pad2")
            a("s_branch L_pad3")
        else:
            a("s_branch L_compute")
        a.label("L_ld")
    else:
        a("s_cbranch_scc1 L_compute")
    if cfg.bench:
        a("v_mov_b32 v31, 100")
        a("ds_write_b32 v30, v31")
        a("s_waitcnt lgkmcnt(0)")
        a("s_barrier")
        a("s_branch L_dump")
    a("s_add_u32 s37, s35, s36")
    a(f"s_sub_u32 s37, s37, {2*PROW + 2*384}")
    a("s_sub_u32 s38, s30, 2")
    a(f"s_mov_b32 s10, {8*PROW}")
    a("s_and_b32 s11, s32, 1")
    a("s_lshl_b32 s15, s11, 4")
    a("v_lshrrev_b32 v13, 2, v1")
    a("v_add_u32 v13, s15, v13")
    a("v_lshrrev_b32 v14, 3, v1")
    a("v_and_b32 v14, 2, v14")
    a("v_and_b32 v15, 3, v1")
    a("v_xor_b32 v14, v14, v15")
    a("v_lshlrev_b32 v14, 4, v14")
    a("v_add_u32 v14, s37, v14")
    a("v_bfrev_b32 v19, 1")
    a("s_movk_i32 s39, 3277")
    a(f"s_mov_b32 s49, {PROW}")
    a("s_movk_i32 s50, 384")
    a("s_movk_i32 s51, 112")
    for b in range(5):
        a("v_mul_u32_u24 v15, s39, v13")
        a("v_lshrrev_b32 v15, 16, v15")
        a("v_mul_u32_u24 v16, 20, v15")
        a("v_sub_u32 v16, v13, v16")
        a("v_add_u32 v17, s38, v16")
        a("v_cmp_gt_u32 vcc, s51, v17")
        a("v_mad_u32_u24 v18, v15, s49, v14")
        a("v_mad_u32_u24 v18, v16, s50, v18")
        a(f"v_cndmask_b32 v{2+b}, v19, v18, vcc")
        if b < 4: a("v_add_u32 v13, 32, v13")
        a(f"v_add_u32 v{7+b}, s10, v{2+b}")
    a("v_add_u32 v12, s10, v7")
    a("s_lshl_b32 s57, s52, 6")
    a("s_lshl_b32 s56, s11, 10")
    a("v_lshlrev_b32 v20, 4, v1")
    a("v_cmp_gt_u32 vcc, 32, v1")
    a("v_xor_b32 v22, 32, v20")
    a("s_mul_i32 s40, s11, 3072")
    a("v_cndmask_b32 v21, v22, v20, vcc")
    a("s_mov_b32 s41, s40")
    a("s_mov_b32 s43, 0")
    assert cfg.wlag <= 4
    a(f"s_movk_i32 s42, {sum(1 << b for b in set([3, 5, 10] + [b + cfg.wlag for b in (3, 5, 10)])):#x}")
    a("s_cmp_ge_u32 s32, 2")
    a("s_cselect_b32 s95, 1, 0")
    a(f"s_mov_b32 s54, {WBASE}")
    a("s_mul_i32 s37, s52, 6144")
    a("s_mov_b32 s55, 0")
    a("s_mov_b32 s15, 15")
    a("v_mov_b32 v26, 1")
    a("s_waitcnt lgkmcnt(0)")
    if cfg.diag: stamp(a, 1)
    mark("karg")
    srd(a, 16, 4, XBYTES)
    srd(a, 20, 6, WBYTES)
    if cfg.amp == "pt" and cfg.pt.startswith("lat"):
        a("s_add_u32 s50, s35, s36")
        a("v_mov_b32 v40, 0")
        for j in range(int(cfg.pt[4])):
            if cfg.pt[3] == "x": a(f"buffer_load_dword v41, v40, s[16:19], s50 offen offset:{j*768}")
            else:
                a("s_lshl_b32 s50, s2, 10")
                a(f"buffer_load_dword v41, v40, s[20:23], s50 offen offset:{j*256}")
            a("s_waitcnt vmcnt(0)")
        mark(cfg.pt)
    a("s_cmp_eq_u32 s95, 1")
    a("s_cbranch_scc0 L_ws")
    a.label("L_x_loop")
    for blk, pcs in enumerate(((0, 1, 3), (4, 5, 6), (2, 7), (8, 9, 10))):
        a(f"s_bitcmp1_b32 s15, {blk}")
        a(f"s_cbranch_scc0 " + (f"L_x{blk}" if blk < 3 else "L_x_next"))
        for j, k in enumerate(pcs):
            if j == 0: a(f"s_add_u32 m0, s56, {k*2048}")
            else: a(f"s_addk_i32 m0, {(k - pcs[j-1])*2048}")
            a("s_nop 0")
            a(f"buffer_load_dwordx4 v{2+k}, s[16:19], s57 offen{cfg.xflag} lds")
        if blk in (1, 2):
            a("s_cmp_lg_u32 s55, 0")
            a(f"s_cbranch_scc1 L_x{blk}")
            if blk == 1:
                if cfg.diag: stamp(a, 2)
                a("s_barrier")
            else:
                a("s_waitcnt vmcnt(2)")
                a("ds_write_b32 v30, v26")
                mark("x1")
                trace(45, 0)
        if blk < 3: a.label(f"L_x{blk}")
    a("s_cmp_lg_u32 s55, 0")
    a("s_cbranch_scc1 L_x_sig")
    a("v_mov_b32 v31, 2")
    a("s_waitcnt vmcnt(3)")
    a("ds_write_b32 v30, v31")
    mark("x2")
    trace(45, 2)
    a("s_branch L_x_w1")
    a.label("L_ws_act")
    a("s_cmp_lg_u32 s43, 3")
    a("s_cbranch_scc1 L_ws_sig")
    a("s_barrier")
    a("s_branch L_ws")
    a.label("L_ws_sig")
    a(f"s_cmp_ge_u32 s41, {5*92160}")
    a(f"s_cselect_b32 s50, {5*92160 - 18432}, 0")
    a("s_sub_u32 s41, s41, s50")
    L = cfg.wlag
    a(f"s_bitcmp0_b32 {sum(1 << (b + L) for b in (3, 5, 10))}, s43")
    a("s_cbranch_scc1 L_ws")
    a(f"s_sub_u32 s50, s43, {L + 2}")
    a("s_min_u32 s50, s50, 4")
    a("v_mov_b32 v27, s50")
    a(f"s_waitcnt vmcnt({3*L})")
    a("ds_write_b32 v30, v27")
    trace(46, "s50")
    if cfg.amp == "pt" and cfg.pt in ("w1", "w3", "w4"):
        a(f"s_cmp_lg_u32 s50, {cfg.pt[1]}")
        a("s_cbranch_scc1 L_ws")
        mark(cfg.pt)
    a.label("L_ws")
    a("s_add_u32 m0, s54, s40")
    a("s_add_u32 s50, s37, s41")
    for k in range(3):
        a(f"buffer_load_dwordx4 v{20+k}, s[20:23], s50 offen offset:{k*1024}{cfg.wflag} lds")
    a("s_addk_i32 s40, 6144")
    a("s_add_u32 s41, s41, 92160")
    a("s_add_u32 s43, s43, 1")
    a("s_bitcmp1_b32 s42, s43")
    a("s_cbranch_scc1 L_ws_act")
    a("s_cmp_lt_u32 s43, 15")
    a("s_cbranch_scc1 L_ws")
    a("s_sub_u32 s55, 2, s32")
    a("s_add_u32 s50, s55, 2")
    a("v_mov_b32 v31, s50")
    a("s_mov_b32 s53, s55")
    a(f"s_mul_i32 s50, s55, {WBUF}")
    a("s_add_u32 s54, s54, s50")
    a("s_lshr_b32 s39, s2, 4")
    a("s_mul_i32 s38, s39, 52")
    a("s_lshr_b32 s38, s38, 8")
    a("s_mul_i32 s38, s38, 5")
    a("s_sub_u32 s39, s39, s38")
    if cfg.wun:
        for i in range(5):
            a(f"s_mul_i32 s{40+i}, s39, 6144")
            a(f"s_mul_i32 s{45+i}, s{40+i}, 15")
            if i < 4:
                a("s_add_u32 s39, s39, 1")
                a("s_cmp_eq_u32 s39, 5")
                a("s_cselect_b32 s39, 0, s39")
        a("s_branch L_w_adv")
        a.label("L_w_it")
        for i in range(5):
            a(f"s_add_u32 m0, s54, s{40+i}")
            a(f"s_add_u32 s50, s37, s{45+i}")
            for k in range(3):
                a(f"buffer_load_dwordx4 v{20+k}, s[20:23], s50 offen offset:{k*1024}{cfg.wflag} lds")
            a("s_addk_i32 m0, 3072")
            a("s_addk_i32 s50, 3072")
            for k in range(3):
                a(f"buffer_load_dwordx4 v{20+k}, s[20:23], s50 offen offset:{k*1024}{cfg.wflag} lds")
    else:
        a("s_mul_i32 s40, s39, 6144")
        a("s_mul_i32 s41, s39, 92160")
        a("s_movk_i32 s42, 3072")
        a("s_branch L_w_adv")
        a.label("L_w_it")
        a("s_add_u32 m0, s54, s40")
        a("s_add_u32 s50, s37, s41")
        for k in range(3):
            a(f"buffer_load_dwordx4 v{20+k}, s[20:23], s50 offen offset:{k*1024}{cfg.wflag} lds")
        a("s_addk_i32 s40, 3072")
        a("s_add_u32 s41, s41, s42")
        a(f"s_xor_b32 s42, s42, {3072 ^ (92160 - 3072)}")
        a(f"s_cmpk_eq_u32 s40, {WBUF}")
        a("s_cselect_b32 s40, 0, s40")
        a("s_cselect_b32 s41, 0, s41")
        a("s_sub_u32 s43, s43, 1")
        a("s_cbranch_scc0 L_w_it")
    a.label("L_w_adv")
    trace(44, "s55")
    a("v_add_u32 v31, 2, v31")
    a("s_waitcnt vmcnt(0)")
    a("ds_write_b32 v30, v31")
    trace(45, "s55")
    a(f"s_sub_u32 s54, s54, {WBUF}")
    a(f"s_cmp_lt_u32 s54, {WBASE}")
    a(f"s_cselect_b32 s50, {3*WBUF}, 0")
    a("s_add_u32 s54, s54, s50")
    a("s_add_u32 s53, s53, 2")
    a("s_cmp_ge_u32 s53, 5")
    a("s_cselect_b32 s50, 5, 0")
    a("s_sub_u32 s53, s53, s50")
    a("s_lshr_b32 s50, s50, 2")
    a("s_add_u32 s52, s52, s50")
    a("s_cmp_eq_u32 s52, 3")
    a("s_cselect_b32 s52, 0, s52")
    a("s_mul_i32 s37, s53, 3")
    a("s_add_u32 s37, s37, s52")
    a("s_mul_i32 s37, s37, 6144")
    if not cfg.wun: a("s_mov_b32 s43, 9")
    a("s_mov_b32 s51, s55")
    a("s_add_u32 s55, s55, 2")
    a("s_cmp_ge_u32 s55, 15")
    a("s_cbranch_scc1 L_store")
    a("v_and_b32 v23, 3, v1")
    a("v_lshlrev_b32 v23, 8, v23")
    a(f"v_add_u32 v23, {FLAGS + 1024}, v23")
    poll(a, "L_w_poll", 23, 24, "s51", cfg.sleep)
    trace(46, "s55")
    a("s_branch L_w_it")
    if cfg.pad4:
        a.label("L_padl")
        a("s_branch L_compute")
    a.label("L_x_w1")
    C = sum((((thr + 2) << 4) | m) << (8 * k) for k, (thr, m) in enumerate(cfg.xb))
    assert len(cfg.xb) <= 8
    a(f"s_mov_b32 s92, {C & 0xffffffff:#x}")
    a(f"s_mov_b32 s93, {C >> 32:#x}")
    a("s_mov_b32 s55, 1")
    if cfg.trace: a("s_mov_b32 s51, 3")
    a.label("L_x_sig")
    a("v_add_u32 v31, 5, v31")
    a("s_waitcnt vmcnt(0)")
    a("ds_write_b32 v30, v31")
    trace(45, "s51")
    a(f"s_add_u32 s56, s56, {XCH}")
    a("s_add_u32 s57, s57, 64")
    a("s_cmp_eq_u32 s57, 192")
    a("s_cselect_b32 s57, 0, s57")
    a.label("L_x_next")
    a("s_and_b32 s15, s92, 15")
    a("s_cbranch_scc0 L_store")
    a("s_bfe_u32 s51, s92, 0x40004")
    a("s_lshr_b64 s[92:93], s[92:93], 8")
    a("v_and_b32 v22, 1, v1")
    a(f"v_lshlrev_b32 v22, 8, v22")
    a(f"v_add_u32 v22, {FLAGS}, v22")
    poll(a, "L_x_poll", 22, 23, "s51", cfg.sleep)
    trace(44, "s51")
    a("s_branch L_x_loop")
    a.label("L_store")
    srd(a, 24, 8, XBYTES)
    a("s_movk_i32 s49, 208")
    a("s_movk_i32 s50, 384")
    a("v_lshrrev_b32 v11, 2, v1")
    a("v_and_b32 v12, 3, v1")
    a("v_lshlrev_b32 v12, 4, v12")
    a("v_mad_u32_u24 v5, v11, s50, v12")
    a("v_mad_u32_u24 v2, v11, s49, v12")
    a("v_and_b32 v10, 1, v1")
    a("v_lshlrev_b32 v10, 8, v10")
    a("s_lshl_b32 s39, s95, 9")
    a(f"s_add_u32 s39, s39, {FLAGS + 1024}")
    a("v_add_u32 v10, s39, v10")
    a("s_add_u32 s45, s35, s36")
    a("s_or_b32 s38, s34, s95")
    a("s_cmp_eq_u32 s33, 8")
    a("s_cselect_b32 s38, 1, s38")
    a("s_cselect_b32 s43, 6, 7")
    a("s_xor_b32 s38, s38, 1")
    a("s_andn2_b32 s44, s34, s95")
    a("s_add_u32 s39, s34, 6")
    a("s_mul_i32 s39, s39, s95")
    a("s_add_u32 s39, s39, s44")
    a("s_add_u32 s39, s39, 5")
    a("s_cmp_eq_u32 s38, 1")
    a("s_cselect_b32 s39, 0, s39")
    a("s_cselect_b32 s42, 1, -1")
    def rowsetup():
        a("s_mul_i32 s40, s11, s42")
        a("s_add_u32 s39, s39, s40")
        a(f"s_mul_i32 s47, s39, {PROW}")
        a("s_add_u32 s47, s47, s45")
        a(f"s_mul_i32 s48, s39, {SROW}")
        a("v_add_u32 v12, s48, v2")
        a(f"s_mul_i32 s40, s42, {2*PROW}")
        a(f"s_mul_i32 s41, s42, {2*SROW}")
    rowsetup()
    a("s_add_u32 s51, s11, 16")
    a("s_add_u32 s44, s44, 22")
    a.label("L_st_m")
    poll(a, "L_st_mp", 10, 11, "s51", cfg.sleep)
    a(f"ds_read_b128 {vr(16,4)}, v12 offset:64")
    a("v_add_u32 v12, s41, v12")
    a("s_add_u32 s51, s51, 2")
    a("s_waitcnt lgkmcnt(0)")
    a(f"buffer_store_dwordx4 {vr(16,4)}, v5, s[24:27], s47 offen offset:64{cfg.stflag}")
    a("s_add_u32 s47, s47, s40")
    a("s_cmp_lt_u32 s51, s44")
    a("s_cbranch_scc1 L_st_m")
    if cfg.stprio: a(f"s_setprio {cfg.stprio}")
    a("s_cmp_eq_u32 s95, 1")
    a("s_cselect_b32 s39, s43, s34")
    a("s_cmp_eq_u32 s38, 1")
    a("s_cselect_b32 s39, 5, s39")
    a("s_sub_u32 s42, 0, s42")
    rowsetup()
    a("s_add_u32 s51, s11, 25")
    a("s_and_b32 s38, s38, s11")
    a("s_cbranch_scc0 L_st_go")
    a("v_and_b32 v28, 3, v1")
    a("v_lshlrev_b32 v28, 8, v28")
    a(f"v_add_u32 v28, {FLAGS + 1024}, v28")
    a(f"s_add_u32 s45, s45, {6*PROW}")
    poll(a, "L_st_s1", 28, 11, 24, cfg.sleep2)
    for k in range(2): a(f"ds_read_b128 {vr(16+4*k,4)}, v2 offset:{6*SROW + 128*k}")
    for k in range(2):
        a(f"s_waitcnt lgkmcnt({1-k})")
        a(f"buffer_store_dwordx4 {vr(16+4*k,4)}, v5, s[24:27], s45 offen offset:{128*k}{cfg.stflag}")
    a.label("L_st_go")
    poll(a, "L_st_p1", 10, 11, "s51", cfg.sleep2)
    for k in range(2): a(f"ds_read_b128 {vr(16+4*k,4)}, v12 offset:{128*k}")
    a("v_add_u32 v12, s41, v12")
    a("s_add_u32 s51, s51, 2")
    for k in range(2):
        a(f"s_waitcnt lgkmcnt({1-k})")
        a(f"buffer_store_dwordx4 {vr(16+4*k,4)}, v5, s[24:27], s47 offen offset:{128*k}{cfg.stflag}")
    a("s_add_u32 s47, s47, s40")
    a("s_cmp_lt_u32 s51, 30")
    a("s_cbranch_scc1 L_st_go")
    a.label("L_st_end")
    if cfg.amp in ("all", "pt"): a("s_branch L_ampall")
    if cfg.diag:
        stamp(a, 5)
        a("s_waitcnt vmcnt(0)")
        stamp(a, 6)
        dump_stamps(a, cfg)
    a.label("L_exit")
    a("s_endpgm")
    a.label("L_compute")
    if cfg.cbar == 0:
        a("s_waitcnt lgkmcnt(0)")
        a("s_barrier")
    a("s_sub_u32 s37, s32, 4")
    a("s_and_b32 s38, s37, 1")
    a("s_lshr_b32 s37, s37, 1")
    a("s_add_u32 s39, s34, 6")
    a("s_mul_i32 s49, s37, s39")
    a(f"v_mov_b32 v{V_CP}, v30")
    a(f"v_mov_b32 v{V_PV}, 0")
    a("v_and_b32 v32, 15, v1")
    a("v_lshrrev_b32 v33, 4, v1")
    a("v_and_b32 v34, 1, v33")
    a("v_lshrrev_b32 v35, 1, v33")
    a("v_bfe_u32 v36, v1, 2, 2")
    a("v_and_b32 v37, 3, v1")
    a(f"v_lshlrev_b32 v{V_LF}, 8, v37")
    a(f"v_add_u32 v{V_LF}, {FLAGS}, v{V_LF}")
    a("s_lshl_b32 s39, s38, 7")
    a("v_lshlrev_b32 v40, 5, v34")
    a("v_lshl_add_u32 v40, v35, 4, v40")
    a("v_add_u32 v40, s39, v40")
    a("s_lshl_b32 s39, s38, 5")
    a("s_add_u32 s39, s39, 64")
    a("v_lshlrev_b32 v41, 3, v33")
    a("v_add_u32 v41, s39, v41")
    a("v_mul_u32_u24 v38, 384, v32")
    a("v_add_u32 v38, s36, v38")
    a(f"v_add_u32 v{V_SA}, v38, v40")
    a(f"v_add_u32 v{V_SC}, v38, v41")
    a("v_mul_u32_u24 v38, 208, v32")
    a(f"s_mul_i32 s39, s49, {SROW}")
    a("v_add_u32 v38, s39, v38")
    a("s_lshl_b32 s39, s38, 7")
    a(f"v_lshl_add_u32 v{V_GA}, v33, 3, v38")
    a(f"v_add_u32 v{V_GA}, s39, v{V_GA}")
    a(f"v_add_u32 v{V_GB}, v38, v41")
    a(f"s_mul_i32 s47, s49, {PROW}")
    a("s_add_u32 s47, s47, s35")
    a("v_lshl_add_u32 v38, v33, 3, v36")
    a("v_mul_u32_u24 v38, 192, v38")
    a("v_lshl_add_u32 v38, v37, 3, v38")
    a(f"v_add_u32 v38, {WBASE}, v38")
    a("s_add_u32 s39, s38, 2")
    a("v_xor_b32 v39, s39, v34")
    a(f"v_lshl_add_u32 v{V_WA[0]}, v39, 5, v38")
    a("s_lshl_b32 s39, s38, 2")
    a("v_xor_b32 v39, s39, v34")
    a(f"v_lshl_add_u32 v{V_WA[1]}, v39, 5, v38")
    a("v_xor_b32 v39, 1, v39")
    a(f"v_lshl_add_u32 v{V_WA[2]}, v39, 5, v38")
    a("v_lshlrev_b32 v38, 6, v32")
    a("v_lshl_add_u32 v38, v33, 4, v38")
    a(f"s_mul_i32 s39, s49, {XROW}")
    a(f"v_add_u32 v{V_XL}, s39, v38")
    a(f"v_lshrrev_b32 v{V_T}, 3, v{V_XL}")
    a(f"v_and_b32 v{V_T}, 32, v{V_T}")
    a(f"v_xor_b32 v{V_XA[0]}, v{V_XL}, v{V_T}")
    a(f"v_xor_b32 v{V_XA[1]}, 32, v{V_XA[0]}")
    if cfg.mov64:
        for k in range(0, 84, 2): a(f"v_mov_b64 {vr(V_ACC+k,2)}, 0")
    else:
        for k in range(84): a(f"v_mov_b32 v{V_ACC+k}, 0")
    a(f"s_mov_b32 s40, {(1 << 8) | (1 << 13)}")
    a(f"s_mov_b32 s41, {sum(1 << (h + 3) for h in (3, 6, 9, 12))}")
    a(f"s_mov_b32 s44, {(-2*WBUF) & 0xffffffff}")
    a(f"s_mov_b32 s45, {WBUF}")
    a("s_mov_b32 s46, 4")
    if cfg.diag: a("s_mov_b32 s95, 0")
    if cfg.cbar == 1:
        a("s_waitcnt lgkmcnt(0)")
        a("s_barrier")
    if cfg.diag: stamp(a, 1)
    mark("setup")
    srd(a, 24, 8, XBYTES)
    if cfg.prio: a(f"s_setprio {cfg.prio}")
    if cfg.amp in ("span", "skew"): srd(a, 80, 12, 256)
    for var in (1, 2, 3):
        a(f"s_cmp_eq_u32 s31, {var}")
        a(f"s_cbranch_scc1 L_pro{var}")
    if cfg.pads: a("s_branch L_pro0")
    for var in range(4):
        emit_variant(a, var, cfg)
    a.label("L_end")
    a("s_endpgm")
    out += a.text()
    nv = (V_END + 7) // 8 * 8
    out += f""".section .rodata,"a"
.p2align 6
.amdhsa_kernel {NAME}_kernel
  .amdhsa_next_free_vgpr {nv}
  .amdhsa_next_free_sgpr 96
  .amdhsa_accum_offset {nv}
  .amdhsa_group_segment_fixed_size 0
  .amdhsa_kernarg_size 40
  .amdhsa_user_sgpr_count 2
  .amdhsa_user_sgpr_kernarg_segment_ptr 1
  .amdhsa_system_sgpr_workgroup_id_x 1
.end_amdhsa_kernel
"""
    return out

if __name__ == "__main__":
    p = argparse.ArgumentParser()
    p.add_argument("-o", default="standalone__dilated_atrous__vision.s")
    p.add_argument("--diag", action="store_true")
    p.add_argument("--trace", action="store_true")
    p.add_argument("--bar_pos", type=int, default=58)
    p.add_argument("--xbar", type=int, default=40)
    p.add_argument("--lead", type=int, default=5)
    p.add_argument("--safe", type=int, default=8)
    p.add_argument("--prio", type=int, default=1)
    p.add_argument("--align", type=int, default=1)
    p.add_argument("--snake", type=int, default=1)
    p.add_argument("--exper", type=int, default=2)
    p.add_argument("--order", type=int, default=1)
    p.add_argument("--wpf", type=int, default=0)
    p.add_argument("--epf", type=int, default=0)
    p.add_argument("--cpf", type=int, default=1)
    p.add_argument("--sleep", type=int, default=2)
    p.add_argument("--sleep2", type=int, default=0)
    p.add_argument("--stflag", default="sc0 sc1 nt")
    p.add_argument("--wd", type=int, default=1)
    p.add_argument("--amp", default="")
    p.add_argument("--pt", default="")
    p.add_argument("--onlyb", type=int, default=-1)
    p.add_argument("--slow_near", type=int, default=1)
    p.add_argument("--hcap", type=int, default=2)
    p.add_argument("--wlag", type=int, default=2)
    p.add_argument("--wun", type=int, default=0)
    p.add_argument("--hlead", type=int, default=7)
    p.add_argument("--fd", type=int, default=6)
    p.add_argument("--burst", type=int, default=12)
    p.add_argument("--alead", type=int, default=20)
    p.add_argument("--entry_last", type=int, default=0)
    p.add_argument("--pad4", type=int, default=0)
    p.add_argument("--lx", type=int, default=-1)
    p.add_argument("--al8", type=int, default=0)
    p.add_argument("--shift4", type=int, default=0)
    p.add_argument("--rush", type=int, default=30)
    p.add_argument("--fill", type=int, default=0)
    p.add_argument("--pads", type=int, default=1)
    p.add_argument("--nstage", type=int, default=5)
    p.add_argument("--spec", type=int, default=1)
    p.add_argument("--stprio", type=int, default=0)
    p.add_argument("--mov64", type=int, default=1)
    p.add_argument("--xflag", default="")
    p.add_argument("--wflag", default="")
    p.add_argument("--fixd", type=int, default=0)
    p.add_argument("--wbl2", type=int, default=0)
    p.add_argument("--bench", action="store_true")
    p.add_argument("--drop", default="")
    p.add_argument("--cmpd", type=int, default=4)
    p.add_argument("--updstep", type=int, default=1)
    p.add_argument("--xthr", type=int, default=2)
    p.add_argument("--cbar", type=int, default=0)
    p.add_argument("--w2wait", type=int, default=1)
    p.add_argument("--xb", default="3:1,4:2,5:4,6:8,8:3,9:12")
    cfg = p.parse_args()
    cfg.xb = [tuple(int(v) for v in e.split(":")) for e in cfg.xb.split(",")]
    WD = cfg.wd
    if cfg.stflag: cfg.stflag = " " + cfg.stflag
    if cfg.xflag: cfg.xflag = " " + cfg.xflag
    if cfg.wflag: cfg.wflag = " " + cfg.wflag
    open(cfg.o, "w").write(gen(cfg))
```

```python
import sys, argparse

NAME = "standalone__dilated_atrous__vision"
XBYTES = 224 * 224 * 96 * 2
WBYTES = 25 * 96 * 96 * 2
ROWB = 224 * 192
PROW = 2 * ROWB
XCH = 360 * 64
XROW = 20 * 64
WBASE = 3 * XCH
WBUF = 5 * 6144
FLAGS = WBASE + 3 * WBUF
SCR = FLAGS + 2048
LDS_TOTAL = SCR + 512
assert LDS_TOTAL <= 163840 and XCH % 512 == 0
SROW = 16 * 208
assert 13 * SROW <= 2 * XCH

class Asm:
    def __init__(self):
        self.lines = []
    def __call__(self, s):
        self.lines.append("    " + s)
    def label(self, l):
        self.lines.append(l + ":")
    def comment(self, s):
        self.lines.append("    ; " + s)
    def text(self):
        return "\n".join(self.lines) + "\n"

def vr(b, n):
    return f"v[{b}:{b+n-1}]"

V_XL = 1
V_XA = (2, 3)
V_WA = (4, 5, 6)
V_SA, V_SC = 7, 8
V_GA, V_GB = 9, 10
V_T = 11
V_XB = (22, 23)
V_CP = 25
V_LF = 26
V_PV = 27
V_F = 28
V_X = 32
V_W = 76
V_ACC = 136
V_EXTRA = V_ACC + 84
V_END = V_EXTRA + 32

TYPES = {
    0: (range(0, 6), range(0, 7), range(0, 6)),
    1: (range(0, 6), range(1, 7), range(0, 7)),
    2: (range(0, 7), range(1, 7), range(1, 7)),
    3: (range(0, 6), range(0, 6), range(0, 6)),
}
OFF = {0: 0, 1: 1, 2: 1, 3: 0}
SPECIAL = {0: 6, 1: 0, 2: 0, 3: None}
LASTHEAD = {
    0: [(0, 0), (0, 1), (6, 1), (0, 2)],
    1: [(0, 0), (1, 0), (1, 1), (0, 2), (1, 2)],
    2: [(0, 0), (1, 0), (1, 1), (2, 0), (1, 2), (2, 1), (2, 2)],
    3: [(0, 0), (0, 1), (1, 0), (0, 2), (1, 1), (1, 2)],
}

def acc(rho, t): return V_ACC + 4 * (rho * 3 + t)
def wreg(i, t): return V_W + 4 * (i * 3 + t)
def xreg(q): return V_X + 4 * q

def chain(rho, t, rev):
    r = list(range(5))
    if rev: r.reverse()
    return [(rho, i, t, rho + i) for i in r]

def steady_order(var, cfg, par=(1, 1, 1)):
    ms = []
    for t in range(3):
        for j, rho in enumerate(TYPES[var][t]): ms += chain(rho, t, cfg.snake and j % 2 == par[t])
    return ms

DIRECT = {0: (5,), 1: (6, 5), 2: (6,), 3: (5,)}

def last_tiles(var):
    order = list(LASTHEAD[var])
    rows = [r for r in range(7) if r not in DIRECT[var]] + list(DIRECT[var])
    for r in rows:
        for t in ((0, 1, 2) if r not in DIRECT[var] else (1, 2, 0)):
            if r in TYPES[var][t] and (r, t) not in order: order.append((r, t))
    return order

def last_order(var, cfg, par=1):
    ms = []
    for j, (r, t) in enumerate(last_tiles(var)): ms += chain(r, t, cfg.snake and j % 2 == par and j >= 4)
    return ms

def uses(ms):
    first, last = {}, {}
    for k, (rho, i, t, q) in enumerate(ms):
        for key in (("w", i, t, 0), ("w", i, t, 1), ("x", q)):
            first.setdefault(key, k); last[key] = k
    return first, last

def read_text(nm):
    if nm[0] == "x":
        q = nm[1]
        return f"ds_read_b128 {vr(xreg(q),4)}, v{V_XA[q & 1]} offset:{q*XROW}"
    _, i, t, h = nm
    return f"ds_read_b64_tr_b16 {vr(wreg(i,t)+2*h,2)}, v{V_WA[t]} offset:{i*6144 + h*768}"

def edf(reads, lo, hi, lead, busy=()):
    placed, pending = {}, list(reads)
    for k in range(lo, hi):
        avail = [r for r in pending if r[1] <= k]
        if not avail: continue
        r = min(avail, key=lambda r: r[2])
        placed[k] = r[0]
        pending.remove(r)
        assert r[2] - k >= lead, (r, k)
    assert not pending, pending
    return placed

def mfma_text(m):
    rho, i, t, q = m
    return f"v_mfma_f32_16x16x32_bf16 {vr(acc(rho,t),4)}, {vr(wreg(i,t),4)}, {vr(xreg(q),4)}, {vr(acc(rho,t),4)}"

class LdsQ:
    def __init__(self, a, safe):
        self.a, self.safe = a, safe
        self.ops = []
        self.done = 0
        self.waits = []
    def issue(self, name, time, text=None):
        self.ops.append((name, time))
        if text: self.a(text)
    def need(self, names, time):
        idx = max(max(j for j, (nm, _) in enumerate(self.ops) if nm == n) for n in names) + 1
        if idx <= self.done: return
        for j, (nm, tm) in enumerate(self.ops):
            if tm <= time - 1 - self.safe: idx = max(idx, j + 1)
        cnt = len(self.ops) - idx
        if cnt > 14:
            idx += cnt - 14; cnt = 14
        self.a(f"s_waitcnt lgkmcnt({cnt})")
        self.waits.append((time, cnt, len(self.ops)))
        self.done = idx

WD = 1
def poll(a, label, vaddr, vtmp, sneed, sleep, wd=True):
    a.label(label)
    if WD and wd:
        a("s_add_u32 s94, s94, 1")
        a("s_bitcmp1_b32 s94, 18")
        a("s_cbranch_scc1 L_exit")
    a(f"ds_read_b32 v{vtmp}, v{vaddr}")
    a("s_waitcnt lgkmcnt(0)")
    a(f"v_cmp_gt_u32 vcc, {sneed}, v{vtmp}")
    if sleep:
        a(f"s_cbranch_vccz {label}_ok")
        a(f"s_sleep {sleep}")
        a(f"s_branch {label}")
        a.label(label + "_ok")
    else:
        a(f"s_cbranch_vccnz {label}")

def isize(l):
    l = l.strip()
    op = l.split()[0]
    if op.startswith(("v_mfma", "ds_", "buffer_", "v_cvt_pk")) or op.endswith("_e64"): return 8
    import re
    for tok in re.split(r"[ ,]+", l)[1:]:
        if re.fullmatch(r"-?\d+|0x[0-9a-f]+", tok) and not op.startswith(("s_waitcnt", "s_nop")):
            v = int(tok, 0)
            if not (-16 <= v <= 64): return 8
    return 4

def align8(lines):
    out = []
    for l in lines:
        op = l.strip().split()[0]
        if op.startswith("v_") and isize(l) == 4:
            l = l.replace(op, op + "_e64", 1)
        out.append(l)
    res, off = [], 0
    for l in out:
        sz = isize(l)
        if sz == 8 and off % 8 == 4:
            res.append("    s_nop 0"); off += 4
        res.append(l); off += sz
    if off % 8 == 4: res.append("    s_nop 0")
    return res

def emit_variant(a, var, cfg):
    bar = cfg.bar_pos if var != 3 else cfg.bar_pos - 3
    best = None
    for par in [(p0, 1, p2) for p0 in (1, 0) for p2 in (1, 0)]:
        ms = steady_order(var, cfg, par)
        n = len(ms)
        first, last = uses(ms)
        reads = [(key, max(last[key], bar, n if (key[0] == "w" and key[2] == 2) else 0), n + first[key]) for key in first]
        placed = edf(reads, bar, n + bar - 16, 0)
        ld = min(n + first[nm] - k for k, nm in placed.items())
        if best is None or ld > best[0]: best = (ld, par, ms, first, last, placed)
    ld, par, ms, first, last, placed = best
    print(f"variant {var}: snake parity {par}, min lead {ld}", file=sys.stderr)
    tail = [(k, placed[k]) for k in sorted(placed) if k < n]
    head = [(k - n, placed[k]) for k in sorted(placed) if k >= n]
    slow = []
    hb, tb = Asm(), Asm()
    q = LdsQ(hb, cfg.safe)
    for k, nm in tail: q.issue(nm, k - n)
    headd, taild = dict(head), dict(tail)
    extra = {}
    def put(k, s): extra.setdefault(k, []).append(s)
    krel = max(k for k, nm in head) + 1
    put(krel - 1, f"v_add_u32 v{V_PV}, 1, v{V_PV}")
    upd = ["s_bitcmp1_b32 s40, s46", f"s_cselect_b32 s42, {XCH - 4*64}, 64",
           "s_bitcmp1_b32 s41, s46", "s_cselect_b32 s43, s44, s45",
           "s_cmp_eq_u32 s46, 16", "s_cselect_b32 s49, 1000, s46",
           f"v_add_u32 v{V_XL}, s42, v{V_XL}", f"v_lshrrev_b32 v{V_T}, 3, v{V_XL}", f"v_and_b32 v{V_T}, 32, v{V_T}",
           f"v_xor_b32 v{V_XA[0]}, v{V_XL}, v{V_T}", f"v_xor_b32 v{V_XA[1]}, 32, v{V_XA[0]}"]
    upd += [f"v_add_u32 v{V_WA[t]}, s43, v{V_WA[t]}" for t in range(3)]
    b0 = krel + 2
    for j, u in enumerate(upd): put(b0 + cfg.updstep * j, u)
    kflag = bar - cfg.cmpd - 9
    assert b0 + cfg.updstep * len(upd) <= kflag
    cur = hb
    for k, m in enumerate(ms):
        rho, i, t, qq = m
        q.need([("w", i, t, 0), ("w", i, t, 1), ("x", qq)], k)
        cur(mfma_text(m))
        D = cfg.drop
        for s in extra.get(k, []): cur(s)
        if k == krel: q.issue(("rel",), k, f"ds_write_b32 v{V_CP}, v{V_PV}")
        if k == kflag: q.issue(("flag",), k, f"ds_read_b32 v{V_F}, v{V_LF}")
        if k == bar - cfg.cmpd - 1: q.need([("flag",)], k + 1)
        if k == bar - cfg.cmpd: cur(f"v_cmp_gt_u32 vcc, s49, v{V_F}")
        if k == bar:
            cur = tb; q.a = tb
        drop = lambda nm: ("l" in D and k in taild) or ("w" in D and nm[0] == "w" and k in taild) or ("x" in D and nm[0] == "x")
        if k in headd: q.issue(headd[k], k, read_text(headd[k]) if not drop(headd[k]) else None)
        if k in taild: q.issue(("next",) + taild[k], k, read_text(taild[k]) if not drop(taild[k]) else None)
        if k == n - 9: cur("s_add_u32 s46, s46, 1")
    bases = {0: (0,), 1: (6,), 2: (0,), 3: (0, 6, 7)}[var]
    def rowstage(r): return 1 if (r <= 3 or 6 <= r <= 9) else (2 if r <= 11 else 3)
    def stage(nm):
        if nm[0] == "w": return 1 if nm[1] <= 2 else 2
        return max(rowstage(b + nm[1]) for b in bases)
    opsof = lambda m: [("w", m[1], m[2], 0), ("w", m[1], m[2], 1), ("x", m[3])]
    hm = list(enumerate(ms[:bar + 1]))
    hm.sort(key=lambda e: (max(stage(nm) for nm in opsof(e[1])), e[0]))
    hm = [m for _, m in hm]
    nH = len(hm)
    hf, _ = uses(hm)
    st_first = {}
    for k, m in enumerate(hm): st_first.setdefault(max(stage(nm) for nm in opsof(m)), k)
    stages = sorted(set(stage(nm) for nm in first))
    kb = {1: -1}
    for sg in stages[1:]:
        kb[sg] = max(st_first.get(sg, nH - 30) - cfg.hlead, kb[max(x for x in kb)] + cfg.fd + 2, cfg.fd)
    def emit_entry():
        a.label(f"L_pro{var}")
        poll(a, f"L_p0_{var}", V_LF, V_F, 1, 0)
        if cfg.diag: stamp(a, 3)
        if cfg.amp and (cfg.amp != "pt" or cfg.pt == "t0"):
            a("s_memrealtime s[86:87]")
            a("s_waitcnt lgkmcnt(0)")
        q1 = LdsQ(a, cfg.safe)
        pend = sorted(first, key=lambda nm: hf.get(nm, nH + first[nm]))
        for nm in [p for p in pend if hf.get(p, 999) < cfg.burst and stage(p) == 1]:
            q1.issue(nm, -1, read_text(nm)); pend.remove(nm)
        fixed = {}
        for sg in stages[1:]:
            fixed.setdefault(kb[sg] - cfg.fd, []).append(("flag", sg))
            fixed.setdefault(kb[sg] - 1, []).append(("cmp", sg))
            fixed.setdefault(kb[sg], []).append(("br", sg))
        todo = [f"v_add_u32 v{V_PV}, 1, v{V_PV}", "REL"] + upd
        kf = nH - 1 - cfg.cmpd - 9
        for k, m in enumerate(hm):
            q1.need(opsof(m), k)
            a(mfma_text(m))
            cnt = 0
            for what, sg in fixed.get(k, []):
                cnt += 1
                if what == "flag": q1.issue(("fl", sg), k, f"ds_read_b32 v{V_F}, v{V_LF}")
                elif what == "cmp":
                    q1.need([("fl", sg)], k + 1 - cfg.safe)
                    a(f"v_cmp_gt_u32 vcc, {sg}, v{V_F}")
                else:
                    a(f"s_cbranch_vccnz L_sl{var}_{sg}")
                    a.label(f"L_sk{var}_{sg}")
                    slow.append((f"L_sl{var}_{sg}", V_LF, sg, f"L_sk{var}_{sg}"))
            if k == kf:
                q1.issue(("flag",), k, f"ds_read_b32 v{V_F}, v{V_LF}"); cnt += 1
            if k == nH - 1 - cfg.cmpd - 1:
                a("s_waitcnt lgkmcnt(0)"); q1.done = len(q1.ops); cnt += 1
            if k == nH - 1 - cfg.cmpd:
                assert not any(t.startswith("s_c") for t in todo)
                a(f"v_cmp_gt_u32 vcc, s49, v{V_F}"); cnt += 1
            while cnt < (cfg.hcap if k >= 8 else 2):
                av = [p for p in pend if kb[stage(p)] <= k]
                if av:
                    q1.issue(av[0], k, read_text(av[0])); pend.remove(av[0])
                elif not pend and todo and cnt < (2 if len(todo) > nH - 6 - k else 1):
                    t = todo.pop(0)
                    if t == "REL": q1.issue(("rel",), k, f"ds_write_b32 v{V_CP}, v{V_PV}")
                    else: a(t)
                else: break
                cnt += 1
            assert not (k >= kf and pend)
        assert not pend and not todo, (pend, todo)
        if cfg.diag: a("s_memtime s[64:65]")
        if cfg.amp == "pt" and cfg.pt == "hend":
            a("s_memrealtime s[86:87]")
            a("s_waitcnt lgkmcnt(0)")
        a(f"s_branch L_sync{var}")
    print(f"   first head: {nH} mfmas, stage starts {st_first}, checks {kb}", file=sys.stderr)
    def emit_slow():
        poll(a, f"L_slow{var}", V_LF, V_F, "s49", 0)
        if cfg.diag:
            a("s_bitset1_b32 s95, s46")
            a("s_cmp_lg_u32 s46, 4")
            a(f"s_cbranch_scc1 L_dg{var}")
            a("s_memtime s[74:75]")
            a("s_waitcnt lgkmcnt(0)")
            a.label(f"L_dg{var}")
        a("s_cmp_eq_u32 s46, 16")
        a(f"s_cbranch_scc1 L_fin{var}")
        a(f"s_branch L_top{var}")
        for lab, va, need, back in slow:
            poll(a, lab, va, V_F, need, 0)
            if cfg.diag: a(f"s_bitset1_b32 s95, {need}")
            a(f"s_branch {back}")
    if not cfg.entry_last: emit_entry()
    if cfg.pads:
        a.label(f"L_pad{var}")
        a(f"s_branch L_pro{var}")
    if cfg.slow_near: emit_slow()
    if cfg.al8:
        hb.lines = align8(hb.lines); tb.lines = align8(tb.lines)
    if cfg.align: a(".p2align 6")
    a.label(f"L_top{var}")
    a.lines += tb.lines
    a.label(f"L_head{var}")
    a.lines += hb.lines
    a.label(f"L_sync{var}")
    a(f"s_cbranch_vccz L_top{var}")
    a("s_min_u32 s49, s49, 17")
    a(f"v_cmp_gt_u32 vcc, s49, v{V_F}")
    a(f"s_cbranch_vccnz L_slow{var}")
    a.label(f"L_fin{var}")
    a.lines += tb.lines
    if cfg.diag: stamp(a, 4)
    if cfg.amp == "pt" and cfg.pt == "fin":
        a("s_memrealtime s[86:87]")
        a("s_waitcnt lgkmcnt(0)")
    if cfg.cpf: a("s_waitcnt vmcnt(0)")
    rows = TYPES[var]
    down = var == 0
    prow = sorted(set(rows[1]) | set(rows[2]), reverse=down)
    lastrow = prow[-1]
    srow2 = sorted(rows[0], reverse=not down)
    def build(pa, pb):
        out = []
        for j, r in enumerate(rows[0]):
            out += [m + (13, 0) for m in chain(r, 0, cfg.snake and j % 2 == pa)]
        for j, r in enumerate(srow2):
            out += [m + (14, 0) for m in chain(r, 0, cfg.snake and j % 2 == pb)]
        keep = set(range(srow2[-1], srow2[-1] + 5))
        flip = 0
        tiles = []
        for r in prow:
            ts = [t for t in ((1, 2) if flip == 0 else (2, 1)) if r in rows[t]]
            if r == lastrow: ts = [1, 2]
            for j, t in enumerate(ts):
                gs = (14, 13) if j == 0 else (13, 14)
                for g in gs:
                    for m in chain(r, t, (j == 1) != down):
                        out.append(m + (g, 0 if (g == 14 and m[3] in keep) else 1))
                tiles.append((r, t))
            flip = 0 if ts[-1] == 1 else 1
        return out, tiles
    def names(m):
        rho, i, t, qq, g, occ = m
        return [("w", g, i, t, 0), ("w", g, i, t, 1), ("x", g, qq, occ)]
    frag = lambda nm: nm if nm[0] == "x" else nm[:4]
    conv = lambda nm: ("x", 13, nm[1], 0) if nm[0] == "x" else ("w", 13) + nm[1:]
    pre = [(k - n, conv(nm)) for k, nm in tail]
    prenames = set(nm for _, nm in pre)
    slots = [V_X + 4 * j for j in range(26)] + [V_EXTRA + 4 * j for j in range(8)]
    best = None
    for pa in (1, 0):
      for pb in (1, 0):
        ls, ptiles = build(pa, pb)
        lf, ll = {}, {}
        for k, m in enumerate(ls):
            for nm in names(m):
                lf.setdefault(nm, k); ll[nm] = k
        free = {sl: 0 for sl in slots}
        regs = {}
        for nm in prenames:
            sl = xreg(nm[2]) if nm[0] == "x" else wreg(nm[2], nm[3])
            regs[frag(nm)] = sl
            free[sl] = max(free[sl], ll.get(nm, 0))
        rds, early = [], {}
        for nm in sorted(lf, key=lambda v: lf[v]):
            if nm in prenames: continue
            fr = frag(nm)
            if fr not in regs:
                ok = [sl for sl in slots if free[sl] <= lf[nm] - cfg.alead]
                sl = max(ok, key=lambda v: free[v]) if ok else min(slots, key=lambda v: free[v])
                regs[fr] = sl; early[fr] = free[sl]; free[sl] = ll[nm]
            e = early.get(fr, 0)
            if nm[0] == "x" and nm[1] == 14: e = max(e, 6)
            rds.append((nm, e, lf[nm]))
        try: lp = edf(rds, 0, len(ls), 0)
        except AssertionError: continue
        ld2 = min([lf[nm] - k for k, nm in lp.items()] + [lf[nm] - k for k, nm in pre if nm in lf])
        if best is None or ld2 > best[0]: best = (ld2, (pa, pb), ls, lf, lp, regs, ptiles)
    ld2, pars, ls, lf, lplaced, regs, ptiles = best
    print(f"   final segment: parity {pars} min lead {ld2} reads {len(lplaced)}", file=sys.stderr)
    def rd_text(nm):
        if nm[0] == "x":
            _, g, qq, occ = nm
            return f"ds_read_b128 {vr(regs[nm],4)}, v{(V_XA if g == 13 else V_XB)[qq & 1]} offset:{qq*XROW}"
        _, g, i, t, h = nm
        return f"ds_read_b64_tr_b16 {vr(regs[frag(nm)]+2*h,2)}, v{V_WA[t]} offset:{(g-13)*WBUF + i*6144 + h*768}"
    n2 = len(ls)
    q = LdsQ(a, cfg.safe)
    for k, nm in pre: q.issue(nm, k)
    endk = {}
    for k, m in enumerate(ls): endk[(m[0], m[2])] = k
    def cvt2(D, S, tile):
        return [(tile, f"v_cvt_pk_bf16_f32 v{D}, v{S}, v{S+1}"), (tile, f"v_cvt_pk_bf16_f32 v{D+1}, v{S+2}, v{S+3}")]
    seq = [(None, f"v_add_u32 v{V_XL}, 64, v{V_XL}"), (None, f"v_lshrrev_b32 v{V_T}, 3, v{V_XL}"), (None, f"v_and_b32 v{V_T}, 32, v{V_T}"),
           (None, f"v_xor_b32 v{V_XB[0]}, v{V_XL}, v{V_T}"), (None, f"v_xor_b32 v{V_XB[1]}, 32, v{V_XB[0]}")]
    for j, r in enumerate(srow2):
        S = acc(r, 0)
        seq += cvt2(S, S, (r, 0))
        seq += [(None, f"v_mov_b32 v{V_PV}, {16 + j}"), (None, f"ds_write_b64 v{V_GB}, {vr(S,2)} offset:{r*SROW}"),
                (None, f"ds_write_b32 v{V_CP}, v{V_PV}")]
    kfull, seen = 0, set()
    for (r, t) in ptiles:
        S = acc(r, t)
        if r != lastrow:
            seq += cvt2(S, S, (r, t))
            pv = None
            if not (r in rows[1] and r in rows[2]): pv = 24
            elif r in seen:
                pv = 25 + kfull; kfull += 1
            seen.add(r)
            if pv: seq.append((None, f"v_mov_b32 v{V_PV}, {pv}"))
            seq.append((None, f"ds_write_b64 v{V_GA}, {vr(S,2)} offset:{r*SROW + (32 if t == 2 else 0)}"))
            if pv: seq.append((None, f"ds_write_b32 v{V_CP}, v{V_PV}"))
        elif t == 1:
            seq += cvt2(S, S, (r, t))
            seq.append((None, f"s_add_u32 s48, s47, {r*PROW}"))
        else:
            A = acc(r, 1)
            seq += cvt2(A + 2, S, (r, t))
            seq.append(("W2", f"v_permlane16_swap_b32 v{A}, v{A+2}"))
            seq.append((None, f"v_permlane16_swap_b32 v{A+1}, v{A+3}"))
            seq.append((None, f"buffer_store_dwordx4 {vr(A,4)}, v{V_SA}, s[24:27], s48 offen{cfg.stflag}"))
    assert kfull == 5
    def states(frm):
        c = 0
        for l in a.lines[frm + 1:]:
            l = l.strip()
            if l.endswith(":") or l.startswith(";") or l.startswith("."): continue
            c += int(l.split()[1]) + 1 if l.startswith("s_nop") else 1
        return c
    done_at = {}
    last_valu = [0]
    def missing(dep):
        if dep is None: return 0
        if dep == "W2": return max(0, 2 - states(last_valu[0]))
        if dep not in done_at: return None
        return max(0, 8 - states(done_at[dep]))
    nl = [0]
    def emit_ex(txt, k):
        for key, pat in (("C", "v_cvt"), ("P", "v_permlane"), ("V", "ds_write_b64"), ("F", "ds_write_b32"), ("S", "buffer_store")):
            if key in cfg.drop and txt.startswith(pat): return
        if txt.startswith("ds_"):
            nl[0] += 1; q.issue(("st", nl[0]), k, txt)
        else: a(txt)
        if txt.startswith("v_cvt"): last_valu[0] = len(a.lines) - 1
    for k, m in enumerate(ls):
        rho, i, t, qq, g, occ = m
        q.need(names(m), k)
        a(f"v_mfma_f32_16x16x32_bf16 {vr(acc(rho,t),4)}, {vr(regs[('w',g,i,t)],4)}, {vr(regs[('x',g,qq,occ)],4)}, {vr(acc(rho,t),4)}")
        if endk[(rho, t)] == k: done_at[(rho, t)] = len(a.lines) - 1
        cnt = 0
        if k in lplaced:
            q.issue(lplaced[k], k, rd_text(lplaced[k])); cnt += 1
        lim = cfg.exper if (k >= n2 - cfg.rush or k < 6) else 1
        if k < 6: cnt = 1
        while seq and cnt < lim and k < n2 - 1:
            miss = missing(seq[0][0])
            if miss == 0:
                emit_ex(seq.pop(0)[1], k); cnt += 1
            else:
                if miss is not None and miss > 1 and cnt == 0 and k >= n2 - cfg.fill: a("s_nop 1")
                break
    while seq:
        miss = missing(seq[0][0])
        if miss: a(f"s_nop {miss - 1}")
        emit_ex(seq.pop(0)[1], n2)
    if cfg.diag:
        stamp(a, 5)
        a("s_waitcnt vmcnt(0)")
        stamp(a, 6)
        a("s_branch L_dump")
    elif cfg.amp:
        if var == 0: a.label("L_ampall")
        a("s_waitcnt vmcnt(0)")
        a("s_memrealtime s[88:89]")
        a("s_waitcnt lgkmcnt(0)")
        if cfg.amp in ("span", "skew"):
            a("v_mov_b32 v4, 0")
            a("buffer_load_dwordx2 v[6:7], v4, s[80:83], 0 offen sc0 sc1")
            a("s_waitcnt vmcnt(0)")
            a("v_readfirstlane_b32 s86, v6")
            a("v_readfirstlane_b32 s58, v7")
            a("s_nop 3")
            a("s_not_b32 s58, s58")
        lo, hi = {"pro": (58, 86), "all": (58, 88), "loop": (86, 88), "none": (58, 58), "span": (58, 88), "skew": (58, 86), "pt": (58, 86)}[cfg.amp]
        a(f"s_sub_u32 s90, s{hi}, s{lo}")
        a("s_mul_i32 s90, s90, 10")
        if cfg.fixd: a(f"s_mov_b32 s90, {cfg.fixd}")
        if cfg.onlyb >= 0:
            a(f"s_cmp_eq_u32 s2, {cfg.onlyb}")
            a("s_cselect_b32 s90, s90, 0")
        if cfg.wbl2:
            a("buffer_wbl2 sc1")
        a.label(f"L_amp{var}")
        a("s_memrealtime s[76:77]")
        a("s_waitcnt lgkmcnt(0)")
        a("s_sub_u32 s91, s76, s88")
        a("s_cmp_lt_u32 s91, s90")
        a(f"s_cbranch_scc1 L_amp{var}")
        a("s_endpgm")
    else:
        a("s_endpgm")
    if not cfg.slow_near: emit_slow()
    if cfg.entry_last: emit_entry()

def stamp(a, idx):
    a(f"s_memtime s[{60+2*idx}:{61+2*idx}]")
    if idx in (3, 5):
        a(f"s_memrealtime s[{86 if idx == 3 else 88}:{87 if idx == 3 else 89}]")
    a("s_waitcnt lgkmcnt(0)")

def dump_stamps(a, cfg):
    a.label("L_dump")
    a("s_memrealtime s[76:77]")
    a("s_mov_b32 s78, s95")
    a("s_getreg_b32 s79, hwreg(HW_REG_XCC_ID)")
    a("s_waitcnt lgkmcnt(0)")
    a("s_mov_b32 s80, s12")
    a("s_mov_b32 s81, s13")
    a("s_mov_b32 s82, 0x100000")
    a("s_mov_b32 s83, 0x20000")
    a("s_lshl_b32 s84, s2, 3")
    a("s_add_u32 s84, s84, s32")
    a("s_lshl_b32 s84, s84, 6")
    a("v_mov_b32 v4, 0")
    for k, s in enumerate([60, 62, 64, 66, 68, 70, 72, 74, 76, 77, 78, 79, 58, 59, 86, 88]):
        a(f"v_mov_b32 v5, s{s}")
        a(f"buffer_store_dword v5, v4, s[80:83], s84 offen offset:{4*k}")
        a("s_nop 1")
    a("v_and_b32 v1, 63, v0")
    a("v_lshlrev_b32 v4, 2, v1")
    a("v_cmp_gt_u32 vcc, 16, v1")
    a("s_and_saveexec_b64 s[92:93], vcc")
    a("s_lshl_b32 s84, s84, 2")
    a("s_add_u32 s84, s84, 0x40000")
    for k in range(3):
        a(f"buffer_store_dword v{44+k}, v4, s[80:83], s84 offen offset:{64*k}")
    a("s_waitcnt vmcnt(0)")
    a("s_endpgm")

def srd(a, d, p, size):
    a(f"s_mov_b32 s{d}, s{p}")
    a(f"s_and_b32 s{d+1}, s{p+1}, 0xffff")
    a(f"s_mov_b32 s{d+2}, {size}")
    a(f"s_mov_b32 s{d+3}, 0x20000")

def gen(cfg):
    a = Asm()
    hdr = open("standalone__dilated_atrous__vision.s.ref").read().splitlines()
    head = [l for l in hdr[:8] if l.startswith(";") and "@launch" not in l]
    out = "\n".join(head) + "\n"
    out += f"; @launch grid=(256,1,1) block=(512,1,1) lds={LDS_TOTAL}\n"
    out += f""".amdgcn_target "amdgcn-amd-amdhsa--gfx950"
.text
.globl {NAME}_kernel
.p2align 8
.type {NAME}_kernel,@function
{NAME}_kernel:
"""
    def mark(name):
        if cfg.amp == "pt" and cfg.pt == name:
            a("s_memrealtime s[86:87]")
            a("s_waitcnt lgkmcnt(0)")
    def markn(name):
        if cfg.amp == "pt" and cfg.pt == name: a("s_memrealtime s[86:87]")
    def trace(reg, idx):
        if cfg.trace:
            a("s_memtime s[90:91]")
            a(f"s_mov_b32 m0, {idx}")
            a("s_waitcnt lgkmcnt(0)")
            a(f"v_writelane_b32 v{reg}, s90, m0")
    if cfg.diag:
        a("s_memtime s[60:61]")
        a("s_memrealtime s[58:59]")
        a("s_load_dwordx2 s[12:13], s[0:1], 32")
    if cfg.amp: a("s_memrealtime s[58:59]")
    if cfg.amp == "pt": a("s_memrealtime s[86:87]")
    if cfg.amp in ("span", "skew"): a("s_load_dwordx2 s[12:13], s[0:1], 24")
    a("s_load_dwordx2 s[16:17], s[0:1], 0")
    a("s_load_dwordx2 s[20:21], s[0:1], 8")
    a("v_lshrrev_b32 v2, 6, v0")
    a("v_lshlrev_b32 v30, 2, v0")
    a("v_readfirstlane_b32 s32, v2")
    if cfg.amp == "pt" and cfg.pt == "k0":
        a("s_waitcnt lgkmcnt(0)")
        mark("k0")
    if WD: a("s_mov_b32 s94, 0")
    a("v_and_b32 v1, 63, v0")
    a(f"v_add_u32 v30, {FLAGS}, v30")
    a("v_mov_b32 v31, 0")
    a("s_cmp_ge_u32 s32, 4")
    a("s_cbranch_scc0 L_ld")
    a("s_cmp_eq_u32 s32, 4")
    a("s_cbranch_scc1 L_padA")
    a("s_getpc_b64 s[38:39]")
    a.label("L_pc")
    a("s_lshr_b32 s37, s2, 3")
    a("s_and_b32 s37, s37, 31")
    a("s_mul_i32 s37, s37, 3")
    a("s_add_u32 s37, s37, s32")
    a("s_min_u32 s37, s37, (L_end-L_pc)/384")
    a("s_mulk_i32 s37, 384")
    a("s_add_u32 s38, s38, s37")
    a("s_addc_u32 s39, s39, 0")
    a("v_mov_b32 v12, s38")
    a("v_mov_b32 v13, s39")
    if cfg.cpf == 1:
        a("global_load_dword v14, v[12:13], off")
        a("global_load_dword v15, v[12:13], off offset:128")
        a("global_load_dword v16, v[12:13], off offset:256")
    elif cfg.cpf == 2:
        a(f"s_mov_b32 m0, {SCR}")
        a("s_nop 0")
        for o in (0, 128, 256): a(f"global_load_lds_dword v[12:13], off offset:{o}")
    a("s_cmp_eq_u32 s32, 6")
    a("s_cbranch_scc1 L_compute")
    a("s_cmp_eq_u32 s32, 5")
    a("s_cbranch_scc1 L_padB")
    a("s_branch L_padC")
    def decode():
        a("s_cmp_ge_u32 s2, 256")
        a("s_cbranch_scc1 L_exit")
        a("s_bfe_u32 s3, s2, 0x20001")
        a("s_lshl_b32 s3, s3, 5")
        a("s_lshr_b32 s33, s2, 3")
        a("s_add_u32 s3, s3, s33")
        a("s_cmpk_ge_u32 s3, 126")
        a("s_cbranch_scc1 L_exit")
        a("ds_write_b32 v30, v31")
        a("s_mul_i32 s33, s3, 4682")
        a("s_lshr_b32 s33, s33, 16")
        a("s_mul_i32 s34, s33, 14")
        a("s_sub_u32 s30, s3, s34")
        a("s_and_b32 s29, s30, 1")
        a("s_and_b32 s30, s30, 14")
        a("s_mul_i32 s35, s33, 25")
        a("s_and_b32 s35, s35, -2")
        a("s_and_b32 s34, s2, 1")
        a("s_add_u32 s35, s35, s34")
        a(f"s_mul_i32 s35, s35, {ROWB}")
        a("s_lshl4_add_u32 s36, s30, s29")
        a("s_mulk_i32 s36, 192")
        a("s_and_b32 s34, s33, 1")
    a.label("L_ld")
    decode()
    if cfg.bench:
        a("v_mov_b32 v31, 100")
        a("ds_write_b32 v30, v31")
        a("s_waitcnt lgkmcnt(0)")
        a("s_barrier")
        a("s_branch L_dump")
    a("s_and_b32 s11, s32, 1")
    a("s_lshl_b32 s52, s29, 1")
    a("s_sub_u32 s52, 2, s52")
    a("s_lshl_b32 s57, s52, 6")
    a(f"s_mov_b32 s10, {2*PROW}")
    a(f"s_mul_i32 s37, s11, {PROW}")
    a("s_add_u32 s37, s37, s35")
    a("s_add_u32 s37, s37, s36")
    a(f"s_sub_u32 s37, s37, {2*PROW + 2*384}")
    a("v_lshrrev_b32 v13, 4, v1")
    a("v_add_u32 v13, s11, v13")
    a("v_and_b32 v13, 1, v13")
    a("v_lshlrev_b32 v20, 4, v1")
    a("v_and_b32 v14, 48, v20")
    a("v_lshlrev_b32 v13, 5, v13")
    a("v_xor_b32 v14, v13, v14")
    a("v_lshrrev_b32 v13, 2, v1")
    a("v_mul_u32_u24 v13, 384, v13")
    a("v_add3_u32 v3, v13, v14, s37")
    a("s_cmp_eq_u32 s30, 0")
    a("s_cselect_b32 s38, 8, 0")
    a("v_cmp_le_u32 vcc, s38, v1")
    a("v_bfrev_b32 v19, 1")
    a("s_mul_i32 s56, s11, 1280")
    a("v_cndmask_b32 v2, v19, v3, vcc")
    a("v_cmp_gt_u32 vcc, 32, v1")
    a("v_xor_b32 v22, 32, v20")
    a("s_mul_i32 s41, s11, 3072")
    a("v_cndmask_b32 v21, v22, v20, vcc")
    a(f"s_add_u32 s40, s41, {WBASE}")
    a("s_mul_i32 s37, s52, 6144")
    a("s_mov_b32 s43, 0")
    a(f"s_mov_b32 s18, {XBYTES}")
    a("s_mov_b32 s19, 0x20000")
    a(f"s_mov_b32 s22, {WBYTES}")
    a("s_mov_b32 s23, s19")
    a("s_mov_b32 m0, s56")
    a("s_cmp_ge_u32 s32, 2")
    a("s_cselect_b32 s95, 1, 0")
    markn("b6")
    a("s_waitcnt lgkmcnt(0)")
    if cfg.diag: stamp(a, 1)
    mark("karg")
    a("s_cmp_eq_u32 s95, 1")
    a("s_cbranch_scc0 L_ws")
    order = [0, 1, 3, 4, 2, 5, 6, 7, 8]
    for j, k in enumerate(order):
        if j == cfg.padj:
            a("s_branch L_xA")
            a.label("L_padA")
            a("s_branch L_compute")
            a.label("L_xA")
        a(f"buffer_load_dwordx4 v2, s[16:19], s57 offen{cfg.xflag} lds")
        if j + 1 < len(order):
            d = order[j + 1] - k
            a(f"s_addk_i32 m0, {d*2560}")
            if j + 1 == len(order) - 1: a("v_add_u32 v2, s39, v2")
            elif d == 1: a("v_add_u32 v2, s10, v2")
            else: a(f"v_add_u32 v2, {(d*2*PROW) & 0xffffffff:#x}, v2")
        if j == 3:
            if cfg.diag: stamp(a, 2)
            markn("xi")
            a("s_barrier")
            a("v_mov_b32 v26, 1")
            a("v_mov_b32 v27, 2")
            a("v_mov_b32 v28, 3")
            a("s_lshl_b32 s39, s11, 30")
            a("s_add_u32 s39, s39, s10")
        if j == 5:
            a("s_waitcnt vmcnt(2)")
            a("ds_write_b32 v30, v26")
            mark("x1")
            if cfg.trace:
                a("s_mov_b32 s50, m0"); trace(45, 0); a("s_mov_b32 m0, s50"); a("s_nop 0")
    a("s_cmp_eq_u32 s30, 12")
    a("s_cselect_b32 s50, 8, 16")
    a("v_cmp_gt_u32 vcc, s50, v1")
    a("v_add_u32 v6, 6144, v3")
    a("s_add_u32 m0, s56, 1024")
    a("v_cndmask_b32 v5, v19, v6, vcc")
    a("v_mov_b32 v2, v5")
    a("s_mov_b64 exec, 0xffff")
    for j in range(9):
        a(f"buffer_load_dwordx4 v2, s[16:19], s57 offen{cfg.xflag} lds")
        if j < 8:
            a("s_addk_i32 m0, 2560")
            a("v_add_u32 v2, s39, v2" if j == 7 else "v_add_u32 v2, s10, v2")
    a("s_mov_b64 exec, -1")
    a("s_waitcnt vmcnt(12)")
    a("ds_write_b32 v30, v27")
    mark("x2")
    trace(45, 2)
    a("s_waitcnt vmcnt(9)")
    a("ds_write_b32 v30, v28")
    trace(45, 3)
    a("s_branch L_x_first")
    a.label("L_ws_act")
    a("s_cmp_lg_u32 s43, 3")
    a("s_cbranch_scc1 L_ws_sig")
    if cfg.epf:
        a("v_lshrrev_b32 v24, 2, v1")
        a("v_mul_u32_u24 v24, 92160, v24")
        a("v_and_b32 v25, 3, v1")
        a("v_lshl_add_u32 v24, v25, 7, v24")
        a("s_lshr_b32 s39, s2, 4")
        a("s_cmp_ge_u32 s39, 12")
        a("s_cselect_b32 s50, 12, 0")
        a("s_sub_u32 s39, s39, s50")
        a("s_mul_i32 s50, s11, 36")
        a("s_add_u32 s39, s39, s50")
        a("s_lshl_b32 s39, s39, 9")
        a("s_add_u32 s39, s39, s37")
        a("s_addk_i32 s39, 18432")
        if cfg.epf == 1: a("buffer_load_dword v25, v24, s[20:23], s39 offen")
        else:
            a(f"s_mov_b32 m0, {SCR}")
            a("s_nop 0")
            a("buffer_load_dword v24, s[20:23], s39 offen lds")
    a("s_barrier")
    a("s_branch L_ws")
    a.label("L_ws_sig")
    a(f"s_cmp_ge_u32 s41, {5*92160}")
    a(f"s_cselect_b32 s50, {5*92160 - 18432}, 0")
    a("s_sub_u32 s41, s41, s50")
    L = cfg.wlag
    a(f"s_bitcmp0_b32 {sum(1 << (b + L) for b in (3, 5, 10))}, s43")
    a("s_cbranch_scc1 L_ws")
    a(f"s_sub_u32 s50, s43, {L + 2}")
    a("s_min_u32 s50, s50, 4")
    a("v_mov_b32 v27, s50")
    a(f"s_waitcnt vmcnt({3*L})")
    a("ds_write_b32 v30, v27")
    trace(46, "s50")
    if cfg.amp == "pt" and cfg.pt in ("w1", "w3", "w4"):
        a(f"s_cmp_lg_u32 s50, {cfg.pt[1]}")
        a("s_cbranch_scc1 L_ws")
        mark(cfg.pt)
    a.label("L_ws")
    a("s_mov_b32 m0, s40")
    a("s_add_u32 s50, s37, s41")
    for k in range(3):
        a(f"buffer_load_dwordx4 v{20+k}, s[20:23], s50 offen offset:{k*1024}{cfg.wflag} lds")
    a("s_addk_i32 s40, 6144")
    a("s_add_u32 s41, s41, 92160")
    a("s_add_u32 s43, s43, 1")
    a(f"s_bitcmp1_b32 {sum(1 << b for b in set([3, 5, 10] + [b + cfg.wlag for b in (3, 5, 10)])):#x}, s43")
    a("s_cbranch_scc1 L_ws_act")
    a("s_cmp_lt_u32 s43, 15")
    a("s_cbranch_scc1 L_ws")
    a("s_sub_u32 s55, 2, s32")
    a("s_add_u32 s50, s55, 2")
    a("v_mov_b32 v31, s50")
    a("s_mov_b32 s53, s55")
    a(f"s_mul_i32 s54, s55, {WBUF}")
    a(f"s_add_u32 s54, s54, {WBASE}")
    a("s_lshr_b32 s39, s2, 4")
    a("s_mul_i32 s38, s39, 52")
    a("s_lshr_b32 s38, s38, 8")
    a("s_mul_i32 s38, s38, 5")
    a("s_sub_u32 s39, s39, s38")
    if cfg.wun:
        for i in range(5):
            a(f"s_mul_i32 s{40+i}, s39, 6144")
            a(f"s_mul_i32 s{45+i}, s{40+i}, 15")
            if i < 4:
                a("s_add_u32 s39, s39, 1")
                a("s_cmp_eq_u32 s39, 5")
                a("s_cselect_b32 s39, 0, s39")
        a("s_branch L_w_adv")
        a.label("L_padB")
        a("s_branch L_compute")
        a.label("L_w_it")
        for i in range(5):
            a(f"s_add_u32 m0, s54, s{40+i}")
            a(f"s_add_u32 s50, s37, s{45+i}")
            for k in range(3):
                a(f"buffer_load_dwordx4 v{20+k}, s[20:23], s50 offen offset:{k*1024}{cfg.wflag} lds")
            a("s_addk_i32 m0, 3072")
            a("s_addk_i32 s50, 3072")
            for k in range(3):
                a(f"buffer_load_dwordx4 v{20+k}, s[20:23], s50 offen offset:{k*1024}{cfg.wflag} lds")
    else:
        a("s_mul_i32 s40, s39, 6144")
        a("s_mul_i32 s41, s39, 92160")
        a("s_movk_i32 s42, 3072")
        a("s_branch L_w_adv")
        a.label("L_padB")
        a("s_branch L_compute")
        a.label("L_w_it")
        a("s_add_u32 m0, s54, s40")
        a("s_add_u32 s50, s37, s41")
        for k in range(3):
            a(f"buffer_load_dwordx4 v{20+k}, s[20:23], s50 offen offset:{k*1024}{cfg.wflag} lds")
        a("s_addk_i32 s40, 3072")
        a("s_add_u32 s41, s41, s42")
        a(f"s_xor_b32 s42, s42, {3072 ^ (92160 - 3072)}")
        a(f"s_cmpk_eq_u32 s40, {WBUF}")
        a("s_cselect_b32 s40, 0, s40")
        a("s_cselect_b32 s41, 0, s41")
        a("s_sub_u32 s43, s43, 1")
        a("s_cbranch_scc0 L_w_it")
    a.label("L_w_adv")
    trace(44, "s55")
    a("v_add_u32 v31, 2, v31")
    a("s_waitcnt vmcnt(0)")
    a("ds_write_b32 v30, v31")
    trace(45, "s55")
    a(f"s_sub_u32 s54, s54, {WBUF}")
    a(f"s_cmp_lt_u32 s54, {WBASE}")
    a(f"s_cselect_b32 s50, {3*WBUF}, 0")
    a("s_add_u32 s54, s54, s50")
    a("s_add_u32 s53, s53, 2")
    a("s_cmp_ge_u32 s53, 5")
    a("s_cselect_b32 s50, 5, 0")
    a("s_sub_u32 s53, s53, s50")
    a("s_lshr_b32 s50, s50, 2")
    a("s_add_u32 s52, s52, s50")
    a("s_cmp_eq_u32 s52, 3")
    a("s_cselect_b32 s52, 0, s52")
    a("s_mul_i32 s37, s53, 3")
    a("s_add_u32 s37, s37, s52")
    a("s_mul_i32 s37, s37, 6144")
    if not cfg.wun: a("s_mov_b32 s43, 9")
    a("s_mov_b32 s51, s55")
    a("s_add_u32 s55, s55, 2")
    a("s_cmp_ge_u32 s55, 15")
    a("s_cbranch_scc1 L_store")
    a("v_and_b32 v23, 3, v1")
    a("v_lshlrev_b32 v23, 8, v23")
    a(f"v_add_u32 v23, {FLAGS + 1024}, v23")
    poll(a, "L_w_poll", 23, 24, "s51", cfg.sleep)
    trace(46, "s55")
    a("s_branch L_w_it")
    a.label("L_x_first")
    a("v_cmp_le_u32 vcc, s38, v1")
    a("v_and_b32 v22, 1, v1")
    a(f"v_lshlrev_b32 v22, 8, v22")
    a("v_cndmask_b32 v4, v19, v3, vcc")
    a(f"v_add_u32 v22, {FLAGS}, v22")
    C = sum((((thr + 2) << 4) | m) << (8 * k) for k, (thr, m) in enumerate(cfg.xb))
    assert len(cfg.xb) <= 8 and sum(m for _, m in cfg.xb) == 18
    a(f"s_mov_b32 s92, {C & 0xffffffff:#x}")
    a(f"s_mov_b32 s93, {C >> 32:#x}")
    a("v_mov_b32 v31, 2")
    a("s_sub_u32 s14, 9, s11")
    if cfg.trace: a("s_mov_b32 s51, 4")
    a("s_branch L_x_sig")
    a.label("L_x_row")
    a("s_cmp_ge_u32 s43, s14")
    a("s_cbranch_scc1 L_x_skip")
    a("s_mov_b32 m0, s40")
    a("s_addk_i32 s40, 2560")
    a(f"buffer_load_dwordx4 v2, s[16:19], s57 offen{cfg.xflag} lds")
    a("s_addk_i32 m0, 1024")
    a("s_mov_b64 exec, 0xffff")
    a(f"buffer_load_dwordx4 v3, s[16:19], s57 offen{cfg.xflag} lds")
    a("s_mov_b64 exec, -1")
    a("v_add_u32 v2, s10, v2")
    a("v_add_u32 v3, s10, v3")
    a.label("L_x_skip")
    a("s_add_u32 s43, s43, 1")
    a("s_sub_u32 s15, s15, 1")
    a("s_cmp_lg_u32 s15, 0")
    a("s_cbranch_scc1 L_x_row")
    a("s_cmp_lt_u32 s43, 9")
    a("s_cbranch_scc1 L_x_next")
    a.label("L_x_sig")
    a("v_add_u32 v31, 5, v31")
    a("s_waitcnt vmcnt(0)")
    a("ds_write_b32 v30, v31")
    mark("x7") if False else None
    trace(45, "s51")
    a(f"s_add_u32 s56, s56, {XCH}")
    a("s_add_u32 s57, s57, 64")
    a("s_cmp_eq_u32 s57, 192")
    a("s_cselect_b32 s57, 0, s57")
    a("v_mov_b32 v2, v4")
    a("v_mov_b32 v3, v5")
    a("s_mov_b32 s40, s56")
    a("s_mov_b32 s43, 0")
    a.label("L_x_next")
    a("s_and_b32 s15, s92, 15")
    a("s_cbranch_scc0 L_store")
    a("s_bfe_u32 s51, s92, 0x40004")
    a("s_lshr_b64 s[92:93], s[92:93], 8")
    poll(a, "L_x_poll", 22, 23, "s51", cfg.sleep)
    trace(44, "s51")
    a("s_branch L_x_row")
    a.label("L_store")
    a("s_load_dwordx2 s[24:25], s[0:1], 16")
    a(f"s_mov_b32 s26, {XBYTES}")
    a("s_mov_b32 s27, 0x20000")
    a("s_waitcnt lgkmcnt(0)")
    a("s_movk_i32 s49, 208")
    a("s_movk_i32 s50, 384")
    a("v_lshrrev_b32 v11, 2, v1")
    a("v_and_b32 v12, 3, v1")
    a("v_lshlrev_b32 v12, 4, v12")
    a("v_mad_u32_u24 v5, v11, s50, v12")
    a("v_mad_u32_u24 v2, v11, s49, v12")
    a("v_and_b32 v10, 1, v1")
    a("v_lshlrev_b32 v10, 8, v10")
    a("s_lshl_b32 s39, s95, 9")
    a(f"s_add_u32 s39, s39, {FLAGS + 1024}")
    a("v_add_u32 v10, s39, v10")
    a("s_add_u32 s45, s35, s36")
    a("s_or_b32 s38, s34, s95")
    a("s_cmp_eq_u32 s33, 8")
    a("s_cselect_b32 s38, 1, s38")
    a("s_cselect_b32 s43, 6, 7")
    a("s_xor_b32 s38, s38, 1")
    a("s_andn2_b32 s44, s34, s95")
    a("s_add_u32 s39, s34, 6")
    a("s_mul_i32 s39, s39, s95")
    a("s_add_u32 s39, s39, s44")
    a("s_add_u32 s39, s39, 5")
    a("s_cmp_eq_u32 s38, 1")
    a("s_cselect_b32 s39, 0, s39")
    a("s_cselect_b32 s42, 1, -1")
    def rowsetup():
        a("s_mul_i32 s40, s11, s42")
        a("s_add_u32 s39, s39, s40")
        a(f"s_mul_i32 s47, s39, {PROW}")
        a("s_add_u32 s47, s47, s45")
        a(f"s_mul_i32 s48, s39, {SROW}")
        a("v_add_u32 v12, s48, v2")
        a(f"s_mul_i32 s40, s42, {2*PROW}")
        a(f"s_mul_i32 s41, s42, {2*SROW}")
    rowsetup()
    a("s_add_u32 s51, s11, 16")
    a("s_add_u32 s44, s44, 22")
    a.label("L_st_m")
    poll(a, "L_st_mp", 10, 11, "s51", cfg.sleep)
    a(f"ds_read_b128 {vr(16,4)}, v12 offset:64")
    a("v_add_u32 v12, s41, v12")
    a("s_add_u32 s51, s51, 2")
    a("s_waitcnt lgkmcnt(0)")
    a(f"buffer_store_dwordx4 {vr(16,4)}, v5, s[24:27], s47 offen offset:64{cfg.stflag}")
    a("s_add_u32 s47, s47, s40")
    a("s_cmp_lt_u32 s51, s44")
    a("s_cbranch_scc1 L_st_m")
    if cfg.stprio: a(f"s_setprio {cfg.stprio}")
    a("s_cmp_eq_u32 s95, 1")
    a("s_cselect_b32 s39, s43, s34")
    a("s_cmp_eq_u32 s38, 1")
    a("s_cselect_b32 s39, 5, s39")
    a("s_sub_u32 s42, 0, s42")
    rowsetup()
    a("s_add_u32 s51, s11, 25")
    a("s_and_b32 s38, s38, s11")
    a("s_cbranch_scc0 L_st_go")
    a("v_and_b32 v28, 3, v1")
    a("v_lshlrev_b32 v28, 8, v28")
    a(f"v_add_u32 v28, {FLAGS + 1024}, v28")
    a(f"s_add_u32 s45, s45, {6*PROW}")
    poll(a, "L_st_s1", 28, 11, 24, cfg.sleep2)
    for k in range(2): a(f"ds_read_b128 {vr(16+4*k,4)}, v2 offset:{6*SROW + 128*k}")
    for k in range(2):
        a(f"s_waitcnt lgkmcnt({1-k})")
        a(f"buffer_store_dwordx4 {vr(16+4*k,4)}, v5, s[24:27], s45 offen offset:{128*k}{cfg.stflag}")
    a.label("L_st_go")
    poll(a, "L_st_p1", 10, 11, "s51", cfg.sleep2)
    for k in range(2): a(f"ds_read_b128 {vr(16+4*k,4)}, v12 offset:{128*k}")
    a("v_add_u32 v12, s41, v12")
    a("s_add_u32 s51, s51, 2")
    for k in range(2):
        a(f"s_waitcnt lgkmcnt({1-k})")
        a(f"buffer_store_dwordx4 {vr(16+4*k,4)}, v5, s[24:27], s47 offen offset:{128*k}{cfg.stflag}")
    a("s_add_u32 s47, s47, s40")
    a("s_cmp_lt_u32 s51, 30")
    a("s_cbranch_scc1 L_st_go")
    a.label("L_st_end")
    if cfg.amp in ("all", "pt"): a("s_branch L_ampall")
    if cfg.diag:
        stamp(a, 5)
        a("s_waitcnt vmcnt(0)")
        stamp(a, 6)
        dump_stamps(a, cfg)
    a.label("L_exit")
    a("s_endpgm")
    a.label("L_compute")
    markn("cin")
    decode()
    a("s_waitcnt lgkmcnt(0)")
    a("s_barrier")
    a("s_load_dwordx2 s[24:25], s[0:1], 16")
    a("s_bfe_u32 s31, s32, 0x10001")
    a("s_lshl1_add_u32 s31, s34, s31")
    a("s_cmp_eq_u32 s33, 8")
    a("s_cselect_b32 s31, 3, s31")
    a("s_sub_u32 s37, s32, 4")
    a("s_and_b32 s38, s37, 1")
    a("s_lshr_b32 s37, s37, 1")
    a("s_add_u32 s39, s34, 6")
    a("s_mul_i32 s49, s37, s39")
    a(f"v_mov_b32 v{V_CP}, v30")
    a(f"v_mov_b32 v{V_PV}, 0")
    a("v_and_b32 v32, 15, v1")
    a("v_lshrrev_b32 v33, 4, v1")
    a("v_and_b32 v34, 1, v33")
    a("v_lshrrev_b32 v35, 1, v33")
    a("v_bfe_u32 v36, v1, 2, 2")
    a("v_and_b32 v37, 3, v1")
    a(f"v_lshlrev_b32 v{V_LF}, 8, v37")
    a(f"v_add_u32 v{V_LF}, {FLAGS}, v{V_LF}")
    a("s_lshl_b32 s39, s38, 7")
    a("v_lshlrev_b32 v40, 5, v34")
    a("v_lshl_add_u32 v40, v35, 4, v40")
    a("v_add_u32 v40, s39, v40")
    a("s_lshl_b32 s39, s38, 5")
    a("s_add_u32 s39, s39, 64")
    a("v_lshlrev_b32 v41, 3, v33")
    a("v_add_u32 v41, s39, v41")
    a("v_mul_u32_u24 v38, 384, v32")
    a("v_add_u32 v38, s36, v38")
    a(f"v_add_u32 v{V_SA}, v38, v40")
    a(f"v_add_u32 v{V_SC}, v38, v41")
    a("v_mul_u32_u24 v38, 208, v32")
    a(f"s_mul_i32 s39, s49, {SROW}")
    a("v_add_u32 v38, s39, v38")
    a("s_lshl_b32 s39, s38, 7")
    a(f"v_lshl_add_u32 v{V_GA}, v33, 3, v38")
    a(f"v_add_u32 v{V_GA}, s39, v{V_GA}")
    a(f"v_add_u32 v{V_GB}, v38, v41")
    a(f"s_mul_i32 s47, s49, {PROW}")
    a("s_add_u32 s47, s47, s35")
    a("v_lshl_add_u32 v38, v33, 3, v36")
    a("v_mul_u32_u24 v38, 192, v38")
    a("v_lshl_add_u32 v38, v37, 3, v38")
    a(f"v_add_u32 v38, {WBASE}, v38")
    a("s_add_u32 s39, s38, 2")
    a("v_xor_b32 v39, s39, v34")
    a(f"v_lshl_add_u32 v{V_WA[0]}, v39, 5, v38")
    a("s_lshl_b32 s39, s38, 2")
    a("v_xor_b32 v39, s39, v34")
    a(f"v_lshl_add_u32 v{V_WA[1]}, v39, 5, v38")
    a("v_xor_b32 v39, 1, v39")
    a(f"v_lshl_add_u32 v{V_WA[2]}, v39, 5, v38")
    a("v_lshlrev_b32 v38, 6, v32")
    a("v_lshl_add_u32 v38, v33, 4, v38")
    a(f"s_mul_i32 s39, s49, {XROW}")
    a(f"v_add_u32 v{V_XL}, s39, v38")
    a(f"v_lshrrev_b32 v{V_T}, 3, v{V_XL}")
    a(f"v_and_b32 v{V_T}, 32, v{V_T}")
    a(f"v_xor_b32 v{V_XA[0]}, v{V_XL}, v{V_T}")
    a(f"v_xor_b32 v{V_XA[1]}, 32, v{V_XA[0]}")
    a("s_branch L_c2")
    a.label("L_padC")
    a("s_branch L_compute")
    a.label("L_c2")
    if cfg.mov64:
        for k in range(0, 84, 2): a(f"v_mov_b64 {vr(V_ACC+k,2)}, 0")
    else:
        for k in range(84): a(f"v_mov_b32 v{V_ACC+k}, 0")
    a(f"s_mov_b32 s40, {(1 << 8) | (1 << 13)}")
    a(f"s_mov_b32 s41, {sum(1 << (h + 3) for h in (3, 6, 9, 12))}")
    a(f"s_mov_b32 s44, {(-2*WBUF) & 0xffffffff}")
    a(f"s_mov_b32 s45, {WBUF}")
    a("s_mov_b32 s46, 4")
    if cfg.diag: a("s_mov_b32 s95, 0")
    a(f"s_mov_b32 s26, {XBYTES}")
    a("s_mov_b32 s27, 0x20000")
    a("s_waitcnt lgkmcnt(0)")
    if cfg.diag: stamp(a, 1)
    mark("setup")
    if cfg.prio: a(f"s_setprio {cfg.prio}")
    if cfg.amp in ("span", "skew"): srd(a, 80, 12, 256)
    if cfg.pads:
        a("s_bitcmp0_b32 s32, 0")
        a("s_cbranch_scc1 L_disp")
        for var in (1, 2, 3):
            a(f"s_cmp_eq_u32 s31, {var}")
            a(f"s_cbranch_scc1 L_pad{var}")
        a("s_branch L_pad0")
        a.label("L_disp")
    for var in (1, 2, 3):
        a(f"s_cmp_eq_u32 s31, {var}")
        a(f"s_cbranch_scc1 L_pro{var}")
    for var in range(4):
        emit_variant(a, var, cfg)
    a.label("L_end")
    for _ in range(100): a("s_endpgm")
    out += a.text()
    nv = (V_END + 7) // 8 * 8
    out += f""".section .rodata,"a"
.p2align 6
.amdhsa_kernel {NAME}_kernel
  .amdhsa_next_free_vgpr {nv}
  .amdhsa_next_free_sgpr 96
  .amdhsa_accum_offset {nv}
  .amdhsa_group_segment_fixed_size 0
  .amdhsa_kernarg_size 40
  .amdhsa_user_sgpr_count 2
  .amdhsa_user_sgpr_kernarg_segment_ptr 1
  .amdhsa_system_sgpr_workgroup_id_x 1
.end_amdhsa_kernel
"""
    return out

if __name__ == "__main__":
    p = argparse.ArgumentParser()
    p.add_argument("-o", default="standalone__dilated_atrous__vision.s")
    p.add_argument("--diag", action="store_true")
    p.add_argument("--trace", action="store_true")
    p.add_argument("--bar_pos", type=int, default=58)
    p.add_argument("--xbar", type=int, default=40)
    p.add_argument("--lead", type=int, default=5)
    p.add_argument("--safe", type=int, default=8)
    p.add_argument("--prio", type=int, default=1)
    p.add_argument("--align", type=int, default=1)
    p.add_argument("--snake", type=int, default=1)
    p.add_argument("--exper", type=int, default=2)
    p.add_argument("--order", type=int, default=1)
    p.add_argument("--wpf", type=int, default=0)
    p.add_argument("--epf", type=int, default=1)
    p.add_argument("--cpf", type=int, default=1)
    p.add_argument("--sleep", type=int, default=2)
    p.add_argument("--sleep2", type=int, default=0)
    p.add_argument("--stflag", default="sc0 sc1 nt")
    p.add_argument("--wd", type=int, default=1)
    p.add_argument("--amp", default="")
    p.add_argument("--padj", type=int, default=2)
    p.add_argument("--pt", default="")
    p.add_argument("--onlyb", type=int, default=-1)
    p.add_argument("--slow_near", type=int, default=1)
    p.add_argument("--hcap", type=int, default=2)
    p.add_argument("--wlag", type=int, default=2)
    p.add_argument("--wun", type=int, default=0)
    p.add_argument("--hlead", type=int, default=7)
    p.add_argument("--fd", type=int, default=6)
    p.add_argument("--burst", type=int, default=12)
    p.add_argument("--alead", type=int, default=20)
    p.add_argument("--entry_last", type=int, default=0)
    p.add_argument("--pad4", type=int, default=0)
    p.add_argument("--lx", type=int, default=-1)
    p.add_argument("--al8", type=int, default=0)
    p.add_argument("--shift4", type=int, default=0)
    p.add_argument("--rush", type=int, default=30)
    p.add_argument("--fill", type=int, default=0)
    p.add_argument("--pads", type=int, default=1)
    p.add_argument("--nstage", type=int, default=5)
    p.add_argument("--spec", type=int, default=1)
    p.add_argument("--stprio", type=int, default=0)
    p.add_argument("--mov64", type=int, default=1)
    p.add_argument("--xflag", default="")
    p.add_argument("--wflag", default="")
    p.add_argument("--fixd", type=int, default=0)
    p.add_argument("--wbl2", type=int, default=0)
    p.add_argument("--bench", action="store_true")
    p.add_argument("--drop", default="")
    p.add_argument("--cmpd", type=int, default=4)
    p.add_argument("--updstep", type=int, default=1)
    p.add_argument("--xthr", type=int, default=2)
    p.add_argument("--cbar", type=int, default=0)
    p.add_argument("--w2wait", type=int, default=1)
    p.add_argument("--xb", default="3:2,4:3,5:2,6:2,8:5,9:4")
    cfg = p.parse_args()
    cfg.xb = [tuple(int(v) for v in e.split(":")) for e in cfg.xb.split(",")]
    WD = cfg.wd
    if cfg.stflag: cfg.stflag = " " + cfg.stflag
    if cfg.xflag: cfg.xflag = " " + cfg.xflag
    if cfg.wflag: cfg.wflag = " " + cfg.wflag
    open(cfg.o, "w").write(gen(cfg))
```

```python
import sys, argparse

NAME = "standalone__dilated_atrous__vision"
XBYTES = 224 * 224 * 96 * 2
WBYTES = 25 * 96 * 96 * 2
ROWB = 224 * 192
PROW = 2 * ROWB
XCH = 352 * 64
XROW = 20 * 64
WBASE = 3 * XCH
WBUF = 5 * 6144
FLAGS = WBASE + 3 * WBUF
LDS_TOTAL = FLAGS + 2048
SROW = 16 * 208
assert 13 * SROW <= 2 * XCH

class Asm:
    def __init__(self):
        self.lines = []
    def __call__(self, s):
        self.lines.append("    " + s)
    def label(self, l):
        self.lines.append(l + ":")
    def comment(self, s):
        self.lines.append("    ; " + s)
    def text(self):
        return "\n".join(self.lines) + "\n"

def vr(b, n):
    return f"v[{b}:{b+n-1}]"

V_XL = 1
V_XA = (2, 3)
V_WA = (4, 5, 6)
V_SA, V_SC = 7, 8
V_GA, V_GB = 9, 10
V_T = 11
V_XB = (22, 23)
V_CP = 25
V_LF = 26
V_PV = 27
V_F = 28
V_X = 32
V_W = 76
V_ACC = 136
V_EXTRA = V_ACC + 84
V_END = V_EXTRA + 32

TYPES = {
    0: (range(0, 6), range(0, 7), range(0, 6)),
    1: (range(0, 6), range(1, 7), range(0, 7)),
    2: (range(0, 7), range(1, 7), range(1, 7)),
    3: (range(0, 6), range(0, 6), range(0, 6)),
}
OFF = {0: 0, 1: 1, 2: 1, 3: 0}
SPECIAL = {0: 6, 1: 0, 2: 0, 3: None}
LASTHEAD = {
    0: [(0, 0), (0, 1), (6, 1), (0, 2)],
    1: [(0, 0), (1, 0), (1, 1), (0, 2), (1, 2)],
    2: [(0, 0), (1, 0), (1, 1), (2, 0), (1, 2), (2, 1), (2, 2)],
    3: [(0, 0), (0, 1), (1, 0), (0, 2), (1, 1), (1, 2)],
}

def acc(rho, t): return V_ACC + 4 * (rho * 3 + t)
def wreg(i, t): return V_W + 4 * (i * 3 + t)
def xreg(q): return V_X + 4 * q

def chain(rho, t, rev):
    r = list(range(5))
    if rev: r.reverse()
    return [(rho, i, t, rho + i) for i in r]

def steady_order(var, cfg, par=(1, 1, 1)):
    ms = []
    for t in range(3):
        for j, rho in enumerate(TYPES[var][t]): ms += chain(rho, t, cfg.snake and j % 2 == par[t])
    return ms

DIRECT = {0: (5,), 1: (6, 5), 2: (6,), 3: (5,)}

def last_tiles(var):
    order = list(LASTHEAD[var])
    rows = [r for r in range(7) if r not in DIRECT[var]] + list(DIRECT[var])
    for r in rows:
        for t in ((0, 1, 2) if r not in DIRECT[var] else (1, 2, 0)):
            if r in TYPES[var][t] and (r, t) not in order: order.append((r, t))
    return order

def last_order(var, cfg, par=1):
    ms = []
    for j, (r, t) in enumerate(last_tiles(var)): ms += chain(r, t, cfg.snake and j % 2 == par and j >= 4)
    return ms

def uses(ms):
    first, last = {}, {}
    for k, (rho, i, t, q) in enumerate(ms):
        for key in (("w", i, t, 0), ("w", i, t, 1), ("x", q)):
            first.setdefault(key, k); last[key] = k
    return first, last

def read_text(nm):
    if nm[0] == "x":
        q = nm[1]
        return f"ds_read_b128 {vr(xreg(q),4)}, v{V_XA[q & 1]} offset:{q*XROW}"
    _, i, t, h = nm
    return f"ds_read_b64_tr_b16 {vr(wreg(i,t)+2*h,2)}, v{V_WA[t]} offset:{i*6144 + h*768}"

def edf(reads, lo, hi, lead, busy=()):
    placed, pending = {}, list(reads)
    for k in range(lo, hi):
        avail = [r for r in pending if r[1] <= k]
        if not avail: continue
        r = min(avail, key=lambda r: r[2])
        placed[k] = r[0]
        pending.remove(r)
        assert r[2] - k >= lead, (r, k)
    assert not pending, pending
    return placed

def mfma_text(m):
    rho, i, t, q = m
    return f"v_mfma_f32_16x16x32_bf16 {vr(acc(rho,t),4)}, {vr(wreg(i,t),4)}, {vr(xreg(q),4)}, {vr(acc(rho,t),4)}"

class LdsQ:
    def __init__(self, a, safe):
        self.a, self.safe = a, safe
        self.ops = []
        self.done = 0
        self.waits = []
    def issue(self, name, time, text=None):
        self.ops.append((name, time))
        if text: self.a(text)
    def need(self, names, time):
        idx = max(max(j for j, (nm, _) in enumerate(self.ops) if nm == n) for n in names) + 1
        if idx <= self.done: return
        for j, (nm, tm) in enumerate(self.ops):
            if tm <= time - 1 - self.safe: idx = max(idx, j + 1)
        cnt = len(self.ops) - idx
        if cnt > 14:
            idx += cnt - 14; cnt = 14
        self.a(f"s_waitcnt lgkmcnt({cnt})")
        self.waits.append((time, cnt, len(self.ops)))
        self.done = idx

WD = 1
def poll(a, label, vaddr, vtmp, sneed, sleep, wd=True):
    a.label(label)
    if WD and wd:
        a("s_add_u32 s94, s94, 1")
        a("s_bitcmp1_b32 s94, 18")
        a("s_cbranch_scc1 L_exit")
    a(f"ds_read_b32 v{vtmp}, v{vaddr}")
    a("s_waitcnt lgkmcnt(0)")
    a(f"v_cmp_gt_u32 vcc, {sneed}, v{vtmp}")
    if sleep:
        a(f"s_cbranch_vccz {label}_ok")
        a(f"s_sleep {sleep}")
        a(f"s_branch {label}")
        a.label(label + "_ok")
    else:
        a(f"s_cbranch_vccnz {label}")

def isize(l):
    l = l.strip()
    op = l.split()[0]
    if op.startswith(("v_mfma", "ds_", "buffer_", "v_cvt_pk")) or op.endswith("_e64"): return 8
    import re
    for tok in re.split(r"[ ,]+", l)[1:]:
        if re.fullmatch(r"-?\d+|0x[0-9a-f]+", tok) and not op.startswith(("s_waitcnt", "s_nop")):
            v = int(tok, 0)
            if not (-16 <= v <= 64): return 8
    return 4

def align8(lines):
    out = []
    for l in lines:
        op = l.strip().split()[0]
        if op.startswith("v_") and isize(l) == 4:
            l = l.replace(op, op + "_e64", 1)
        out.append(l)
    res, off = [], 0
    for l in out:
        sz = isize(l)
        if sz == 8 and off % 8 == 4:
            res.append("    s_nop 0"); off += 4
        res.append(l); off += sz
    if off % 8 == 4: res.append("    s_nop 0")
    return res

def emit_variant(a, var, cfg):
    bar = cfg.bar_pos if var != 3 else cfg.bar_pos - 3
    best = None
    for par in [(p0, 1, p2) for p0 in (1, 0) for p2 in (1, 0)]:
        ms = steady_order(var, cfg, par)
        n = len(ms)
        first, last = uses(ms)
        reads = [(key, max(last[key], bar, n if (key[0] == "w" and key[2] == 2) else 0), n + first[key]) for key in first]
        placed = edf(reads, bar, n + bar - 16, 0)
        ld = min(n + first[nm] - k for k, nm in placed.items())
        if best is None or ld > best[0]: best = (ld, par, ms, first, last, placed)
    ld, par, ms, first, last, placed = best
    print(f"variant {var}: snake parity {par}, min lead {ld}", file=sys.stderr)
    tail = [(k, placed[k]) for k in sorted(placed) if k < n]
    head = [(k - n, placed[k]) for k in sorted(placed) if k >= n]
    slow = []
    hb, tb = Asm(), Asm()
    q = LdsQ(hb, cfg.safe)
    for k, nm in tail: q.issue(nm, k - n)
    headd, taild = dict(head), dict(tail)
    extra = {}
    def put(k, s): extra.setdefault(k, []).append(s)
    krel = max(k for k, nm in head) + 1
    put(krel - 1, f"v_add_u32 v{V_PV}, 1, v{V_PV}")
    upd = ["s_bitcmp1_b32 s40, s46", f"s_cselect_b32 s42, {XCH - 4*64}, 64",
           "s_bitcmp1_b32 s41, s46", "s_cselect_b32 s43, s44, s45",
           "s_cmp_eq_u32 s46, 14", "s_cselect_b32 s49, 1000, s46",
           f"v_add_u32 v{V_XL}, s42, v{V_XL}", f"v_lshrrev_b32 v{V_T}, 3, v{V_XL}", f"v_and_b32 v{V_T}, 32, v{V_T}",
           f"v_xor_b32 v{V_XA[0]}, v{V_XL}, v{V_T}", f"v_xor_b32 v{V_XA[1]}, 32, v{V_XA[0]}"]
    upd += [f"v_add_u32 v{V_WA[t]}, s43, v{V_WA[t]}" for t in range(3)]
    b0 = krel + 2
    for j, u in enumerate(upd): put(b0 + cfg.updstep * j, u)
    kflag = bar - cfg.cmpd - 9
    assert b0 + cfg.updstep * len(upd) <= kflag
    cur = hb
    for k, m in enumerate(ms):
        rho, i, t, qq = m
        q.need([("w", i, t, 0), ("w", i, t, 1), ("x", qq)], k)
        cur(mfma_text(m))
        D = cfg.drop
        for s in extra.get(k, []): cur(s)
        if k == krel: q.issue(("rel",), k, f"ds_write_b32 v{V_CP}, v{V_PV}")
        if k == kflag: q.issue(("flag",), k, f"ds_read_b32 v{V_F}, v{V_LF}")
        if k == bar - cfg.cmpd - 1: q.need([("flag",)], k + 1)
        if k == bar - cfg.cmpd: cur(f"v_cmp_gt_u32 vcc, s49, v{V_F}")
        if k == bar:
            cur = tb; q.a = tb
        drop = lambda nm: ("l" in D and k in taild) or ("w" in D and nm[0] == "w" and k in taild) or ("x" in D and nm[0] == "x")
        if k in headd: q.issue(headd[k], k, read_text(headd[k]) if not drop(headd[k]) else None)
        if k in taild: q.issue(("next",) + taild[k], k, read_text(taild[k]) if not drop(taild[k]) else None)
        if k == n - 9: cur("s_add_u32 s46, s46, 1")
    kinds = ("w", "x") if ((var < 2 and cfg.order == 1) or cfg.order == 3) else ("x", "w")
    ent = [[nm for _, nm in sorted(tail, key=lambda e: first[e[1]]) if nm[0] == kd] for kd in kinds]
    late = ent[1]
    def entry_ok(m):
        done = len(late) - m
        wi = 0
        for k, (rho, i, t, qq) in enumerate(ms):
            while wi < len(q.waits) and q.waits[wi][0] <= k:
                _, cnt, nops = q.waits[wi]; wi += 1
                body_ops = nops - len(tail)
                done = max(done, len(late) - max(0, cnt - body_ops))
            for nm in (("w", i, t, 0), ("w", i, t, 1), ("x", qq)):
                if nm in late and late.index(nm) >= done: return False
        return True
    ment = max(mm for mm in range(min(len(late), 14) + 1) if entry_ok(mm))
    def emit_entry():
        a.label(f"L_pro{var}")
        poll(a, f"L_p0_{var}", 16 if kinds[0] == "x" else 17, V_F, 1, 0)
        for nm in ent[0]: a(read_text(nm))
        poll(a, f"L_p1_{var}", 16 if kinds[1] == "x" else 17, V_F, 1, 0)
        if cfg.diag: stamp(a, 3)
        if cfg.amp:
            a("s_memrealtime s[86:87]")
            a("s_waitcnt lgkmcnt(0)")
        for nm in late: a(read_text(nm))
        a(f"s_waitcnt lgkmcnt({ment})")
        a(f"s_branch L_head{var}")
    if not cfg.entry_last: emit_entry()
    if cfg.al8:
        hb.lines = align8(hb.lines); tb.lines = align8(tb.lines)
    if cfg.align: a(".p2align 6")
    if cfg.pads:
        a.label(f"L_pad{var}")
        a("s_branch L_compute")
        a("s_nop 0")
    a.label(f"L_top{var}")
    a.lines += tb.lines
    a.label(f"L_head{var}")
    a.lines += hb.lines
    a(f"s_cbranch_vccz L_top{var}")
    a("s_min_u32 s49, s49, 15")
    a(f"v_cmp_gt_u32 vcc, s49, v{V_F}")
    a(f"s_cbranch_vccnz L_slow{var}")
    a.label(f"L_fin{var}")
    a.lines += tb.lines
    if cfg.diag: stamp(a, 4)
    if cfg.cpf: a("s_waitcnt vmcnt(0)")
    rows = TYPES[var]
    down = var == 0
    prow = sorted(set(rows[1]) | set(rows[2]), reverse=down)
    lastrow = prow[-1]
    srow2 = sorted(rows[0], reverse=not down)
    def build(pa, pb):
        out = []
        for j, r in enumerate(rows[0]):
            out += [m + (13, 0) for m in chain(r, 0, cfg.snake and j % 2 == pa)]
        for j, r in enumerate(srow2):
            out += [m + (14, 0) for m in chain(r, 0, cfg.snake and j % 2 == pb)]
        keep = set(range(srow2[-1], srow2[-1] + 5))
        flip = 0
        tiles = []
        for r in prow:
            ts = [t for t in ((1, 2) if flip == 0 else (2, 1)) if r in rows[t]]
            if r == lastrow: ts = [1, 2]
            for j, t in enumerate(ts):
                gs = (14, 13) if j == 0 else (13, 14)
                for g in gs:
                    for m in chain(r, t, (j == 1) != down):
                        out.append(m + (g, 0 if (g == 14 and m[3] in keep) else 1))
                tiles.append((r, t))
            flip = 0 if ts[-1] == 1 else 1
        return out, tiles
    def names(m):
        rho, i, t, qq, g, occ = m
        return [("w", g, i, t, 0), ("w", g, i, t, 1), ("x", g, qq, occ)]
    frag = lambda nm: nm if nm[0] == "x" else nm[:4]
    conv = lambda nm: ("x", 13, nm[1], 0) if nm[0] == "x" else ("w", 13) + nm[1:]
    pre = [(k - n, conv(nm)) for k, nm in tail]
    prenames = set(nm for _, nm in pre)
    slots = [V_X + 4 * j for j in range(26)] + [V_EXTRA + 4 * j for j in range(8)]
    best = None
    for pa in (1, 0):
      for pb in (1, 0):
        ls, ptiles = build(pa, pb)
        lf, ll = {}, {}
        for k, m in enumerate(ls):
            for nm in names(m):
                lf.setdefault(nm, k); ll[nm] = k
        free = {sl: 0 for sl in slots}
        regs = {}
        for nm in prenames:
            sl = xreg(nm[2]) if nm[0] == "x" else wreg(nm[2], nm[3])
            regs[frag(nm)] = sl
            free[sl] = max(free[sl], ll.get(nm, 0))
        rds, early = [], {}
        for nm in sorted(lf, key=lambda v: lf[v]):
            if nm in prenames: continue
            fr = frag(nm)
            if fr not in regs:
                ok = [sl for sl in slots if free[sl] <= lf[nm] - cfg.alead]
                sl = max(ok, key=lambda v: free[v]) if ok else min(slots, key=lambda v: free[v])
                regs[fr] = sl; early[fr] = free[sl]; free[sl] = ll[nm]
            e = early.get(fr, 0)
            if nm[0] == "x" and nm[1] == 14: e = max(e, 6)
            rds.append((nm, e, lf[nm]))
        try: lp = edf(rds, 0, len(ls), 0)
        except AssertionError: continue
        ld2 = min([lf[nm] - k for k, nm in lp.items()] + [lf[nm] - k for k, nm in pre if nm in lf])
        if best is None or ld2 > best[0]: best = (ld2, (pa, pb), ls, lf, lp, regs, ptiles)
    ld2, pars, ls, lf, lplaced, regs, ptiles = best
    print(f"   final segment: parity {pars} min lead {ld2} reads {len(lplaced)}", file=sys.stderr)
    def rd_text(nm):
        if nm[0] == "x":
            _, g, qq, occ = nm
            return f"ds_read_b128 {vr(regs[nm],4)}, v{(V_XA if g == 13 else V_XB)[qq & 1]} offset:{qq*XROW}"
        _, g, i, t, h = nm
        return f"ds_read_b64_tr_b16 {vr(regs[frag(nm)]+2*h,2)}, v{V_WA[t]} offset:{(g-13)*WBUF + i*6144 + h*768}"
    n2 = len(ls)
    q = LdsQ(a, cfg.safe)
    for k, nm in pre: q.issue(nm, k)
    endk = {}
    for k, m in enumerate(ls): endk[(m[0], m[2])] = k
    def cvt2(D, S, tile):
        return [(tile, f"v_cvt_pk_bf16_f32 v{D}, v{S}, v{S+1}"), (tile, f"v_cvt_pk_bf16_f32 v{D+1}, v{S+2}, v{S+3}")]
    seq = [(None, f"v_add_u32 v{V_XL}, 64, v{V_XL}"), (None, f"v_lshrrev_b32 v{V_T}, 3, v{V_XL}"), (None, f"v_and_b32 v{V_T}, 32, v{V_T}"),
           (None, f"v_xor_b32 v{V_XB[0]}, v{V_XL}, v{V_T}"), (None, f"v_xor_b32 v{V_XB[1]}, 32, v{V_XB[0]}")]
    for j, r in enumerate(srow2):
        S = acc(r, 0)
        seq += cvt2(S, S, (r, 0))
        seq += [(None, f"v_mov_b32 v{V_PV}, {16 + j}"), (None, f"ds_write_b64 v{V_GB}, {vr(S,2)} offset:{r*SROW}"),
                (None, f"ds_write_b32 v{V_CP}, v{V_PV}")]
    kfull, seen = 0, set()
    for (r, t) in ptiles:
        S = acc(r, t)
        if r != lastrow:
            seq += cvt2(S, S, (r, t))
            pv = None
            if not (r in rows[1] and r in rows[2]): pv = 24
            elif r in seen:
                pv = 25 + kfull; kfull += 1
            seen.add(r)
            if pv: seq.append((None, f"v_mov_b32 v{V_PV}, {pv}"))
            seq.append((None, f"ds_write_b64 v{V_GA}, {vr(S,2)} offset:{r*SROW + (32 if t == 2 else 0)}"))
            if pv: seq.append((None, f"ds_write_b32 v{V_CP}, v{V_PV}"))
        elif t == 1:
            seq += cvt2(S, S, (r, t))
            seq.append((None, f"s_add_u32 s48, s47, {r*PROW}"))
        else:
            A = acc(r, 1)
            seq += cvt2(A + 2, S, (r, t))
            seq.append(("W2", f"v_permlane16_swap_b32 v{A}, v{A+2}"))
            seq.append((None, f"v_permlane16_swap_b32 v{A+1}, v{A+3}"))
            seq.append((None, f"buffer_store_dwordx4 {vr(A,4)}, v{V_SA}, s[24:27], s48 offen{cfg.stflag}"))
    assert kfull == 5
    def states(frm):
        c = 0
        for l in a.lines[frm + 1:]:
            l = l.strip()
            if l.endswith(":") or l.startswith(";") or l.startswith("."): continue
            c += int(l.split()[1]) + 1 if l.startswith("s_nop") else 1
        return c
    done_at = {}
    last_valu = [0]
    def missing(dep):
        if dep is None: return 0
        if dep == "W2": return max(0, 2 - states(last_valu[0]))
        if dep not in done_at: return None
        return max(0, 8 - states(done_at[dep]))
    nl = [0]
    def emit_ex(txt, k):
        for key, pat in (("C", "v_cvt"), ("P", "v_permlane"), ("V", "ds_write_b64"), ("F", "ds_write_b32"), ("S", "buffer_store")):
            if key in cfg.drop and txt.startswith(pat): return
        if txt.startswith("ds_"):
            nl[0] += 1; q.issue(("st", nl[0]), k, txt)
        else: a(txt)
        if txt.startswith("v_cvt"): last_valu[0] = len(a.lines) - 1
    for k, m in enumerate(ls):
        rho, i, t, qq, g, occ = m
        q.need(names(m), k)
        a(f"v_mfma_f32_16x16x32_bf16 {vr(acc(rho,t),4)}, {vr(regs[('w',g,i,t)],4)}, {vr(regs[('x',g,qq,occ)],4)}, {vr(acc(rho,t),4)}")
        if endk[(rho, t)] == k: done_at[(rho, t)] = len(a.lines) - 1
        cnt = 0
        if k in lplaced:
            q.issue(lplaced[k], k, rd_text(lplaced[k])); cnt += 1
        lim = cfg.exper if (k >= n2 - cfg.rush or k < 6) else 1
        if k < 6: cnt = 1
        while seq and cnt < lim and k < n2 - 1:
            miss = missing(seq[0][0])
            if miss == 0:
                emit_ex(seq.pop(0)[1], k); cnt += 1
            else:
                if miss is not None and miss > 1 and cnt == 0 and k >= n2 - cfg.fill: a("s_nop 1")
                break
    while seq:
        miss = missing(seq[0][0])
        if miss: a(f"s_nop {miss - 1}")
        emit_ex(seq.pop(0)[1], n2)
    if cfg.diag:
        stamp(a, 5)
        a("s_waitcnt vmcnt(0)")
        stamp(a, 6)
        a("s_branch L_dump")
    elif cfg.amp:
        if var == 0: a.label("L_ampall")
        a("s_waitcnt vmcnt(0)")
        a("s_memrealtime s[88:89]")
        a("s_waitcnt lgkmcnt(0)")
        if cfg.amp in ("span", "skew"):
            a("v_mov_b32 v4, 0")
            a("buffer_load_dwordx2 v[6:7], v4, s[80:83], 0 offen sc0 sc1")
            a("s_waitcnt vmcnt(0)")
            a("v_readfirstlane_b32 s86, v6")
            a("v_readfirstlane_b32 s58, v7")
            a("s_nop 3")
            a("s_not_b32 s58, s58")
        lo, hi = {"pro": (58, 86), "all": (58, 88), "loop": (86, 88), "none": (58, 58), "span": (58, 88), "skew": (58, 86)}[cfg.amp]
        a(f"s_sub_u32 s90, s{hi}, s{lo}")
        a("s_mul_i32 s90, s90, 10")
        if cfg.fixd: a(f"s_mov_b32 s90, {cfg.fixd}")
        if cfg.wbl2:
            a("buffer_wbl2 sc1")
        a.label(f"L_amp{var}")
        a("s_memrealtime s[76:77]")
        a("s_waitcnt lgkmcnt(0)")
        a("s_sub_u32 s91, s76, s88")
        a("s_cmp_lt_u32 s91, s90")
        a(f"s_cbranch_scc1 L_amp{var}")
        a("s_endpgm")
    else:
        a("s_endpgm")
    poll(a, f"L_slow{var}", V_LF, V_F, "s49", 0)
    a("s_cmp_eq_u32 s46, 14")
    a(f"s_cbranch_scc1 L_fin{var}")
    a(f"s_branch L_top{var}")
    for lab, va, need, back in slow:
        poll(a, lab, va, V_F, need, 0)
        a(f"s_branch {back}")
    if cfg.entry_last: emit_entry()

def stamp(a, idx):
    a(f"s_memtime s[{60+2*idx}:{61+2*idx}]")
    if idx in (3, 5):
        a(f"s_memrealtime s[{86 if idx == 3 else 88}:{87 if idx == 3 else 89}]")
    a("s_waitcnt lgkmcnt(0)")

def dump_stamps(a, cfg):
    a.label("L_dump")
    a("s_memrealtime s[76:77]")
    a("s_getreg_b32 s78, hwreg(HW_REG_HW_ID)")
    a("s_getreg_b32 s79, hwreg(HW_REG_XCC_ID)")
    a("s_waitcnt lgkmcnt(0)")
    a("s_mov_b32 s80, s12")
    a("s_mov_b32 s81, s13")
    a("s_mov_b32 s82, 0x100000")
    a("s_mov_b32 s83, 0x20000")
    a("s_lshl_b32 s84, s2, 3")
    a("s_add_u32 s84, s84, s32")
    a("s_lshl_b32 s84, s84, 6")
    a("v_mov_b32 v4, 0")
    for k, s in enumerate([60, 62, 64, 66, 68, 70, 72, 74, 76, 77, 78, 79, 58, 59, 86, 88]):
        a(f"v_mov_b32 v5, s{s}")
        a(f"buffer_store_dword v5, v4, s[80:83], s84 offen offset:{4*k}")
        a("s_nop 1")
    a("v_and_b32 v1, 63, v0")
    a("v_lshlrev_b32 v4, 2, v1")
    a("v_cmp_gt_u32 vcc, 16, v1")
    a("s_and_saveexec_b64 s[92:93], vcc")
    a("s_lshl_b32 s84, s84, 2")
    a("s_add_u32 s84, s84, 0x40000")
    for k in range(3):
        a(f"buffer_store_dword v{44+k}, v4, s[80:83], s84 offen offset:{64*k}")
    a("s_waitcnt vmcnt(0)")
    a("s_endpgm")

def srd(a, d, p, size):
    a(f"s_mov_b32 s{d}, s{p}")
    a(f"s_and_b32 s{d+1}, s{p+1}, 0xffff")
    a(f"s_mov_b32 s{d+2}, {size}")
    a(f"s_mov_b32 s{d+3}, 0x20000")

def gen(cfg):
    a = Asm()
    hdr = open("standalone__dilated_atrous__vision.s.ref").read().splitlines()
    head = [l for l in hdr[:8] if l.startswith(";") and "@launch" not in l]
    out = "\n".join(head) + "\n"
    out += f"; @launch grid=(256,1,1) block=(512,1,1) lds={LDS_TOTAL}\n"
    out += f""".amdgcn_target "amdgcn-amd-amdhsa--gfx950"
.text
.globl {NAME}_kernel
{".p2align 12" + chr(10) if cfg.pg else ""}.p2align 8
.type {NAME}_kernel,@function
{NAME}_kernel:
"""
    def trace(reg, idx):
        if cfg.trace:
            a("s_memtime s[90:91]")
            a(f"s_mov_b32 m0, {idx}")
            a("s_waitcnt lgkmcnt(0)")
            a(f"v_writelane_b32 v{reg}, s90, m0")
    if cfg.diag:
        a("s_memtime s[60:61]")
        a("s_memrealtime s[58:59]")
        a("s_load_dwordx2 s[12:13], s[0:1], 32")
    if cfg.amp: a("s_memrealtime s[58:59]")
    if cfg.amp in ("span", "skew"): a("s_load_dwordx2 s[12:13], s[0:1], 24")
    a("s_load_dwordx4 s[4:7], s[0:1], 0")
    a("s_load_dwordx2 s[8:9], s[0:1], 16")
    if WD: a("s_mov_b32 s94, 0")
    a("s_cmp_ge_u32 s2, 256")
    a("s_cbranch_scc1 L_exit")
    if cfg.lx < 0:
        a("s_and_b32 s28, s2, 1")
        a("s_bfe_u32 s3, s2, 0x20001")
        a("s_lshl_b32 s3, s3, 5")
        a("s_lshr_b32 s33, s2, 3")
        a("s_add_u32 s3, s3, s33")
        a("s_cmp_ge_u32 s3, 126")
        a("s_cbranch_scc1 L_exit")
    else:
        a("s_and_b32 s3, s2, 7")
        a(f"s_sub_u32 s3, s3, {cfg.lx + 1}")
        a("s_and_b32 s3, s3, 7")
        a("s_lshl_b32 s3, s3, 5")
        a("s_lshr_b32 s33, s2, 3")
        a("s_add_u32 s3, s3, s33")
        a("s_cmp_ge_u32 s3, 252")
        a("s_cbranch_scc1 L_exit")
        a("s_cmp_ge_u32 s3, 224")
        a("s_cselect_b32 s33, 14, 112")
        a("s_cselect_b32 s34, 224, 0")
        a("s_cselect_b32 s29, 112, 0")
        a("s_sub_u32 s3, s3, s34")
        a("s_cmp_ge_u32 s3, s33")
        a("s_cselect_b32 s28, 1, 0")
        a("s_cselect_b32 s33, s33, 0")
        a("s_sub_u32 s3, s3, s33")
        a("s_add_u32 s3, s3, s29")
    a("v_lshrrev_b32 v2, 6, v0")
    a("v_and_b32 v1, 63, v0")
    a("v_readfirstlane_b32 s32, v2")
    a("v_lshlrev_b32 v30, 2, v0")
    a(f"v_add_u32 v30, {FLAGS}, v30")
    a("v_mov_b32 v31, 0")
    a("ds_write_b32 v30, v31")
    a("s_mul_i32 s33, s3, 4682")
    a("s_lshr_b32 s33, s33, 16")
    a("s_mul_i32 s34, s33, 14")
    a("s_sub_u32 s34, s3, s34")
    a("s_and_b32 s29, s34, 1")
    a("s_lshr_b32 s30, s34, 1")
    a("s_lshl_b32 s30, s30, 4")
    a("s_mul_i32 s31, s33, 25")
    a("s_lshr_b32 s31, s31, 1")
    a("s_and_b32 s34, s33, 1")
    a("s_lshl_b32 s35, s31, 1")
    a("s_add_u32 s35, s35, s28")
    a(f"s_mul_i32 s35, s35, {ROWB}")
    a("s_lshl_b32 s36, s30, 1")
    a("s_add_u32 s36, s36, s29")
    a("s_mul_i32 s36, s36, 192")
    a("s_lshl_b32 s52, s29, 1")
    a("s_sub_u32 s52, 2, s52")
    if cfg.order == 1: a("s_mov_b32 s3, s34")
    elif cfg.order == 2: a("s_mov_b32 s3, 1")
    elif cfg.order == 3: a("s_mov_b32 s3, 0")
    elif cfg.order == 4:
        a("s_and_b32 s3, s2, 0x30")
        a("s_min_u32 s3, s3, 1")
    a("s_cmp_ge_u32 s32, 4")
    if cfg.cpf:
        a("s_cbranch_scc0 L_ld")
        a("s_bfe_u32 s31, s32, 0x10001")
        a("s_lshl1_add_u32 s31, s34, s31")
        a("s_cmp_eq_u32 s33, 8")
        a("s_cselect_b32 s31, 3, s31")
        a("s_getpc_b64 s[38:39]")
        a.label("L_pc")
        a("s_lshr_b32 s37, s2, 1")
        a("s_and_b32 s37, s37, 0x7c")
        a("s_add_u32 s37, s37, s32")
        a("s_min_u32 s37, s37, (L_end-L_pc)/256")
        a("s_lshl_b32 s37, s37, 8")
        a("s_add_u32 s38, s38, s37")
        a("s_addc_u32 s39, s39, 0")
        a("v_mov_b32 v12, s38")
        a("v_mov_b32 v13, s39")
        a("global_load_dword v14, v[12:13], off")
        a("global_load_dword v15, v[12:13], off offset:128")
        if cfg.pads:
            if cfg.pad4:
                a("s_cmp_eq_u32 s32, 4")
                a("s_cbranch_scc1 L_padl")
            a("s_bitcmp1_b32 s32, 0")
            a("s_cbranch_scc0 L_compute")
            a("s_cmp_eq_u32 s31, 0")
            a("s_cbranch_scc1 L_pad0")
            a("s_cmp_eq_u32 s31, 1")
            a("s_cbranch_scc1 L_pad1")
            a("s_cmp_eq_u32 s31, 2")
            a("s_cbranch_scc1 L_pad2")
            a("s_branch L_pad3")
        else:
            a("s_branch L_compute")
        a.label("L_ld")
    else:
        a("s_cbranch_scc1 L_compute")
    if cfg.bench:
        a("v_mov_b32 v31, 100")
        a("ds_write_b32 v30, v31")
        a("s_waitcnt lgkmcnt(0)")
        a("s_barrier")
        a("s_branch L_dump")
    a("s_add_u32 s37, s35, s36")
    a(f"s_sub_u32 s37, s37, {2*PROW + 2*384}")
    a("s_sub_u32 s38, s30, 2")
    a("s_cmp_eq_u32 s29, 0")
    a("s_cselect_b32 s14, 32, -32")
    a("s_cselect_b32 s15, 0, 320")
    a(f"s_mul_i32 s10, s14, {8*PROW//32}")
    a("s_and_b32 s11, s32, 1")
    a("s_lshl_b32 s39, s11, 4")
    a("s_add_u32 s15, s15, s39")
    a("v_lshrrev_b32 v13, 2, v1")
    a("v_add_u32 v13, s15, v13")
    a("v_lshrrev_b32 v14, 3, v1")
    a("v_and_b32 v14, 2, v14")
    a("v_and_b32 v15, 3, v1")
    a("v_xor_b32 v14, v14, v15")
    a("v_lshlrev_b32 v14, 4, v14")
    a("v_add_u32 v14, s37, v14")
    a("v_bfrev_b32 v19, 1")
    a("s_movk_i32 s39, 3277")
    a(f"s_mov_b32 s49, {PROW}")
    a("s_movk_i32 s50, 384")
    a("s_movk_i32 s51, 112")
    for b in range(5):
        a("v_mul_u32_u24 v15, s39, v13")
        a("v_lshrrev_b32 v15, 16, v15")
        a("v_mul_u32_u24 v16, 20, v15")
        a("v_sub_u32 v16, v13, v16")
        a("v_add_u32 v17, s38, v16")
        a("v_cmp_gt_u32 vcc, s51, v17")
        a("v_mad_u32_u24 v18, v15, s49, v14")
        a("v_mad_u32_u24 v18, v16, s50, v18")
        a(f"v_cndmask_b32 v{2+b}, v19, v18, vcc")
        if b < 4: a("v_add_u32 v13, s14, v13")
        a(f"v_add_u32 v{7+b}, s10, v{2+b}")
    a("v_add_u32 v12, s10, v7")
    a("s_lshl_b32 s57, s52, 6")
    a("s_lshl_b32 s56, s15, 6")
    a("s_lshl_b32 s14, s14, 6")
    a("v_lshlrev_b32 v20, 4, v1")
    a("v_cmp_gt_u32 vcc, 32, v1")
    a("v_xor_b32 v22, 32, v20")
    a("s_lshr_b32 s39, s2, 3")
    a("v_cndmask_b32 v21, v22, v20, vcc")
    a("s_and_b32 s39, s39, 30")
    a("s_mul_i32 s38, s11, 5")
    a("s_add_u32 s39, s39, s38")
    a("s_mul_i32 s38, s39, 26")
    a("s_lshr_b32 s38, s38, 8")
    a("s_mul_i32 s38, s38, 10")
    a("s_sub_u32 s39, s39, s38")
    a("s_mul_i32 s40, s39, 3072")
    a("s_lshr_b32 s41, s39, 1")
    a(f"s_mul_i32 s41, s41, {92160 - 6144}")
    a("s_add_u32 s41, s41, s40")
    a("s_movk_i32 s42, 3072")
    a("s_bitcmp1_b32 s39, 0")
    a(f"s_cselect_b32 s42, {92160 - 3072}, s42")
    a("s_mov_b32 s43, 4")
    a("s_cmp_ge_u32 s32, 2")
    a("s_cselect_b32 s95, 1, 0")
    a(f"s_mul_i32 s54, s95, {WBUF}")
    a(f"s_add_u32 s54, s54, {WBASE}")
    a("s_mul_i32 s37, s95, 3")
    a("s_add_u32 s37, s37, s52")
    a("s_mul_i32 s37, s37, 6144")
    a("s_mov_b32 s55, 0")
    a("s_mov_b32 s15, 15")
    a("s_waitcnt lgkmcnt(0)")
    if cfg.diag: stamp(a, 1)
    srd(a, 16, 4, XBYTES)
    srd(a, 20, 6, WBYTES)
    if cfg.order:
        a("s_cmp_eq_u32 s95, s3")
        a("s_cbranch_scc1 L_go")
        a("s_barrier")
        a.label("L_go")
    a("s_cmp_eq_u32 s95, 1")
    a("s_cbranch_scc0 L_w_it")
    a.label("L_x_loop")
    for blk in range(4):
        a(f"s_bitcmp1_b32 s15, {blk}")
        a(f"s_cbranch_scc0 " + (f"L_x{blk}" if blk < 3 else "L_x_next"))
        for k in range(3 * blk, min(3 * blk + 3, 11)):
            a("s_mov_b32 m0, s56")
            a("s_add_u32 s56, s56, s14")
            a(f"buffer_load_dwordx4 v{2+k}, s[16:19], s57 offen{cfg.xflag} lds")
        if blk < 3: a.label(f"L_x{blk}")
    a("s_cmp_lg_u32 s55, 0")
    a("s_cbranch_scc1 L_x_sig")
    if cfg.diag: stamp(a, 2)
    if cfg.order:
        a("s_cmp_eq_u32 s3, 0")
        a("s_cbranch_scc1 L_x_nb")
    a("s_barrier")
    a.label("L_x_nb")
    a("v_mov_b32 v26, 1")
    a("s_waitcnt vmcnt(0)")
    a("ds_write_b32 v30, v26")
    trace(45, 0)
    a.label("L_w_it")
    a("s_add_u32 m0, s54, s40")
    a("s_add_u32 s50, s37, s41")
    for k in range(3):
        a(f"buffer_load_dwordx4 v{20+k}, s[20:23], s50 offen offset:{k*1024}{cfg.wflag} lds")
    a("s_addk_i32 s40, 3072")
    a("s_add_u32 s41, s41, s42")
    a(f"s_xor_b32 s42, s42, {3072 ^ (92160 - 3072)}")
    a(f"s_cmpk_eq_u32 s40, {WBUF}")
    a("s_cselect_b32 s40, 0, s40")
    a("s_cselect_b32 s41, 0, s41")
    a("s_sub_u32 s43, s43, 1")
    a("s_cbranch_scc0 L_w_it")
    a("s_cmp_lg_u32 s55, 0")
    a("s_cbranch_scc1 L_w_adv")
    a("s_cmp_eq_u32 s95, 1")
    a("s_cbranch_scc1 L_x_w1")
    if cfg.order:
        a("s_cmp_eq_u32 s3, 1")
        a("s_cbranch_scc1 L_w_nb1")
    a("s_barrier")
    a.label("L_w_nb1")
    a("s_mov_b32 s55, s32")
    a("s_mov_b32 s53, s32")
    a(f"s_mul_i32 s50, s32, {WBUF}")
    a("s_add_u32 s54, s54, s50")
    a("v_mov_b32 v31, s32")
    a.label("L_w_adv")
    trace(44, "s55")
    a("v_add_u32 v31, 2, v31")
    a("s_waitcnt vmcnt(0)")
    a("ds_write_b32 v30, v31")
    trace(45, "s55")
    a(f"s_sub_u32 s54, s54, {WBUF}")
    a(f"s_cmp_lt_u32 s54, {WBASE}")
    a(f"s_cselect_b32 s50, {3*WBUF}, 0")
    a("s_add_u32 s54, s54, s50")
    a("s_add_u32 s53, s53, 2")
    a("s_cmp_ge_u32 s53, 5")
    a("s_cselect_b32 s50, 5, 0")
    a("s_sub_u32 s53, s53, s50")
    a("s_lshr_b32 s50, s50, 2")
    a("s_add_u32 s52, s52, s50")
    a("s_cmp_eq_u32 s52, 3")
    a("s_cselect_b32 s52, 0, s52")
    a("s_mul_i32 s37, s53, 3")
    a("s_add_u32 s37, s37, s52")
    a("s_mul_i32 s37, s37, 6144")
    a("s_mov_b32 s43, 9")
    a("s_mov_b32 s51, s55")
    a("s_add_u32 s55, s55, 2")
    a("s_cmp_eq_u32 s51, 0")
    a("s_cbranch_scc1 L_w_it")
    a("s_cmp_ge_u32 s55, 15")
    a("s_cbranch_scc1 L_store")
    a("v_and_b32 v23, 3, v1")
    a("v_lshlrev_b32 v23, 8, v23")
    a(f"v_add_u32 v23, {FLAGS + 1024}, v23")
    poll(a, "L_w_poll", 23, 24, "s51", cfg.sleep)
    trace(46, "s55")
    a("s_branch L_w_it")
    if cfg.pad4:
        a.label("L_padl")
        a("s_branch L_compute")
    a.label("L_x_w1")
    C = sum(((thr << 4) | m) << (8 * k) for k, (thr, m) in enumerate(cfg.xb))
    assert len(cfg.xb) <= 8
    a(f"s_mov_b32 s92, {C & 0xffffffff:#x}")
    a(f"s_mov_b32 s93, {C >> 32:#x}")
    a("s_mov_b32 s55, 1")
    if cfg.trace: a("s_mov_b32 s51, 1")
    a.label("L_x_sig")
    a("v_add_u32 v31, 5, v31")
    a("s_waitcnt vmcnt(0)")
    a("ds_write_b32 v30, v31")
    trace(45, "s51")
    a("s_mul_i32 s50, s14, -11")
    a("s_add_u32 s56, s56, s50")
    a(f"s_add_u32 s56, s56, {XCH}")
    a("s_add_u32 s57, s57, 64")
    a("s_cmp_eq_u32 s57, 192")
    a("s_cselect_b32 s57, 0, s57")
    a.label("L_x_next")
    a("s_and_b32 s15, s92, 15")
    a("s_cbranch_scc0 L_store")
    a("s_bfe_u32 s51, s92, 0x40004")
    a("s_lshr_b64 s[92:93], s[92:93], 8")
    a("v_and_b32 v22, 1, v1")
    a(f"v_lshlrev_b32 v22, 8, v22")
    a(f"v_add_u32 v22, {FLAGS}, v22")
    poll(a, "L_x_poll", 22, 23, "s51", cfg.sleep)
    trace(44, "s51")
    a("s_branch L_x_loop")
    a.label("L_store")
    srd(a, 24, 8, XBYTES)
    a("s_movk_i32 s49, 208")
    a("s_movk_i32 s50, 384")
    a("v_lshrrev_b32 v11, 2, v1")
    a("v_and_b32 v12, 3, v1")
    a("v_lshlrev_b32 v12, 4, v12")
    a("v_mad_u32_u24 v5, v11, s50, v12")
    a("v_mad_u32_u24 v2, v11, s49, v12")
    a("v_and_b32 v10, 1, v1")
    a("v_lshlrev_b32 v10, 8, v10")
    a("s_lshl_b32 s39, s95, 9")
    a(f"s_add_u32 s39, s39, {FLAGS + 1024}")
    a("v_add_u32 v10, s39, v10")
    a("s_add_u32 s45, s35, s36")
    a("s_or_b32 s38, s34, s95")
    a("s_cmp_eq_u32 s33, 8")
    a("s_cselect_b32 s38, 1, s38")
    a("s_cselect_b32 s43, 6, 7")
    a("s_xor_b32 s38, s38, 1")
    a("s_andn2_b32 s44, s34, s95")
    a("s_add_u32 s39, s34, 6")
    a("s_mul_i32 s39, s39, s95")
    a("s_add_u32 s39, s39, s44")
    a("s_add_u32 s39, s39, 5")
    a("s_cmp_eq_u32 s38, 1")
    a("s_cselect_b32 s39, 0, s39")
    a("s_cselect_b32 s42, 1, -1")
    def rowsetup():
        a("s_mul_i32 s40, s11, s42")
        a("s_add_u32 s39, s39, s40")
        a(f"s_mul_i32 s47, s39, {PROW}")
        a("s_add_u32 s47, s47, s45")
        a(f"s_mul_i32 s48, s39, {SROW}")
        a("v_add_u32 v12, s48, v2")
        a(f"s_mul_i32 s40, s42, {2*PROW}")
        a(f"s_mul_i32 s41, s42, {2*SROW}")
    rowsetup()
    a("s_add_u32 s51, s11, 16")
    a("s_add_u32 s44, s44, 22")
    a.label("L_st_m")
    poll(a, "L_st_mp", 10, 11, "s51", cfg.sleep)
    a(f"ds_read_b128 {vr(16,4)}, v12 offset:64")
    a("v_add_u32 v12, s41, v12")
    a("s_add_u32 s51, s51, 2")
    a("s_waitcnt lgkmcnt(0)")
    a(f"buffer_store_dwordx4 {vr(16,4)}, v5, s[24:27], s47 offen offset:64{cfg.stflag}")
    a("s_add_u32 s47, s47, s40")
    a("s_cmp_lt_u32 s51, s44")
    a("s_cbranch_scc1 L_st_m")
    if cfg.stprio: a(f"s_setprio {cfg.stprio}")
    a("s_cmp_eq_u32 s95, 1")
    a("s_cselect_b32 s39, s43, s34")
    a("s_cmp_eq_u32 s38, 1")
    a("s_cselect_b32 s39, 5, s39")
    a("s_sub_u32 s42, 0, s42")
    rowsetup()
    a("s_add_u32 s51, s11, 25")
    a("s_and_b32 s38, s38, s11")
    a("s_cbranch_scc0 L_st_go")
    a("v_and_b32 v28, 3, v1")
    a("v_lshlrev_b32 v28, 8, v28")
    a(f"v_add_u32 v28, {FLAGS + 1024}, v28")
    a(f"s_add_u32 s45, s45, {6*PROW}")
    poll(a, "L_st_s1", 28, 11, 24, cfg.sleep2)
    for k in range(2): a(f"ds_read_b128 {vr(16+4*k,4)}, v2 offset:{6*SROW + 128*k}")
    for k in range(2):
        a(f"s_waitcnt lgkmcnt({1-k})")
        a(f"buffer_store_dwordx4 {vr(16+4*k,4)}, v5, s[24:27], s45 offen offset:{128*k}{cfg.stflag}")
    a.label("L_st_go")
    poll(a, "L_st_p1", 10, 11, "s51", cfg.sleep2)
    for k in range(2): a(f"ds_read_b128 {vr(16+4*k,4)}, v12 offset:{128*k}")
    a("v_add_u32 v12, s41, v12")
    a("s_add_u32 s51, s51, 2")
    for k in range(2):
        a(f"s_waitcnt lgkmcnt({1-k})")
        a(f"buffer_store_dwordx4 {vr(16+4*k,4)}, v5, s[24:27], s47 offen offset:{128*k}{cfg.stflag}")
    a("s_add_u32 s47, s47, s40")
    a("s_cmp_lt_u32 s51, 30")
    a("s_cbranch_scc1 L_st_go")
    a.label("L_st_end")
    if cfg.amp == "all": a("s_branch L_ampall")
    if cfg.diag:
        stamp(a, 5)
        a("s_waitcnt vmcnt(0)")
        stamp(a, 6)
        dump_stamps(a, cfg)
    a.label("L_exit")
    a("s_endpgm")
    a.label("L_compute")
    if cfg.cbar == 0:
        a("s_waitcnt lgkmcnt(0)")
        a("s_barrier")
    a("s_sub_u32 s37, s32, 4")
    a("s_and_b32 s38, s37, 1")
    a("s_lshr_b32 s37, s37, 1")
    a("s_add_u32 s39, s34, 6")
    a("s_mul_i32 s49, s37, s39")
    a(f"v_mov_b32 v{V_CP}, v30")
    a(f"v_mov_b32 v{V_PV}, 0")
    a("v_and_b32 v32, 15, v1")
    a("v_lshrrev_b32 v33, 4, v1")
    a("v_and_b32 v34, 1, v33")
    a("v_lshrrev_b32 v35, 1, v33")
    a("v_bfe_u32 v36, v1, 2, 2")
    a("v_and_b32 v37, 3, v1")
    a(f"v_lshlrev_b32 v{V_LF}, 8, v37")
    a(f"v_add_u32 v{V_LF}, {FLAGS}, v{V_LF}")
    a(f"v_or_b32 v16, 512, v{V_LF}")
    a(f"v_xor_b32 v17, 512, v16")
    a("s_lshl_b32 s39, s38, 7")
    a("v_lshlrev_b32 v40, 5, v34")
    a("v_lshl_add_u32 v40, v35, 4, v40")
    a("v_add_u32 v40, s39, v40")
    a("s_lshl_b32 s39, s38, 5")
    a("s_add_u32 s39, s39, 64")
    a("v_lshlrev_b32 v41, 3, v33")
    a("v_add_u32 v41, s39, v41")
    a("v_mul_u32_u24 v38, 384, v32")
    a("v_add_u32 v38, s36, v38")
    a(f"v_add_u32 v{V_SA}, v38, v40")
    a(f"v_add_u32 v{V_SC}, v38, v41")
    a("v_mul_u32_u24 v38, 208, v32")
    a(f"s_mul_i32 s39, s49, {SROW}")
    a("v_add_u32 v38, s39, v38")
    a("s_lshl_b32 s39, s38, 7")
    a(f"v_lshl_add_u32 v{V_GA}, v33, 3, v38")
    a(f"v_add_u32 v{V_GA}, s39, v{V_GA}")
    a(f"v_add_u32 v{V_GB}, v38, v41")
    a(f"s_mul_i32 s47, s49, {PROW}")
    a("s_add_u32 s47, s47, s35")
    a("v_lshl_add_u32 v38, v33, 3, v36")
    a("v_mul_u32_u24 v38, 192, v38")
    a("v_lshl_add_u32 v38, v37, 3, v38")
    a(f"v_add_u32 v38, {WBASE}, v38")
    a("s_add_u32 s39, s38, 2")
    a("v_xor_b32 v39, s39, v34")
    a(f"v_lshl_add_u32 v{V_WA[0]}, v39, 5, v38")
    a("s_lshl_b32 s39, s38, 2")
    a("v_xor_b32 v39, s39, v34")
    a(f"v_lshl_add_u32 v{V_WA[1]}, v39, 5, v38")
    a("v_xor_b32 v39, 1, v39")
    a(f"v_lshl_add_u32 v{V_WA[2]}, v39, 5, v38")
    a("v_lshlrev_b32 v38, 6, v32")
    a("v_lshl_add_u32 v38, v33, 4, v38")
    a(f"s_mul_i32 s39, s49, {XROW}")
    a(f"v_add_u32 v{V_XL}, s39, v38")
    a(f"v_lshrrev_b32 v{V_T}, 3, v{V_XL}")
    a(f"v_and_b32 v{V_T}, 32, v{V_T}")
    a(f"v_xor_b32 v{V_XA[0]}, v{V_XL}, v{V_T}")
    a(f"v_xor_b32 v{V_XA[1]}, 32, v{V_XA[0]}")
    if cfg.mov64:
        for k in range(0, 84, 2): a(f"v_mov_b64 {vr(V_ACC+k,2)}, 0")
    else:
        for k in range(84): a(f"v_mov_b32 v{V_ACC+k}, 0")
    a(f"s_mov_b32 s40, {(1 << 6) | (1 << 11)}")
    a(f"s_mov_b32 s41, {sum(1 << (h + 1) for h in (3, 6, 9, 12))}")
    a(f"s_mov_b32 s44, {(-2*WBUF) & 0xffffffff}")
    a(f"s_mov_b32 s45, {WBUF}")
    a("s_mov_b32 s46, 2")
    if cfg.cbar == 1:
        a("s_waitcnt lgkmcnt(0)")
        a("s_barrier")
    if cfg.diag: stamp(a, 1)
    srd(a, 24, 8, XBYTES)
    if cfg.prio: a(f"s_setprio {cfg.prio}")
    if cfg.amp in ("span", "skew"): srd(a, 80, 12, 256)
    for var in (1, 2, 3):
        a(f"s_cmp_eq_u32 s31, {var}")
        a(f"s_cbranch_scc1 L_pro{var}")
    if cfg.pads: a("s_branch L_pro0")
    for var in range(4):
        emit_variant(a, var, cfg)
    a.label("L_end")
    for _ in range(100): a("s_endpgm")
    out += a.text()
    nv = (V_END + 7) // 8 * 8
    out += f""".section .rodata,"a"
.p2align 6
.amdhsa_kernel {NAME}_kernel
  .amdhsa_next_free_vgpr {nv}
  .amdhsa_next_free_sgpr 96
  .amdhsa_accum_offset {nv}
  .amdhsa_group_segment_fixed_size 0
  .amdhsa_kernarg_size 40
  .amdhsa_user_sgpr_count 2
  .amdhsa_user_sgpr_kernarg_segment_ptr 1
  .amdhsa_system_sgpr_workgroup_id_x 1
.end_amdhsa_kernel
"""
    return out

if __name__ == "__main__":
    p = argparse.ArgumentParser()
    p.add_argument("-o", default="standalone__dilated_atrous__vision.s")
    p.add_argument("--diag", action="store_true")
    p.add_argument("--trace", action="store_true")
    p.add_argument("--bar_pos", type=int, default=58)
    p.add_argument("--xbar", type=int, default=40)
    p.add_argument("--lead", type=int, default=5)
    p.add_argument("--safe", type=int, default=8)
    p.add_argument("--prio", type=int, default=1)
    p.add_argument("--align", type=int, default=1)
    p.add_argument("--snake", type=int, default=1)
    p.add_argument("--exper", type=int, default=2)
    p.add_argument("--order", type=int, default=1)
    p.add_argument("--wpf", type=int, default=0)
    p.add_argument("--epf", type=int, default=0)
    p.add_argument("--cpf", type=int, default=1)
    p.add_argument("--sleep", type=int, default=2)
    p.add_argument("--sleep2", type=int, default=1)
    p.add_argument("--stflag", default="nt")
    p.add_argument("--wd", type=int, default=1)
    p.add_argument("--amp", default="")
    p.add_argument("--pg", type=int, default=1)
    p.add_argument("--alead", type=int, default=20)
    p.add_argument("--entry_last", type=int, default=0)
    p.add_argument("--pad4", type=int, default=0)
    p.add_argument("--lx", type=int, default=-1)
    p.add_argument("--al8", type=int, default=0)
    p.add_argument("--shift4", type=int, default=0)
    p.add_argument("--rush", type=int, default=30)
    p.add_argument("--fill", type=int, default=0)
    p.add_argument("--pads", type=int, default=1)
    p.add_argument("--nstage", type=int, default=5)
    p.add_argument("--spec", type=int, default=1)
    p.add_argument("--stprio", type=int, default=0)
    p.add_argument("--mov64", type=int, default=1)
    p.add_argument("--xflag", default="")
    p.add_argument("--wflag", default="")
    p.add_argument("--fixd", type=int, default=0)
    p.add_argument("--wbl2", type=int, default=0)
    p.add_argument("--bench", action="store_true")
    p.add_argument("--drop", default="")
    p.add_argument("--cmpd", type=int, default=4)
    p.add_argument("--updstep", type=int, default=1)
    p.add_argument("--xthr", type=int, default=2)
    p.add_argument("--cbar", type=int, default=0)
    p.add_argument("--w2wait", type=int, default=1)
    p.add_argument("--xb", default="3:1,4:2,5:4,6:8,8:3,9:12")
    cfg = p.parse_args()
    cfg.xb = [tuple(int(v) for v in e.split(":")) for e in cfg.xb.split(",")]
    WD = cfg.wd
    if cfg.stflag: cfg.stflag = " " + cfg.stflag
    if cfg.xflag: cfg.xflag = " " + cfg.xflag
    if cfg.wflag: cfg.wflag = " " + cfg.wflag
    open(cfg.o, "w").write(gen(cfg))
```

```python
import sys, argparse

NAME = "standalone__dilated_atrous__vision"
XBYTES = 224 * 224 * 96 * 2
WBYTES = 25 * 96 * 96 * 2
ROWB = 224 * 192
PROW = 2 * ROWB
XCH = 352 * 64
XROW = 20 * 64
WBASE = 3 * XCH
WBUF = 5 * 6144
FLAGS = WBASE + 3 * WBUF
LDS_TOTAL = FLAGS + 2048
SROW = 16 * 208
assert 13 * SROW <= 2 * XCH

class Asm:
    def __init__(self):
        self.lines = []
    def __call__(self, s):
        self.lines.append("    " + s)
    def label(self, l):
        self.lines.append(l + ":")
    def comment(self, s):
        self.lines.append("    ; " + s)
    def text(self):
        return "\n".join(self.lines) + "\n"

def vr(b, n):
    return f"v[{b}:{b+n-1}]"

V_XL = 1
V_XA = (2, 3)
V_WA = (4, 5, 6)
V_SA, V_SC = 7, 8
V_GA, V_GB = 9, 10
V_T = 11
V_XB = (22, 23)
V_CP = 25
V_LF = 26
V_PV = 27
V_F = 28
V_X = 32
V_W = 76
V_ACC = 136
V_EXTRA = V_ACC + 84
V_END = V_EXTRA + 32

TYPES = {
    0: (range(0, 6), range(0, 7), range(0, 6)),
    1: (range(0, 6), range(1, 7), range(0, 7)),
    2: (range(0, 7), range(1, 7), range(1, 7)),
    3: (range(0, 6), range(0, 6), range(0, 6)),
}
OFF = {0: 0, 1: 1, 2: 1, 3: 0}
SPECIAL = {0: 6, 1: 0, 2: 0, 3: None}
LASTHEAD = {
    0: [(0, 0), (0, 1), (6, 1), (0, 2)],
    1: [(0, 0), (1, 0), (1, 1), (0, 2), (1, 2)],
    2: [(0, 0), (1, 0), (1, 1), (2, 0), (1, 2), (2, 1), (2, 2)],
    3: [(0, 0), (0, 1), (1, 0), (0, 2), (1, 1), (1, 2)],
}

def acc(rho, t): return V_ACC + 4 * (rho * 3 + t)
def wreg(i, t): return V_W + 4 * (i * 3 + t)
def xreg(q): return V_X + 4 * q

def chain(rho, t, rev):
    r = list(range(5))
    if rev: r.reverse()
    return [(rho, i, t, rho + i) for i in r]

def steady_order(var, cfg, par=(1, 1, 1)):
    ms = []
    for t in range(3):
        for j, rho in enumerate(TYPES[var][t]): ms += chain(rho, t, cfg.snake and j % 2 == par[t])
    return ms

DIRECT = {0: (5,), 1: (6, 5), 2: (6,), 3: (5,)}

def last_tiles(var):
    order = list(LASTHEAD[var])
    rows = [r for r in range(7) if r not in DIRECT[var]] + list(DIRECT[var])
    for r in rows:
        for t in ((0, 1, 2) if r not in DIRECT[var] else (1, 2, 0)):
            if r in TYPES[var][t] and (r, t) not in order: order.append((r, t))
    return order

def last_order(var, cfg, par=1):
    ms = []
    for j, (r, t) in enumerate(last_tiles(var)): ms += chain(r, t, cfg.snake and j % 2 == par and j >= 4)
    return ms

def uses(ms):
    first, last = {}, {}
    for k, (rho, i, t, q) in enumerate(ms):
        for key in (("w", i, t, 0), ("w", i, t, 1), ("x", q)):
            first.setdefault(key, k); last[key] = k
    return first, last

def read_text(nm):
    if nm[0] == "x":
        q = nm[1]
        return f"ds_read_b128 {vr(xreg(q),4)}, v{V_XA[q & 1]} offset:{q*XROW}"
    _, i, t, h = nm
    return f"ds_read_b64_tr_b16 {vr(wreg(i,t)+2*h,2)}, v{V_WA[t]} offset:{i*6144 + h*768}"

def edf(reads, lo, hi, lead, busy=()):
    placed, pending = {}, list(reads)
    for k in range(lo, hi):
        avail = [r for r in pending if r[1] <= k]
        if not avail: continue
        r = min(avail, key=lambda r: r[2])
        placed[k] = r[0]
        pending.remove(r)
        assert r[2] - k >= lead, (r, k)
    assert not pending, pending
    return placed

def mfma_text(m):
    rho, i, t, q = m
    return f"v_mfma_f32_16x16x32_bf16 {vr(acc(rho,t),4)}, {vr(wreg(i,t),4)}, {vr(xreg(q),4)}, {vr(acc(rho,t),4)}"

class LdsQ:
    def __init__(self, a, safe):
        self.a, self.safe = a, safe
        self.ops = []
        self.done = 0
        self.waits = []
    def issue(self, name, time, text=None):
        self.ops.append((name, time))
        if text: self.a(text)
    def need(self, names, time):
        idx = max(max(j for j, (nm, _) in enumerate(self.ops) if nm == n) for n in names) + 1
        if idx <= self.done: return
        for j, (nm, tm) in enumerate(self.ops):
            if tm <= time - 1 - self.safe: idx = max(idx, j + 1)
        cnt = len(self.ops) - idx
        if cnt > 14:
            idx += cnt - 14; cnt = 14
        self.a(f"s_waitcnt lgkmcnt({cnt})")
        self.waits.append((time, cnt, len(self.ops)))
        self.done = idx

WD = 1
def poll(a, label, vaddr, vtmp, sneed, sleep, wd=True):
    a.label(label)
    if WD and wd:
        a("s_add_u32 s94, s94, 1")
        a("s_bitcmp1_b32 s94, 18")
        a("s_cbranch_scc1 L_exit")
    a(f"ds_read_b32 v{vtmp}, v{vaddr}")
    a("s_waitcnt lgkmcnt(0)")
    a(f"v_cmp_gt_u32 vcc, {sneed}, v{vtmp}")
    if sleep:
        a(f"s_cbranch_vccz {label}_ok")
        a(f"s_sleep {sleep}")
        a(f"s_branch {label}")
        a.label(label + "_ok")
    else:
        a(f"s_cbranch_vccnz {label}")

def isize(l):
    l = l.strip()
    op = l.split()[0]
    if op.startswith(("v_mfma", "ds_", "buffer_", "v_cvt_pk")) or op.endswith("_e64"): return 8
    import re
    for tok in re.split(r"[ ,]+", l)[1:]:
        if re.fullmatch(r"-?\d+|0x[0-9a-f]+", tok) and not op.startswith(("s_waitcnt", "s_nop")):
            v = int(tok, 0)
            if not (-16 <= v <= 64): return 8
    return 4

def align8(lines):
    out = []
    for l in lines:
        op = l.strip().split()[0]
        if op.startswith("v_") and isize(l) == 4:
            l = l.replace(op, op + "_e64", 1)
        out.append(l)
    res, off = [], 0
    for l in out:
        sz = isize(l)
        if sz == 8 and off % 8 == 4:
            res.append("    s_nop 0"); off += 4
        res.append(l); off += sz
    if off % 8 == 4: res.append("    s_nop 0")
    return res

def emit_variant(a, var, cfg):
    bar = cfg.bar_pos if var != 3 else cfg.bar_pos - 3
    best = None
    for par in [(p0, 1, p2) for p0 in (1, 0) for p2 in (1, 0)]:
        ms = steady_order(var, cfg, par)
        n = len(ms)
        first, last = uses(ms)
        reads = [(key, max(last[key], bar, n if (key[0] == "w" and key[2] == 2) else 0), n + first[key]) for key in first]
        placed = edf(reads, bar, n + bar - 16, 0)
        ld = min(n + first[nm] - k for k, nm in placed.items())
        if best is None or ld > best[0]: best = (ld, par, ms, first, last, placed)
    ld, par, ms, first, last, placed = best
    print(f"variant {var}: snake parity {par}, min lead {ld}", file=sys.stderr)
    tail = [(k, placed[k]) for k in sorted(placed) if k < n]
    head = [(k - n, placed[k]) for k in sorted(placed) if k >= n]
    slow = []
    hb, tb = Asm(), Asm()
    q = LdsQ(hb, cfg.safe)
    for k, nm in tail: q.issue(nm, k - n)
    headd, taild = dict(head), dict(tail)
    extra = {}
    def put(k, s): extra.setdefault(k, []).append(s)
    krel = max(k for k, nm in head) + 1
    put(krel - 1, f"v_add_u32 v{V_PV}, 1, v{V_PV}")
    upd = ["s_bitcmp1_b32 s40, s46", f"s_cselect_b32 s42, {XCH - 4*64}, 64",
           "s_bitcmp1_b32 s41, s46", "s_cselect_b32 s43, s44, s45",
           "s_cmp_eq_u32 s46, 16", "s_cselect_b32 s49, 1000, s46",
           f"v_add_u32 v{V_XL}, s42, v{V_XL}", f"v_lshrrev_b32 v{V_T}, 3, v{V_XL}", f"v_and_b32 v{V_T}, 32, v{V_T}",
           f"v_xor_b32 v{V_XA[0]}, v{V_XL}, v{V_T}", f"v_xor_b32 v{V_XA[1]}, 32, v{V_XA[0]}"]
    upd += [f"v_add_u32 v{V_WA[t]}, s43, v{V_WA[t]}" for t in range(3)]
    b0 = krel + 2
    for j, u in enumerate(upd): put(b0 + cfg.updstep * j, u)
    kflag = bar - cfg.cmpd - 9
    assert b0 + cfg.updstep * len(upd) <= kflag
    cur = hb
    for k, m in enumerate(ms):
        rho, i, t, qq = m
        q.need([("w", i, t, 0), ("w", i, t, 1), ("x", qq)], k)
        cur(mfma_text(m))
        D = cfg.drop
        for s in extra.get(k, []): cur(s)
        if k == krel: q.issue(("rel",), k, f"ds_write_b32 v{V_CP}, v{V_PV}")
        if k == kflag: q.issue(("flag",), k, f"ds_read_b32 v{V_F}, v{V_LF}")
        if k == bar - cfg.cmpd - 1: q.need([("flag",)], k + 1)
        if k == bar - cfg.cmpd: cur(f"v_cmp_gt_u32 vcc, s49, v{V_F}")
        if k == bar:
            cur = tb; q.a = tb
        drop = lambda nm: ("l" in D and k in taild) or ("w" in D and nm[0] == "w" and k in taild) or ("x" in D and nm[0] == "x")
        if k in headd: q.issue(headd[k], k, read_text(headd[k]) if not drop(headd[k]) else None)
        if k in taild: q.issue(("next",) + taild[k], k, read_text(taild[k]) if not drop(taild[k]) else None)
        if k == n - 9: cur("s_add_u32 s46, s46, 1")
    bases = {0: (0,), 1: (6,), 2: (0,), 3: (0, 6, 7)}[var]
    def rowstage(r): return 1 if (r <= 2 or 5 <= r <= 10) else (2 if r <= 11 else 3)
    def stage(nm):
        if nm[0] == "w": return 1 if nm[1] <= 2 else 2
        return max(rowstage(b + nm[1]) for b in bases)
    opsof = lambda m: [("w", m[1], m[2], 0), ("w", m[1], m[2], 1), ("x", m[3])]
    hm = list(enumerate(ms[:bar + 1]))
    hm.sort(key=lambda e: (max(stage(nm) for nm in opsof(e[1])), e[0]))
    hm = [m for _, m in hm]
    nH = len(hm)
    hf, _ = uses(hm)
    st_first = {}
    for k, m in enumerate(hm): st_first.setdefault(max(stage(nm) for nm in opsof(m)), k)
    stages = sorted(set(stage(nm) for nm in first))
    kb = {1: -1}
    for sg in stages[1:]:
        kb[sg] = max(st_first.get(sg, nH - 30) - cfg.hlead, kb[max(x for x in kb)] + cfg.fd + 2, cfg.fd)
    def emit_entry():
        a.label(f"L_pro{var}")
        poll(a, f"L_p0_{var}", V_LF, V_F, 1, 0)
        if cfg.diag: stamp(a, 3)
        if cfg.amp and (cfg.amp != "pt" or cfg.pt == "t0"):
            a("s_memrealtime s[86:87]")
            a("s_waitcnt lgkmcnt(0)")
        q1 = LdsQ(a, cfg.safe)
        pend = sorted(first, key=lambda nm: hf.get(nm, nH + first[nm]))
        for nm in [p for p in pend if hf.get(p, 999) < cfg.burst and stage(p) == 1]:
            q1.issue(nm, -1, read_text(nm)); pend.remove(nm)
        fixed = {}
        for sg in stages[1:]:
            fixed.setdefault(kb[sg] - cfg.fd, []).append(("flag", sg))
            fixed.setdefault(kb[sg] - 1, []).append(("cmp", sg))
            fixed.setdefault(kb[sg], []).append(("br", sg))
        todo = [f"v_add_u32 v{V_PV}, 1, v{V_PV}", "REL"] + upd
        kf = nH - 1 - cfg.cmpd - 9
        for k, m in enumerate(hm):
            q1.need(opsof(m), k)
            a(mfma_text(m))
            cnt = 0
            for what, sg in fixed.get(k, []):
                cnt += 1
                if what == "flag": q1.issue(("fl", sg), k, f"ds_read_b32 v{V_F}, v{V_LF}")
                elif what == "cmp":
                    q1.need([("fl", sg)], k + 1 - cfg.safe)
                    a(f"v_cmp_gt_u32 vcc, {sg}, v{V_F}")
                else:
                    a(f"s_cbranch_vccnz L_sl{var}_{sg}")
                    a.label(f"L_sk{var}_{sg}")
                    slow.append((f"L_sl{var}_{sg}", V_LF, sg, f"L_sk{var}_{sg}"))
            if k == kf:
                q1.issue(("flag",), k, f"ds_read_b32 v{V_F}, v{V_LF}"); cnt += 1
            if k == nH - 1 - cfg.cmpd - 1:
                a("s_waitcnt lgkmcnt(0)"); q1.done = len(q1.ops); cnt += 1
            if k == nH - 1 - cfg.cmpd:
                assert not any(t.startswith("s_c") for t in todo)
                a(f"v_cmp_gt_u32 vcc, s49, v{V_F}"); cnt += 1
            while cnt < (cfg.hcap if k >= 8 else 2):
                av = [p for p in pend if kb[stage(p)] <= k]
                if av:
                    q1.issue(av[0], k, read_text(av[0])); pend.remove(av[0])
                elif not pend and todo and cnt < (2 if len(todo) > nH - 6 - k else 1):
                    t = todo.pop(0)
                    if t == "REL": q1.issue(("rel",), k, f"ds_write_b32 v{V_CP}, v{V_PV}")
                    else: a(t)
                else: break
                cnt += 1
            assert not (k >= kf and pend)
        assert not pend and not todo, (pend, todo)
        if cfg.diag: a("s_memtime s[64:65]")
        if cfg.amp == "pt" and cfg.pt == "hend":
            a("s_memrealtime s[86:87]")
            a("s_waitcnt lgkmcnt(0)")
        a(f"s_branch L_sync{var}")
    print(f"   first head: {nH} mfmas, stage starts {st_first}, checks {kb}", file=sys.stderr)
    if cfg.pads:
        a.label(f"L_pad{var}")
        a("s_branch L_compute")
    def emit_slow():
        poll(a, f"L_slow{var}", V_LF, V_F, "s49", 0)
        if cfg.diag:
            a("s_bitset1_b32 s95, s46")
            a("s_cmp_lg_u32 s46, 4")
            a(f"s_cbranch_scc1 L_dg{var}")
            a("s_memtime s[74:75]")
            a("s_waitcnt lgkmcnt(0)")
            a.label(f"L_dg{var}")
        a("s_cmp_eq_u32 s46, 16")
        a(f"s_cbranch_scc1 L_fin{var}")
        a(f"s_branch L_top{var}")
        for lab, va, need, back in slow:
            poll(a, lab, va, V_F, need, 0)
            if cfg.diag: a(f"s_bitset1_b32 s95, {need}")
            a(f"s_branch {back}")
    if not cfg.entry_last: emit_entry()
    if cfg.slow_near: emit_slow()
    if cfg.al8:
        hb.lines = align8(hb.lines); tb.lines = align8(tb.lines)
    if cfg.align: a(".p2align 6")
    a.label(f"L_top{var}")
    a.lines += tb.lines
    a.label(f"L_head{var}")
    a.lines += hb.lines
    a.label(f"L_sync{var}")
    a(f"s_cbranch_vccz L_top{var}")
    a("s_min_u32 s49, s49, 17")
    a(f"v_cmp_gt_u32 vcc, s49, v{V_F}")
    a(f"s_cbranch_vccnz L_slow{var}")
    a.label(f"L_fin{var}")
    a.lines += tb.lines
    if cfg.diag: stamp(a, 4)
    if cfg.amp == "pt" and cfg.pt == "fin":
        a("s_memrealtime s[86:87]")
        a("s_waitcnt lgkmcnt(0)")
    if cfg.cpf: a("s_waitcnt vmcnt(0)")
    rows = TYPES[var]
    down = var == 0
    prow = sorted(set(rows[1]) | set(rows[2]), reverse=down)
    lastrow = prow[-1]
    srow2 = sorted(rows[0], reverse=not down)
    def build(pa, pb):
        out = []
        for j, r in enumerate(rows[0]):
            out += [m + (13, 0) for m in chain(r, 0, cfg.snake and j % 2 == pa)]
        for j, r in enumerate(srow2):
            out += [m + (14, 0) for m in chain(r, 0, cfg.snake and j % 2 == pb)]
        keep = set(range(srow2[-1], srow2[-1] + 5))
        flip = 0
        tiles = []
        for r in prow:
            ts = [t for t in ((1, 2) if flip == 0 else (2, 1)) if r in rows[t]]
            if r == lastrow: ts = [1, 2]
            for j, t in enumerate(ts):
                gs = (14, 13) if j == 0 else (13, 14)
                for g in gs:
                    for m in chain(r, t, (j == 1) != down):
                        out.append(m + (g, 0 if (g == 14 and m[3] in keep) else 1))
                tiles.append((r, t))
            flip = 0 if ts[-1] == 1 else 1
        return out, tiles
    def names(m):
        rho, i, t, qq, g, occ = m
        return [("w", g, i, t, 0), ("w", g, i, t, 1), ("x", g, qq, occ)]
    frag = lambda nm: nm if nm[0] == "x" else nm[:4]
    conv = lambda nm: ("x", 13, nm[1], 0) if nm[0] == "x" else ("w", 13) + nm[1:]
    pre = [(k - n, conv(nm)) for k, nm in tail]
    prenames = set(nm for _, nm in pre)
    slots = [V_X + 4 * j for j in range(26)] + [V_EXTRA + 4 * j for j in range(8)]
    best = None
    for pa in (1, 0):
      for pb in (1, 0):
        ls, ptiles = build(pa, pb)
        lf, ll = {}, {}
        for k, m in enumerate(ls):
            for nm in names(m):
                lf.setdefault(nm, k); ll[nm] = k
        free = {sl: 0 for sl in slots}
        regs = {}
        for nm in prenames:
            sl = xreg(nm[2]) if nm[0] == "x" else wreg(nm[2], nm[3])
            regs[frag(nm)] = sl
            free[sl] = max(free[sl], ll.get(nm, 0))
        rds, early = [], {}
        for nm in sorted(lf, key=lambda v: lf[v]):
            if nm in prenames: continue
            fr = frag(nm)
            if fr not in regs:
                ok = [sl for sl in slots if free[sl] <= lf[nm] - cfg.alead]
                sl = max(ok, key=lambda v: free[v]) if ok else min(slots, key=lambda v: free[v])
                regs[fr] = sl; early[fr] = free[sl]; free[sl] = ll[nm]
            e = early.get(fr, 0)
            if nm[0] == "x" and nm[1] == 14: e = max(e, 6)
            rds.append((nm, e, lf[nm]))
        try: lp = edf(rds, 0, len(ls), 0)
        except AssertionError: continue
        ld2 = min([lf[nm] - k for k, nm in lp.items()] + [lf[nm] - k for k, nm in pre if nm in lf])
        if best is None or ld2 > best[0]: best = (ld2, (pa, pb), ls, lf, lp, regs, ptiles)
    ld2, pars, ls, lf, lplaced, regs, ptiles = best
    print(f"   final segment: parity {pars} min lead {ld2} reads {len(lplaced)}", file=sys.stderr)
    def rd_text(nm):
        if nm[0] == "x":
            _, g, qq, occ = nm
            return f"ds_read_b128 {vr(regs[nm],4)}, v{(V_XA if g == 13 else V_XB)[qq & 1]} offset:{qq*XROW}"
        _, g, i, t, h = nm
        return f"ds_read_b64_tr_b16 {vr(regs[frag(nm)]+2*h,2)}, v{V_WA[t]} offset:{(g-13)*WBUF + i*6144 + h*768}"
    n2 = len(ls)
    q = LdsQ(a, cfg.safe)
    for k, nm in pre: q.issue(nm, k)
    endk = {}
    for k, m in enumerate(ls): endk[(m[0], m[2])] = k
    def cvt2(D, S, tile):
        return [(tile, f"v_cvt_pk_bf16_f32 v{D}, v{S}, v{S+1}"), (tile, f"v_cvt_pk_bf16_f32 v{D+1}, v{S+2}, v{S+3}")]
    seq = [(None, f"v_add_u32 v{V_XL}, 64, v{V_XL}"), (None, f"v_lshrrev_b32 v{V_T}, 3, v{V_XL}"), (None, f"v_and_b32 v{V_T}, 32, v{V_T}"),
           (None, f"v_xor_b32 v{V_XB[0]}, v{V_XL}, v{V_T}"), (None, f"v_xor_b32 v{V_XB[1]}, 32, v{V_XB[0]}")]
    for j, r in enumerate(srow2):
        S = acc(r, 0)
        seq += cvt2(S, S, (r, 0))
        seq += [(None, f"v_mov_b32 v{V_PV}, {16 + j}"), (None, f"ds_write_b64 v{V_GB}, {vr(S,2)} offset:{r*SROW}"),
                (None, f"ds_write_b32 v{V_CP}, v{V_PV}")]
    kfull, seen = 0, set()
    for (r, t) in ptiles:
        S = acc(r, t)
        if r != lastrow:
            seq += cvt2(S, S, (r, t))
            pv = None
            if not (r in rows[1] and r in rows[2]): pv = 24
            elif r in seen:
                pv = 25 + kfull; kfull += 1
            seen.add(r)
            if pv: seq.append((None, f"v_mov_b32 v{V_PV}, {pv}"))
            seq.append((None, f"ds_write_b64 v{V_GA}, {vr(S,2)} offset:{r*SROW + (32 if t == 2 else 0)}"))
            if pv: seq.append((None, f"ds_write_b32 v{V_CP}, v{V_PV}"))
        elif t == 1:
            seq += cvt2(S, S, (r, t))
            seq.append((None, f"s_add_u32 s48, s47, {r*PROW}"))
        else:
            A = acc(r, 1)
            seq += cvt2(A + 2, S, (r, t))
            seq.append(("W2", f"v_permlane16_swap_b32 v{A}, v{A+2}"))
            seq.append((None, f"v_permlane16_swap_b32 v{A+1}, v{A+3}"))
            seq.append((None, f"buffer_store_dwordx4 {vr(A,4)}, v{V_SA}, s[24:27], s48 offen{cfg.stflag}"))
    assert kfull == 5
    def states(frm):
        c = 0
        for l in a.lines[frm + 1:]:
            l = l.strip()
            if l.endswith(":") or l.startswith(";") or l.startswith("."): continue
            c += int(l.split()[1]) + 1 if l.startswith("s_nop") else 1
        return c
    done_at = {}
    last_valu = [0]
    def missing(dep):
        if dep is None: return 0
        if dep == "W2": return max(0, 2 - states(last_valu[0]))
        if dep not in done_at: return None
        return max(0, 8 - states(done_at[dep]))
    nl = [0]
    def emit_ex(txt, k):
        for key, pat in (("C", "v_cvt"), ("P", "v_permlane"), ("V", "ds_write_b64"), ("F", "ds_write_b32"), ("S", "buffer_store")):
            if key in cfg.drop and txt.startswith(pat): return
        if txt.startswith("ds_"):
            nl[0] += 1; q.issue(("st", nl[0]), k, txt)
        else: a(txt)
        if txt.startswith("v_cvt"): last_valu[0] = len(a.lines) - 1
    for k, m in enumerate(ls):
        rho, i, t, qq, g, occ = m
        q.need(names(m), k)
        a(f"v_mfma_f32_16x16x32_bf16 {vr(acc(rho,t),4)}, {vr(regs[('w',g,i,t)],4)}, {vr(regs[('x',g,qq,occ)],4)}, {vr(acc(rho,t),4)}")
        if endk[(rho, t)] == k: done_at[(rho, t)] = len(a.lines) - 1
        cnt = 0
        if k in lplaced:
            q.issue(lplaced[k], k, rd_text(lplaced[k])); cnt += 1
        lim = cfg.exper if (k >= n2 - cfg.rush or k < 6) else 1
        if k < 6: cnt = 1
        while seq and cnt < lim and k < n2 - 1:
            miss = missing(seq[0][0])
            if miss == 0:
                emit_ex(seq.pop(0)[1], k); cnt += 1
            else:
                if miss is not None and miss > 1 and cnt == 0 and k >= n2 - cfg.fill: a("s_nop 1")
                break
    while seq:
        miss = missing(seq[0][0])
        if miss: a(f"s_nop {miss - 1}")
        emit_ex(seq.pop(0)[1], n2)
    if cfg.diag:
        stamp(a, 5)
        a("s_waitcnt vmcnt(0)")
        stamp(a, 6)
        a("s_branch L_dump")
    elif cfg.amp:
        if var == 0: a.label("L_ampall")
        a("s_waitcnt vmcnt(0)")
        a("s_memrealtime s[88:89]")
        a("s_waitcnt lgkmcnt(0)")
        if cfg.amp in ("span", "skew"):
            a("v_mov_b32 v4, 0")
            a("buffer_load_dwordx2 v[6:7], v4, s[80:83], 0 offen sc0 sc1")
            a("s_waitcnt vmcnt(0)")
            a("v_readfirstlane_b32 s86, v6")
            a("v_readfirstlane_b32 s58, v7")
            a("s_nop 3")
            a("s_not_b32 s58, s58")
        lo, hi = {"pro": (58, 86), "all": (58, 88), "loop": (86, 88), "none": (58, 58), "span": (58, 88), "skew": (58, 86), "pt": (58, 86)}[cfg.amp]
        if cfg.rev: lo, hi = 86, 88
        a(f"s_sub_u32 s90, s{hi}, s{lo}")
        a("s_mul_i32 s90, s90, 10")
        if cfg.fixd: a(f"s_mov_b32 s90, {cfg.fixd}")
        if cfg.onlyw >= 0:
            a(f"s_cmp_eq_u32 s32, {cfg.onlyw}")
            a("s_cselect_b32 s90, s90, 0")
        if cfg.onlyb >= 0:
            a(f"s_cmp_eq_u32 s2, {cfg.onlyb}")
            a("s_cselect_b32 s90, s90, 0")
        if cfg.wbl2:
            a("buffer_wbl2 sc1")
        a.label(f"L_amp{var}")
        a("s_memrealtime s[76:77]")
        a("s_waitcnt lgkmcnt(0)")
        a("s_sub_u32 s91, s76, s88")
        a("s_cmp_lt_u32 s91, s90")
        a(f"s_cbranch_scc1 L_amp{var}")
        a("s_endpgm")
    else:
        a("s_endpgm")
    if not cfg.slow_near: emit_slow()
    if cfg.entry_last: emit_entry()

def stamp(a, idx):
    a(f"s_memtime s[{60+2*idx}:{61+2*idx}]")
    if idx in (3, 5):
        a(f"s_memrealtime s[{86 if idx == 3 else 88}:{87 if idx == 3 else 89}]")
    a("s_waitcnt lgkmcnt(0)")

def dump_stamps(a, cfg):
    a.label("L_dump")
    a("s_memrealtime s[76:77]")
    a("s_mov_b32 s78, s95")
    a("s_getreg_b32 s79, hwreg(HW_REG_XCC_ID)")
    a("s_waitcnt lgkmcnt(0)")
    a("s_mov_b32 s80, s12")
    a("s_mov_b32 s81, s13")
    a("s_mov_b32 s82, 0x100000")
    a("s_mov_b32 s83, 0x20000")
    a("s_lshl_b32 s84, s2, 3")
    a("s_add_u32 s84, s84, s32")
    a("s_lshl_b32 s84, s84, 6")
    a("v_mov_b32 v4, 0")
    for k, s in enumerate([60, 62, 64, 66, 68, 70, 72, 74, 76, 77, 78, 79, 58, 59, 86, 88]):
        a(f"v_mov_b32 v5, s{s}")
        a(f"buffer_store_dword v5, v4, s[80:83], s84 offen offset:{4*k}")
        a("s_nop 1")
    a("v_and_b32 v1, 63, v0")
    a("v_lshlrev_b32 v4, 2, v1")
    a("v_cmp_gt_u32 vcc, 16, v1")
    a("s_and_saveexec_b64 s[92:93], vcc")
    a("s_lshl_b32 s84, s84, 2")
    a("s_add_u32 s84, s84, 0x40000")
    for k in range(3):
        a(f"buffer_store_dword v{44+k}, v4, s[80:83], s84 offen offset:{64*k}")
    a("s_waitcnt vmcnt(0)")
    a("s_endpgm")

def srd(a, d, p, size):
    a(f"s_mov_b32 s{d}, s{p}")
    a(f"s_and_b32 s{d+1}, s{p+1}, 0xffff")
    a(f"s_mov_b32 s{d+2}, {size}")
    a(f"s_mov_b32 s{d+3}, 0x20000")

def gen(cfg):
    a = Asm()
    hdr = open("standalone__dilated_atrous__vision.s.ref").read().splitlines()
    head = [l for l in hdr[:8] if l.startswith(";") and "@launch" not in l]
    out = "\n".join(head) + "\n"
    out += f"; @launch grid=(256,1,1) block=(512,1,1) lds={LDS_TOTAL}\n"
    out += f""".amdgcn_target "amdgcn-amd-amdhsa--gfx950"
.text
.globl {NAME}_kernel
{".p2align 12" + chr(10) if cfg.pg else ""}.p2align 8
.type {NAME}_kernel,@function
{NAME}_kernel:
"""
    def mark(name):
        if cfg.amp == "pt" and cfg.pt == name:
            a("s_memrealtime s[86:87]")
            a("s_waitcnt lgkmcnt(0)")
    def markn(name):
        if cfg.amp == "pt" and cfg.pt == name: a("s_memrealtime s[86:87]")
    def trace(reg, idx):
        if cfg.trace:
            a("s_memtime s[90:91]")
            a(f"s_mov_b32 m0, {idx}")
            a("s_waitcnt lgkmcnt(0)")
            a(f"v_writelane_b32 v{reg}, s90, m0")
    if cfg.diag:
        a("s_memtime s[60:61]")
        a("s_memrealtime s[58:59]")
        a("s_load_dwordx2 s[12:13], s[0:1], 32")
    if cfg.amp: a("s_memrealtime s[58:59]")
    if cfg.amp == "pt": a("s_memrealtime s[86:87]")
    if cfg.amp in ("span", "skew"): a("s_load_dwordx2 s[12:13], s[0:1], 24")
    a("s_load_dwordx4 s[4:7], s[0:1], 0")
    a("s_load_dwordx2 s[8:9], s[0:1], 16")
    if cfg.amp == "pt" and cfg.pt == "k0":
        a("s_waitcnt lgkmcnt(0)")
        mark("k0")
    if WD: a("s_mov_b32 s94, 0")
    a("s_cmp_ge_u32 s2, 256")
    a("s_cbranch_scc1 L_exit")
    if cfg.lx < 0:
        a("s_and_b32 s28, s2, 1")
        a("s_bfe_u32 s3, s2, 0x20001")
        a("s_lshl_b32 s3, s3, 5")
        a("s_lshr_b32 s33, s2, 3")
        a("s_add_u32 s3, s3, s33")
        a("s_cmp_ge_u32 s3, 126")
        a("s_cbranch_scc1 L_exit")
    else:
        a("s_and_b32 s3, s2, 7")
        a(f"s_sub_u32 s3, s3, {cfg.lx + 1}")
        a("s_and_b32 s3, s3, 7")
        a("s_lshl_b32 s3, s3, 5")
        a("s_lshr_b32 s33, s2, 3")
        a("s_add_u32 s3, s3, s33")
        a("s_cmp_ge_u32 s3, 252")
        a("s_cbranch_scc1 L_exit")
        a("s_cmp_ge_u32 s3, 224")
        a("s_cselect_b32 s33, 14, 112")
        a("s_cselect_b32 s34, 224, 0")
        a("s_cselect_b32 s29, 112, 0")
        a("s_sub_u32 s3, s3, s34")
        a("s_cmp_ge_u32 s3, s33")
        a("s_cselect_b32 s28, 1, 0")
        a("s_cselect_b32 s33, s33, 0")
        a("s_sub_u32 s3, s3, s33")
        a("s_add_u32 s3, s3, s29")
    a("v_lshrrev_b32 v2, 6, v0")
    a("v_and_b32 v1, 63, v0")
    a("v_readfirstlane_b32 s32, v2")
    a("v_lshlrev_b32 v30, 2, v0")
    a(f"v_add_u32 v30, {FLAGS}, v30")
    a("v_mov_b32 v31, 0")
    a("ds_write_b32 v30, v31")
    markn("a0")
    a("s_mul_i32 s33, s3, 4682")
    a("s_lshr_b32 s33, s33, 16")
    a("s_mul_i32 s34, s33, 14")
    a("s_sub_u32 s34, s3, s34")
    a("s_and_b32 s29, s34, 1")
    a("s_lshr_b32 s30, s34, 1")
    a("s_lshl_b32 s30, s30, 4")
    a("s_mul_i32 s31, s33, 25")
    a("s_lshr_b32 s31, s31, 1")
    a("s_and_b32 s34, s33, 1")
    a("s_lshl_b32 s35, s31, 1")
    a("s_add_u32 s35, s35, s28")
    a(f"s_mul_i32 s35, s35, {ROWB}")
    a("s_lshl_b32 s36, s30, 1")
    a("s_add_u32 s36, s36, s29")
    a("s_mul_i32 s36, s36, 192")
    a("s_lshl_b32 s52, s29, 1")
    a("s_sub_u32 s52, 2, s52")
    a("s_cmp_ge_u32 s32, 4")
    if cfg.cpf:
        a("s_cbranch_scc0 L_ld")
        a("s_bfe_u32 s31, s32, 0x10001")
        a("s_lshl1_add_u32 s31, s34, s31")
        a("s_cmp_eq_u32 s33, 8")
        a("s_cselect_b32 s31, 3, s31")
        a("s_getpc_b64 s[38:39]")
        a.label("L_pc")
        a("s_lshr_b32 s37, s2, 1")
        a("s_and_b32 s37, s37, 0x7c")
        a("s_add_u32 s37, s37, s32")
        a("s_min_u32 s37, s37, (L_end-L_pc)/256")
        a("s_lshl_b32 s37, s37, 8")
        a("s_add_u32 s38, s38, s37")
        a("s_addc_u32 s39, s39, 0")
        a("v_mov_b32 v12, s38")
        a("v_mov_b32 v13, s39")
        a("global_load_dword v14, v[12:13], off")
        a("global_load_dword v15, v[12:13], off offset:128")
        if cfg.pads:
            if cfg.pad4:
                a("s_cmp_eq_u32 s32, 4")
                a("s_cbranch_scc1 L_padl")
            a("s_bitcmp1_b32 s32, 0")
            a("s_cbranch_scc0 L_compute")
            a("s_cmp_eq_u32 s31, 0")
            a("s_cbranch_scc1 L_pad0")
            a("s_cmp_eq_u32 s31, 1")
            a("s_cbranch_scc1 L_pad1")
            a("s_cmp_eq_u32 s31, 2")
            a("s_cbranch_scc1 L_pad2")
            a("s_branch L_pad3")
        else:
            a("s_branch L_compute")
        a.label("L_ld")
    else:
        a("s_cbranch_scc1 L_compute")
    if cfg.bench:
        a("v_mov_b32 v31, 100")
        a("ds_write_b32 v30, v31")
        a("s_waitcnt lgkmcnt(0)")
        a("s_barrier")
        a("s_branch L_dump")
    markn("c0")
    a("s_add_u32 s37, s35, s36")
    a(f"s_sub_u32 s37, s37, {2*PROW + 2*384}")
    a("s_sub_u32 s38, s30, 2")
    a(f"s_mov_b32 s10, {8*PROW}")
    a("s_and_b32 s11, s32, 1")
    a("s_lshl_b32 s15, s11, 4")
    a("v_lshrrev_b32 v13, 2, v1")
    a("v_add_u32 v13, s15, v13")
    a("v_lshrrev_b32 v14, 3, v1")
    a("v_and_b32 v14, 2, v14")
    a("v_and_b32 v15, 3, v1")
    a("v_xor_b32 v14, v14, v15")
    a("v_lshlrev_b32 v14, 4, v14")
    a("v_add_u32 v14, s37, v14")
    a("v_bfrev_b32 v19, 1")
    a("s_movk_i32 s39, 3277")
    a(f"s_mov_b32 s49, {PROW}")
    a("s_movk_i32 s50, 384")
    a("s_movk_i32 s51, 112")
    for b in range(5):
        markn(f"b{b}")
        a("v_mul_u32_u24 v15, s39, v13")
        a("v_lshrrev_b32 v15, 16, v15")
        a("v_mul_u32_u24 v16, 20, v15")
        a("v_sub_u32 v16, v13, v16")
        a("v_add_u32 v17, s38, v16")
        a("v_cmp_gt_u32 vcc, s51, v17")
        a("v_mad_u32_u24 v18, v15, s49, v14")
        a("v_mad_u32_u24 v18, v16, s50, v18")
        a(f"v_cndmask_b32 v{2+b}, v19, v18, vcc")
        if b < 4: a("v_add_u32 v13, 32, v13")
        a(f"v_add_u32 v{7+b}, s10, v{2+b}")
    a("v_add_u32 v12, s10, v7")
    markn("b5")
    a("s_lshl_b32 s57, s52, 6")
    a("s_lshl_b32 s56, s11, 10")
    a("v_lshlrev_b32 v20, 4, v1")
    a("v_cmp_gt_u32 vcc, 32, v1")
    a("v_xor_b32 v22, 32, v20")
    a("s_mul_i32 s40, s11, 3072")
    a("v_cndmask_b32 v21, v22, v20, vcc")
    a("s_mov_b32 s41, s40")
    a("s_mov_b32 s43, 0")
    assert cfg.wlag <= 4
    a(f"s_movk_i32 s42, {sum(1 << b for b in set([3, 5, 10] + [b + cfg.wlag for b in (3, 5, 10)])):#x}")
    a("s_cmp_ge_u32 s32, 2")
    a("s_cselect_b32 s95, 1, 0")
    a(f"s_mov_b32 s54, {WBASE}")
    a("s_mul_i32 s37, s52, 6144")
    a("s_mov_b32 s55, 0")
    a("s_mov_b32 s15, 15")
    a("v_mov_b32 v26, 1")
    markn("b6")
    a("s_waitcnt lgkmcnt(0)")
    if cfg.diag: stamp(a, 1)
    mark("karg")
    srd(a, 16, 4, XBYTES)
    srd(a, 20, 6, WBYTES)
    if cfg.amp == "pt" and cfg.pt.startswith("lat"):
        a("s_add_u32 s50, s35, s36")
        a("v_mov_b32 v40, 0")
        for j in range(int(cfg.pt[4])):
            if cfg.pt[3] == "x": a(f"buffer_load_dword v41, v40, s[16:19], s50 offen offset:{j*768}")
            else:
                a("s_lshl_b32 s50, s2, 10")
                a(f"buffer_load_dword v41, v40, s[20:23], s50 offen offset:{j*256}")
            a("s_waitcnt vmcnt(0)")
        mark(cfg.pt)
    a("s_cmp_eq_u32 s95, 1")
    a("s_cbranch_scc0 L_ws")
    a.label("L_x_loop")
    for blk, pcs in enumerate(((0, 1, 3), (4, 5, 6), (2, 7), (8, 9, 10))):
        a(f"s_bitcmp1_b32 s15, {blk}")
        a(f"s_cbranch_scc0 " + (f"L_x{blk}" if blk < 3 else "L_x_next"))
        for j, k in enumerate(pcs):
            if j == 0: a(f"s_add_u32 m0, s56, {k*2048}")
            else: a(f"s_addk_i32 m0, {(k - pcs[j-1])*2048}")
            a("s_nop 0")
            a(f"buffer_load_dwordx4 v{2+k}, s[16:19], s57 offen{cfg.xflag} lds")
        if blk in (1, 2):
            a("s_cmp_lg_u32 s55, 0")
            a(f"s_cbranch_scc1 L_x{blk}")
            if blk == 1:
                if cfg.diag: stamp(a, 2)
                a("s_barrier")
            else:
                a("s_waitcnt vmcnt(2)")
                a("ds_write_b32 v30, v26")
                mark("x1")
                trace(45, 0)
        if blk < 3: a.label(f"L_x{blk}")
    a("s_cmp_lg_u32 s55, 0")
    a("s_cbranch_scc1 L_x_sig")
    a("v_mov_b32 v31, 2")
    a("s_waitcnt vmcnt(3)")
    a("ds_write_b32 v30, v31")
    mark("x2")
    trace(45, 2)
    a("s_branch L_x_w1")
    a.label("L_ws_act")
    a("s_cmp_lg_u32 s43, 3")
    a("s_cbranch_scc1 L_ws_sig")
    a("s_barrier")
    a("s_branch L_ws")
    a.label("L_ws_sig")
    a(f"s_cmp_ge_u32 s41, {5*92160}")
    a(f"s_cselect_b32 s50, {5*92160 - 18432}, 0")
    a("s_sub_u32 s41, s41, s50")
    L = cfg.wlag
    a(f"s_bitcmp0_b32 {sum(1 << (b + L) for b in (3, 5, 10))}, s43")
    a("s_cbranch_scc1 L_ws")
    a(f"s_sub_u32 s50, s43, {L + 2}")
    a("s_min_u32 s50, s50, 4")
    a("v_mov_b32 v27, s50")
    a(f"s_waitcnt vmcnt({3*L})")
    a("ds_write_b32 v30, v27")
    trace(46, "s50")
    if cfg.amp == "pt" and cfg.pt in ("w1", "w3", "w4"):
        a(f"s_cmp_lg_u32 s50, {cfg.pt[1]}")
        a("s_cbranch_scc1 L_ws")
        mark(cfg.pt)
    a.label("L_ws")
    a("s_add_u32 m0, s54, s40")
    a("s_add_u32 s50, s37, s41")
    for k in range(3):
        a(f"buffer_load_dwordx4 v{20+k}, s[20:23], s50 offen offset:{k*1024}{cfg.wflag} lds")
    a("s_addk_i32 s40, 6144")
    a("s_add_u32 s41, s41, 92160")
    a("s_add_u32 s43, s43, 1")
    a("s_bitcmp1_b32 s42, s43")
    a("s_cbranch_scc1 L_ws_act")
    a("s_cmp_lt_u32 s43, 15")
    a("s_cbranch_scc1 L_ws")
    a("s_sub_u32 s55, 2, s32")
    a("s_add_u32 s50, s55, 2")
    a("v_mov_b32 v31, s50")
    a("s_mov_b32 s53, s55")
    a(f"s_mul_i32 s50, s55, {WBUF}")
    a("s_add_u32 s54, s54, s50")
    a("s_lshr_b32 s39, s2, 4")
    a("s_mul_i32 s38, s39, 52")
    a("s_lshr_b32 s38, s38, 8")
    a("s_mul_i32 s38, s38, 5")
    a("s_sub_u32 s39, s39, s38")
    if cfg.wun:
        for i in range(5):
            a(f"s_mul_i32 s{40+i}, s39, 6144")
            a(f"s_mul_i32 s{45+i}, s{40+i}, 15")
            if i < 4:
                a("s_add_u32 s39, s39, 1")
                a("s_cmp_eq_u32 s39, 5")
                a("s_cselect_b32 s39, 0, s39")
        a("s_branch L_w_adv")
        a.label("L_w_it")
        for i in range(5):
            a(f"s_add_u32 m0, s54, s{40+i}")
            a(f"s_add_u32 s50, s37, s{45+i}")
            for k in range(3):
                a(f"buffer_load_dwordx4 v{20+k}, s[20:23], s50 offen offset:{k*1024}{cfg.wflag} lds")
            a("s_addk_i32 m0, 3072")
            a("s_addk_i32 s50, 3072")
            for k in range(3):
                a(f"buffer_load_dwordx4 v{20+k}, s[20:23], s50 offen offset:{k*1024}{cfg.wflag} lds")
    else:
        a("s_mul_i32 s40, s39, 6144")
        a("s_mul_i32 s41, s39, 92160")
        a("s_movk_i32 s42, 3072")
        a("s_branch L_w_adv")
        a.label("L_w_it")
        a("s_add_u32 m0, s54, s40")
        a("s_add_u32 s50, s37, s41")
        for k in range(3):
            a(f"buffer_load_dwordx4 v{20+k}, s[20:23], s50 offen offset:{k*1024}{cfg.wflag} lds")
        a("s_addk_i32 s40, 3072")
        a("s_add_u32 s41, s41, s42")
        a(f"s_xor_b32 s42, s42, {3072 ^ (92160 - 3072)}")
        a(f"s_cmpk_eq_u32 s40, {WBUF}")
        a("s_cselect_b32 s40, 0, s40")
        a("s_cselect_b32 s41, 0, s41")
        a("s_sub_u32 s43, s43, 1")
        a("s_cbranch_scc0 L_w_it")
    a.label("L_w_adv")
    trace(44, "s55")
    a("v_add_u32 v31, 2, v31")
    a("s_waitcnt vmcnt(0)")
    a("ds_write_b32 v30, v31")
    trace(45, "s55")
    a(f"s_sub_u32 s54, s54, {WBUF}")
    a(f"s_cmp_lt_u32 s54, {WBASE}")
    a(f"s_cselect_b32 s50, {3*WBUF}, 0")
    a("s_add_u32 s54, s54, s50")
    a("s_add_u32 s53, s53, 2")
    a("s_cmp_ge_u32 s53, 5")
    a("s_cselect_b32 s50, 5, 0")
    a("s_sub_u32 s53, s53, s50")
    a("s_lshr_b32 s50, s50, 2")
    a("s_add_u32 s52, s52, s50")
    a("s_cmp_eq_u32 s52, 3")
    a("s_cselect_b32 s52, 0, s52")
    a("s_mul_i32 s37, s53, 3")
    a("s_add_u32 s37, s37, s52")
    a("s_mul_i32 s37, s37, 6144")
    if not cfg.wun: a("s_mov_b32 s43, 9")
    a("s_mov_b32 s51, s55")
    a("s_add_u32 s55, s55, 2")
    a("s_cmp_ge_u32 s55, 15")
    a("s_cbranch_scc1 L_store")
    a("v_and_b32 v23, 3, v1")
    a("v_lshlrev_b32 v23, 8, v23")
    a(f"v_add_u32 v23, {FLAGS + 1024}, v23")
    poll(a, "L_w_poll", 23, 24, "s51", cfg.sleep)
    trace(46, "s55")
    a("s_branch L_w_it")
    if cfg.pad4:
        a.label("L_padl")
        a("s_branch L_compute")
    a.label("L_x_w1")
    C = sum((((thr + 2) << 4) | m) << (8 * k) for k, (thr, m) in enumerate(cfg.xb))
    assert len(cfg.xb) <= 8
    a(f"s_mov_b32 s92, {C & 0xffffffff:#x}")
    a(f"s_mov_b32 s93, {C >> 32:#x}")
    a("s_mov_b32 s55, 1")
    if cfg.trace: a("s_mov_b32 s51, 3")
    a.label("L_x_sig")
    a("v_add_u32 v31, 5, v31")
    a("s_waitcnt vmcnt(0)")
    a("ds_write_b32 v30, v31")
    trace(45, "s51")
    a(f"s_add_u32 s56, s56, {XCH}")
    a("s_add_u32 s57, s57, 64")
    a("s_cmp_eq_u32 s57, 192")
    a("s_cselect_b32 s57, 0, s57")
    a.label("L_x_next")
    a("s_and_b32 s15, s92, 15")
    a("s_cbranch_scc0 L_store")
    a("s_bfe_u32 s51, s92, 0x40004")
    a("s_lshr_b64 s[92:93], s[92:93], 8")
    a("v_and_b32 v22, 1, v1")
    a(f"v_lshlrev_b32 v22, 8, v22")
    a(f"v_add_u32 v22, {FLAGS}, v22")
    poll(a, "L_x_poll", 22, 23, "s51", cfg.sleep)
    trace(44, "s51")
    a("s_branch L_x_loop")
    a.label("L_store")
    srd(a, 24, 8, XBYTES)
    a("s_movk_i32 s49, 208")
    a("s_movk_i32 s50, 384")
    a("v_lshrrev_b32 v11, 2, v1")
    a("v_and_b32 v12, 3, v1")
    a("v_lshlrev_b32 v12, 4, v12")
    a("v_mad_u32_u24 v5, v11, s50, v12")
    a("v_mad_u32_u24 v2, v11, s49, v12")
    a("v_and_b32 v10, 1, v1")
    a("v_lshlrev_b32 v10, 8, v10")
    a("s_lshl_b32 s39, s95, 9")
    a(f"s_add_u32 s39, s39, {FLAGS + 1024}")
    a("v_add_u32 v10, s39, v10")
    a("s_add_u32 s45, s35, s36")
    a("s_or_b32 s38, s34, s95")
    a("s_cmp_eq_u32 s33, 8")
    a("s_cselect_b32 s38, 1, s38")
    a("s_cselect_b32 s43, 6, 7")
    a("s_xor_b32 s38, s38, 1")
    a("s_andn2_b32 s44, s34, s95")
    a("s_add_u32 s39, s34, 6")
    a("s_mul_i32 s39, s39, s95")
    a("s_add_u32 s39, s39, s44")
    a("s_add_u32 s39, s39, 5")
    a("s_cmp_eq_u32 s38, 1")
    a("s_cselect_b32 s39, 0, s39")
    a("s_cselect_b32 s42, 1, -1")
    def rowsetup():
        a("s_mul_i32 s40, s11, s42")
        a("s_add_u32 s39, s39, s40")
        a(f"s_mul_i32 s47, s39, {PROW}")
        a("s_add_u32 s47, s47, s45")
        a(f"s_mul_i32 s48, s39, {SROW}")
        a("v_add_u32 v12, s48, v2")
        a(f"s_mul_i32 s40, s42, {2*PROW}")
        a(f"s_mul_i32 s41, s42, {2*SROW}")
    rowsetup()
    a("s_add_u32 s51, s11, 16")
    a("s_add_u32 s44, s44, 22")
    a.label("L_st_m")
    poll(a, "L_st_mp", 10, 11, "s51", cfg.sleep)
    a(f"ds_read_b128 {vr(16,4)}, v12 offset:64")
    a("v_add_u32 v12, s41, v12")
    a("s_add_u32 s51, s51, 2")
    a("s_waitcnt lgkmcnt(0)")
    a(f"buffer_store_dwordx4 {vr(16,4)}, v5, s[24:27], s47 offen offset:64{cfg.stflag}")
    a("s_add_u32 s47, s47, s40")
    a("s_cmp_lt_u32 s51, s44")
    a("s_cbranch_scc1 L_st_m")
    if cfg.stprio: a(f"s_setprio {cfg.stprio}")
    a("s_cmp_eq_u32 s95, 1")
    a("s_cselect_b32 s39, s43, s34")
    a("s_cmp_eq_u32 s38, 1")
    a("s_cselect_b32 s39, 5, s39")
    a("s_sub_u32 s42, 0, s42")
    rowsetup()
    a("s_add_u32 s51, s11, 25")
    a("s_and_b32 s38, s38, s11")
    a("s_cbranch_scc0 L_st_go")
    a("v_and_b32 v28, 3, v1")
    a("v_lshlrev_b32 v28, 8, v28")
    a(f"v_add_u32 v28, {FLAGS + 1024}, v28")
    a(f"s_add_u32 s45, s45, {6*PROW}")
    poll(a, "L_st_s1", 28, 11, 24, cfg.sleep2)
    for k in range(2): a(f"ds_read_b128 {vr(16+4*k,4)}, v2 offset:{6*SROW + 128*k}")
    for k in range(2):
        a(f"s_waitcnt lgkmcnt({1-k})")
        a(f"buffer_store_dwordx4 {vr(16+4*k,4)}, v5, s[24:27], s45 offen offset:{128*k}{cfg.stflag}")
    a.label("L_st_go")
    poll(a, "L_st_p1", 10, 11, "s51", cfg.sleep2)
    for k in range(2): a(f"ds_read_b128 {vr(16+4*k,4)}, v12 offset:{128*k}")
    a("v_add_u32 v12, s41, v12")
    a("s_add_u32 s51, s51, 2")
    for k in range(2):
        a(f"s_waitcnt lgkmcnt({1-k})")
        a(f"buffer_store_dwordx4 {vr(16+4*k,4)}, v5, s[24:27], s47 offen offset:{128*k}{cfg.stflag}")
    a("s_add_u32 s47, s47, s40")
    a("s_cmp_lt_u32 s51, 30")
    a("s_cbranch_scc1 L_st_go")
    a.label("L_st_end")
    if cfg.amp in ("all", "pt"): a("s_branch L_ampall")
    if cfg.diag:
        stamp(a, 5)
        a("s_waitcnt vmcnt(0)")
        stamp(a, 6)
        dump_stamps(a, cfg)
    a.label("L_exit")
    a("s_endpgm")
    a.label("L_compute")
    if cfg.cbar == 0:
        a("s_waitcnt lgkmcnt(0)")
        a("s_barrier")
    a("s_sub_u32 s37, s32, 4")
    a("s_and_b32 s38, s37, 1")
    a("s_lshr_b32 s37, s37, 1")
    a("s_add_u32 s39, s34, 6")
    a("s_mul_i32 s49, s37, s39")
    a(f"v_mov_b32 v{V_CP}, v30")
    a(f"v_mov_b32 v{V_PV}, 0")
    a("v_and_b32 v32, 15, v1")
    a("v_lshrrev_b32 v33, 4, v1")
    a("v_and_b32 v34, 1, v33")
    a("v_lshrrev_b32 v35, 1, v33")
    a("v_bfe_u32 v36, v1, 2, 2")
    a("v_and_b32 v37, 3, v1")
    a(f"v_lshlrev_b32 v{V_LF}, 8, v37")
    a(f"v_add_u32 v{V_LF}, {FLAGS}, v{V_LF}")
    a("s_lshl_b32 s39, s38, 7")
    a("v_lshlrev_b32 v40, 5, v34")
    a("v_lshl_add_u32 v40, v35, 4, v40")
    a("v_add_u32 v40, s39, v40")
    a("s_lshl_b32 s39, s38, 5")
    a("s_add_u32 s39, s39, 64")
    a("v_lshlrev_b32 v41, 3, v33")
    a("v_add_u32 v41, s39, v41")
    a("v_mul_u32_u24 v38, 384, v32")
    a("v_add_u32 v38, s36, v38")
    a(f"v_add_u32 v{V_SA}, v38, v40")
    a(f"v_add_u32 v{V_SC}, v38, v41")
    a("v_mul_u32_u24 v38, 208, v32")
    a(f"s_mul_i32 s39, s49, {SROW}")
    a("v_add_u32 v38, s39, v38")
    a("s_lshl_b32 s39, s38, 7")
    a(f"v_lshl_add_u32 v{V_GA}, v33, 3, v38")
    a(f"v_add_u32 v{V_GA}, s39, v{V_GA}")
    a(f"v_add_u32 v{V_GB}, v38, v41")
    a(f"s_mul_i32 s47, s49, {PROW}")
    a("s_add_u32 s47, s47, s35")
    a("v_lshl_add_u32 v38, v33, 3, v36")
    a("v_mul_u32_u24 v38, 192, v38")
    a("v_lshl_add_u32 v38, v37, 3, v38")
    a(f"v_add_u32 v38, {WBASE}, v38")
    a("s_add_u32 s39, s38, 2")
    a("v_xor_b32 v39, s39, v34")
    a(f"v_lshl_add_u32 v{V_WA[0]}, v39, 5, v38")
    a("s_lshl_b32 s39, s38, 2")
    a("v_xor_b32 v39, s39, v34")
    a(f"v_lshl_add_u32 v{V_WA[1]}, v39, 5, v38")
    a("v_xor_b32 v39, 1, v39")
    a(f"v_lshl_add_u32 v{V_WA[2]}, v39, 5, v38")
    a("v_lshlrev_b32 v38, 6, v32")
    a("v_lshl_add_u32 v38, v33, 4, v38")
    a(f"s_mul_i32 s39, s49, {XROW}")
    a(f"v_add_u32 v{V_XL}, s39, v38")
    a(f"v_lshrrev_b32 v{V_T}, 3, v{V_XL}")
    a(f"v_and_b32 v{V_T}, 32, v{V_T}")
    a(f"v_xor_b32 v{V_XA[0]}, v{V_XL}, v{V_T}")
    a(f"v_xor_b32 v{V_XA[1]}, 32, v{V_XA[0]}")
    if cfg.mov64:
        for k in range(0, 84, 2): a(f"v_mov_b64 {vr(V_ACC+k,2)}, 0")
    else:
        for k in range(84): a(f"v_mov_b32 v{V_ACC+k}, 0")
    a(f"s_mov_b32 s40, {(1 << 8) | (1 << 13)}")
    a(f"s_mov_b32 s41, {sum(1 << (h + 3) for h in (3, 6, 9, 12))}")
    a(f"s_mov_b32 s44, {(-2*WBUF) & 0xffffffff}")
    a(f"s_mov_b32 s45, {WBUF}")
    a("s_mov_b32 s46, 4")
    if cfg.diag: a("s_mov_b32 s95, 0")
    if cfg.cbar == 1:
        a("s_waitcnt lgkmcnt(0)")
        a("s_barrier")
    if cfg.diag: stamp(a, 1)
    mark("setup")
    srd(a, 24, 8, XBYTES)
    if cfg.prio: a(f"s_setprio {cfg.prio}")
    if cfg.amp in ("span", "skew"): srd(a, 80, 12, 256)
    for var in (1, 2, 3):
        a(f"s_cmp_eq_u32 s31, {var}")
        a(f"s_cbranch_scc1 L_pro{var}")
    if cfg.pads: a("s_branch L_pro0")
    for var in range(4):
        emit_variant(a, var, cfg)
    a.label("L_end")
    for _ in range(100): a("s_endpgm")
    out += a.text()
    nv = (V_END + 7) // 8 * 8
    out += f""".section .rodata,"a"
.p2align 6
.amdhsa_kernel {NAME}_kernel
  .amdhsa_next_free_vgpr {nv}
  .amdhsa_next_free_sgpr 96
  .amdhsa_accum_offset {nv}
  .amdhsa_group_segment_fixed_size 0
  .amdhsa_kernarg_size 40
  .amdhsa_user_sgpr_count 2
  .amdhsa_user_sgpr_kernarg_segment_ptr 1
  .amdhsa_system_sgpr_workgroup_id_x 1
.end_amdhsa_kernel
"""
    return out

if __name__ == "__main__":
    p = argparse.ArgumentParser()
    p.add_argument("-o", default="standalone__dilated_atrous__vision.s")
    p.add_argument("--diag", action="store_true")
    p.add_argument("--trace", action="store_true")
    p.add_argument("--bar_pos", type=int, default=58)
    p.add_argument("--xbar", type=int, default=40)
    p.add_argument("--lead", type=int, default=5)
    p.add_argument("--safe", type=int, default=8)
    p.add_argument("--prio", type=int, default=1)
    p.add_argument("--align", type=int, default=1)
    p.add_argument("--snake", type=int, default=1)
    p.add_argument("--exper", type=int, default=2)
    p.add_argument("--order", type=int, default=1)
    p.add_argument("--wpf", type=int, default=0)
    p.add_argument("--epf", type=int, default=0)
    p.add_argument("--cpf", type=int, default=1)
    p.add_argument("--sleep", type=int, default=2)
    p.add_argument("--sleep2", type=int, default=0)
    p.add_argument("--stflag", default="sc0 sc1 nt")
    p.add_argument("--wd", type=int, default=1)
    p.add_argument("--amp", default="")
    p.add_argument("--rev", type=int, default=0)
    p.add_argument("--onlyw", type=int, default=-1)
    p.add_argument("--pg", type=int, default=1)
    p.add_argument("--pt", default="")
    p.add_argument("--onlyb", type=int, default=-1)
    p.add_argument("--slow_near", type=int, default=1)
    p.add_argument("--hcap", type=int, default=2)
    p.add_argument("--wlag", type=int, default=2)
    p.add_argument("--wun", type=int, default=0)
    p.add_argument("--hlead", type=int, default=7)
    p.add_argument("--fd", type=int, default=6)
    p.add_argument("--burst", type=int, default=12)
    p.add_argument("--alead", type=int, default=20)
    p.add_argument("--entry_last", type=int, default=0)
    p.add_argument("--pad4", type=int, default=0)
    p.add_argument("--lx", type=int, default=-1)
    p.add_argument("--al8", type=int, default=0)
    p.add_argument("--shift4", type=int, default=0)
    p.add_argument("--rush", type=int, default=30)
    p.add_argument("--fill", type=int, default=0)
    p.add_argument("--pads", type=int, default=1)
    p.add_argument("--nstage", type=int, default=5)
    p.add_argument("--spec", type=int, default=1)
    p.add_argument("--stprio", type=int, default=0)
    p.add_argument("--mov64", type=int, default=1)
    p.add_argument("--xflag", default="")
    p.add_argument("--wflag", default="")
    p.add_argument("--fixd", type=int, default=0)
    p.add_argument("--wbl2", type=int, default=0)
    p.add_argument("--bench", action="store_true")
    p.add_argument("--drop", default="")
    p.add_argument("--cmpd", type=int, default=4)
    p.add_argument("--updstep", type=int, default=1)
    p.add_argument("--xthr", type=int, default=2)
    p.add_argument("--cbar", type=int, default=0)
    p.add_argument("--w2wait", type=int, default=1)
    p.add_argument("--xb", default="3:1,4:2,5:4,6:8,8:3,9:12")
    cfg = p.parse_args()
    cfg.xb = [tuple(int(v) for v in e.split(":")) for e in cfg.xb.split(",")]
    WD = cfg.wd
    if cfg.stflag: cfg.stflag = " " + cfg.stflag
    if cfg.xflag: cfg.xflag = " " + cfg.xflag
    if cfg.wflag: cfg.wflag = " " + cfg.wflag
    open(cfg.o, "w").write(gen(cfg))
```

```python
import sys, argparse

NAME = "standalone__dilated_atrous__vision"
XBYTES = 224 * 224 * 96 * 2
WBYTES = 25 * 96 * 96 * 2
ROWB = 224 * 192
PROW = 2 * ROWB
XCH = 352 * 64
XROW = 20 * 64
WBASE = 3 * XCH
WBUF = 5 * 6144
FLAGS = WBASE + 3 * WBUF
LDS_TOTAL = FLAGS + 2048
SROW = 16 * 208
assert 13 * SROW <= 2 * XCH

class Asm:
    def __init__(self):
        self.lines = []
    def __call__(self, s):
        self.lines.append("    " + s)
    def label(self, l):
        self.lines.append(l + ":")
    def comment(self, s):
        self.lines.append("    ; " + s)
    def text(self):
        return "\n".join(self.lines) + "\n"

def vr(b, n):
    return f"v[{b}:{b+n-1}]"

V_XL = 1
V_XA = (2, 3)
V_WA = (4, 5, 6)
V_SA, V_SC = 7, 8
V_GA, V_GB = 9, 10
V_T = 11
V_XB = (22, 23)
V_CP = 25
V_LF = 26
V_PV = 27
V_F = 28
V_X = 32
V_W = 76
V_ACC = 136
V_EXTRA = V_ACC + 84
V_END = V_EXTRA + 32

TYPES = {
    0: (range(0, 6), range(0, 7), range(0, 6)),
    1: (range(0, 6), range(1, 7), range(0, 7)),
    2: (range(0, 7), range(1, 7), range(1, 7)),
    3: (range(0, 6), range(0, 6), range(0, 6)),
}
OFF = {0: 0, 1: 1, 2: 1, 3: 0}
SPECIAL = {0: 6, 1: 0, 2: 0, 3: None}
LASTHEAD = {
    0: [(0, 0), (0, 1), (6, 1), (0, 2)],
    1: [(0, 0), (1, 0), (1, 1), (0, 2), (1, 2)],
    2: [(0, 0), (1, 0), (1, 1), (2, 0), (1, 2), (2, 1), (2, 2)],
    3: [(0, 0), (0, 1), (1, 0), (0, 2), (1, 1), (1, 2)],
}

def acc(rho, t): return V_ACC + 4 * (rho * 3 + t)
def wreg(i, t): return V_W + 4 * (i * 3 + t)
def xreg(q): return V_X + 4 * q

def chain(rho, t, rev):
    r = list(range(5))
    if rev: r.reverse()
    return [(rho, i, t, rho + i) for i in r]

def steady_order(var, cfg, par=(1, 1, 1)):
    ms = []
    for t in range(3):
        for j, rho in enumerate(TYPES[var][t]): ms += chain(rho, t, cfg.snake and j % 2 == par[t])
    return ms

DIRECT = {0: (5,), 1: (6, 5), 2: (6,), 3: (5,)}

def last_tiles(var):
    order = list(LASTHEAD[var])
    rows = [r for r in range(7) if r not in DIRECT[var]] + list(DIRECT[var])
    for r in rows:
        for t in ((0, 1, 2) if r not in DIRECT[var] else (1, 2, 0)):
            if r in TYPES[var][t] and (r, t) not in order: order.append((r, t))
    return order

def last_order(var, cfg, par=1):
    ms = []
    for j, (r, t) in enumerate(last_tiles(var)): ms += chain(r, t, cfg.snake and j % 2 == par and j >= 4)
    return ms

def uses(ms):
    first, last = {}, {}
    for k, (rho, i, t, q) in enumerate(ms):
        for key in (("w", i, t, 0), ("w", i, t, 1), ("x", q)):
            first.setdefault(key, k); last[key] = k
    return first, last

def read_text(nm):
    if nm[0] == "x":
        q = nm[1]
        return f"ds_read_b128 {vr(xreg(q),4)}, v{V_XA[q & 1]} offset:{q*XROW}"
    _, i, t, h = nm
    return f"ds_read_b64_tr_b16 {vr(wreg(i,t)+2*h,2)}, v{V_WA[t]} offset:{i*6144 + h*768}"

def edf(reads, lo, hi, lead, busy=()):
    placed, pending = {}, list(reads)
    for k in range(lo, hi):
        avail = [r for r in pending if r[1] <= k]
        if not avail: continue
        r = min(avail, key=lambda r: r[2])
        placed[k] = r[0]
        pending.remove(r)
        assert r[2] - k >= lead, (r, k)
    assert not pending, pending
    return placed

def mfma_text(m):
    rho, i, t, q = m
    return f"v_mfma_f32_16x16x32_bf16 {vr(acc(rho,t),4)}, {vr(wreg(i,t),4)}, {vr(xreg(q),4)}, {vr(acc(rho,t),4)}"

class LdsQ:
    def __init__(self, a, safe):
        self.a, self.safe = a, safe
        self.ops = []
        self.done = 0
        self.waits = []
    def issue(self, name, time, text=None):
        self.ops.append((name, time))
        if text: self.a(text)
    def need(self, names, time):
        idx = max(max(j for j, (nm, _) in enumerate(self.ops) if nm == n) for n in names) + 1
        if idx <= self.done: return
        for j, (nm, tm) in enumerate(self.ops):
            if tm <= time - 1 - self.safe: idx = max(idx, j + 1)
        cnt = len(self.ops) - idx
        if cnt > 14:
            idx += cnt - 14; cnt = 14
        self.a(f"s_waitcnt lgkmcnt({cnt})")
        self.waits.append((time, cnt, len(self.ops)))
        self.done = idx

WD = 1
def poll(a, label, vaddr, vtmp, sneed, sleep, wd=True):
    a.label(label)
    if WD and wd:
        a("s_add_u32 s94, s94, 1")
        a("s_bitcmp1_b32 s94, 18")
        a("s_cbranch_scc1 L_exit")
    a(f"ds_read_b32 v{vtmp}, v{vaddr}")
    a("s_waitcnt lgkmcnt(0)")
    a(f"v_cmp_gt_u32 vcc, {sneed}, v{vtmp}")
    if sleep:
        a(f"s_cbranch_vccz {label}_ok")
        a(f"s_sleep {sleep}")
        a(f"s_branch {label}")
        a.label(label + "_ok")
    else:
        a(f"s_cbranch_vccnz {label}")

def isize(l):
    l = l.strip()
    op = l.split()[0]
    if op.startswith(("v_mfma", "ds_", "buffer_", "v_cvt_pk")) or op.endswith("_e64"): return 8
    import re
    for tok in re.split(r"[ ,]+", l)[1:]:
        if re.fullmatch(r"-?\d+|0x[0-9a-f]+", tok) and not op.startswith(("s_waitcnt", "s_nop")):
            v = int(tok, 0)
            if not (-16 <= v <= 64): return 8
    return 4

def align8(lines):
    out = []
    for l in lines:
        op = l.strip().split()[0]
        if op.startswith("v_") and isize(l) == 4:
            l = l.replace(op, op + "_e64", 1)
        out.append(l)
    res, off = [], 0
    for l in out:
        sz = isize(l)
        if sz == 8 and off % 8 == 4:
            res.append("    s_nop 0"); off += 4
        res.append(l); off += sz
    if off % 8 == 4: res.append("    s_nop 0")
    return res

def emit_variant(a, var, cfg):
    bar = cfg.bar_pos if var != 3 else cfg.bar_pos - 3
    best = None
    for par in [(p0, 1, p2) for p0 in (1, 0) for p2 in (1, 0)]:
        ms = steady_order(var, cfg, par)
        n = len(ms)
        first, last = uses(ms)
        reads = [(key, max(last[key], bar, n if (key[0] == "w" and key[2] == 2) else 0), n + first[key]) for key in first]
        placed = edf(reads, bar, n + bar - 16, 0)
        ld = min(n + first[nm] - k for k, nm in placed.items())
        if best is None or ld > best[0]: best = (ld, par, ms, first, last, placed)
    ld, par, ms, first, last, placed = best
    print(f"variant {var}: snake parity {par}, min lead {ld}", file=sys.stderr)
    tail = [(k, placed[k]) for k in sorted(placed) if k < n]
    head = [(k - n, placed[k]) for k in sorted(placed) if k >= n]
    slow = []
    hb, tb = Asm(), Asm()
    q = LdsQ(hb, cfg.safe)
    for k, nm in tail: q.issue(nm, k - n)
    headd, taild = dict(head), dict(tail)
    extra = {}
    def put(k, s): extra.setdefault(k, []).append(s)
    krel = max(k for k, nm in head) + 1
    put(krel - 1, f"v_add_u32 v{V_PV}, 1, v{V_PV}")
    upd = ["s_bitcmp1_b32 s40, s46", f"s_cselect_b32 s42, {XCH - 4*64}, 64",
           "s_bitcmp1_b32 s41, s46", "s_cselect_b32 s43, s44, s45",
           "s_cmp_eq_u32 s46, 14", "s_cselect_b32 s49, 1000, s46",
           f"v_add_u32 v{V_XL}, s42, v{V_XL}", f"v_lshrrev_b32 v{V_T}, 3, v{V_XL}", f"v_and_b32 v{V_T}, 32, v{V_T}",
           f"v_xor_b32 v{V_XA[0]}, v{V_XL}, v{V_T}", f"v_xor_b32 v{V_XA[1]}, 32, v{V_XA[0]}"]
    upd += [f"v_add_u32 v{V_WA[t]}, s43, v{V_WA[t]}" for t in range(3)]
    b0 = krel + 2
    for j, u in enumerate(upd): put(b0 + cfg.updstep * j, u)
    kflag = bar - cfg.cmpd - 9
    assert b0 + cfg.updstep * len(upd) <= kflag
    cur = hb
    for k, m in enumerate(ms):
        rho, i, t, qq = m
        q.need([("w", i, t, 0), ("w", i, t, 1), ("x", qq)], k)
        cur(mfma_text(m))
        D = cfg.drop
        for s in extra.get(k, []): cur(s)
        if k == krel: q.issue(("rel",), k, f"ds_write_b32 v{V_CP}, v{V_PV}")
        if k == kflag: q.issue(("flag",), k, f"ds_read_b32 v{V_F}, v{V_LF}")
        if k == bar - cfg.cmpd - 1: q.need([("flag",)], k + 1)
        if k == bar - cfg.cmpd: cur(f"v_cmp_gt_u32 vcc, s49, v{V_F}")
        if k == bar:
            cur = tb; q.a = tb
        drop = lambda nm: ("l" in D and k in taild) or ("w" in D and nm[0] == "w" and k in taild) or ("x" in D and nm[0] == "x")
        if k in headd: q.issue(headd[k], k, read_text(headd[k]) if not drop(headd[k]) else None)
        if k in taild: q.issue(("next",) + taild[k], k, read_text(taild[k]) if not drop(taild[k]) else None)
        if k == n - 9: cur("s_add_u32 s46, s46, 1")
    kinds = ("w", "x") if ((var < 2 and cfg.order == 1) or cfg.order == 3) else ("x", "w")
    ent = [[nm for _, nm in sorted(tail, key=lambda e: first[e[1]]) if nm[0] == kd] for kd in kinds]
    late = ent[1]
    def entry_ok(m):
        done = len(late) - m
        wi = 0
        for k, (rho, i, t, qq) in enumerate(ms):
            while wi < len(q.waits) and q.waits[wi][0] <= k:
                _, cnt, nops = q.waits[wi]; wi += 1
                body_ops = nops - len(tail)
                done = max(done, len(late) - max(0, cnt - body_ops))
            for nm in (("w", i, t, 0), ("w", i, t, 1), ("x", qq)):
                if nm in late and late.index(nm) >= done: return False
        return True
    ment = max(mm for mm in range(min(len(late), 14) + 1) if entry_ok(mm))
    def emit_entry():
        a.label(f"L_pro{var}")
        poll(a, f"L_p0_{var}", 16 if kinds[0] == "x" else 17, V_F, 1, 0)
        for nm in ent[0]: a(read_text(nm))
        poll(a, f"L_p1_{var}", 16 if kinds[1] == "x" else 17, V_F, 1, 0)
        if cfg.diag: stamp(a, 3)
        if cfg.amp:
            a("s_memrealtime s[86:87]")
            a("s_waitcnt lgkmcnt(0)")
        for nm in late: a(read_text(nm))
        a(f"s_waitcnt lgkmcnt({ment})")
        a(f"s_branch L_head{var}")
    if not cfg.entry_last: emit_entry()
    if cfg.al8:
        hb.lines = align8(hb.lines); tb.lines = align8(tb.lines)
    if cfg.align: a(".p2align 6")
    if cfg.pads:
        a.label(f"L_pad{var}")
        a("s_branch L_compute")
        a("s_nop 0")
    a.label(f"L_top{var}")
    a.lines += tb.lines
    a.label(f"L_head{var}")
    a.lines += hb.lines
    a(f"s_cbranch_vccz L_top{var}")
    a("s_min_u32 s49, s49, 15")
    a(f"v_cmp_gt_u32 vcc, s49, v{V_F}")
    a(f"s_cbranch_vccnz L_slow{var}")
    a.label(f"L_fin{var}")
    a.lines += tb.lines
    if cfg.diag: stamp(a, 4)
    if cfg.cpf: a("s_waitcnt vmcnt(0)")
    rows = TYPES[var]
    down = var == 0
    prow = sorted(set(rows[1]) | set(rows[2]), reverse=down)
    lastrow = prow[-1]
    srow2 = sorted(rows[0], reverse=not down)
    def build(pa, pb):
        out = []
        for j, r in enumerate(rows[0]):
            out += [m + (13, 0) for m in chain(r, 0, cfg.snake and j % 2 == pa)]
        for j, r in enumerate(srow2):
            out += [m + (14, 0) for m in chain(r, 0, cfg.snake and j % 2 == pb)]
        keep = set(range(srow2[-1], srow2[-1] + 5))
        flip = 0
        tiles = []
        for r in prow:
            ts = [t for t in ((1, 2) if flip == 0 else (2, 1)) if r in rows[t]]
            if r == lastrow: ts = [1, 2]
            for j, t in enumerate(ts):
                gs = (14, 13) if j == 0 else (13, 14)
                for g in gs:
                    for m in chain(r, t, (j == 1) != down):
                        out.append(m + (g, 0 if (g == 14 and m[3] in keep) else 1))
                tiles.append((r, t))
            flip = 0 if ts[-1] == 1 else 1
        return out, tiles
    def names(m):
        rho, i, t, qq, g, occ = m
        return [("w", g, i, t, 0), ("w", g, i, t, 1), ("x", g, qq, occ)]
    frag = lambda nm: nm if nm[0] == "x" else nm[:4]
    conv = lambda nm: ("x", 13, nm[1], 0) if nm[0] == "x" else ("w", 13) + nm[1:]
    pre = [(k - n, conv(nm)) for k, nm in tail]
    prenames = set(nm for _, nm in pre)
    slots = [V_X + 4 * j for j in range(26)] + [V_EXTRA + 4 * j for j in range(8)]
    best = None
    for pa in (1, 0):
      for pb in (1, 0):
        ls, ptiles = build(pa, pb)
        lf, ll = {}, {}
        for k, m in enumerate(ls):
            for nm in names(m):
                lf.setdefault(nm, k); ll[nm] = k
        free = {sl: 0 for sl in slots}
        regs = {}
        for nm in prenames:
            sl = xreg(nm[2]) if nm[0] == "x" else wreg(nm[2], nm[3])
            regs[frag(nm)] = sl
            free[sl] = max(free[sl], ll.get(nm, 0))
        rds, early = [], {}
        for nm in sorted(lf, key=lambda v: lf[v]):
            if nm in prenames: continue
            fr = frag(nm)
            if fr not in regs:
                ok = [sl for sl in slots if free[sl] <= lf[nm] - cfg.alead]
                sl = max(ok, key=lambda v: free[v]) if ok else min(slots, key=lambda v: free[v])
                regs[fr] = sl; early[fr] = free[sl]; free[sl] = ll[nm]
            e = early.get(fr, 0)
            if nm[0] == "x" and nm[1] == 14: e = max(e, 6)
            rds.append((nm, e, lf[nm]))
        try: lp = edf(rds, 0, len(ls), 0)
        except AssertionError: continue
        ld2 = min([lf[nm] - k for k, nm in lp.items()] + [lf[nm] - k for k, nm in pre if nm in lf])
        if best is None or ld2 > best[0]: best = (ld2, (pa, pb), ls, lf, lp, regs, ptiles)
    ld2, pars, ls, lf, lplaced, regs, ptiles = best
    print(f"   final segment: parity {pars} min lead {ld2} reads {len(lplaced)}", file=sys.stderr)
    def rd_text(nm):
        if nm[0] == "x":
            _, g, qq, occ = nm
            return f"ds_read_b128 {vr(regs[nm],4)}, v{(V_XA if g == 13 else V_XB)[qq & 1]} offset:{qq*XROW}"
        _, g, i, t, h = nm
        return f"ds_read_b64_tr_b16 {vr(regs[frag(nm)]+2*h,2)}, v{V_WA[t]} offset:{(g-13)*WBUF + i*6144 + h*768}"
    n2 = len(ls)
    q = LdsQ(a, cfg.safe)
    for k, nm in pre: q.issue(nm, k)
    endk = {}
    for k, m in enumerate(ls): endk[(m[0], m[2])] = k
    def cvt2(D, S, tile):
        return [(tile, f"v_cvt_pk_bf16_f32 v{D}, v{S}, v{S+1}"), (tile, f"v_cvt_pk_bf16_f32 v{D+1}, v{S+2}, v{S+3}")]
    seq = [(None, f"v_add_u32 v{V_XL}, 64, v{V_XL}"), (None, f"v_lshrrev_b32 v{V_T}, 3, v{V_XL}"), (None, f"v_and_b32 v{V_T}, 32, v{V_T}"),
           (None, f"v_xor_b32 v{V_XB[0]}, v{V_XL}, v{V_T}"), (None, f"v_xor_b32 v{V_XB[1]}, 32, v{V_XB[0]}")]
    for j, r in enumerate(srow2):
        S = acc(r, 0)
        seq += cvt2(S, S, (r, 0))
        seq += [(None, f"v_mov_b32 v{V_PV}, {16 + j}"), (None, f"ds_write_b64 v{V_GB}, {vr(S,2)} offset:{r*SROW}"),
                (None, f"ds_write_b32 v{V_CP}, v{V_PV}")]
    kfull, seen = 0, set()
    for (r, t) in ptiles:
        S = acc(r, t)
        if r != lastrow:
            seq += cvt2(S, S, (r, t))
            pv = None
            if not (r in rows[1] and r in rows[2]): pv = 24
            elif r in seen:
                pv = 25 + kfull; kfull += 1
            seen.add(r)
            if pv: seq.append((None, f"v_mov_b32 v{V_PV}, {pv}"))
            seq.append((None, f"ds_write_b64 v{V_GA}, {vr(S,2)} offset:{r*SROW + (32 if t == 2 else 0)}"))
            if pv: seq.append((None, f"ds_write_b32 v{V_CP}, v{V_PV}"))
        elif t == 1:
            seq += cvt2(S, S, (r, t))
            seq.append((None, f"s_add_u32 s48, s47, {r*PROW}"))
        else:
            A = acc(r, 1)
            seq += cvt2(A + 2, S, (r, t))
            seq.append(("W2", f"v_permlane16_swap_b32 v{A}, v{A+2}"))
            seq.append((None, f"v_permlane16_swap_b32 v{A+1}, v{A+3}"))
            seq.append((None, f"buffer_store_dwordx4 {vr(A,4)}, v{V_SA}, s[24:27], s48 offen{cfg.stflag}"))
    assert kfull == 5
    def states(frm):
        c = 0
        for l in a.lines[frm + 1:]:
            l = l.strip()
            if l.endswith(":") or l.startswith(";") or l.startswith("."): continue
            c += int(l.split()[1]) + 1 if l.startswith("s_nop") else 1
        return c
    done_at = {}
    last_valu = [0]
    def missing(dep):
        if dep is None: return 0
        if dep == "W2": return max(0, 2 - states(last_valu[0]))
        if dep not in done_at: return None
        return max(0, 8 - states(done_at[dep]))
    nl = [0]
    def emit_ex(txt, k):
        for key, pat in (("C", "v_cvt"), ("P", "v_permlane"), ("V", "ds_write_b64"), ("F", "ds_write_b32"), ("S", "buffer_store")):
            if key in cfg.drop and txt.startswith(pat): return
        if txt.startswith("ds_"):
            nl[0] += 1; q.issue(("st", nl[0]), k, txt)
        else: a(txt)
        if txt.startswith("v_cvt"): last_valu[0] = len(a.lines) - 1
    for k, m in enumerate(ls):
        rho, i, t, qq, g, occ = m
        q.need(names(m), k)
        a(f"v_mfma_f32_16x16x32_bf16 {vr(acc(rho,t),4)}, {vr(regs[('w',g,i,t)],4)}, {vr(regs[('x',g,qq,occ)],4)}, {vr(acc(rho,t),4)}")
        if endk[(rho, t)] == k: done_at[(rho, t)] = len(a.lines) - 1
        cnt = 0
        if k in lplaced:
            q.issue(lplaced[k], k, rd_text(lplaced[k])); cnt += 1
        lim = cfg.exper if (k >= n2 - cfg.rush or k < 6) else 1
        if k < 6: cnt = 1
        while seq and cnt < lim and k < n2 - 1:
            miss = missing(seq[0][0])
            if miss == 0:
                emit_ex(seq.pop(0)[1], k); cnt += 1
            else:
                if miss is not None and miss > 1 and cnt == 0 and k >= n2 - cfg.fill: a("s_nop 1")
                break
    while seq:
        miss = missing(seq[0][0])
        if miss: a(f"s_nop {miss - 1}")
        emit_ex(seq.pop(0)[1], n2)
    if cfg.diag:
        stamp(a, 5)
        a("s_waitcnt vmcnt(0)")
        stamp(a, 6)
        a("s_branch L_dump")
    elif cfg.amp:
        if var == 0: a.label("L_ampall")
        a("s_waitcnt vmcnt(0)")
        a("s_memrealtime s[88:89]")
        a("s_waitcnt lgkmcnt(0)")
        if cfg.amp in ("span", "skew"):
            a("v_mov_b32 v4, 0")
            a("buffer_load_dwordx2 v[6:7], v4, s[80:83], 0 offen sc0 sc1")
            a("s_waitcnt vmcnt(0)")
            a("v_readfirstlane_b32 s86, v6")
            a("v_readfirstlane_b32 s58, v7")
            a("s_nop 3")
            a("s_not_b32 s58, s58")
        lo, hi = {"pro": (58, 86), "all": (58, 88), "loop": (86, 88), "none": (58, 58), "span": (58, 88), "skew": (58, 86)}[cfg.amp]
        a(f"s_sub_u32 s90, s{hi}, s{lo}")
        a("s_mul_i32 s90, s90, 10")
        if cfg.fixd: a(f"s_mov_b32 s90, {cfg.fixd}")
        if cfg.wbl2:
            a("buffer_wbl2 sc1")
        a.label(f"L_amp{var}")
        a("s_memrealtime s[76:77]")
        a("s_waitcnt lgkmcnt(0)")
        a("s_sub_u32 s91, s76, s88")
        a("s_cmp_lt_u32 s91, s90")
        a(f"s_cbranch_scc1 L_amp{var}")
        a("s_endpgm")
    else:
        a("s_endpgm")
    poll(a, f"L_slow{var}", V_LF, V_F, "s49", 0)
    a("s_cmp_eq_u32 s46, 14")
    a(f"s_cbranch_scc1 L_fin{var}")
    a(f"s_branch L_top{var}")
    for lab, va, need, back in slow:
        poll(a, lab, va, V_F, need, 0)
        a(f"s_branch {back}")
    if cfg.entry_last: emit_entry()

def stamp(a, idx):
    a(f"s_memtime s[{60+2*idx}:{61+2*idx}]")
    if idx in (3, 5):
        a(f"s_memrealtime s[{86 if idx == 3 else 88}:{87 if idx == 3 else 89}]")
    a("s_waitcnt lgkmcnt(0)")

def dump_stamps(a, cfg):
    a.label("L_dump")
    a("s_memrealtime s[76:77]")
    a("s_getreg_b32 s78, hwreg(HW_REG_HW_ID)")
    a("s_getreg_b32 s79, hwreg(HW_REG_XCC_ID)")
    a("s_waitcnt lgkmcnt(0)")
    a("s_mov_b32 s80, s12")
    a("s_mov_b32 s81, s13")
    a("s_mov_b32 s82, 0x100000")
    a("s_mov_b32 s83, 0x20000")
    a("s_lshl_b32 s84, s2, 3")
    a("s_add_u32 s84, s84, s32")
    a("s_lshl_b32 s84, s84, 6")
    a("v_mov_b32 v4, 0")
    for k, s in enumerate([60, 62, 64, 66, 68, 70, 72, 74, 76, 77, 78, 79, 58, 59, 86, 88]):
        a(f"v_mov_b32 v5, s{s}")
        a(f"buffer_store_dword v5, v4, s[80:83], s84 offen offset:{4*k}")
        a("s_nop 1")
    a("v_and_b32 v1, 63, v0")
    a("v_lshlrev_b32 v4, 2, v1")
    a("v_cmp_gt_u32 vcc, 16, v1")
    a("s_and_saveexec_b64 s[92:93], vcc")
    a("s_lshl_b32 s84, s84, 2")
    a("s_add_u32 s84, s84, 0x40000")
    for k in range(3):
        a(f"buffer_store_dword v{44+k}, v4, s[80:83], s84 offen offset:{64*k}")
    a("s_waitcnt vmcnt(0)")
    a("s_endpgm")

def srd(a, d, p, size):
    a(f"s_mov_b32 s{d}, s{p}")
    a(f"s_and_b32 s{d+1}, s{p+1}, 0xffff")
    a(f"s_mov_b32 s{d+2}, {size}")
    a(f"s_mov_b32 s{d+3}, 0x20000")

def gen(cfg):
    a = Asm()
    hdr = open("standalone__dilated_atrous__vision.s.ref").read().splitlines()
    head = [l for l in hdr[:8] if l.startswith(";") and "@launch" not in l]
    out = "\n".join(head) + "\n"
    out += f"; @launch grid=(256,1,1) block=(512,1,1) lds={LDS_TOTAL}\n"
    out += f""".amdgcn_target "amdgcn-amd-amdhsa--gfx950"
.text
.globl {NAME}_kernel
{".p2align 12" + chr(10) if cfg.pg else ""}.p2align 8
.type {NAME}_kernel,@function
{NAME}_kernel:
"""
    def trace(reg, idx):
        if cfg.trace:
            a("s_memtime s[90:91]")
            a(f"s_mov_b32 m0, {idx}")
            a("s_waitcnt lgkmcnt(0)")
            a(f"v_writelane_b32 v{reg}, s90, m0")
    if cfg.diag:
        a("s_memtime s[60:61]")
        a("s_memrealtime s[58:59]")
        a("s_load_dwordx2 s[12:13], s[0:1], 32")
    if cfg.amp: a("s_memrealtime s[58:59]")
    if cfg.amp in ("span", "skew"): a("s_load_dwordx2 s[12:13], s[0:1], 24")
    a("s_load_dwordx4 s[4:7], s[0:1], 0")
    a("s_load_dwordx2 s[8:9], s[0:1], 16")
    if WD: a("s_mov_b32 s94, 0")
    a("s_cmp_ge_u32 s2, 256")
    a("s_cbranch_scc1 L_exit")
    if cfg.lx < 0:
        a("s_and_b32 s28, s2, 1")
        a("s_bfe_u32 s3, s2, 0x20001")
        a("s_lshl_b32 s3, s3, 5")
        a("s_lshr_b32 s33, s2, 3")
        a("s_add_u32 s3, s3, s33")
        a("s_cmp_ge_u32 s3, 126")
        a("s_cbranch_scc1 " + ("L_help" if cfg.help else "L_exit"))
    else:
        a("s_and_b32 s3, s2, 7")
        a(f"s_sub_u32 s3, s3, {cfg.lx + 1}")
        a("s_and_b32 s3, s3, 7")
        a("s_lshl_b32 s3, s3, 5")
        a("s_lshr_b32 s33, s2, 3")
        a("s_add_u32 s3, s3, s33")
        a("s_cmp_ge_u32 s3, 252")
        a("s_cbranch_scc1 L_exit")
        a("s_cmp_ge_u32 s3, 224")
        a("s_cselect_b32 s33, 14, 112")
        a("s_cselect_b32 s34, 224, 0")
        a("s_cselect_b32 s29, 112, 0")
        a("s_sub_u32 s3, s3, s34")
        a("s_cmp_ge_u32 s3, s33")
        a("s_cselect_b32 s28, 1, 0")
        a("s_cselect_b32 s33, s33, 0")
        a("s_sub_u32 s3, s3, s33")
        a("s_add_u32 s3, s3, s29")
    a("v_lshrrev_b32 v2, 6, v0")
    a("v_and_b32 v1, 63, v0")
    a("v_readfirstlane_b32 s32, v2")
    a("v_lshlrev_b32 v30, 2, v0")
    a(f"v_add_u32 v30, {FLAGS}, v30")
    a("v_mov_b32 v31, 0")
    a("ds_write_b32 v30, v31")
    a("s_mul_i32 s33, s3, 4682")
    a("s_lshr_b32 s33, s33, 16")
    a("s_mul_i32 s34, s33, 14")
    a("s_sub_u32 s34, s3, s34")
    a("s_and_b32 s29, s34, 1")
    a("s_lshr_b32 s30, s34, 1")
    a("s_lshl_b32 s30, s30, 4")
    a("s_mul_i32 s31, s33, 25")
    a("s_lshr_b32 s31, s31, 1")
    a("s_and_b32 s34, s33, 1")
    a("s_lshl_b32 s35, s31, 1")
    a("s_add_u32 s35, s35, s28")
    a(f"s_mul_i32 s35, s35, {ROWB}")
    a("s_lshl_b32 s36, s30, 1")
    a("s_add_u32 s36, s36, s29")
    a("s_mul_i32 s36, s36, 192")
    a("s_lshl_b32 s52, s29, 1")
    a("s_sub_u32 s52, 2, s52")
    if cfg.order == 1: a("s_mov_b32 s3, s34")
    elif cfg.order == 2: a("s_mov_b32 s3, 1")
    elif cfg.order == 3: a("s_mov_b32 s3, 0")
    elif cfg.order == 4:
        a("s_and_b32 s3, s2, 0x30")
        a("s_min_u32 s3, s3, 1")
    a("s_cmp_ge_u32 s32, 4")
    if cfg.cpf:
        a("s_cbranch_scc0 L_ld")
        a("s_bfe_u32 s31, s32, 0x10001")
        a("s_lshl1_add_u32 s31, s34, s31")
        a("s_cmp_eq_u32 s33, 8")
        a("s_cselect_b32 s31, 3, s31")
        a("s_getpc_b64 s[38:39]")
        a.label("L_pc")
        a("s_lshr_b32 s37, s2, 1")
        a("s_and_b32 s37, s37, 0x7c")
        a("s_add_u32 s37, s37, s32")
        a("s_min_u32 s37, s37, (L_end-L_pc)/256")
        a("s_lshl_b32 s37, s37, 8")
        a("s_add_u32 s38, s38, s37")
        a("s_addc_u32 s39, s39, 0")
        a("v_mov_b32 v12, s38")
        a("v_mov_b32 v13, s39")
        a("global_load_dword v14, v[12:13], off")
        a("global_load_dword v15, v[12:13], off offset:128")
        if cfg.pads:
            if cfg.pad4:
                a("s_cmp_eq_u32 s32, 4")
                a("s_cbranch_scc1 L_padl")
            a("s_bitcmp1_b32 s32, 0")
            a("s_cbranch_scc0 L_compute")
            a("s_cmp_eq_u32 s31, 0")
            a("s_cbranch_scc1 L_pad0")
            a("s_cmp_eq_u32 s31, 1")
            a("s_cbranch_scc1 L_pad1")
            a("s_cmp_eq_u32 s31, 2")
            a("s_cbranch_scc1 L_pad2")
            a("s_branch L_pad3")
        else:
            a("s_branch L_compute")
        a.label("L_ld")
    else:
        a("s_cbranch_scc1 L_compute")
    if cfg.bench:
        a("v_mov_b32 v31, 100")
        a("ds_write_b32 v30, v31")
        a("s_waitcnt lgkmcnt(0)")
        a("s_barrier")
        a("s_branch L_dump")
    a("s_add_u32 s37, s35, s36")
    a(f"s_sub_u32 s37, s37, {2*PROW + 2*384}")
    a("s_sub_u32 s38, s30, 2")
    a("s_cmp_eq_u32 s29, 0")
    a("s_cselect_b32 s14, 32, -32")
    a("s_cselect_b32 s15, 0, 320")
    a(f"s_mul_i32 s10, s14, {8*PROW//32}")
    a("s_and_b32 s11, s32, 1")
    a("s_lshl_b32 s39, s11, 4")
    a("s_add_u32 s15, s15, s39")
    a("v_lshrrev_b32 v13, 2, v1")
    a("v_add_u32 v13, s15, v13")
    a("v_lshrrev_b32 v14, 3, v1")
    a("v_and_b32 v14, 2, v14")
    a("v_and_b32 v15, 3, v1")
    a("v_xor_b32 v14, v14, v15")
    a("v_lshlrev_b32 v14, 4, v14")
    a("v_add_u32 v14, s37, v14")
    a("v_bfrev_b32 v19, 1")
    a("s_movk_i32 s39, 3277")
    a(f"s_mov_b32 s49, {PROW}")
    a("s_movk_i32 s50, 384")
    a("s_movk_i32 s51, 112")
    for b in range(5):
        a("v_mul_u32_u24 v15, s39, v13")
        a("v_lshrrev_b32 v15, 16, v15")
        a("v_mul_u32_u24 v16, 20, v15")
        a("v_sub_u32 v16, v13, v16")
        a("v_add_u32 v17, s38, v16")
        a("v_cmp_gt_u32 vcc, s51, v17")
        a("v_mad_u32_u24 v18, v15, s49, v14")
        a("v_mad_u32_u24 v18, v16, s50, v18")
        a(f"v_cndmask_b32 v{2+b}, v19, v18, vcc")
        if b < 4: a("v_add_u32 v13, s14, v13")
        a(f"v_add_u32 v{7+b}, s10, v{2+b}")
    a("v_add_u32 v12, s10, v7")
    a("s_lshl_b32 s57, s52, 6")
    a("s_lshl_b32 s56, s15, 6")
    a("s_lshl_b32 s14, s14, 6")
    a("v_lshlrev_b32 v20, 4, v1")
    a("v_cmp_gt_u32 vcc, 32, v1")
    a("v_xor_b32 v22, 32, v20")
    a("s_lshr_b32 s39, s2, 3")
    a("v_cndmask_b32 v21, v22, v20, vcc")
    a("s_and_b32 s39, s39, 30")
    a("s_mul_i32 s38, s11, 5")
    a("s_add_u32 s39, s39, s38")
    a("s_mul_i32 s38, s39, 26")
    a("s_lshr_b32 s38, s38, 8")
    a("s_mul_i32 s38, s38, 10")
    a("s_sub_u32 s39, s39, s38")
    a("s_mul_i32 s40, s39, 3072")
    a("s_lshr_b32 s41, s39, 1")
    a(f"s_mul_i32 s41, s41, {92160 - 6144}")
    a("s_add_u32 s41, s41, s40")
    a("s_movk_i32 s42, 3072")
    a("s_bitcmp1_b32 s39, 0")
    a(f"s_cselect_b32 s42, {92160 - 3072}, s42")
    a("s_mov_b32 s43, 4")
    a("s_cmp_ge_u32 s32, 2")
    a("s_cselect_b32 s95, 1, 0")
    a(f"s_mul_i32 s54, s95, {WBUF}")
    a(f"s_add_u32 s54, s54, {WBASE}")
    a("s_mul_i32 s37, s95, 3")
    a("s_add_u32 s37, s37, s52")
    a("s_mul_i32 s37, s37, 6144")
    a("s_mov_b32 s55, 0")
    a("s_mov_b32 s15, 15")
    a("s_waitcnt lgkmcnt(0)")
    if cfg.diag: stamp(a, 1)
    srd(a, 16, 4, XBYTES)
    srd(a, 20, 6, WBYTES)
    if cfg.order:
        a("s_cmp_eq_u32 s95, s3")
        a("s_cbranch_scc1 L_go")
        a("s_barrier")
        a.label("L_go")
    a("s_cmp_eq_u32 s95, 1")
    a("s_cbranch_scc0 L_w_it")
    a.label("L_x_loop")
    for blk in range(4):
        a(f"s_bitcmp1_b32 s15, {blk}")
        a(f"s_cbranch_scc0 " + (f"L_x{blk}" if blk < 3 else "L_x_next"))
        for k in range(3 * blk, min(3 * blk + 3, 11)):
            a("s_mov_b32 m0, s56")
            a("s_add_u32 s56, s56, s14")
            a(f"buffer_load_dwordx4 v{2+k}, s[16:19], s57 offen{cfg.xflag} lds")
        if blk < 3: a.label(f"L_x{blk}")
    a("s_cmp_lg_u32 s55, 0")
    a("s_cbranch_scc1 L_x_sig")
    if cfg.diag: stamp(a, 2)
    if cfg.order:
        a("s_cmp_eq_u32 s3, 0")
        a("s_cbranch_scc1 L_x_nb")
    a("s_barrier")
    a.label("L_x_nb")
    a("v_mov_b32 v26, 1")
    a("s_waitcnt vmcnt(0)")
    a("ds_write_b32 v30, v26")
    trace(45, 0)
    a.label("L_w_it")
    a("s_add_u32 m0, s54, s40")
    a("s_add_u32 s50, s37, s41")
    for k in range(3):
        a(f"buffer_load_dwordx4 v{20+k}, s[20:23], s50 offen offset:{k*1024}{cfg.wflag} lds")
    a("s_addk_i32 s40, 3072")
    a("s_add_u32 s41, s41, s42")
    a(f"s_xor_b32 s42, s42, {3072 ^ (92160 - 3072)}")
    a(f"s_cmpk_eq_u32 s40, {WBUF}")
    a("s_cselect_b32 s40, 0, s40")
    a("s_cselect_b32 s41, 0, s41")
    a("s_sub_u32 s43, s43, 1")
    a("s_cbranch_scc0 L_w_it")
    a("s_cmp_lg_u32 s55, 0")
    a("s_cbranch_scc1 L_w_adv")
    a("s_cmp_eq_u32 s95, 1")
    a("s_cbranch_scc1 L_x_w1")
    if cfg.order:
        a("s_cmp_eq_u32 s3, 1")
        a("s_cbranch_scc1 L_w_nb1")
    a("s_barrier")
    a.label("L_w_nb1")
    a("s_mov_b32 s55, s32")
    a("s_mov_b32 s53, s32")
    a(f"s_mul_i32 s50, s32, {WBUF}")
    a("s_add_u32 s54, s54, s50")
    a("v_mov_b32 v31, s32")
    a.label("L_w_adv")
    trace(44, "s55")
    a("v_add_u32 v31, 2, v31")
    a("s_waitcnt vmcnt(0)")
    a("ds_write_b32 v30, v31")
    trace(45, "s55")
    a(f"s_sub_u32 s54, s54, {WBUF}")
    a(f"s_cmp_lt_u32 s54, {WBASE}")
    a(f"s_cselect_b32 s50, {3*WBUF}, 0")
    a("s_add_u32 s54, s54, s50")
    a("s_add_u32 s53, s53, 2")
    a("s_cmp_ge_u32 s53, 5")
    a("s_cselect_b32 s50, 5, 0")
    a("s_sub_u32 s53, s53, s50")
    a("s_lshr_b32 s50, s50, 2")
    a("s_add_u32 s52, s52, s50")
    a("s_cmp_eq_u32 s52, 3")
    a("s_cselect_b32 s52, 0, s52")
    a("s_mul_i32 s37, s53, 3")
    a("s_add_u32 s37, s37, s52")
    a("s_mul_i32 s37, s37, 6144")
    a("s_mov_b32 s43, 9")
    a("s_mov_b32 s51, s55")
    a("s_add_u32 s55, s55, 2")
    a("s_cmp_eq_u32 s51, 0")
    a("s_cbranch_scc1 L_w_it")
    a("s_cmp_ge_u32 s55, 15")
    a("s_cbranch_scc1 L_store")
    a("v_and_b32 v23, 3, v1")
    a("v_lshlrev_b32 v23, 8, v23")
    a(f"v_add_u32 v23, {FLAGS + 1024}, v23")
    poll(a, "L_w_poll", 23, 24, "s51", cfg.sleep)
    trace(46, "s55")
    a("s_branch L_w_it")
    if cfg.pad4:
        a.label("L_padl")
        a("s_branch L_compute")
    a.label("L_x_w1")
    C = sum(((thr << 4) | m) << (8 * k) for k, (thr, m) in enumerate(cfg.xb))
    assert len(cfg.xb) <= 8
    a(f"s_mov_b32 s92, {C & 0xffffffff:#x}")
    a(f"s_mov_b32 s93, {C >> 32:#x}")
    a("s_mov_b32 s55, 1")
    if cfg.trace: a("s_mov_b32 s51, 1")
    a.label("L_x_sig")
    a("v_add_u32 v31, 5, v31")
    a("s_waitcnt vmcnt(0)")
    a("ds_write_b32 v30, v31")
    trace(45, "s51")
    a("s_mul_i32 s50, s14, -11")
    a("s_add_u32 s56, s56, s50")
    a(f"s_add_u32 s56, s56, {XCH}")
    a("s_add_u32 s57, s57, 64")
    a("s_cmp_eq_u32 s57, 192")
    a("s_cselect_b32 s57, 0, s57")
    a.label("L_x_next")
    a("s_and_b32 s15, s92, 15")
    a("s_cbranch_scc0 L_store")
    a("s_bfe_u32 s51, s92, 0x40004")
    a("s_lshr_b64 s[92:93], s[92:93], 8")
    a("v_and_b32 v22, 1, v1")
    a(f"v_lshlrev_b32 v22, 8, v22")
    a(f"v_add_u32 v22, {FLAGS}, v22")
    poll(a, "L_x_poll", 22, 23, "s51", cfg.sleep)
    trace(44, "s51")
    a("s_branch L_x_loop")
    if cfg.help:
        a.label("L_help")
        a("v_and_b32 v1, 63, v0")
        a("v_lshrrev_b32 v2, 6, v0")
        a("v_mul_u32_u24 v3, 43, v1")
        a("v_readfirstlane_b32 s32, v2")
        a("v_lshrrev_b32 v3, 9, v3")
        a("v_mul_u32_u24 v4, 12, v3")
        a("v_sub_u32 v4, v1, v4")
        a("v_mul_u32_u24 v3, 92160, v3")
        a("v_lshl_add_u32 v3, v4, 7, v3")
        a("s_and_b32 s33, s2, 1")
        a("s_and_b32 s3, s3, 1")
        a("s_lshl1_add_u32 s33, s3, s33")
        a("s_mulk_i32 s33, 1536")
        a("s_lshr_b32 s34, s32, 1")
        a("s_add_u32 s34, s34, 1")
        a("s_mul_i32 s34, s34, 3")
        a("s_and_b32 s35, s32, 1")
        a("s_lshl1_add_u32 s34, s35, s34")
        a("s_mulk_i32 s34, 6144")
        a("s_add_u32 s34, s34, s33")
        a("s_min_u32 s35, s32, 4")
        a("s_mul_i32 s35, s35, 3")
        a("s_add_u32 s35, s35, 1")
        a("s_mulk_i32 s35, 6144")
        a("s_add_u32 s35, s35, s33")
        a("s_waitcnt lgkmcnt(0)")
        srd(a, 20, 6, WBYTES)
        a("buffer_load_dword v5, v3, s[20:23], s34 offen")
        a("buffer_load_dword v6, v3, s[20:23], s35 offen")
        a("s_waitcnt vmcnt(0)")
        a("s_endpgm")
    a.label("L_store")
    srd(a, 24, 8, XBYTES)
    a("s_movk_i32 s49, 208")
    a("s_movk_i32 s50, 384")
    a("v_lshrrev_b32 v11, 2, v1")
    a("v_and_b32 v12, 3, v1")
    a("v_lshlrev_b32 v12, 4, v12")
    a("v_mad_u32_u24 v5, v11, s50, v12")
    a("v_mad_u32_u24 v2, v11, s49, v12")
    a("v_and_b32 v10, 1, v1")
    a("v_lshlrev_b32 v10, 8, v10")
    a("s_lshl_b32 s39, s95, 9")
    a(f"s_add_u32 s39, s39, {FLAGS + 1024}")
    a("v_add_u32 v10, s39, v10")
    a("s_add_u32 s45, s35, s36")
    a("s_or_b32 s38, s34, s95")
    a("s_cmp_eq_u32 s33, 8")
    a("s_cselect_b32 s38, 1, s38")
    a("s_cselect_b32 s43, 6, 7")
    a("s_xor_b32 s38, s38, 1")
    a("s_andn2_b32 s44, s34, s95")
    a("s_add_u32 s39, s34, 6")
    a("s_mul_i32 s39, s39, s95")
    a("s_add_u32 s39, s39, s44")
    a("s_add_u32 s39, s39, 5")
    a("s_cmp_eq_u32 s38, 1")
    a("s_cselect_b32 s39, 0, s39")
    a("s_cselect_b32 s42, 1, -1")
    def rowsetup():
        a("s_mul_i32 s40, s11, s42")
        a("s_add_u32 s39, s39, s40")
        a(f"s_mul_i32 s47, s39, {PROW}")
        a("s_add_u32 s47, s47, s45")
        a(f"s_mul_i32 s48, s39, {SROW}")
        a("v_add_u32 v12, s48, v2")
        a(f"s_mul_i32 s40, s42, {2*PROW}")
        a(f"s_mul_i32 s41, s42, {2*SROW}")
    rowsetup()
    a("s_add_u32 s51, s11, 16")
    a("s_add_u32 s44, s44, 22")
    a.label("L_st_m")
    poll(a, "L_st_mp", 10, 11, "s51", cfg.sleep)
    a(f"ds_read_b128 {vr(16,4)}, v12 offset:64")
    a("v_add_u32 v12, s41, v12")
    a("s_add_u32 s51, s51, 2")
    a("s_waitcnt lgkmcnt(0)")
    a(f"buffer_store_dwordx4 {vr(16,4)}, v5, s[24:27], s47 offen offset:64{cfg.stflag}")
    a("s_add_u32 s47, s47, s40")
    a("s_cmp_lt_u32 s51, s44")
    a("s_cbranch_scc1 L_st_m")
    if cfg.stprio: a(f"s_setprio {cfg.stprio}")
    a("s_cmp_eq_u32 s95, 1")
    a("s_cselect_b32 s39, s43, s34")
    a("s_cmp_eq_u32 s38, 1")
    a("s_cselect_b32 s39, 5, s39")
    a("s_sub_u32 s42, 0, s42")
    rowsetup()
    a("s_add_u32 s51, s11, 25")
    a("s_and_b32 s38, s38, s11")
    a("s_cbranch_scc0 L_st_go")
    a("v_and_b32 v28, 3, v1")
    a("v_lshlrev_b32 v28, 8, v28")
    a(f"v_add_u32 v28, {FLAGS + 1024}, v28")
    a(f"s_add_u32 s45, s45, {6*PROW}")
    poll(a, "L_st_s1", 28, 11, 24, cfg.sleep2)
    for k in range(2): a(f"ds_read_b128 {vr(16+4*k,4)}, v2 offset:{6*SROW + 128*k}")
    for k in range(2):
        a(f"s_waitcnt lgkmcnt({1-k})")
        a(f"buffer_store_dwordx4 {vr(16+4*k,4)}, v5, s[24:27], s45 offen offset:{128*k}{cfg.stflag}")
    a.label("L_st_go")
    poll(a, "L_st_p1", 10, 11, "s51", cfg.sleep2)
    for k in range(2): a(f"ds_read_b128 {vr(16+4*k,4)}, v12 offset:{128*k}")
    a("v_add_u32 v12, s41, v12")
    a("s_add_u32 s51, s51, 2")
    for k in range(2):
        a(f"s_waitcnt lgkmcnt({1-k})")
        a(f"buffer_store_dwordx4 {vr(16+4*k,4)}, v5, s[24:27], s47 offen offset:{128*k}{cfg.stflag}")
    a("s_add_u32 s47, s47, s40")
    a("s_cmp_lt_u32 s51, 30")
    a("s_cbranch_scc1 L_st_go")
    a.label("L_st_end")
    if cfg.amp == "all": a("s_branch L_ampall")
    if cfg.diag:
        stamp(a, 5)
        a("s_waitcnt vmcnt(0)")
        stamp(a, 6)
        dump_stamps(a, cfg)
    a.label("L_exit")
    a("s_endpgm")
    a.label("L_compute")
    if cfg.cbar == 0:
        a("s_waitcnt lgkmcnt(0)")
        a("s_barrier")
    a("s_sub_u32 s37, s32, 4")
    a("s_and_b32 s38, s37, 1")
    a("s_lshr_b32 s37, s37, 1")
    a("s_add_u32 s39, s34, 6")
    a("s_mul_i32 s49, s37, s39")
    a(f"v_mov_b32 v{V_CP}, v30")
    a(f"v_mov_b32 v{V_PV}, 0")
    a("v_and_b32 v32, 15, v1")
    a("v_lshrrev_b32 v33, 4, v1")
    a("v_and_b32 v34, 1, v33")
    a("v_lshrrev_b32 v35, 1, v33")
    a("v_bfe_u32 v36, v1, 2, 2")
    a("v_and_b32 v37, 3, v1")
    a(f"v_lshlrev_b32 v{V_LF}, 8, v37")
    a(f"v_add_u32 v{V_LF}, {FLAGS}, v{V_LF}")
    a(f"v_or_b32 v16, 512, v{V_LF}")
    a(f"v_xor_b32 v17, 512, v16")
    a("s_lshl_b32 s39, s38, 7")
    a("v_lshlrev_b32 v40, 5, v34")
    a("v_lshl_add_u32 v40, v35, 4, v40")
    a("v_add_u32 v40, s39, v40")
    a("s_lshl_b32 s39, s38, 5")
    a("s_add_u32 s39, s39, 64")
    a("v_lshlrev_b32 v41, 3, v33")
    a("v_add_u32 v41, s39, v41")
    a("v_mul_u32_u24 v38, 384, v32")
    a("v_add_u32 v38, s36, v38")
    a(f"v_add_u32 v{V_SA}, v38, v40")
    a(f"v_add_u32 v{V_SC}, v38, v41")
    a("v_mul_u32_u24 v38, 208, v32")
    a(f"s_mul_i32 s39, s49, {SROW}")
    a("v_add_u32 v38, s39, v38")
    a("s_lshl_b32 s39, s38, 7")
    a(f"v_lshl_add_u32 v{V_GA}, v33, 3, v38")
    a(f"v_add_u32 v{V_GA}, s39, v{V_GA}")
    a(f"v_add_u32 v{V_GB}, v38, v41")
    a(f"s_mul_i32 s47, s49, {PROW}")
    a("s_add_u32 s47, s47, s35")
    a("v_lshl_add_u32 v38, v33, 3, v36")
    a("v_mul_u32_u24 v38, 192, v38")
    a("v_lshl_add_u32 v38, v37, 3, v38")
    a(f"v_add_u32 v38, {WBASE}, v38")
    a("s_add_u32 s39, s38, 2")
    a("v_xor_b32 v39, s39, v34")
    a(f"v_lshl_add_u32 v{V_WA[0]}, v39, 5, v38")
    a("s_lshl_b32 s39, s38, 2")
    a("v_xor_b32 v39, s39, v34")
    a(f"v_lshl_add_u32 v{V_WA[1]}, v39, 5, v38")
    a("v_xor_b32 v39, 1, v39")
    a(f"v_lshl_add_u32 v{V_WA[2]}, v39, 5, v38")
    a("v_lshlrev_b32 v38, 6, v32")
    a("v_lshl_add_u32 v38, v33, 4, v38")
    a(f"s_mul_i32 s39, s49, {XROW}")
    a(f"v_add_u32 v{V_XL}, s39, v38")
    a(f"v_lshrrev_b32 v{V_T}, 3, v{V_XL}")
    a(f"v_and_b32 v{V_T}, 32, v{V_T}")
    a(f"v_xor_b32 v{V_XA[0]}, v{V_XL}, v{V_T}")
    a(f"v_xor_b32 v{V_XA[1]}, 32, v{V_XA[0]}")
    if cfg.mov64:
        for k in range(0, 84, 2): a(f"v_mov_b64 {vr(V_ACC+k,2)}, 0")
    else:
        for k in range(84): a(f"v_mov_b32 v{V_ACC+k}, 0")
    a(f"s_mov_b32 s40, {(1 << 6) | (1 << 11)}")
    a(f"s_mov_b32 s41, {sum(1 << (h + 1) for h in (3, 6, 9, 12))}")
    a(f"s_mov_b32 s44, {(-2*WBUF) & 0xffffffff}")
    a(f"s_mov_b32 s45, {WBUF}")
    a("s_mov_b32 s46, 2")
    if cfg.cbar == 1:
        a("s_waitcnt lgkmcnt(0)")
        a("s_barrier")
    if cfg.diag: stamp(a, 1)
    srd(a, 24, 8, XBYTES)
    if cfg.prio: a(f"s_setprio {cfg.prio}")
    if cfg.amp in ("span", "skew"): srd(a, 80, 12, 256)
    for var in (1, 2, 3):
        a(f"s_cmp_eq_u32 s31, {var}")
        a(f"s_cbranch_scc1 L_pro{var}")
    if cfg.pads: a("s_branch L_pro0")
    for var in range(4):
        emit_variant(a, var, cfg)
    a.label("L_end")
    for _ in range(100): a("s_endpgm")
    out += a.text()
    nv = (V_END + 7) // 8 * 8
    out += f""".section .rodata,"a"
.p2align 6
.amdhsa_kernel {NAME}_kernel
  .amdhsa_next_free_vgpr {nv}
  .amdhsa_next_free_sgpr 96
  .amdhsa_accum_offset {nv}
  .amdhsa_group_segment_fixed_size 0
  .amdhsa_kernarg_size 40
  .amdhsa_user_sgpr_count 2
  .amdhsa_user_sgpr_kernarg_segment_ptr 1
  .amdhsa_system_sgpr_workgroup_id_x 1
.end_amdhsa_kernel
"""
    return out

if __name__ == "__main__":
    p = argparse.ArgumentParser()
    p.add_argument("-o", default="standalone__dilated_atrous__vision.s")
    p.add_argument("--diag", action="store_true")
    p.add_argument("--trace", action="store_true")
    p.add_argument("--bar_pos", type=int, default=58)
    p.add_argument("--xbar", type=int, default=40)
    p.add_argument("--lead", type=int, default=5)
    p.add_argument("--safe", type=int, default=8)
    p.add_argument("--prio", type=int, default=1)
    p.add_argument("--align", type=int, default=1)
    p.add_argument("--snake", type=int, default=1)
    p.add_argument("--exper", type=int, default=2)
    p.add_argument("--order", type=int, default=1)
    p.add_argument("--wpf", type=int, default=0)
    p.add_argument("--epf", type=int, default=0)
    p.add_argument("--cpf", type=int, default=1)
    p.add_argument("--sleep", type=int, default=2)
    p.add_argument("--sleep2", type=int, default=0)
    p.add_argument("--stflag", default="sc0 sc1 nt")
    p.add_argument("--wd", type=int, default=1)
    p.add_argument("--amp", default="")
    p.add_argument("--help2", dest="help", type=int, default=0)
    p.add_argument("--pg", type=int, default=1)
    p.add_argument("--alead", type=int, default=20)
    p.add_argument("--entry_last", type=int, default=0)
    p.add_argument("--pad4", type=int, default=0)
    p.add_argument("--lx", type=int, default=-1)
    p.add_argument("--al8", type=int, default=0)
    p.add_argument("--shift4", type=int, default=0)
    p.add_argument("--rush", type=int, default=30)
    p.add_argument("--fill", type=int, default=0)
    p.add_argument("--pads", type=int, default=1)
    p.add_argument("--nstage", type=int, default=5)
    p.add_argument("--spec", type=int, default=1)
    p.add_argument("--stprio", type=int, default=0)
    p.add_argument("--mov64", type=int, default=1)
    p.add_argument("--xflag", default="")
    p.add_argument("--wflag", default="")
    p.add_argument("--fixd", type=int, default=0)
    p.add_argument("--wbl2", type=int, default=0)
    p.add_argument("--bench", action="store_true")
    p.add_argument("--drop", default="")
    p.add_argument("--cmpd", type=int, default=4)
    p.add_argument("--updstep", type=int, default=1)
    p.add_argument("--xthr", type=int, default=2)
    p.add_argument("--cbar", type=int, default=0)
    p.add_argument("--w2wait", type=int, default=1)
    p.add_argument("--xb", default="3:1,4:2,5:4,6:8,8:3,9:12")
    cfg = p.parse_args()
    cfg.xb = [tuple(int(v) for v in e.split(":")) for e in cfg.xb.split(",")]
    WD = cfg.wd
    if cfg.stflag: cfg.stflag = " " + cfg.stflag
    if cfg.xflag: cfg.xflag = " " + cfg.xflag
    if cfg.wflag: cfg.wflag = " " + cfg.wflag
    open(cfg.o, "w").write(gen(cfg))
```

```python
import sys, argparse

NAME = "standalone__dilated_atrous__vision"
XBYTES = 224 * 224 * 96 * 2
WBYTES = 25 * 96 * 96 * 2
ROWB = 224 * 192
PROW = 2 * ROWB
XCH = 352 * 64
XROW = 20 * 64
WBASE = 3 * XCH
WBUF = 5 * 6144
FLAGS = WBASE + 3 * WBUF
LDS_TOTAL = FLAGS + 2048
SROW = 16 * 208
assert 13 * SROW <= 2 * XCH

class Asm:
    def __init__(self):
        self.lines = []
    def __call__(self, s):
        self.lines.append("    " + s)
    def label(self, l):
        self.lines.append(l + ":")
    def comment(self, s):
        self.lines.append("    ; " + s)
    def text(self):
        return "\n".join(self.lines) + "\n"

def vr(b, n):
    return f"v[{b}:{b+n-1}]"

V_XL = 1
V_XA = (2, 3)
V_WA = (4, 5, 6)
V_SA, V_SC = 7, 8
V_GA, V_GB = 9, 10
V_T = 11
V_XB = (22, 23)
V_CP = 25
V_LF = 26
V_PV = 27
V_F = 28
V_X = 32
V_W = 76
V_ACC = 136
V_EXTRA = V_ACC + 84
V_END = V_EXTRA + 32

TYPES = {
    0: (range(0, 6), range(0, 7), range(0, 6)),
    1: (range(0, 6), range(1, 7), range(0, 7)),
    2: (range(0, 7), range(1, 7), range(1, 7)),
    3: (range(0, 6), range(0, 6), range(0, 6)),
}
OFF = {0: 0, 1: 1, 2: 1, 3: 0}
SPECIAL = {0: 6, 1: 0, 2: 0, 3: None}
LASTHEAD = {
    0: [(0, 0), (0, 1), (6, 1), (0, 2)],
    1: [(0, 0), (1, 0), (1, 1), (0, 2), (1, 2)],
    2: [(0, 0), (1, 0), (1, 1), (2, 0), (1, 2), (2, 1), (2, 2)],
    3: [(0, 0), (0, 1), (1, 0), (0, 2), (1, 1), (1, 2)],
}

def acc(rho, t): return V_ACC + 4 * (rho * 3 + t)
def wreg(i, t): return V_W + 4 * (i * 3 + t)
def xreg(q): return V_X + 4 * q

def chain(rho, t, rev):
    r = list(range(5))
    if rev: r.reverse()
    return [(rho, i, t, rho + i) for i in r]

def steady_order(var, cfg, par=(1, 1, 1)):
    ms = []
    for t in range(3):
        for j, rho in enumerate(TYPES[var][t]): ms += chain(rho, t, cfg.snake and j % 2 == par[t])
    return ms

DIRECT = {0: (5,), 1: (6, 5), 2: (6,), 3: (5,)}

def last_tiles(var):
    order = list(LASTHEAD[var])
    rows = [r for r in range(7) if r not in DIRECT[var]] + list(DIRECT[var])
    for r in rows:
        for t in ((0, 1, 2) if r not in DIRECT[var] else (1, 2, 0)):
            if r in TYPES[var][t] and (r, t) not in order: order.append((r, t))
    return order

def last_order(var, cfg, par=1):
    ms = []
    for j, (r, t) in enumerate(last_tiles(var)): ms += chain(r, t, cfg.snake and j % 2 == par and j >= 4)
    return ms

def uses(ms):
    first, last = {}, {}
    for k, (rho, i, t, q) in enumerate(ms):
        for key in (("w", i, t, 0), ("w", i, t, 1), ("x", q)):
            first.setdefault(key, k); last[key] = k
    return first, last

def read_text(nm):
    if nm[0] == "x":
        q = nm[1]
        return f"ds_read_b128 {vr(xreg(q),4)}, v{V_XA[q & 1]} offset:{q*XROW}"
    _, i, t, h = nm
    return f"ds_read_b64_tr_b16 {vr(wreg(i,t)+2*h,2)}, v{V_WA[t]} offset:{i*6144 + h*768}"

def edf(reads, lo, hi, lead, busy=()):
    placed, pending = {}, list(reads)
    for k in range(lo, hi):
        avail = [r for r in pending if r[1] <= k]
        if not avail: continue
        r = min(avail, key=lambda r: r[2])
        placed[k] = r[0]
        pending.remove(r)
        assert r[2] - k >= lead, (r, k)
    assert not pending, pending
    return placed

def mfma_text(m):
    rho, i, t, q = m
    return f"v_mfma_f32_16x16x32_bf16 {vr(acc(rho,t),4)}, {vr(wreg(i,t),4)}, {vr(xreg(q),4)}, {vr(acc(rho,t),4)}"

class LdsQ:
    def __init__(self, a, safe):
        self.a, self.safe = a, safe
        self.ops = []
        self.done = 0
        self.waits = []
    def issue(self, name, time, text=None):
        self.ops.append((name, time))
        if text: self.a(text)
    def need(self, names, time):
        idx = max(max(j for j, (nm, _) in enumerate(self.ops) if nm == n) for n in names) + 1
        if idx <= self.done: return
        for j, (nm, tm) in enumerate(self.ops):
            if tm <= time - 1 - self.safe: idx = max(idx, j + 1)
        cnt = len(self.ops) - idx
        if cnt > 14:
            idx += cnt - 14; cnt = 14
        self.a(f"s_waitcnt lgkmcnt({cnt})")
        self.waits.append((time, cnt, len(self.ops)))
        self.done = idx

WD = 1
def poll(a, label, vaddr, vtmp, sneed, sleep, wd=True):
    a.label(label)
    if WD and wd:
        a("s_add_u32 s94, s94, 1")
        a("s_bitcmp1_b32 s94, 18")
        a("s_cbranch_scc1 L_exit")
    a(f"ds_read_b32 v{vtmp}, v{vaddr}")
    a("s_waitcnt lgkmcnt(0)")
    a(f"v_cmp_gt_u32 vcc, {sneed}, v{vtmp}")
    if sleep:
        a(f"s_cbranch_vccz {label}_ok")
        a(f"s_sleep {sleep}")
        a(f"s_branch {label}")
        a.label(label + "_ok")
    else:
        a(f"s_cbranch_vccnz {label}")

def isize(l):
    l = l.strip()
    op = l.split()[0]
    if op.startswith(("v_mfma", "ds_", "buffer_", "v_cvt_pk")) or op.endswith("_e64"): return 8
    import re
    for tok in re.split(r"[ ,]+", l)[1:]:
        if re.fullmatch(r"-?\d+|0x[0-9a-f]+", tok) and not op.startswith(("s_waitcnt", "s_nop")):
            v = int(tok, 0)
            if not (-16 <= v <= 64): return 8
    return 4

def align8(lines):
    out = []
    for l in lines:
        op = l.strip().split()[0]
        if op.startswith("v_") and isize(l) == 4:
            l = l.replace(op, op + "_e64", 1)
        out.append(l)
    res, off = [], 0
    for l in out:
        sz = isize(l)
        if sz == 8 and off % 8 == 4:
            res.append("    s_nop 0"); off += 4
        res.append(l); off += sz
    if off % 8 == 4: res.append("    s_nop 0")
    return res

def emit_variant(a, var, cfg):
    bar = cfg.bar_pos if var != 3 else cfg.bar_pos - 3
    best = None
    for par in [(p0, 1, p2) for p0 in (1, 0) for p2 in (1, 0)]:
        ms = steady_order(var, cfg, par)
        n = len(ms)
        first, last = uses(ms)
        reads = [(key, max(last[key], bar, n if (key[0] == "w" and key[2] == 2) else 0), n + first[key]) for key in first]
        placed = edf(reads, bar, n + bar - 16, 0)
        ld = min(n + first[nm] - k for k, nm in placed.items())
        if best is None or ld > best[0]: best = (ld, par, ms, first, last, placed)
    ld, par, ms, first, last, placed = best
    print(f"variant {var}: snake parity {par}, min lead {ld}", file=sys.stderr)
    tail = [(k, placed[k]) for k in sorted(placed) if k < n]
    head = [(k - n, placed[k]) for k in sorted(placed) if k >= n]
    slow = []
    hb, tb = Asm(), Asm()
    q = LdsQ(hb, cfg.safe)
    for k, nm in tail: q.issue(nm, k - n)
    headd, taild = dict(head), dict(tail)
    extra = {}
    def put(k, s): extra.setdefault(k, []).append(s)
    krel = max(k for k, nm in head) + 1
    put(krel - 1, f"v_add_u32 v{V_PV}, 1, v{V_PV}")
    upd = ["s_bitcmp1_b32 s40, s46", f"s_cselect_b32 s42, {XCH - 4*64}, 64",
           "s_bitcmp1_b32 s41, s46", "s_cselect_b32 s43, s44, s45",
           "s_cmp_eq_u32 s46, 14", "s_cselect_b32 s49, 1000, s46",
           f"v_add_u32 v{V_XL}, s42, v{V_XL}", f"v_lshrrev_b32 v{V_T}, 3, v{V_XL}", f"v_and_b32 v{V_T}, 32, v{V_T}",
           f"v_xor_b32 v{V_XA[0]}, v{V_XL}, v{V_T}", f"v_xor_b32 v{V_XA[1]}, 32, v{V_XA[0]}"]
    upd += [f"v_add_u32 v{V_WA[t]}, s43, v{V_WA[t]}" for t in range(3)]
    b0 = krel + 2
    for j, u in enumerate(upd): put(b0 + cfg.updstep * j, u)
    kflag = bar - cfg.cmpd - 9
    assert b0 + cfg.updstep * len(upd) <= kflag
    cur = hb
    for k, m in enumerate(ms):
        rho, i, t, qq = m
        q.need([("w", i, t, 0), ("w", i, t, 1), ("x", qq)], k)
        cur(mfma_text(m))
        D = cfg.drop
        for s in extra.get(k, []): cur(s)
        if k == krel: q.issue(("rel",), k, f"ds_write_b32 v{V_CP}, v{V_PV}")
        if k == kflag: q.issue(("flag",), k, f"ds_read_b32 v{V_F}, v{V_LF}")
        if k == bar - cfg.cmpd - 1: q.need([("flag",)], k + 1)
        if k == bar - cfg.cmpd: cur(f"v_cmp_gt_u32 vcc, s49, v{V_F}")
        if k == bar:
            cur = tb; q.a = tb
        drop = lambda nm: ("l" in D and k in taild) or ("w" in D and nm[0] == "w" and k in taild) or ("x" in D and nm[0] == "x")
        if k in headd: q.issue(headd[k], k, read_text(headd[k]) if not drop(headd[k]) else None)
        if k in taild: q.issue(("next",) + taild[k], k, read_text(taild[k]) if not drop(taild[k]) else None)
        if k == n - 9: cur("s_add_u32 s46, s46, 1")
    kinds = ("w", "x") if ((var < 2 and cfg.order == 1) or cfg.order == 3) else ("x", "w")
    ent = [[nm for _, nm in sorted(tail, key=lambda e: first[e[1]]) if nm[0] == kd] for kd in kinds]
    late = ent[1]
    def entry_ok(m):
        done = len(late) - m
        wi = 0
        for k, (rho, i, t, qq) in enumerate(ms):
            while wi < len(q.waits) and q.waits[wi][0] <= k:
                _, cnt, nops = q.waits[wi]; wi += 1
                body_ops = nops - len(tail)
                done = max(done, len(late) - max(0, cnt - body_ops))
            for nm in (("w", i, t, 0), ("w", i, t, 1), ("x", qq)):
                if nm in late and late.index(nm) >= done: return False
        return True
    ment = max(mm for mm in range(min(len(late), 14) + 1) if entry_ok(mm))
    def emit_entry():
        a.label(f"L_pro{var}")
        poll(a, f"L_p0_{var}", 16 if kinds[0] == "x" else 17, V_F, 1, 0)
        for nm in ent[0]: a(read_text(nm))
        poll(a, f"L_p1_{var}", 16 if kinds[1] == "x" else 17, V_F, 1, 0)
        if cfg.diag: stamp(a, 3)
        if cfg.amp:
            a("s_memrealtime s[86:87]")
            a("s_waitcnt lgkmcnt(0)")
        for nm in late: a(read_text(nm))
        a(f"s_waitcnt lgkmcnt({ment})")
        a(f"s_branch L_head{var}")
    if not cfg.entry_last: emit_entry()
    if cfg.al8:
        hb.lines = align8(hb.lines); tb.lines = align8(tb.lines)
    if cfg.align: a(".p2align 6")
    if cfg.pads:
        a.label(f"L_pad{var}")
        a("s_branch L_compute")
        a("s_nop 0")
    a.label(f"L_top{var}")
    a.lines += tb.lines
    a.label(f"L_head{var}")
    a.lines += hb.lines
    a(f"s_cbranch_vccz L_top{var}")
    a("s_min_u32 s49, s49, 15")
    a(f"v_cmp_gt_u32 vcc, s49, v{V_F}")
    a(f"s_cbranch_vccnz L_slow{var}")
    a.label(f"L_fin{var}")
    a.lines += tb.lines
    if cfg.diag: stamp(a, 4)
    if cfg.cpf: a("s_waitcnt vmcnt(0)")
    rows = TYPES[var]
    down = var == 0
    prow = sorted(set(rows[1]) | set(rows[2]), reverse=down)
    lastrow = prow[-1]
    srow2 = sorted(rows[0], reverse=not down)
    def build(pa, pb):
        out = []
        for j, r in enumerate(rows[0]):
            out += [m + (13, 0) for m in chain(r, 0, cfg.snake and j % 2 == pa)]
        for j, r in enumerate(srow2):
            out += [m + (14, 0) for m in chain(r, 0, cfg.snake and j % 2 == pb)]
        keep = set(range(srow2[-1], srow2[-1] + 5))
        flip = 0
        tiles = []
        for r in prow:
            ts = [t for t in ((1, 2) if flip == 0 else (2, 1)) if r in rows[t]]
            if r == lastrow: ts = [1, 2]
            for j, t in enumerate(ts):
                gs = (14, 13) if j == 0 else (13, 14)
                for g in gs:
                    for m in chain(r, t, (j == 1) != down):
                        out.append(m + (g, 0 if (g == 14 and m[3] in keep) else 1))
                tiles.append((r, t))
            flip = 0 if ts[-1] == 1 else 1
        return out, tiles
    def names(m):
        rho, i, t, qq, g, occ = m
        return [("w", g, i, t, 0), ("w", g, i, t, 1), ("x", g, qq, occ)]
    frag = lambda nm: nm if nm[0] == "x" else nm[:4]
    conv = lambda nm: ("x", 13, nm[1], 0) if nm[0] == "x" else ("w", 13) + nm[1:]
    pre = [(k - n, conv(nm)) for k, nm in tail]
    prenames = set(nm for _, nm in pre)
    slots = [V_X + 4 * j for j in range(26)] + [V_EXTRA + 4 * j for j in range(8)]
    best = None
    for pa in (1, 0):
      for pb in (1, 0):
        ls, ptiles = build(pa, pb)
        lf, ll = {}, {}
        for k, m in enumerate(ls):
            for nm in names(m):
                lf.setdefault(nm, k); ll[nm] = k
        free = {sl: 0 for sl in slots}
        regs = {}
        for nm in prenames:
            sl = xreg(nm[2]) if nm[0] == "x" else wreg(nm[2], nm[3])
            regs[frag(nm)] = sl
            free[sl] = max(free[sl], ll.get(nm, 0))
        rds, early = [], {}
        for nm in sorted(lf, key=lambda v: lf[v]):
            if nm in prenames: continue
            fr = frag(nm)
            if fr not in regs:
                ok = [sl for sl in slots if free[sl] <= lf[nm] - cfg.alead]
                sl = max(ok, key=lambda v: free[v]) if ok else min(slots, key=lambda v: free[v])
                regs[fr] = sl; early[fr] = free[sl]; free[sl] = ll[nm]
            e = early.get(fr, 0)
            if nm[0] == "x" and nm[1] == 14: e = max(e, 6)
            rds.append((nm, e, lf[nm]))
        try: lp = edf(rds, 0, len(ls), 0)
        except AssertionError: continue
        ld2 = min([lf[nm] - k for k, nm in lp.items()] + [lf[nm] - k for k, nm in pre if nm in lf])
        if best is None or ld2 > best[0]: best = (ld2, (pa, pb), ls, lf, lp, regs, ptiles)
    ld2, pars, ls, lf, lplaced, regs, ptiles = best
    print(f"   final segment: parity {pars} min lead {ld2} reads {len(lplaced)}", file=sys.stderr)
    def rd_text(nm):
        if nm[0] == "x":
            _, g, qq, occ = nm
            return f"ds_read_b128 {vr(regs[nm],4)}, v{(V_XA if g == 13 else V_XB)[qq & 1]} offset:{qq*XROW}"
        _, g, i, t, h = nm
        return f"ds_read_b64_tr_b16 {vr(regs[frag(nm)]+2*h,2)}, v{V_WA[t]} offset:{(g-13)*WBUF + i*6144 + h*768}"
    n2 = len(ls)
    q = LdsQ(a, cfg.safe)
    for k, nm in pre: q.issue(nm, k)
    endk = {}
    for k, m in enumerate(ls): endk[(m[0], m[2])] = k
    def cvt2(D, S, tile):
        return [(tile, f"v_cvt_pk_bf16_f32 v{D}, v{S}, v{S+1}"), (tile, f"v_cvt_pk_bf16_f32 v{D+1}, v{S+2}, v{S+3}")]
    seq = [(None, f"v_add_u32 v{V_XL}, 64, v{V_XL}"), (None, f"v_lshrrev_b32 v{V_T}, 3, v{V_XL}"), (None, f"v_and_b32 v{V_T}, 32, v{V_T}"),
           (None, f"v_xor_b32 v{V_XB[0]}, v{V_XL}, v{V_T}"), (None, f"v_xor_b32 v{V_XB[1]}, 32, v{V_XB[0]}")]
    for j, r in enumerate(srow2):
        S = acc(r, 0)
        seq += cvt2(S, S, (r, 0))
        seq += [(None, f"v_mov_b32 v{V_PV}, {16 + j}"), (None, f"ds_write_b64 v{V_GB}, {vr(S,2)} offset:{r*SROW}"),
                (None, f"ds_write_b32 v{V_CP}, v{V_PV}")]
    kfull, seen = 0, set()
    for (r, t) in ptiles:
        S = acc(r, t)
        if r != lastrow:
            seq += cvt2(S, S, (r, t))
            pv = None
            if not (r in rows[1] and r in rows[2]): pv = 24
            elif r in seen:
                pv = 25 + kfull; kfull += 1
            seen.add(r)
            if pv: seq.append((None, f"v_mov_b32 v{V_PV}, {pv}"))
            seq.append((None, f"ds_write_b64 v{V_GA}, {vr(S,2)} offset:{r*SROW + (32 if t == 2 else 0)}"))
            if pv: seq.append((None, f"ds_write_b32 v{V_CP}, v{V_PV}"))
        elif t == 1:
            seq += cvt2(S, S, (r, t))
            seq.append((None, f"s_add_u32 s48, s47, {r*PROW}"))
        else:
            A = acc(r, 1)
            seq += cvt2(A + 2, S, (r, t))
            seq.append(("W2", f"v_permlane16_swap_b32 v{A}, v{A+2}"))
            seq.append((None, f"v_permlane16_swap_b32 v{A+1}, v{A+3}"))
            seq.append((None, f"buffer_store_dwordx4 {vr(A,4)}, v{V_SA}, s[24:27], s48 offen{cfg.stflag}"))
    assert kfull == 5
    def states(frm):
        c = 0
        for l in a.lines[frm + 1:]:
            l = l.strip()
            if l.endswith(":") or l.startswith(";") or l.startswith("."): continue
            c += int(l.split()[1]) + 1 if l.startswith("s_nop") else 1
        return c
    done_at = {}
    last_valu = [0]
    def missing(dep):
        if dep is None: return 0
        if dep == "W2": return max(0, 2 - states(last_valu[0]))
        if dep not in done_at: return None
        return max(0, 8 - states(done_at[dep]))
    nl = [0]
    def emit_ex(txt, k):
        for key, pat in (("C", "v_cvt"), ("P", "v_permlane"), ("V", "ds_write_b64"), ("F", "ds_write_b32"), ("S", "buffer_store")):
            if key in cfg.drop and txt.startswith(pat): return
        if txt.startswith("ds_"):
            nl[0] += 1; q.issue(("st", nl[0]), k, txt)
        else: a(txt)
        if txt.startswith("v_cvt"): last_valu[0] = len(a.lines) - 1
    for k, m in enumerate(ls):
        rho, i, t, qq, g, occ = m
        q.need(names(m), k)
        a(f"v_mfma_f32_16x16x32_bf16 {vr(acc(rho,t),4)}, {vr(regs[('w',g,i,t)],4)}, {vr(regs[('x',g,qq,occ)],4)}, {vr(acc(rho,t),4)}")
        if endk[(rho, t)] == k: done_at[(rho, t)] = len(a.lines) - 1
        cnt = 0
        if k in lplaced:
            q.issue(lplaced[k], k, rd_text(lplaced[k])); cnt += 1
        lim = cfg.exper if (k >= n2 - cfg.rush or k < 6) else 1
        if k < 6: cnt = 1
        while seq and cnt < lim and k < n2 - 1:
            miss = missing(seq[0][0])
            if miss == 0:
                emit_ex(seq.pop(0)[1], k); cnt += 1
            else:
                if miss is not None and miss > 1 and cnt == 0 and k >= n2 - cfg.fill: a("s_nop 1")
                break
    while seq:
        miss = missing(seq[0][0])
        if miss: a(f"s_nop {miss - 1}")
        emit_ex(seq.pop(0)[1], n2)
    if cfg.diag:
        stamp(a, 5)
        a("s_waitcnt vmcnt(0)")
        stamp(a, 6)
        a("s_branch L_dump")
    elif cfg.amp:
        if var == 0: a.label("L_ampall")
        a("s_waitcnt vmcnt(0)")
        a("s_memrealtime s[88:89]")
        a("s_waitcnt lgkmcnt(0)")
        if cfg.amp in ("span", "skew"):
            a("v_mov_b32 v4, 0")
            a("buffer_load_dwordx2 v[6:7], v4, s[80:83], 0 offen sc0 sc1")
            a("s_waitcnt vmcnt(0)")
            a("v_readfirstlane_b32 s86, v6")
            a("v_readfirstlane_b32 s58, v7")
            a("s_nop 3")
            a("s_not_b32 s58, s58")
        lo, hi = {"pro": (58, 86), "all": (58, 88), "loop": (86, 88), "none": (58, 58), "span": (58, 88), "skew": (58, 86), "stall": (58, 58)}[cfg.amp]
        a(f"s_sub_u32 s90, s{hi}, s{lo}")
        a("s_mul_i32 s90, s90, 10")
        if cfg.fixd: a(f"s_mov_b32 s90, {cfg.fixd}")
        if cfg.amp == "stall": a("s_mul_i32 s90, s85, 10")
        if cfg.onlyw >= 0:
            a(f"s_cmp_eq_u32 s32, {cfg.onlyw}")
            a("s_cselect_b32 s90, s90, 0")
        if cfg.onlyb >= 0:
            a(f"s_cmp_eq_u32 s2, {cfg.onlyb}")
            a("s_cselect_b32 s90, s90, 0")
        if cfg.addd: a(f"s_cselect_b32 s91, {cfg.addd}, 0"); a("s_add_u32 s90, s90, s91")
        if cfg.wbl2:
            a("buffer_wbl2 sc1")
        a.label(f"L_amp{var}")
        a("s_memrealtime s[76:77]")
        a("s_waitcnt lgkmcnt(0)")
        a("s_sub_u32 s91, s76, s88")
        a("s_cmp_lt_u32 s91, s90")
        a(f"s_cbranch_scc1 L_amp{var}")
        a("s_endpgm")
    else:
        a("s_endpgm")
    if cfg.amp == "stall":
        a.label(f"L_slow{var}")
        a("s_memrealtime s[76:77]")
        poll(a, f"L_slowb{var}", V_LF, V_F, "s49", 0)
        a("s_memrealtime s[78:79]")
        a("s_waitcnt lgkmcnt(0)")
        a("s_sub_u32 s78, s78, s76")
        if cfg.sg:
            a(f"s_cmp_eq_u32 s46, {cfg.sg}")
            a("s_cselect_b32 s78, s78, 0")
        a("s_add_u32 s85, s85, s78")
    else:
        poll(a, f"L_slow{var}", V_LF, V_F, "s49", 0)
    a("s_cmp_eq_u32 s46, 14")
    a(f"s_cbranch_scc1 L_fin{var}")
    a(f"s_branch L_top{var}")
    for lab, va, need, back in slow:
        poll(a, lab, va, V_F, need, 0)
        a(f"s_branch {back}")
    if cfg.entry_last: emit_entry()

def stamp(a, idx):
    a(f"s_memtime s[{60+2*idx}:{61+2*idx}]")
    if idx in (3, 5):
        a(f"s_memrealtime s[{86 if idx == 3 else 88}:{87 if idx == 3 else 89}]")
    a("s_waitcnt lgkmcnt(0)")

def dump_stamps(a, cfg):
    a.label("L_dump")
    a("s_memrealtime s[76:77]")
    a("s_getreg_b32 s78, hwreg(HW_REG_HW_ID)")
    a("s_getreg_b32 s79, hwreg(HW_REG_XCC_ID)")
    a("s_waitcnt lgkmcnt(0)")
    a("s_mov_b32 s80, s12")
    a("s_mov_b32 s81, s13")
    a("s_mov_b32 s82, 0x100000")
    a("s_mov_b32 s83, 0x20000")
    a("s_lshl_b32 s84, s2, 3")
    a("s_add_u32 s84, s84, s32")
    a("s_lshl_b32 s84, s84, 6")
    a("v_mov_b32 v4, 0")
    for k, s in enumerate([60, 62, 64, 66, 68, 70, 72, 74, 76, 77, 78, 79, 58, 59, 86, 88]):
        a(f"v_mov_b32 v5, s{s}")
        a(f"buffer_store_dword v5, v4, s[80:83], s84 offen offset:{4*k}")
        a("s_nop 1")
    a("v_and_b32 v1, 63, v0")
    a("v_lshlrev_b32 v4, 2, v1")
    a("v_cmp_gt_u32 vcc, 16, v1")
    a("s_and_saveexec_b64 s[92:93], vcc")
    a("s_lshl_b32 s84, s84, 2")
    a("s_add_u32 s84, s84, 0x40000")
    for k in range(3):
        a(f"buffer_store_dword v{44+k}, v4, s[80:83], s84 offen offset:{64*k}")
    a("s_waitcnt vmcnt(0)")
    a("s_endpgm")

def srd(a, d, p, size):
    a(f"s_mov_b32 s{d}, s{p}")
    a(f"s_and_b32 s{d+1}, s{p+1}, 0xffff")
    a(f"s_mov_b32 s{d+2}, {size}")
    a(f"s_mov_b32 s{d+3}, 0x20000")

def gen(cfg):
    a = Asm()
    hdr = open("standalone__dilated_atrous__vision.s.ref").read().splitlines()
    head = [l for l in hdr[:8] if l.startswith(";") and "@launch" not in l]
    out = "\n".join(head) + "\n"
    out += f"; @launch grid=(256,1,1) block=(512,1,1) lds={LDS_TOTAL}\n"
    out += f""".amdgcn_target "amdgcn-amd-amdhsa--gfx950"
.text
.globl {NAME}_kernel
{".p2align 12" + chr(10) if cfg.pg else ""}.p2align 8
.type {NAME}_kernel,@function
{NAME}_kernel:
"""
    def trace(reg, idx):
        if cfg.trace:
            a("s_memtime s[90:91]")
            a(f"s_mov_b32 m0, {idx}")
            a("s_waitcnt lgkmcnt(0)")
            a(f"v_writelane_b32 v{reg}, s90, m0")
    if cfg.diag:
        a("s_memtime s[60:61]")
        a("s_memrealtime s[58:59]")
        a("s_load_dwordx2 s[12:13], s[0:1], 32")
    if cfg.amp: a("s_memrealtime s[58:59]")
    if cfg.amp in ("span", "skew"): a("s_load_dwordx2 s[12:13], s[0:1], 24")
    a("s_load_dwordx4 s[4:7], s[0:1], 0")
    a("s_load_dwordx2 s[8:9], s[0:1], 16")
    if WD: a("s_mov_b32 s94, 0")
    a("s_cmp_ge_u32 s2, 256")
    a("s_cbranch_scc1 L_exit")
    if cfg.lx < 0:
        a("s_and_b32 s28, s2, 1")
        a("s_bfe_u32 s3, s2, 0x20001")
        a("s_lshl_b32 s3, s3, 5")
        a("s_lshr_b32 s33, s2, 3")
        a("s_add_u32 s3, s3, s33")
        a("s_cmp_ge_u32 s3, 126")
        a("s_cbranch_scc1 " + ("L_help" if cfg.help else "L_exit"))
    else:
        a("s_and_b32 s3, s2, 7")
        a(f"s_sub_u32 s3, s3, {cfg.lx + 1}")
        a("s_and_b32 s3, s3, 7")
        a("s_lshl_b32 s3, s3, 5")
        a("s_lshr_b32 s33, s2, 3")
        a("s_add_u32 s3, s3, s33")
        a("s_cmp_ge_u32 s3, 252")
        a("s_cbranch_scc1 L_exit")
        a("s_cmp_ge_u32 s3, 224")
        a("s_cselect_b32 s33, 14, 112")
        a("s_cselect_b32 s34, 224, 0")
        a("s_cselect_b32 s29, 112, 0")
        a("s_sub_u32 s3, s3, s34")
        a("s_cmp_ge_u32 s3, s33")
        a("s_cselect_b32 s28, 1, 0")
        a("s_cselect_b32 s33, s33, 0")
        a("s_sub_u32 s3, s3, s33")
        a("s_add_u32 s3, s3, s29")
    a("v_lshrrev_b32 v2, 6, v0")
    a("v_and_b32 v1, 63, v0")
    a("v_readfirstlane_b32 s32, v2")
    a("v_lshlrev_b32 v30, 2, v0")
    a(f"v_add_u32 v30, {FLAGS}, v30")
    a("v_mov_b32 v31, 0")
    a("ds_write_b32 v30, v31")
    a("s_mul_i32 s33, s3, 4682")
    a("s_lshr_b32 s33, s33, 16")
    a("s_mul_i32 s34, s33, 14")
    a("s_sub_u32 s34, s3, s34")
    a("s_and_b32 s29, s34, 1")
    a("s_lshr_b32 s30, s34, 1")
    a("s_lshl_b32 s30, s30, 4")
    a("s_mul_i32 s31, s33, 25")
    a("s_lshr_b32 s31, s31, 1")
    a("s_and_b32 s34, s33, 1")
    a("s_lshl_b32 s35, s31, 1")
    a("s_add_u32 s35, s35, s28")
    a(f"s_mul_i32 s35, s35, {ROWB}")
    a("s_lshl_b32 s36, s30, 1")
    a("s_add_u32 s36, s36, s29")
    a("s_mul_i32 s36, s36, 192")
    a("s_lshl_b32 s52, s29, 1")
    a("s_sub_u32 s52, 2, s52")
    if cfg.order == 1: a("s_mov_b32 s3, s34")
    elif cfg.order == 2: a("s_mov_b32 s3, 1")
    elif cfg.order == 3: a("s_mov_b32 s3, 0")
    elif cfg.order == 4:
        a("s_and_b32 s3, s2, 0x30")
        a("s_min_u32 s3, s3, 1")
    a("s_cmp_ge_u32 s32, 4")
    if cfg.cpf:
        a("s_cbranch_scc0 L_ld")
        a("s_bfe_u32 s31, s32, 0x10001")
        a("s_lshl1_add_u32 s31, s34, s31")
        a("s_cmp_eq_u32 s33, 8")
        a("s_cselect_b32 s31, 3, s31")
        a("s_getpc_b64 s[38:39]")
        a.label("L_pc")
        a("s_lshr_b32 s37, s2, 1")
        a("s_and_b32 s37, s37, 0x7c")
        a("s_add_u32 s37, s37, s32")
        a("s_min_u32 s37, s37, (L_end-L_pc)/256")
        a("s_lshl_b32 s37, s37, 8")
        a("s_add_u32 s38, s38, s37")
        a("s_addc_u32 s39, s39, 0")
        a("v_mov_b32 v12, s38")
        a("v_mov_b32 v13, s39")
        a("global_load_dword v14, v[12:13], off")
        a("global_load_dword v15, v[12:13], off offset:128")
        if cfg.pads:
            if cfg.pad4:
                a("s_cmp_eq_u32 s32, 4")
                a("s_cbranch_scc1 L_padl")
            a("s_bitcmp1_b32 s32, 0")
            a("s_cbranch_scc0 L_compute")
            a("s_cmp_eq_u32 s31, 0")
            a("s_cbranch_scc1 L_pad0")
            a("s_cmp_eq_u32 s31, 1")
            a("s_cbranch_scc1 L_pad1")
            a("s_cmp_eq_u32 s31, 2")
            a("s_cbranch_scc1 L_pad2")
            a("s_branch L_pad3")
        else:
            a("s_branch L_compute")
        a.label("L_ld")
    else:
        a("s_cbranch_scc1 L_compute")
    if cfg.bench:
        a("v_mov_b32 v31, 100")
        a("ds_write_b32 v30, v31")
        a("s_waitcnt lgkmcnt(0)")
        a("s_barrier")
        a("s_branch L_dump")
    a("s_add_u32 s37, s35, s36")
    a(f"s_sub_u32 s37, s37, {2*PROW + 2*384}")
    a("s_sub_u32 s38, s30, 2")
    a("s_cmp_eq_u32 s29, 0")
    a("s_cselect_b32 s14, 32, -32")
    a("s_cselect_b32 s15, 0, 320")
    a(f"s_mul_i32 s10, s14, {8*PROW//32}")
    a("s_and_b32 s11, s32, 1")
    a("s_lshl_b32 s39, s11, 4")
    a("s_add_u32 s15, s15, s39")
    a("v_lshrrev_b32 v13, 2, v1")
    a("v_add_u32 v13, s15, v13")
    a("v_lshrrev_b32 v14, 3, v1")
    a("v_and_b32 v14, 2, v14")
    a("v_and_b32 v15, 3, v1")
    a("v_xor_b32 v14, v14, v15")
    a("v_lshlrev_b32 v14, 4, v14")
    a("v_add_u32 v14, s37, v14")
    a("v_bfrev_b32 v19, 1")
    a("s_movk_i32 s39, 3277")
    a(f"s_mov_b32 s49, {PROW}")
    a("s_movk_i32 s50, 384")
    a("s_movk_i32 s51, 112")
    for b in range(5):
        a("v_mul_u32_u24 v15, s39, v13")
        a("v_lshrrev_b32 v15, 16, v15")
        a("v_mul_u32_u24 v16, 20, v15")
        a("v_sub_u32 v16, v13, v16")
        a("v_add_u32 v17, s38, v16")
        a("v_cmp_gt_u32 vcc, s51, v17")
        a("v_mad_u32_u24 v18, v15, s49, v14")
        a("v_mad_u32_u24 v18, v16, s50, v18")
        a(f"v_cndmask_b32 v{2+b}, v19, v18, vcc")
        if b < 4: a("v_add_u32 v13, s14, v13")
        a(f"v_add_u32 v{7+b}, s10, v{2+b}")
    a("v_add_u32 v12, s10, v7")
    a("s_lshl_b32 s57, s52, 6")
    a("s_lshl_b32 s56, s15, 6")
    a("s_lshl_b32 s14, s14, 6")
    a("v_lshlrev_b32 v20, 4, v1")
    a("v_cmp_gt_u32 vcc, 32, v1")
    a("v_xor_b32 v22, 32, v20")
    a("s_lshr_b32 s39, s2, 3")
    a("v_cndmask_b32 v21, v22, v20, vcc")
    a("s_and_b32 s39, s39, 30")
    a("s_mul_i32 s38, s11, 5")
    a("s_add_u32 s39, s39, s38")
    a("s_mul_i32 s38, s39, 26")
    a("s_lshr_b32 s38, s38, 8")
    a("s_mul_i32 s38, s38, 10")
    a("s_sub_u32 s39, s39, s38")
    a("s_mul_i32 s40, s39, 3072")
    a("s_lshr_b32 s41, s39, 1")
    a(f"s_mul_i32 s41, s41, {92160 - 6144}")
    a("s_add_u32 s41, s41, s40")
    a("s_movk_i32 s42, 3072")
    a("s_bitcmp1_b32 s39, 0")
    a(f"s_cselect_b32 s42, {92160 - 3072}, s42")
    a("s_mov_b32 s43, 4")
    a("s_cmp_ge_u32 s32, 2")
    a("s_cselect_b32 s95, 1, 0")
    a(f"s_mul_i32 s54, s95, {WBUF}")
    a(f"s_add_u32 s54, s54, {WBASE}")
    a("s_mul_i32 s37, s95, 3")
    a("s_add_u32 s37, s37, s52")
    a("s_mul_i32 s37, s37, 6144")
    a("s_mov_b32 s55, 0")
    a("s_mov_b32 s15, 15")
    a("s_waitcnt lgkmcnt(0)")
    if cfg.diag: stamp(a, 1)
    srd(a, 16, 4, XBYTES)
    srd(a, 20, 6, WBYTES)
    if cfg.order:
        a("s_cmp_eq_u32 s95, s3")
        a("s_cbranch_scc1 L_go")
        a("s_barrier")
        a.label("L_go")
    a("s_cmp_eq_u32 s95, 1")
    a("s_cbranch_scc0 L_w_it")
    a.label("L_x_loop")
    for blk in range(4):
        a(f"s_bitcmp1_b32 s15, {blk}")
        a(f"s_cbranch_scc0 " + (f"L_x{blk}" if blk < 3 else "L_x_next"))
        for k in range(3 * blk, min(3 * blk + 3, 11)):
            a("s_mov_b32 m0, s56")
            a("s_add_u32 s56, s56, s14")
            a(f"buffer_load_dwordx4 v{2+k}, s[16:19], s57 offen{cfg.xflag} lds")
        if blk < 3: a.label(f"L_x{blk}")
    a("s_cmp_lg_u32 s55, 0")
    a("s_cbranch_scc1 L_x_sig")
    if cfg.diag: stamp(a, 2)
    if cfg.order:
        a("s_cmp_eq_u32 s3, 0")
        a("s_cbranch_scc1 L_x_nb")
    a("s_barrier")
    a.label("L_x_nb")
    a("v_mov_b32 v26, 1")
    a("s_waitcnt vmcnt(0)")
    a("ds_write_b32 v30, v26")
    trace(45, 0)
    a.label("L_w_it")
    a("s_add_u32 m0, s54, s40")
    a("s_add_u32 s50, s37, s41")
    for k in range(3):
        a(f"buffer_load_dwordx4 v{20+k}, s[20:23], s50 offen offset:{k*1024}{cfg.wflag} lds")
    a("s_addk_i32 s40, 3072")
    a("s_add_u32 s41, s41, s42")
    a(f"s_xor_b32 s42, s42, {3072 ^ (92160 - 3072)}")
    a(f"s_cmpk_eq_u32 s40, {WBUF}")
    a("s_cselect_b32 s40, 0, s40")
    a("s_cselect_b32 s41, 0, s41")
    a("s_sub_u32 s43, s43, 1")
    a("s_cbranch_scc0 L_w_it")
    a("s_cmp_lg_u32 s55, 0")
    a("s_cbranch_scc1 L_w_adv")
    a("s_cmp_eq_u32 s95, 1")
    a("s_cbranch_scc1 L_x_w1")
    if cfg.order:
        a("s_cmp_eq_u32 s3, 1")
        a("s_cbranch_scc1 L_w_nb1")
    a("s_barrier")
    a.label("L_w_nb1")
    a("s_mov_b32 s55, s32")
    a("s_mov_b32 s53, s32")
    a(f"s_mul_i32 s50, s32, {WBUF}")
    a("s_add_u32 s54, s54, s50")
    a("v_mov_b32 v31, s32")
    a.label("L_w_adv")
    trace(44, "s55")
    a("v_add_u32 v31, 2, v31")
    a("s_waitcnt vmcnt(0)")
    a("ds_write_b32 v30, v31")
    trace(45, "s55")
    a(f"s_sub_u32 s54, s54, {WBUF}")
    a(f"s_cmp_lt_u32 s54, {WBASE}")
    a(f"s_cselect_b32 s50, {3*WBUF}, 0")
    a("s_add_u32 s54, s54, s50")
    a("s_add_u32 s53, s53, 2")
    a("s_cmp_ge_u32 s53, 5")
    a("s_cselect_b32 s50, 5, 0")
    a("s_sub_u32 s53, s53, s50")
    a("s_lshr_b32 s50, s50, 2")
    a("s_add_u32 s52, s52, s50")
    a("s_cmp_eq_u32 s52, 3")
    a("s_cselect_b32 s52, 0, s52")
    a("s_mul_i32 s37, s53, 3")
    a("s_add_u32 s37, s37, s52")
    a("s_mul_i32 s37, s37, 6144")
    a("s_mov_b32 s43, 9")
    a("s_mov_b32 s51, s55")
    a("s_add_u32 s55, s55, 2")
    a("s_cmp_eq_u32 s51, 0")
    a("s_cbranch_scc1 L_w_it")
    a("s_cmp_ge_u32 s55, 15")
    a("s_cbranch_scc1 L_store")
    a("v_and_b32 v23, 3, v1")
    a("v_lshlrev_b32 v23, 8, v23")
    a(f"v_add_u32 v23, {FLAGS + 1024}, v23")
    poll(a, "L_w_poll", 23, 24, "s51", cfg.sleep)
    trace(46, "s55")
    a("s_branch L_w_it")
    if cfg.pad4:
        a.label("L_padl")
        a("s_branch L_compute")
    a.label("L_x_w1")
    C = sum(((thr << 4) | m) << (8 * k) for k, (thr, m) in enumerate(cfg.xb))
    assert len(cfg.xb) <= 8
    a(f"s_mov_b32 s92, {C & 0xffffffff:#x}")
    a(f"s_mov_b32 s93, {C >> 32:#x}")
    a("s_mov_b32 s55, 1")
    if cfg.trace: a("s_mov_b32 s51, 1")
    a.label("L_x_sig")
    a("v_add_u32 v31, 5, v31")
    a("s_waitcnt vmcnt(0)")
    a("ds_write_b32 v30, v31")
    trace(45, "s51")
    a("s_mul_i32 s50, s14, -11")
    a("s_add_u32 s56, s56, s50")
    a(f"s_add_u32 s56, s56, {XCH}")
    a("s_add_u32 s57, s57, 64")
    a("s_cmp_eq_u32 s57, 192")
    a("s_cselect_b32 s57, 0, s57")
    a.label("L_x_next")
    a("s_and_b32 s15, s92, 15")
    a("s_cbranch_scc0 L_store")
    a("s_bfe_u32 s51, s92, 0x40004")
    a("s_lshr_b64 s[92:93], s[92:93], 8")
    a("v_and_b32 v22, 1, v1")
    a(f"v_lshlrev_b32 v22, 8, v22")
    a(f"v_add_u32 v22, {FLAGS}, v22")
    poll(a, "L_x_poll", 22, 23, "s51", cfg.sleep)
    trace(44, "s51")
    a("s_branch L_x_loop")
    if cfg.help:
        a.label("L_help")
        a("v_and_b32 v1, 63, v0")
        a("v_lshrrev_b32 v2, 6, v0")
        a("v_mul_u32_u24 v3, 43, v1")
        a("v_readfirstlane_b32 s32, v2")
        a("v_lshrrev_b32 v3, 9, v3")
        a("v_mul_u32_u24 v4, 12, v3")
        a("v_sub_u32 v4, v1, v4")
        a("v_mul_u32_u24 v3, 92160, v3")
        a("v_lshl_add_u32 v3, v4, 7, v3")
        a("s_and_b32 s33, s2, 1")
        a("s_and_b32 s3, s3, 1")
        a("s_lshl1_add_u32 s33, s3, s33")
        a("s_mulk_i32 s33, 1536")
        a("s_lshr_b32 s34, s32, 1")
        a("s_add_u32 s34, s34, 1")
        a("s_mul_i32 s34, s34, 3")
        a("s_and_b32 s35, s32, 1")
        a("s_lshl1_add_u32 s34, s35, s34")
        a("s_mulk_i32 s34, 6144")
        a("s_add_u32 s34, s34, s33")
        a("s_min_u32 s35, s32, 4")
        a("s_mul_i32 s35, s35, 3")
        a("s_add_u32 s35, s35, 1")
        a("s_mulk_i32 s35, 6144")
        a("s_add_u32 s35, s35, s33")
        a("s_waitcnt lgkmcnt(0)")
        srd(a, 20, 6, WBYTES)
        a("buffer_load_dword v5, v3, s[20:23], s34 offen")
        a("buffer_load_dword v6, v3, s[20:23], s35 offen")
        a("s_waitcnt vmcnt(0)")
        a("s_endpgm")
    a.label("L_store")
    srd(a, 24, 8, XBYTES)
    a("s_movk_i32 s49, 208")
    a("s_movk_i32 s50, 384")
    a("v_lshrrev_b32 v11, 2, v1")
    a("v_and_b32 v12, 3, v1")
    a("v_lshlrev_b32 v12, 4, v12")
    a("v_mad_u32_u24 v5, v11, s50, v12")
    a("v_mad_u32_u24 v2, v11, s49, v12")
    a("v_and_b32 v10, 1, v1")
    a("v_lshlrev_b32 v10, 8, v10")
    a("s_lshl_b32 s39, s95, 9")
    a(f"s_add_u32 s39, s39, {FLAGS + 1024}")
    a("v_add_u32 v10, s39, v10")
    a("s_add_u32 s45, s35, s36")
    a("s_or_b32 s38, s34, s95")
    a("s_cmp_eq_u32 s33, 8")
    a("s_cselect_b32 s38, 1, s38")
    a("s_cselect_b32 s43, 6, 7")
    a("s_xor_b32 s38, s38, 1")
    a("s_andn2_b32 s44, s34, s95")
    a("s_add_u32 s39, s34, 6")
    a("s_mul_i32 s39, s39, s95")
    a("s_add_u32 s39, s39, s44")
    a("s_add_u32 s39, s39, 5")
    a("s_cmp_eq_u32 s38, 1")
    a("s_cselect_b32 s39, 0, s39")
    a("s_cselect_b32 s42, 1, -1")
    def rowsetup():
        a("s_mul_i32 s40, s11, s42")
        a("s_add_u32 s39, s39, s40")
        a(f"s_mul_i32 s47, s39, {PROW}")
        a("s_add_u32 s47, s47, s45")
        a(f"s_mul_i32 s48, s39, {SROW}")
        a("v_add_u32 v12, s48, v2")
        a(f"s_mul_i32 s40, s42, {2*PROW}")
        a(f"s_mul_i32 s41, s42, {2*SROW}")
    rowsetup()
    a("s_add_u32 s51, s11, 16")
    a("s_add_u32 s44, s44, 22")
    a.label("L_st_m")
    poll(a, "L_st_mp", 10, 11, "s51", cfg.sleep)
    a(f"ds_read_b128 {vr(16,4)}, v12 offset:64")
    a("v_add_u32 v12, s41, v12")
    a("s_add_u32 s51, s51, 2")
    a("s_waitcnt lgkmcnt(0)")
    a(f"buffer_store_dwordx4 {vr(16,4)}, v5, s[24:27], s47 offen offset:64{cfg.stflag}")
    a("s_add_u32 s47, s47, s40")
    a("s_cmp_lt_u32 s51, s44")
    a("s_cbranch_scc1 L_st_m")
    if cfg.stprio: a(f"s_setprio {cfg.stprio}")
    a("s_cmp_eq_u32 s95, 1")
    a("s_cselect_b32 s39, s43, s34")
    a("s_cmp_eq_u32 s38, 1")
    a("s_cselect_b32 s39, 5, s39")
    a("s_sub_u32 s42, 0, s42")
    rowsetup()
    a("s_add_u32 s51, s11, 25")
    a("s_and_b32 s38, s38, s11")
    a("s_cbranch_scc0 L_st_go")
    a("v_and_b32 v28, 3, v1")
    a("v_lshlrev_b32 v28, 8, v28")
    a(f"v_add_u32 v28, {FLAGS + 1024}, v28")
    a(f"s_add_u32 s45, s45, {6*PROW}")
    poll(a, "L_st_s1", 28, 11, 24, cfg.sleep2)
    for k in range(2): a(f"ds_read_b128 {vr(16+4*k,4)}, v2 offset:{6*SROW + 128*k}")
    for k in range(2):
        a(f"s_waitcnt lgkmcnt({1-k})")
        a(f"buffer_store_dwordx4 {vr(16+4*k,4)}, v5, s[24:27], s45 offen offset:{128*k}{cfg.stflag}")
    a.label("L_st_go")
    poll(a, "L_st_p1", 10, 11, "s51", cfg.sleep2)
    for k in range(2): a(f"ds_read_b128 {vr(16+4*k,4)}, v12 offset:{128*k}")
    a("v_add_u32 v12, s41, v12")
    a("s_add_u32 s51, s51, 2")
    for k in range(2):
        a(f"s_waitcnt lgkmcnt({1-k})")
        a(f"buffer_store_dwordx4 {vr(16+4*k,4)}, v5, s[24:27], s47 offen offset:{128*k}{cfg.stflag}")
    a("s_add_u32 s47, s47, s40")
    a("s_cmp_lt_u32 s51, 30")
    a("s_cbranch_scc1 L_st_go")
    a.label("L_st_end")
    if cfg.amp == "all": a("s_branch L_ampall")
    if cfg.diag:
        stamp(a, 5)
        a("s_waitcnt vmcnt(0)")
        stamp(a, 6)
        dump_stamps(a, cfg)
    a.label("L_exit")
    a("s_endpgm")
    a.label("L_compute")
    if cfg.cbar == 0:
        a("s_waitcnt lgkmcnt(0)")
        a("s_barrier")
    a("s_sub_u32 s37, s32, 4")
    a("s_and_b32 s38, s37, 1")
    a("s_lshr_b32 s37, s37, 1")
    a("s_add_u32 s39, s34, 6")
    a("s_mul_i32 s49, s37, s39")
    a(f"v_mov_b32 v{V_CP}, v30")
    a(f"v_mov_b32 v{V_PV}, 0")
    a("v_and_b32 v32, 15, v1")
    a("v_lshrrev_b32 v33, 4, v1")
    a("v_and_b32 v34, 1, v33")
    a("v_lshrrev_b32 v35, 1, v33")
    a("v_bfe_u32 v36, v1, 2, 2")
    a("v_and_b32 v37, 3, v1")
    a(f"v_lshlrev_b32 v{V_LF}, 8, v37")
    a(f"v_add_u32 v{V_LF}, {FLAGS}, v{V_LF}")
    a(f"v_or_b32 v16, 512, v{V_LF}")
    a(f"v_xor_b32 v17, 512, v16")
    a("s_lshl_b32 s39, s38, 7")
    a("v_lshlrev_b32 v40, 5, v34")
    a("v_lshl_add_u32 v40, v35, 4, v40")
    a("v_add_u32 v40, s39, v40")
    a("s_lshl_b32 s39, s38, 5")
    a("s_add_u32 s39, s39, 64")
    a("v_lshlrev_b32 v41, 3, v33")
    a("v_add_u32 v41, s39, v41")
    a("v_mul_u32_u24 v38, 384, v32")
    a("v_add_u32 v38, s36, v38")
    a(f"v_add_u32 v{V_SA}, v38, v40")
    a(f"v_add_u32 v{V_SC}, v38, v41")
    a("v_mul_u32_u24 v38, 208, v32")
    a(f"s_mul_i32 s39, s49, {SROW}")
    a("v_add_u32 v38, s39, v38")
    a("s_lshl_b32 s39, s38, 7")
    a(f"v_lshl_add_u32 v{V_GA}, v33, 3, v38")
    a(f"v_add_u32 v{V_GA}, s39, v{V_GA}")
    a(f"v_add_u32 v{V_GB}, v38, v41")
    a(f"s_mul_i32 s47, s49, {PROW}")
    a("s_add_u32 s47, s47, s35")
    a("v_lshl_add_u32 v38, v33, 3, v36")
    a("v_mul_u32_u24 v38, 192, v38")
    a("v_lshl_add_u32 v38, v37, 3, v38")
    a(f"v_add_u32 v38, {WBASE}, v38")
    a("s_add_u32 s39, s38, 2")
    a("v_xor_b32 v39, s39, v34")
    a(f"v_lshl_add_u32 v{V_WA[0]}, v39, 5, v38")
    a("s_lshl_b32 s39, s38, 2")
    a("v_xor_b32 v39, s39, v34")
    a(f"v_lshl_add_u32 v{V_WA[1]}, v39, 5, v38")
    a("v_xor_b32 v39, 1, v39")
    a(f"v_lshl_add_u32 v{V_WA[2]}, v39, 5, v38")
    a("v_lshlrev_b32 v38, 6, v32")
    a("v_lshl_add_u32 v38, v33, 4, v38")
    a(f"s_mul_i32 s39, s49, {XROW}")
    a(f"v_add_u32 v{V_XL}, s39, v38")
    a(f"v_lshrrev_b32 v{V_T}, 3, v{V_XL}")
    a(f"v_and_b32 v{V_T}, 32, v{V_T}")
    a(f"v_xor_b32 v{V_XA[0]}, v{V_XL}, v{V_T}")
    a(f"v_xor_b32 v{V_XA[1]}, 32, v{V_XA[0]}")
    if cfg.mov64:
        for k in range(0, 84, 2): a(f"v_mov_b64 {vr(V_ACC+k,2)}, 0")
    else:
        for k in range(84): a(f"v_mov_b32 v{V_ACC+k}, 0")
    a(f"s_mov_b32 s40, {(1 << 6) | (1 << 11)}")
    a(f"s_mov_b32 s41, {sum(1 << (h + 1) for h in (3, 6, 9, 12))}")
    a(f"s_mov_b32 s44, {(-2*WBUF) & 0xffffffff}")
    a(f"s_mov_b32 s45, {WBUF}")
    a("s_mov_b32 s46, 2")
    if cfg.amp == "stall": a("s_mov_b32 s85, 0")
    if cfg.cbar == 1:
        a("s_waitcnt lgkmcnt(0)")
        a("s_barrier")
    if cfg.diag: stamp(a, 1)
    srd(a, 24, 8, XBYTES)
    if cfg.prio: a(f"s_setprio {cfg.prio}")
    if cfg.amp in ("span", "skew"): srd(a, 80, 12, 256)
    for var in (1, 2, 3):
        a(f"s_cmp_eq_u32 s31, {var}")
        a(f"s_cbranch_scc1 L_pro{var}")
    if cfg.pads: a("s_branch L_pro0")
    for var in range(4):
        emit_variant(a, var, cfg)
    a.label("L_end")
    for _ in range(100): a("s_endpgm")
    out += a.text()
    nv = (V_END + 7) // 8 * 8
    out += f""".section .rodata,"a"
.p2align 6
.amdhsa_kernel {NAME}_kernel
  .amdhsa_next_free_vgpr {nv}
  .amdhsa_next_free_sgpr 96
  .amdhsa_accum_offset {nv}
  .amdhsa_group_segment_fixed_size 0
  .amdhsa_kernarg_size 40
  .amdhsa_user_sgpr_count 2
  .amdhsa_user_sgpr_kernarg_segment_ptr 1
  .amdhsa_system_sgpr_workgroup_id_x 1
.end_amdhsa_kernel
"""
    return out

if __name__ == "__main__":
    p = argparse.ArgumentParser()
    p.add_argument("-o", default="standalone__dilated_atrous__vision.s")
    p.add_argument("--diag", action="store_true")
    p.add_argument("--trace", action="store_true")
    p.add_argument("--bar_pos", type=int, default=58)
    p.add_argument("--xbar", type=int, default=40)
    p.add_argument("--lead", type=int, default=5)
    p.add_argument("--safe", type=int, default=8)
    p.add_argument("--prio", type=int, default=1)
    p.add_argument("--align", type=int, default=1)
    p.add_argument("--snake", type=int, default=1)
    p.add_argument("--exper", type=int, default=2)
    p.add_argument("--order", type=int, default=1)
    p.add_argument("--wpf", type=int, default=0)
    p.add_argument("--epf", type=int, default=0)
    p.add_argument("--cpf", type=int, default=1)
    p.add_argument("--sleep", type=int, default=2)
    p.add_argument("--sleep2", type=int, default=0)
    p.add_argument("--stflag", default="sc0 sc1 nt")
    p.add_argument("--wd", type=int, default=1)
    p.add_argument("--amp", default="")
    p.add_argument("--sg", type=int, default=0)
    p.add_argument("--addd", type=int, default=0)
    p.add_argument("--onlyw", type=int, default=-1)
    p.add_argument("--onlyb", type=int, default=-1)
    p.add_argument("--help2", dest="help", type=int, default=0)
    p.add_argument("--pg", type=int, default=1)
    p.add_argument("--alead", type=int, default=20)
    p.add_argument("--entry_last", type=int, default=0)
    p.add_argument("--pad4", type=int, default=0)
    p.add_argument("--lx", type=int, default=-1)
    p.add_argument("--al8", type=int, default=0)
    p.add_argument("--shift4", type=int, default=0)
    p.add_argument("--rush", type=int, default=30)
    p.add_argument("--fill", type=int, default=0)
    p.add_argument("--pads", type=int, default=1)
    p.add_argument("--nstage", type=int, default=5)
    p.add_argument("--spec", type=int, default=1)
    p.add_argument("--stprio", type=int, default=0)
    p.add_argument("--mov64", type=int, default=1)
    p.add_argument("--xflag", default="")
    p.add_argument("--wflag", default="")
    p.add_argument("--fixd", type=int, default=0)
    p.add_argument("--wbl2", type=int, default=0)
    p.add_argument("--bench", action="store_true")
    p.add_argument("--drop", default="")
    p.add_argument("--cmpd", type=int, default=4)
    p.add_argument("--updstep", type=int, default=1)
    p.add_argument("--xthr", type=int, default=2)
    p.add_argument("--cbar", type=int, default=0)
    p.add_argument("--w2wait", type=int, default=1)
    p.add_argument("--xb", default="3:1,4:2,5:4,6:8,8:3,9:12")
    cfg = p.parse_args()
    cfg.xb = [tuple(int(v) for v in e.split(":")) for e in cfg.xb.split(",")]
    WD = cfg.wd
    if cfg.stflag: cfg.stflag = " " + cfg.stflag
    if cfg.xflag: cfg.xflag = " " + cfg.xflag
    if cfg.wflag: cfg.wflag = " " + cfg.wflag
    open(cfg.o, "w").write(gen(cfg))
```

```python
import sys, argparse

NAME = "standalone__dilated_atrous__vision"
XBYTES = 224 * 224 * 96 * 2
WBYTES = 25 * 96 * 96 * 2
ROWB = 224 * 192
PROW = 2 * ROWB
XCH = 352 * 64
XROW = 20 * 64
WBASE = 3 * XCH
WBUF = 5 * 6144
FLAGS = WBASE + 3 * WBUF
LDS_TOTAL = FLAGS + 2048
SROW = 16 * 208
assert 13 * SROW <= 2 * XCH

class Asm:
    def __init__(self):
        self.lines = []
    def __call__(self, s):
        self.lines.append("    " + s)
    def label(self, l):
        self.lines.append(l + ":")
    def comment(self, s):
        self.lines.append("    ; " + s)
    def text(self):
        return "\n".join(self.lines) + "\n"

def vr(b, n):
    return f"v[{b}:{b+n-1}]"

V_XL = 1
V_XA = (2, 3)
V_WA = (4, 5, 6)
V_SA, V_SC = 7, 8
V_GA, V_GB = 9, 10
V_T = 11
V_XB = (22, 23)
V_CP = 25
V_LF = 26
V_PV = 27
V_F = 28
V_X = 32
V_W = 76
V_ACC = 136
V_EXTRA = V_ACC + 84
V_END = V_EXTRA + 32

TYPES = {
    0: (range(0, 6), range(0, 7), range(0, 6)),
    1: (range(0, 6), range(1, 7), range(0, 7)),
    2: (range(0, 7), range(1, 7), range(1, 7)),
    3: (range(0, 6), range(0, 6), range(0, 6)),
}
OFF = {0: 0, 1: 1, 2: 1, 3: 0}
SPECIAL = {0: 6, 1: 0, 2: 0, 3: None}
LASTHEAD = {
    0: [(0, 0), (0, 1), (6, 1), (0, 2)],
    1: [(0, 0), (1, 0), (1, 1), (0, 2), (1, 2)],
    2: [(0, 0), (1, 0), (1, 1), (2, 0), (1, 2), (2, 1), (2, 2)],
    3: [(0, 0), (0, 1), (1, 0), (0, 2), (1, 1), (1, 2)],
}

def acc(rho, t): return V_ACC + 4 * (rho * 3 + t)
def wreg(i, t): return V_W + 4 * (i * 3 + t)
def xreg(q): return V_X + 4 * q

def chain(rho, t, rev):
    r = list(range(5))
    if rev: r.reverse()
    return [(rho, i, t, rho + i) for i in r]

def steady_order(var, cfg, par=(1, 1, 1)):
    ms = []
    for t in range(3):
        for j, rho in enumerate(TYPES[var][t]): ms += chain(rho, t, cfg.snake and j % 2 == par[t])
    return ms

DIRECT = {0: (5,), 1: (6, 5), 2: (6,), 3: (5,)}

def last_tiles(var):
    order = list(LASTHEAD[var])
    rows = [r for r in range(7) if r not in DIRECT[var]] + list(DIRECT[var])
    for r in rows:
        for t in ((0, 1, 2) if r not in DIRECT[var] else (1, 2, 0)):
            if r in TYPES[var][t] and (r, t) not in order: order.append((r, t))
    return order

def last_order(var, cfg, par=1):
    ms = []
    for j, (r, t) in enumerate(last_tiles(var)): ms += chain(r, t, cfg.snake and j % 2 == par and j >= 4)
    return ms

def uses(ms):
    first, last = {}, {}
    for k, (rho, i, t, q) in enumerate(ms):
        for key in (("w", i, t, 0), ("w", i, t, 1), ("x", q)):
            first.setdefault(key, k); last[key] = k
    return first, last

def read_text(nm):
    if nm[0] == "x":
        q = nm[1]
        return f"ds_read_b128 {vr(xreg(q),4)}, v{V_XA[q & 1]} offset:{q*XROW}"
    _, i, t, h = nm
    return f"ds_read_b64_tr_b16 {vr(wreg(i,t)+2*h,2)}, v{V_WA[t]} offset:{i*6144 + h*768}"

def edf(reads, lo, hi, lead, busy=()):
    placed, pending = {}, list(reads)
    for k in range(lo, hi):
        avail = [r for r in pending if r[1] <= k]
        if not avail: continue
        r = min(avail, key=lambda r: r[2])
        placed[k] = r[0]
        pending.remove(r)
        assert r[2] - k >= lead, (r, k)
    assert not pending, pending
    return placed

def mfma_text(m):
    rho, i, t, q = m
    return f"v_mfma_f32_16x16x32_bf16 {vr(acc(rho,t),4)}, {vr(wreg(i,t),4)}, {vr(xreg(q),4)}, {vr(acc(rho,t),4)}"

class LdsQ:
    def __init__(self, a, safe):
        self.a, self.safe = a, safe
        self.ops = []
        self.done = 0
        self.waits = []
    def issue(self, name, time, text=None):
        self.ops.append((name, time))
        if text: self.a(text)
    def need(self, names, time):
        idx = max(max(j for j, (nm, _) in enumerate(self.ops) if nm == n) for n in names) + 1
        if idx <= self.done: return
        for j, (nm, tm) in enumerate(self.ops):
            if tm <= time - 1 - self.safe: idx = max(idx, j + 1)
        cnt = len(self.ops) - idx
        if cnt > 14:
            idx += cnt - 14; cnt = 14
        self.a(f"s_waitcnt lgkmcnt({cnt})")
        self.waits.append((time, cnt, len(self.ops)))
        self.done = idx

WD = 1
def poll(a, label, vaddr, vtmp, sneed, sleep, wd=True):
    a.label(label)
    if WD and wd:
        a("s_add_u32 s94, s94, 1")
        a("s_bitcmp1_b32 s94, 18")
        a("s_cbranch_scc1 L_exit")
    a(f"ds_read_b32 v{vtmp}, v{vaddr}")
    a("s_waitcnt lgkmcnt(0)")
    a(f"v_cmp_gt_u32 vcc, {sneed}, v{vtmp}")
    if sleep:
        a(f"s_cbranch_vccz {label}_ok")
        a(f"s_sleep {sleep}")
        a(f"s_branch {label}")
        a.label(label + "_ok")
    else:
        a(f"s_cbranch_vccnz {label}")

def isize(l):
    l = l.strip()
    op = l.split()[0]
    if op.startswith(("v_mfma", "ds_", "buffer_", "v_cvt_pk")) or op.endswith("_e64"): return 8
    import re
    for tok in re.split(r"[ ,]+", l)[1:]:
        if re.fullmatch(r"-?\d+|0x[0-9a-f]+", tok) and not op.startswith(("s_waitcnt", "s_nop")):
            v = int(tok, 0)
            if not (-16 <= v <= 64): return 8
    return 4

def align8(lines):
    out = []
    for l in lines:
        op = l.strip().split()[0]
        if op.startswith("v_") and isize(l) == 4:
            l = l.replace(op, op + "_e64", 1)
        out.append(l)
    res, off = [], 0
    for l in out:
        sz = isize(l)
        if sz == 8 and off % 8 == 4:
            res.append("    s_nop 0"); off += 4
        res.append(l); off += sz
    if off % 8 == 4: res.append("    s_nop 0")
    return res

def emit_variant(a, var, cfg):
    bar = cfg.bar_pos if var != 3 else cfg.bar_pos - 3
    best = None
    for par in [(p0, 1, p2) for p0 in (1, 0) for p2 in (1, 0)]:
        ms = steady_order(var, cfg, par)
        n = len(ms)
        first, last = uses(ms)
        reads = [(key, max(last[key], bar, n if (key[0] == "w" and key[2] == 2) else 0), n + first[key]) for key in first]
        placed = edf(reads, bar, n + bar - 16, 0)
        ld = min(n + first[nm] - k for k, nm in placed.items())
        if best is None or ld > best[0]: best = (ld, par, ms, first, last, placed)
    ld, par, ms, first, last, placed = best
    print(f"variant {var}: snake parity {par}, min lead {ld}", file=sys.stderr)
    tail = [(k, placed[k]) for k in sorted(placed) if k < n]
    head = [(k - n, placed[k]) for k in sorted(placed) if k >= n]
    slow = []
    hb, tb = Asm(), Asm()
    q = LdsQ(hb, cfg.safe)
    for k, nm in tail: q.issue(nm, k - n)
    headd, taild = dict(head), dict(tail)
    extra = {}
    def put(k, s): extra.setdefault(k, []).append(s)
    krel = max(k for k, nm in head) + 1
    put(krel - 1, f"v_add_u32 v{V_PV}, 1, v{V_PV}")
    upd = ["s_bitcmp1_b32 s40, s46", f"s_cselect_b32 s42, {XCH}, 0",
           "s_bitcmp1_b32 s50, s46", "s_cselect_b32 s51, s53, 64", "s_add_u32 s42, s42, s51",
           "s_bitcmp1_b32 s41, s46", "s_cselect_b32 s43, s44, s45",
           "s_cmp_eq_u32 s46, 14", "s_cselect_b32 s49, 1000, s46",
           f"v_add_u32 v{V_XL}, s42, v{V_XL}", f"v_lshrrev_b32 v{V_T}, 3, v{V_XL}", f"v_and_b32 v{V_T}, 32, v{V_T}",
           f"v_xor_b32 v{V_XA[0]}, v{V_XL}, v{V_T}", f"v_xor_b32 v{V_XA[1]}, 32, v{V_XA[0]}"]
    upd += [f"v_add_u32 v{V_WA[t]}, s43, v{V_WA[t]}" for t in range(3)]
    b0 = krel + 2
    for j, u in enumerate(upd): put(b0 + cfg.updstep * j, u)
    kflag = bar - cfg.cmpd - 9
    assert b0 + cfg.updstep * len(upd) <= kflag
    cur = hb
    for k, m in enumerate(ms):
        rho, i, t, qq = m
        q.need([("w", i, t, 0), ("w", i, t, 1), ("x", qq)], k)
        cur(mfma_text(m))
        D = cfg.drop
        for s in extra.get(k, []): cur(s)
        if k == krel: q.issue(("rel",), k, f"ds_write_b32 v{V_CP}, v{V_PV}")
        if k == kflag: q.issue(("flag",), k, f"ds_read_b32 v{V_F}, v{V_LF}")
        if k == bar - cfg.cmpd - 1: q.need([("flag",)], k + 1)
        if k == bar - cfg.cmpd: cur(f"v_cmp_gt_u32 vcc, s49, v{V_F}")
        if k == bar:
            cur = tb; q.a = tb
        drop = lambda nm: ("l" in D and k in taild) or ("w" in D and nm[0] == "w" and k in taild) or ("x" in D and nm[0] == "x")
        if k in headd: q.issue(headd[k], k, read_text(headd[k]) if not drop(headd[k]) else None)
        if k in taild: q.issue(("next",) + taild[k], k, read_text(taild[k]) if not drop(taild[k]) else None)
        if k == n - 9: cur("s_add_u32 s46, s46, 1")
    kinds = ("w", "x") if ((var < 2 and cfg.order == 1) or cfg.order == 3) else ("x", "w")
    ent = [[nm for _, nm in sorted(tail, key=lambda e: first[e[1]]) if nm[0] == kd] for kd in kinds]
    late = ent[1]
    def entry_ok(m):
        done = len(late) - m
        wi = 0
        for k, (rho, i, t, qq) in enumerate(ms):
            while wi < len(q.waits) and q.waits[wi][0] <= k:
                _, cnt, nops = q.waits[wi]; wi += 1
                body_ops = nops - len(tail)
                done = max(done, len(late) - max(0, cnt - body_ops))
            for nm in (("w", i, t, 0), ("w", i, t, 1), ("x", qq)):
                if nm in late and late.index(nm) >= done: return False
        return True
    ment = max(mm for mm in range(min(len(late), 14) + 1) if entry_ok(mm))
    def emit_entry():
        a.label(f"L_pro{var}")
        if cfg.amp == "pt" and cfg.pt == "lpro":
            a("s_memrealtime s[86:87]")
            a("s_waitcnt lgkmcnt(0)")
        poll(a, f"L_p0_{var}", 16 if kinds[0] == "x" else 17, V_F, 1, 0)
        for nm in ent[0]: a(read_text(nm))
        poll(a, f"L_p1_{var}", 16 if kinds[1] == "x" else 17, V_F, 1, 0)
        if cfg.diag: stamp(a, 3)
        if cfg.amp and cfg.amp != "pt":
            a("s_memrealtime s[86:87]")
            a("s_waitcnt lgkmcnt(0)")
        for nm in late: a(read_text(nm))
        a(f"s_waitcnt lgkmcnt({ment})")
        a(f"s_branch L_head{var}")
    if not cfg.entry_last: emit_entry()
    if cfg.al8:
        hb.lines = align8(hb.lines); tb.lines = align8(tb.lines)
    if cfg.align: a(".p2align 6")
    if cfg.pads:
        a.label(f"L_pad{var}")
        a("s_branch L_compute")
        a("s_nop 0")
    a.label(f"L_top{var}")
    a.lines += tb.lines
    a.label(f"L_head{var}")
    a.lines += hb.lines
    a(f"s_cbranch_vccz L_top{var}")
    a("s_min_u32 s49, s49, 15")
    a(f"v_cmp_gt_u32 vcc, s49, v{V_F}")
    a(f"s_cbranch_vccnz L_slow{var}")
    a.label(f"L_fin{var}")
    a.lines += tb.lines
    if cfg.diag: stamp(a, 4)
    if cfg.cpf: a("s_waitcnt vmcnt(0)")
    rows = TYPES[var]
    down = var == 0
    prow = sorted(set(rows[1]) | set(rows[2]), reverse=down)
    lastrow = prow[-1]
    srow2 = sorted(rows[0], reverse=not down)
    def build(pa, pb):
        out = []
        for j, r in enumerate(rows[0]):
            out += [m + (13, 0) for m in chain(r, 0, cfg.snake and j % 2 == pa)]
        for j, r in enumerate(srow2):
            out += [m + (14, 0) for m in chain(r, 0, cfg.snake and j % 2 == pb)]
        keep = set(range(srow2[-1], srow2[-1] + 5))
        flip = 0
        tiles = []
        for r in prow:
            ts = [t for t in ((1, 2) if flip == 0 else (2, 1)) if r in rows[t]]
            if r == lastrow: ts = [1, 2]
            for j, t in enumerate(ts):
                gs = (14, 13) if j == 0 else (13, 14)
                for g in gs:
                    for m in chain(r, t, (j == 1) != down):
                        out.append(m + (g, 0 if (g == 14 and m[3] in keep) else 1))
                tiles.append((r, t))
            flip = 0 if ts[-1] == 1 else 1
        return out, tiles
    def names(m):
        rho, i, t, qq, g, occ = m
        return [("w", g, i, t, 0), ("w", g, i, t, 1), ("x", g, qq, occ)]
    frag = lambda nm: nm if nm[0] == "x" else nm[:4]
    conv = lambda nm: ("x", 13, nm[1], 0) if nm[0] == "x" else ("w", 13) + nm[1:]
    pre = [(k - n, conv(nm)) for k, nm in tail]
    prenames = set(nm for _, nm in pre)
    slots = [V_X + 4 * j for j in range(26)] + [V_EXTRA + 4 * j for j in range(8)]
    best = None
    for pa in (1, 0):
      for pb in (1, 0):
        ls, ptiles = build(pa, pb)
        lf, ll = {}, {}
        for k, m in enumerate(ls):
            for nm in names(m):
                lf.setdefault(nm, k); ll[nm] = k
        free = {sl: 0 for sl in slots}
        regs = {}
        for nm in prenames:
            sl = xreg(nm[2]) if nm[0] == "x" else wreg(nm[2], nm[3])
            regs[frag(nm)] = sl
            free[sl] = max(free[sl], ll.get(nm, 0))
        rds, early = [], {}
        for nm in sorted(lf, key=lambda v: lf[v]):
            if nm in prenames: continue
            fr = frag(nm)
            if fr not in regs:
                ok = [sl for sl in slots if free[sl] <= lf[nm] - cfg.alead]
                sl = max(ok, key=lambda v: free[v]) if ok else min(slots, key=lambda v: free[v])
                regs[fr] = sl; early[fr] = free[sl]; free[sl] = ll[nm]
            e = early.get(fr, 0)
            if nm[0] == "x" and nm[1] == 14: e = max(e, 6)
            rds.append((nm, e, lf[nm]))
        try: lp = edf(rds, 0, len(ls), 0)
        except AssertionError: continue
        ld2 = min([lf[nm] - k for k, nm in lp.items()] + [lf[nm] - k for k, nm in pre if nm in lf])
        if best is None or ld2 > best[0]: best = (ld2, (pa, pb), ls, lf, lp, regs, ptiles)
    ld2, pars, ls, lf, lplaced, regs, ptiles = best
    print(f"   final segment: parity {pars} min lead {ld2} reads {len(lplaced)}", file=sys.stderr)
    def rd_text(nm):
        if nm[0] == "x":
            _, g, qq, occ = nm
            return f"ds_read_b128 {vr(regs[nm],4)}, v{(V_XA if g == 13 else V_XB)[qq & 1]} offset:{qq*XROW}"
        _, g, i, t, h = nm
        return f"ds_read_b64_tr_b16 {vr(regs[frag(nm)]+2*h,2)}, v{V_WA[t]} offset:{(g-13)*WBUF + i*6144 + h*768}"
    n2 = len(ls)
    q = LdsQ(a, cfg.safe)
    for k, nm in pre: q.issue(nm, k)
    endk = {}
    for k, m in enumerate(ls): endk[(m[0], m[2])] = k
    def cvt2(D, S, tile):
        return [(tile, f"v_cvt_pk_bf16_f32 v{D}, v{S}, v{S+1}"), (tile, f"v_cvt_pk_bf16_f32 v{D+1}, v{S+2}, v{S+3}")]
    seq = [(None, f"v_add_u32 v{V_XL}, s54, v{V_XL}"), (None, f"v_lshrrev_b32 v{V_T}, 3, v{V_XL}"), (None, f"v_and_b32 v{V_T}, 32, v{V_T}"),
           (None, f"v_xor_b32 v{V_XB[0]}, v{V_XL}, v{V_T}"), (None, f"v_xor_b32 v{V_XB[1]}, 32, v{V_XB[0]}")]
    for j, r in enumerate(srow2):
        S = acc(r, 0)
        seq += cvt2(S, S, (r, 0))
        seq += [(None, f"v_mov_b32 v{V_PV}, {16 + j}"), (None, f"ds_write_b64 v{V_GB}, {vr(S,2)} offset:{r*SROW}"),
                (None, f"ds_write_b32 v{V_CP}, v{V_PV}")]
    kfull, seen = 0, set()
    for (r, t) in ptiles:
        S = acc(r, t)
        if r != lastrow:
            seq += cvt2(S, S, (r, t))
            pv = None
            if not (r in rows[1] and r in rows[2]): pv = 24
            elif r in seen:
                pv = 25 + kfull; kfull += 1
            seen.add(r)
            if pv: seq.append((None, f"v_mov_b32 v{V_PV}, {pv}"))
            seq.append((None, f"ds_write_b64 v{V_GA}, {vr(S,2)} offset:{r*SROW + (32 if t == 2 else 0)}"))
            if pv: seq.append((None, f"ds_write_b32 v{V_CP}, v{V_PV}"))
        elif t == 1:
            seq += cvt2(S, S, (r, t))
            seq.append((None, f"s_add_u32 s48, s47, {r*PROW}"))
        else:
            A = acc(r, 1)
            seq += cvt2(A + 2, S, (r, t))
            seq.append(("W2", f"v_permlane16_swap_b32 v{A}, v{A+2}"))
            seq.append((None, f"v_permlane16_swap_b32 v{A+1}, v{A+3}"))
            seq.append((None, f"buffer_store_dwordx4 {vr(A,4)}, v{V_SA}, s[24:27], s48 offen{cfg.stflag}"))
    assert kfull == 5
    def states(frm):
        c = 0
        for l in a.lines[frm + 1:]:
            l = l.strip()
            if l.endswith(":") or l.startswith(";") or l.startswith("."): continue
            c += int(l.split()[1]) + 1 if l.startswith("s_nop") else 1
        return c
    done_at = {}
    last_valu = [0]
    def missing(dep):
        if dep is None: return 0
        if dep == "W2": return max(0, 2 - states(last_valu[0]))
        if dep not in done_at: return None
        return max(0, 8 - states(done_at[dep]))
    nl = [0]
    def emit_ex(txt, k):
        for key, pat in (("C", "v_cvt"), ("P", "v_permlane"), ("V", "ds_write_b64"), ("F", "ds_write_b32"), ("S", "buffer_store")):
            if key in cfg.drop and txt.startswith(pat): return
        if txt.startswith("ds_"):
            nl[0] += 1; q.issue(("st", nl[0]), k, txt)
        else: a(txt)
        if txt.startswith("v_cvt"): last_valu[0] = len(a.lines) - 1
    for k, m in enumerate(ls):
        rho, i, t, qq, g, occ = m
        q.need(names(m), k)
        a(f"v_mfma_f32_16x16x32_bf16 {vr(acc(rho,t),4)}, {vr(regs[('w',g,i,t)],4)}, {vr(regs[('x',g,qq,occ)],4)}, {vr(acc(rho,t),4)}")
        if endk[(rho, t)] == k: done_at[(rho, t)] = len(a.lines) - 1
        cnt = 0
        if k in lplaced:
            q.issue(lplaced[k], k, rd_text(lplaced[k])); cnt += 1
        lim = cfg.exper if (k >= n2 - cfg.rush or k < 6) else 1
        if k < 6: cnt = 1
        while seq and cnt < lim and k < n2 - 1:
            miss = missing(seq[0][0])
            if miss == 0:
                emit_ex(seq.pop(0)[1], k); cnt += 1
            else:
                if miss is not None and miss > 1 and cnt == 0 and k >= n2 - cfg.fill: a("s_nop 1")
                break
    while seq:
        miss = missing(seq[0][0])
        if miss: a(f"s_nop {miss - 1}")
        emit_ex(seq.pop(0)[1], n2)
    if cfg.diag:
        stamp(a, 5)
        a("s_waitcnt vmcnt(0)")
        stamp(a, 6)
        a("s_branch L_dump")
    elif cfg.amp:
        if var == 0: a.label("L_ampall")
        a("s_waitcnt vmcnt(0)")
        a("s_memrealtime s[88:89]")
        a("s_waitcnt lgkmcnt(0)")
        if cfg.amp in ("span", "skew"):
            a("v_mov_b32 v4, 0")
            a("buffer_load_dwordx2 v[6:7], v4, s[80:83], 0 offen sc0 sc1")
            a("s_waitcnt vmcnt(0)")
            a("v_readfirstlane_b32 s86, v6")
            a("v_readfirstlane_b32 s58, v7")
            a("s_nop 3")
            a("s_not_b32 s58, s58")
        lo, hi = {"pro": (58, 86), "all": (58, 88), "loop": (86, 88), "none": (58, 58), "span": (58, 88), "skew": (58, 86), "stall": (58, 58), "pt": (58, 86)}[cfg.amp]
        a(f"s_sub_u32 s90, s{hi}, s{lo}")
        a("s_mul_i32 s90, s90, 10")
        if cfg.fixd: a(f"s_mov_b32 s90, {cfg.fixd}")
        if cfg.amp == "stall": a("s_mul_i32 s90, s85, 10")
        if cfg.onlyw >= 0:
            a(f"s_cmp_eq_u32 s32, {cfg.onlyw}")
            a("s_cselect_b32 s90, s90, 0")
        if cfg.onlyb >= 0:
            a(f"s_cmp_eq_u32 s2, {cfg.onlyb}")
            a("s_cselect_b32 s90, s90, 0")
        if cfg.addd: a(f"s_cselect_b32 s91, {cfg.addd}, 0"); a("s_add_u32 s90, s90, s91")
        if cfg.wbl2:
            a("buffer_wbl2 sc1")
        a.label(f"L_amp{var}")
        a("s_memrealtime s[76:77]")
        a("s_waitcnt lgkmcnt(0)")
        a("s_sub_u32 s91, s76, s88")
        a("s_cmp_lt_u32 s91, s90")
        a(f"s_cbranch_scc1 L_amp{var}")
        a("s_endpgm")
    else:
        a("s_endpgm")
    if cfg.amp == "stall":
        a.label(f"L_slow{var}")
        a("s_memrealtime s[76:77]")
        poll(a, f"L_slowb{var}", V_LF, V_F, "s49", 0)
        a("s_memrealtime s[78:79]")
        a("s_waitcnt lgkmcnt(0)")
        a("s_sub_u32 s78, s78, s76")
        if cfg.sg:
            a(f"s_cmp_eq_u32 s46, {cfg.sg}")
            a("s_cselect_b32 s78, s78, 0")
        a("s_add_u32 s85, s85, s78")
    else:
        poll(a, f"L_slow{var}", V_LF, V_F, "s49", 0)
    a("s_cmp_eq_u32 s46, 14")
    a(f"s_cbranch_scc1 L_fin{var}")
    a(f"s_branch L_top{var}")
    for lab, va, need, back in slow:
        poll(a, lab, va, V_F, need, 0)
        a(f"s_branch {back}")
    if cfg.entry_last: emit_entry()

def stamp(a, idx):
    a(f"s_memtime s[{60+2*idx}:{61+2*idx}]")
    if idx in (3, 5):
        a(f"s_memrealtime s[{86 if idx == 3 else 88}:{87 if idx == 3 else 89}]")
    a("s_waitcnt lgkmcnt(0)")

def dump_stamps(a, cfg):
    a.label("L_dump")
    a("s_memrealtime s[76:77]")
    a("s_getreg_b32 s78, hwreg(HW_REG_HW_ID)")
    a("s_getreg_b32 s79, hwreg(HW_REG_XCC_ID)")
    a("s_waitcnt lgkmcnt(0)")
    a("s_mov_b32 s80, s12")
    a("s_mov_b32 s81, s13")
    a("s_mov_b32 s82, 0x100000")
    a("s_mov_b32 s83, 0x20000")
    a("s_lshl_b32 s84, s2, 3")
    a("s_add_u32 s84, s84, s32")
    a("s_lshl_b32 s84, s84, 6")
    a("v_mov_b32 v4, 0")
    for k, s in enumerate([60, 62, 64, 66, 68, 70, 72, 74, 76, 77, 78, 79, 58, 59, 86, 88]):
        a(f"v_mov_b32 v5, s{s}")
        a(f"buffer_store_dword v5, v4, s[80:83], s84 offen offset:{4*k}")
        a("s_nop 1")
    a("v_and_b32 v1, 63, v0")
    a("v_lshlrev_b32 v4, 2, v1")
    a("v_cmp_gt_u32 vcc, 16, v1")
    a("s_and_saveexec_b64 s[92:93], vcc")
    a("s_lshl_b32 s84, s84, 2")
    a("s_add_u32 s84, s84, 0x40000")
    for k in range(3):
        a(f"buffer_store_dword v{44+k}, v4, s[80:83], s84 offen offset:{64*k}")
    a("s_waitcnt vmcnt(0)")
    a("s_endpgm")

def srd(a, d, p, size):
    a(f"s_mov_b32 s{d}, s{p}")
    a(f"s_and_b32 s{d+1}, s{p+1}, 0xffff")
    a(f"s_mov_b32 s{d+2}, {size}")
    a(f"s_mov_b32 s{d+3}, 0x20000")

def gen(cfg):
    a = Asm()
    hdr = open("standalone__dilated_atrous__vision.s.ref").read().splitlines()
    head = [l for l in hdr[:8] if l.startswith(";") and "@launch" not in l]
    out = "\n".join(head) + "\n"
    out += f"; @launch grid=(256,1,1) block=(512,1,1) lds={LDS_TOTAL}\n"
    out += f""".amdgcn_target "amdgcn-amd-amdhsa--gfx950"
.text
.globl {NAME}_kernel
{".p2align 12" + chr(10) if cfg.pg else ""}.p2align 8
.type {NAME}_kernel,@function
{NAME}_kernel:
"""
    def mark(name):
        if cfg.amp == "pt" and cfg.pt == name:
            a("s_memrealtime s[86:87]")
            a("s_waitcnt lgkmcnt(0)")
    def trace(reg, idx):
        if cfg.trace:
            a("s_memtime s[90:91]")
            a(f"s_mov_b32 m0, {idx}")
            a("s_waitcnt lgkmcnt(0)")
            a(f"v_writelane_b32 v{reg}, s90, m0")
    if cfg.diag:
        a("s_memtime s[60:61]")
        a("s_memrealtime s[58:59]")
        a("s_load_dwordx2 s[12:13], s[0:1], 32")
    if cfg.amp: a("s_memrealtime s[58:59]")
    if cfg.amp == "pt": a("s_memrealtime s[86:87]")
    if cfg.amp in ("span", "skew"): a("s_load_dwordx2 s[12:13], s[0:1], 24")
    a("s_load_dwordx2 s[16:17], s[0:1], 0")
    a("s_load_dwordx2 s[20:21], s[0:1], 8")
    a("s_load_dwordx2 s[24:25], s[0:1], 16")
    if WD: a("s_mov_b32 s94, 0")
    a("s_cmp_ge_u32 s2, 256")
    a("s_cbranch_scc1 L_exit")
    if cfg.lx < 0:
        a("s_and_b32 s28, s2, 1")
        a("s_bfe_u32 s3, s2, 0x20001")
        a("s_lshl_b32 s3, s3, 5")
        a("s_lshr_b32 s33, s2, 3")
        a("s_add_u32 s3, s3, s33")
        a("s_cmp_ge_u32 s3, 126")
        a("s_cbranch_scc1 " + ("L_help" if cfg.help else "L_exit"))
    else:
        a("s_and_b32 s3, s2, 7")
        a(f"s_sub_u32 s3, s3, {cfg.lx + 1}")
        a("s_and_b32 s3, s3, 7")
        a("s_lshl_b32 s3, s3, 5")
        a("s_lshr_b32 s33, s2, 3")
        a("s_add_u32 s3, s3, s33")
        a("s_cmp_ge_u32 s3, 252")
        a("s_cbranch_scc1 L_exit")
        a("s_cmp_ge_u32 s3, 224")
        a("s_cselect_b32 s33, 14, 112")
        a("s_cselect_b32 s34, 224, 0")
        a("s_cselect_b32 s29, 112, 0")
        a("s_sub_u32 s3, s3, s34")
        a("s_cmp_ge_u32 s3, s33")
        a("s_cselect_b32 s28, 1, 0")
        a("s_cselect_b32 s33, s33, 0")
        a("s_sub_u32 s3, s3, s33")
        a("s_add_u32 s3, s3, s29")
    a("v_lshrrev_b32 v2, 6, v0")
    a("v_and_b32 v1, 63, v0")
    a("v_readfirstlane_b32 s32, v2")
    a("v_lshlrev_b32 v30, 2, v0")
    a(f"v_add_u32 v30, {FLAGS}, v30")
    a("v_mov_b32 v31, 0")
    a("ds_write_b32 v30, v31")
    a("s_mul_i32 s33, s3, 4682")
    a("s_lshr_b32 s33, s33, 16")
    a("s_mul_i32 s34, s33, 14")
    a("s_sub_u32 s34, s3, s34")
    a("s_and_b32 s29, s34, 1")
    a("s_lshr_b32 s30, s34, 1")
    a("s_lshl_b32 s30, s30, 4")
    a("s_mul_i32 s31, s33, 25")
    a("s_lshr_b32 s31, s31, 1")
    a("s_and_b32 s34, s33, 1")
    a("s_lshl_b32 s35, s31, 1")
    a("s_add_u32 s35, s35, s28")
    a(f"s_mul_i32 s35, s35, {ROWB}")
    a("s_lshl_b32 s36, s30, 1")
    a("s_add_u32 s36, s36, s29")
    a("s_mul_i32 s36, s36, 192")
    a("s_lshl_b32 s52, s29, 1")
    a("s_sub_u32 s52, 2, s52")
    if cfg.jrot == 1:
        a("s_and_b32 s28, s2, 7")
        a("s_cmp_ge_u32 s28, 5")
        a("s_cselect_b32 s37, 4, 0")
        a("s_sub_u32 s28, s28, s37")
    elif cfg.jrot == 2:
        a("s_mul_i32 s37, s2, 205")
        a("s_lshr_b32 s37, s37, 10")
        a("s_mul_i32 s37, s37, 5")
        a("s_sub_u32 s28, s2, s37")
    else:
        a("s_mov_b32 s28, 0")
    if cfg.order == 1: a("s_mov_b32 s3, s34")
    elif cfg.order == 2: a("s_mov_b32 s3, 1")
    elif cfg.order == 3: a("s_mov_b32 s3, 0")
    elif cfg.order == 4:
        a("s_and_b32 s3, s2, 0x30")
        a("s_min_u32 s3, s3, 1")
    a("s_cmp_ge_u32 s32, 4")
    if cfg.cpf:
        a("s_cbranch_scc0 L_ld")
        a("s_bfe_u32 s31, s32, 0x10001")
        a("s_lshl1_add_u32 s31, s34, s31")
        a("s_cmp_eq_u32 s33, 8")
        a("s_cselect_b32 s31, 3, s31")
        a("s_getpc_b64 s[38:39]")
        a.label("L_pc")
        a("s_lshr_b32 s37, s2, 1")
        a("s_and_b32 s37, s37, 0x7c")
        a("s_add_u32 s37, s37, s32")
        a("s_min_u32 s37, s37, (L_end-L_pc)/256")
        a("s_lshl_b32 s37, s37, 8")
        a("s_add_u32 s38, s38, s37")
        a("s_addc_u32 s39, s39, 0")
        a("v_mov_b32 v12, s38")
        a("v_mov_b32 v13, s39")
        a("global_load_dword v14, v[12:13], off")
        a("global_load_dword v15, v[12:13], off offset:128")
        if cfg.pads:
            if cfg.pad4:
                a("s_cmp_eq_u32 s32, 4")
                a("s_cbranch_scc1 L_padl")
            a("s_bitcmp1_b32 s32, 0")
            a("s_cbranch_scc0 L_compute")
            a("s_cmp_eq_u32 s31, 0")
            a("s_cbranch_scc1 L_pad0")
            a("s_cmp_eq_u32 s31, 1")
            a("s_cbranch_scc1 L_pad1")
            a("s_cmp_eq_u32 s31, 2")
            a("s_cbranch_scc1 L_pad2")
            a("s_branch L_pad3")
        else:
            a("s_branch L_compute")
        a.label("L_ld")
    else:
        a("s_cbranch_scc1 L_compute")
    if cfg.bench:
        a("v_mov_b32 v31, 100")
        a("ds_write_b32 v30, v31")
        a("s_waitcnt lgkmcnt(0)")
        a("s_barrier")
        a("s_branch L_dump")
    a("s_add_u32 s37, s35, s36")
    a(f"s_sub_u32 s37, s37, {2*PROW + 2*384}")
    a("s_sub_u32 s38, s30, 2")
    a("s_cmp_eq_u32 s29, 0")
    a("s_cselect_b32 s14, 32, -32")
    a("s_cselect_b32 s15, 0, 320")
    a(f"s_mul_i32 s10, s14, {8*PROW//32}")
    a("s_and_b32 s11, s32, 1")
    a("s_lshl_b32 s39, s11, 4")
    a("s_add_u32 s15, s15, s39")
    a("v_lshrrev_b32 v13, 2, v1")
    a("v_add_u32 v13, s15, v13")
    a("v_lshrrev_b32 v14, 3, v1")
    a("v_and_b32 v14, 2, v14")
    a("v_and_b32 v15, 3, v1")
    a("v_xor_b32 v14, v14, v15")
    a("v_lshlrev_b32 v14, 4, v14")
    a("v_add_u32 v14, s37, v14")
    a("v_bfrev_b32 v19, 1")
    a("s_movk_i32 s39, 3277")
    a(f"s_mov_b32 s49, {PROW}")
    a("s_movk_i32 s50, 384")
    a("s_movk_i32 s51, 112")
    for b in range(5):
        a("v_mul_u32_u24 v15, s39, v13")
        a("v_lshrrev_b32 v15, 16, v15")
        a("v_mul_u32_u24 v16, 20, v15")
        a("v_sub_u32 v16, v13, v16")
        a("v_add_u32 v17, s38, v16")
        a("v_cmp_gt_u32 vcc, s51, v17")
        a("v_mad_u32_u24 v18, v15, s49, v14")
        a("v_mad_u32_u24 v18, v16, s50, v18")
        a(f"v_cndmask_b32 v{2+b}, v19, v18, vcc")
        if b < 4: a("v_add_u32 v13, s14, v13")
        a(f"v_add_u32 v{7+b}, s10, v{2+b}")
    a("v_add_u32 v12, s10, v7")
    a("s_lshl_b32 s57, s52, 6")
    a("s_lshl_b32 s56, s15, 6")
    a("s_lshl_b32 s14, s14, 6")
    a("v_lshlrev_b32 v20, 4, v1")
    a("v_cmp_gt_u32 vcc, 32, v1")
    a("v_xor_b32 v22, 32, v20")
    a("s_bfe_u32 s39, s2, 0x20004")
    a("v_cndmask_b32 v21, v22, v20, vcc")
    a("s_mul_i32 s38, s11, 5")
    a("s_add_u32 s39, s39, s38")
    a("s_mul_i32 s40, s39, 3072")
    a("s_lshr_b32 s41, s39, 1")
    a(f"s_mul_i32 s41, s41, {92160 - 6144}")
    a("s_add_u32 s41, s41, s40")
    a("s_movk_i32 s42, 3072")
    a("s_bitcmp1_b32 s39, 0")
    a(f"s_cselect_b32 s42, {92160 - 3072}, s42")
    a("s_mov_b32 s43, 4")
    a("s_cmp_ge_u32 s32, 2")
    a("s_cselect_b32 s95, 1, 0")
    a(f"s_mul_i32 s54, s95, {WBUF}")
    a(f"s_add_u32 s54, s54, {WBASE}")
    a("s_add_u32 s37, s95, s28")
    a("s_cmp_eq_u32 s37, 5")
    a("s_cselect_b32 s37, 0, s37")
    a("s_mul_i32 s37, s37, 3")
    a("s_add_u32 s37, s37, s52")
    a("s_mul_i32 s37, s37, 6144")
    a("s_mov_b32 s55, 0")
    a("s_mov_b32 s15, 15")
    a(f"s_mov_b32 s18, {XBYTES}")
    a("s_mov_b32 s19, 0x20000")
    a(f"s_mov_b32 s22, {WBYTES}")
    a("s_mov_b32 s23, s19")
    a("s_waitcnt lgkmcnt(0)")
    if cfg.diag: stamp(a, 1)
    mark("karg")
    if cfg.order:
        a("s_cmp_eq_u32 s95, s3")
        a("s_cbranch_scc1 L_go")
        a("s_barrier")
        a.label("L_go")
    a("s_cmp_eq_u32 s95, 1")
    a("s_cbranch_scc0 L_w_it")
    a.label("L_x_loop")
    for blk in range(4):
        a(f"s_bitcmp1_b32 s15, {blk}")
        a(f"s_cbranch_scc0 " + (f"L_x{blk}" if blk < 3 else "L_x_next"))
        for k in range(3 * blk, min(3 * blk + 3, 11)):
            a("s_mov_b32 m0, s56")
            a("s_add_u32 s56, s56, s14")
            a(f"buffer_load_dwordx4 v{2+k}, s[16:19], s57 offen{cfg.xflag} lds")
        if blk < 3: a.label(f"L_x{blk}")
    a("s_cmp_lg_u32 s55, 0")
    a("s_cbranch_scc1 L_x_sig")
    if cfg.diag: stamp(a, 2)
    mark("xi")
    if cfg.order:
        a("s_cmp_eq_u32 s3, 0")
        a("s_cbranch_scc1 L_x_nb")
    a("s_barrier")
    a.label("L_x_nb")
    a("v_mov_b32 v26, 1")
    a("s_waitcnt vmcnt(0)")
    a("ds_write_b32 v30, v26")
    trace(45, 0)
    mark("x0")
    a.label("L_w_it")
    a("s_add_u32 m0, s54, s40")
    a("s_add_u32 s50, s37, s41")
    for k in range(3):
        a(f"buffer_load_dwordx4 v{20+k}, s[20:23], s50 offen offset:{k*1024}{cfg.wflag} lds")
    a("s_addk_i32 s40, 3072")
    a("s_add_u32 s41, s41, s42")
    a(f"s_xor_b32 s42, s42, {3072 ^ (92160 - 3072)}")
    a(f"s_cmpk_eq_u32 s40, {WBUF}")
    a("s_cselect_b32 s40, 0, s40")
    a("s_cselect_b32 s41, 0, s41")
    a("s_sub_u32 s43, s43, 1")
    a("s_cbranch_scc0 L_w_it")
    a("s_cmp_lg_u32 s55, 0")
    a("s_cbranch_scc1 L_w_adv")
    a("s_cmp_eq_u32 s95, 1")
    a("s_cbranch_scc1 L_x_w1")
    if cfg.order:
        a("s_cmp_eq_u32 s3, 1")
        a("s_cbranch_scc1 L_w_nb1")
    a("s_barrier")
    a.label("L_w_nb1")
    a("s_mov_b32 s55, s32")
    a("s_mov_b32 s53, s32")
    a(f"s_mul_i32 s50, s32, {WBUF}")
    a("s_add_u32 s54, s54, s50")
    a("v_mov_b32 v31, s32")
    a.label("L_w_adv")
    trace(44, "s55")
    a("v_add_u32 v31, 2, v31")
    a("s_waitcnt vmcnt(0)")
    a("ds_write_b32 v30, v31")
    trace(45, "s55")
    if cfg.amp == "pt" and cfg.pt == "w0":
        a("s_cmp_ge_u32 s55, 2")
        a("s_cbranch_scc1 L_pw")
        mark("w0")
        a.label("L_pw")
    a(f"s_sub_u32 s54, s54, {WBUF}")
    a(f"s_cmp_lt_u32 s54, {WBASE}")
    a(f"s_cselect_b32 s50, {3*WBUF}, 0")
    a("s_add_u32 s54, s54, s50")
    a("s_add_u32 s53, s53, 2")
    a("s_cmp_ge_u32 s53, 5")
    a("s_cselect_b32 s50, 5, 0")
    a("s_sub_u32 s53, s53, s50")
    a("s_lshr_b32 s50, s50, 2")
    a("s_add_u32 s52, s52, s50")
    a("s_cmp_eq_u32 s52, 3")
    a("s_cselect_b32 s52, 0, s52")
    a("s_add_u32 s37, s53, s28")
    a("s_cmp_ge_u32 s37, 5")
    a("s_cselect_b32 s50, 5, 0")
    a("s_sub_u32 s37, s37, s50")
    a("s_mul_i32 s37, s37, 3")
    a("s_add_u32 s37, s37, s52")
    a("s_mul_i32 s37, s37, 6144")
    a("s_mov_b32 s43, 9")
    a("s_mov_b32 s51, s55")
    a("s_add_u32 s55, s55, 2")
    a("s_cmp_eq_u32 s51, 0")
    a("s_cbranch_scc1 L_w_it")
    a("s_cmp_ge_u32 s55, 15")
    a("s_cbranch_scc1 L_store")
    a("v_and_b32 v23, 3, v1")
    a("v_lshlrev_b32 v23, 8, v23")
    a(f"v_add_u32 v23, {FLAGS + 1024}, v23")
    poll(a, "L_w_poll", 23, 24, "s51", cfg.sleep)
    trace(46, "s55")
    a("s_branch L_w_it")
    if cfg.pad4:
        a.label("L_padl")
        a("s_branch L_compute")
    a.label("L_x_w1")
    C = sum(((thr << 4) | m) << (8 * k) for k, (thr, m) in enumerate(cfg.xb))
    assert len(cfg.xb) <= 8
    a(f"s_mov_b32 s92, {C & 0xffffffff:#x}")
    a(f"s_mov_b32 s93, {C >> 32:#x}")
    a("s_mov_b32 s55, 1")
    if cfg.trace: a("s_mov_b32 s51, 1")
    a.label("L_x_sig")
    a("v_add_u32 v31, 5, v31")
    a("s_waitcnt vmcnt(0)")
    a("ds_write_b32 v30, v31")
    trace(45, "s51")
    if cfg.amp == "pt" and cfg.pt == "w1":
        a("s_cmp_lg_u32 s15, 15")
        a("s_cbranch_scc1 L_px")
        mark("w1")
        a.label("L_px")
    a("s_mul_i32 s50, s14, -11")
    a("s_add_u32 s56, s56, s50")
    a(f"s_add_u32 s56, s56, {XCH}")
    a("s_add_u32 s57, s57, 64")
    a("s_cmp_eq_u32 s57, 192")
    a("s_cselect_b32 s57, 0, s57")
    a.label("L_x_next")
    a("s_and_b32 s15, s92, 15")
    a("s_cbranch_scc0 L_store")
    a("s_bfe_u32 s51, s92, 0x40004")
    a("s_lshr_b64 s[92:93], s[92:93], 8")
    a("v_and_b32 v22, 1, v1")
    a(f"v_lshlrev_b32 v22, 8, v22")
    a(f"v_add_u32 v22, {FLAGS}, v22")
    poll(a, "L_x_poll", 22, 23, "s51", cfg.sleep)
    trace(44, "s51")
    a("s_branch L_x_loop")
    if cfg.help:
        a.label("L_help")
        a("v_and_b32 v1, 63, v0")
        a("v_lshrrev_b32 v2, 6, v0")
        a("v_mul_u32_u24 v3, 43, v1")
        a("v_readfirstlane_b32 s32, v2")
        a("v_lshrrev_b32 v3, 9, v3")
        a("v_mul_u32_u24 v4, 12, v3")
        a("v_sub_u32 v4, v1, v4")
        a("v_mul_u32_u24 v3, 92160, v3")
        a("v_lshl_add_u32 v3, v4, 7, v3")
        a("s_and_b32 s33, s2, 1")
        a("s_and_b32 s3, s3, 1")
        a("s_lshl1_add_u32 s33, s3, s33")
        a("s_mulk_i32 s33, 1536")
        a("s_lshr_b32 s34, s32, 1")
        a("s_add_u32 s34, s34, 1")
        a("s_mul_i32 s34, s34, 3")
        a("s_and_b32 s35, s32, 1")
        a("s_lshl1_add_u32 s34, s35, s34")
        a("s_mulk_i32 s34, 6144")
        a("s_add_u32 s34, s34, s33")
        a("s_min_u32 s35, s32, 4")
        a("s_mul_i32 s35, s35, 3")
        a("s_add_u32 s35, s35, 1")
        a("s_mulk_i32 s35, 6144")
        a("s_add_u32 s35, s35, s33")
        a("s_waitcnt lgkmcnt(0)")
        a(f"s_mov_b32 s22, {WBYTES}"); a("s_mov_b32 s23, 0x20000")
        a("buffer_load_dword v5, v3, s[20:23], s34 offen")
        a("buffer_load_dword v6, v3, s[20:23], s35 offen")
        a("s_waitcnt vmcnt(0)")
        a("s_endpgm")
    a.label("L_store")
    a(f"s_mov_b32 s26, {XBYTES}")
    a("s_mov_b32 s27, 0x20000")
    a("s_movk_i32 s49, 208")
    a("s_movk_i32 s50, 384")
    a("v_lshrrev_b32 v11, 2, v1")
    a("v_and_b32 v12, 3, v1")
    a("v_lshlrev_b32 v12, 4, v12")
    a("v_mad_u32_u24 v5, v11, s50, v12")
    a("v_mad_u32_u24 v2, v11, s49, v12")
    a("v_and_b32 v10, 1, v1")
    a("v_lshlrev_b32 v10, 8, v10")
    a("s_lshl_b32 s39, s95, 9")
    a(f"s_add_u32 s39, s39, {FLAGS + 1024}")
    a("v_add_u32 v10, s39, v10")
    a("s_add_u32 s45, s35, s36")
    a("s_or_b32 s38, s34, s95")
    a("s_cmp_eq_u32 s33, 8")
    a("s_cselect_b32 s38, 1, s38")
    a("s_cselect_b32 s43, 6, 7")
    a("s_xor_b32 s38, s38, 1")
    a("s_andn2_b32 s44, s34, s95")
    a("s_add_u32 s39, s34, 6")
    a("s_mul_i32 s39, s39, s95")
    a("s_add_u32 s39, s39, s44")
    a("s_add_u32 s39, s39, 5")
    a("s_cmp_eq_u32 s38, 1")
    a("s_cselect_b32 s39, 0, s39")
    a("s_cselect_b32 s42, 1, -1")
    def rowsetup():
        a("s_mul_i32 s40, s11, s42")
        a("s_add_u32 s39, s39, s40")
        a(f"s_mul_i32 s47, s39, {PROW}")
        a("s_add_u32 s47, s47, s45")
        a(f"s_mul_i32 s48, s39, {SROW}")
        a("v_add_u32 v12, s48, v2")
        a(f"s_mul_i32 s40, s42, {2*PROW}")
        a(f"s_mul_i32 s41, s42, {2*SROW}")
    rowsetup()
    a("s_add_u32 s51, s11, 16")
    a("s_add_u32 s44, s44, 22")
    a.label("L_st_m")
    poll(a, "L_st_mp", 10, 11, "s51", cfg.sleep)
    a(f"ds_read_b128 {vr(16,4)}, v12 offset:64")
    a("v_add_u32 v12, s41, v12")
    a("s_add_u32 s51, s51, 2")
    a("s_waitcnt lgkmcnt(0)")
    a(f"buffer_store_dwordx4 {vr(16,4)}, v5, s[24:27], s47 offen offset:64{cfg.stflag}")
    a("s_add_u32 s47, s47, s40")
    a("s_cmp_lt_u32 s51, s44")
    a("s_cbranch_scc1 L_st_m")
    if cfg.stprio: a(f"s_setprio {cfg.stprio}")
    a("s_cmp_eq_u32 s95, 1")
    a("s_cselect_b32 s39, s43, s34")
    a("s_cmp_eq_u32 s38, 1")
    a("s_cselect_b32 s39, 5, s39")
    a("s_sub_u32 s42, 0, s42")
    rowsetup()
    a("s_add_u32 s51, s11, 25")
    a("s_and_b32 s38, s38, s11")
    a("s_cbranch_scc0 L_st_go")
    a("v_and_b32 v28, 3, v1")
    a("v_lshlrev_b32 v28, 8, v28")
    a(f"v_add_u32 v28, {FLAGS + 1024}, v28")
    a(f"s_add_u32 s45, s45, {6*PROW}")
    poll(a, "L_st_s1", 28, 11, 24, cfg.sleep2)
    for k in range(2): a(f"ds_read_b128 {vr(16+4*k,4)}, v2 offset:{6*SROW + 128*k}")
    for k in range(2):
        a(f"s_waitcnt lgkmcnt({1-k})")
        a(f"buffer_store_dwordx4 {vr(16+4*k,4)}, v5, s[24:27], s45 offen offset:{128*k}{cfg.stflag}")
    a.label("L_st_go")
    poll(a, "L_st_p1", 10, 11, "s51", cfg.sleep2)
    for k in range(2): a(f"ds_read_b128 {vr(16+4*k,4)}, v12 offset:{128*k}")
    a("v_add_u32 v12, s41, v12")
    a("s_add_u32 s51, s51, 2")
    for k in range(2):
        a(f"s_waitcnt lgkmcnt({1-k})")
        a(f"buffer_store_dwordx4 {vr(16+4*k,4)}, v5, s[24:27], s47 offen offset:{128*k}{cfg.stflag}")
    a("s_add_u32 s47, s47, s40")
    a("s_cmp_lt_u32 s51, 30")
    a("s_cbranch_scc1 L_st_go")
    a.label("L_st_end")
    if cfg.amp in ("all", "pt"): a("s_branch L_ampall")
    if cfg.diag:
        stamp(a, 5)
        a("s_waitcnt vmcnt(0)")
        stamp(a, 6)
        dump_stamps(a, cfg)
    a.label("L_exit")
    a("s_endpgm")
    a.label("L_compute")
    if cfg.cbar == 0:
        a("s_waitcnt lgkmcnt(0)")
        a("s_barrier")
    a("s_sub_u32 s37, s32, 4")
    a("s_and_b32 s38, s37, 1")
    a("s_lshr_b32 s37, s37, 1")
    a("s_add_u32 s39, s34, 6")
    a("s_mul_i32 s49, s37, s39")
    a(f"v_mov_b32 v{V_CP}, v30")
    a(f"v_mov_b32 v{V_PV}, 0")
    a("v_and_b32 v32, 15, v1")
    a("v_lshrrev_b32 v33, 4, v1")
    a("v_and_b32 v34, 1, v33")
    a("v_lshrrev_b32 v35, 1, v33")
    a("v_bfe_u32 v36, v1, 2, 2")
    a("v_and_b32 v37, 3, v1")
    a(f"v_lshlrev_b32 v{V_LF}, 8, v37")
    a(f"v_add_u32 v{V_LF}, {FLAGS}, v{V_LF}")
    a(f"v_or_b32 v16, 512, v{V_LF}")
    a(f"v_xor_b32 v17, 512, v16")
    a("s_lshl_b32 s39, s38, 7")
    a("v_lshlrev_b32 v40, 5, v34")
    a("v_lshl_add_u32 v40, v35, 4, v40")
    a("v_add_u32 v40, s39, v40")
    a("s_lshl_b32 s39, s38, 5")
    a("s_add_u32 s39, s39, 64")
    a("v_lshlrev_b32 v41, 3, v33")
    a("v_add_u32 v41, s39, v41")
    a("v_mul_u32_u24 v38, 384, v32")
    a("v_add_u32 v38, s36, v38")
    a(f"v_add_u32 v{V_SA}, v38, v40")
    a(f"v_add_u32 v{V_SC}, v38, v41")
    a("v_mul_u32_u24 v38, 208, v32")
    a(f"s_mul_i32 s39, s49, {SROW}")
    a("v_add_u32 v38, s39, v38")
    a("s_lshl_b32 s39, s38, 7")
    a(f"v_lshl_add_u32 v{V_GA}, v33, 3, v38")
    a(f"v_add_u32 v{V_GA}, s39, v{V_GA}")
    a(f"v_add_u32 v{V_GB}, v38, v41")
    a(f"s_mul_i32 s47, s49, {PROW}")
    a("s_add_u32 s47, s47, s35")
    a("v_lshl_add_u32 v38, v33, 3, v36")
    a("v_mul_u32_u24 v38, 192, v38")
    a("v_lshl_add_u32 v38, v37, 3, v38")
    a(f"v_add_u32 v38, {WBASE}, v38")
    a("s_add_u32 s39, s38, 2")
    a("v_xor_b32 v39, s39, v34")
    a(f"v_lshl_add_u32 v{V_WA[0]}, v39, 5, v38")
    a("s_lshl_b32 s39, s38, 2")
    a("v_xor_b32 v39, s39, v34")
    a(f"v_lshl_add_u32 v{V_WA[1]}, v39, 5, v38")
    a("v_xor_b32 v39, 1, v39")
    a(f"v_lshl_add_u32 v{V_WA[2]}, v39, 5, v38")
    a("v_lshlrev_b32 v38, 6, v32")
    a("v_lshl_add_u32 v38, v33, 4, v38")
    a(f"s_mul_i32 s39, s49, {XROW}")
    a("s_lshl_b32 s50, s28, 6")
    a("s_add_u32 s39, s39, s50")
    a(f"v_add_u32 v{V_XL}, s39, v38")
    a(f"s_lshr_b32 s50, {sum(1 << (h + 1) for h in (5, 10, 15))}, s28")
    a("s_movk_i32 s53, -256")
    a("s_bitcmp1_b32 s50, 15")
    a("s_cselect_b32 s54, s53, 64")
    a(f"v_lshrrev_b32 v{V_T}, 3, v{V_XL}")
    a(f"v_and_b32 v{V_T}, 32, v{V_T}")
    a(f"v_xor_b32 v{V_XA[0]}, v{V_XL}, v{V_T}")
    a(f"v_xor_b32 v{V_XA[1]}, 32, v{V_XA[0]}")
    if cfg.mov64:
        for k in range(0, 84, 2): a(f"v_mov_b64 {vr(V_ACC+k,2)}, 0")
    else:
        for k in range(84): a(f"v_mov_b32 v{V_ACC+k}, 0")
    a(f"s_mov_b32 s40, {(1 << 6) | (1 << 11)}")
    a(f"s_mov_b32 s41, {sum(1 << (h + 1) for h in (3, 6, 9, 12))}")
    a(f"s_mov_b32 s44, {(-2*WBUF) & 0xffffffff}")
    a(f"s_mov_b32 s45, {WBUF}")
    a("s_mov_b32 s46, 2")
    if cfg.amp == "stall": a("s_mov_b32 s85, 0")
    if cfg.cbar == 1:
        a("s_waitcnt lgkmcnt(0)")
        a("s_barrier")
    if cfg.diag: stamp(a, 1)
    a(f"s_mov_b32 s26, {XBYTES}")
    a("s_mov_b32 s27, 0x20000")
    if cfg.prio: a(f"s_setprio {cfg.prio}")
    if cfg.amp in ("span", "skew"): srd(a, 80, 12, 256)
    for var in (1, 2, 3):
        a(f"s_cmp_eq_u32 s31, {var}")
        a(f"s_cbranch_scc1 L_pro{var}")
    if cfg.pads: a("s_branch L_pro0")
    for var in range(4):
        emit_variant(a, var, cfg)
    a.label("L_end")
    for _ in range(100): a("s_endpgm")
    out += a.text()
    nv = (V_END + 7) // 8 * 8
    out += f""".section .rodata,"a"
.p2align 6
.amdhsa_kernel {NAME}_kernel
  .amdhsa_next_free_vgpr {nv}
  .amdhsa_next_free_sgpr 96
  .amdhsa_accum_offset {nv}
  .amdhsa_group_segment_fixed_size 0
  .amdhsa_kernarg_size 40
  .amdhsa_user_sgpr_count 2
  .amdhsa_user_sgpr_kernarg_segment_ptr 1
  .amdhsa_system_sgpr_workgroup_id_x 1
.end_amdhsa_kernel
"""
    return out

if __name__ == "__main__":
    p = argparse.ArgumentParser()
    p.add_argument("-o", default="standalone__dilated_atrous__vision.s")
    p.add_argument("--diag", action="store_true")
    p.add_argument("--trace", action="store_true")
    p.add_argument("--bar_pos", type=int, default=62)
    p.add_argument("--xbar", type=int, default=40)
    p.add_argument("--lead", type=int, default=5)
    p.add_argument("--safe", type=int, default=8)
    p.add_argument("--prio", type=int, default=1)
    p.add_argument("--align", type=int, default=1)
    p.add_argument("--snake", type=int, default=1)
    p.add_argument("--exper", type=int, default=2)
    p.add_argument("--order", type=int, default=1)
    p.add_argument("--wpf", type=int, default=0)
    p.add_argument("--epf", type=int, default=0)
    p.add_argument("--cpf", type=int, default=1)
    p.add_argument("--sleep", type=int, default=2)
    p.add_argument("--sleep2", type=int, default=0)
    p.add_argument("--stflag", default="sc0 sc1 nt")
    p.add_argument("--wd", type=int, default=1)
    p.add_argument("--amp", default="")
    p.add_argument("--jrot", type=int, default=0)
    p.add_argument("--pt", default="")
    p.add_argument("--sg", type=int, default=0)
    p.add_argument("--addd", type=int, default=0)
    p.add_argument("--onlyw", type=int, default=-1)
    p.add_argument("--onlyb", type=int, default=-1)
    p.add_argument("--help2", dest="help", type=int, default=0)
    p.add_argument("--pg", type=int, default=1)
    p.add_argument("--alead", type=int, default=20)
    p.add_argument("--entry_last", type=int, default=0)
    p.add_argument("--pad4", type=int, default=0)
    p.add_argument("--lx", type=int, default=-1)
    p.add_argument("--al8", type=int, default=0)
    p.add_argument("--shift4", type=int, default=0)
    p.add_argument("--rush", type=int, default=30)
    p.add_argument("--fill", type=int, default=0)
    p.add_argument("--pads", type=int, default=1)
    p.add_argument("--nstage", type=int, default=5)
    p.add_argument("--spec", type=int, default=1)
    p.add_argument("--stprio", type=int, default=0)
    p.add_argument("--mov64", type=int, default=1)
    p.add_argument("--xflag", default="")
    p.add_argument("--wflag", default="")
    p.add_argument("--fixd", type=int, default=0)
    p.add_argument("--wbl2", type=int, default=0)
    p.add_argument("--bench", action="store_true")
    p.add_argument("--drop", default="")
    p.add_argument("--cmpd", type=int, default=4)
    p.add_argument("--updstep", type=int, default=1)
    p.add_argument("--xthr", type=int, default=2)
    p.add_argument("--cbar", type=int, default=0)
    p.add_argument("--w2wait", type=int, default=1)
    p.add_argument("--xb", default="3:1,4:2,5:4,6:8,8:3,9:12")
    cfg = p.parse_args()
    cfg.xb = [tuple(int(v) for v in e.split(":")) for e in cfg.xb.split(",")]
    WD = cfg.wd
    if cfg.stflag: cfg.stflag = " " + cfg.stflag
    if cfg.xflag: cfg.xflag = " " + cfg.xflag
    if cfg.wflag: cfg.wflag = " " + cfg.wflag
    open(cfg.o, "w").write(gen(cfg))
```

```python
import sys, argparse

NAME = "standalone__dilated_atrous__vision"
XBYTES = 224 * 224 * 96 * 2
WBYTES = 25 * 96 * 96 * 2
ROWB = 224 * 192
PROW = 2 * ROWB
XCH = 352 * 64
XROW = 20 * 64
WBASE = 3 * XCH
WBUF = 5 * 6144
FLAGS = WBASE + 3 * WBUF
LDS_TOTAL = FLAGS + 2048
SROW = 16 * 208
assert 13 * SROW <= 2 * XCH

class Asm:
    def __init__(self):
        self.lines = []
    def __call__(self, s):
        self.lines.append("    " + s)
    def label(self, l):
        self.lines.append(l + ":")
    def comment(self, s):
        self.lines.append("    ; " + s)
    def text(self):
        return "\n".join(self.lines) + "\n"

def vr(b, n):
    return f"v[{b}:{b+n-1}]"

V_XL = 1
V_XA = (2, 3)
V_WA = (4, 5, 6)
V_SA, V_SC = 7, 8
V_GA, V_GB = 9, 10
V_T = 11
V_XB = (22, 23)
V_CP = 25
V_LF = 26
V_PV = 27
V_F = 28
V_X = 32
V_W = 76
V_ACC = 136
V_EXTRA = V_ACC + 84
V_END = V_EXTRA + 32

TYPES = {
    0: (range(0, 6), range(0, 7), range(0, 6)),
    1: (range(0, 6), range(1, 7), range(0, 7)),
    2: (range(0, 7), range(1, 7), range(1, 7)),
    3: (range(0, 6), range(0, 6), range(0, 6)),
}
OFF = {0: 0, 1: 1, 2: 1, 3: 0}
SPECIAL = {0: 6, 1: 0, 2: 0, 3: None}
LASTHEAD = {
    0: [(0, 0), (0, 1), (6, 1), (0, 2)],
    1: [(0, 0), (1, 0), (1, 1), (0, 2), (1, 2)],
    2: [(0, 0), (1, 0), (1, 1), (2, 0), (1, 2), (2, 1), (2, 2)],
    3: [(0, 0), (0, 1), (1, 0), (0, 2), (1, 1), (1, 2)],
}

def acc(rho, t): return V_ACC + 4 * (rho * 3 + t)
def wreg(i, t): return V_W + 4 * (i * 3 + t)
def xreg(q): return V_X + 4 * q

def chain(rho, t, rev):
    r = list(range(5))
    if rev: r.reverse()
    return [(rho, i, t, rho + i) for i in r]

def steady_order(var, cfg, par=(1, 1, 1)):
    ms = []
    for t in range(3):
        for j, rho in enumerate(TYPES[var][t]): ms += chain(rho, t, cfg.snake and j % 2 == par[t])
    return ms

DIRECT = {0: (5,), 1: (6, 5), 2: (6,), 3: (5,)}

def last_tiles(var):
    order = list(LASTHEAD[var])
    rows = [r for r in range(7) if r not in DIRECT[var]] + list(DIRECT[var])
    for r in rows:
        for t in ((0, 1, 2) if r not in DIRECT[var] else (1, 2, 0)):
            if r in TYPES[var][t] and (r, t) not in order: order.append((r, t))
    return order

def last_order(var, cfg, par=1):
    ms = []
    for j, (r, t) in enumerate(last_tiles(var)): ms += chain(r, t, cfg.snake and j % 2 == par and j >= 4)
    return ms

def uses(ms):
    first, last = {}, {}
    for k, (rho, i, t, q) in enumerate(ms):
        for key in (("w", i, t, 0), ("w", i, t, 1), ("x", q)):
            first.setdefault(key, k); last[key] = k
    return first, last

def read_text(nm):
    if nm[0] == "x":
        q = nm[1]
        return f"ds_read_b128 {vr(xreg(q),4)}, v{V_XA[q & 1]} offset:{q*XROW}"
    _, i, t, h = nm
    return f"ds_read_b64_tr_b16 {vr(wreg(i,t)+2*h,2)}, v{V_WA[t]} offset:{i*6144 + h*768}"

def edf(reads, lo, hi, lead, busy=()):
    placed, pending = {}, list(reads)
    for k in range(lo, hi):
        avail = [r for r in pending if r[1] <= k]
        if not avail: continue
        r = min(avail, key=lambda r: r[2])
        placed[k] = r[0]
        pending.remove(r)
        assert r[2] - k >= lead, (r, k)
    assert not pending, pending
    return placed

def mfma_text(m):
    rho, i, t, q = m
    return f"v_mfma_f32_16x16x32_bf16 {vr(acc(rho,t),4)}, {vr(wreg(i,t),4)}, {vr(xreg(q),4)}, {vr(acc(rho,t),4)}"

class LdsQ:
    def __init__(self, a, safe):
        self.a, self.safe = a, safe
        self.ops = []
        self.done = 0
        self.waits = []
    def issue(self, name, time, text=None):
        self.ops.append((name, time))
        if text: self.a(text)
    def need(self, names, time):
        idx = max(max(j for j, (nm, _) in enumerate(self.ops) if nm == n) for n in names) + 1
        if idx <= self.done: return
        for j, (nm, tm) in enumerate(self.ops):
            if tm <= time - 1 - self.safe: idx = max(idx, j + 1)
        cnt = len(self.ops) - idx
        if cnt > 14:
            idx += cnt - 14; cnt = 14
        self.a(f"s_waitcnt lgkmcnt({cnt})")
        self.waits.append((time, cnt, len(self.ops)))
        self.done = idx

WD = 1
def poll(a, label, vaddr, vtmp, sneed, sleep, wd=True):
    a.label(label)
    if WD and wd:
        a("s_add_u32 s94, s94, 1")
        a("s_bitcmp1_b32 s94, 18")
        a("s_cbranch_scc1 L_exit")
    a(f"ds_read_b32 v{vtmp}, v{vaddr}")
    a("s_waitcnt lgkmcnt(0)")
    a(f"v_cmp_gt_u32 vcc, {sneed}, v{vtmp}")
    if sleep:
        a(f"s_cbranch_vccz {label}_ok")
        a(f"s_sleep {sleep}")
        a(f"s_branch {label}")
        a.label(label + "_ok")
    else:
        a(f"s_cbranch_vccnz {label}")

def isize(l):
    l = l.strip()
    op = l.split()[0]
    if op.startswith(("v_mfma", "ds_", "buffer_", "v_cvt_pk")) or op.endswith("_e64"): return 8
    import re
    for tok in re.split(r"[ ,]+", l)[1:]:
        if re.fullmatch(r"-?\d+|0x[0-9a-f]+", tok) and not op.startswith(("s_waitcnt", "s_nop")):
            v = int(tok, 0)
            if not (-16 <= v <= 64): return 8
    return 4

def align8(lines):
    out = []
    for l in lines:
        op = l.strip().split()[0]
        if op.startswith("v_") and isize(l) == 4:
            l = l.replace(op, op + "_e64", 1)
        out.append(l)
    res, off = [], 0
    for l in out:
        sz = isize(l)
        if sz == 8 and off % 8 == 4:
            res.append("    s_nop 0"); off += 4
        res.append(l); off += sz
    if off % 8 == 4: res.append("    s_nop 0")
    return res

def emit_variant(a, var, cfg):
    bar = cfg.bar_pos if var != 3 else cfg.bar_pos - 3
    best = None
    for par in [(p0, 1, p2) for p0 in (1, 0) for p2 in (1, 0)]:
        ms = steady_order(var, cfg, par)
        n = len(ms)
        first, last = uses(ms)
        reads = [(key, max(last[key], bar, n if (key[0] == "w" and key[2] == 2) else 0), n + first[key]) for key in first]
        placed = edf(reads, bar, n + bar - 16, 0)
        ld = min(n + first[nm] - k for k, nm in placed.items())
        if best is None or ld > best[0]: best = (ld, par, ms, first, last, placed)
    ld, par, ms, first, last, placed = best
    print(f"variant {var}: snake parity {par}, min lead {ld}", file=sys.stderr)
    tail = [(k, placed[k]) for k in sorted(placed) if k < n]
    head = [(k - n, placed[k]) for k in sorted(placed) if k >= n]
    slow = []
    hb, tb = Asm(), Asm()
    q = LdsQ(hb, cfg.safe)
    for k, nm in tail: q.issue(nm, k - n)
    headd, taild = dict(head), dict(tail)
    extra = {}
    def put(k, s): extra.setdefault(k, []).append(s)
    krel = max(k for k, nm in head) + 1
    put(krel - 1, f"v_add_u32 v{V_PV}, 1, v{V_PV}")
    upd = ["s_bitcmp1_b32 s40, s46", f"s_cselect_b32 s42, {XCH}, 0",
           "s_bitcmp1_b32 s50, s46", "s_cselect_b32 s51, s53, 64", "s_add_u32 s42, s42, s51",
           "s_bitcmp1_b32 s41, s46", "s_cselect_b32 s43, s44, s45",
           "s_cmp_eq_u32 s46, 14", "s_cselect_b32 s49, 1000, s46",
           f"v_add_u32 v{V_XL}, s42, v{V_XL}", f"v_lshrrev_b32 v{V_T}, 3, v{V_XL}", f"v_and_b32 v{V_T}, 32, v{V_T}",
           f"v_xor_b32 v{V_XA[0]}, v{V_XL}, v{V_T}", f"v_xor_b32 v{V_XA[1]}, 32, v{V_XA[0]}"]
    upd += [f"v_add_u32 v{V_WA[t]}, s43, v{V_WA[t]}" for t in range(3)]
    b0 = krel + 2
    for j, u in enumerate(upd): put(b0 + cfg.updstep * j, u)
    kflag = bar - cfg.cmpd - 9
    assert b0 + cfg.updstep * len(upd) <= kflag
    cur = hb
    for k, m in enumerate(ms):
        rho, i, t, qq = m
        q.need([("w", i, t, 0), ("w", i, t, 1), ("x", qq)], k)
        cur(mfma_text(m))
        D = cfg.drop
        for s in extra.get(k, []): cur(s)
        if k == krel: q.issue(("rel",), k, f"ds_write_b32 v{V_CP}, v{V_PV}")
        if k == kflag: q.issue(("flag",), k, f"ds_read_b32 v{V_F}, v{V_LF}")
        if k == bar - cfg.cmpd - 1: q.need([("flag",)], k + 1)
        if k == bar - cfg.cmpd: cur(f"v_cmp_gt_u32 vcc, s49, v{V_F}")
        if k == bar:
            cur = tb; q.a = tb
        drop = lambda nm: ("l" in D and k in taild) or ("w" in D and nm[0] == "w" and k in taild) or ("x" in D and nm[0] == "x")
        if k in headd: q.issue(headd[k], k, read_text(headd[k]) if not drop(headd[k]) else None)
        if k in taild: q.issue(("next",) + taild[k], k, read_text(taild[k]) if not drop(taild[k]) else None)
        if k == n - 9: cur("s_add_u32 s46, s46, 1")
    kinds = ("w", "x") if ((var < 2 and cfg.order == 1) or cfg.order == 3) else ("x", "w")
    ent = [[nm for _, nm in sorted(tail, key=lambda e: first[e[1]]) if nm[0] == kd] for kd in kinds]
    late = ent[1]
    def entry_ok(m):
        done = len(late) - m
        wi = 0
        for k, (rho, i, t, qq) in enumerate(ms):
            while wi < len(q.waits) and q.waits[wi][0] <= k:
                _, cnt, nops = q.waits[wi]; wi += 1
                body_ops = nops - len(tail)
                done = max(done, len(late) - max(0, cnt - body_ops))
            for nm in (("w", i, t, 0), ("w", i, t, 1), ("x", qq)):
                if nm in late and late.index(nm) >= done: return False
        return True
    ment = max(mm for mm in range(min(len(late), 14) + 1) if entry_ok(mm))
    def emit_entry():
        a.label(f"L_pro{var}")
        if cfg.amp == "pt" and cfg.pt == "lpro":
            a("s_memrealtime s[86:87]")
            a("s_waitcnt lgkmcnt(0)")
        poll(a, f"L_p0_{var}", 16 if kinds[0] == "x" else 17, V_F, 1, 0)
        for nm in ent[0]: a(read_text(nm))
        poll(a, f"L_p1_{var}", 16 if kinds[1] == "x" else 17, V_F, 1, 0)
        if cfg.diag: stamp(a, 3)
        if cfg.amp and cfg.amp != "pt":
            a("s_memrealtime s[86:87]")
            a("s_waitcnt lgkmcnt(0)")
        for nm in late: a(read_text(nm))
        a(f"s_waitcnt lgkmcnt({ment})")
        a(f"s_branch L_head{var}")
    if not cfg.entry_last: emit_entry()
    if cfg.al8:
        hb.lines = align8(hb.lines); tb.lines = align8(tb.lines)
    if cfg.align: a(".p2align 6")
    if cfg.pads:
        a.label(f"L_pad{var}")
        a("s_branch L_compute")
        a("s_nop 0")
    a.label(f"L_top{var}")
    a.lines += tb.lines
    a.label(f"L_head{var}")
    a.lines += hb.lines
    a(f"s_cbranch_vccz L_top{var}")
    a("s_min_u32 s49, s49, 15")
    a(f"v_cmp_gt_u32 vcc, s49, v{V_F}")
    a(f"s_cbranch_vccnz L_slow{var}")
    a.label(f"L_fin{var}")
    a.lines += tb.lines
    if cfg.diag: stamp(a, 4)
    if cfg.cpf: a("s_waitcnt vmcnt(0)")
    rows = TYPES[var]
    down = var == 0
    prow = sorted(set(rows[1]) | set(rows[2]), reverse=down)
    lastrow = prow[-1]
    srow2 = sorted(rows[0], reverse=not down)
    def build(pa, pb):
        out = []
        for j, r in enumerate(rows[0]):
            out += [m + (13, 0) for m in chain(r, 0, cfg.snake and j % 2 == pa)]
        for j, r in enumerate(srow2):
            out += [m + (14, 0) for m in chain(r, 0, cfg.snake and j % 2 == pb)]
        keep = set(range(srow2[-1], srow2[-1] + 5))
        flip = 0
        tiles = []
        for r in prow:
            ts = [t for t in ((1, 2) if flip == 0 else (2, 1)) if r in rows[t]]
            if r == lastrow: ts = [1, 2]
            for j, t in enumerate(ts):
                gs = (14, 13) if j == 0 else (13, 14)
                for g in gs:
                    for m in chain(r, t, (j == 1) != down):
                        out.append(m + (g, 0 if (g == 14 and m[3] in keep) else 1))
                tiles.append((r, t))
            flip = 0 if ts[-1] == 1 else 1
        return out, tiles
    def names(m):
        rho, i, t, qq, g, occ = m
        return [("w", g, i, t, 0), ("w", g, i, t, 1), ("x", g, qq, occ)]
    frag = lambda nm: nm if nm[0] == "x" else nm[:4]
    conv = lambda nm: ("x", 13, nm[1], 0) if nm[0] == "x" else ("w", 13) + nm[1:]
    pre = [(k - n, conv(nm)) for k, nm in tail]
    prenames = set(nm for _, nm in pre)
    slots = [V_X + 4 * j for j in range(26)] + [V_EXTRA + 4 * j for j in range(8)]
    best = None
    for pa in (1, 0):
      for pb in (1, 0):
        ls, ptiles = build(pa, pb)
        lf, ll = {}, {}
        for k, m in enumerate(ls):
            for nm in names(m):
                lf.setdefault(nm, k); ll[nm] = k
        free = {sl: 0 for sl in slots}
        regs = {}
        for nm in prenames:
            sl = xreg(nm[2]) if nm[0] == "x" else wreg(nm[2], nm[3])
            regs[frag(nm)] = sl
            free[sl] = max(free[sl], ll.get(nm, 0))
        rds, early = [], {}
        for nm in sorted(lf, key=lambda v: lf[v]):
            if nm in prenames: continue
            fr = frag(nm)
            if fr not in regs:
                ok = [sl for sl in slots if free[sl] <= lf[nm] - cfg.alead]
                sl = max(ok, key=lambda v: free[v]) if ok else min(slots, key=lambda v: free[v])
                regs[fr] = sl; early[fr] = free[sl]; free[sl] = ll[nm]
            e = early.get(fr, 0)
            if nm[0] == "x" and nm[1] == 14: e = max(e, 6)
            rds.append((nm, e, lf[nm]))
        try: lp = edf(rds, 0, len(ls), 0)
        except AssertionError: continue
        ld2 = min([lf[nm] - k for k, nm in lp.items()] + [lf[nm] - k for k, nm in pre if nm in lf])
        if best is None or ld2 > best[0]: best = (ld2, (pa, pb), ls, lf, lp, regs, ptiles)
    ld2, pars, ls, lf, lplaced, regs, ptiles = best
    print(f"   final segment: parity {pars} min lead {ld2} reads {len(lplaced)}", file=sys.stderr)
    def rd_text(nm):
        if nm[0] == "x":
            _, g, qq, occ = nm
            return f"ds_read_b128 {vr(regs[nm],4)}, v{(V_XA if g == 13 else V_XB)[qq & 1]} offset:{qq*XROW}"
        _, g, i, t, h = nm
        return f"ds_read_b64_tr_b16 {vr(regs[frag(nm)]+2*h,2)}, v{V_WA[t]} offset:{(g-13)*WBUF + i*6144 + h*768}"
    n2 = len(ls)
    q = LdsQ(a, cfg.safe)
    for k, nm in pre: q.issue(nm, k)
    endk = {}
    for k, m in enumerate(ls): endk[(m[0], m[2])] = k
    def cvt2(D, S, tile):
        return [(tile, f"v_cvt_pk_bf16_f32 v{D}, v{S}, v{S+1}"), (tile, f"v_cvt_pk_bf16_f32 v{D+1}, v{S+2}, v{S+3}")]
    seq = [(None, f"v_add_u32 v{V_XL}, s54, v{V_XL}"), (None, f"v_lshrrev_b32 v{V_T}, 3, v{V_XL}"), (None, f"v_and_b32 v{V_T}, 32, v{V_T}"),
           (None, f"v_xor_b32 v{V_XB[0]}, v{V_XL}, v{V_T}"), (None, f"v_xor_b32 v{V_XB[1]}, 32, v{V_XB[0]}")]
    for j, r in enumerate(srow2):
        S = acc(r, 0)
        seq += cvt2(S, S, (r, 0))
        seq += [(None, f"v_mov_b32 v{V_PV}, {16 + j}"), (None, f"ds_write_b64 v{V_GB}, {vr(S,2)} offset:{r*SROW}"),
                (None, f"ds_write_b32 v{V_CP}, v{V_PV}")]
    kfull, seen = 0, set()
    for (r, t) in ptiles:
        S = acc(r, t)
        if r != lastrow:
            seq += cvt2(S, S, (r, t))
            pv = None
            if not (r in rows[1] and r in rows[2]): pv = 24
            elif r in seen:
                pv = 25 + kfull; kfull += 1
            seen.add(r)
            if pv: seq.append((None, f"v_mov_b32 v{V_PV}, {pv}"))
            seq.append((None, f"ds_write_b64 v{V_GA}, {vr(S,2)} offset:{r*SROW + (32 if t == 2 else 0)}"))
            if pv: seq.append((None, f"ds_write_b32 v{V_CP}, v{V_PV}"))
        elif t == 1:
            seq += cvt2(S, S, (r, t))
            seq.append((None, f"s_add_u32 s48, s47, {r*PROW}"))
        else:
            A = acc(r, 1)
            seq += cvt2(A + 2, S, (r, t))
            seq.append(("W2", f"v_permlane16_swap_b32 v{A}, v{A+2}"))
            seq.append((None, f"v_permlane16_swap_b32 v{A+1}, v{A+3}"))
            seq.append((None, f"buffer_store_dwordx4 {vr(A,4)}, v{V_SA}, s[24:27], s48 offen{cfg.lastflag}"))
    assert kfull == 5
    def states(frm):
        c = 0
        for l in a.lines[frm + 1:]:
            l = l.strip()
            if l.endswith(":") or l.startswith(";") or l.startswith("."): continue
            c += int(l.split()[1]) + 1 if l.startswith("s_nop") else 1
        return c
    done_at = {}
    last_valu = [0]
    def missing(dep):
        if dep is None: return 0
        if dep == "W2": return max(0, 2 - states(last_valu[0]))
        if dep not in done_at: return None
        return max(0, 8 - states(done_at[dep]))
    nl = [0]
    def emit_ex(txt, k):
        for key, pat in (("C", "v_cvt"), ("P", "v_permlane"), ("V", "ds_write_b64"), ("F", "ds_write_b32"), ("S", "buffer_store")):
            if key in cfg.drop and txt.startswith(pat): return
        if txt.startswith("ds_"):
            nl[0] += 1; q.issue(("st", nl[0]), k, txt)
        else: a(txt)
        if txt.startswith("v_cvt"): last_valu[0] = len(a.lines) - 1
    for k, m in enumerate(ls):
        rho, i, t, qq, g, occ = m
        q.need(names(m), k)
        a(f"v_mfma_f32_16x16x32_bf16 {vr(acc(rho,t),4)}, {vr(regs[('w',g,i,t)],4)}, {vr(regs[('x',g,qq,occ)],4)}, {vr(acc(rho,t),4)}")
        if endk[(rho, t)] == k: done_at[(rho, t)] = len(a.lines) - 1
        cnt = 0
        if k in lplaced:
            q.issue(lplaced[k], k, rd_text(lplaced[k])); cnt += 1
        lim = cfg.exper if (k >= n2 - cfg.rush or k < 6) else 1
        if k < 6: cnt = 1
        while seq and cnt < lim and k < n2 - 1:
            miss = missing(seq[0][0])
            if miss == 0:
                emit_ex(seq.pop(0)[1], k); cnt += 1
            else:
                if miss is not None and miss > 1 and cnt == 0 and k >= n2 - cfg.fill: a("s_nop 1")
                break
    while seq:
        miss = missing(seq[0][0])
        if miss: a(f"s_nop {miss - 1}")
        emit_ex(seq.pop(0)[1], n2)
    if cfg.diag:
        stamp(a, 5)
        a("s_waitcnt vmcnt(0)")
        stamp(a, 6)
        a("s_branch L_dump")
    elif cfg.amp:
        if var == 0: a.label("L_ampall")
        a("s_waitcnt vmcnt(0)")
        a("s_memrealtime s[88:89]")
        a("s_waitcnt lgkmcnt(0)")
        if cfg.amp in ("span", "skew"):
            a("v_mov_b32 v4, 0")
            a("buffer_load_dwordx2 v[6:7], v4, s[80:83], 0 offen sc0 sc1")
            a("s_waitcnt vmcnt(0)")
            a("v_readfirstlane_b32 s86, v6")
            a("v_readfirstlane_b32 s58, v7")
            a("s_nop 3")
            a("s_not_b32 s58, s58")
        lo, hi = {"pro": (58, 86), "all": (58, 88), "loop": (86, 88), "none": (58, 58), "span": (58, 88), "skew": (58, 86), "stall": (58, 58), "pt": (58, 86)}[cfg.amp]
        a(f"s_sub_u32 s90, s{hi}, s{lo}")
        a("s_mul_i32 s90, s90, 10")
        if cfg.fixd: a(f"s_mov_b32 s90, {cfg.fixd}")
        if cfg.amp == "stall": a("s_mul_i32 s90, s85, 10")
        if cfg.onlyw >= 0:
            a(f"s_cmp_eq_u32 s32, {cfg.onlyw}")
            a("s_cselect_b32 s90, s90, 0")
        if cfg.onlyb >= 0:
            a(f"s_cmp_eq_u32 s2, {cfg.onlyb}")
            a("s_cselect_b32 s90, s90, 0")
        if cfg.addd: a(f"s_cselect_b32 s91, {cfg.addd}, 0"); a("s_add_u32 s90, s90, s91")
        if cfg.wbl2:
            a("buffer_wbl2 sc1")
        a.label(f"L_amp{var}")
        a("s_memrealtime s[76:77]")
        a("s_waitcnt lgkmcnt(0)")
        a("s_sub_u32 s91, s76, s88")
        a("s_cmp_lt_u32 s91, s90")
        a(f"s_cbranch_scc1 L_amp{var}")
        a("s_endpgm")
    else:
        a("s_endpgm")
    if cfg.amp == "stall":
        a.label(f"L_slow{var}")
        a("s_memrealtime s[76:77]")
        poll(a, f"L_slowb{var}", V_LF, V_F, "s49", 0)
        a("s_memrealtime s[78:79]")
        a("s_waitcnt lgkmcnt(0)")
        a("s_sub_u32 s78, s78, s76")
        if cfg.sg:
            a(f"s_cmp_eq_u32 s46, {cfg.sg}")
            a("s_cselect_b32 s78, s78, 0")
        a("s_add_u32 s85, s85, s78")
    else:
        poll(a, f"L_slow{var}", V_LF, V_F, "s49", 0)
    a("s_cmp_eq_u32 s46, 14")
    a(f"s_cbranch_scc1 L_fin{var}")
    a(f"s_branch L_top{var}")
    for lab, va, need, back in slow:
        poll(a, lab, va, V_F, need, 0)
        a(f"s_branch {back}")
    if cfg.entry_last: emit_entry()

def stamp(a, idx):
    a(f"s_memtime s[{60+2*idx}:{61+2*idx}]")
    if idx in (3, 5):
        a(f"s_memrealtime s[{86 if idx == 3 else 88}:{87 if idx == 3 else 89}]")
    a("s_waitcnt lgkmcnt(0)")

def dump_stamps(a, cfg):
    a.label("L_dump")
    a("s_memrealtime s[76:77]")
    a("s_getreg_b32 s78, hwreg(HW_REG_HW_ID)")
    a("s_getreg_b32 s79, hwreg(HW_REG_XCC_ID)")
    a("s_waitcnt lgkmcnt(0)")
    a("s_mov_b32 s80, s12")
    a("s_mov_b32 s81, s13")
    a("s_mov_b32 s82, 0x100000")
    a("s_mov_b32 s83, 0x20000")
    a("s_lshl_b32 s84, s2, 3")
    a("s_add_u32 s84, s84, s32")
    a("s_lshl_b32 s84, s84, 6")
    a("v_mov_b32 v4, 0")
    for k, s in enumerate([60, 62, 64, 66, 68, 70, 72, 74, 76, 77, 78, 79, 58, 59, 86, 88]):
        a(f"v_mov_b32 v5, s{s}")
        a(f"buffer_store_dword v5, v4, s[80:83], s84 offen offset:{4*k}")
        a("s_nop 1")
    a("v_and_b32 v1, 63, v0")
    a("v_lshlrev_b32 v4, 2, v1")
    a("v_cmp_gt_u32 vcc, 16, v1")
    a("s_and_saveexec_b64 s[92:93], vcc")
    a("s_lshl_b32 s84, s84, 2")
    a("s_add_u32 s84, s84, 0x40000")
    for k in range(3):
        a(f"buffer_store_dword v{44+k}, v4, s[80:83], s84 offen offset:{64*k}")
    a("s_waitcnt vmcnt(0)")
    a("s_endpgm")

def srd(a, d, p, size):
    a(f"s_mov_b32 s{d}, s{p}")
    a(f"s_and_b32 s{d+1}, s{p+1}, 0xffff")
    a(f"s_mov_b32 s{d+2}, {size}")
    a(f"s_mov_b32 s{d+3}, 0x20000")

def gen(cfg):
    a = Asm()
    hdr = open("standalone__dilated_atrous__vision.s.ref").read().splitlines()
    head = [l for l in hdr[:8] if l.startswith(";") and "@launch" not in l]
    out = "\n".join(head) + "\n"
    out += f"; @launch grid=(256,1,1) block=(512,1,1) lds={LDS_TOTAL}\n"
    out += f""".amdgcn_target "amdgcn-amd-amdhsa--gfx950"
.text
.globl {NAME}_kernel
{".p2align 12" + chr(10) if cfg.pg else ""}.p2align 8
.type {NAME}_kernel,@function
{NAME}_kernel:
"""
    def mark(name):
        if cfg.amp == "pt" and cfg.pt == name:
            a("s_memrealtime s[86:87]")
            a("s_waitcnt lgkmcnt(0)")
    def trace(reg, idx):
        if cfg.trace:
            a("s_memtime s[90:91]")
            a(f"s_mov_b32 m0, {idx}")
            a("s_waitcnt lgkmcnt(0)")
            a(f"v_writelane_b32 v{reg}, s90, m0")
    if cfg.diag:
        a("s_memtime s[60:61]")
        a("s_memrealtime s[58:59]")
        a("s_load_dwordx2 s[12:13], s[0:1], 32")
    if cfg.amp: a("s_memrealtime s[58:59]")
    if cfg.amp == "pt": a("s_memrealtime s[86:87]")
    if cfg.amp in ("span", "skew"): a("s_load_dwordx2 s[12:13], s[0:1], 24")
    a("s_load_dwordx2 s[16:17], s[0:1], 0")
    a("s_load_dwordx2 s[20:21], s[0:1], 8")
    a("s_load_dwordx2 s[24:25], s[0:1], 16")
    if WD: a("s_mov_b32 s94, 0")
    a("s_cmp_ge_u32 s2, 256")
    a("s_cbranch_scc1 L_exit")
    if cfg.lx < 0:
        a("s_and_b32 s28, s2, 1")
        a("s_bfe_u32 s3, s2, 0x20001")
        a("s_lshl_b32 s3, s3, 5")
        a("s_lshr_b32 s33, s2, 3")
        a("s_add_u32 s3, s3, s33")
        a("s_cmp_ge_u32 s3, 126")
        a("s_cbranch_scc1 " + ("L_help" if cfg.help else "L_exit"))
    else:
        a("s_and_b32 s3, s2, 7")
        a(f"s_sub_u32 s3, s3, {cfg.lx + 1}")
        a("s_and_b32 s3, s3, 7")
        a("s_lshl_b32 s3, s3, 5")
        a("s_lshr_b32 s33, s2, 3")
        a("s_add_u32 s3, s3, s33")
        a("s_cmp_ge_u32 s3, 252")
        a("s_cbranch_scc1 L_exit")
        a("s_cmp_ge_u32 s3, 224")
        a("s_cselect_b32 s33, 14, 112")
        a("s_cselect_b32 s34, 224, 0")
        a("s_cselect_b32 s29, 112, 0")
        a("s_sub_u32 s3, s3, s34")
        a("s_cmp_ge_u32 s3, s33")
        a("s_cselect_b32 s28, 1, 0")
        a("s_cselect_b32 s33, s33, 0")
        a("s_sub_u32 s3, s3, s33")
        a("s_add_u32 s3, s3, s29")
    a("v_lshrrev_b32 v2, 6, v0")
    a("v_and_b32 v1, 63, v0")
    a("v_readfirstlane_b32 s32, v2")
    a("v_lshlrev_b32 v30, 2, v0")
    a(f"v_add_u32 v30, {FLAGS}, v30")
    a("v_mov_b32 v31, 0")
    a("ds_write_b32 v30, v31")
    a("s_mul_i32 s33, s3, 4682")
    a("s_lshr_b32 s33, s33, 16")
    a("s_mul_i32 s34, s33, 14")
    a("s_sub_u32 s34, s3, s34")
    a("s_and_b32 s29, s34, 1")
    a("s_lshr_b32 s30, s34, 1")
    a("s_lshl_b32 s30, s30, 4")
    a("s_mul_i32 s31, s33, 25")
    a("s_lshr_b32 s31, s31, 1")
    a("s_and_b32 s34, s33, 1")
    a("s_lshl_b32 s35, s31, 1")
    a("s_add_u32 s35, s35, s28")
    a(f"s_mul_i32 s35, s35, {ROWB}")
    a("s_lshl_b32 s36, s30, 1")
    a("s_add_u32 s36, s36, s29")
    a("s_mul_i32 s36, s36, 192")
    a("s_lshl_b32 s52, s29, 1")
    a("s_sub_u32 s52, 2, s52")
    if cfg.jrot == 1:
        a("s_and_b32 s28, s2, 7")
        a("s_cmp_ge_u32 s28, 5")
        a("s_cselect_b32 s37, 4, 0")
        a("s_sub_u32 s28, s28, s37")
    elif cfg.jrot == 2:
        a("s_mul_i32 s37, s2, 205")
        a("s_lshr_b32 s37, s37, 10")
        a("s_mul_i32 s37, s37, 5")
        a("s_sub_u32 s28, s2, s37")
    else:
        a("s_mov_b32 s28, 0")
    if cfg.order == 1: a("s_mov_b32 s3, s34")
    elif cfg.order == 2: a("s_mov_b32 s3, 1")
    elif cfg.order == 3: a("s_mov_b32 s3, 0")
    elif cfg.order == 4:
        a("s_and_b32 s3, s2, 0x30")
        a("s_min_u32 s3, s3, 1")
    a("s_cmp_ge_u32 s32, 4")
    if cfg.cpf:
        a("s_cbranch_scc0 L_ld")
        a("s_bfe_u32 s31, s32, 0x10001")
        a("s_lshl1_add_u32 s31, s34, s31")
        a("s_cmp_eq_u32 s33, 8")
        a("s_cselect_b32 s31, 3, s31")
        a("s_getpc_b64 s[38:39]")
        a.label("L_pc")
        a("s_lshr_b32 s37, s2, 1")
        a("s_and_b32 s37, s37, 0x7c")
        a("s_add_u32 s37, s37, s32")
        a("s_min_u32 s37, s37, (L_end-L_pc)/256")
        a("s_lshl_b32 s37, s37, 8")
        a("s_add_u32 s38, s38, s37")
        a("s_addc_u32 s39, s39, 0")
        a("v_mov_b32 v12, s38")
        a("v_mov_b32 v13, s39")
        a("global_load_dword v14, v[12:13], off")
        a("global_load_dword v15, v[12:13], off offset:128")
        if cfg.pads:
            if cfg.pad4:
                a("s_cmp_eq_u32 s32, 4")
                a("s_cbranch_scc1 L_padl")
            a("s_bitcmp1_b32 s32, 0")
            a("s_cbranch_scc0 L_compute")
            a("s_cmp_eq_u32 s31, 0")
            a("s_cbranch_scc1 L_pad0")
            a("s_cmp_eq_u32 s31, 1")
            a("s_cbranch_scc1 L_pad1")
            a("s_cmp_eq_u32 s31, 2")
            a("s_cbranch_scc1 L_pad2")
            a("s_branch L_pad3")
        else:
            a("s_branch L_compute")
        a.label("L_ld")
    else:
        a("s_cbranch_scc1 L_compute")
    if cfg.bench:
        a("v_mov_b32 v31, 100")
        a("ds_write_b32 v30, v31")
        a("s_waitcnt lgkmcnt(0)")
        a("s_barrier")
        a("s_branch L_dump")
    a("s_add_u32 s37, s35, s36")
    a(f"s_sub_u32 s37, s37, {2*PROW + 2*384}")
    a("s_sub_u32 s38, s30, 2")
    a("s_cmp_eq_u32 s29, 0")
    a("s_cselect_b32 s14, 32, -32")
    a("s_cselect_b32 s15, 0, 320")
    a(f"s_mul_i32 s10, s14, {8*PROW//32}")
    a("s_and_b32 s11, s32, 1")
    a("s_lshl_b32 s39, s11, 4")
    a("s_add_u32 s15, s15, s39")
    a("v_lshrrev_b32 v13, 2, v1")
    a("v_add_u32 v13, s15, v13")
    a("v_lshrrev_b32 v14, 3, v1")
    a("v_and_b32 v14, 2, v14")
    a("v_and_b32 v15, 3, v1")
    a("v_xor_b32 v14, v14, v15")
    a("v_lshlrev_b32 v14, 4, v14")
    a("v_add_u32 v14, s37, v14")
    a("v_bfrev_b32 v19, 1")
    a("s_movk_i32 s39, 3277")
    a(f"s_mov_b32 s49, {PROW}")
    a("s_movk_i32 s50, 384")
    a("s_movk_i32 s51, 112")
    for b in range(5):
        a("v_mul_u32_u24 v15, s39, v13")
        a("v_lshrrev_b32 v15, 16, v15")
        a("v_mul_u32_u24 v16, 20, v15")
        a("v_sub_u32 v16, v13, v16")
        a("v_add_u32 v17, s38, v16")
        a("v_cmp_gt_u32 vcc, s51, v17")
        a("v_mad_u32_u24 v18, v15, s49, v14")
        a("v_mad_u32_u24 v18, v16, s50, v18")
        a(f"v_cndmask_b32 v{2+b}, v19, v18, vcc")
        if b < 4: a("v_add_u32 v13, s14, v13")
        a(f"v_add_u32 v{7+b}, s10, v{2+b}")
    a("v_add_u32 v12, s10, v7")
    a("s_lshl_b32 s57, s52, 6")
    a("s_lshl_b32 s56, s15, 6")
    a("s_lshl_b32 s14, s14, 6")
    a("v_lshlrev_b32 v20, 4, v1")
    a("v_cmp_gt_u32 vcc, 32, v1")
    a("v_xor_b32 v22, 32, v20")
    a("s_bfe_u32 s39, s2, 0x20004")
    a("v_cndmask_b32 v21, v22, v20, vcc")
    a("s_mul_i32 s38, s11, 5")
    a("s_add_u32 s39, s39, s38")
    a("s_mul_i32 s40, s39, 3072")
    a("s_lshr_b32 s41, s39, 1")
    a(f"s_mul_i32 s41, s41, {92160 - 6144}")
    a("s_add_u32 s41, s41, s40")
    a("s_movk_i32 s42, 3072")
    a("s_bitcmp1_b32 s39, 0")
    a(f"s_cselect_b32 s42, {92160 - 3072}, s42")
    a("s_mov_b32 s43, 4")
    a("s_cmp_ge_u32 s32, 2")
    a("s_cselect_b32 s95, 1, 0")
    a(f"s_mul_i32 s54, s95, {WBUF}")
    a(f"s_add_u32 s54, s54, {WBASE}")
    a("s_add_u32 s37, s95, s28")
    a("s_cmp_eq_u32 s37, 5")
    a("s_cselect_b32 s37, 0, s37")
    a("s_mul_i32 s37, s37, 3")
    a("s_add_u32 s37, s37, s52")
    a("s_mul_i32 s37, s37, 6144")
    a("s_mov_b32 s55, 0")
    a("s_mov_b32 s15, 15")
    a(f"s_mov_b32 s18, {XBYTES}")
    a("s_mov_b32 s19, 0x20000")
    a(f"s_mov_b32 s22, {WBYTES}")
    a("s_mov_b32 s23, s19")
    a("s_waitcnt lgkmcnt(0)")
    if cfg.diag: stamp(a, 1)
    mark("karg")
    if cfg.order:
        a("s_cmp_eq_u32 s95, s3")
        a("s_cbranch_scc1 L_go")
        a("s_barrier")
        a.label("L_go")
    a("s_cmp_eq_u32 s95, 1")
    a("s_cbranch_scc0 L_w_it")
    a.label("L_x_loop")
    for blk in range(4):
        a(f"s_bitcmp1_b32 s15, {blk}")
        a(f"s_cbranch_scc0 " + (f"L_x{blk}" if blk < 3 else "L_x_next"))
        for k in range(3 * blk, min(3 * blk + 3, 11)):
            a("s_mov_b32 m0, s56")
            a("s_add_u32 s56, s56, s14")
            a(f"buffer_load_dwordx4 v{2+k}, s[16:19], s57 offen{cfg.xflag} lds")
        if blk < 3: a.label(f"L_x{blk}")
    a("s_cmp_lg_u32 s55, 0")
    a("s_cbranch_scc1 L_x_sig")
    if cfg.diag: stamp(a, 2)
    mark("xi")
    if cfg.order:
        a("s_cmp_eq_u32 s3, 0")
        a("s_cbranch_scc1 L_x_nb")
    a("s_barrier")
    a.label("L_x_nb")
    a("v_mov_b32 v26, 1")
    a("s_waitcnt vmcnt(0)")
    a("ds_write_b32 v30, v26")
    trace(45, 0)
    mark("x0")
    a.label("L_w_it")
    a("s_add_u32 m0, s54, s40")
    a("s_add_u32 s50, s37, s41")
    for k in range(3):
        a(f"buffer_load_dwordx4 v{20+k}, s[20:23], s50 offen offset:{k*1024}{cfg.wflag} lds")
    a("s_addk_i32 s40, 3072")
    a("s_add_u32 s41, s41, s42")
    a(f"s_xor_b32 s42, s42, {3072 ^ (92160 - 3072)}")
    a(f"s_cmpk_eq_u32 s40, {WBUF}")
    a("s_cselect_b32 s40, 0, s40")
    a("s_cselect_b32 s41, 0, s41")
    a("s_sub_u32 s43, s43, 1")
    a("s_cbranch_scc0 L_w_it")
    a("s_cmp_lg_u32 s55, 0")
    a("s_cbranch_scc1 L_w_adv")
    a("s_cmp_eq_u32 s95, 1")
    a("s_cbranch_scc1 L_x_w1")
    if cfg.order:
        a("s_cmp_eq_u32 s3, 1")
        a("s_cbranch_scc1 L_w_nb1")
    a("s_barrier")
    a.label("L_w_nb1")
    a("s_mov_b32 s55, s32")
    a("s_mov_b32 s53, s32")
    a(f"s_mul_i32 s50, s32, {WBUF}")
    a("s_add_u32 s54, s54, s50")
    a("v_mov_b32 v31, s32")
    a.label("L_w_adv")
    trace(44, "s55")
    a("v_add_u32 v31, 2, v31")
    a("s_waitcnt vmcnt(0)")
    a("ds_write_b32 v30, v31")
    trace(45, "s55")
    if cfg.amp == "pt" and cfg.pt == "w0":
        a("s_cmp_ge_u32 s55, 2")
        a("s_cbranch_scc1 L_pw")
        mark("w0")
        a.label("L_pw")
    a(f"s_sub_u32 s54, s54, {WBUF}")
    a(f"s_cmp_lt_u32 s54, {WBASE}")
    a(f"s_cselect_b32 s50, {3*WBUF}, 0")
    a("s_add_u32 s54, s54, s50")
    a("s_add_u32 s53, s53, 2")
    a("s_cmp_ge_u32 s53, 5")
    a("s_cselect_b32 s50, 5, 0")
    a("s_sub_u32 s53, s53, s50")
    a("s_lshr_b32 s50, s50, 2")
    a("s_add_u32 s52, s52, s50")
    a("s_cmp_eq_u32 s52, 3")
    a("s_cselect_b32 s52, 0, s52")
    a("s_add_u32 s37, s53, s28")
    a("s_cmp_ge_u32 s37, 5")
    a("s_cselect_b32 s50, 5, 0")
    a("s_sub_u32 s37, s37, s50")
    a("s_mul_i32 s37, s37, 3")
    a("s_add_u32 s37, s37, s52")
    a("s_mul_i32 s37, s37, 6144")
    a("s_mov_b32 s43, 9")
    a("s_mov_b32 s51, s55")
    a("s_add_u32 s55, s55, 2")
    a("s_cmp_eq_u32 s51, 0")
    a("s_cbranch_scc1 L_w_it")
    a("s_cmp_ge_u32 s55, 15")
    a("s_cbranch_scc1 L_store")
    a("v_and_b32 v23, 3, v1")
    a("v_lshlrev_b32 v23, 8, v23")
    a(f"v_add_u32 v23, {FLAGS + 1024}, v23")
    poll(a, "L_w_poll", 23, 24, "s51", cfg.sleep)
    trace(46, "s55")
    a("s_branch L_w_it")
    if cfg.pad4:
        a.label("L_padl")
        a("s_branch L_compute")
    a.label("L_x_w1")
    C = sum(((thr << 4) | m) << (8 * k) for k, (thr, m) in enumerate(cfg.xb))
    assert len(cfg.xb) <= 8
    a(f"s_mov_b32 s92, {C & 0xffffffff:#x}")
    a(f"s_mov_b32 s93, {C >> 32:#x}")
    a("s_mov_b32 s55, 1")
    if cfg.trace: a("s_mov_b32 s51, 1")
    a.label("L_x_sig")
    a("v_add_u32 v31, 5, v31")
    a("s_waitcnt vmcnt(0)")
    a("ds_write_b32 v30, v31")
    trace(45, "s51")
    if cfg.amp == "pt" and cfg.pt == "w1":
        a("s_cmp_lg_u32 s15, 15")
        a("s_cbranch_scc1 L_px")
        mark("w1")
        a.label("L_px")
    a("s_mul_i32 s50, s14, -11")
    a("s_add_u32 s56, s56, s50")
    a(f"s_add_u32 s56, s56, {XCH}")
    a("s_add_u32 s57, s57, 64")
    a("s_cmp_eq_u32 s57, 192")
    a("s_cselect_b32 s57, 0, s57")
    a.label("L_x_next")
    a("s_and_b32 s15, s92, 15")
    a("s_cbranch_scc0 L_store")
    a("s_bfe_u32 s51, s92, 0x40004")
    a("s_lshr_b64 s[92:93], s[92:93], 8")
    a("v_and_b32 v22, 1, v1")
    a(f"v_lshlrev_b32 v22, 8, v22")
    a(f"v_add_u32 v22, {FLAGS}, v22")
    poll(a, "L_x_poll", 22, 23, "s51", cfg.sleep)
    trace(44, "s51")
    a("s_branch L_x_loop")
    if cfg.help:
        a.label("L_help")
        a("v_and_b32 v1, 63, v0")
        a("v_lshrrev_b32 v2, 6, v0")
        a("v_mul_u32_u24 v3, 43, v1")
        a("v_readfirstlane_b32 s32, v2")
        a("v_lshrrev_b32 v3, 9, v3")
        a("v_mul_u32_u24 v4, 12, v3")
        a("v_sub_u32 v4, v1, v4")
        a("v_mul_u32_u24 v3, 92160, v3")
        a("v_lshl_add_u32 v3, v4, 7, v3")
        a("s_and_b32 s33, s2, 1")
        a("s_and_b32 s3, s3, 1")
        a("s_lshl1_add_u32 s33, s3, s33")
        a("s_mulk_i32 s33, 1536")
        a("s_lshr_b32 s34, s32, 1")
        a("s_add_u32 s34, s34, 1")
        a("s_mul_i32 s34, s34, 3")
        a("s_and_b32 s35, s32, 1")
        a("s_lshl1_add_u32 s34, s35, s34")
        a("s_mulk_i32 s34, 6144")
        a("s_add_u32 s34, s34, s33")
        a("s_min_u32 s35, s32, 4")
        a("s_mul_i32 s35, s35, 3")
        a("s_add_u32 s35, s35, 1")
        a("s_mulk_i32 s35, 6144")
        a("s_add_u32 s35, s35, s33")
        a("s_waitcnt lgkmcnt(0)")
        a(f"s_mov_b32 s22, {WBYTES}"); a("s_mov_b32 s23, 0x20000")
        a("buffer_load_dword v5, v3, s[20:23], s34 offen")
        a("buffer_load_dword v6, v3, s[20:23], s35 offen")
        a("s_waitcnt vmcnt(0)")
        a("s_endpgm")
    a.label("L_store")
    a(f"s_mov_b32 s26, {XBYTES}")
    a("s_mov_b32 s27, 0x20000")
    a("s_movk_i32 s49, 208")
    a("s_movk_i32 s50, 384")
    a("v_lshrrev_b32 v11, 2, v1")
    a("v_and_b32 v12, 3, v1")
    a("v_lshlrev_b32 v12, 4, v12")
    a("v_mad_u32_u24 v5, v11, s50, v12")
    a("v_mad_u32_u24 v2, v11, s49, v12")
    a("v_and_b32 v10, 1, v1")
    a("v_lshlrev_b32 v10, 8, v10")
    a("s_lshl_b32 s39, s95, 9")
    a(f"s_add_u32 s39, s39, {FLAGS + 1024}")
    a("v_add_u32 v10, s39, v10")
    a("s_add_u32 s45, s35, s36")
    a("s_or_b32 s38, s34, s95")
    a("s_cmp_eq_u32 s33, 8")
    a("s_cselect_b32 s38, 1, s38")
    a("s_cselect_b32 s43, 6, 7")
    a("s_xor_b32 s38, s38, 1")
    a("s_andn2_b32 s44, s34, s95")
    a("s_add_u32 s39, s34, 6")
    a("s_mul_i32 s39, s39, s95")
    a("s_add_u32 s39, s39, s44")
    a("s_add_u32 s39, s39, 5")
    a("s_cmp_eq_u32 s38, 1")
    a("s_cselect_b32 s39, 0, s39")
    a("s_cselect_b32 s42, 1, -1")
    def rowsetup():
        a("s_mul_i32 s40, s11, s42")
        a("s_add_u32 s39, s39, s40")
        a(f"s_mul_i32 s47, s39, {PROW}")
        a("s_add_u32 s47, s47, s45")
        a(f"s_mul_i32 s48, s39, {SROW}")
        a("v_add_u32 v12, s48, v2")
        a(f"s_mul_i32 s40, s42, {2*PROW}")
        a(f"s_mul_i32 s41, s42, {2*SROW}")
    rowsetup()
    a("s_add_u32 s51, s11, 16")
    a("s_add_u32 s44, s44, 22")
    a.label("L_st_m")
    poll(a, "L_st_mp", 10, 11, "s51", cfg.sleep)
    a(f"ds_read_b128 {vr(16,4)}, v12 offset:64")
    a("v_add_u32 v12, s41, v12")
    a("s_add_u32 s51, s51, 2")
    a("s_waitcnt lgkmcnt(0)")
    a(f"buffer_store_dwordx4 {vr(16,4)}, v5, s[24:27], s47 offen offset:64{cfg.stflag}")
    a("s_add_u32 s47, s47, s40")
    a("s_cmp_lt_u32 s51, s44")
    a("s_cbranch_scc1 L_st_m")
    if cfg.stprio: a(f"s_setprio {cfg.stprio}")
    a("s_cmp_eq_u32 s95, 1")
    a("s_cselect_b32 s39, s43, s34")
    a("s_cmp_eq_u32 s38, 1")
    a("s_cselect_b32 s39, 5, s39")
    a("s_sub_u32 s42, 0, s42")
    rowsetup()
    a("s_add_u32 s51, s11, 25")
    a("s_and_b32 s38, s38, s11")
    a("s_cbranch_scc0 L_st_go")
    a("v_and_b32 v28, 3, v1")
    a("v_lshlrev_b32 v28, 8, v28")
    a(f"v_add_u32 v28, {FLAGS + 1024}, v28")
    a(f"s_add_u32 s45, s45, {6*PROW}")
    poll(a, "L_st_s1", 28, 11, 24, cfg.sleep2)
    for k in range(2): a(f"ds_read_b128 {vr(16+4*k,4)}, v2 offset:{6*SROW + 128*k}")
    for k in range(2):
        a(f"s_waitcnt lgkmcnt({1-k})")
        a(f"buffer_store_dwordx4 {vr(16+4*k,4)}, v5, s[24:27], s45 offen offset:{128*k}{cfg.stflag}")
    a.label("L_st_go")
    poll(a, "L_st_p1", 10, 11, "s51", cfg.sleep2)
    for k in range(2): a(f"ds_read_b128 {vr(16+4*k,4)}, v12 offset:{128*k}")
    a("v_add_u32 v12, s41, v12")
    a("s_add_u32 s51, s51, 2")
    for k in range(2):
        a(f"s_waitcnt lgkmcnt({1-k})")
        a(f"buffer_store_dwordx4 {vr(16+4*k,4)}, v5, s[24:27], s47 offen offset:{128*k}{cfg.stflag}")
    a("s_add_u32 s47, s47, s40")
    a("s_cmp_lt_u32 s51, 30")
    a("s_cbranch_scc1 L_st_go")
    a.label("L_st_end")
    if cfg.amp in ("all", "pt"): a("s_branch L_ampall")
    if cfg.diag:
        stamp(a, 5)
        a("s_waitcnt vmcnt(0)")
        stamp(a, 6)
        dump_stamps(a, cfg)
    a.label("L_exit")
    a("s_endpgm")
    a.label("L_compute")
    if cfg.cbar == 0:
        a("s_waitcnt lgkmcnt(0)")
        a("s_barrier")
    a("s_sub_u32 s37, s32, 4")
    a("s_and_b32 s38, s37, 1")
    a("s_lshr_b32 s37, s37, 1")
    a("s_add_u32 s39, s34, 6")
    a("s_mul_i32 s49, s37, s39")
    a(f"v_mov_b32 v{V_CP}, v30")
    a(f"v_mov_b32 v{V_PV}, 0")
    a("v_and_b32 v32, 15, v1")
    a("v_lshrrev_b32 v33, 4, v1")
    a("v_and_b32 v34, 1, v33")
    a("v_lshrrev_b32 v35, 1, v33")
    a("v_bfe_u32 v36, v1, 2, 2")
    a("v_and_b32 v37, 3, v1")
    a(f"v_lshlrev_b32 v{V_LF}, 8, v37")
    a(f"v_add_u32 v{V_LF}, {FLAGS}, v{V_LF}")
    a(f"v_or_b32 v16, 512, v{V_LF}")
    a(f"v_xor_b32 v17, 512, v16")
    a("s_lshl_b32 s39, s38, 7")
    a("v_lshlrev_b32 v40, 5, v34")
    a("v_lshl_add_u32 v40, v35, 4, v40")
    a("v_add_u32 v40, s39, v40")
    a("s_lshl_b32 s39, s38, 5")
    a("s_add_u32 s39, s39, 64")
    a("v_lshlrev_b32 v41, 3, v33")
    a("v_add_u32 v41, s39, v41")
    a("v_mul_u32_u24 v38, 384, v32")
    a("v_add_u32 v38, s36, v38")
    a(f"v_add_u32 v{V_SA}, v38, v40")
    a(f"v_add_u32 v{V_SC}, v38, v41")
    a("v_mul_u32_u24 v38, 208, v32")
    a(f"s_mul_i32 s39, s49, {SROW}")
    a("v_add_u32 v38, s39, v38")
    a("s_lshl_b32 s39, s38, 7")
    a(f"v_lshl_add_u32 v{V_GA}, v33, 3, v38")
    a(f"v_add_u32 v{V_GA}, s39, v{V_GA}")
    a(f"v_add_u32 v{V_GB}, v38, v41")
    a(f"s_mul_i32 s47, s49, {PROW}")
    a("s_add_u32 s47, s47, s35")
    a("v_lshl_add_u32 v38, v33, 3, v36")
    a("v_mul_u32_u24 v38, 192, v38")
    a("v_lshl_add_u32 v38, v37, 3, v38")
    a(f"v_add_u32 v38, {WBASE}, v38")
    a("s_add_u32 s39, s38, 2")
    a("v_xor_b32 v39, s39, v34")
    a(f"v_lshl_add_u32 v{V_WA[0]}, v39, 5, v38")
    a("s_lshl_b32 s39, s38, 2")
    a("v_xor_b32 v39, s39, v34")
    a(f"v_lshl_add_u32 v{V_WA[1]}, v39, 5, v38")
    a("v_xor_b32 v39, 1, v39")
    a(f"v_lshl_add_u32 v{V_WA[2]}, v39, 5, v38")
    a("v_lshlrev_b32 v38, 6, v32")
    a("v_lshl_add_u32 v38, v33, 4, v38")
    a(f"s_mul_i32 s39, s49, {XROW}")
    a("s_lshl_b32 s50, s28, 6")
    a("s_add_u32 s39, s39, s50")
    a(f"v_add_u32 v{V_XL}, s39, v38")
    a(f"s_lshr_b32 s50, {sum(1 << (h + 1) for h in (5, 10, 15))}, s28")
    a("s_movk_i32 s53, -256")
    a("s_bitcmp1_b32 s50, 15")
    a("s_cselect_b32 s54, s53, 64")
    a(f"v_lshrrev_b32 v{V_T}, 3, v{V_XL}")
    a(f"v_and_b32 v{V_T}, 32, v{V_T}")
    a(f"v_xor_b32 v{V_XA[0]}, v{V_XL}, v{V_T}")
    a(f"v_xor_b32 v{V_XA[1]}, 32, v{V_XA[0]}")
    if cfg.mov64:
        for k in range(0, 84, 2): a(f"v_mov_b64 {vr(V_ACC+k,2)}, 0")
    else:
        for k in range(84): a(f"v_mov_b32 v{V_ACC+k}, 0")
    a(f"s_mov_b32 s40, {(1 << 6) | (1 << 11)}")
    a(f"s_mov_b32 s41, {sum(1 << (h + 1) for h in (3, 6, 9, 12))}")
    a(f"s_mov_b32 s44, {(-2*WBUF) & 0xffffffff}")
    a(f"s_mov_b32 s45, {WBUF}")
    a("s_mov_b32 s46, 2")
    if cfg.amp == "stall": a("s_mov_b32 s85, 0")
    if cfg.cbar == 1:
        a("s_waitcnt lgkmcnt(0)")
        a("s_barrier")
    if cfg.diag: stamp(a, 1)
    a(f"s_mov_b32 s26, {XBYTES}")
    a("s_mov_b32 s27, 0x20000")
    if cfg.prio: a(f"s_setprio {cfg.prio}")
    if cfg.amp in ("span", "skew"): srd(a, 80, 12, 256)
    for var in (1, 2, 3):
        a(f"s_cmp_eq_u32 s31, {var}")
        a(f"s_cbranch_scc1 L_pro{var}")
    if cfg.pads: a("s_branch L_pro0")
    for var in range(4):
        emit_variant(a, var, cfg)
    a.label("L_end")
    for _ in range(100): a("s_endpgm")
    out += a.text()
    nv = (V_END + 7) // 8 * 8
    out += f""".section .rodata,"a"
.p2align 6
.amdhsa_kernel {NAME}_kernel
  .amdhsa_next_free_vgpr {nv}
  .amdhsa_next_free_sgpr 96
  .amdhsa_accum_offset {nv}
  .amdhsa_group_segment_fixed_size 0
  .amdhsa_kernarg_size 40
  .amdhsa_user_sgpr_count 2
  .amdhsa_user_sgpr_kernarg_segment_ptr 1
  .amdhsa_system_sgpr_workgroup_id_x 1
  .amdhsa_float_denorm_mode_32 3
.end_amdhsa_kernel
"""
    return out

if __name__ == "__main__":
    p = argparse.ArgumentParser()
    p.add_argument("-o", default="standalone__dilated_atrous__vision.s")
    p.add_argument("--diag", action="store_true")
    p.add_argument("--trace", action="store_true")
    p.add_argument("--bar_pos", type=int, default=62)
    p.add_argument("--xbar", type=int, default=40)
    p.add_argument("--lead", type=int, default=5)
    p.add_argument("--safe", type=int, default=8)
    p.add_argument("--prio", type=int, default=1)
    p.add_argument("--align", type=int, default=1)
    p.add_argument("--snake", type=int, default=1)
    p.add_argument("--exper", type=int, default=2)
    p.add_argument("--order", type=int, default=1)
    p.add_argument("--wpf", type=int, default=0)
    p.add_argument("--epf", type=int, default=0)
    p.add_argument("--cpf", type=int, default=1)
    p.add_argument("--sleep", type=int, default=2)
    p.add_argument("--sleep2", type=int, default=0)
    p.add_argument("--stflag", default="sc0 sc1 nt")
    p.add_argument("--wd", type=int, default=1)
    p.add_argument("--amp", default="")
    p.add_argument("--lastflag", default=None)
    p.add_argument("--jrot", type=int, default=0)
    p.add_argument("--pt", default="")
    p.add_argument("--sg", type=int, default=0)
    p.add_argument("--addd", type=int, default=0)
    p.add_argument("--onlyw", type=int, default=-1)
    p.add_argument("--onlyb", type=int, default=-1)
    p.add_argument("--help2", dest="help", type=int, default=0)
    p.add_argument("--pg", type=int, default=1)
    p.add_argument("--alead", type=int, default=20)
    p.add_argument("--entry_last", type=int, default=0)
    p.add_argument("--pad4", type=int, default=0)
    p.add_argument("--lx", type=int, default=-1)
    p.add_argument("--al8", type=int, default=0)
    p.add_argument("--shift4", type=int, default=0)
    p.add_argument("--rush", type=int, default=30)
    p.add_argument("--fill", type=int, default=0)
    p.add_argument("--pads", type=int, default=1)
    p.add_argument("--nstage", type=int, default=5)
    p.add_argument("--spec", type=int, default=1)
    p.add_argument("--stprio", type=int, default=0)
    p.add_argument("--mov64", type=int, default=1)
    p.add_argument("--xflag", default="")
    p.add_argument("--wflag", default="")
    p.add_argument("--fixd", type=int, default=0)
    p.add_argument("--wbl2", type=int, default=0)
    p.add_argument("--bench", action="store_true")
    p.add_argument("--drop", default="")
    p.add_argument("--cmpd", type=int, default=4)
    p.add_argument("--updstep", type=int, default=1)
    p.add_argument("--xthr", type=int, default=2)
    p.add_argument("--cbar", type=int, default=0)
    p.add_argument("--w2wait", type=int, default=1)
    p.add_argument("--xb", default="3:1,4:2,5:4,6:8,8:3,9:12")
    cfg = p.parse_args()
    cfg.xb = [tuple(int(v) for v in e.split(":")) for e in cfg.xb.split(",")]
    WD = cfg.wd
    if cfg.lastflag is None: cfg.lastflag = cfg.stflag
    if cfg.lastflag: cfg.lastflag = " " + cfg.lastflag
    if cfg.stflag: cfg.stflag = " " + cfg.stflag
    if cfg.xflag: cfg.xflag = " " + cfg.xflag
    if cfg.wflag: cfg.wflag = " " + cfg.wflag
    open(cfg.o, "w").write(gen(cfg))
```

```python
import sys, argparse

NAME = "standalone__dilated_atrous__vision"
XBYTES = 224 * 224 * 96 * 2
WBYTES = 25 * 96 * 96 * 2
ROWB = 224 * 192
PROW = 2 * ROWB
XCH = 352 * 64
XROW = 20 * 64
WBASE = 3 * XCH
WBUF = 5 * 6144
FLAGS = WBASE + 3 * WBUF
LDS_TOTAL = FLAGS + 2048
SROW = 16 * 208
assert 13 * SROW <= 2 * XCH

class Asm:
    def __init__(self):
        self.lines = []
    def __call__(self, s):
        self.lines.append("    " + s)
    def label(self, l):
        self.lines.append(l + ":")
    def comment(self, s):
        self.lines.append("    ; " + s)
    def text(self):
        return "\n".join(self.lines) + "\n"

def vr(b, n):
    return f"v[{b}:{b+n-1}]"

V_XL = 1
V_XA = (2, 3)
V_WA = (4, 5, 6)
V_SA, V_SC = 7, 8
V_GA, V_GB = 9, 10
V_T = 11
V_XB = (22, 23)
V_CP = 25
V_LF = 26
V_PV = 27
V_F = 28
V_X = 32
V_W = 76
V_ACC = 136
V_EXTRA = V_ACC + 84
V_END = V_EXTRA + 32

TYPES = {
    0: (range(0, 6), range(0, 7), range(0, 6)),
    1: (range(0, 6), range(1, 7), range(0, 7)),
    2: (range(0, 7), range(1, 7), range(1, 7)),
    3: (range(0, 6), range(0, 6), range(0, 6)),
}
OFF = {0: 0, 1: 1, 2: 1, 3: 0}
SPECIAL = {0: 6, 1: 0, 2: 0, 3: None}
LASTHEAD = {
    0: [(0, 0), (0, 1), (6, 1), (0, 2)],
    1: [(0, 0), (1, 0), (1, 1), (0, 2), (1, 2)],
    2: [(0, 0), (1, 0), (1, 1), (2, 0), (1, 2), (2, 1), (2, 2)],
    3: [(0, 0), (0, 1), (1, 0), (0, 2), (1, 1), (1, 2)],
}

def acc(rho, t): return V_ACC + 4 * (rho * 3 + t)
def wreg(i, t): return V_W + 4 * (i * 3 + t)
def xreg(q): return V_X + 4 * q

def chain(rho, t, rev):
    r = list(range(5))
    if rev: r.reverse()
    return [(rho, i, t, rho + i) for i in r]

def steady_order(var, cfg, par=(1, 1, 1)):
    ms = []
    for t in range(3):
        for j, rho in enumerate(TYPES[var][t]): ms += chain(rho, t, cfg.snake and j % 2 == par[t])
    return ms

DIRECT = {0: (5,), 1: (6, 5), 2: (6,), 3: (5,)}

def last_tiles(var):
    order = list(LASTHEAD[var])
    rows = [r for r in range(7) if r not in DIRECT[var]] + list(DIRECT[var])
    for r in rows:
        for t in ((0, 1, 2) if r not in DIRECT[var] else (1, 2, 0)):
            if r in TYPES[var][t] and (r, t) not in order: order.append((r, t))
    return order

def last_order(var, cfg, par=1):
    ms = []
    for j, (r, t) in enumerate(last_tiles(var)): ms += chain(r, t, cfg.snake and j % 2 == par and j >= 4)
    return ms

def uses(ms):
    first, last = {}, {}
    for k, (rho, i, t, q) in enumerate(ms):
        for key in (("w", i, t, 0), ("w", i, t, 1), ("x", q)):
            first.setdefault(key, k); last[key] = k
    return first, last

def read_text(nm):
    if nm[0] == "x":
        q = nm[1]
        return f"ds_read_b128 {vr(xreg(q),4)}, v{V_XA[q & 1]} offset:{q*XROW}"
    _, i, t, h = nm
    return f"ds_read_b64_tr_b16 {vr(wreg(i,t)+2*h,2)}, v{V_WA[t]} offset:{i*6144 + h*768}"

def edf(reads, lo, hi, lead, busy=()):
    placed, pending = {}, list(reads)
    for k in range(lo, hi):
        avail = [r for r in pending if r[1] <= k]
        if not avail: continue
        r = min(avail, key=lambda r: r[2])
        placed[k] = r[0]
        pending.remove(r)
        assert r[2] - k >= lead, (r, k)
    assert not pending, pending
    return placed

def mfma_text(m):
    rho, i, t, q = m
    return f"v_mfma_f32_16x16x32_bf16 {vr(acc(rho,t),4)}, {vr(wreg(i,t),4)}, {vr(xreg(q),4)}, {vr(acc(rho,t),4)}"

class LdsQ:
    def __init__(self, a, safe):
        self.a, self.safe = a, safe
        self.ops = []
        self.done = 0
        self.waits = []
    def issue(self, name, time, text=None):
        self.ops.append((name, time))
        if text: self.a(text)
    def need(self, names, time):
        idx = max(max(j for j, (nm, _) in enumerate(self.ops) if nm == n) for n in names) + 1
        if idx <= self.done: return
        for j, (nm, tm) in enumerate(self.ops):
            if tm <= time - 1 - self.safe: idx = max(idx, j + 1)
        cnt = len(self.ops) - idx
        if cnt > 14:
            idx += cnt - 14; cnt = 14
        self.a(f"s_waitcnt lgkmcnt({cnt})")
        self.waits.append((time, cnt, len(self.ops)))
        self.done = idx

WD = 1
def poll(a, label, vaddr, vtmp, sneed, sleep, wd=True):
    a.label(label)
    if WD and wd:
        a("s_add_u32 s94, s94, 1")
        a("s_bitcmp1_b32 s94, 18")
        a("s_cbranch_scc1 L_exit")
    a(f"ds_read_b32 v{vtmp}, v{vaddr}")
    a("s_waitcnt lgkmcnt(0)")
    a(f"v_cmp_gt_u32 vcc, {sneed}, v{vtmp}")
    if sleep:
        a(f"s_cbranch_vccz {label}_ok")
        a(f"s_sleep {sleep}")
        a(f"s_branch {label}")
        a.label(label + "_ok")
    else:
        a(f"s_cbranch_vccnz {label}")

def isize(l):
    l = l.strip()
    op = l.split()[0]
    if op.startswith(("v_mfma", "ds_", "buffer_", "v_cvt_pk")) or op.endswith("_e64"): return 8
    import re
    for tok in re.split(r"[ ,]+", l)[1:]:
        if re.fullmatch(r"-?\d+|0x[0-9a-f]+", tok) and not op.startswith(("s_waitcnt", "s_nop")):
            v = int(tok, 0)
            if not (-16 <= v <= 64): return 8
    return 4

def align8(lines):
    out = []
    for l in lines:
        op = l.strip().split()[0]
        if op.startswith("v_") and isize(l) == 4:
            l = l.replace(op, op + "_e64", 1)
        out.append(l)
    res, off = [], 0
    for l in out:
        sz = isize(l)
        if sz == 8 and off % 8 == 4:
            res.append("    s_nop 0"); off += 4
        res.append(l); off += sz
    if off % 8 == 4: res.append("    s_nop 0")
    return res

def emit_variant(a, fa, var, cfg):
    bar = cfg.bar_pos if var != 3 else cfg.bar_pos - 3
    best = None
    for par in [(p0, 1, p2) for p0 in (1, 0) for p2 in (1, 0)]:
        ms = steady_order(var, cfg, par)
        n = len(ms)
        first, last = uses(ms)
        reads = [(key, max(last[key], bar, n if (key[0] == "w" and key[2] == 2) else 0), n + first[key]) for key in first]
        placed = edf(reads, bar, n + bar - 16, 0)
        ld = min(n + first[nm] - k for k, nm in placed.items())
        if best is None or ld > best[0]: best = (ld, par, ms, first, last, placed)
    ld, par, ms, first, last, placed = best
    print(f"variant {var}: snake parity {par}, min lead {ld}", file=sys.stderr)
    tail = [(k, placed[k]) for k in sorted(placed) if k < n]
    head = [(k - n, placed[k]) for k in sorted(placed) if k >= n]
    slow = []
    hb, tb = Asm(), Asm()
    q = LdsQ(hb, cfg.safe)
    for k, nm in tail: q.issue(nm, k - n)
    headd, taild = dict(head), dict(tail)
    extra = {}
    def put(k, s): extra.setdefault(k, []).append(s)
    krel = max(k for k, nm in head) + 1
    put(krel - 1, f"v_add_u32 v{V_PV}, 1, v{V_PV}")
    upd = (["s_bitcmp1_b32 s40, s46", f"s_cselect_b32 s42, {XCH}, 0",
            "s_bitcmp1_b32 s50, s46", "s_cselect_b32 s51, s53, 64", "s_add_u32 s42, s42, s51"] if cfg.jrot else
           ["s_bitcmp1_b32 s40, s46", f"s_cselect_b32 s42, {XCH - 4*64}, 64"]) + [
           "s_bitcmp1_b32 s41, s46", "s_cselect_b32 s43, s44, s45",
           "s_cmp_eq_u32 s46, 14", "s_cselect_b32 s49, 1000, s46",
           f"v_add_u32 v{V_XL}, s42, v{V_XL}", f"v_lshrrev_b32 v{V_T}, 3, v{V_XL}", f"v_and_b32 v{V_T}, 32, v{V_T}",
           f"v_xor_b32 v{V_XA[0]}, v{V_XL}, v{V_T}", f"v_xor_b32 v{V_XA[1]}, 32, v{V_XA[0]}"]
    upd += [f"v_add_u32 v{V_WA[t]}, s43, v{V_WA[t]}" for t in range(3)]
    b0 = krel + 2
    for j, u in enumerate(upd): put(b0 + cfg.updstep * j, u)
    kflag = bar - cfg.cmpd - 9
    assert b0 + cfg.updstep * len(upd) <= kflag
    cur = hb
    for k, m in enumerate(ms):
        rho, i, t, qq = m
        q.need([("w", i, t, 0), ("w", i, t, 1), ("x", qq)], k)
        cur(mfma_text(m))
        D = cfg.drop
        for s in extra.get(k, []): cur(s)
        if k == krel: q.issue(("rel",), k, f"ds_write_b32 v{V_CP}, v{V_PV}")
        if k == kflag: q.issue(("flag",), k, f"ds_read_b32 v{V_F}, v{V_LF}")
        if k == bar - cfg.cmpd - 1: q.need([("flag",)], k + 1)
        if k == bar - cfg.cmpd: cur(f"v_cmp_gt_u32 vcc, s49, v{V_F}")
        if k == bar:
            cur = tb; q.a = tb
        drop = lambda nm: ("l" in D and k in taild) or ("w" in D and nm[0] == "w" and k in taild) or ("x" in D and nm[0] == "x")
        if k in headd: q.issue(headd[k], k, read_text(headd[k]) if not drop(headd[k]) else None)
        if k in taild: q.issue(("next",) + taild[k], k, read_text(taild[k]) if not drop(taild[k]) else None)
        if k == n - 9: cur("s_add_u32 s46, s46, 1")
    kinds = ("w", "x") if ((var < 2 and cfg.order == 1) or cfg.order == 3) else ("x", "w")
    ent = [[nm for _, nm in sorted(tail, key=lambda e: first[e[1]]) if nm[0] == kd] for kd in kinds]
    late = ent[1]
    def entry_ok(m):
        done = len(late) - m
        wi = 0
        for k, (rho, i, t, qq) in enumerate(ms):
            while wi < len(q.waits) and q.waits[wi][0] <= k:
                _, cnt, nops = q.waits[wi]; wi += 1
                body_ops = nops - len(tail)
                done = max(done, len(late) - max(0, cnt - body_ops))
            for nm in (("w", i, t, 0), ("w", i, t, 1), ("x", qq)):
                if nm in late and late.index(nm) >= done: return False
        return True
    ment = max(mm for mm in range(min(len(late), 14) + 1) if entry_ok(mm))
    def emit_entry():
        a.label(f"L_pro{var}")
        if cfg.amp == "pt" and cfg.pt == "lpro":
            a("s_memrealtime s[86:87]")
            a("s_waitcnt lgkmcnt(0)")
        poll(a, f"L_p0_{var}", 16 if kinds[0] == "x" else 17, V_F, 1, 0)
        for nm in ent[0]: a(read_text(nm))
        poll(a, f"L_p1_{var}", 16 if kinds[1] == "x" else 17, V_F, 1, 0)
        if cfg.diag: stamp(a, 3)
        if cfg.amp and cfg.amp != "pt":
            a("s_memrealtime s[86:87]")
            a("s_waitcnt lgkmcnt(0)")
        for nm in late: a(read_text(nm))
        a(f"s_waitcnt lgkmcnt({ment})")
        a(f"s_branch L_head{var}")
    def emit_slow(a=a):
        if cfg.amp == "stall":
            a.label(f"L_slow{var}")
            a("s_memrealtime s[76:77]")
            poll(a, f"L_slowb{var}", V_LF, V_F, "s49", 0)
            a("s_memrealtime s[78:79]")
            a("s_waitcnt lgkmcnt(0)")
            a("s_sub_u32 s78, s78, s76")
            if cfg.sg:
                a(f"s_cmp_eq_u32 s46, {cfg.sg}")
                a("s_cselect_b32 s78, s78, 0")
            a("s_add_u32 s85, s85, s78")
        else:
            poll(a, f"L_slow{var}", V_LF, V_F, "s49", 0)
        a("s_cmp_eq_u32 s46, 14")
        a(f"s_cbranch_scc1 L_fin{var}")
        a(f"s_branch L_top{var}")
    if not cfg.entry_last: emit_entry()
    if cfg.al8:
        hb.lines = align8(hb.lines); tb.lines = align8(tb.lines)
    if cfg.align: a(".p2align 6")
    if cfg.pads:
        a.label(f"L_pad{var}")
        a("s_branch L_compute")
        a("s_nop 0")
    a.label(f"L_top{var}")
    a.lines += tb.lines
    a.label(f"L_head{var}")
    a.lines += hb.lines
    a(f"s_cbranch_vccz L_top{var}")
    a("s_min_u32 s49, s49, 15")
    a(f"v_cmp_gt_u32 vcc, s49, v{V_F}")
    a(f"s_cbranch_vccz L_fin{var}")
    emit_slow()
    a = fa
    a(".p2align 12")
    a.label(f"L_padf{var}")
    a("s_branch L_store2")
    a("s_nop 0")
    a.label(f"L_fin{var}")
    a.lines += tb.lines
    if cfg.diag: stamp(a, 4)
    if cfg.cpf: a("s_waitcnt vmcnt(0)")
    rows = TYPES[var]
    down = var == 0
    prow = sorted(set(rows[1]) | set(rows[2]), reverse=down)
    lastrow = prow[-1]
    srow2 = sorted(rows[0], reverse=not down)
    def build(pa, pb):
        out = []
        for j, r in enumerate(rows[0]):
            out += [m + (13, 0) for m in chain(r, 0, cfg.snake and j % 2 == pa)]
        for j, r in enumerate(srow2):
            out += [m + (14, 0) for m in chain(r, 0, cfg.snake and j % 2 == pb)]
        keep = set(range(srow2[-1], srow2[-1] + 5))
        flip = 0
        tiles = []
        for r in prow:
            ts = [t for t in ((1, 2) if flip == 0 else (2, 1)) if r in rows[t]]
            if r == lastrow: ts = [1, 2]
            for j, t in enumerate(ts):
                gs = (14, 13) if j == 0 else (13, 14)
                for g in gs:
                    for m in chain(r, t, (j == 1) != down):
                        out.append(m + (g, 0 if (g == 14 and m[3] in keep) else 1))
                tiles.append((r, t))
            flip = 0 if ts[-1] == 1 else 1
        return out, tiles
    def names(m):
        rho, i, t, qq, g, occ = m
        return [("w", g, i, t, 0), ("w", g, i, t, 1), ("x", g, qq, occ)]
    frag = lambda nm: nm if nm[0] == "x" else nm[:4]
    conv = lambda nm: ("x", 13, nm[1], 0) if nm[0] == "x" else ("w", 13) + nm[1:]
    pre = [(k - n, conv(nm)) for k, nm in tail]
    prenames = set(nm for _, nm in pre)
    slots = [V_X + 4 * j for j in range(26)] + [V_EXTRA + 4 * j for j in range(8)]
    best = None
    for pa in (1, 0):
      for pb in (1, 0):
        ls, ptiles = build(pa, pb)
        lf, ll = {}, {}
        for k, m in enumerate(ls):
            for nm in names(m):
                lf.setdefault(nm, k); ll[nm] = k
        free = {sl: 0 for sl in slots}
        regs = {}
        for nm in prenames:
            sl = xreg(nm[2]) if nm[0] == "x" else wreg(nm[2], nm[3])
            regs[frag(nm)] = sl
            free[sl] = max(free[sl], ll.get(nm, 0))
        rds, early = [], {}
        for nm in sorted(lf, key=lambda v: lf[v]):
            if nm in prenames: continue
            fr = frag(nm)
            if fr not in regs:
                ok = [sl for sl in slots if free[sl] <= lf[nm] - cfg.alead]
                sl = max(ok, key=lambda v: free[v]) if ok else min(slots, key=lambda v: free[v])
                regs[fr] = sl; early[fr] = free[sl]; free[sl] = ll[nm]
            e = early.get(fr, 0)
            if nm[0] == "x" and nm[1] == 14: e = max(e, 6)
            rds.append((nm, e, lf[nm]))
        try: lp = edf(rds, 0, len(ls), 0)
        except AssertionError: continue
        ld2 = min([lf[nm] - k for k, nm in lp.items()] + [lf[nm] - k for k, nm in pre if nm in lf])
        if best is None or ld2 > best[0]: best = (ld2, (pa, pb), ls, lf, lp, regs, ptiles)
    ld2, pars, ls, lf, lplaced, regs, ptiles = best
    print(f"   final segment: parity {pars} min lead {ld2} reads {len(lplaced)}", file=sys.stderr)
    def rd_text(nm):
        if nm[0] == "x":
            _, g, qq, occ = nm
            return f"ds_read_b128 {vr(regs[nm],4)}, v{(V_XA if g == 13 else V_XB)[qq & 1]} offset:{qq*XROW}"
        _, g, i, t, h = nm
        return f"ds_read_b64_tr_b16 {vr(regs[frag(nm)]+2*h,2)}, v{V_WA[t]} offset:{(g-13)*WBUF + i*6144 + h*768}"
    n2 = len(ls)
    q = LdsQ(a, cfg.safe)
    for k, nm in pre: q.issue(nm, k)
    endk = {}
    for k, m in enumerate(ls): endk[(m[0], m[2])] = k
    def cvt2(D, S, tile):
        return [(tile, f"v_cvt_pk_bf16_f32 v{D}, v{S}, v{S+1}"), (tile, f"v_cvt_pk_bf16_f32 v{D+1}, v{S+2}, v{S+3}")]
    seq = [(None, f"v_add_u32 v{V_XL}, {'s54' if cfg.jrot else 64}, v{V_XL}"), (None, f"v_lshrrev_b32 v{V_T}, 3, v{V_XL}"), (None, f"v_and_b32 v{V_T}, 32, v{V_T}"),
           (None, f"v_xor_b32 v{V_XB[0]}, v{V_XL}, v{V_T}"), (None, f"v_xor_b32 v{V_XB[1]}, 32, v{V_XB[0]}")]
    for j, r in enumerate(srow2):
        S = acc(r, 0)
        seq += cvt2(S, S, (r, 0))
        seq += [(None, f"v_mov_b32 v{V_PV}, {16 + j}"), (None, f"ds_write_b64 v{V_GB}, {vr(S,2)} offset:{r*SROW}"),
                (None, f"ds_write_b32 v{V_CP}, v{V_PV}")]
    kfull, seen = 0, set()
    for (r, t) in ptiles:
        S = acc(r, t)
        if r != lastrow:
            seq += cvt2(S, S, (r, t))
            pv = None
            if not (r in rows[1] and r in rows[2]): pv = 24
            elif r in seen:
                pv = 25 + kfull; kfull += 1
            seen.add(r)
            if pv: seq.append((None, f"v_mov_b32 v{V_PV}, {pv}"))
            seq.append((None, f"ds_write_b64 v{V_GA}, {vr(S,2)} offset:{r*SROW + (32 if t == 2 else 0)}"))
            if pv: seq.append((None, f"ds_write_b32 v{V_CP}, v{V_PV}"))
        elif t == 1:
            seq += cvt2(S, S, (r, t))
            seq.append((None, f"s_add_u32 s48, s47, {r*PROW}"))
        else:
            A = acc(r, 1)
            seq += cvt2(A + 2, S, (r, t))
            seq.append(("W2", f"v_permlane16_swap_b32 v{A}, v{A+2}"))
            seq.append((None, f"v_permlane16_swap_b32 v{A+1}, v{A+3}"))
            seq.append((None, f"buffer_store_dwordx4 {vr(A,4)}, v{V_SA}, s[24:27], s48 offen{cfg.lastflag}"))
    assert kfull == 5
    def states(frm):
        c = 0
        for l in a.lines[frm + 1:]:
            l = l.strip()
            if l.endswith(":") or l.startswith(";") or l.startswith("."): continue
            c += int(l.split()[1]) + 1 if l.startswith("s_nop") else 1
        return c
    done_at = {}
    last_valu = [0]
    def missing(dep):
        if dep is None: return 0
        if dep == "W2": return max(0, 2 - states(last_valu[0]))
        if dep not in done_at: return None
        return max(0, 8 - states(done_at[dep]))
    nl = [0]
    def emit_ex(txt, k):
        for key, pat in (("C", "v_cvt"), ("P", "v_permlane"), ("V", "ds_write_b64"), ("F", "ds_write_b32"), ("S", "buffer_store")):
            if key in cfg.drop and txt.startswith(pat): return
        if txt.startswith("ds_"):
            nl[0] += 1; q.issue(("st", nl[0]), k, txt)
        else: a(txt)
        if txt.startswith("v_cvt"): last_valu[0] = len(a.lines) - 1
    for k, m in enumerate(ls):
        rho, i, t, qq, g, occ = m
        q.need(names(m), k)
        a(f"v_mfma_f32_16x16x32_bf16 {vr(acc(rho,t),4)}, {vr(regs[('w',g,i,t)],4)}, {vr(regs[('x',g,qq,occ)],4)}, {vr(acc(rho,t),4)}")
        if endk[(rho, t)] == k: done_at[(rho, t)] = len(a.lines) - 1
        cnt = 0
        if k in lplaced:
            q.issue(lplaced[k], k, rd_text(lplaced[k])); cnt += 1
        lim = cfg.exper if (k >= n2 - cfg.rush or k < 6) else 1
        if k < 6: cnt = 1
        while seq and cnt < lim and k < n2 - 1:
            miss = missing(seq[0][0])
            if miss == 0:
                emit_ex(seq.pop(0)[1], k); cnt += 1
            else:
                if miss is not None and miss > 1 and cnt == 0 and k >= n2 - cfg.fill: a("s_nop 1")
                break
    while seq:
        miss = missing(seq[0][0])
        if miss: a(f"s_nop {miss - 1}")
        emit_ex(seq.pop(0)[1], n2)
    if cfg.diag:
        stamp(a, 5)
        a("s_waitcnt vmcnt(0)")
        stamp(a, 6)
        a("s_branch L_dump")
    elif cfg.amp:
        if var == 0: a.label("L_ampall")
        a("s_waitcnt vmcnt(0)")
        a("s_memrealtime s[88:89]")
        a("s_waitcnt lgkmcnt(0)")
        if cfg.amp in ("span", "skew"):
            a("v_mov_b32 v4, 0")
            a("buffer_load_dwordx2 v[6:7], v4, s[80:83], 0 offen sc0 sc1")
            a("s_waitcnt vmcnt(0)")
            a("v_readfirstlane_b32 s86, v6")
            a("v_readfirstlane_b32 s58, v7")
            a("s_nop 3")
            a("s_not_b32 s58, s58")
        lo, hi = {"pro": (58, 86), "all": (58, 88), "loop": (86, 88), "none": (58, 58), "span": (58, 88), "skew": (58, 86), "stall": (58, 58), "pt": (58, 86)}[cfg.amp]
        a(f"s_sub_u32 s90, s{hi}, s{lo}")
        a("s_mul_i32 s90, s90, 10")
        if cfg.fixd: a(f"s_mov_b32 s90, {cfg.fixd}")
        if cfg.amp == "stall": a("s_mul_i32 s90, s85, 10")
        if cfg.onlyw >= 0:
            a(f"s_cmp_eq_u32 s32, {cfg.onlyw}")
            a("s_cselect_b32 s90, s90, 0")
        if cfg.onlyb >= 0:
            a(f"s_cmp_eq_u32 s2, {cfg.onlyb}")
            a("s_cselect_b32 s90, s90, 0")
        if cfg.addd: a(f"s_cselect_b32 s91, {cfg.addd}, 0"); a("s_add_u32 s90, s90, s91")
        if cfg.wbl2:
            a("buffer_wbl2 sc1")
        a.label(f"L_amp{var}")
        a("s_memrealtime s[76:77]")
        a("s_waitcnt lgkmcnt(0)")
        a("s_sub_u32 s91, s76, s88")
        a("s_cmp_lt_u32 s91, s90")
        a(f"s_cbranch_scc1 L_amp{var}")
        a("s_endpgm")
    else:
        a("s_endpgm")

def stamp(a, idx):
    a(f"s_memtime s[{60+2*idx}:{61+2*idx}]")
    if idx in (3, 5):
        a(f"s_memrealtime s[{86 if idx == 3 else 88}:{87 if idx == 3 else 89}]")
    a("s_waitcnt lgkmcnt(0)")

def dump_stamps(a, cfg):
    a.label("L_dump")
    a("s_memrealtime s[76:77]")
    a("s_getreg_b32 s78, hwreg(HW_REG_HW_ID)")
    a("s_getreg_b32 s79, hwreg(HW_REG_XCC_ID)")
    a("s_waitcnt lgkmcnt(0)")
    a("s_mov_b32 s80, s12")
    a("s_mov_b32 s81, s13")
    a("s_mov_b32 s82, 0x100000")
    a("s_mov_b32 s83, 0x20000")
    a("s_lshl_b32 s84, s2, 3")
    a("s_add_u32 s84, s84, s32")
    a("s_lshl_b32 s84, s84, 6")
    a("v_mov_b32 v4, 0")
    for k, s in enumerate([60, 62, 64, 66, 68, 70, 72, 74, 76, 77, 78, 79, 58, 59, 86, 88]):
        a(f"v_mov_b32 v5, s{s}")
        a(f"buffer_store_dword v5, v4, s[80:83], s84 offen offset:{4*k}")
        a("s_nop 1")
    a("v_and_b32 v1, 63, v0")
    a("v_lshlrev_b32 v4, 2, v1")
    a("v_cmp_gt_u32 vcc, 16, v1")
    a("s_and_saveexec_b64 s[92:93], vcc")
    a("s_lshl_b32 s84, s84, 2")
    a("s_add_u32 s84, s84, 0x40000")
    for k in range(3):
        a(f"buffer_store_dword v{44+k}, v4, s[80:83], s84 offen offset:{64*k}")
    a("s_waitcnt vmcnt(0)")
    a("s_endpgm")

def srd(a, d, p, size):
    a(f"s_mov_b32 s{d}, s{p}")
    a(f"s_and_b32 s{d+1}, s{p+1}, 0xffff")
    a(f"s_mov_b32 s{d+2}, {size}")
    a(f"s_mov_b32 s{d+3}, 0x20000")

def gen(cfg):
    a = Asm()
    hdr = open("standalone__dilated_atrous__vision.s.ref").read().splitlines()
    head = [l for l in hdr[:8] if l.startswith(";") and "@launch" not in l]
    out = "\n".join(head) + "\n"
    out += f"; @launch grid=(256,1,1) block=(512,1,1) lds={LDS_TOTAL}\n"
    out += f""".amdgcn_target "amdgcn-amd-amdhsa--gfx950"
.text
.globl {NAME}_kernel
{".p2align 12" + chr(10) if cfg.pg else ""}.p2align 8
.type {NAME}_kernel,@function
{NAME}_kernel:
"""
    def mark(name):
        if cfg.amp == "pt" and cfg.pt == name:
            a("s_memrealtime s[86:87]")
            a("s_waitcnt lgkmcnt(0)")
    def trace(reg, idx):
        if cfg.trace:
            a("s_memtime s[90:91]")
            a(f"s_mov_b32 m0, {idx}")
            a("s_waitcnt lgkmcnt(0)")
            a(f"v_writelane_b32 v{reg}, s90, m0")
    if cfg.diag:
        a("s_memtime s[60:61]")
        a("s_memrealtime s[58:59]")
        a("s_load_dwordx2 s[12:13], s[0:1], 32")
    if cfg.amp: a("s_memrealtime s[58:59]")
    if cfg.amp == "pt": a("s_memrealtime s[86:87]")
    if cfg.amp in ("span", "skew"): a("s_load_dwordx2 s[12:13], s[0:1], 24")
    a("s_load_dwordx2 s[16:17], s[0:1], 0")
    a("s_load_dwordx2 s[20:21], s[0:1], 8")
    a("s_load_dwordx2 s[24:25], s[0:1], 16")
    if WD: a("s_mov_b32 s94, 0")
    a("s_cmp_ge_u32 s2, 256")
    a("s_cbranch_scc1 L_exit")
    if cfg.lx < 0:
        a("s_and_b32 s28, s2, 1")
        a("s_bfe_u32 s3, s2, 0x20001")
        a("s_lshl_b32 s3, s3, 5")
        a("s_lshr_b32 s33, s2, 3")
        a("s_add_u32 s3, s3, s33")
        a("s_cmp_ge_u32 s3, 126")
        a("s_cbranch_scc1 " + ("L_help" if cfg.help else "L_exit"))
    else:
        a("s_and_b32 s3, s2, 7")
        a(f"s_sub_u32 s3, s3, {cfg.lx + 1}")
        a("s_and_b32 s3, s3, 7")
        a("s_lshl_b32 s3, s3, 5")
        a("s_lshr_b32 s33, s2, 3")
        a("s_add_u32 s3, s3, s33")
        a("s_cmp_ge_u32 s3, 252")
        a("s_cbranch_scc1 L_exit")
        a("s_cmp_ge_u32 s3, 224")
        a("s_cselect_b32 s33, 14, 112")
        a("s_cselect_b32 s34, 224, 0")
        a("s_cselect_b32 s29, 112, 0")
        a("s_sub_u32 s3, s3, s34")
        a("s_cmp_ge_u32 s3, s33")
        a("s_cselect_b32 s28, 1, 0")
        a("s_cselect_b32 s33, s33, 0")
        a("s_sub_u32 s3, s3, s33")
        a("s_add_u32 s3, s3, s29")
    a("v_lshrrev_b32 v2, 6, v0")
    a("v_and_b32 v1, 63, v0")
    a("v_readfirstlane_b32 s32, v2")
    a("v_lshlrev_b32 v30, 2, v0")
    a(f"v_add_u32 v30, {FLAGS}, v30")
    a("v_mov_b32 v31, 0")
    a("ds_write_b32 v30, v31")
    a("s_mul_i32 s33, s3, 4682")
    a("s_lshr_b32 s33, s33, 16")
    a("s_mul_i32 s34, s33, 14")
    a("s_sub_u32 s34, s3, s34")
    a("s_and_b32 s29, s34, 1")
    a("s_lshr_b32 s30, s34, 1")
    a("s_lshl_b32 s30, s30, 4")
    a("s_mul_i32 s31, s33, 25")
    a("s_lshr_b32 s31, s31, 1")
    a("s_and_b32 s34, s33, 1")
    a("s_lshl_b32 s35, s31, 1")
    a("s_add_u32 s35, s35, s28")
    a(f"s_mul_i32 s35, s35, {ROWB}")
    a("s_lshl_b32 s36, s30, 1")
    a("s_add_u32 s36, s36, s29")
    a("s_mul_i32 s36, s36, 192")
    a("s_lshl_b32 s52, s29, 1")
    a("s_sub_u32 s52, 2, s52")
    if cfg.jrot == 1:
        a("s_and_b32 s28, s2, 7")
        a("s_cmp_ge_u32 s28, 5")
        a("s_cselect_b32 s37, 4, 0")
        a("s_sub_u32 s28, s28, s37")
    elif cfg.jrot == 2:
        a("s_mul_i32 s37, s2, 205")
        a("s_lshr_b32 s37, s37, 10")
        a("s_mul_i32 s37, s37, 5")
        a("s_sub_u32 s28, s2, s37")
    if cfg.order == 1: a("s_mov_b32 s3, s34")
    elif cfg.order == 2: a("s_mov_b32 s3, 1")
    elif cfg.order == 3: a("s_mov_b32 s3, 0")
    elif cfg.order == 4:
        a("s_and_b32 s3, s2, 0x30")
        a("s_min_u32 s3, s3, 1")
    a("s_cmp_ge_u32 s32, 4")
    if cfg.cpf:
        a("s_cbranch_scc0 L_ld")
        a("s_bfe_u32 s31, s32, 0x10001")
        a("s_lshl1_add_u32 s31, s34, s31")
        a("s_cmp_eq_u32 s33, 8")
        a("s_cselect_b32 s31, 3, s31")
        a("s_getpc_b64 s[38:39]")
        a.label("L_pc")
        a("s_lshr_b32 s37, s2, 1")
        a("s_and_b32 s37, s37, 0x7c")
        a("s_add_u32 s37, s37, s32")
        a("s_min_u32 s37, s37, (L_end-L_pc)/256")
        a("s_lshl_b32 s37, s37, 8")
        a("s_add_u32 s38, s38, s37")
        a("s_addc_u32 s39, s39, 0")
        a("v_mov_b32 v12, s38")
        a("v_mov_b32 v13, s39")
        a("global_load_dword v14, v[12:13], off")
        a("global_load_dword v15, v[12:13], off offset:128")
        if cfg.pads:
            if cfg.pad4:
                a("s_cmp_eq_u32 s32, 4")
                a("s_cbranch_scc1 L_padl")
            a("s_bitcmp1_b32 s32, 0")
            a("s_cbranch_scc0 L_compute")
            a("s_cmp_eq_u32 s31, 0")
            a("s_cbranch_scc1 L_pad0")
            a("s_cmp_eq_u32 s31, 1")
            a("s_cbranch_scc1 L_pad1")
            a("s_cmp_eq_u32 s31, 2")
            a("s_cbranch_scc1 L_pad2")
            a("s_branch L_pad3")
        else:
            a("s_branch L_compute")
        a.label("L_ld")
    else:
        a("s_cbranch_scc1 L_compute")
    if cfg.bench:
        a("v_mov_b32 v31, 100")
        a("ds_write_b32 v30, v31")
        a("s_waitcnt lgkmcnt(0)")
        a("s_barrier")
        a("s_branch L_dump")
    a("s_add_u32 s37, s35, s36")
    a(f"s_sub_u32 s37, s37, {2*PROW + 2*384}")
    a("s_sub_u32 s38, s30, 2")
    a("s_cmp_eq_u32 s29, 0")
    a("s_cselect_b32 s14, 32, -32")
    a("s_cselect_b32 s15, 0, 320")
    a(f"s_mul_i32 s10, s14, {8*PROW//32}")
    a("s_and_b32 s11, s32, 1")
    a("s_lshl_b32 s39, s11, 4")
    a("s_add_u32 s15, s15, s39")
    a("v_lshrrev_b32 v13, 2, v1")
    a("v_add_u32 v13, s15, v13")
    a("v_lshrrev_b32 v14, 3, v1")
    a("v_and_b32 v14, 2, v14")
    a("v_and_b32 v15, 3, v1")
    a("v_xor_b32 v14, v14, v15")
    a("v_lshlrev_b32 v14, 4, v14")
    a("v_add_u32 v14, s37, v14")
    a("v_bfrev_b32 v19, 1")
    a("s_movk_i32 s39, 3277")
    a(f"s_mov_b32 s49, {PROW}")
    a("s_movk_i32 s50, 384")
    a("s_movk_i32 s51, 112")
    for b in range(5):
        a("v_mul_u32_u24 v15, s39, v13")
        a("v_lshrrev_b32 v15, 16, v15")
        a("v_mul_u32_u24 v16, 20, v15")
        a("v_sub_u32 v16, v13, v16")
        a("v_add_u32 v17, s38, v16")
        a("v_cmp_gt_u32 vcc, s51, v17")
        a("v_mad_u32_u24 v18, v15, s49, v14")
        a("v_mad_u32_u24 v18, v16, s50, v18")
        a(f"v_cndmask_b32 v{2+b}, v19, v18, vcc")
        if b < 4: a("v_add_u32 v13, s14, v13")
        a(f"v_add_u32 v{7+b}, s10, v{2+b}")
    a("v_add_u32 v12, s10, v7")
    a("s_lshl_b32 s57, s52, 6")
    a("s_lshl_b32 s56, s15, 6")
    a("s_lshl_b32 s14, s14, 6")
    a("v_lshlrev_b32 v20, 4, v1")
    a("v_cmp_gt_u32 vcc, 32, v1")
    a("v_xor_b32 v22, 32, v20")
    a("s_bfe_u32 s39, s2, 0x20004")
    a("v_cndmask_b32 v21, v22, v20, vcc")
    a("s_mul_i32 s38, s11, 5")
    a("s_add_u32 s39, s39, s38")
    a("s_mul_i32 s40, s39, 3072")
    a("s_lshr_b32 s41, s39, 1")
    a(f"s_mul_i32 s41, s41, {92160 - 6144}")
    a("s_add_u32 s41, s41, s40")
    a("s_movk_i32 s42, 3072")
    a("s_bitcmp1_b32 s39, 0")
    a(f"s_cselect_b32 s42, {92160 - 3072}, s42")
    a("s_mov_b32 s43, 4")
    a("s_cmp_ge_u32 s32, 2")
    a("s_cselect_b32 s95, 1, 0")
    a(f"s_mul_i32 s54, s95, {WBUF}")
    a(f"s_add_u32 s54, s54, {WBASE}")
    if cfg.jrot:
        a("s_add_u32 s37, s95, s28")
        a("s_cmp_eq_u32 s37, 5")
        a("s_cselect_b32 s37, 0, s37")
        a("s_mul_i32 s37, s37, 3")
    else: a("s_mul_i32 s37, s95, 3")
    a("s_add_u32 s37, s37, s52")
    a("s_mul_i32 s37, s37, 6144")
    a("s_mov_b32 s55, 0")
    a("s_mov_b32 s15, 15")
    a(f"s_mov_b32 s18, {XBYTES}")
    a("s_mov_b32 s19, 0x20000")
    a(f"s_mov_b32 s22, {WBYTES}")
    a("s_mov_b32 s23, s19")
    a("s_waitcnt lgkmcnt(0)")
    if cfg.diag: stamp(a, 1)
    mark("karg")
    if cfg.order:
        a("s_cmp_eq_u32 s95, s3")
        a("s_cbranch_scc1 L_go")
        a("s_barrier")
        a.label("L_go")
    a("s_cmp_eq_u32 s95, 1")
    a("s_cbranch_scc0 L_w_it")
    a.label("L_x_loop")
    for blk in range(4):
        a(f"s_bitcmp1_b32 s15, {blk}")
        a(f"s_cbranch_scc0 " + (f"L_x{blk}" if blk < 3 else "L_x_next"))
        for k in range(3 * blk, min(3 * blk + 3, 11)):
            a("s_mov_b32 m0, s56")
            a("s_add_u32 s56, s56, s14")
            a(f"buffer_load_dwordx4 v{2+k}, s[16:19], s57 offen{cfg.xflag} lds")
        if blk < 3: a.label(f"L_x{blk}")
    a("s_cmp_lg_u32 s55, 0")
    a("s_cbranch_scc1 L_x_sig")
    if cfg.diag: stamp(a, 2)
    mark("xi")
    if cfg.order:
        a("s_cmp_eq_u32 s3, 0")
        a("s_cbranch_scc1 L_x_nb")
    a("s_barrier")
    a.label("L_x_nb")
    a("v_mov_b32 v26, 1")
    a("s_waitcnt vmcnt(0)")
    a("ds_write_b32 v30, v26")
    trace(45, 0)
    mark("x0")
    a.label("L_w_it")
    a("s_add_u32 m0, s54, s40")
    a("s_add_u32 s50, s37, s41")
    for k in range(3):
        a(f"buffer_load_dwordx4 v{20+k}, s[20:23], s50 offen offset:{k*1024}{cfg.wflag} lds")
    a("s_addk_i32 s40, 3072")
    a("s_add_u32 s41, s41, s42")
    a(f"s_xor_b32 s42, s42, {3072 ^ (92160 - 3072)}")
    a(f"s_cmpk_eq_u32 s40, {WBUF}")
    a("s_cselect_b32 s40, 0, s40")
    a("s_cselect_b32 s41, 0, s41")
    a("s_sub_u32 s43, s43, 1")
    a("s_cbranch_scc0 L_w_it")
    a("s_cmp_lg_u32 s55, 0")
    a("s_cbranch_scc1 L_w_adv")
    a("s_cmp_eq_u32 s95, 1")
    a("s_cbranch_scc1 L_x_w1")
    if cfg.order:
        a("s_cmp_eq_u32 s3, 1")
        a("s_cbranch_scc1 L_w_nb1")
    a("s_barrier")
    a.label("L_w_nb1")
    a("s_mov_b32 s55, s32")
    a("s_mov_b32 s53, s32")
    a(f"s_mul_i32 s50, s32, {WBUF}")
    a("s_add_u32 s54, s54, s50")
    a("v_mov_b32 v31, s32")
    a.label("L_w_adv")
    trace(44, "s55")
    a("v_add_u32 v31, 2, v31")
    a("s_waitcnt vmcnt(0)")
    a("ds_write_b32 v30, v31")
    trace(45, "s55")
    if cfg.amp == "pt" and cfg.pt == "w0":
        a("s_cmp_ge_u32 s55, 2")
        a("s_cbranch_scc1 L_pw")
        mark("w0")
        a.label("L_pw")
    a(f"s_sub_u32 s54, s54, {WBUF}")
    a(f"s_cmp_lt_u32 s54, {WBASE}")
    a(f"s_cselect_b32 s50, {3*WBUF}, 0")
    a("s_add_u32 s54, s54, s50")
    a("s_add_u32 s53, s53, 2")
    a("s_cmp_ge_u32 s53, 5")
    a("s_cselect_b32 s50, 5, 0")
    a("s_sub_u32 s53, s53, s50")
    a("s_lshr_b32 s50, s50, 2")
    a("s_add_u32 s52, s52, s50")
    a("s_cmp_eq_u32 s52, 3")
    a("s_cselect_b32 s52, 0, s52")
    if cfg.jrot:
        a("s_add_u32 s37, s53, s28")
        a("s_cmp_ge_u32 s37, 5")
        a("s_cselect_b32 s50, 5, 0")
        a("s_sub_u32 s37, s37, s50")
        a("s_mul_i32 s37, s37, 3")
    else: a("s_mul_i32 s37, s53, 3")
    a("s_add_u32 s37, s37, s52")
    a("s_mul_i32 s37, s37, 6144")
    a("s_mov_b32 s43, 9")
    a("s_mov_b32 s51, s55")
    a("s_add_u32 s55, s55, 2")
    a("s_cmp_eq_u32 s51, 0")
    a("s_cbranch_scc1 L_w_it")
    a("s_cmp_ge_u32 s55, 15")
    a("s_cbranch_scc1 L_store")
    a("v_and_b32 v23, 3, v1")
    a("v_lshlrev_b32 v23, 8, v23")
    a(f"v_add_u32 v23, {FLAGS + 1024}, v23")
    poll(a, "L_w_poll", 23, 24, "s51", cfg.sleep)
    trace(46, "s55")
    a("s_branch L_w_it")
    if cfg.pad4:
        a.label("L_padl")
        a("s_branch L_compute")
    a.label("L_x_w1")
    C = sum(((thr << 4) | m) << (8 * k) for k, (thr, m) in enumerate(cfg.xb))
    assert len(cfg.xb) <= 8
    a(f"s_mov_b32 s92, {C & 0xffffffff:#x}")
    a(f"s_mov_b32 s93, {C >> 32:#x}")
    a("s_mov_b32 s55, 1")
    if cfg.trace: a("s_mov_b32 s51, 1")
    a.label("L_x_sig")
    a("v_add_u32 v31, 5, v31")
    a("s_waitcnt vmcnt(0)")
    a("ds_write_b32 v30, v31")
    trace(45, "s51")
    if cfg.amp == "pt" and cfg.pt == "w1":
        a("s_cmp_lg_u32 s15, 15")
        a("s_cbranch_scc1 L_px")
        mark("w1")
        a.label("L_px")
    a("s_mul_i32 s50, s14, -11")
    a("s_add_u32 s56, s56, s50")
    a(f"s_add_u32 s56, s56, {XCH}")
    a("s_add_u32 s57, s57, 64")
    a("s_cmp_eq_u32 s57, 192")
    a("s_cselect_b32 s57, 0, s57")
    a.label("L_x_next")
    a("s_and_b32 s15, s92, 15")
    a("s_cbranch_scc0 L_xdone")
    a("s_bfe_u32 s51, s92, 0x40004")
    a("s_lshr_b64 s[92:93], s[92:93], 8")
    a("v_and_b32 v22, 1, v1")
    a(f"v_lshlrev_b32 v22, 8, v22")
    a(f"v_add_u32 v22, {FLAGS}, v22")
    poll(a, "L_x_poll", 22, 23, "s51", cfg.sleep)
    trace(44, "s51")
    a("s_branch L_x_loop")
    if cfg.help:
        a.label("L_help")
        a("v_and_b32 v1, 63, v0")
        a("v_lshrrev_b32 v2, 6, v0")
        a("v_mul_u32_u24 v3, 43, v1")
        a("v_readfirstlane_b32 s32, v2")
        a("v_lshrrev_b32 v3, 9, v3")
        a("v_mul_u32_u24 v4, 12, v3")
        a("v_sub_u32 v4, v1, v4")
        a("v_mul_u32_u24 v3, 92160, v3")
        a("v_lshl_add_u32 v3, v4, 7, v3")
        a("s_and_b32 s33, s2, 1")
        a("s_and_b32 s3, s3, 1")
        a("s_lshl1_add_u32 s33, s3, s33")
        a("s_mulk_i32 s33, 1536")
        a("s_lshr_b32 s34, s32, 1")
        a("s_add_u32 s34, s34, 1")
        a("s_mul_i32 s34, s34, 3")
        a("s_and_b32 s35, s32, 1")
        a("s_lshl1_add_u32 s34, s35, s34")
        a("s_mulk_i32 s34, 6144")
        a("s_add_u32 s34, s34, s33")
        a("s_min_u32 s35, s32, 4")
        a("s_mul_i32 s35, s35, 3")
        a("s_add_u32 s35, s35, 1")
        a("s_mulk_i32 s35, 6144")
        a("s_add_u32 s35, s35, s33")
        a("s_waitcnt lgkmcnt(0)")
        a(f"s_mov_b32 s22, {WBYTES}"); a("s_mov_b32 s23, 0x20000")
        a("buffer_load_dword v5, v3, s[20:23], s34 offen")
        a("buffer_load_dword v6, v3, s[20:23], s35 offen")
        a("s_waitcnt vmcnt(0)")
        a("s_endpgm")
    a.label("L_xdone")
    if cfg.padf:
        a("s_lshl1_add_u32 s39, s34, s11")
        a("s_cmp_eq_u32 s33, 8")
        a("s_cselect_b32 s39, 3, s39")
        for var in range(3):
            a(f"s_cmp_eq_u32 s39, {var}")
            a(f"s_cbranch_scc1 L_padf{var}")
        a("s_branch L_padf3")
    a.label("L_store")
    a.label("L_store2")
    a(f"s_mov_b32 s26, {XBYTES}")
    a("s_mov_b32 s27, 0x20000")
    a("s_movk_i32 s49, 208")
    a("s_movk_i32 s50, 384")
    a("v_lshrrev_b32 v11, 2, v1")
    a("v_and_b32 v12, 3, v1")
    a("v_lshlrev_b32 v12, 4, v12")
    a("v_mad_u32_u24 v5, v11, s50, v12")
    a("v_mad_u32_u24 v2, v11, s49, v12")
    a("v_and_b32 v10, 1, v1")
    a("v_lshlrev_b32 v10, 8, v10")
    a("s_lshl_b32 s39, s95, 9")
    a(f"s_add_u32 s39, s39, {FLAGS + 1024}")
    a("v_add_u32 v10, s39, v10")
    a("s_add_u32 s45, s35, s36")
    a("s_or_b32 s38, s34, s95")
    a("s_cmp_eq_u32 s33, 8")
    a("s_cselect_b32 s38, 1, s38")
    a("s_cselect_b32 s43, 6, 7")
    a("s_xor_b32 s38, s38, 1")
    a("s_andn2_b32 s44, s34, s95")
    a("s_add_u32 s39, s34, 6")
    a("s_mul_i32 s39, s39, s95")
    a("s_add_u32 s39, s39, s44")
    a("s_add_u32 s39, s39, 5")
    a("s_cmp_eq_u32 s38, 1")
    a("s_cselect_b32 s39, 0, s39")
    a("s_cselect_b32 s42, 1, -1")
    def rowsetup():
        a("s_mul_i32 s40, s11, s42")
        a("s_add_u32 s39, s39, s40")
        a(f"s_mul_i32 s47, s39, {PROW}")
        a("s_add_u32 s47, s47, s45")
        a(f"s_mul_i32 s48, s39, {SROW}")
        a("v_add_u32 v12, s48, v2")
        a(f"s_mul_i32 s40, s42, {2*PROW}")
        a(f"s_mul_i32 s41, s42, {2*SROW}")
    rowsetup()
    a("s_add_u32 s51, s11, 16")
    a("s_add_u32 s44, s44, 22")
    a.label("L_st_m")
    poll(a, "L_st_mp", 10, 11, "s51", cfg.sleep)
    a(f"ds_read_b128 {vr(16,4)}, v12 offset:64")
    a("v_add_u32 v12, s41, v12")
    a("s_add_u32 s51, s51, 2")
    a("s_waitcnt lgkmcnt(0)")
    a(f"buffer_store_dwordx4 {vr(16,4)}, v5, s[24:27], s47 offen offset:64{cfg.stflag}")
    a("s_add_u32 s47, s47, s40")
    a("s_cmp_lt_u32 s51, s44")
    a("s_cbranch_scc1 L_st_m")
    if cfg.stprio: a(f"s_setprio {cfg.stprio}")
    a("s_cmp_eq_u32 s95, 1")
    a("s_cselect_b32 s39, s43, s34")
    a("s_cmp_eq_u32 s38, 1")
    a("s_cselect_b32 s39, 5, s39")
    a("s_sub_u32 s42, 0, s42")
    rowsetup()
    a("s_add_u32 s51, s11, 25")
    a("s_and_b32 s38, s38, s11")
    a("s_cbranch_scc0 L_st_go")
    a("v_and_b32 v28, 3, v1")
    a("v_lshlrev_b32 v28, 8, v28")
    a(f"v_add_u32 v28, {FLAGS + 1024}, v28")
    a(f"s_add_u32 s45, s45, {6*PROW}")
    poll(a, "L_st_s1", 28, 11, 24, cfg.sleep2)
    for k in range(2): a(f"ds_read_b128 {vr(16+4*k,4)}, v2 offset:{6*SROW + 128*k}")
    for k in range(2):
        a(f"s_waitcnt lgkmcnt({1-k})")
        a(f"buffer_store_dwordx4 {vr(16+4*k,4)}, v5, s[24:27], s45 offen offset:{128*k}{cfg.stflag}")
    a.label("L_st_go")
    poll(a, "L_st_p1", 10, 11, "s51", cfg.sleep2)
    for k in range(2): a(f"ds_read_b128 {vr(16+4*k,4)}, v12 offset:{128*k}")
    a("v_add_u32 v12, s41, v12")
    a("s_add_u32 s51, s51, 2")
    for k in range(2):
        a(f"s_waitcnt lgkmcnt({1-k})")
        a(f"buffer_store_dwordx4 {vr(16+4*k,4)}, v5, s[24:27], s47 offen offset:{128*k}{cfg.stflag}")
    a("s_add_u32 s47, s47, s40")
    a("s_cmp_lt_u32 s51, 30")
    a("s_cbranch_scc1 L_st_go")
    a.label("L_st_end")
    if cfg.amp in ("all", "pt"): a("s_branch L_ampall")
    if cfg.diag:
        stamp(a, 5)
        a("s_waitcnt vmcnt(0)")
        stamp(a, 6)
        dump_stamps(a, cfg)
    a.label("L_exit")
    a("s_endpgm")
    a.label("L_compute")
    if cfg.cbar == 0:
        a("s_waitcnt lgkmcnt(0)")
        a("s_barrier")
    a("s_sub_u32 s37, s32, 4")
    a("s_and_b32 s38, s37, 1")
    a("s_lshr_b32 s37, s37, 1")
    a("s_add_u32 s39, s34, 6")
    a("s_mul_i32 s49, s37, s39")
    a(f"v_mov_b32 v{V_CP}, v30")
    a(f"v_mov_b32 v{V_PV}, 0")
    a("v_and_b32 v32, 15, v1")
    a("v_lshrrev_b32 v33, 4, v1")
    a("v_and_b32 v34, 1, v33")
    a("v_lshrrev_b32 v35, 1, v33")
    a("v_bfe_u32 v36, v1, 2, 2")
    a("v_and_b32 v37, 3, v1")
    a(f"v_lshlrev_b32 v{V_LF}, 8, v37")
    a(f"v_add_u32 v{V_LF}, {FLAGS}, v{V_LF}")
    a(f"v_or_b32 v16, 512, v{V_LF}")
    a(f"v_xor_b32 v17, 512, v16")
    a("s_lshl_b32 s39, s38, 7")
    a("v_lshlrev_b32 v40, 5, v34")
    a("v_lshl_add_u32 v40, v35, 4, v40")
    a("v_add_u32 v40, s39, v40")
    a("s_lshl_b32 s39, s38, 5")
    a("s_add_u32 s39, s39, 64")
    a("v_lshlrev_b32 v41, 3, v33")
    a("v_add_u32 v41, s39, v41")
    a("v_mul_u32_u24 v38, 384, v32")
    a("v_add_u32 v38, s36, v38")
    a(f"v_add_u32 v{V_SA}, v38, v40")
    a(f"v_add_u32 v{V_SC}, v38, v41")
    a("v_mul_u32_u24 v38, 208, v32")
    a(f"s_mul_i32 s39, s49, {SROW}")
    a("v_add_u32 v38, s39, v38")
    a("s_lshl_b32 s39, s38, 7")
    a(f"v_lshl_add_u32 v{V_GA}, v33, 3, v38")
    a(f"v_add_u32 v{V_GA}, s39, v{V_GA}")
    a(f"v_add_u32 v{V_GB}, v38, v41")
    a(f"s_mul_i32 s47, s49, {PROW}")
    a("s_add_u32 s47, s47, s35")
    a("v_lshl_add_u32 v38, v33, 3, v36")
    a("v_mul_u32_u24 v38, 192, v38")
    a("v_lshl_add_u32 v38, v37, 3, v38")
    a(f"v_add_u32 v38, {WBASE}, v38")
    a("s_add_u32 s39, s38, 2")
    a("v_xor_b32 v39, s39, v34")
    a(f"v_lshl_add_u32 v{V_WA[0]}, v39, 5, v38")
    a("s_lshl_b32 s39, s38, 2")
    a("v_xor_b32 v39, s39, v34")
    a(f"v_lshl_add_u32 v{V_WA[1]}, v39, 5, v38")
    a("v_xor_b32 v39, 1, v39")
    a(f"v_lshl_add_u32 v{V_WA[2]}, v39, 5, v38")
    a("v_lshlrev_b32 v38, 6, v32")
    a("v_lshl_add_u32 v38, v33, 4, v38")
    a(f"s_mul_i32 s39, s49, {XROW}")
    if cfg.jrot:
        a("s_lshl_b32 s50, s28, 6")
        a("s_add_u32 s39, s39, s50")
    a(f"v_add_u32 v{V_XL}, s39, v38")
    if cfg.jrot:
        a(f"s_lshr_b32 s50, {sum(1 << (h + 1) for h in (5, 10, 15))}, s28")
        a("s_movk_i32 s53, -256")
        a("s_bitcmp1_b32 s50, 15")
        a("s_cselect_b32 s54, s53, 64")
    a(f"v_lshrrev_b32 v{V_T}, 3, v{V_XL}")
    a(f"v_and_b32 v{V_T}, 32, v{V_T}")
    a(f"v_xor_b32 v{V_XA[0]}, v{V_XL}, v{V_T}")
    a(f"v_xor_b32 v{V_XA[1]}, 32, v{V_XA[0]}")
    if cfg.mov64:
        for k in range(0, 84, 2): a(f"v_mov_b64 {vr(V_ACC+k,2)}, 0")
    else:
        for k in range(84): a(f"v_mov_b32 v{V_ACC+k}, 0")
    a(f"s_mov_b32 s40, {(1 << 6) | (1 << 11)}")
    a(f"s_mov_b32 s41, {sum(1 << (h + 1) for h in (3, 6, 9, 12))}")
    a(f"s_mov_b32 s44, {(-2*WBUF) & 0xffffffff}")
    a(f"s_mov_b32 s45, {WBUF}")
    a("s_mov_b32 s46, 2")
    if cfg.amp == "stall": a("s_mov_b32 s85, 0")
    if cfg.cbar == 1:
        a("s_waitcnt lgkmcnt(0)")
        a("s_barrier")
    if cfg.diag: stamp(a, 1)
    a(f"s_mov_b32 s26, {XBYTES}")
    a("s_mov_b32 s27, 0x20000")
    if cfg.prio: a(f"s_setprio {cfg.prio}")
    if cfg.amp in ("span", "skew"): srd(a, 80, 12, 256)
    for var in (1, 2, 3):
        a(f"s_cmp_eq_u32 s31, {var}")
        a(f"s_cbranch_scc1 L_pro{var}")
    if cfg.pads: a("s_branch L_pro0")
    fa = Asm()
    for var in range(4):
        if var % 2 == 0: a(".p2align 12")
        emit_variant(a, fa, var, cfg)
    a.lines += fa.lines
    a.label("L_end")
    for _ in range(100): a("s_endpgm")
    out += a.text()
    nv = (V_END + 7) // 8 * 8
    out += f""".section .rodata,"a"
.p2align 6
.amdhsa_kernel {NAME}_kernel
  .amdhsa_next_free_vgpr {nv}
  .amdhsa_next_free_sgpr 96
  .amdhsa_accum_offset {nv}
  .amdhsa_group_segment_fixed_size 0
  .amdhsa_kernarg_size 40
  .amdhsa_user_sgpr_count 2
  .amdhsa_user_sgpr_kernarg_segment_ptr 1
  .amdhsa_system_sgpr_workgroup_id_x 1
{cfg.kd}.end_amdhsa_kernel
"""
    return out

if __name__ == "__main__":
    p = argparse.ArgumentParser()
    p.add_argument("-o", default="standalone__dilated_atrous__vision.s")
    p.add_argument("--diag", action="store_true")
    p.add_argument("--trace", action="store_true")
    p.add_argument("--bar_pos", type=int, default=62)
    p.add_argument("--xbar", type=int, default=40)
    p.add_argument("--lead", type=int, default=5)
    p.add_argument("--safe", type=int, default=8)
    p.add_argument("--prio", type=int, default=1)
    p.add_argument("--align", type=int, default=1)
    p.add_argument("--snake", type=int, default=1)
    p.add_argument("--exper", type=int, default=2)
    p.add_argument("--order", type=int, default=1)
    p.add_argument("--wpf", type=int, default=0)
    p.add_argument("--epf", type=int, default=0)
    p.add_argument("--cpf", type=int, default=1)
    p.add_argument("--sleep", type=int, default=2)
    p.add_argument("--sleep2", type=int, default=0)
    p.add_argument("--stflag", default="sc0 sc1 nt")
    p.add_argument("--wd", type=int, default=1)
    p.add_argument("--amp", default="")
    p.add_argument("--padf", type=int, default=1)
    p.add_argument("--kd", default="")
    p.add_argument("--lastflag", default=None)
    p.add_argument("--jrot", type=int, default=0)
    p.add_argument("--pt", default="")
    p.add_argument("--sg", type=int, default=0)
    p.add_argument("--addd", type=int, default=0)
    p.add_argument("--onlyw", type=int, default=-1)
    p.add_argument("--onlyb", type=int, default=-1)
    p.add_argument("--help2", dest="help", type=int, default=0)
    p.add_argument("--pg", type=int, default=1)
    p.add_argument("--alead", type=int, default=20)
    p.add_argument("--entry_last", type=int, default=0)
    p.add_argument("--pad4", type=int, default=0)
    p.add_argument("--lx", type=int, default=-1)
    p.add_argument("--al8", type=int, default=0)
    p.add_argument("--shift4", type=int, default=0)
    p.add_argument("--rush", type=int, default=30)
    p.add_argument("--fill", type=int, default=0)
    p.add_argument("--pads", type=int, default=1)
    p.add_argument("--nstage", type=int, default=5)
    p.add_argument("--spec", type=int, default=1)
    p.add_argument("--stprio", type=int, default=0)
    p.add_argument("--mov64", type=int, default=1)
    p.add_argument("--xflag", default="")
    p.add_argument("--wflag", default="")
    p.add_argument("--fixd", type=int, default=0)
    p.add_argument("--wbl2", type=int, default=0)
    p.add_argument("--bench", action="store_true")
    p.add_argument("--drop", default="")
    p.add_argument("--cmpd", type=int, default=4)
    p.add_argument("--updstep", type=int, default=1)
    p.add_argument("--xthr", type=int, default=2)
    p.add_argument("--cbar", type=int, default=0)
    p.add_argument("--w2wait", type=int, default=1)
    p.add_argument("--xb", default="3:1,4:2,5:4,6:8,8:3,9:12")
    cfg = p.parse_args()
    cfg.xb = [tuple(int(v) for v in e.split(":")) for e in cfg.xb.split(",")]
    WD = cfg.wd
    cfg.kd = "".join(f"  .amdhsa_{e}\n" for e in cfg.kd.split(",") if e)
    if cfg.lastflag is None: cfg.lastflag = cfg.stflag
    if cfg.lastflag: cfg.lastflag = " " + cfg.lastflag
    if cfg.stflag: cfg.stflag = " " + cfg.stflag
    if cfg.xflag: cfg.xflag = " " + cfg.xflag
    if cfg.wflag: cfg.wflag = " " + cfg.wflag
    open(cfg.o, "w").write(gen(cfg))
```

```python
import sys, argparse

NAME = "standalone__dilated_atrous__vision"
XBYTES = 224 * 224 * 96 * 2
WBYTES = 25 * 96 * 96 * 2
ROWB = 224 * 192
PROW = 2 * ROWB
XCH = 352 * 64
XROW = 20 * 64
WBASE = 3 * XCH
WBUF = 5 * 6144
FLAGS = WBASE + 3 * WBUF
LDS_TOTAL = FLAGS + 2048
SROW = 16 * 208
assert 13 * SROW <= 2 * XCH

class Asm:
    def __init__(self):
        self.lines = []
    def __call__(self, s):
        self.lines.append("    " + s)
    def label(self, l):
        self.lines.append(l + ":")
    def comment(self, s):
        self.lines.append("    ; " + s)
    def text(self):
        return "\n".join(self.lines) + "\n"

def vr(b, n):
    return f"v[{b}:{b+n-1}]"

V_XL = 1
V_XA = (2, 3)
V_WA = (4, 5, 6)
V_SA, V_SC = 7, 8
V_GA, V_GB = 9, 10
V_T = 11
V_XB = (22, 23)
V_CP = 25
V_LF = 26
V_PV = 27
V_F = 28
V_X = 32
V_W = 76
V_ACC = 136
V_EXTRA = V_ACC + 84
V_END = V_EXTRA + 32

TYPES = {
    0: (range(0, 6), range(0, 7), range(0, 6)),
    1: (range(0, 6), range(1, 7), range(0, 7)),
    2: (range(0, 7), range(1, 7), range(1, 7)),
    3: (range(0, 6), range(0, 6), range(0, 6)),
}
OFF = {0: 0, 1: 1, 2: 1, 3: 0}
SPECIAL = {0: 6, 1: 0, 2: 0, 3: None}
LASTHEAD = {
    0: [(0, 0), (0, 1), (6, 1), (0, 2)],
    1: [(0, 0), (1, 0), (1, 1), (0, 2), (1, 2)],
    2: [(0, 0), (1, 0), (1, 1), (2, 0), (1, 2), (2, 1), (2, 2)],
    3: [(0, 0), (0, 1), (1, 0), (0, 2), (1, 1), (1, 2)],
}

def acc(rho, t): return V_ACC + 4 * (rho * 3 + t)
def wreg(i, t): return V_W + 4 * (i * 3 + t)
def xreg(q): return V_X + 4 * q

def chain(rho, t, rev):
    r = list(range(5))
    if rev: r.reverse()
    return [(rho, i, t, rho + i) for i in r]

def steady_order(var, cfg, par=(1, 1, 1)):
    ms = []
    for t in range(3):
        for j, rho in enumerate(TYPES[var][t]): ms += chain(rho, t, cfg.snake and j % 2 == par[t])
    return ms

DIRECT = {0: (5,), 1: (6, 5), 2: (6,), 3: (5,)}

def last_tiles(var):
    order = list(LASTHEAD[var])
    rows = [r for r in range(7) if r not in DIRECT[var]] + list(DIRECT[var])
    for r in rows:
        for t in ((0, 1, 2) if r not in DIRECT[var] else (1, 2, 0)):
            if r in TYPES[var][t] and (r, t) not in order: order.append((r, t))
    return order

def last_order(var, cfg, par=1):
    ms = []
    for j, (r, t) in enumerate(last_tiles(var)): ms += chain(r, t, cfg.snake and j % 2 == par and j >= 4)
    return ms

def uses(ms):
    first, last = {}, {}
    for k, (rho, i, t, q) in enumerate(ms):
        for key in (("w", i, t, 0), ("w", i, t, 1), ("x", q)):
            first.setdefault(key, k); last[key] = k
    return first, last

def read_text(nm):
    if nm[0] == "x":
        q = nm[1]
        return f"ds_read_b128 {vr(xreg(q),4)}, v{V_XA[q & 1]} offset:{q*XROW}"
    _, i, t, h = nm
    return f"ds_read_b64_tr_b16 {vr(wreg(i,t)+2*h,2)}, v{V_WA[t]} offset:{i*6144 + h*768}"

def edf(reads, lo, hi, lead, busy=()):
    placed, pending = {}, list(reads)
    for k in range(lo, hi):
        avail = [r for r in pending if r[1] <= k]
        if not avail: continue
        r = min(avail, key=lambda r: r[2])
        placed[k] = r[0]
        pending.remove(r)
        assert r[2] - k >= lead, (r, k)
    assert not pending, pending
    return placed

def mfma_text(m):
    rho, i, t, q = m
    return f"v_mfma_f32_16x16x32_bf16 {vr(acc(rho,t),4)}, {vr(wreg(i,t),4)}, {vr(xreg(q),4)}, {vr(acc(rho,t),4)}"

class LdsQ:
    def __init__(self, a, safe):
        self.a, self.safe = a, safe
        self.ops = []
        self.done = 0
        self.waits = []
    def issue(self, name, time, text=None):
        self.ops.append((name, time))
        if text: self.a(text)
    def need(self, names, time):
        idx = max(max(j for j, (nm, _) in enumerate(self.ops) if nm == n) for n in names) + 1
        if idx <= self.done: return
        for j, (nm, tm) in enumerate(self.ops):
            if tm <= time - 1 - self.safe: idx = max(idx, j + 1)
        cnt = len(self.ops) - idx
        if cnt > 14:
            idx += cnt - 14; cnt = 14
        self.a(f"s_waitcnt lgkmcnt({cnt})")
        self.waits.append((time, cnt, len(self.ops)))
        self.done = idx

WD = 1
def poll(a, label, vaddr, vtmp, sneed, sleep, wd=True):
    a.label(label)
    if WD and wd:
        a("s_add_u32 s94, s94, 1")
        a("s_bitcmp1_b32 s94, 18")
        a("s_cbranch_scc1 L_exit")
    a(f"ds_read_b32 v{vtmp}, v{vaddr}")
    a("s_waitcnt lgkmcnt(0)")
    a(f"v_cmp_gt_u32 vcc, {sneed}, v{vtmp}")
    if sleep:
        a(f"s_cbranch_vccz {label}_ok")
        a(f"s_sleep {sleep}")
        a(f"s_branch {label}")
        a.label(label + "_ok")
    else:
        a(f"s_cbranch_vccnz {label}")

def isize(l):
    l = l.strip()
    op = l.split()[0]
    if op.startswith(("v_mfma", "ds_", "buffer_", "v_cvt_pk")) or op.endswith("_e64"): return 8
    import re
    for tok in re.split(r"[ ,]+", l)[1:]:
        if re.fullmatch(r"-?\d+|0x[0-9a-f]+", tok) and not op.startswith(("s_waitcnt", "s_nop")):
            v = int(tok, 0)
            if not (-16 <= v <= 64): return 8
    return 4

def align8(lines):
    out = []
    for l in lines:
        op = l.strip().split()[0]
        if op.startswith("v_") and isize(l) == 4:
            l = l.replace(op, op + "_e64", 1)
        out.append(l)
    res, off = [], 0
    for l in out:
        sz = isize(l)
        if sz == 8 and off % 8 == 4:
            res.append("    s_nop 0"); off += 4
        res.append(l); off += sz
    if off % 8 == 4: res.append("    s_nop 0")
    return res

def emit_variant(a, fa, var, cfg):
    bar = cfg.bar_pos if var != 3 else cfg.bar_pos - 3
    best = None
    for par in [(p0, 1, p2) for p0 in (1, 0) for p2 in (1, 0)]:
        ms = steady_order(var, cfg, par)
        n = len(ms)
        first, last = uses(ms)
        reads = [(key, max(last[key], bar, n if (key[0] == "w" and key[2] == 2) else 0), n + first[key]) for key in first]
        placed = edf(reads, bar, n + bar - 16, 0)
        ld = min(n + first[nm] - k for k, nm in placed.items())
        if best is None or ld > best[0]: best = (ld, par, ms, first, last, placed)
    ld, par, ms, first, last, placed = best
    print(f"variant {var}: snake parity {par}, min lead {ld}", file=sys.stderr)
    tail = [(k, placed[k]) for k in sorted(placed) if k < n]
    head = [(k - n, placed[k]) for k in sorted(placed) if k >= n]
    slow = []
    hb, tb = Asm(), Asm()
    q = LdsQ(hb, cfg.safe)
    for k, nm in tail: q.issue(nm, k - n)
    headd, taild = dict(head), dict(tail)
    extra = {}
    def put(k, s): extra.setdefault(k, []).append(s)
    krel = max(k for k, nm in head) + 1
    put(krel - 1, f"v_add_u32 v{V_PV}, 1, v{V_PV}")
    upd = (["s_bitcmp1_b32 s40, s46", f"s_cselect_b32 s42, {XCH}, 0",
            "s_bitcmp1_b32 s50, s46", "s_cselect_b32 s51, s53, 64", "s_add_u32 s42, s42, s51"] if cfg.jrot else
           ["s_bitcmp1_b32 s40, s46", f"s_cselect_b32 s42, {XCH - 4*64}, 64"]) + [
           "s_bitcmp1_b32 s41, s46", "s_cselect_b32 s43, s44, s45",
           "s_cmp_eq_u32 s46, 14", "s_cselect_b32 s49, 1000, s46",
           f"v_add_u32 v{V_XL}, s42, v{V_XL}", f"v_lshrrev_b32 v{V_T}, 3, v{V_XL}", f"v_and_b32 v{V_T}, 32, v{V_T}",
           f"v_xor_b32 v{V_XA[0]}, v{V_XL}, v{V_T}", f"v_xor_b32 v{V_XA[1]}, 32, v{V_XA[0]}"]
    upd += [f"v_add_u32 v{V_WA[t]}, s43, v{V_WA[t]}" for t in range(3)]
    b0 = krel + 2
    for j, u in enumerate(upd): put(b0 + cfg.updstep * j, u)
    kflag = bar - cfg.cmpd - 9
    assert b0 + cfg.updstep * len(upd) <= kflag
    cur = hb
    for k, m in enumerate(ms):
        rho, i, t, qq = m
        q.need([("w", i, t, 0), ("w", i, t, 1), ("x", qq)], k)
        cur(mfma_text(m))
        D = cfg.drop
        for s in extra.get(k, []): cur(s)
        if k == krel: q.issue(("rel",), k, f"ds_write_b32 v{V_CP}, v{V_PV}")
        if k == kflag: q.issue(("flag",), k, f"ds_read_b32 v{V_F}, v{V_LF}")
        if k == bar - cfg.cmpd - 1: q.need([("flag",)], k + 1)
        if k == bar - cfg.cmpd: cur(f"v_cmp_gt_u32 vcc, s49, v{V_F}")
        if k == bar:
            cur = tb; q.a = tb
        drop = lambda nm: ("l" in D and k in taild) or ("w" in D and nm[0] == "w" and k in taild) or ("x" in D and nm[0] == "x")
        if k in headd: q.issue(headd[k], k, read_text(headd[k]) if not drop(headd[k]) else None)
        if k in taild: q.issue(("next",) + taild[k], k, read_text(taild[k]) if not drop(taild[k]) else None)
        if k == n - 9: cur("s_add_u32 s46, s46, 1")
    kinds = ("w", "x") if ((var < 2 and cfg.order == 1) or cfg.order == 3) else ("x", "w")
    ent = [[nm for _, nm in sorted(tail, key=lambda e: first[e[1]]) if nm[0] == kd] for kd in kinds]
    late = ent[1]
    def entry_ok(m):
        done = len(late) - m
        wi = 0
        for k, (rho, i, t, qq) in enumerate(ms):
            while wi < len(q.waits) and q.waits[wi][0] <= k:
                _, cnt, nops = q.waits[wi]; wi += 1
                body_ops = nops - len(tail)
                done = max(done, len(late) - max(0, cnt - body_ops))
            for nm in (("w", i, t, 0), ("w", i, t, 1), ("x", qq)):
                if nm in late and late.index(nm) >= done: return False
        return True
    ment = max(mm for mm in range(min(len(late), 14) + 1) if entry_ok(mm))
    def emit_entry():
        a.label(f"L_pro{var}")
        if cfg.amp == "pt" and cfg.pt == "lpro":
            a("s_memrealtime s[86:87]")
            a("s_waitcnt lgkmcnt(0)")
        poll(a, f"L_p0_{var}", 16 if kinds[0] == "x" else 17, V_F, 1, 0)
        for nm in ent[0]: a(read_text(nm))
        poll(a, f"L_p1_{var}", 16 if kinds[1] == "x" else 17, V_F, 1, 0)
        if cfg.diag: stamp(a, 3)
        if cfg.amp and cfg.amp != "pt":
            a("s_memrealtime s[86:87]")
            a("s_waitcnt lgkmcnt(0)")
        for nm in late: a(read_text(nm))
        a(f"s_waitcnt lgkmcnt({ment})")
        a(f"s_branch L_head{var}")
    def emit_slow(a=a):
        if cfg.amp == "stall":
            a.label(f"L_slow{var}")
            a("s_memrealtime s[76:77]")
            poll(a, f"L_slowb{var}", V_LF, V_F, "s49", 0)
            a("s_memrealtime s[78:79]")
            a("s_waitcnt lgkmcnt(0)")
            a("s_sub_u32 s78, s78, s76")
            if cfg.sg:
                a(f"s_cmp_eq_u32 s46, {cfg.sg}")
                a("s_cselect_b32 s78, s78, 0")
            a("s_add_u32 s85, s85, s78")
        else:
            poll(a, f"L_slow{var}", V_LF, V_F, "s49", 0)
        a("s_cmp_eq_u32 s46, 14")
        a(f"s_cbranch_scc1 L_fin{var}")
        a(f"s_branch L_top{var}")
    if not cfg.entry_last: emit_entry()
    if cfg.al8:
        hb.lines = align8(hb.lines); tb.lines = align8(tb.lines)
    if cfg.align: a(".p2align 6")
    if cfg.pads:
        a.label(f"L_pad{var}")
        a("s_branch L_compute")
        a("s_nop 0")
    a.label(f"L_top{var}")
    a.lines += tb.lines
    a.label(f"L_head{var}")
    a.lines += hb.lines
    a(f"s_cbranch_vccz L_top{var}")
    a("s_min_u32 s49, s49, 15")
    a(f"v_cmp_gt_u32 vcc, s49, v{V_F}")
    a(f"s_cbranch_vccz L_fin{var}")
    emit_slow()
    a = fa
    a(".p2align 12")
    a.label(f"L_padf{var}")
    a("s_branch L_store2")
    a("s_nop 0")
    a.label(f"L_fin{var}")
    a.lines += tb.lines
    if cfg.diag: stamp(a, 4)
    if cfg.cpf: a("s_waitcnt vmcnt(0)")
    rows = TYPES[var]
    down = var == 0
    prow = sorted(set(rows[1]) | set(rows[2]), reverse=down)
    lastrow = prow[-1]
    srow2 = sorted(rows[0], reverse=not down)
    def build(pa, pb):
        out = []
        for j, r in enumerate(rows[0]):
            out += [m + (13, 0) for m in chain(r, 0, cfg.snake and j % 2 == pa)]
        for j, r in enumerate(srow2):
            out += [m + (14, 0) for m in chain(r, 0, cfg.snake and j % 2 == pb)]
        keep = set(range(srow2[-1], srow2[-1] + 5))
        flip = 0
        tiles = []
        for r in prow:
            ts = [t for t in ((1, 2) if flip == 0 else (2, 1)) if r in rows[t]]
            if r == lastrow: ts = [1, 2]
            for j, t in enumerate(ts):
                gs = (14, 13) if j == 0 else (13, 14)
                for g in gs:
                    for m in chain(r, t, (j == 1) != down):
                        out.append(m + (g, 0 if (g == 14 and m[3] in keep) else 1))
                tiles.append((r, t))
            flip = 0 if ts[-1] == 1 else 1
        return out, tiles
    def names(m):
        rho, i, t, qq, g, occ = m
        return [("w", g, i, t, 0), ("w", g, i, t, 1), ("x", g, qq, occ)]
    frag = lambda nm: nm if nm[0] == "x" else nm[:4]
    conv = lambda nm: ("x", 13, nm[1], 0) if nm[0] == "x" else ("w", 13) + nm[1:]
    pre = [(k - n, conv(nm)) for k, nm in tail]
    prenames = set(nm for _, nm in pre)
    slots = [V_X + 4 * j for j in range(26)] + [V_EXTRA + 4 * j for j in range(8)]
    best = None
    for pa in (1, 0):
      for pb in (1, 0):
        ls, ptiles = build(pa, pb)
        lf, ll = {}, {}
        for k, m in enumerate(ls):
            for nm in names(m):
                lf.setdefault(nm, k); ll[nm] = k
        free = {sl: 0 for sl in slots}
        regs = {}
        for nm in prenames:
            sl = xreg(nm[2]) if nm[0] == "x" else wreg(nm[2], nm[3])
            regs[frag(nm)] = sl
            free[sl] = max(free[sl], ll.get(nm, 0))
        rds, early = [], {}
        for nm in sorted(lf, key=lambda v: lf[v]):
            if nm in prenames: continue
            fr = frag(nm)
            if fr not in regs:
                ok = [sl for sl in slots if free[sl] <= lf[nm] - cfg.alead]
                sl = max(ok, key=lambda v: free[v]) if ok else min(slots, key=lambda v: free[v])
                regs[fr] = sl; early[fr] = free[sl]; free[sl] = ll[nm]
            e = early.get(fr, 0)
            if nm[0] == "x" and nm[1] == 14: e = max(e, 6)
            rds.append((nm, e, lf[nm]))
        try: lp = edf(rds, 0, len(ls), 0)
        except AssertionError: continue
        ld2 = min([lf[nm] - k for k, nm in lp.items()] + [lf[nm] - k for k, nm in pre if nm in lf])
        if best is None or ld2 > best[0]: best = (ld2, (pa, pb), ls, lf, lp, regs, ptiles)
    ld2, pars, ls, lf, lplaced, regs, ptiles = best
    print(f"   final segment: parity {pars} min lead {ld2} reads {len(lplaced)}", file=sys.stderr)
    def rd_text(nm):
        if nm[0] == "x":
            _, g, qq, occ = nm
            return f"ds_read_b128 {vr(regs[nm],4)}, v{(V_XA if g == 13 else V_XB)[qq & 1]} offset:{qq*XROW}"
        _, g, i, t, h = nm
        return f"ds_read_b64_tr_b16 {vr(regs[frag(nm)]+2*h,2)}, v{V_WA[t]} offset:{(g-13)*WBUF + i*6144 + h*768}"
    n2 = len(ls)
    q = LdsQ(a, cfg.safe)
    for k, nm in pre: q.issue(nm, k)
    endk = {}
    for k, m in enumerate(ls): endk[(m[0], m[2])] = k
    def cvt2(D, S, tile):
        return [(tile, f"v_cvt_pk_bf16_f32 v{D}, v{S}, v{S+1}"), (tile, f"v_cvt_pk_bf16_f32 v{D+1}, v{S+2}, v{S+3}")]
    seq = [(None, f"v_add_u32 v{V_XL}, {'s54' if cfg.jrot else 64}, v{V_XL}"), (None, f"v_lshrrev_b32 v{V_T}, 3, v{V_XL}"), (None, f"v_and_b32 v{V_T}, 32, v{V_T}"),
           (None, f"v_xor_b32 v{V_XB[0]}, v{V_XL}, v{V_T}"), (None, f"v_xor_b32 v{V_XB[1]}, 32, v{V_XB[0]}")]
    for j, r in enumerate(srow2):
        S = acc(r, 0)
        seq += cvt2(S, S, (r, 0))
        seq += [(None, f"v_mov_b32 v{V_PV}, {16 + j}"), (None, f"ds_write_b64 v{V_GB}, {vr(S,2)} offset:{r*SROW}"),
                (None, f"ds_write_b32 v{V_CP}, v{V_PV}")]
    kfull, seen = 0, set()
    for (r, t) in ptiles:
        S = acc(r, t)
        if r != lastrow:
            seq += cvt2(S, S, (r, t))
            pv = None
            if not (r in rows[1] and r in rows[2]): pv = 24
            elif r in seen:
                pv = 25 + kfull; kfull += 1
            seen.add(r)
            if pv: seq.append((None, f"v_mov_b32 v{V_PV}, {pv}"))
            seq.append((None, f"ds_write_b64 v{V_GA}, {vr(S,2)} offset:{r*SROW + (32 if t == 2 else 0)}"))
            if pv: seq.append((None, f"ds_write_b32 v{V_CP}, v{V_PV}"))
        elif t == 1:
            seq += cvt2(S, S, (r, t))
            seq.append((None, f"s_add_u32 s48, s47, {r*PROW}"))
        else:
            A = acc(r, 1)
            seq += cvt2(A + 2, S, (r, t))
            seq.append(("W2", f"v_permlane16_swap_b32 v{A}, v{A+2}"))
            seq.append((None, f"v_permlane16_swap_b32 v{A+1}, v{A+3}"))
            seq.append((None, f"buffer_store_dwordx4 {vr(A,4)}, v{V_SA}, s[24:27], s48 offen{cfg.lastflag}"))
    assert kfull == 5
    def states(frm):
        c = 0
        for l in a.lines[frm + 1:]:
            l = l.strip()
            if l.endswith(":") or l.startswith(";") or l.startswith("."): continue
            c += int(l.split()[1]) + 1 if l.startswith("s_nop") else 1
        return c
    done_at = {}
    last_valu = [0]
    def missing(dep):
        if dep is None: return 0
        if dep == "W2": return max(0, 2 - states(last_valu[0]))
        if dep not in done_at: return None
        return max(0, 8 - states(done_at[dep]))
    nl = [0]
    def emit_ex(txt, k):
        for key, pat in (("C", "v_cvt"), ("P", "v_permlane"), ("V", "ds_write_b64"), ("F", "ds_write_b32"), ("S", "buffer_store")):
            if key in cfg.drop and txt.startswith(pat): return
        if txt.startswith("ds_"):
            nl[0] += 1; q.issue(("st", nl[0]), k, txt)
        else: a(txt)
        if txt.startswith("v_cvt"): last_valu[0] = len(a.lines) - 1
    for k, m in enumerate(ls):
        rho, i, t, qq, g, occ = m
        q.need(names(m), k)
        a(f"v_mfma_f32_16x16x32_bf16 {vr(acc(rho,t),4)}, {vr(regs[('w',g,i,t)],4)}, {vr(regs[('x',g,qq,occ)],4)}, {vr(acc(rho,t),4)}")
        if endk[(rho, t)] == k: done_at[(rho, t)] = len(a.lines) - 1
        cnt = 0
        if k in lplaced:
            q.issue(lplaced[k], k, rd_text(lplaced[k])); cnt += 1
        lim = cfg.exper if (k >= n2 - cfg.rush or k < 6) else 1
        if k < 6: cnt = 1
        while seq and cnt < lim and k < n2 - 1:
            miss = missing(seq[0][0])
            if miss == 0:
                emit_ex(seq.pop(0)[1], k); cnt += 1
            else:
                if miss is not None and miss > 1 and cnt == 0 and k >= n2 - cfg.fill: a("s_nop 1")
                break
    while seq:
        miss = missing(seq[0][0])
        if miss: a(f"s_nop {miss - 1}")
        emit_ex(seq.pop(0)[1], n2)
    if cfg.diag:
        stamp(a, 5)
        a("s_waitcnt vmcnt(0)")
        stamp(a, 6)
        a("s_branch L_dump")
    elif cfg.amp:
        if var == 0: a.label("L_ampall")
        a("s_waitcnt vmcnt(0)")
        a("s_memrealtime s[88:89]")
        a("s_waitcnt lgkmcnt(0)")
        if cfg.amp in ("span", "skew"):
            a("v_mov_b32 v4, 0")
            a("buffer_load_dwordx2 v[6:7], v4, s[80:83], 0 offen sc0 sc1")
            a("s_waitcnt vmcnt(0)")
            a("v_readfirstlane_b32 s86, v6")
            a("v_readfirstlane_b32 s58, v7")
            a("s_nop 3")
            a("s_not_b32 s58, s58")
        lo, hi = {"pro": (58, 86), "all": (58, 88), "loop": (86, 88), "none": (58, 58), "span": (58, 88), "skew": (58, 86), "stall": (58, 58), "pt": (58, 86)}[cfg.amp]
        a(f"s_sub_u32 s90, s{hi}, s{lo}")
        a("s_mul_i32 s90, s90, 10")
        if cfg.fixd: a(f"s_mov_b32 s90, {cfg.fixd}")
        if cfg.amp == "stall": a("s_mul_i32 s90, s85, 10")
        if cfg.onlyw >= 0:
            a(f"s_cmp_eq_u32 s32, {cfg.onlyw}")
            a("s_cselect_b32 s90, s90, 0")
        if cfg.onlyb >= 0:
            a(f"s_cmp_eq_u32 s2, {cfg.onlyb}")
            a("s_cselect_b32 s90, s90, 0")
        if cfg.addd: a(f"s_cselect_b32 s91, {cfg.addd}, 0"); a("s_add_u32 s90, s90, s91")
        if cfg.wbl2:
            a("buffer_wbl2 sc1")
        a.label(f"L_amp{var}")
        a("s_memrealtime s[76:77]")
        a("s_waitcnt lgkmcnt(0)")
        a("s_sub_u32 s91, s76, s88")
        a("s_cmp_lt_u32 s91, s90")
        a(f"s_cbranch_scc1 L_amp{var}")
        a("s_endpgm")
    else:
        a("s_endpgm")

def stamp(a, idx):
    a(f"s_memtime s[{60+2*idx}:{61+2*idx}]")
    if idx in (3, 5):
        a(f"s_memrealtime s[{86 if idx == 3 else 88}:{87 if idx == 3 else 89}]")
    a("s_waitcnt lgkmcnt(0)")

def dump_stamps(a, cfg):
    a.label("L_dump")
    a("s_memrealtime s[76:77]")
    a("s_getreg_b32 s78, hwreg(HW_REG_HW_ID)")
    a("s_getreg_b32 s79, hwreg(HW_REG_XCC_ID)")
    a("s_waitcnt lgkmcnt(0)")
    a("s_mov_b32 s80, s12")
    a("s_mov_b32 s81, s13")
    a("s_mov_b32 s82, 0x100000")
    a("s_mov_b32 s83, 0x20000")
    a("s_lshl_b32 s84, s2, 3")
    a("s_add_u32 s84, s84, s32")
    a("s_lshl_b32 s84, s84, 6")
    a("v_mov_b32 v4, 0")
    for k, s in enumerate([60, 62, 64, 66, 68, 70, 72, 74, 76, 77, 78, 79, 58, 59, 86, 88]):
        a(f"v_mov_b32 v5, s{s}")
        a(f"buffer_store_dword v5, v4, s[80:83], s84 offen offset:{4*k}")
        a("s_nop 1")
    a("v_and_b32 v1, 63, v0")
    a("v_lshlrev_b32 v4, 2, v1")
    a("v_cmp_gt_u32 vcc, 16, v1")
    a("s_and_saveexec_b64 s[92:93], vcc")
    a("s_lshl_b32 s84, s84, 2")
    a("s_add_u32 s84, s84, 0x40000")
    for k in range(3):
        a(f"buffer_store_dword v{44+k}, v4, s[80:83], s84 offen offset:{64*k}")
    a("s_waitcnt vmcnt(0)")
    a("s_endpgm")

def srd(a, d, p, size):
    a(f"s_mov_b32 s{d}, s{p}")
    a(f"s_and_b32 s{d+1}, s{p+1}, 0xffff")
    a(f"s_mov_b32 s{d+2}, {size}")
    a(f"s_mov_b32 s{d+3}, 0x20000")

def gen(cfg):
    a = Asm()
    hdr = open("standalone__dilated_atrous__vision.s.ref").read().splitlines()
    head = [l for l in hdr[:8] if l.startswith(";") and "@launch" not in l]
    out = "\n".join(head) + "\n"
    out += f"; @launch grid=(256,1,1) block=(512,1,1) lds={LDS_TOTAL}\n"
    out += f""".amdgcn_target "amdgcn-amd-amdhsa--gfx950"
.text
.globl {NAME}_kernel
{".p2align 12" + chr(10) if cfg.pg else ""}.p2align 8
.type {NAME}_kernel,@function
{NAME}_kernel:
"""
    def mark(name):
        if cfg.amp == "pt" and cfg.pt == name:
            a("s_memrealtime s[86:87]")
            a("s_waitcnt lgkmcnt(0)")
    def trace(reg, idx):
        if cfg.trace:
            a("s_memtime s[90:91]")
            a(f"s_mov_b32 m0, {idx}")
            a("s_waitcnt lgkmcnt(0)")
            a(f"v_writelane_b32 v{reg}, s90, m0")
    if cfg.diag:
        a("s_memtime s[60:61]")
        a("s_memrealtime s[58:59]")
        a("s_load_dwordx2 s[12:13], s[0:1], 32")
    if cfg.amp: a("s_memrealtime s[58:59]")
    if cfg.amp == "pt": a("s_memrealtime s[86:87]")
    if cfg.amp in ("span", "skew"): a("s_load_dwordx2 s[12:13], s[0:1], 24")
    a("s_load_dwordx2 s[16:17], s[0:1], 0")
    a("s_load_dwordx2 s[20:21], s[0:1], 8")
    a("s_load_dwordx2 s[24:25], s[0:1], 16")
    if WD: a("s_mov_b32 s94, 0")
    a("s_cmp_ge_u32 s2, 256")
    a("s_cbranch_scc1 L_exit")
    if cfg.lx < 0:
        a("s_and_b32 s28, s2, 1")
        a("s_bfe_u32 s3, s2, 0x20001")
        a("s_lshl_b32 s3, s3, 5")
        a("s_lshr_b32 s33, s2, 3")
        a("s_add_u32 s3, s3, s33")
        a("s_cmp_ge_u32 s3, 126")
        a("s_cbranch_scc1 " + ("L_help" if cfg.help else "L_exit"))
    else:
        a("s_and_b32 s3, s2, 7")
        a(f"s_sub_u32 s3, s3, {cfg.lx + 1}")
        a("s_and_b32 s3, s3, 7")
        a("s_lshl_b32 s3, s3, 5")
        a("s_lshr_b32 s33, s2, 3")
        a("s_add_u32 s3, s3, s33")
        a("s_cmp_ge_u32 s3, 252")
        a("s_cbranch_scc1 L_exit")
        a("s_cmp_ge_u32 s3, 224")
        a("s_cselect_b32 s33, 14, 112")
        a("s_cselect_b32 s34, 224, 0")
        a("s_cselect_b32 s29, 112, 0")
        a("s_sub_u32 s3, s3, s34")
        a("s_cmp_ge_u32 s3, s33")
        a("s_cselect_b32 s28, 1, 0")
        a("s_cselect_b32 s33, s33, 0")
        a("s_sub_u32 s3, s3, s33")
        a("s_add_u32 s3, s3, s29")
    a("v_lshrrev_b32 v2, 6, v0")
    a("v_and_b32 v1, 63, v0")
    a("v_readfirstlane_b32 s32, v2")
    a("v_lshlrev_b32 v30, 2, v0")
    a(f"v_add_u32 v30, {FLAGS}, v30")
    a("v_mov_b32 v31, 0")
    a("ds_write_b32 v30, v31")
    a("s_mul_i32 s33, s3, 4682")
    a("s_lshr_b32 s33, s33, 16")
    a("s_mul_i32 s34, s33, 14")
    a("s_sub_u32 s34, s3, s34")
    a("s_and_b32 s29, s34, 1")
    a("s_lshr_b32 s30, s34, 1")
    a("s_lshl_b32 s30, s30, 4")
    a("s_mul_i32 s31, s33, 25")
    a("s_lshr_b32 s31, s31, 1")
    a("s_and_b32 s34, s33, 1")
    a("s_lshl_b32 s35, s31, 1")
    a("s_add_u32 s35, s35, s28")
    a(f"s_mul_i32 s35, s35, {ROWB}")
    a("s_lshl_b32 s36, s30, 1")
    a("s_add_u32 s36, s36, s29")
    a("s_mul_i32 s36, s36, 192")
    a("s_lshl_b32 s52, s29, 1")
    a("s_sub_u32 s52, 2, s52")
    if cfg.jrot == 1:
        a("s_and_b32 s28, s2, 7")
        a("s_cmp_ge_u32 s28, 5")
        a("s_cselect_b32 s37, 4, 0")
        a("s_sub_u32 s28, s28, s37")
    elif cfg.jrot == 2:
        a("s_mul_i32 s37, s2, 205")
        a("s_lshr_b32 s37, s37, 10")
        a("s_mul_i32 s37, s37, 5")
        a("s_sub_u32 s28, s2, s37")
    a("s_cmp_ge_u32 s32, 4")
    if cfg.cpf:
        a("s_cbranch_scc0 L_ld")
        a("s_bfe_u32 s31, s32, 0x10001")
        a("s_lshl1_add_u32 s31, s34, s31")
        a("s_cmp_eq_u32 s33, 8")
        a("s_cselect_b32 s31, 3, s31")
        a("s_getpc_b64 s[38:39]")
        a.label("L_pc")
        a("s_lshr_b32 s37, s2, 1")
        a("s_and_b32 s37, s37, 0x7c")
        a("s_add_u32 s37, s37, s32")
        a("s_min_u32 s37, s37, (L_end-L_pc)/256")
        a("s_lshl_b32 s37, s37, 8")
        a("s_add_u32 s38, s38, s37")
        a("s_addc_u32 s39, s39, 0")
        a("v_mov_b32 v12, s38")
        a("v_mov_b32 v13, s39")
        a("global_load_dword v14, v[12:13], off")
        a("global_load_dword v15, v[12:13], off offset:128")
        if cfg.pads:
            if cfg.pad4:
                a("s_cmp_eq_u32 s32, 4")
                a("s_cbranch_scc1 L_padl")
            a("s_bitcmp1_b32 s32, 0")
            a("s_cbranch_scc0 L_compute")
            a("s_cmp_eq_u32 s31, 0")
            a("s_cbranch_scc1 L_pad0")
            a("s_cmp_eq_u32 s31, 1")
            a("s_cbranch_scc1 L_pad1")
            a("s_cmp_eq_u32 s31, 2")
            a("s_cbranch_scc1 L_pad2")
            a("s_branch L_pad3")
        else:
            a("s_branch L_compute")
        a.label("L_ld")
    else:
        a("s_cbranch_scc1 L_compute")
    if cfg.bench:
        a("v_mov_b32 v31, 100")
        a("ds_write_b32 v30, v31")
        a("s_waitcnt lgkmcnt(0)")
        a("s_barrier")
        a("s_branch L_dump")
    a("s_add_u32 s37, s35, s36")
    a(f"s_sub_u32 s37, s37, {2*PROW + 2*384}")
    a("s_sub_u32 s38, s30, 2")
    a("s_cmp_eq_u32 s29, 0")
    a("s_cselect_b32 s14, 32, -32")
    a("s_cselect_b32 s15, 0, 320")
    a(f"s_mul_i32 s10, s14, {8*PROW//32}")
    a("s_and_b32 s11, s32, 1")
    a("s_lshl_b32 s39, s11, 4")
    a("s_add_u32 s15, s15, s39")
    a("v_lshrrev_b32 v13, 2, v1")
    a("v_add_u32 v13, s15, v13")
    a("v_lshrrev_b32 v14, 3, v1")
    a("v_and_b32 v14, 2, v14")
    a("v_and_b32 v15, 3, v1")
    a("v_xor_b32 v14, v14, v15")
    a("v_lshlrev_b32 v14, 4, v14")
    a("v_add_u32 v14, s37, v14")
    a("v_bfrev_b32 v19, 1")
    a("s_movk_i32 s39, 3277")
    a(f"s_mov_b32 s49, {PROW}")
    a("s_movk_i32 s50, 384")
    a("s_movk_i32 s51, 112")
    for b in range(5):
        a("v_mul_u32_u24 v15, s39, v13")
        a("v_lshrrev_b32 v15, 16, v15")
        a("v_mul_u32_u24 v16, 20, v15")
        a("v_sub_u32 v16, v13, v16")
        a("v_add_u32 v17, s38, v16")
        a("v_cmp_gt_u32 vcc, s51, v17")
        a("v_mad_u32_u24 v18, v15, s49, v14")
        a("v_mad_u32_u24 v18, v16, s50, v18")
        a(f"v_cndmask_b32 v{2+b}, v19, v18, vcc")
        if b < 4: a("v_add_u32 v13, s14, v13")
        a(f"v_add_u32 v{7+b}, s10, v{2+b}")
    a("v_add_u32 v12, s10, v7")
    a("s_lshl_b32 s57, s52, 6")
    a("s_lshl_b32 s56, s15, 6")
    a("s_lshl_b32 s14, s14, 6")
    a("v_lshlrev_b32 v20, 4, v1")
    a("v_cmp_gt_u32 vcc, 32, v1")
    a("v_xor_b32 v22, 32, v20")
    a("s_lshr_b32 s39, s2, 2")
    a("v_cndmask_b32 v21, v22, v20, vcc")
    a("s_and_b32 s39, s39, 28")
    a("s_lshr_b32 s39, 0x21043210, s39")
    a("s_and_b32 s39, s39, 7")
    a("s_mul_i32 s38, s11, 5")
    a("s_add_u32 s39, s39, s38")
    a("s_mul_i32 s40, s39, 3072")
    a("s_lshr_b32 s41, s39, 1")
    a(f"s_mul_i32 s41, s41, {92160 - 6144}")
    a("s_add_u32 s41, s41, s40")
    a("s_movk_i32 s42, 3072")
    a("s_bitcmp1_b32 s39, 0")
    a(f"s_cselect_b32 s42, {92160 - 3072}, s42")
    a("s_mov_b32 s43, 4")
    a("s_cmp_ge_u32 s32, 2")
    a("s_cselect_b32 s95, 1, 0")
    a(f"s_cselect_b32 s44, -1, {5 - cfg.nearly}")
    a(f"s_mul_i32 s54, s95, {WBUF}")
    a(f"s_add_u32 s54, s54, {WBASE}")
    if cfg.jrot:
        a("s_add_u32 s37, s95, s28")
        a("s_cmp_eq_u32 s37, 5")
        a("s_cselect_b32 s37, 0, s37")
        a("s_mul_i32 s37, s37, 3")
    else: a("s_mul_i32 s37, s95, 3")
    a("s_add_u32 s37, s37, s52")
    a("s_mul_i32 s37, s37, 6144")
    a("s_mov_b32 s55, 0")
    a("s_mov_b32 s15, 15")
    a(f"s_mov_b32 s18, {XBYTES}")
    a("s_mov_b32 s19, 0x20000")
    a(f"s_mov_b32 s22, {WBYTES}")
    a("s_mov_b32 s23, s19")
    a("s_waitcnt lgkmcnt(0)")
    if cfg.diag: stamp(a, 1)
    mark("karg")
    a("s_cmp_eq_u32 s95, 1")
    a("s_cbranch_scc0 L_w_early")
    a.label("L_x_loop")
    for blk in range(4):
        a(f"s_bitcmp1_b32 s15, {blk}")
        a(f"s_cbranch_scc0 " + (f"L_x{blk}" if blk < 3 else "L_x_next"))
        for k in range(3 * blk, min(3 * blk + 3, 11)):
            a("s_mov_b32 m0, s56")
            a("s_add_u32 s56, s56, s14")
            a(f"buffer_load_dwordx4 v{2+k}, s[16:19], s57 offen{cfg.xflag} lds")
        if blk < 3: a.label(f"L_x{blk}")
    a("s_cmp_lg_u32 s55, 0")
    a("s_cbranch_scc1 L_x_sig")
    if cfg.diag: stamp(a, 2)
    mark("xi")
    a("s_barrier")
    a("v_mov_b32 v26, 1")
    a("s_waitcnt vmcnt(0)")
    a("ds_write_b32 v30, v26")
    trace(45, 0)
    mark("x0")
    a("s_branch L_w_step" if cfg.early == 2 else "s_branch L_w_it")
    a.label("L_w_early")
    if cfg.early == 2:
        a(f"s_add_u32 m0, s40, {WBASE + WBUF}")
        a("s_add_u32 s50, s37, s41")
        a("s_addk_i32 s50, 18432")
        for k in range(3):
            a(f"buffer_load_dwordx4 v{20+k}, s[20:23], s50 offen offset:{k*1024}{cfg.wflag} lds")
    if cfg.early == 0: a("s_barrier")
    a.label("L_w_it")
    a("s_add_u32 m0, s54, s40")
    a("s_add_u32 s50, s37, s41")
    for k in range(3):
        a(f"buffer_load_dwordx4 v{20+k}, s[20:23], s50 offen offset:{k*1024}{cfg.wflag} lds")
    if cfg.early:
        a("s_cmp_lg_u32 s43, s44")
        a("s_cbranch_scc1 L_w_step")
        a("s_barrier")
        a("s_mov_b32 s44, -1")
    a.label("L_w_step")
    a("s_addk_i32 s40, 3072")
    a("s_add_u32 s41, s41, s42")
    a(f"s_xor_b32 s42, s42, {3072 ^ (92160 - 3072)}")
    a(f"s_cmpk_eq_u32 s40, {WBUF}")
    a("s_cselect_b32 s40, 0, s40")
    a("s_cselect_b32 s41, 0, s41")
    a("s_sub_u32 s43, s43, 1")
    a("s_cbranch_scc0 L_w_it")
    a("s_cmp_lg_u32 s55, 0")
    a("s_cbranch_scc1 L_w_adv")
    a("s_cmp_eq_u32 s95, 1")
    a("s_cbranch_scc1 L_x_w1")
    a("s_mov_b32 s55, s32")
    a("s_mov_b32 s53, s32")
    a(f"s_mul_i32 s50, s32, {WBUF}")
    a("s_add_u32 s54, s54, s50")
    a("v_mov_b32 v31, s32")
    a.label("L_w_adv")
    trace(44, "s55")
    a("v_add_u32 v31, 2, v31")
    a("s_waitcnt vmcnt(0)")
    a("ds_write_b32 v30, v31")
    trace(45, "s55")
    if cfg.amp == "pt" and cfg.pt == "w0":
        a("s_cmp_ge_u32 s55, 2")
        a("s_cbranch_scc1 L_pw")
        mark("w0")
        a.label("L_pw")
    a(f"s_sub_u32 s54, s54, {WBUF}")
    a(f"s_cmp_lt_u32 s54, {WBASE}")
    a(f"s_cselect_b32 s50, {3*WBUF}, 0")
    a("s_add_u32 s54, s54, s50")
    a("s_add_u32 s53, s53, 2")
    a("s_cmp_ge_u32 s53, 5")
    a("s_cselect_b32 s50, 5, 0")
    a("s_sub_u32 s53, s53, s50")
    a("s_lshr_b32 s50, s50, 2")
    a("s_add_u32 s52, s52, s50")
    a("s_cmp_eq_u32 s52, 3")
    a("s_cselect_b32 s52, 0, s52")
    if cfg.jrot:
        a("s_add_u32 s37, s53, s28")
        a("s_cmp_ge_u32 s37, 5")
        a("s_cselect_b32 s50, 5, 0")
        a("s_sub_u32 s37, s37, s50")
        a("s_mul_i32 s37, s37, 3")
    else: a("s_mul_i32 s37, s53, 3")
    a("s_add_u32 s37, s37, s52")
    a("s_mul_i32 s37, s37, 6144")
    a("s_mov_b32 s43, 9")
    a("s_mov_b32 s51, s55")
    a("s_add_u32 s55, s55, 2")
    a("s_cmp_eq_u32 s51, 0")
    a("s_cbranch_scc1 L_w_it")
    a("s_cmp_ge_u32 s55, 15")
    a("s_cbranch_scc1 L_store")
    a("v_and_b32 v23, 3, v1")
    a("v_lshlrev_b32 v23, 8, v23")
    a(f"v_add_u32 v23, {FLAGS + 1024}, v23")
    poll(a, "L_w_poll", 23, 24, "s51", cfg.sleep)
    trace(46, "s55")
    a("s_branch L_w_it")
    if cfg.pad4:
        a.label("L_padl")
        a("s_branch L_compute")
    a.label("L_x_w1")
    C = sum(((thr << 4) | m) << (8 * k) for k, (thr, m) in enumerate(cfg.xb))
    assert len(cfg.xb) <= 8
    a(f"s_mov_b32 s92, {C & 0xffffffff:#x}")
    a(f"s_mov_b32 s93, {C >> 32:#x}")
    a("s_mov_b32 s55, 1")
    if cfg.trace: a("s_mov_b32 s51, 1")
    a.label("L_x_sig")
    a("v_add_u32 v31, 5, v31")
    a("s_waitcnt vmcnt(0)")
    a("ds_write_b32 v30, v31")
    trace(45, "s51")
    if cfg.amp == "pt" and cfg.pt == "w1":
        a("s_cmp_lg_u32 s15, 15")
        a("s_cbranch_scc1 L_px")
        mark("w1")
        a.label("L_px")
    a("s_mul_i32 s50, s14, -11")
    a("s_add_u32 s56, s56, s50")
    a(f"s_add_u32 s56, s56, {XCH}")
    a("s_add_u32 s57, s57, 64")
    a("s_cmp_eq_u32 s57, 192")
    a("s_cselect_b32 s57, 0, s57")
    a.label("L_x_next")
    a("s_and_b32 s15, s92, 15")
    a("s_cbranch_scc0 L_xdone")
    a("s_bfe_u32 s51, s92, 0x40004")
    a("s_lshr_b64 s[92:93], s[92:93], 8")
    a("v_and_b32 v22, 1, v1")
    a(f"v_lshlrev_b32 v22, 8, v22")
    a(f"v_add_u32 v22, {FLAGS}, v22")
    poll(a, "L_x_poll", 22, 23, "s51", cfg.sleep)
    trace(44, "s51")
    a("s_branch L_x_loop")
    if cfg.help:
        a.label("L_help")
        a("v_and_b32 v1, 63, v0")
        a("v_lshrrev_b32 v2, 6, v0")
        a("v_mul_u32_u24 v3, 43, v1")
        a("v_readfirstlane_b32 s32, v2")
        a("v_lshrrev_b32 v3, 9, v3")
        a("v_mul_u32_u24 v4, 12, v3")
        a("v_sub_u32 v4, v1, v4")
        a("v_mul_u32_u24 v3, 92160, v3")
        a("v_lshl_add_u32 v3, v4, 7, v3")
        a("s_and_b32 s33, s2, 1")
        a("s_and_b32 s3, s3, 1")
        a("s_lshl1_add_u32 s33, s3, s33")
        a("s_mulk_i32 s33, 1536")
        a("s_lshr_b32 s34, s32, 1")
        a("s_add_u32 s34, s34, 1")
        a("s_mul_i32 s34, s34, 3")
        a("s_and_b32 s35, s32, 1")
        a("s_lshl1_add_u32 s34, s35, s34")
        a("s_mulk_i32 s34, 6144")
        a("s_add_u32 s34, s34, s33")
        a("s_min_u32 s35, s32, 4")
        a("s_mul_i32 s35, s35, 3")
        a("s_add_u32 s35, s35, 1")
        a("s_mulk_i32 s35, 6144")
        a("s_add_u32 s35, s35, s33")
        a("s_waitcnt lgkmcnt(0)")
        a(f"s_mov_b32 s22, {WBYTES}"); a("s_mov_b32 s23, 0x20000")
        a("buffer_load_dword v5, v3, s[20:23], s34 offen")
        a("buffer_load_dword v6, v3, s[20:23], s35 offen")
        a("s_waitcnt vmcnt(0)")
        a("s_endpgm")
    a.label("L_xdone")
    if cfg.padf:
        a("s_lshl1_add_u32 s39, s34, s11")
        a("s_cmp_eq_u32 s33, 8")
        a("s_cselect_b32 s39, 3, s39")
        for var in range(3):
            a(f"s_cmp_eq_u32 s39, {var}")
            a(f"s_cbranch_scc1 L_padf{var}")
        a("s_branch L_padf3")
    a.label("L_store")
    a.label("L_store2")
    a(f"s_mov_b32 s26, {XBYTES}")
    a("s_mov_b32 s27, 0x20000")
    a("s_movk_i32 s49, 208")
    a("s_movk_i32 s50, 384")
    a("v_lshrrev_b32 v11, 2, v1")
    a("v_and_b32 v12, 3, v1")
    a("v_lshlrev_b32 v12, 4, v12")
    a("v_mad_u32_u24 v5, v11, s50, v12")
    a("v_mad_u32_u24 v2, v11, s49, v12")
    a("v_and_b32 v10, 1, v1")
    a("v_lshlrev_b32 v10, 8, v10")
    a("s_lshl_b32 s39, s95, 9")
    a(f"s_add_u32 s39, s39, {FLAGS + 1024}")
    a("v_add_u32 v10, s39, v10")
    a("s_add_u32 s45, s35, s36")
    a("s_or_b32 s38, s34, s95")
    a("s_cmp_eq_u32 s33, 8")
    a("s_cselect_b32 s38, 1, s38")
    a("s_cselect_b32 s43, 6, 7")
    a("s_xor_b32 s38, s38, 1")
    a("s_andn2_b32 s44, s34, s95")
    a("s_add_u32 s39, s34, 6")
    a("s_mul_i32 s39, s39, s95")
    a("s_add_u32 s39, s39, s44")
    a("s_add_u32 s39, s39, 5")
    a("s_cmp_eq_u32 s38, 1")
    a("s_cselect_b32 s39, 0, s39")
    a("s_cselect_b32 s42, 1, -1")
    def rowsetup():
        a("s_mul_i32 s40, s11, s42")
        a("s_add_u32 s39, s39, s40")
        a(f"s_mul_i32 s47, s39, {PROW}")
        a("s_add_u32 s47, s47, s45")
        a(f"s_mul_i32 s48, s39, {SROW}")
        a("v_add_u32 v12, s48, v2")
        a(f"s_mul_i32 s40, s42, {2*PROW}")
        a(f"s_mul_i32 s41, s42, {2*SROW}")
    rowsetup()
    a("s_add_u32 s51, s11, 16")
    a("s_add_u32 s44, s44, 22")
    a.label("L_st_m")
    poll(a, "L_st_mp", 10, 11, "s51", cfg.sleep)
    a(f"ds_read_b128 {vr(16,4)}, v12 offset:64")
    a("v_add_u32 v12, s41, v12")
    a("s_add_u32 s51, s51, 2")
    a("s_waitcnt lgkmcnt(0)")
    a(f"buffer_store_dwordx4 {vr(16,4)}, v5, s[24:27], s47 offen offset:64{cfg.stflag}")
    a("s_add_u32 s47, s47, s40")
    a("s_cmp_lt_u32 s51, s44")
    a("s_cbranch_scc1 L_st_m")
    if cfg.stprio: a(f"s_setprio {cfg.stprio}")
    a("s_cmp_eq_u32 s95, 1")
    a("s_cselect_b32 s39, s43, s34")
    a("s_cmp_eq_u32 s38, 1")
    a("s_cselect_b32 s39, 5, s39")
    a("s_sub_u32 s42, 0, s42")
    rowsetup()
    a("s_add_u32 s51, s11, 25")
    a("s_and_b32 s38, s38, s11")
    a("s_cbranch_scc0 L_st_go")
    a("v_and_b32 v28, 3, v1")
    a("v_lshlrev_b32 v28, 8, v28")
    a(f"v_add_u32 v28, {FLAGS + 1024}, v28")
    a(f"s_add_u32 s45, s45, {6*PROW}")
    poll(a, "L_st_s1", 28, 11, 24, cfg.sleep2)
    for k in range(2): a(f"ds_read_b128 {vr(16+4*k,4)}, v2 offset:{6*SROW + 128*k}")
    for k in range(2):
        a(f"s_waitcnt lgkmcnt({1-k})")
        a(f"buffer_store_dwordx4 {vr(16+4*k,4)}, v5, s[24:27], s45 offen offset:{128*k}{cfg.stflag}")
    a.label("L_st_go")
    poll(a, "L_st_p1", 10, 11, "s51", cfg.sleep2)
    for k in range(2): a(f"ds_read_b128 {vr(16+4*k,4)}, v12 offset:{128*k}")
    a("v_add_u32 v12, s41, v12")
    a("s_add_u32 s51, s51, 2")
    for k in range(2):
        a(f"s_waitcnt lgkmcnt({1-k})")
        a(f"buffer_store_dwordx4 {vr(16+4*k,4)}, v5, s[24:27], s47 offen offset:{128*k}{cfg.stflag}")
    a("s_add_u32 s47, s47, s40")
    a("s_cmp_lt_u32 s51, 30")
    a("s_cbranch_scc1 L_st_go")
    a.label("L_st_end")
    if cfg.amp in ("all", "pt"): a("s_branch L_ampall")
    if cfg.diag:
        stamp(a, 5)
        a("s_waitcnt vmcnt(0)")
        stamp(a, 6)
        dump_stamps(a, cfg)
    a.label("L_exit")
    a("s_endpgm")
    a.label("L_compute")
    if cfg.cbar == 0:
        a("s_waitcnt lgkmcnt(0)")
        a("s_barrier")
    a("s_sub_u32 s37, s32, 4")
    a("s_and_b32 s38, s37, 1")
    a("s_lshr_b32 s37, s37, 1")
    a("s_add_u32 s39, s34, 6")
    a("s_mul_i32 s49, s37, s39")
    a(f"v_mov_b32 v{V_CP}, v30")
    a(f"v_mov_b32 v{V_PV}, 0")
    a("v_and_b32 v32, 15, v1")
    a("v_lshrrev_b32 v33, 4, v1")
    a("v_and_b32 v34, 1, v33")
    a("v_lshrrev_b32 v35, 1, v33")
    a("v_bfe_u32 v36, v1, 2, 2")
    a("v_and_b32 v37, 3, v1")
    a(f"v_lshlrev_b32 v{V_LF}, 8, v37")
    a(f"v_add_u32 v{V_LF}, {FLAGS}, v{V_LF}")
    a(f"v_or_b32 v16, 512, v{V_LF}")
    a(f"v_xor_b32 v17, 512, v16")
    a("s_lshl_b32 s39, s38, 7")
    a("v_lshlrev_b32 v40, 5, v34")
    a("v_lshl_add_u32 v40, v35, 4, v40")
    a("v_add_u32 v40, s39, v40")
    a("s_lshl_b32 s39, s38, 5")
    a("s_add_u32 s39, s39, 64")
    a("v_lshlrev_b32 v41, 3, v33")
    a("v_add_u32 v41, s39, v41")
    a("v_mul_u32_u24 v38, 384, v32")
    a("v_add_u32 v38, s36, v38")
    a(f"v_add_u32 v{V_SA}, v38, v40")
    a(f"v_add_u32 v{V_SC}, v38, v41")
    a("v_mul_u32_u24 v38, 208, v32")
    a(f"s_mul_i32 s39, s49, {SROW}")
    a("v_add_u32 v38, s39, v38")
    a("s_lshl_b32 s39, s38, 7")
    a(f"v_lshl_add_u32 v{V_GA}, v33, 3, v38")
    a(f"v_add_u32 v{V_GA}, s39, v{V_GA}")
    a(f"v_add_u32 v{V_GB}, v38, v41")
    a(f"s_mul_i32 s47, s49, {PROW}")
    a("s_add_u32 s47, s47, s35")
    a("v_lshl_add_u32 v38, v33, 3, v36")
    a("v_mul_u32_u24 v38, 192, v38")
    a("v_lshl_add_u32 v38, v37, 3, v38")
    a(f"v_add_u32 v38, {WBASE}, v38")
    a("s_add_u32 s39, s38, 2")
    a("v_xor_b32 v39, s39, v34")
    a(f"v_lshl_add_u32 v{V_WA[0]}, v39, 5, v38")
    a("s_lshl_b32 s39, s38, 2")
    a("v_xor_b32 v39, s39, v34")
    a(f"v_lshl_add_u32 v{V_WA[1]}, v39, 5, v38")
    a("v_xor_b32 v39, 1, v39")
    a(f"v_lshl_add_u32 v{V_WA[2]}, v39, 5, v38")
    a("v_lshlrev_b32 v38, 6, v32")
    a("v_lshl_add_u32 v38, v33, 4, v38")
    a(f"s_mul_i32 s39, s49, {XROW}")
    if cfg.jrot:
        a("s_lshl_b32 s50, s28, 6")
        a("s_add_u32 s39, s39, s50")
    a(f"v_add_u32 v{V_XL}, s39, v38")
    if cfg.jrot:
        a(f"s_lshr_b32 s50, {sum(1 << (h + 1) for h in (5, 10, 15))}, s28")
        a("s_movk_i32 s53, -256")
        a("s_bitcmp1_b32 s50, 15")
        a("s_cselect_b32 s54, s53, 64")
    a(f"v_lshrrev_b32 v{V_T}, 3, v{V_XL}")
    a(f"v_and_b32 v{V_T}, 32, v{V_T}")
    a(f"v_xor_b32 v{V_XA[0]}, v{V_XL}, v{V_T}")
    a(f"v_xor_b32 v{V_XA[1]}, 32, v{V_XA[0]}")
    if cfg.mov64:
        for k in range(0, 84, 2): a(f"v_mov_b64 {vr(V_ACC+k,2)}, 0")
    else:
        for k in range(84): a(f"v_mov_b32 v{V_ACC+k}, 0")
    a(f"s_mov_b32 s40, {(1 << 6) | (1 << 11)}")
    a(f"s_mov_b32 s41, {sum(1 << (h + 1) for h in (3, 6, 9, 12))}")
    a(f"s_mov_b32 s44, {(-2*WBUF) & 0xffffffff}")
    a(f"s_mov_b32 s45, {WBUF}")
    a("s_mov_b32 s46, 2")
    if cfg.amp == "stall": a("s_mov_b32 s85, 0")
    if cfg.cbar == 1:
        a("s_waitcnt lgkmcnt(0)")
        a("s_barrier")
    if cfg.diag: stamp(a, 1)
    a(f"s_mov_b32 s26, {XBYTES}")
    a("s_mov_b32 s27, 0x20000")
    if cfg.prio: a(f"s_setprio {cfg.prio}")
    if cfg.amp in ("span", "skew"): srd(a, 80, 12, 256)
    for var in (1, 2, 3):
        a(f"s_cmp_eq_u32 s31, {var}")
        a(f"s_cbranch_scc1 L_pro{var}")
    if cfg.pads: a("s_branch L_pro0")
    fa = Asm()
    for var in range(4):
        if var % 2 == 0: a(".p2align 12")
        emit_variant(a, fa, var, cfg)
    a.lines += fa.lines
    a.label("L_end")
    for _ in range(100): a("s_endpgm")
    out += a.text()
    nv = (V_END + 7) // 8 * 8
    out += f""".section .rodata,"a"
.p2align 6
.amdhsa_kernel {NAME}_kernel
  .amdhsa_next_free_vgpr {nv}
  .amdhsa_next_free_sgpr 96
  .amdhsa_accum_offset {nv}
  .amdhsa_group_segment_fixed_size 0
  .amdhsa_kernarg_size 40
  .amdhsa_user_sgpr_count 2
  .amdhsa_user_sgpr_kernarg_segment_ptr 1
  .amdhsa_system_sgpr_workgroup_id_x 1
{cfg.kd}.end_amdhsa_kernel
"""
    return out

if __name__ == "__main__":
    p = argparse.ArgumentParser()
    p.add_argument("-o", default="standalone__dilated_atrous__vision.s")
    p.add_argument("--diag", action="store_true")
    p.add_argument("--trace", action="store_true")
    p.add_argument("--bar_pos", type=int, default=62)
    p.add_argument("--xbar", type=int, default=40)
    p.add_argument("--lead", type=int, default=5)
    p.add_argument("--safe", type=int, default=8)
    p.add_argument("--prio", type=int, default=1)
    p.add_argument("--align", type=int, default=1)
    p.add_argument("--snake", type=int, default=1)
    p.add_argument("--exper", type=int, default=2)
    p.add_argument("--order", type=int, default=2)
    p.add_argument("--wpf", type=int, default=0)
    p.add_argument("--epf", type=int, default=0)
    p.add_argument("--cpf", type=int, default=1)
    p.add_argument("--sleep", type=int, default=2)
    p.add_argument("--sleep2", type=int, default=0)
    p.add_argument("--stflag", default="sc0 sc1 nt")
    p.add_argument("--wd", type=int, default=1)
    p.add_argument("--amp", default="")
    p.add_argument("--early", type=int, default=2)
    p.add_argument("--nearly", type=int, default=1)
    p.add_argument("--padf", type=int, default=1)
    p.add_argument("--kd", default="")
    p.add_argument("--lastflag", default=None)
    p.add_argument("--jrot", type=int, default=0)
    p.add_argument("--pt", default="")
    p.add_argument("--sg", type=int, default=0)
    p.add_argument("--addd", type=int, default=0)
    p.add_argument("--onlyw", type=int, default=-1)
    p.add_argument("--onlyb", type=int, default=-1)
    p.add_argument("--help2", dest="help", type=int, default=0)
    p.add_argument("--pg", type=int, default=1)
    p.add_argument("--alead", type=int, default=20)
    p.add_argument("--entry_last", type=int, default=0)
    p.add_argument("--pad4", type=int, default=0)
    p.add_argument("--lx", type=int, default=-1)
    p.add_argument("--al8", type=int, default=0)
    p.add_argument("--shift4", type=int, default=0)
    p.add_argument("--rush", type=int, default=30)
    p.add_argument("--fill", type=int, default=0)
    p.add_argument("--pads", type=int, default=1)
    p.add_argument("--nstage", type=int, default=5)
    p.add_argument("--spec", type=int, default=1)
    p.add_argument("--stprio", type=int, default=0)
    p.add_argument("--mov64", type=int, default=1)
    p.add_argument("--xflag", default="")
    p.add_argument("--wflag", default="")
    p.add_argument("--fixd", type=int, default=0)
    p.add_argument("--wbl2", type=int, default=0)
    p.add_argument("--bench", action="store_true")
    p.add_argument("--drop", default="")
    p.add_argument("--cmpd", type=int, default=4)
    p.add_argument("--updstep", type=int, default=1)
    p.add_argument("--xthr", type=int, default=2)
    p.add_argument("--cbar", type=int, default=0)
    p.add_argument("--w2wait", type=int, default=1)
    p.add_argument("--xb", default="3:1,4:2,5:4,6:8,8:3,9:12")
    cfg = p.parse_args()
    cfg.xb = [tuple(int(v) for v in e.split(":")) for e in cfg.xb.split(",")]
    WD = cfg.wd
    cfg.kd = "".join(f"  .amdhsa_{e}\n" for e in cfg.kd.split(",") if e)
    if cfg.lastflag is None: cfg.lastflag = cfg.stflag
    if cfg.lastflag: cfg.lastflag = " " + cfg.lastflag
    if cfg.stflag: cfg.stflag = " " + cfg.stflag
    if cfg.xflag: cfg.xflag = " " + cfg.xflag
    if cfg.wflag: cfg.wflag = " " + cfg.wflag
    open(cfg.o, "w").write(gen(cfg))
```

```python
import sys, argparse

NAME = "standalone__dilated_atrous__vision"
XBYTES = 224 * 224 * 96 * 2
WBYTES = 25 * 96 * 96 * 2
ROWB = 224 * 192
PROW = 2 * ROWB
XCH = 352 * 64
XROW = 20 * 64
WBASE = 3 * XCH
WBUF = 5 * 6144
FLAGS = WBASE + 3 * WBUF
LDS_TOTAL = FLAGS + 2048
SROW = 16 * 208
assert 13 * SROW <= 2 * XCH

class Asm:
    def __init__(self):
        self.lines = []
    def __call__(self, s):
        self.lines.append("    " + s)
    def label(self, l):
        self.lines.append(l + ":")
    def comment(self, s):
        self.lines.append("    ; " + s)
    def text(self):
        return "\n".join(self.lines) + "\n"

def vr(b, n):
    return f"v[{b}:{b+n-1}]"

V_XL = 1
V_XA = (2, 3)
V_WA = (4, 5, 6)
V_SA, V_SC = 7, 8
V_GA, V_GB = 9, 10
V_T = 11
V_XB = (22, 23)
V_CP = 25
V_LF = 26
V_PV = 27
V_F = 28
V_X = 32
V_W = 76
V_ACC = 136
V_EXTRA = V_ACC + 84
V_END = V_EXTRA + 32

TYPES = {
    0: (range(0, 6), range(0, 7), range(0, 6)),
    1: (range(0, 6), range(1, 7), range(0, 7)),
    2: (range(0, 7), range(1, 7), range(1, 7)),
    3: (range(0, 6), range(0, 6), range(0, 6)),
}
OFF = {0: 0, 1: 1, 2: 1, 3: 0}
SPECIAL = {0: 6, 1: 0, 2: 0, 3: None}
LASTHEAD = {
    0: [(0, 0), (0, 1), (6, 1), (0, 2)],
    1: [(0, 0), (1, 0), (1, 1), (0, 2), (1, 2)],
    2: [(0, 0), (1, 0), (1, 1), (2, 0), (1, 2), (2, 1), (2, 2)],
    3: [(0, 0), (0, 1), (1, 0), (0, 2), (1, 1), (1, 2)],
}

def acc(rho, t): return V_ACC + 4 * (rho * 3 + t)
def wreg(i, t): return V_W + 4 * (i * 3 + t)
def xreg(q): return V_X + 4 * q

def chain(rho, t, rev):
    r = list(range(5))
    if rev: r.reverse()
    return [(rho, i, t, rho + i) for i in r]

def steady_order(var, cfg, par=(1, 1, 1)):
    ms = []
    for t in range(3):
        for j, rho in enumerate(TYPES[var][t]): ms += chain(rho, t, cfg.snake and j % 2 == par[t])
    return ms

DIRECT = {0: (5,), 1: (6, 5), 2: (6,), 3: (5,)}

def last_tiles(var):
    order = list(LASTHEAD[var])
    rows = [r for r in range(7) if r not in DIRECT[var]] + list(DIRECT[var])
    for r in rows:
        for t in ((0, 1, 2) if r not in DIRECT[var] else (1, 2, 0)):
            if r in TYPES[var][t] and (r, t) not in order: order.append((r, t))
    return order

def last_order(var, cfg, par=1):
    ms = []
    for j, (r, t) in enumerate(last_tiles(var)): ms += chain(r, t, cfg.snake and j % 2 == par and j >= 4)
    return ms

def uses(ms):
    first, last = {}, {}
    for k, (rho, i, t, q) in enumerate(ms):
        for key in (("w", i, t, 0), ("w", i, t, 1), ("x", q)):
            first.setdefault(key, k); last[key] = k
    return first, last

def read_text(nm):
    if nm[0] == "x":
        q = nm[1]
        return f"ds_read_b128 {vr(xreg(q),4)}, v{V_XA[q & 1]} offset:{q*XROW}"
    _, i, t, h = nm
    return f"ds_read_b64_tr_b16 {vr(wreg(i,t)+2*h,2)}, v{V_WA[t]} offset:{i*6144 + h*768}"

def edf(reads, lo, hi, lead, busy=()):
    placed, pending = {}, list(reads)
    for k in range(lo, hi):
        avail = [r for r in pending if r[1] <= k]
        if not avail: continue
        r = min(avail, key=lambda r: r[2])
        placed[k] = r[0]
        pending.remove(r)
        assert r[2] - k >= lead, (r, k)
    assert not pending, pending
    return placed

def mfma_text(m):
    rho, i, t, q = m
    return f"v_mfma_f32_16x16x32_bf16 {vr(acc(rho,t),4)}, {vr(wreg(i,t),4)}, {vr(xreg(q),4)}, {vr(acc(rho,t),4)}"

class LdsQ:
    def __init__(self, a, safe):
        self.a, self.safe = a, safe
        self.ops = []
        self.done = 0
        self.waits = []
    def issue(self, name, time, text=None):
        self.ops.append((name, time))
        if text: self.a(text)
    def need(self, names, time):
        idx = max(max(j for j, (nm, _) in enumerate(self.ops) if nm == n) for n in names) + 1
        if idx <= self.done: return
        for j, (nm, tm) in enumerate(self.ops):
            if tm <= time - 1 - self.safe: idx = max(idx, j + 1)
        cnt = len(self.ops) - idx
        if cnt > 14:
            idx += cnt - 14; cnt = 14
        self.a(f"s_waitcnt lgkmcnt({cnt})")
        self.waits.append((time, cnt, len(self.ops)))
        self.done = idx

WD = 1
def poll(a, label, vaddr, vtmp, sneed, sleep, wd=True):
    a.label(label)
    if WD and wd:
        a("s_add_u32 s94, s94, 1")
        a("s_bitcmp1_b32 s94, 18")
        a("s_cbranch_scc1 L_exit")
    a(f"ds_read_b32 v{vtmp}, v{vaddr}")
    a("s_waitcnt lgkmcnt(0)")
    a(f"v_cmp_gt_u32 vcc, {sneed}, v{vtmp}")
    if sleep:
        a(f"s_cbranch_vccz {label}_ok")
        a(f"s_sleep {sleep}")
        a(f"s_branch {label}")
        a.label(label + "_ok")
    else:
        a(f"s_cbranch_vccnz {label}")

def isize(l):
    l = l.strip()
    op = l.split()[0]
    if op.startswith(("v_mfma", "ds_", "buffer_", "v_cvt_pk")) or op.endswith("_e64"): return 8
    import re
    for tok in re.split(r"[ ,]+", l)[1:]:
        if re.fullmatch(r"-?\d+|0x[0-9a-f]+", tok) and not op.startswith(("s_waitcnt", "s_nop")):
            v = int(tok, 0)
            if not (-16 <= v <= 64): return 8
    return 4

def align8(lines):
    out = []
    for l in lines:
        op = l.strip().split()[0]
        if op.startswith("v_") and isize(l) == 4:
            l = l.replace(op, op + "_e64", 1)
        out.append(l)
    res, off = [], 0
    for l in out:
        sz = isize(l)
        if sz == 8 and off % 8 == 4:
            res.append("    s_nop 0"); off += 4
        res.append(l); off += sz
    if off % 8 == 4: res.append("    s_nop 0")
    return res

def emit_variant(a, fa, var, cfg):
    bar = cfg.bar_pos if var != 3 else cfg.bar_pos - 3
    best = None
    for par in [(p0, 1, p2) for p0 in (1, 0) for p2 in (1, 0)]:
        ms = steady_order(var, cfg, par)
        n = len(ms)
        first, last = uses(ms)
        reads = [(key, max(last[key], bar, n if (key[0] == "w" and key[2] == 2) else 0), n + first[key]) for key in first]
        placed = edf(reads, bar, n + bar - 16, 0)
        ld = min(n + first[nm] - k for k, nm in placed.items())
        if best is None or ld > best[0]: best = (ld, par, ms, first, last, placed)
    ld, par, ms, first, last, placed = best
    print(f"variant {var}: snake parity {par}, min lead {ld}", file=sys.stderr)
    tail = [(k, placed[k]) for k in sorted(placed) if k < n]
    head = [(k - n, placed[k]) for k in sorted(placed) if k >= n]
    slow = []
    hb, tb = Asm(), Asm()
    q = LdsQ(hb, cfg.safe)
    for k, nm in tail: q.issue(nm, k - n)
    headd, taild = dict(head), dict(tail)
    extra = {}
    def put(k, s): extra.setdefault(k, []).append(s)
    krel = max(k for k, nm in head) + 1
    put(krel - 1, f"v_add_u32 v{V_PV}, 1, v{V_PV}")
    upd = (["s_bitcmp1_b32 s40, s46", f"s_cselect_b32 s42, {XCH}, 0",
            "s_bitcmp1_b32 s50, s46", "s_cselect_b32 s51, s53, 64", "s_add_u32 s42, s42, s51"] if cfg.jrot else
           ["s_bitcmp1_b32 s40, s46", f"s_cselect_b32 s42, {XCH - 4*64}, 64"]) + [
           "s_bitcmp1_b32 s41, s46", "s_cselect_b32 s43, s44, s45",
           "s_cmp_eq_u32 s46, 14", "s_cselect_b32 s49, 1000, s46",
           f"v_add_u32 v{V_XL}, s42, v{V_XL}", f"v_lshrrev_b32 v{V_T}, 3, v{V_XL}", f"v_and_b32 v{V_T}, 32, v{V_T}",
           f"v_xor_b32 v{V_XA[0]}, v{V_XL}, v{V_T}", f"v_xor_b32 v{V_XA[1]}, 32, v{V_XA[0]}"]
    upd += [f"v_add_u32 v{V_WA[t]}, s43, v{V_WA[t]}" for t in range(3)]
    b0 = krel + 2
    for j, u in enumerate(upd): put(b0 + cfg.updstep * j, u)
    kflag = bar - cfg.cmpd - 9
    assert b0 + cfg.updstep * len(upd) <= kflag
    cur = hb
    for k, m in enumerate(ms):
        rho, i, t, qq = m
        q.need([("w", i, t, 0), ("w", i, t, 1), ("x", qq)], k)
        cur(mfma_text(m))
        D = cfg.drop
        for s in extra.get(k, []): cur(s)
        if k == krel: q.issue(("rel",), k, f"ds_write_b32 v{V_CP}, v{V_PV}")
        if k == kflag: q.issue(("flag",), k, f"ds_read_b32 v{V_F}, v{V_LF}")
        if k == bar - cfg.cmpd - 1: q.need([("flag",)], k + 1)
        if k == bar - cfg.cmpd: cur(f"v_cmp_gt_u32 vcc, s49, v{V_F}")
        if k == bar:
            cur = tb; q.a = tb
        drop = lambda nm: ("l" in D and k in taild) or ("w" in D and nm[0] == "w" and k in taild) or ("x" in D and nm[0] == "x")
        if k in headd: q.issue(headd[k], k, read_text(headd[k]) if not drop(headd[k]) else None)
        if k in taild: q.issue(("next",) + taild[k], k, read_text(taild[k]) if not drop(taild[k]) else None)
        if k == n - 9: cur("s_add_u32 s46, s46, 1")
    kinds = ("w", "x") if ((var < 2 and cfg.order == 1) or cfg.order == 3) else ("x", "w")
    ent = [[nm for _, nm in sorted(tail, key=lambda e: first[e[1]]) if nm[0] == kd] for kd in kinds]
    late = ent[1]
    def entry_ok(m):
        done = len(late) - m
        wi = 0
        for k, (rho, i, t, qq) in enumerate(ms):
            while wi < len(q.waits) and q.waits[wi][0] <= k:
                _, cnt, nops = q.waits[wi]; wi += 1
                body_ops = nops - len(tail)
                done = max(done, len(late) - max(0, cnt - body_ops))
            for nm in (("w", i, t, 0), ("w", i, t, 1), ("x", qq)):
                if nm in late and late.index(nm) >= done: return False
        return True
    ment = max(mm for mm in range(min(len(late), 14) + 1) if entry_ok(mm))
    def emit_entry():
        a.label(f"L_pro{var}")
        if cfg.amp == "pt" and cfg.pt == "lpro":
            a("s_memrealtime s[86:87]")
            a("s_waitcnt lgkmcnt(0)")
        poll(a, f"L_p0_{var}", 16 if kinds[0] == "x" else 17, V_F, 1, 0)
        for nm in ent[0]: a(read_text(nm))
        poll(a, f"L_p1_{var}", 16 if kinds[1] == "x" else 17, V_F, 1, 0)
        if cfg.diag: stamp(a, 3)
        if cfg.amp and cfg.amp != "pt":
            a("s_memrealtime s[86:87]")
            a("s_waitcnt lgkmcnt(0)")
        for nm in late: a(read_text(nm))
        a(f"s_waitcnt lgkmcnt({ment})")
        a(f"s_branch L_head{var}")
    def emit_slow(a=a):
        if cfg.amp == "stall":
            a.label(f"L_slow{var}")
            a("s_memrealtime s[76:77]")
            poll(a, f"L_slowb{var}", V_LF, V_F, "s49", 0)
            a("s_memrealtime s[78:79]")
            a("s_waitcnt lgkmcnt(0)")
            a("s_sub_u32 s78, s78, s76")
            if cfg.sg:
                a(f"s_cmp_eq_u32 s46, {cfg.sg}")
                a("s_cselect_b32 s78, s78, 0")
            a("s_add_u32 s85, s85, s78")
        else:
            poll(a, f"L_slow{var}", V_LF, V_F, "s49", 0)
        a("s_cmp_eq_u32 s46, 14")
        a(f"s_cbranch_scc1 L_fin{var}")
        a(f"s_branch L_top{var}")
    if not cfg.entry_last: emit_entry()
    if cfg.al8:
        hb.lines = align8(hb.lines); tb.lines = align8(tb.lines)
    if cfg.align: a(".p2align 6")
    if cfg.pads:
        a.label(f"L_pad{var}")
        a("s_branch L_compute")
        a("s_nop 0")
    a.label(f"L_top{var}")
    a.lines += tb.lines
    a.label(f"L_head{var}")
    a.lines += hb.lines
    a(f"s_cbranch_vccz L_top{var}")
    a("s_min_u32 s49, s49, 15")
    a(f"v_cmp_gt_u32 vcc, s49, v{V_F}")
    a(f"s_cbranch_vccz L_fin{var}")
    emit_slow()
    a = fa
    a(".p2align 12")
    a.label(f"L_padf{var}")
    a("s_branch L_store2")
    a("s_nop 0")
    a.label(f"L_fin{var}")
    a.lines += tb.lines
    if cfg.diag: stamp(a, 4)
    if cfg.cpf: a("s_waitcnt vmcnt(0)")
    rows = TYPES[var]
    down = var == 0
    prow = sorted(set(rows[1]) | set(rows[2]), reverse=down)
    lastrow = prow[-1]
    srow2 = sorted(rows[0], reverse=not down)
    def build(pa, pb):
        out = []
        for j, r in enumerate(rows[0]):
            out += [m + (13, 0) for m in chain(r, 0, cfg.snake and j % 2 == pa)]
        for j, r in enumerate(srow2):
            out += [m + (14, 0) for m in chain(r, 0, cfg.snake and j % 2 == pb)]
        keep = set(range(srow2[-1], srow2[-1] + 5))
        flip = 0
        tiles = []
        for r in prow:
            ts = [t for t in ((1, 2) if flip == 0 else (2, 1)) if r in rows[t]]
            if r == lastrow: ts = [1, 2]
            for j, t in enumerate(ts):
                gs = (14, 13) if j == 0 else (13, 14)
                for g in gs:
                    for m in chain(r, t, (j == 1) != down):
                        out.append(m + (g, 0 if (g == 14 and m[3] in keep) else 1))
                tiles.append((r, t))
            flip = 0 if ts[-1] == 1 else 1
        return out, tiles
    def names(m):
        rho, i, t, qq, g, occ = m
        return [("w", g, i, t, 0), ("w", g, i, t, 1), ("x", g, qq, occ)]
    frag = lambda nm: nm if nm[0] == "x" else nm[:4]
    conv = lambda nm: ("x", 13, nm[1], 0) if nm[0] == "x" else ("w", 13) + nm[1:]
    pre = [(k - n, conv(nm)) for k, nm in tail]
    prenames = set(nm for _, nm in pre)
    slots = [V_X + 4 * j for j in range(26)] + [V_EXTRA + 4 * j for j in range(8)]
    best = None
    for pa in (1, 0):
      for pb in (1, 0):
        ls, ptiles = build(pa, pb)
        lf, ll = {}, {}
        for k, m in enumerate(ls):
            for nm in names(m):
                lf.setdefault(nm, k); ll[nm] = k
        free = {sl: 0 for sl in slots}
        regs = {}
        for nm in prenames:
            sl = xreg(nm[2]) if nm[0] == "x" else wreg(nm[2], nm[3])
            regs[frag(nm)] = sl
            free[sl] = max(free[sl], ll.get(nm, 0))
        rds, early = [], {}
        for nm in sorted(lf, key=lambda v: lf[v]):
            if nm in prenames: continue
            fr = frag(nm)
            if fr not in regs:
                ok = [sl for sl in slots if free[sl] <= lf[nm] - cfg.alead]
                sl = max(ok, key=lambda v: free[v]) if ok else min(slots, key=lambda v: free[v])
                regs[fr] = sl; early[fr] = free[sl]; free[sl] = ll[nm]
            e = early.get(fr, 0)
            if nm[0] == "x" and nm[1] == 14: e = max(e, 6)
            rds.append((nm, e, lf[nm]))
        try: lp = edf(rds, 0, len(ls), 0)
        except AssertionError: continue
        ld2 = min([lf[nm] - k for k, nm in lp.items()] + [lf[nm] - k for k, nm in pre if nm in lf])
        if best is None or ld2 > best[0]: best = (ld2, (pa, pb), ls, lf, lp, regs, ptiles)
    ld2, pars, ls, lf, lplaced, regs, ptiles = best
    print(f"   final segment: parity {pars} min lead {ld2} reads {len(lplaced)}", file=sys.stderr)
    def rd_text(nm):
        if nm[0] == "x":
            _, g, qq, occ = nm
            return f"ds_read_b128 {vr(regs[nm],4)}, v{(V_XA if g == 13 else V_XB)[qq & 1]} offset:{qq*XROW}"
        _, g, i, t, h = nm
        return f"ds_read_b64_tr_b16 {vr(regs[frag(nm)]+2*h,2)}, v{V_WA[t]} offset:{(g-13)*WBUF + i*6144 + h*768}"
    n2 = len(ls)
    q = LdsQ(a, cfg.safe)
    for k, nm in pre: q.issue(nm, k)
    endk = {}
    for k, m in enumerate(ls): endk[(m[0], m[2])] = k
    def cvt2(D, S, tile):
        return [(tile, f"v_cvt_pk_bf16_f32 v{D}, v{S}, v{S+1}"), (tile, f"v_cvt_pk_bf16_f32 v{D+1}, v{S+2}, v{S+3}")]
    seq = [(None, f"v_add_u32 v{V_XL}, {'s54' if cfg.jrot else 64}, v{V_XL}"), (None, f"v_lshrrev_b32 v{V_T}, 3, v{V_XL}"), (None, f"v_and_b32 v{V_T}, 32, v{V_T}"),
           (None, f"v_xor_b32 v{V_XB[0]}, v{V_XL}, v{V_T}"), (None, f"v_xor_b32 v{V_XB[1]}, 32, v{V_XB[0]}")]
    for j, r in enumerate(srow2):
        S = acc(r, 0)
        seq += cvt2(S, S, (r, 0))
        seq += [(None, f"v_mov_b32 v{V_PV}, {16 + j}"), (None, f"ds_write_b64 v{V_GB}, {vr(S,2)} offset:{r*SROW}"),
                (None, f"ds_write_b32 v{V_CP}, v{V_PV}")]
    kfull, seen = 0, set()
    for (r, t) in ptiles:
        S = acc(r, t)
        if r != lastrow:
            seq += cvt2(S, S, (r, t))
            pv = None
            if not (r in rows[1] and r in rows[2]): pv = 24
            elif r in seen:
                pv = 25 + kfull; kfull += 1
            seen.add(r)
            if pv: seq.append((None, f"v_mov_b32 v{V_PV}, {pv}"))
            seq.append((None, f"ds_write_b64 v{V_GA}, {vr(S,2)} offset:{r*SROW + (32 if t == 2 else 0)}"))
            if pv: seq.append((None, f"ds_write_b32 v{V_CP}, v{V_PV}"))
        elif t == 1:
            seq += cvt2(S, S, (r, t))
            seq.append((None, f"s_add_u32 s48, s47, {r*PROW}"))
        else:
            A = acc(r, 1)
            seq += cvt2(A + 2, S, (r, t))
            seq.append(("W2", f"v_permlane16_swap_b32 v{A}, v{A+2}"))
            seq.append((None, f"v_permlane16_swap_b32 v{A+1}, v{A+3}"))
            seq.append((None, f"buffer_store_dwordx4 {vr(A,4)}, v{V_SA}, s[24:27], s48 offen{cfg.lastflag}"))
    assert kfull == 5
    def states(frm):
        c = 0
        for l in a.lines[frm + 1:]:
            l = l.strip()
            if l.endswith(":") or l.startswith(";") or l.startswith("."): continue
            c += int(l.split()[1]) + 1 if l.startswith("s_nop") else 1
        return c
    done_at = {}
    last_valu = [0]
    def missing(dep):
        if dep is None: return 0
        if dep == "W2": return max(0, 2 - states(last_valu[0]))
        if dep not in done_at: return None
        return max(0, 8 - states(done_at[dep]))
    nl = [0]
    def emit_ex(txt, k):
        for key, pat in (("C", "v_cvt"), ("P", "v_permlane"), ("V", "ds_write_b64"), ("F", "ds_write_b32"), ("S", "buffer_store")):
            if key in cfg.drop and txt.startswith(pat): return
        if txt.startswith("ds_"):
            nl[0] += 1; q.issue(("st", nl[0]), k, txt)
        else: a(txt)
        if txt.startswith("v_cvt"): last_valu[0] = len(a.lines) - 1
    for k, m in enumerate(ls):
        rho, i, t, qq, g, occ = m
        q.need(names(m), k)
        a(f"v_mfma_f32_16x16x32_bf16 {vr(acc(rho,t),4)}, {vr(regs[('w',g,i,t)],4)}, {vr(regs[('x',g,qq,occ)],4)}, {vr(acc(rho,t),4)}")
        if endk[(rho, t)] == k: done_at[(rho, t)] = len(a.lines) - 1
        cnt = 0
        if k in lplaced:
            q.issue(lplaced[k], k, rd_text(lplaced[k])); cnt += 1
        lim = cfg.exper if (k >= n2 - cfg.rush or k < 6) else 1
        if k < 6: cnt = 1
        while seq and cnt < lim and k < n2 - 1:
            miss = missing(seq[0][0])
            if miss == 0:
                emit_ex(seq.pop(0)[1], k); cnt += 1
            else:
                if miss is not None and miss > 1 and cnt == 0 and k >= n2 - cfg.fill: a("s_nop 1")
                break
    while seq:
        miss = missing(seq[0][0])
        if miss: a(f"s_nop {miss - 1}")
        emit_ex(seq.pop(0)[1], n2)
    if cfg.diag:
        stamp(a, 5)
        a("s_waitcnt vmcnt(0)")
        stamp(a, 6)
        a("s_branch L_dump")
    elif cfg.amp:
        if var == 0: a.label("L_ampall")
        a("s_waitcnt vmcnt(0)")
        a("s_memrealtime s[88:89]")
        a("s_waitcnt lgkmcnt(0)")
        if cfg.amp in ("span", "skew"):
            a("v_mov_b32 v4, 0")
            a("buffer_load_dwordx2 v[6:7], v4, s[80:83], 0 offen sc0 sc1")
            a("s_waitcnt vmcnt(0)")
            a("v_readfirstlane_b32 s86, v6")
            a("v_readfirstlane_b32 s58, v7")
            a("s_nop 3")
            a("s_not_b32 s58, s58")
        lo, hi = {"pro": (58, 86), "all": (58, 88), "loop": (86, 88), "none": (58, 58), "span": (58, 88), "skew": (58, 86), "stall": (58, 58), "pt": (58, 86)}[cfg.amp]
        a(f"s_sub_u32 s90, s{hi}, s{lo}")
        a("s_mul_i32 s90, s90, 10")
        if cfg.fixd: a(f"s_mov_b32 s90, {cfg.fixd}")
        if cfg.amp == "stall": a("s_mul_i32 s90, s85, 10")
        if cfg.onlyw >= 0:
            a(f"s_cmp_eq_u32 s32, {cfg.onlyw}")
            a("s_cselect_b32 s90, s90, 0")
        if cfg.onlyb >= 0:
            a(f"s_cmp_eq_u32 s2, {cfg.onlyb}")
            a("s_cselect_b32 s90, s90, 0")
        if cfg.addd: a(f"s_cselect_b32 s91, {cfg.addd}, 0"); a("s_add_u32 s90, s90, s91")
        if cfg.wbl2:
            a("buffer_wbl2 sc1")
        a.label(f"L_amp{var}")
        a("s_memrealtime s[76:77]")
        a("s_waitcnt lgkmcnt(0)")
        a("s_sub_u32 s91, s76, s88")
        a("s_cmp_lt_u32 s91, s90")
        a(f"s_cbranch_scc1 L_amp{var}")
        a("s_endpgm")
    else:
        a("s_endpgm")

def stamp(a, idx):
    a(f"s_memtime s[{60+2*idx}:{61+2*idx}]")
    if idx in (3, 5):
        a(f"s_memrealtime s[{86 if idx == 3 else 88}:{87 if idx == 3 else 89}]")
    a("s_waitcnt lgkmcnt(0)")

def dump_stamps(a, cfg):
    a.label("L_dump")
    a("s_memrealtime s[76:77]")
    a("s_getreg_b32 s78, hwreg(HW_REG_HW_ID)")
    a("s_getreg_b32 s79, hwreg(HW_REG_XCC_ID)")
    a("s_waitcnt lgkmcnt(0)")
    a("s_mov_b32 s80, s12")
    a("s_mov_b32 s81, s13")
    a("s_mov_b32 s82, 0x100000")
    a("s_mov_b32 s83, 0x20000")
    a("s_lshl_b32 s84, s2, 3")
    a("s_add_u32 s84, s84, s32")
    a("s_lshl_b32 s84, s84, 6")
    a("v_mov_b32 v4, 0")
    for k, s in enumerate([60, 62, 64, 66, 68, 70, 72, 74, 76, 77, 78, 79, 58, 59, 86, 88]):
        a(f"v_mov_b32 v5, s{s}")
        a(f"buffer_store_dword v5, v4, s[80:83], s84 offen offset:{4*k}")
        a("s_nop 1")
    a("v_and_b32 v1, 63, v0")
    a("v_lshlrev_b32 v4, 2, v1")
    a("v_cmp_gt_u32 vcc, 16, v1")
    a("s_and_saveexec_b64 s[92:93], vcc")
    a("s_lshl_b32 s84, s84, 2")
    a("s_add_u32 s84, s84, 0x40000")
    for k in range(3):
        a(f"buffer_store_dword v{44+k}, v4, s[80:83], s84 offen offset:{64*k}")
    a("s_waitcnt vmcnt(0)")
    a("s_endpgm")

def srd(a, d, p, size):
    a(f"s_mov_b32 s{d}, s{p}")
    a(f"s_and_b32 s{d+1}, s{p+1}, 0xffff")
    a(f"s_mov_b32 s{d+2}, {size}")
    a(f"s_mov_b32 s{d+3}, 0x20000")

def gen(cfg):
    a = Asm()
    hdr = open("standalone__dilated_atrous__vision.s.ref").read().splitlines()
    head = [l for l in hdr[:8] if l.startswith(";") and "@launch" not in l]
    out = "\n".join(head) + "\n"
    out += f"; @launch grid=(256,1,1) block=(512,1,1) lds={LDS_TOTAL}\n"
    out += f""".amdgcn_target "amdgcn-amd-amdhsa--gfx950"
.text
.globl {NAME}_kernel
{".p2align 12" + chr(10) if cfg.pg else ""}.p2align 8
.type {NAME}_kernel,@function
{NAME}_kernel:
"""
    def mark(name):
        if cfg.amp == "pt" and cfg.pt == name:
            a("s_memrealtime s[86:87]")
            a("s_waitcnt lgkmcnt(0)")
    def trace(reg, idx):
        if cfg.trace:
            a("s_memtime s[90:91]")
            a(f"s_mov_b32 m0, {idx}")
            a("s_waitcnt lgkmcnt(0)")
            a(f"v_writelane_b32 v{reg}, s90, m0")
    if cfg.diag:
        a("s_memtime s[60:61]")
        a("s_memrealtime s[58:59]")
        a("s_load_dwordx2 s[12:13], s[0:1], 32")
    if cfg.amp: a("s_memrealtime s[58:59]")
    if cfg.amp == "pt": a("s_memrealtime s[86:87]")
    if cfg.amp in ("span", "skew"): a("s_load_dwordx2 s[12:13], s[0:1], 24")
    a("s_load_dwordx2 s[16:17], s[0:1], 0")
    a("s_load_dwordx2 s[20:21], s[0:1], 8")
    a("s_load_dwordx2 s[24:25], s[0:1], 16")
    if WD: a("s_mov_b32 s94, 0")
    a("s_cmp_ge_u32 s2, 256")
    a("s_cbranch_scc1 L_exit")
    if cfg.lx < 0:
        a("s_and_b32 s28, s2, 1")
        a("s_bfe_u32 s3, s2, 0x20001")
        a("s_lshl_b32 s3, s3, 5")
        a("s_lshr_b32 s33, s2, 3")
        a("s_add_u32 s3, s3, s33")
        a("s_cmp_ge_u32 s3, 126")
        a("s_cbranch_scc1 " + ("L_help" if cfg.help else "L_exit"))
    else:
        a("s_and_b32 s3, s2, 7")
        a(f"s_sub_u32 s3, s3, {cfg.lx + 1}")
        a("s_and_b32 s3, s3, 7")
        a("s_lshl_b32 s3, s3, 5")
        a("s_lshr_b32 s33, s2, 3")
        a("s_add_u32 s3, s3, s33")
        a("s_cmp_ge_u32 s3, 252")
        a("s_cbranch_scc1 L_exit")
        a("s_cmp_ge_u32 s3, 224")
        a("s_cselect_b32 s33, 14, 112")
        a("s_cselect_b32 s34, 224, 0")
        a("s_cselect_b32 s29, 112, 0")
        a("s_sub_u32 s3, s3, s34")
        a("s_cmp_ge_u32 s3, s33")
        a("s_cselect_b32 s28, 1, 0")
        a("s_cselect_b32 s33, s33, 0")
        a("s_sub_u32 s3, s3, s33")
        a("s_add_u32 s3, s3, s29")
    a("v_lshrrev_b32 v2, 6, v0")
    a("v_and_b32 v1, 63, v0")
    a("v_readfirstlane_b32 s32, v2")
    a("v_lshlrev_b32 v30, 2, v0")
    a(f"v_add_u32 v30, {FLAGS}, v30")
    a("v_mov_b32 v31, 0")
    a("ds_write_b32 v30, v31")
    a("s_mul_i32 s33, s3, 4682")
    a("s_lshr_b32 s33, s33, 16")
    a("s_mul_i32 s34, s33, 14")
    a("s_sub_u32 s34, s3, s34")
    a("s_and_b32 s29, s34, 1")
    a("s_lshr_b32 s30, s34, 1")
    a("s_lshl_b32 s30, s30, 4")
    a("s_mul_i32 s31, s33, 25")
    a("s_lshr_b32 s31, s31, 1")
    a("s_and_b32 s34, s33, 1")
    a("s_lshl_b32 s35, s31, 1")
    a("s_add_u32 s35, s35, s28")
    a(f"s_mul_i32 s35, s35, {ROWB}")
    a("s_lshl_b32 s36, s30, 1")
    a("s_add_u32 s36, s36, s29")
    a("s_mul_i32 s36, s36, 192")
    a("s_lshl_b32 s52, s29, 1")
    a("s_sub_u32 s52, 2, s52")
    if cfg.jrot == 1:
        a("s_and_b32 s28, s2, 7")
        a("s_cmp_ge_u32 s28, 5")
        a("s_cselect_b32 s37, 4, 0")
        a("s_sub_u32 s28, s28, s37")
    elif cfg.jrot == 2:
        a("s_mul_i32 s37, s2, 205")
        a("s_lshr_b32 s37, s37, 10")
        a("s_mul_i32 s37, s37, 5")
        a("s_sub_u32 s28, s2, s37")
    a("s_cmp_ge_u32 s32, 4")
    if cfg.cpf:
        a("s_cbranch_scc0 L_ld")
        a("s_bfe_u32 s31, s32, 0x10001")
        a("s_lshl1_add_u32 s31, s34, s31")
        a("s_cmp_eq_u32 s33, 8")
        a("s_cselect_b32 s31, 3, s31")
        a("s_getpc_b64 s[38:39]")
        a.label("L_pc")
        a("s_lshr_b32 s37, s2, 1")
        a("s_and_b32 s37, s37, 0x7c")
        a("s_add_u32 s37, s37, s32")
        a("s_min_u32 s37, s37, (L_end-L_pc)/256")
        a("s_lshl_b32 s37, s37, 8")
        a("s_add_u32 s38, s38, s37")
        a("s_addc_u32 s39, s39, 0")
        a("v_mov_b32 v12, s38")
        a("v_mov_b32 v13, s39")
        a("global_load_dword v14, v[12:13], off")
        a("global_load_dword v15, v[12:13], off offset:128")
        if cfg.pads:
            if cfg.pad4:
                a("s_cmp_eq_u32 s32, 4")
                a("s_cbranch_scc1 L_padl")
            a("s_bitcmp1_b32 s32, 0")
            a("s_cbranch_scc0 L_compute")
            a("s_cmp_eq_u32 s31, 0")
            a("s_cbranch_scc1 L_pad0")
            a("s_cmp_eq_u32 s31, 1")
            a("s_cbranch_scc1 L_pad1")
            a("s_cmp_eq_u32 s31, 2")
            a("s_cbranch_scc1 L_pad2")
            a("s_branch L_pad3")
        else:
            a("s_branch L_compute")
        a.label("L_ld")
    else:
        a("s_cbranch_scc1 L_compute")
    if cfg.bench:
        a("v_mov_b32 v31, 100")
        a("ds_write_b32 v30, v31")
        a("s_waitcnt lgkmcnt(0)")
        a("s_barrier")
        a("s_branch L_dump")
    a("s_add_u32 s37, s35, s36")
    a(f"s_sub_u32 s37, s37, {2*PROW + 2*384}")
    a("s_sub_u32 s38, s30, 2")
    a("s_cmp_eq_u32 s29, 0")
    a("s_cselect_b32 s14, 32, -32")
    a("s_cselect_b32 s15, 0, 320")
    a(f"s_mul_i32 s10, s14, {8*PROW//32}")
    a("s_and_b32 s11, s32, 1")
    a("s_lshl_b32 s39, s11, 4")
    a("s_add_u32 s15, s15, s39")
    a("v_lshrrev_b32 v13, 2, v1")
    a("v_add_u32 v13, s15, v13")
    a("v_lshrrev_b32 v14, 3, v1")
    a("v_and_b32 v14, 2, v14")
    a("v_and_b32 v15, 3, v1")
    a("v_xor_b32 v14, v14, v15")
    a("v_lshlrev_b32 v14, 4, v14")
    a("v_add_u32 v14, s37, v14")
    a("v_bfrev_b32 v19, 1")
    a("s_movk_i32 s39, 3277")
    a(f"s_mov_b32 s49, {PROW}")
    a("s_movk_i32 s50, 384")
    a("s_movk_i32 s51, 112")
    for b in range(5):
        a("v_mul_u32_u24 v15, s39, v13")
        a("v_lshrrev_b32 v15, 16, v15")
        a("v_mul_u32_u24 v16, 20, v15")
        a("v_sub_u32 v16, v13, v16")
        a("v_add_u32 v17, s38, v16")
        a("v_cmp_gt_u32 vcc, s51, v17")
        a("v_mad_u32_u24 v18, v15, s49, v14")
        a("v_mad_u32_u24 v18, v16, s50, v18")
        a(f"v_cndmask_b32 v{2+b}, v19, v18, vcc")
        if b < 4: a("v_add_u32 v13, s14, v13")
        a(f"v_add_u32 v{7+b}, s10, v{2+b}")
    a("v_add_u32 v12, s10, v7")
    a("s_lshl_b32 s57, s52, 6")
    a("s_lshl_b32 s56, s15, 6")
    a("s_lshl_b32 s14, s14, 6")
    a("v_lshlrev_b32 v20, 4, v1")
    a("v_cmp_gt_u32 vcc, 32, v1")
    a("v_xor_b32 v22, 32, v20")
    a("s_lshr_b32 s39, s2, 2")
    a("v_cndmask_b32 v21, v22, v20, vcc")
    a("s_and_b32 s39, s39, 28")
    a("s_lshr_b32 s39, 0x21043210, s39")
    a("s_and_b32 s39, s39, 7")
    a("s_mul_i32 s38, s11, 5")
    a("s_add_u32 s39, s39, s38")
    a("s_mul_i32 s40, s39, 3072")
    a("s_lshr_b32 s41, s39, 1")
    a(f"s_mul_i32 s41, s41, {92160 - 6144}")
    a("s_add_u32 s41, s41, s40")
    a("s_movk_i32 s42, 3072")
    a("s_bitcmp1_b32 s39, 0")
    a(f"s_cselect_b32 s42, {92160 - 3072}, s42")
    a("s_mov_b32 s43, 4")
    a("s_cmp_ge_u32 s32, 2")
    a("s_cselect_b32 s95, 1, 0")
    a(f"s_cselect_b32 s44, -1, {5 - cfg.nearly}")
    a(f"s_mul_i32 s54, s95, {WBUF}")
    a(f"s_add_u32 s54, s54, {WBASE}")
    if cfg.jrot:
        a("s_add_u32 s37, s95, s28")
        a("s_cmp_eq_u32 s37, 5")
        a("s_cselect_b32 s37, 0, s37")
        a("s_mul_i32 s37, s37, 3")
    else: a("s_mul_i32 s37, s95, 3")
    a("s_add_u32 s37, s37, s52")
    a("s_mul_i32 s37, s37, 6144")
    a("s_mov_b32 s55, 0")
    a("s_mov_b32 s15, 15")
    a(f"s_mov_b32 s18, {XBYTES}")
    a("s_mov_b32 s19, 0x20000")
    a(f"s_mov_b32 s22, {WBYTES}")
    a("s_mov_b32 s23, s19")
    a("s_waitcnt lgkmcnt(0)")
    if cfg.diag: stamp(a, 1)
    mark("karg")
    a("s_cmp_eq_u32 s95, 1")
    a("s_cbranch_scc0 L_w_early")
    a.label("L_x_loop")
    for blk in range(4):
        a(f"s_bitcmp1_b32 s15, {blk}")
        a(f"s_cbranch_scc0 " + (f"L_x{blk}" if blk < 3 else "L_x_next"))
        for k in range(3 * blk, min(3 * blk + 3, 11)):
            a("s_mov_b32 m0, s56")
            a("s_add_u32 s56, s56, s14")
            a(f"buffer_load_dwordx4 v{2+k}, s[16:19], s57 offen{cfg.xflag} lds")
        if blk < 3: a.label(f"L_x{blk}")
    a("s_cmp_lg_u32 s55, 0")
    a("s_cbranch_scc1 L_x_sig")
    if cfg.diag: stamp(a, 2)
    mark("xi")
    a("s_barrier")
    a("v_mov_b32 v26, 1")
    a("s_waitcnt vmcnt(0)")
    a("ds_write_b32 v30, v26")
    trace(45, 0)
    mark("x0")
    a("s_branch L_w_step" if cfg.early == 2 else "s_branch L_w_it")
    a.label("L_w_early")
    if cfg.early == 2:
        a(f"s_add_u32 m0, s40, {WBASE + WBUF}")
        a("s_add_u32 s50, s37, s41")
        a("s_addk_i32 s50, 18432")
        for k in range(3):
            a(f"buffer_load_dwordx4 v{20+k}, s[20:23], s50 offen offset:{k*1024}{cfg.wflag} lds")
    if cfg.early == 0: a("s_barrier")
    a.label("L_w_it")
    a("s_add_u32 m0, s54, s40")
    a("s_add_u32 s50, s37, s41")
    for k in range(3):
        a(f"buffer_load_dwordx4 v{20+k}, s[20:23], s50 offen offset:{k*1024}{cfg.wflag} lds")
    if cfg.early:
        a("s_cmp_lg_u32 s43, s44")
        a("s_cbranch_scc1 L_w_step")
        a("s_barrier")
        a("s_mov_b32 s44, -1")
    a.label("L_w_step")
    a("s_addk_i32 s40, 3072")
    a("s_add_u32 s41, s41, s42")
    a(f"s_xor_b32 s42, s42, {3072 ^ (92160 - 3072)}")
    a(f"s_cmpk_eq_u32 s40, {WBUF}")
    a("s_cselect_b32 s40, 0, s40")
    a("s_cselect_b32 s41, 0, s41")
    a("s_sub_u32 s43, s43, 1")
    a("s_cbranch_scc0 L_w_it")
    a("s_cmp_lg_u32 s55, 0")
    a("s_cbranch_scc1 L_w_adv")
    a("s_cmp_eq_u32 s95, 1")
    a("s_cbranch_scc1 L_x_w1")
    a("s_mov_b32 s55, s32")
    a("s_mov_b32 s53, s32")
    a(f"s_mul_i32 s50, s32, {WBUF}")
    a("s_add_u32 s54, s54, s50")
    a("v_mov_b32 v31, s32")
    a.label("L_w_adv")
    trace(44, "s55")
    a("v_add_u32 v31, 2, v31")
    a("s_waitcnt vmcnt(0)")
    a("ds_write_b32 v30, v31")
    trace(45, "s55")
    if cfg.amp == "pt" and cfg.pt == "w0":
        a("s_cmp_ge_u32 s55, 2")
        a("s_cbranch_scc1 L_pw")
        mark("w0")
        a.label("L_pw")
    a(f"s_sub_u32 s54, s54, {WBUF}")
    a(f"s_cmp_lt_u32 s54, {WBASE}")
    a(f"s_cselect_b32 s50, {3*WBUF}, 0")
    a("s_add_u32 s54, s54, s50")
    a("s_add_u32 s53, s53, 2")
    a("s_cmp_ge_u32 s53, 5")
    a("s_cselect_b32 s50, 5, 0")
    a("s_sub_u32 s53, s53, s50")
    a("s_lshr_b32 s50, s50, 2")
    a("s_add_u32 s52, s52, s50")
    a("s_cmp_eq_u32 s52, 3")
    a("s_cselect_b32 s52, 0, s52")
    if cfg.jrot:
        a("s_add_u32 s37, s53, s28")
        a("s_cmp_ge_u32 s37, 5")
        a("s_cselect_b32 s50, 5, 0")
        a("s_sub_u32 s37, s37, s50")
        a("s_mul_i32 s37, s37, 3")
    else: a("s_mul_i32 s37, s53, 3")
    a("s_add_u32 s37, s37, s52")
    a("s_mul_i32 s37, s37, 6144")
    a("s_mov_b32 s43, 9")
    a("s_mov_b32 s51, s55")
    a("s_add_u32 s55, s55, 2")
    a("s_cmp_eq_u32 s51, 0")
    a("s_cbranch_scc1 L_w_it")
    a("s_cmp_ge_u32 s55, 15")
    a("s_cbranch_scc1 L_store")
    a("v_and_b32 v23, 3, v1")
    a("v_mul_u32_u24 v23, 260, v23")
    a(f"v_add_u32 v23, {FLAGS + 1024}, v23")
    poll(a, "L_w_poll", 23, 24, "s51", cfg.sleep)
    trace(46, "s55")
    a("s_branch L_w_it")
    if cfg.pad4:
        a.label("L_padl")
        a("s_branch L_compute")
    a.label("L_x_w1")
    C = sum(((thr << 4) | m) << (8 * k) for k, (thr, m) in enumerate(cfg.xb))
    assert len(cfg.xb) <= 8
    a(f"s_mov_b32 s92, {C & 0xffffffff:#x}")
    a(f"s_mov_b32 s93, {C >> 32:#x}")
    a("s_mov_b32 s55, 1")
    if cfg.trace: a("s_mov_b32 s51, 1")
    a.label("L_x_sig")
    a("v_add_u32 v31, 5, v31")
    a("s_waitcnt vmcnt(0)")
    a("ds_write_b32 v30, v31")
    trace(45, "s51")
    if cfg.amp == "pt" and cfg.pt == "w1":
        a("s_cmp_lg_u32 s15, 15")
        a("s_cbranch_scc1 L_px")
        mark("w1")
        a.label("L_px")
    a("s_mul_i32 s50, s14, -11")
    a("s_add_u32 s56, s56, s50")
    a(f"s_add_u32 s56, s56, {XCH}")
    a("s_add_u32 s57, s57, 64")
    a("s_cmp_eq_u32 s57, 192")
    a("s_cselect_b32 s57, 0, s57")
    a.label("L_x_next")
    a("s_and_b32 s15, s92, 15")
    a("s_cbranch_scc0 L_xdone")
    a("s_bfe_u32 s51, s92, 0x40004")
    a("s_lshr_b64 s[92:93], s[92:93], 8")
    a("v_and_b32 v22, 1, v1")
    a(f"v_mul_u32_u24 v22, 260, v22")
    a(f"v_add_u32 v22, {FLAGS}, v22")
    poll(a, "L_x_poll", 22, 23, "s51", cfg.sleep)
    trace(44, "s51")
    a("s_branch L_x_loop")
    if cfg.help:
        a.label("L_help")
        a("v_and_b32 v1, 63, v0")
        a("v_lshrrev_b32 v2, 6, v0")
        a("v_mul_u32_u24 v3, 43, v1")
        a("v_readfirstlane_b32 s32, v2")
        a("v_lshrrev_b32 v3, 9, v3")
        a("v_mul_u32_u24 v4, 12, v3")
        a("v_sub_u32 v4, v1, v4")
        a("v_mul_u32_u24 v3, 92160, v3")
        a("v_lshl_add_u32 v3, v4, 7, v3")
        a("s_and_b32 s33, s2, 1")
        a("s_and_b32 s3, s3, 1")
        a("s_lshl1_add_u32 s33, s3, s33")
        a("s_mulk_i32 s33, 1536")
        a("s_lshr_b32 s34, s32, 1")
        a("s_add_u32 s34, s34, 1")
        a("s_mul_i32 s34, s34, 3")
        a("s_and_b32 s35, s32, 1")
        a("s_lshl1_add_u32 s34, s35, s34")
        a("s_mulk_i32 s34, 6144")
        a("s_add_u32 s34, s34, s33")
        a("s_min_u32 s35, s32, 4")
        a("s_mul_i32 s35, s35, 3")
        a("s_add_u32 s35, s35, 1")
        a("s_mulk_i32 s35, 6144")
        a("s_add_u32 s35, s35, s33")
        a("s_waitcnt lgkmcnt(0)")
        a(f"s_mov_b32 s22, {WBYTES}"); a("s_mov_b32 s23, 0x20000")
        a("buffer_load_dword v5, v3, s[20:23], s34 offen")
        a("buffer_load_dword v6, v3, s[20:23], s35 offen")
        a("s_waitcnt vmcnt(0)")
        a("s_endpgm")
    a.label("L_xdone")
    if cfg.padf:
        a("s_lshl1_add_u32 s39, s34, s11")
        a("s_cmp_eq_u32 s33, 8")
        a("s_cselect_b32 s39, 3, s39")
        for var in range(3):
            a(f"s_cmp_eq_u32 s39, {var}")
            a(f"s_cbranch_scc1 L_padf{var}")
        a("s_branch L_padf3")
    a.label("L_store")
    a.label("L_store2")
    a(f"s_mov_b32 s26, {XBYTES}")
    a("s_mov_b32 s27, 0x20000")
    a("s_movk_i32 s49, 208")
    a("s_movk_i32 s50, 384")
    a("v_lshrrev_b32 v11, 2, v1")
    a("v_and_b32 v12, 3, v1")
    a("v_lshlrev_b32 v12, 4, v12")
    a("v_mad_u32_u24 v5, v11, s50, v12")
    a("v_mad_u32_u24 v2, v11, s49, v12")
    a("v_and_b32 v10, 1, v1")
    a("v_mul_u32_u24 v10, 260, v10")
    a("s_lshl_b32 s39, s95, 9")
    a(f"s_add_u32 s39, s39, {FLAGS + 1024}")
    a("v_add_u32 v10, s39, v10")
    a("s_add_u32 s45, s35, s36")
    a("s_or_b32 s38, s34, s95")
    a("s_cmp_eq_u32 s33, 8")
    a("s_cselect_b32 s38, 1, s38")
    a("s_cselect_b32 s43, 6, 7")
    a("s_xor_b32 s38, s38, 1")
    a("s_andn2_b32 s44, s34, s95")
    a("s_add_u32 s39, s34, 6")
    a("s_mul_i32 s39, s39, s95")
    a("s_add_u32 s39, s39, s44")
    a("s_add_u32 s39, s39, 5")
    a("s_cmp_eq_u32 s38, 1")
    a("s_cselect_b32 s39, 0, s39")
    a("s_cselect_b32 s42, 1, -1")
    def rowsetup():
        a("s_mul_i32 s40, s11, s42")
        a("s_add_u32 s39, s39, s40")
        a(f"s_mul_i32 s47, s39, {PROW}")
        a("s_add_u32 s47, s47, s45")
        a(f"s_mul_i32 s48, s39, {SROW}")
        a("v_add_u32 v12, s48, v2")
        a(f"s_mul_i32 s40, s42, {2*PROW}")
        a(f"s_mul_i32 s41, s42, {2*SROW}")
    rowsetup()
    a("s_add_u32 s51, s11, 16")
    a("s_add_u32 s44, s44, 22")
    a.label("L_st_m")
    poll(a, "L_st_mp", 10, 11, "s51", cfg.sleep)
    a(f"ds_read_b128 {vr(16,4)}, v12 offset:64")
    a("v_add_u32 v12, s41, v12")
    a("s_add_u32 s51, s51, 2")
    a("s_waitcnt lgkmcnt(0)")
    a(f"buffer_store_dwordx4 {vr(16,4)}, v5, s[24:27], s47 offen offset:64{cfg.stflag}")
    a("s_add_u32 s47, s47, s40")
    a("s_cmp_lt_u32 s51, s44")
    a("s_cbranch_scc1 L_st_m")
    if cfg.stprio: a(f"s_setprio {cfg.stprio}")
    a("s_cmp_eq_u32 s95, 1")
    a("s_cselect_b32 s39, s43, s34")
    a("s_cmp_eq_u32 s38, 1")
    a("s_cselect_b32 s39, 5, s39")
    a("s_sub_u32 s42, 0, s42")
    rowsetup()
    a("s_add_u32 s51, s11, 25")
    a("s_and_b32 s38, s38, s11")
    a("s_cbranch_scc0 L_st_go")
    a("v_and_b32 v28, 3, v1")
    a("v_mul_u32_u24 v28, 260, v28")
    a(f"v_add_u32 v28, {FLAGS + 1024}, v28")
    a(f"s_add_u32 s45, s45, {6*PROW}")
    poll(a, "L_st_s1", 28, 11, 24, cfg.sleep2)
    for k in range(2): a(f"ds_read_b128 {vr(16+4*k,4)}, v2 offset:{6*SROW + 128*k}")
    for k in range(2):
        a(f"s_waitcnt lgkmcnt({1-k})")
        a(f"buffer_store_dwordx4 {vr(16+4*k,4)}, v5, s[24:27], s45 offen offset:{128*k}{cfg.stflag}")
    a.label("L_st_go")
    poll(a, "L_st_p1", 10, 11, "s51", cfg.sleep2)
    for k in range(2): a(f"ds_read_b128 {vr(16+4*k,4)}, v12 offset:{128*k}")
    a("v_add_u32 v12, s41, v12")
    a("s_add_u32 s51, s51, 2")
    for k in range(2):
        a(f"s_waitcnt lgkmcnt({1-k})")
        a(f"buffer_store_dwordx4 {vr(16+4*k,4)}, v5, s[24:27], s47 offen offset:{128*k}{cfg.stflag}")
    a("s_add_u32 s47, s47, s40")
    a("s_cmp_lt_u32 s51, 30")
    a("s_cbranch_scc1 L_st_go")
    a.label("L_st_end")
    if cfg.amp in ("all", "pt"): a("s_branch L_ampall")
    if cfg.diag:
        stamp(a, 5)
        a("s_waitcnt vmcnt(0)")
        stamp(a, 6)
        dump_stamps(a, cfg)
    a.label("L_exit")
    a("s_endpgm")
    a.label("L_compute")
    if cfg.cbar == 0:
        a("s_waitcnt lgkmcnt(0)")
        a("s_barrier")
    a("s_sub_u32 s37, s32, 4")
    a("s_and_b32 s38, s37, 1")
    a("s_lshr_b32 s37, s37, 1")
    a("s_add_u32 s39, s34, 6")
    a("s_mul_i32 s49, s37, s39")
    a(f"v_mov_b32 v{V_CP}, v30")
    a(f"v_mov_b32 v{V_PV}, 0")
    a("v_and_b32 v32, 15, v1")
    a("v_lshrrev_b32 v33, 4, v1")
    a("v_and_b32 v34, 1, v33")
    a("v_lshrrev_b32 v35, 1, v33")
    a("v_bfe_u32 v36, v1, 2, 2")
    a("v_and_b32 v37, 3, v1")
    a(f"v_mul_u32_u24 v{V_LF}, 260, v37")
    a(f"v_add_u32 v{V_LF}, {FLAGS}, v{V_LF}")
    a(f"v_or_b32 v16, 512, v{V_LF}")
    a(f"v_xor_b32 v17, 512, v16")
    a("s_lshl_b32 s39, s38, 7")
    a("v_lshlrev_b32 v40, 5, v34")
    a("v_lshl_add_u32 v40, v35, 4, v40")
    a("v_add_u32 v40, s39, v40")
    a("s_lshl_b32 s39, s38, 5")
    a("s_add_u32 s39, s39, 64")
    a("v_lshlrev_b32 v41, 3, v33")
    a("v_add_u32 v41, s39, v41")
    a("v_mul_u32_u24 v38, 384, v32")
    a("v_add_u32 v38, s36, v38")
    a(f"v_add_u32 v{V_SA}, v38, v40")
    a(f"v_add_u32 v{V_SC}, v38, v41")
    a("v_mul_u32_u24 v38, 208, v32")
    a(f"s_mul_i32 s39, s49, {SROW}")
    a("v_add_u32 v38, s39, v38")
    a("s_lshl_b32 s39, s38, 7")
    a(f"v_lshl_add_u32 v{V_GA}, v33, 3, v38")
    a(f"v_add_u32 v{V_GA}, s39, v{V_GA}")
    a(f"v_add_u32 v{V_GB}, v38, v41")
    a(f"s_mul_i32 s47, s49, {PROW}")
    a("s_add_u32 s47, s47, s35")
    a("v_lshl_add_u32 v38, v33, 3, v36")
    a("v_mul_u32_u24 v38, 192, v38")
    a("v_lshl_add_u32 v38, v37, 3, v38")
    a(f"v_add_u32 v38, {WBASE}, v38")
    a("s_add_u32 s39, s38, 2")
    a("v_xor_b32 v39, s39, v34")
    a(f"v_lshl_add_u32 v{V_WA[0]}, v39, 5, v38")
    a("s_lshl_b32 s39, s38, 2")
    a("v_xor_b32 v39, s39, v34")
    a(f"v_lshl_add_u32 v{V_WA[1]}, v39, 5, v38")
    a("v_xor_b32 v39, 1, v39")
    a(f"v_lshl_add_u32 v{V_WA[2]}, v39, 5, v38")
    a("v_lshlrev_b32 v38, 6, v32")
    a("v_lshl_add_u32 v38, v33, 4, v38")
    a(f"s_mul_i32 s39, s49, {XROW}")
    if cfg.jrot:
        a("s_lshl_b32 s50, s28, 6")
        a("s_add_u32 s39, s39, s50")
    a(f"v_add_u32 v{V_XL}, s39, v38")
    if cfg.jrot:
        a(f"s_lshr_b32 s50, {sum(1 << (h + 1) for h in (5, 10, 15))}, s28")
        a("s_movk_i32 s53, -256")
        a("s_bitcmp1_b32 s50, 15")
        a("s_cselect_b32 s54, s53, 64")
    a(f"v_lshrrev_b32 v{V_T}, 3, v{V_XL}")
    a(f"v_and_b32 v{V_T}, 32, v{V_T}")
    a(f"v_xor_b32 v{V_XA[0]}, v{V_XL}, v{V_T}")
    a(f"v_xor_b32 v{V_XA[1]}, 32, v{V_XA[0]}")
    if cfg.mov64:
        for k in range(0, 84, 2): a(f"v_mov_b64 {vr(V_ACC+k,2)}, 0")
    else:
        for k in range(84): a(f"v_mov_b32 v{V_ACC+k}, 0")
    a(f"s_mov_b32 s40, {(1 << 6) | (1 << 11)}")
    a(f"s_mov_b32 s41, {sum(1 << (h + 1) for h in (3, 6, 9, 12))}")
    a(f"s_mov_b32 s44, {(-2*WBUF) & 0xffffffff}")
    a(f"s_mov_b32 s45, {WBUF}")
    a("s_mov_b32 s46, 2")
    if cfg.amp == "stall": a("s_mov_b32 s85, 0")
    if cfg.cbar == 1:
        a("s_waitcnt lgkmcnt(0)")
        a("s_barrier")
    if cfg.diag: stamp(a, 1)
    a(f"s_mov_b32 s26, {XBYTES}")
    a("s_mov_b32 s27, 0x20000")
    if cfg.prio: a(f"s_setprio {cfg.prio}")
    if cfg.amp in ("span", "skew"): srd(a, 80, 12, 256)
    for var in (1, 2, 3):
        a(f"s_cmp_eq_u32 s31, {var}")
        a(f"s_cbranch_scc1 L_pro{var}")
    if cfg.pads: a("s_branch L_pro0")
    fa = Asm()
    for var in range(4):
        if var % 2 == 0: a(".p2align 12")
        emit_variant(a, fa, var, cfg)
    a.lines += fa.lines
    a.label("L_end")
    for _ in range(100): a("s_endpgm")
    out += a.text()
    nv = (V_END + 7) // 8 * 8
    out += f""".section .rodata,"a"
.p2align 6
.amdhsa_kernel {NAME}_kernel
  .amdhsa_next_free_vgpr {nv}
  .amdhsa_next_free_sgpr 96
  .amdhsa_accum_offset {nv}
  .amdhsa_group_segment_fixed_size 0
  .amdhsa_kernarg_size 40
  .amdhsa_user_sgpr_count 2
  .amdhsa_user_sgpr_kernarg_segment_ptr 1
  .amdhsa_system_sgpr_workgroup_id_x 1
{cfg.kd}.end_amdhsa_kernel
"""
    return out

if __name__ == "__main__":
    p = argparse.ArgumentParser()
    p.add_argument("-o", default="standalone__dilated_atrous__vision.s")
    p.add_argument("--diag", action="store_true")
    p.add_argument("--trace", action="store_true")
    p.add_argument("--bar_pos", type=int, default=62)
    p.add_argument("--xbar", type=int, default=40)
    p.add_argument("--lead", type=int, default=5)
    p.add_argument("--safe", type=int, default=8)
    p.add_argument("--prio", type=int, default=1)
    p.add_argument("--align", type=int, default=1)
    p.add_argument("--snake", type=int, default=1)
    p.add_argument("--exper", type=int, default=2)
    p.add_argument("--order", type=int, default=2)
    p.add_argument("--wpf", type=int, default=0)
    p.add_argument("--epf", type=int, default=0)
    p.add_argument("--cpf", type=int, default=1)
    p.add_argument("--sleep", type=int, default=2)
    p.add_argument("--sleep2", type=int, default=0)
    p.add_argument("--stflag", default="sc0 sc1 nt")
    p.add_argument("--wd", type=int, default=1)
    p.add_argument("--amp", default="")
    p.add_argument("--early", type=int, default=1)
    p.add_argument("--nearly", type=int, default=1)
    p.add_argument("--padf", type=int, default=1)
    p.add_argument("--kd", default="")
    p.add_argument("--lastflag", default=None)
    p.add_argument("--jrot", type=int, default=0)
    p.add_argument("--pt", default="")
    p.add_argument("--sg", type=int, default=0)
    p.add_argument("--addd", type=int, default=0)
    p.add_argument("--onlyw", type=int, default=-1)
    p.add_argument("--onlyb", type=int, default=-1)
    p.add_argument("--help2", dest="help", type=int, default=0)
    p.add_argument("--pg", type=int, default=1)
    p.add_argument("--alead", type=int, default=20)
    p.add_argument("--entry_last", type=int, default=0)
    p.add_argument("--pad4", type=int, default=0)
    p.add_argument("--lx", type=int, default=-1)
    p.add_argument("--al8", type=int, default=0)
    p.add_argument("--shift4", type=int, default=0)
    p.add_argument("--rush", type=int, default=30)
    p.add_argument("--fill", type=int, default=0)
    p.add_argument("--pads", type=int, default=1)
    p.add_argument("--nstage", type=int, default=5)
    p.add_argument("--spec", type=int, default=1)
    p.add_argument("--stprio", type=int, default=0)
    p.add_argument("--mov64", type=int, default=1)
    p.add_argument("--xflag", default="")
    p.add_argument("--wflag", default="")
    p.add_argument("--fixd", type=int, default=0)
    p.add_argument("--wbl2", type=int, default=0)
    p.add_argument("--bench", action="store_true")
    p.add_argument("--drop", default="")
    p.add_argument("--cmpd", type=int, default=4)
    p.add_argument("--updstep", type=int, default=1)
    p.add_argument("--xthr", type=int, default=2)
    p.add_argument("--cbar", type=int, default=0)
    p.add_argument("--w2wait", type=int, default=1)
    p.add_argument("--xb", default="3:1,4:2,5:4,6:8,8:3,9:12")
    cfg = p.parse_args()
    cfg.xb = [tuple(int(v) for v in e.split(":")) for e in cfg.xb.split(",")]
    WD = cfg.wd
    cfg.kd = "".join(f"  .amdhsa_{e}\n" for e in cfg.kd.split(",") if e)
    if cfg.lastflag is None: cfg.lastflag = cfg.stflag
    if cfg.lastflag: cfg.lastflag = " " + cfg.lastflag
    if cfg.stflag: cfg.stflag = " " + cfg.stflag
    if cfg.xflag: cfg.xflag = " " + cfg.xflag
    if cfg.wflag: cfg.wflag = " " + cfg.wflag
    open(cfg.o, "w").write(gen(cfg))
```

```python
import sys, argparse

NAME = "standalone__dilated_atrous__vision"
XBYTES = 224 * 224 * 96 * 2
WBYTES = 25 * 96 * 96 * 2
ROWB = 224 * 192
PROW = 2 * ROWB
XCH = 352 * 64
XROW = 20 * 64
WBASE = 3 * XCH
WBUF = 5 * 6144
FLAGS = WBASE + 3 * WBUF
LDS_TOTAL = FLAGS + 2048
SROW = 16 * 208
assert 13 * SROW <= 2 * XCH

class Asm:
    def __init__(self):
        self.lines = []
    def __call__(self, s):
        self.lines.append("    " + s)
    def label(self, l):
        self.lines.append(l + ":")
    def comment(self, s):
        self.lines.append("    ; " + s)
    def text(self):
        return "\n".join(self.lines) + "\n"

def vr(b, n):
    return f"v[{b}:{b+n-1}]"

V_XL = 1
V_XA = (2, 3)
V_WA = (4, 5, 6)
V_SA, V_SC = 7, 8
V_GA, V_GB = 9, 10
V_T = 11
V_XB = (22, 23)
V_CP = 25
V_LF = 26
V_PV = 27
V_F = 28
V_X = 32
V_W = 76
V_ACC = 136
V_EXTRA = V_ACC + 84
V_END = V_EXTRA + 32

TYPES = {
    0: (range(0, 6), range(0, 7), range(0, 6)),
    1: (range(0, 6), range(1, 7), range(0, 7)),
    2: (range(0, 7), range(1, 7), range(1, 7)),
    3: (range(0, 6), range(0, 6), range(0, 6)),
}
OFF = {0: 0, 1: 1, 2: 1, 3: 0}
SPECIAL = {0: 6, 1: 0, 2: 0, 3: None}
LASTHEAD = {
    0: [(0, 0), (0, 1), (6, 1), (0, 2)],
    1: [(0, 0), (1, 0), (1, 1), (0, 2), (1, 2)],
    2: [(0, 0), (1, 0), (1, 1), (2, 0), (1, 2), (2, 1), (2, 2)],
    3: [(0, 0), (0, 1), (1, 0), (0, 2), (1, 1), (1, 2)],
}

def acc(rho, t): return V_ACC + 4 * (rho * 3 + t)
def wreg(i, t): return V_W + 4 * (i * 3 + t)
def xreg(q): return V_X + 4 * q

def chain(rho, t, rev):
    r = list(range(5))
    if rev: r.reverse()
    return [(rho, i, t, rho + i) for i in r]

def steady_order(var, cfg, par=(1, 1, 1)):
    ms = []
    for t in range(3):
        for j, rho in enumerate(TYPES[var][t]): ms += chain(rho, t, cfg.snake and j % 2 == par[t])
    return ms

DIRECT = {0: (5,), 1: (6, 5), 2: (6,), 3: (5,)}

def last_tiles(var):
    order = list(LASTHEAD[var])
    rows = [r for r in range(7) if r not in DIRECT[var]] + list(DIRECT[var])
    for r in rows:
        for t in ((0, 1, 2) if r not in DIRECT[var] else (1, 2, 0)):
            if r in TYPES[var][t] and (r, t) not in order: order.append((r, t))
    return order

def last_order(var, cfg, par=1):
    ms = []
    for j, (r, t) in enumerate(last_tiles(var)): ms += chain(r, t, cfg.snake and j % 2 == par and j >= 4)
    return ms

def uses(ms):
    first, last = {}, {}
    for k, (rho, i, t, q) in enumerate(ms):
        for key in (("w", i, t, 0), ("w", i, t, 1), ("x", q)):
            first.setdefault(key, k); last[key] = k
    return first, last

def read_text(nm):
    if nm[0] == "x":
        q = nm[1]
        return f"ds_read_b128 {vr(xreg(q),4)}, v{V_XA[q & 1]} offset:{q*XROW}"
    _, i, t, h = nm
    return f"ds_read_b64_tr_b16 {vr(wreg(i,t)+2*h,2)}, v{V_WA[t]} offset:{i*6144 + h*768}"

def edf(reads, lo, hi, lead, busy=()):
    placed, pending = {}, list(reads)
    for k in range(lo, hi):
        avail = [r for r in pending if r[1] <= k]
        if not avail: continue
        r = min(avail, key=lambda r: r[2])
        placed[k] = r[0]
        pending.remove(r)
        assert r[2] - k >= lead, (r, k)
    assert not pending, pending
    return placed

def mfma_text(m):
    rho, i, t, q = m
    return f"v_mfma_f32_16x16x32_bf16 {vr(acc(rho,t),4)}, {vr(wreg(i,t),4)}, {vr(xreg(q),4)}, {vr(acc(rho,t),4)}"

class LdsQ:
    def __init__(self, a, safe):
        self.a, self.safe = a, safe
        self.ops = []
        self.done = 0
        self.waits = []
    def issue(self, name, time, text=None):
        self.ops.append((name, time))
        if text: self.a(text)
    def need(self, names, time):
        idx = max(max(j for j, (nm, _) in enumerate(self.ops) if nm == n) for n in names) + 1
        if idx <= self.done: return
        for j, (nm, tm) in enumerate(self.ops):
            if tm <= time - 1 - self.safe: idx = max(idx, j + 1)
        cnt = len(self.ops) - idx
        if cnt > 14:
            idx += cnt - 14; cnt = 14
        self.a(f"s_waitcnt lgkmcnt({cnt})")
        self.waits.append((time, cnt, len(self.ops)))
        self.done = idx

WD = 1
def poll(a, label, vaddr, vtmp, sneed, sleep, wd=True):
    a.label(label)
    if WD and wd:
        a("s_add_u32 s94, s94, 1")
        a("s_bitcmp1_b32 s94, 18")
        a("s_cbranch_scc1 L_exit")
    a(f"ds_read_b32 v{vtmp}, v{vaddr}")
    a("s_waitcnt lgkmcnt(0)")
    a(f"v_cmp_gt_u32 vcc, {sneed}, v{vtmp}")
    if sleep:
        a(f"s_cbranch_vccz {label}_ok")
        a(f"s_sleep {sleep}")
        a(f"s_branch {label}")
        a.label(label + "_ok")
    else:
        a(f"s_cbranch_vccnz {label}")

def isize(l):
    l = l.strip()
    op = l.split()[0]
    if op.startswith(("v_mfma", "ds_", "buffer_", "v_cvt_pk")) or op.endswith("_e64"): return 8
    import re
    for tok in re.split(r"[ ,]+", l)[1:]:
        if re.fullmatch(r"-?\d+|0x[0-9a-f]+", tok) and not op.startswith(("s_waitcnt", "s_nop")):
            v = int(tok, 0)
            if not (-16 <= v <= 64): return 8
    return 4

def align8(lines):
    out = []
    for l in lines:
        op = l.strip().split()[0]
        if op.startswith("v_") and isize(l) == 4:
            l = l.replace(op, op + "_e64", 1)
        out.append(l)
    res, off = [], 0
    for l in out:
        sz = isize(l)
        if sz == 8 and off % 8 == 4:
            res.append("    s_nop 0"); off += 4
        res.append(l); off += sz
    if off % 8 == 4: res.append("    s_nop 0")
    return res

def emit_variant(a, fa, var, cfg):
    bar = cfg.bar_pos if var != 3 else cfg.bar_pos - 3
    best = None
    for par in [(p0, 1, p2) for p0 in (1, 0) for p2 in (1, 0)]:
        ms = steady_order(var, cfg, par)
        n = len(ms)
        first, last = uses(ms)
        reads = [(key, max(last[key], bar, n if (key[0] == "w" and key[2] == 2) else 0), n + first[key]) for key in first]
        placed = edf(reads, bar, n + bar - 16, 0)
        ld = min(n + first[nm] - k for k, nm in placed.items())
        if best is None or ld > best[0]: best = (ld, par, ms, first, last, placed)
    ld, par, ms, first, last, placed = best
    print(f"variant {var}: snake parity {par}, min lead {ld}", file=sys.stderr)
    tail = [(k, placed[k]) for k in sorted(placed) if k < n]
    head = [(k - n, placed[k]) for k in sorted(placed) if k >= n]
    slow = []
    hb, tb = Asm(), Asm()
    q = LdsQ(hb, cfg.safe)
    for k, nm in tail: q.issue(nm, k - n)
    headd, taild = dict(head), dict(tail)
    extra = {}
    def put(k, s): extra.setdefault(k, []).append(s)
    krel = max(k for k, nm in head) + 1
    put(krel - 1, f"v_add_u32 v{V_PV}, 1, v{V_PV}")
    upd = (["s_bitcmp1_b32 s40, s46", f"s_cselect_b32 s42, {XCH}, 0",
            "s_bitcmp1_b32 s50, s46", "s_cselect_b32 s51, s53, 64", "s_add_u32 s42, s42, s51"] if cfg.jrot else
           ["s_bitcmp1_b32 s40, s46", f"s_cselect_b32 s42, {XCH - 4*64}, 64"]) + [
           "s_bitcmp1_b32 s41, s46", "s_cselect_b32 s43, s44, s45",
           "s_cmp_eq_u32 s46, 14", "s_cselect_b32 s49, 1000, s46",
           f"v_add_u32 v{V_XL}, s42, v{V_XL}", f"v_lshrrev_b32 v{V_T}, 3, v{V_XL}", f"v_and_b32 v{V_T}, 32, v{V_T}",
           f"v_xor_b32 v{V_XA[0]}, v{V_XL}, v{V_T}", f"v_xor_b32 v{V_XA[1]}, 32, v{V_XA[0]}"]
    upd += [f"v_add_u32 v{V_WA[t]}, s43, v{V_WA[t]}" for t in range(3)]
    b0 = krel + 2
    for j, u in enumerate(upd): put(b0 + cfg.updstep * j, u)
    kflag = bar - cfg.cmpd - 9
    assert b0 + cfg.updstep * len(upd) <= kflag
    cur = hb
    for k, m in enumerate(ms):
        rho, i, t, qq = m
        q.need([("w", i, t, 0), ("w", i, t, 1), ("x", qq)], k)
        cur(mfma_text(m))
        D = cfg.drop
        for s in extra.get(k, []): cur(s)
        if k == krel: q.issue(("rel",), k, f"ds_write_b32 v{V_CP}, v{V_PV}")
        if k == kflag: q.issue(("flag",), k, f"ds_read_b32 v{V_F}, v{V_LF}")
        if k == bar - cfg.cmpd - 1: q.need([("flag",)], k + 1)
        if k == bar - cfg.cmpd: cur(f"v_cmp_gt_u32 vcc, s49, v{V_F}")
        if k == bar:
            cur = tb; q.a = tb
        drop = lambda nm: ("l" in D and k in taild) or ("w" in D and nm[0] == "w" and k in taild) or ("x" in D and nm[0] == "x")
        if k in headd: q.issue(headd[k], k, read_text(headd[k]) if not drop(headd[k]) else None)
        if k in taild: q.issue(("next",) + taild[k], k, read_text(taild[k]) if not drop(taild[k]) else None)
        if k == n - 9: cur("s_add_u32 s46, s46, 1")
    kinds = ("w", "x") if ((var < 2 and cfg.order == 1) or cfg.order == 3) else ("x", "w")
    ent = [[nm for _, nm in sorted(tail, key=lambda e: first[e[1]]) if nm[0] == kd] for kd in kinds]
    late = ent[1]
    def entry_ok(m):
        done = len(late) - m
        wi = 0
        for k, (rho, i, t, qq) in enumerate(ms):
            while wi < len(q.waits) and q.waits[wi][0] <= k:
                _, cnt, nops = q.waits[wi]; wi += 1
                body_ops = nops - len(tail)
                done = max(done, len(late) - max(0, cnt - body_ops))
            for nm in (("w", i, t, 0), ("w", i, t, 1), ("x", qq)):
                if nm in late and late.index(nm) >= done: return False
        return True
    ment = max(mm for mm in range(min(len(late), 14) + 1) if entry_ok(mm))
    def emit_entry():
        a.label(f"L_pro{var}")
        if cfg.amp == "pt" and cfg.pt == "lpro":
            a("s_memrealtime s[86:87]")
            a("s_waitcnt lgkmcnt(0)")
        poll(a, f"L_p0_{var}", 16 if kinds[0] == "x" else 17, V_F, 1, 0)
        for nm in ent[0]: a(read_text(nm))
        poll(a, f"L_p1_{var}", 16 if kinds[1] == "x" else 17, V_F, 1, 0)
        if cfg.diag: stamp(a, 3)
        if cfg.amp and cfg.amp != "pt":
            a("s_memrealtime s[86:87]")
            a("s_waitcnt lgkmcnt(0)")
        for nm in late: a(read_text(nm))
        a(f"s_waitcnt lgkmcnt({ment})")
        a(f"s_branch L_head{var}")
    def emit_slow(a=a):
        if cfg.amp == "stall":
            a.label(f"L_slow{var}")
            a("s_memrealtime s[76:77]")
            poll(a, f"L_slowb{var}", V_LF, V_F, "s49", 0)
            a("s_memrealtime s[78:79]")
            a("s_waitcnt lgkmcnt(0)")
            a("s_sub_u32 s78, s78, s76")
            if cfg.sg:
                a(f"s_cmp_eq_u32 s46, {cfg.sg}")
                a("s_cselect_b32 s78, s78, 0")
            a("s_add_u32 s85, s85, s78")
        else:
            poll(a, f"L_slow{var}", V_LF, V_F, "s49", 0)
        a("s_cmp_eq_u32 s46, 14")
        a(f"s_cbranch_scc1 L_fin{var}")
        a(f"s_branch L_top{var}")
    if not cfg.entry_last: emit_entry()
    if cfg.al8:
        hb.lines = align8(hb.lines); tb.lines = align8(tb.lines)
    if cfg.align: a(".p2align 6")
    if cfg.pads:
        a.label(f"L_pad{var}")
        a("s_branch L_compute")
        a("s_nop 0")
    a.label(f"L_top{var}")
    a.lines += tb.lines
    a.label(f"L_head{var}")
    a.lines += hb.lines
    a(f"s_cbranch_vccz L_top{var}")
    a("s_min_u32 s49, s49, 15")
    a(f"v_cmp_gt_u32 vcc, s49, v{V_F}")
    a(f"s_cbranch_vccz L_fin{var}")
    emit_slow()
    a = fa
    a(".p2align 12")
    a.label(f"L_padf{var}")
    a("s_branch L_store2")
    a("s_nop 0")
    a.label(f"L_fin{var}")
    a.lines += tb.lines
    if cfg.diag: stamp(a, 4)
    if cfg.cpf: a("s_waitcnt vmcnt(0)")
    rows = TYPES[var]
    down = var == 0
    prow = sorted(set(rows[1]) | set(rows[2]), reverse=down)
    lastrow = prow[-1]
    srow2 = sorted(rows[0], reverse=not down)
    def build(pa, pb):
        out = []
        for j, r in enumerate(rows[0]):
            out += [m + (13, 0) for m in chain(r, 0, cfg.snake and j % 2 == pa)]
        for j, r in enumerate(srow2):
            out += [m + (14, 0) for m in chain(r, 0, cfg.snake and j % 2 == pb)]
        keep = set(range(srow2[-1], srow2[-1] + 5))
        flip = 0
        tiles = []
        for r in prow:
            ts = [t for t in ((1, 2) if flip == 0 else (2, 1)) if r in rows[t]]
            if r == lastrow: ts = [1, 2]
            for j, t in enumerate(ts):
                gs = (14, 13) if j == 0 else (13, 14)
                for g in gs:
                    for m in chain(r, t, (j == 1) != down):
                        out.append(m + (g, 0 if (g == 14 and m[3] in keep) else 1))
                tiles.append((r, t))
            flip = 0 if ts[-1] == 1 else 1
        return out, tiles
    def names(m):
        rho, i, t, qq, g, occ = m
        return [("w", g, i, t, 0), ("w", g, i, t, 1), ("x", g, qq, occ)]
    frag = lambda nm: nm if nm[0] == "x" else nm[:4]
    conv = lambda nm: ("x", 13, nm[1], 0) if nm[0] == "x" else ("w", 13) + nm[1:]
    pre = [(k - n, conv(nm)) for k, nm in tail]
    prenames = set(nm for _, nm in pre)
    slots = [V_X + 4 * j for j in range(26)] + [V_EXTRA + 4 * j for j in range(8)]
    best = None
    for pa in (1, 0):
      for pb in (1, 0):
        ls, ptiles = build(pa, pb)
        lf, ll = {}, {}
        for k, m in enumerate(ls):
            for nm in names(m):
                lf.setdefault(nm, k); ll[nm] = k
        free = {sl: 0 for sl in slots}
        regs = {}
        for nm in prenames:
            sl = xreg(nm[2]) if nm[0] == "x" else wreg(nm[2], nm[3])
            regs[frag(nm)] = sl
            free[sl] = max(free[sl], ll.get(nm, 0))
        rds, early = [], {}
        for nm in sorted(lf, key=lambda v: lf[v]):
            if nm in prenames: continue
            fr = frag(nm)
            if fr not in regs:
                ok = [sl for sl in slots if free[sl] <= lf[nm] - cfg.alead]
                sl = max(ok, key=lambda v: free[v]) if ok else min(slots, key=lambda v: free[v])
                regs[fr] = sl; early[fr] = free[sl]; free[sl] = ll[nm]
            e = early.get(fr, 0)
            if nm[0] == "x" and nm[1] == 14: e = max(e, 6)
            rds.append((nm, e, lf[nm]))
        try: lp = edf(rds, 0, len(ls), 0)
        except AssertionError: continue
        ld2 = min([lf[nm] - k for k, nm in lp.items()] + [lf[nm] - k for k, nm in pre if nm in lf])
        if best is None or ld2 > best[0]: best = (ld2, (pa, pb), ls, lf, lp, regs, ptiles)
    ld2, pars, ls, lf, lplaced, regs, ptiles = best
    print(f"   final segment: parity {pars} min lead {ld2} reads {len(lplaced)}", file=sys.stderr)
    def rd_text(nm):
        if nm[0] == "x":
            _, g, qq, occ = nm
            return f"ds_read_b128 {vr(regs[nm],4)}, v{(V_XA if g == 13 else V_XB)[qq & 1]} offset:{qq*XROW}"
        _, g, i, t, h = nm
        return f"ds_read_b64_tr_b16 {vr(regs[frag(nm)]+2*h,2)}, v{V_WA[t]} offset:{(g-13)*WBUF + i*6144 + h*768}"
    n2 = len(ls)
    q = LdsQ(a, cfg.safe)
    for k, nm in pre: q.issue(nm, k)
    endk = {}
    for k, m in enumerate(ls): endk[(m[0], m[2])] = k
    def cvt2(D, S, tile):
        return [(tile, f"v_cvt_pk_bf16_f32 v{D}, v{S}, v{S+1}"), (tile, f"v_cvt_pk_bf16_f32 v{D+1}, v{S+2}, v{S+3}")]
    seq = [(None, f"v_add_u32 v{V_XL}, {'s54' if cfg.jrot else 64}, v{V_XL}"), (None, f"v_lshrrev_b32 v{V_T}, 3, v{V_XL}"), (None, f"v_and_b32 v{V_T}, 32, v{V_T}"),
           (None, f"v_xor_b32 v{V_XB[0]}, v{V_XL}, v{V_T}"), (None, f"v_xor_b32 v{V_XB[1]}, 32, v{V_XB[0]}")]
    for j, r in enumerate(srow2):
        S = acc(r, 0)
        seq += cvt2(S, S, (r, 0))
        seq += [(None, f"v_mov_b32 v{V_PV}, {16 + j}"), (None, f"ds_write_b64 v{V_GB}, {vr(S,2)} offset:{r*SROW}"),
                (None, f"ds_write_b32 v{V_CP}, v{V_PV}")]
    kfull, seen = 0, set()
    for (r, t) in ptiles:
        S = acc(r, t)
        if r != lastrow:
            seq += cvt2(S, S, (r, t))
            pv = None
            if not (r in rows[1] and r in rows[2]): pv = 24
            elif r in seen:
                pv = 25 + kfull; kfull += 1
            seen.add(r)
            if pv: seq.append((None, f"v_mov_b32 v{V_PV}, {pv}"))
            seq.append((None, f"ds_write_b64 v{V_GA}, {vr(S,2)} offset:{r*SROW + (32 if t == 2 else 0)}"))
            if pv: seq.append((None, f"ds_write_b32 v{V_CP}, v{V_PV}"))
        elif t == 1:
            seq += cvt2(S, S, (r, t))
            seq.append((None, f"s_add_u32 s48, s47, {r*PROW}"))
        else:
            A = acc(r, 1)
            seq += cvt2(A + 2, S, (r, t))
            seq.append(("W2", f"v_permlane16_swap_b32 v{A}, v{A+2}"))
            seq.append((None, f"v_permlane16_swap_b32 v{A+1}, v{A+3}"))
            seq.append((None, f"buffer_store_dwordx4 {vr(A,4)}, v{V_SA}, s[24:27], s48 offen{cfg.lastflag}"))
    assert kfull == 5
    def states(frm):
        c = 0
        for l in a.lines[frm + 1:]:
            l = l.strip()
            if l.endswith(":") or l.startswith(";") or l.startswith("."): continue
            c += int(l.split()[1]) + 1 if l.startswith("s_nop") else 1
        return c
    done_at = {}
    last_valu = [0]
    def missing(dep):
        if dep is None: return 0
        if dep == "W2": return max(0, 2 - states(last_valu[0]))
        if dep not in done_at: return None
        return max(0, 8 - states(done_at[dep]))
    nl = [0]
    def emit_ex(txt, k):
        for key, pat in (("C", "v_cvt"), ("P", "v_permlane"), ("V", "ds_write_b64"), ("F", "ds_write_b32"), ("S", "buffer_store")):
            if key in cfg.drop and txt.startswith(pat): return
        if txt.startswith("ds_"):
            nl[0] += 1; q.issue(("st", nl[0]), k, txt)
        else: a(txt)
        if txt.startswith("v_cvt"): last_valu[0] = len(a.lines) - 1
    for k, m in enumerate(ls):
        rho, i, t, qq, g, occ = m
        q.need(names(m), k)
        a(f"v_mfma_f32_16x16x32_bf16 {vr(acc(rho,t),4)}, {vr(regs[('w',g,i,t)],4)}, {vr(regs[('x',g,qq,occ)],4)}, {vr(acc(rho,t),4)}")
        if endk[(rho, t)] == k: done_at[(rho, t)] = len(a.lines) - 1
        cnt = 0
        if k in lplaced:
            q.issue(lplaced[k], k, rd_text(lplaced[k])); cnt += 1
        lim = cfg.exper if (k >= n2 - cfg.rush or k < 6) else 1
        if k < 6: cnt = 1
        while seq and cnt < lim and k < n2 - 1:
            miss = missing(seq[0][0])
            if miss == 0:
                emit_ex(seq.pop(0)[1], k); cnt += 1
            else:
                if miss is not None and miss > 1 and cnt == 0 and k >= n2 - cfg.fill: a("s_nop 1")
                break
    while seq:
        miss = missing(seq[0][0])
        if miss: a(f"s_nop {miss - 1}")
        emit_ex(seq.pop(0)[1], n2)
    if cfg.diag:
        stamp(a, 5)
        a("s_waitcnt vmcnt(0)")
        stamp(a, 6)
        a("s_branch L_dump")
    elif cfg.amp:
        if var == 0: a.label("L_ampall")
        a("s_waitcnt vmcnt(0)")
        a("s_memrealtime s[88:89]")
        a("s_waitcnt lgkmcnt(0)")
        if cfg.amp in ("span", "skew"):
            a("v_mov_b32 v4, 0")
            a("buffer_load_dwordx2 v[6:7], v4, s[80:83], 0 offen sc0 sc1")
            a("s_waitcnt vmcnt(0)")
            a("v_readfirstlane_b32 s86, v6")
            a("v_readfirstlane_b32 s58, v7")
            a("s_nop 3")
            a("s_not_b32 s58, s58")
        lo, hi = {"pro": (58, 86), "all": (58, 88), "loop": (86, 88), "none": (58, 58), "span": (58, 88), "skew": (58, 86), "stall": (58, 58), "pt": (58, 86)}[cfg.amp]
        a(f"s_sub_u32 s90, s{hi}, s{lo}")
        a("s_mul_i32 s90, s90, 10")
        if cfg.fixd: a(f"s_mov_b32 s90, {cfg.fixd}")
        if cfg.amp == "stall": a("s_mul_i32 s90, s85, 10")
        if cfg.onlyw >= 0:
            a(f"s_cmp_eq_u32 s32, {cfg.onlyw}")
            a("s_cselect_b32 s90, s90, 0")
        if cfg.onlyb >= 0:
            a(f"s_cmp_eq_u32 s2, {cfg.onlyb}")
            a("s_cselect_b32 s90, s90, 0")
        if cfg.addd: a(f"s_cselect_b32 s91, {cfg.addd}, 0"); a("s_add_u32 s90, s90, s91")
        if cfg.wbl2:
            a("buffer_wbl2 sc1")
        a.label(f"L_amp{var}")
        a("s_memrealtime s[76:77]")
        a("s_waitcnt lgkmcnt(0)")
        a("s_sub_u32 s91, s76, s88")
        a("s_cmp_lt_u32 s91, s90")
        a(f"s_cbranch_scc1 L_amp{var}")
        a("s_endpgm")
    else:
        a("s_endpgm")

def stamp(a, idx):
    a(f"s_memtime s[{60+2*idx}:{61+2*idx}]")
    if idx in (3, 5):
        a(f"s_memrealtime s[{86 if idx == 3 else 88}:{87 if idx == 3 else 89}]")
    a("s_waitcnt lgkmcnt(0)")

def dump_stamps(a, cfg):
    a.label("L_dump")
    a("s_memrealtime s[76:77]")
    a("s_getreg_b32 s78, hwreg(HW_REG_HW_ID)")
    a("s_getreg_b32 s79, hwreg(HW_REG_XCC_ID)")
    a("s_waitcnt lgkmcnt(0)")
    a("s_mov_b32 s80, s12")
    a("s_mov_b32 s81, s13")
    a("s_mov_b32 s82, 0x100000")
    a("s_mov_b32 s83, 0x20000")
    a("s_lshl_b32 s84, s2, 3")
    a("s_add_u32 s84, s84, s32")
    a("s_lshl_b32 s84, s84, 6")
    a("v_mov_b32 v4, 0")
    for k, s in enumerate([60, 62, 64, 66, 68, 70, 72, 74, 76, 77, 78, 79, 58, 59, 86, 88]):
        a(f"v_mov_b32 v5, s{s}")
        a(f"buffer_store_dword v5, v4, s[80:83], s84 offen offset:{4*k}")
        a("s_nop 1")
    a("v_and_b32 v1, 63, v0")
    a("v_lshlrev_b32 v4, 2, v1")
    a("v_cmp_gt_u32 vcc, 16, v1")
    a("s_and_saveexec_b64 s[92:93], vcc")
    a("s_lshl_b32 s84, s84, 2")
    a("s_add_u32 s84, s84, 0x40000")
    for k in range(3):
        a(f"buffer_store_dword v{44+k}, v4, s[80:83], s84 offen offset:{64*k}")
    a("s_waitcnt vmcnt(0)")
    a("s_endpgm")

def srd(a, d, p, size):
    a(f"s_mov_b32 s{d}, s{p}")
    a(f"s_and_b32 s{d+1}, s{p+1}, 0xffff")
    a(f"s_mov_b32 s{d+2}, {size}")
    a(f"s_mov_b32 s{d+3}, 0x20000")

def gen(cfg):
    a = Asm()
    hdr = open("standalone__dilated_atrous__vision.s.ref").read().splitlines()
    head = [l for l in hdr[:8] if l.startswith(";") and "@launch" not in l]
    out = "\n".join(head) + "\n"
    out += f"; @launch grid=(256,1,1) block=(512,1,1) lds={LDS_TOTAL}\n"
    out += f""".amdgcn_target "amdgcn-amd-amdhsa--gfx950"
.text
.globl {NAME}_kernel
{".p2align 12" + chr(10) if cfg.pg else ""}.p2align 8
.type {NAME}_kernel,@function
{NAME}_kernel:
"""
    def mark(name):
        if cfg.amp == "pt" and cfg.pt == name:
            a("s_memrealtime s[86:87]")
            a("s_waitcnt lgkmcnt(0)")
    def trace(reg, idx):
        if cfg.trace:
            a("s_memtime s[90:91]")
            a(f"s_mov_b32 m0, {idx}")
            a("s_waitcnt lgkmcnt(0)")
            a(f"v_writelane_b32 v{reg}, s90, m0")
    if cfg.diag:
        a("s_memtime s[60:61]")
        a("s_memrealtime s[58:59]")
        a("s_load_dwordx2 s[12:13], s[0:1], 32")
    if cfg.amp: a("s_memrealtime s[58:59]")
    if cfg.amp == "pt": a("s_memrealtime s[86:87]")
    if cfg.amp in ("span", "skew"): a("s_load_dwordx2 s[12:13], s[0:1], 24")
    a("s_load_dwordx2 s[16:17], s[0:1], 0")
    a("s_load_dwordx2 s[20:21], s[0:1], 8")
    a("s_load_dwordx2 s[24:25], s[0:1], 16")
    if WD: a("s_mov_b32 s94, 0")
    a("s_cmp_ge_u32 s2, 256")
    a("s_cbranch_scc1 L_exit")
    if cfg.lx < 0:
        a("s_and_b32 s28, s2, 1")
        a("s_bfe_u32 s3, s2, 0x20001")
        a("s_lshl_b32 s3, s3, 5")
        a("s_lshr_b32 s33, s2, 3")
        a("s_add_u32 s3, s3, s33")
        a("s_cmp_ge_u32 s3, 126")
        a("s_cbranch_scc1 " + ("L_help" if cfg.help else "L_exit"))
    else:
        a("s_and_b32 s3, s2, 7")
        a(f"s_sub_u32 s3, s3, {cfg.lx + 1}")
        a("s_and_b32 s3, s3, 7")
        a("s_lshl_b32 s3, s3, 5")
        a("s_lshr_b32 s33, s2, 3")
        a("s_add_u32 s3, s3, s33")
        a("s_cmp_ge_u32 s3, 252")
        a("s_cbranch_scc1 L_exit")
        a("s_cmp_ge_u32 s3, 224")
        a("s_cselect_b32 s33, 14, 112")
        a("s_cselect_b32 s34, 224, 0")
        a("s_cselect_b32 s29, 112, 0")
        a("s_sub_u32 s3, s3, s34")
        a("s_cmp_ge_u32 s3, s33")
        a("s_cselect_b32 s28, 1, 0")
        a("s_cselect_b32 s33, s33, 0")
        a("s_sub_u32 s3, s3, s33")
        a("s_add_u32 s3, s3, s29")
    a("v_lshrrev_b32 v2, 6, v0")
    a("v_and_b32 v1, 63, v0")
    a("v_readfirstlane_b32 s32, v2")
    a("v_lshlrev_b32 v30, 2, v0")
    a(f"v_add_u32 v30, {FLAGS}, v30")
    a("v_mov_b32 v31, 0")
    a("ds_write_b32 v30, v31")
    a("s_mul_i32 s33, s3, 4682")
    a("s_lshr_b32 s33, s33, 16")
    a("s_mul_i32 s34, s33, 14")
    a("s_sub_u32 s34, s3, s34")
    a("s_and_b32 s29, s34, 1")
    a("s_lshr_b32 s30, s34, 1")
    a("s_lshl_b32 s30, s30, 4")
    a("s_mul_i32 s31, s33, 25")
    a("s_lshr_b32 s31, s31, 1")
    a("s_and_b32 s34, s33, 1")
    a("s_lshl_b32 s35, s31, 1")
    a("s_add_u32 s35, s35, s28")
    a(f"s_mul_i32 s35, s35, {ROWB}")
    a("s_lshl_b32 s36, s30, 1")
    a("s_add_u32 s36, s36, s29")
    a("s_mul_i32 s36, s36, 192")
    a("s_lshl_b32 s52, s29, 1")
    a("s_sub_u32 s52, 2, s52")
    if cfg.jrot == 1:
        a("s_and_b32 s28, s2, 7")
        a("s_cmp_ge_u32 s28, 5")
        a("s_cselect_b32 s37, 4, 0")
        a("s_sub_u32 s28, s28, s37")
    elif cfg.jrot == 2:
        a("s_mul_i32 s37, s2, 205")
        a("s_lshr_b32 s37, s37, 10")
        a("s_mul_i32 s37, s37, 5")
        a("s_sub_u32 s28, s2, s37")
    a("s_cmp_ge_u32 s32, 4")
    if cfg.cpf:
        a("s_cbranch_scc0 L_ld")
        a("s_bfe_u32 s31, s32, 0x10001")
        a("s_lshl1_add_u32 s31, s34, s31")
        a("s_cmp_eq_u32 s33, 8")
        a("s_cselect_b32 s31, 3, s31")
        a("s_getpc_b64 s[38:39]")
        a.label("L_pc")
        a("s_lshr_b32 s37, s2, 1")
        a("s_and_b32 s37, s37, 0x7c")
        a("s_add_u32 s37, s37, s32")
        a("s_min_u32 s37, s37, (L_end-L_pc)/256")
        a("s_lshl_b32 s37, s37, 8")
        a("s_add_u32 s38, s38, s37")
        a("s_addc_u32 s39, s39, 0")
        a("v_mov_b32 v12, s38")
        a("v_mov_b32 v13, s39")
        a("global_load_dword v14, v[12:13], off")
        a("global_load_dword v15, v[12:13], off offset:128")
        if cfg.pads:
            if cfg.pad4:
                a("s_cmp_eq_u32 s32, 4")
                a("s_cbranch_scc1 L_padl")
            a("s_bitcmp1_b32 s32, 0")
            a("s_cbranch_scc0 L_compute")
            a("s_cmp_eq_u32 s31, 0")
            a("s_cbranch_scc1 L_pad0")
            a("s_cmp_eq_u32 s31, 1")
            a("s_cbranch_scc1 L_pad1")
            a("s_cmp_eq_u32 s31, 2")
            a("s_cbranch_scc1 L_pad2")
            a("s_branch L_pad3")
        else:
            a("s_branch L_compute")
        a.label("L_ld")
    else:
        a("s_cbranch_scc1 L_compute")
    if cfg.bench:
        a("v_mov_b32 v31, 100")
        a("ds_write_b32 v30, v31")
        a("s_waitcnt lgkmcnt(0)")
        a("s_barrier")
        a("s_branch L_dump")
    a("s_add_u32 s37, s35, s36")
    a(f"s_sub_u32 s37, s37, {2*PROW + 2*384}")
    a("s_sub_u32 s38, s30, 2")
    a("s_cmp_eq_u32 s29, 0")
    a("s_cselect_b32 s14, 32, -32")
    a("s_cselect_b32 s15, 0, 320")
    a(f"s_mul_i32 s10, s14, {8*PROW//32}")
    a("s_and_b32 s11, s32, 1")
    a("s_lshl_b32 s39, s11, 4")
    a("s_add_u32 s15, s15, s39")
    a("v_lshrrev_b32 v13, 2, v1")
    a("v_add_u32 v13, s15, v13")
    a("v_lshrrev_b32 v14, 3, v1")
    a("v_and_b32 v14, 2, v14")
    a("v_and_b32 v15, 3, v1")
    a("v_xor_b32 v14, v14, v15")
    a("v_lshlrev_b32 v14, 4, v14")
    a("v_add_u32 v14, s37, v14")
    a("v_bfrev_b32 v19, 1")
    a("s_movk_i32 s39, 3277")
    a(f"s_mov_b32 s49, {PROW}")
    a("s_movk_i32 s50, 384")
    a("s_movk_i32 s51, 112")
    for b in range(5):
        a("v_mul_u32_u24 v15, s39, v13")
        a("v_lshrrev_b32 v15, 16, v15")
        a("v_mul_u32_u24 v16, 20, v15")
        a("v_sub_u32 v16, v13, v16")
        a("v_add_u32 v17, s38, v16")
        a("v_cmp_gt_u32 vcc, s51, v17")
        a("v_mad_u32_u24 v18, v15, s49, v14")
        a("v_mad_u32_u24 v18, v16, s50, v18")
        a(f"v_cndmask_b32 v{2+b}, v19, v18, vcc")
        if b < 4: a("v_add_u32 v13, s14, v13")
        a(f"v_add_u32 v{7+b}, s10, v{2+b}")
    a("v_add_u32 v12, s10, v7")
    a("s_lshl_b32 s57, s52, 6")
    a("s_lshl_b32 s56, s15, 6")
    a("s_lshl_b32 s14, s14, 6")
    a("v_lshlrev_b32 v20, 4, v1")
    a("v_cmp_gt_u32 vcc, 32, v1")
    a("v_xor_b32 v22, 32, v20")
    a("s_lshr_b32 s39, s2, 2")
    a("v_cndmask_b32 v21, v22, v20, vcc")
    a("s_and_b32 s39, s39, 28")
    a("s_lshr_b32 s39, 0x21043210, s39")
    a("s_and_b32 s39, s39, 7")
    a("s_mul_i32 s38, s11, 5")
    a("s_add_u32 s39, s39, s38")
    a("s_mul_i32 s40, s39, 3072")
    a("s_lshr_b32 s41, s39, 1")
    a(f"s_mul_i32 s41, s41, {92160 - 6144}")
    a("s_add_u32 s41, s41, s40")
    a("s_movk_i32 s42, 3072")
    a("s_bitcmp1_b32 s39, 0")
    a(f"s_cselect_b32 s42, {92160 - 3072}, s42")
    a("s_mov_b32 s43, 4")
    a("s_cmp_ge_u32 s32, 2")
    a("s_cselect_b32 s95, 1, 0")
    a(f"s_cselect_b32 s44, -1, {5 - cfg.nearly}")
    a(f"s_mul_i32 s54, s95, {WBUF}")
    a(f"s_add_u32 s54, s54, {WBASE}")
    if cfg.jrot:
        a("s_add_u32 s37, s95, s28")
        a("s_cmp_eq_u32 s37, 5")
        a("s_cselect_b32 s37, 0, s37")
        a("s_mul_i32 s37, s37, 3")
    else: a("s_mul_i32 s37, s95, 3")
    a("s_add_u32 s37, s37, s52")
    a("s_mul_i32 s37, s37, 6144")
    a("s_mov_b32 s55, 0")
    a("s_mov_b32 s15, 15")
    a(f"s_mov_b32 s18, {XBYTES}")
    a("s_mov_b32 s19, 0x20000")
    a(f"s_mov_b32 s22, {WBYTES}")
    a("s_mov_b32 s23, s19")
    a("s_waitcnt lgkmcnt(0)")
    if cfg.diag: stamp(a, 1)
    mark("karg")
    a("s_cmp_eq_u32 s95, 1")
    a("s_cbranch_scc0 L_w_early")
    a.label("L_x_loop")
    for blk in range(4):
        a(f"s_bitcmp1_b32 s15, {blk}")
        a(f"s_cbranch_scc0 " + (f"L_x{blk}" if blk < 3 else "L_x_next"))
        for k in range(3 * blk, min(3 * blk + 3, 11)):
            a("s_mov_b32 m0, s56")
            a("s_add_u32 s56, s56, s14")
            a(f"buffer_load_dwordx4 v{2+k}, s[16:19], s57 offen{cfg.xflag} lds")
        if blk < 3: a.label(f"L_x{blk}")
    a("s_cmp_lg_u32 s55, 0")
    a("s_cbranch_scc1 L_x_sig")
    if cfg.diag: stamp(a, 2)
    mark("xi")
    a("s_barrier")
    a("v_mov_b32 v26, 1")
    a("s_waitcnt vmcnt(0)")
    a("ds_write_b32 v30, v26")
    trace(45, 0)
    mark("x0")
    a("s_branch L_w_step" if cfg.early == 2 else "s_branch L_w_it")
    a.label("L_w_early")
    if cfg.early == 2:
        a(f"s_add_u32 m0, s40, {WBASE + WBUF}")
        a("s_add_u32 s50, s37, s41")
        a("s_addk_i32 s50, 18432")
        for k in range(3):
            a(f"buffer_load_dwordx4 v{20+k}, s[20:23], s50 offen offset:{k*1024}{cfg.wflag} lds")
    if cfg.early == 0: a("s_barrier")
    a.label("L_w_it")
    a("s_add_u32 m0, s54, s40")
    a("s_add_u32 s50, s37, s41")
    for k in range(3):
        a(f"buffer_load_dwordx4 v{20+k}, s[20:23], s50 offen offset:{k*1024}{cfg.wflag} lds")
    if cfg.early:
        a("s_cmp_lg_u32 s43, s44")
        a("s_cbranch_scc1 L_w_step")
        a("s_barrier")
        a("s_mov_b32 s44, -1")
    a.label("L_w_step")
    a("s_addk_i32 s40, 3072")
    a("s_add_u32 s41, s41, s42")
    a(f"s_xor_b32 s42, s42, {3072 ^ (92160 - 3072)}")
    a(f"s_cmpk_eq_u32 s40, {WBUF}")
    a("s_cselect_b32 s40, 0, s40")
    a("s_cselect_b32 s41, 0, s41")
    a("s_sub_u32 s43, s43, 1")
    a("s_cbranch_scc0 L_w_it")
    a("s_cmp_lg_u32 s55, 0")
    a("s_cbranch_scc1 L_w_adv")
    a("s_cmp_eq_u32 s95, 1")
    a("s_cbranch_scc1 L_x_w1")
    a("s_mov_b32 s55, s32")
    a("s_mov_b32 s53, s32")
    a(f"s_mul_i32 s50, s32, {WBUF}")
    a("s_add_u32 s54, s54, s50")
    a("v_mov_b32 v31, s32")
    a.label("L_w_adv")
    trace(44, "s55")
    a("v_add_u32 v31, 2, v31")
    a("s_waitcnt vmcnt(0)")
    a("ds_write_b32 v30, v31")
    trace(45, "s55")
    if cfg.amp == "pt" and cfg.pt == "w0":
        a("s_cmp_ge_u32 s55, 2")
        a("s_cbranch_scc1 L_pw")
        mark("w0")
        a.label("L_pw")
    a(f"s_sub_u32 s54, s54, {WBUF}")
    a(f"s_cmp_lt_u32 s54, {WBASE}")
    a(f"s_cselect_b32 s50, {3*WBUF}, 0")
    a("s_add_u32 s54, s54, s50")
    a("s_add_u32 s53, s53, 2")
    a("s_cmp_ge_u32 s53, 5")
    a("s_cselect_b32 s50, 5, 0")
    a("s_sub_u32 s53, s53, s50")
    a("s_lshr_b32 s50, s50, 2")
    a("s_add_u32 s52, s52, s50")
    a("s_cmp_eq_u32 s52, 3")
    a("s_cselect_b32 s52, 0, s52")
    if cfg.jrot:
        a("s_add_u32 s37, s53, s28")
        a("s_cmp_ge_u32 s37, 5")
        a("s_cselect_b32 s50, 5, 0")
        a("s_sub_u32 s37, s37, s50")
        a("s_mul_i32 s37, s37, 3")
    else: a("s_mul_i32 s37, s53, 3")
    a("s_add_u32 s37, s37, s52")
    a("s_mul_i32 s37, s37, 6144")
    a(f"s_mov_b32 s45, {3072 ^ (92160 - 3072)}" if cfg.wun else "s_mov_b32 s43, 9")
    a("s_mov_b32 s51, s55")
    a("s_add_u32 s55, s55, 2")
    a("s_cmp_eq_u32 s51, 0")
    a("s_cbranch_scc1 " + ("L_w_full" if cfg.wun else "L_w_it"))
    a("s_cmp_ge_u32 s55, 15")
    a("s_cbranch_scc1 L_store")
    a("v_and_b32 v23, 3, v1")
    a("v_mul_u32_u24 v23, 260, v23")
    a(f"v_add_u32 v23, {FLAGS + 1024}, v23")
    poll(a, "L_w_poll", 23, 24, "s51", cfg.sleep)
    trace(46, "s55")
    if cfg.wun:
        a.label("L_w_full")
        for hh in range(10):
            a("s_add_u32 m0, s54, s40")
            a("s_add_u32 s50, s37, s41")
            a(f"buffer_load_dwordx4 v20, s[20:23], s50 offen{cfg.wflag} lds")
            a("s_addk_i32 s40, 3072")
            a("s_add_u32 s41, s41, s42")
            a(f"buffer_load_dwordx4 v21, s[20:23], s50 offen offset:1024{cfg.wflag} lds")
            a("s_xor_b32 s42, s42, s45")
            a(f"s_cmpk_eq_u32 s40, {WBUF}")
            a(f"buffer_load_dwordx4 v22, s[20:23], s50 offen offset:2048{cfg.wflag} lds")
            a("s_cselect_b32 s40, 0, s40")
            a("s_cselect_b32 s41, 0, s41")
        a("s_branch L_w_adv")
    else:
        a("s_branch L_w_it")
    if cfg.pad4:
        a.label("L_padl")
        a("s_branch L_compute")
    a.label("L_x_w1")
    C = sum(((thr << 4) | m) << (8 * k) for k, (thr, m) in enumerate(cfg.xb))
    assert len(cfg.xb) <= 8
    a(f"s_mov_b32 s92, {C & 0xffffffff:#x}")
    a(f"s_mov_b32 s93, {C >> 32:#x}")
    a("s_mov_b32 s55, 1")
    if cfg.trace: a("s_mov_b32 s51, 1")
    a.label("L_x_sig")
    a("v_add_u32 v31, 5, v31")
    a("s_waitcnt vmcnt(0)")
    a("ds_write_b32 v30, v31")
    trace(45, "s51")
    if cfg.amp == "pt" and cfg.pt == "w1":
        a("s_cmp_lg_u32 s15, 15")
        a("s_cbranch_scc1 L_px")
        mark("w1")
        a.label("L_px")
    a("s_mul_i32 s50, s14, -11")
    a("s_add_u32 s56, s56, s50")
    a(f"s_add_u32 s56, s56, {XCH}")
    a("s_add_u32 s57, s57, 64")
    a("s_cmp_eq_u32 s57, 192")
    a("s_cselect_b32 s57, 0, s57")
    a.label("L_x_next")
    a("s_and_b32 s15, s92, 15")
    a("s_cbranch_scc0 L_xdone")
    a("s_bfe_u32 s51, s92, 0x40004")
    a("s_lshr_b64 s[92:93], s[92:93], 8")
    a("v_and_b32 v22, 1, v1")
    a(f"v_mul_u32_u24 v22, 260, v22")
    a(f"v_add_u32 v22, {FLAGS}, v22")
    poll(a, "L_x_poll", 22, 23, "s51", cfg.sleep)
    trace(44, "s51")
    a("s_branch L_x_loop")
    if cfg.help:
        a.label("L_help")
        a("v_and_b32 v1, 63, v0")
        a("v_lshrrev_b32 v2, 6, v0")
        a("v_mul_u32_u24 v3, 43, v1")
        a("v_readfirstlane_b32 s32, v2")
        a("v_lshrrev_b32 v3, 9, v3")
        a("v_mul_u32_u24 v4, 12, v3")
        a("v_sub_u32 v4, v1, v4")
        a("v_mul_u32_u24 v3, 92160, v3")
        a("v_lshl_add_u32 v3, v4, 7, v3")
        a("s_and_b32 s33, s2, 1")
        a("s_and_b32 s3, s3, 1")
        a("s_lshl1_add_u32 s33, s3, s33")
        a("s_mulk_i32 s33, 1536")
        a("s_lshr_b32 s34, s32, 1")
        a("s_add_u32 s34, s34, 1")
        a("s_mul_i32 s34, s34, 3")
        a("s_and_b32 s35, s32, 1")
        a("s_lshl1_add_u32 s34, s35, s34")
        a("s_mulk_i32 s34, 6144")
        a("s_add_u32 s34, s34, s33")
        a("s_min_u32 s35, s32, 4")
        a("s_mul_i32 s35, s35, 3")
        a("s_add_u32 s35, s35, 1")
        a("s_mulk_i32 s35, 6144")
        a("s_add_u32 s35, s35, s33")
        a("s_waitcnt lgkmcnt(0)")
        a(f"s_mov_b32 s22, {WBYTES}"); a("s_mov_b32 s23, 0x20000")
        a("buffer_load_dword v5, v3, s[20:23], s34 offen")
        a("buffer_load_dword v6, v3, s[20:23], s35 offen")
        a("s_waitcnt vmcnt(0)")
        a("s_endpgm")
    a.label("L_xdone")
    if cfg.padf:
        a("s_lshl1_add_u32 s39, s34, s11")
        a("s_cmp_eq_u32 s33, 8")
        a("s_cselect_b32 s39, 3, s39")
        for var in range(3):
            a(f"s_cmp_eq_u32 s39, {var}")
            a(f"s_cbranch_scc1 L_padf{var}")
        a("s_branch L_padf3")
    a.label("L_store")
    a.label("L_store2")
    a(f"s_mov_b32 s26, {XBYTES}")
    a("s_mov_b32 s27, 0x20000")
    a("s_movk_i32 s49, 208")
    a("s_movk_i32 s50, 384")
    a("v_lshrrev_b32 v11, 2, v1")
    a("v_and_b32 v12, 3, v1")
    a("v_lshlrev_b32 v12, 4, v12")
    a("v_mad_u32_u24 v5, v11, s50, v12")
    a("v_mad_u32_u24 v2, v11, s49, v12")
    a("v_and_b32 v10, 1, v1")
    a("v_mul_u32_u24 v10, 260, v10")
    a("s_lshl_b32 s39, s95, 9")
    a(f"s_add_u32 s39, s39, {FLAGS + 1024}")
    a("v_add_u32 v10, s39, v10")
    a("s_add_u32 s45, s35, s36")
    a("s_or_b32 s38, s34, s95")
    a("s_cmp_eq_u32 s33, 8")
    a("s_cselect_b32 s38, 1, s38")
    a("s_cselect_b32 s43, 6, 7")
    a("s_xor_b32 s38, s38, 1")
    a("s_andn2_b32 s44, s34, s95")
    a("s_add_u32 s39, s34, 6")
    a("s_mul_i32 s39, s39, s95")
    a("s_add_u32 s39, s39, s44")
    a("s_add_u32 s39, s39, 5")
    a("s_cmp_eq_u32 s38, 1")
    a("s_cselect_b32 s39, 0, s39")
    a("s_cselect_b32 s42, 1, -1")
    def rowsetup():
        a("s_mul_i32 s40, s11, s42")
        a("s_add_u32 s39, s39, s40")
        a(f"s_mul_i32 s47, s39, {PROW}")
        a("s_add_u32 s47, s47, s45")
        a(f"s_mul_i32 s48, s39, {SROW}")
        a("v_add_u32 v12, s48, v2")
        a(f"s_mul_i32 s40, s42, {2*PROW}")
        a(f"s_mul_i32 s41, s42, {2*SROW}")
    rowsetup()
    a("s_add_u32 s51, s11, 16")
    a("s_add_u32 s44, s44, 22")
    a.label("L_st_m")
    poll(a, "L_st_mp", 10, 11, "s51", cfg.sleep)
    a(f"ds_read_b128 {vr(16,4)}, v12 offset:64")
    a("v_add_u32 v12, s41, v12")
    a("s_add_u32 s51, s51, 2")
    a("s_waitcnt lgkmcnt(0)")
    a(f"buffer_store_dwordx4 {vr(16,4)}, v5, s[24:27], s47 offen offset:64{cfg.stflag}")
    a("s_add_u32 s47, s47, s40")
    a("s_cmp_lt_u32 s51, s44")
    a("s_cbranch_scc1 L_st_m")
    if cfg.stprio: a(f"s_setprio {cfg.stprio}")
    a("s_cmp_eq_u32 s95, 1")
    a("s_cselect_b32 s39, s43, s34")
    a("s_cmp_eq_u32 s38, 1")
    a("s_cselect_b32 s39, 5, s39")
    a("s_sub_u32 s42, 0, s42")
    rowsetup()
    a("s_add_u32 s51, s11, 25")
    a("s_and_b32 s38, s38, s11")
    a("s_cbranch_scc0 L_st_go")
    a("v_and_b32 v28, 3, v1")
    a("v_mul_u32_u24 v28, 260, v28")
    a(f"v_add_u32 v28, {FLAGS + 1024}, v28")
    a(f"s_add_u32 s45, s45, {6*PROW}")
    poll(a, "L_st_s1", 28, 11, 24, cfg.sleep2)
    for k in range(2): a(f"ds_read_b128 {vr(16+4*k,4)}, v2 offset:{6*SROW + 128*k}")
    for k in range(2):
        a(f"s_waitcnt lgkmcnt({1-k})")
        a(f"buffer_store_dwordx4 {vr(16+4*k,4)}, v5, s[24:27], s45 offen offset:{128*k}{cfg.stflag}")
    a.label("L_st_go")
    poll(a, "L_st_p1", 10, 11, "s51", cfg.sleep2)
    for k in range(2): a(f"ds_read_b128 {vr(16+4*k,4)}, v12 offset:{128*k}")
    a("v_add_u32 v12, s41, v12")
    a("s_add_u32 s51, s51, 2")
    for k in range(2):
        a(f"s_waitcnt lgkmcnt({1-k})")
        a(f"buffer_store_dwordx4 {vr(16+4*k,4)}, v5, s[24:27], s47 offen offset:{128*k}{cfg.stflag}")
    a("s_add_u32 s47, s47, s40")
    a("s_cmp_lt_u32 s51, 30")
    a("s_cbranch_scc1 L_st_go")
    a.label("L_st_end")
    if cfg.amp in ("all", "pt"): a("s_branch L_ampall")
    if cfg.diag:
        stamp(a, 5)
        a("s_waitcnt vmcnt(0)")
        stamp(a, 6)
        dump_stamps(a, cfg)
    a.label("L_exit")
    a("s_endpgm")
    a.label("L_compute")
    if cfg.cbar == 0:
        a("s_waitcnt lgkmcnt(0)")
        a("s_barrier")
    a("s_sub_u32 s37, s32, 4")
    a("s_and_b32 s38, s37, 1")
    a("s_lshr_b32 s37, s37, 1")
    a("s_add_u32 s39, s34, 6")
    a("s_mul_i32 s49, s37, s39")
    a(f"v_mov_b32 v{V_CP}, v30")
    a(f"v_mov_b32 v{V_PV}, 0")
    a("v_and_b32 v32, 15, v1")
    a("v_lshrrev_b32 v33, 4, v1")
    a("v_and_b32 v34, 1, v33")
    a("v_lshrrev_b32 v35, 1, v33")
    a("v_bfe_u32 v36, v1, 2, 2")
    a("v_and_b32 v37, 3, v1")
    a(f"v_mul_u32_u24 v{V_LF}, 260, v37")
    a(f"v_add_u32 v{V_LF}, {FLAGS}, v{V_LF}")
    a(f"v_or_b32 v16, 512, v{V_LF}")
    a(f"v_xor_b32 v17, 512, v16")
    a("s_lshl_b32 s39, s38, 7")
    a("v_lshlrev_b32 v40, 5, v34")
    a("v_lshl_add_u32 v40, v35, 4, v40")
    a("v_add_u32 v40, s39, v40")
    a("s_lshl_b32 s39, s38, 5")
    a("s_add_u32 s39, s39, 64")
    a("v_lshlrev_b32 v41, 3, v33")
    a("v_add_u32 v41, s39, v41")
    a("v_mul_u32_u24 v38, 384, v32")
    a("v_add_u32 v38, s36, v38")
    a(f"v_add_u32 v{V_SA}, v38, v40")
    a(f"v_add_u32 v{V_SC}, v38, v41")
    a("v_mul_u32_u24 v38, 208, v32")
    a(f"s_mul_i32 s39, s49, {SROW}")
    a("v_add_u32 v38, s39, v38")
    a("s_lshl_b32 s39, s38, 7")
    a(f"v_lshl_add_u32 v{V_GA}, v33, 3, v38")
    a(f"v_add_u32 v{V_GA}, s39, v{V_GA}")
    a(f"v_add_u32 v{V_GB}, v38, v41")
    a(f"s_mul_i32 s47, s49, {PROW}")
    a("s_add_u32 s47, s47, s35")
    a("v_lshl_add_u32 v38, v33, 3, v36")
    a("v_mul_u32_u24 v38, 192, v38")
    a("v_lshl_add_u32 v38, v37, 3, v38")
    a(f"v_add_u32 v38, {WBASE}, v38")
    a("s_add_u32 s39, s38, 2")
    a("v_xor_b32 v39, s39, v34")
    a(f"v_lshl_add_u32 v{V_WA[0]}, v39, 5, v38")
    a("s_lshl_b32 s39, s38, 2")
    a("v_xor_b32 v39, s39, v34")
    a(f"v_lshl_add_u32 v{V_WA[1]}, v39, 5, v38")
    a("v_xor_b32 v39, 1, v39")
    a(f"v_lshl_add_u32 v{V_WA[2]}, v39, 5, v38")
    a("v_lshlrev_b32 v38, 6, v32")
    a("v_lshl_add_u32 v38, v33, 4, v38")
    a(f"s_mul_i32 s39, s49, {XROW}")
    if cfg.jrot:
        a("s_lshl_b32 s50, s28, 6")
        a("s_add_u32 s39, s39, s50")
    a(f"v_add_u32 v{V_XL}, s39, v38")
    if cfg.jrot:
        a(f"s_lshr_b32 s50, {sum(1 << (h + 1) for h in (5, 10, 15))}, s28")
        a("s_movk_i32 s53, -256")
        a("s_bitcmp1_b32 s50, 15")
        a("s_cselect_b32 s54, s53, 64")
    a(f"v_lshrrev_b32 v{V_T}, 3, v{V_XL}")
    a(f"v_and_b32 v{V_T}, 32, v{V_T}")
    a(f"v_xor_b32 v{V_XA[0]}, v{V_XL}, v{V_T}")
    a(f"v_xor_b32 v{V_XA[1]}, 32, v{V_XA[0]}")
    if cfg.mov64:
        for k in range(0, 84, 2): a(f"v_mov_b64 {vr(V_ACC+k,2)}, 0")
    else:
        for k in range(84): a(f"v_mov_b32 v{V_ACC+k}, 0")
    a(f"s_mov_b32 s40, {(1 << 6) | (1 << 11)}")
    a(f"s_mov_b32 s41, {sum(1 << (h + 1) for h in (3, 6, 9, 12))}")
    a(f"s_mov_b32 s44, {(-2*WBUF) & 0xffffffff}")
    a(f"s_mov_b32 s45, {WBUF}")
    a("s_mov_b32 s46, 2")
    if cfg.amp == "stall": a("s_mov_b32 s85, 0")
    if cfg.cbar == 1:
        a("s_waitcnt lgkmcnt(0)")
        a("s_barrier")
    if cfg.diag: stamp(a, 1)
    a(f"s_mov_b32 s26, {XBYTES}")
    a("s_mov_b32 s27, 0x20000")
    if cfg.prio: a(f"s_setprio {cfg.prio}")
    if cfg.amp in ("span", "skew"): srd(a, 80, 12, 256)
    for var in (1, 2, 3):
        a(f"s_cmp_eq_u32 s31, {var}")
        a(f"s_cbranch_scc1 L_pro{var}")
    if cfg.pads: a("s_branch L_pro0")
    fa = Asm()
    for var in range(4):
        if var % 2 == 0: a(".p2align 12")
        emit_variant(a, fa, var, cfg)
    a.lines += fa.lines
    a.label("L_end")
    for _ in range(100): a("s_endpgm")
    out += a.text()
    nv = (V_END + 7) // 8 * 8
    out += f""".section .rodata,"a"
.p2align 6
.amdhsa_kernel {NAME}_kernel
  .amdhsa_next_free_vgpr {nv}
  .amdhsa_next_free_sgpr 96
  .amdhsa_accum_offset {nv}
  .amdhsa_group_segment_fixed_size 0
  .amdhsa_kernarg_size 40
  .amdhsa_user_sgpr_count 2
  .amdhsa_user_sgpr_kernarg_segment_ptr 1
  .amdhsa_system_sgpr_workgroup_id_x 1
{cfg.kd}.end_amdhsa_kernel
"""
    return out

if __name__ == "__main__":
    p = argparse.ArgumentParser()
    p.add_argument("-o", default="standalone__dilated_atrous__vision.s")
    p.add_argument("--diag", action="store_true")
    p.add_argument("--trace", action="store_true")
    p.add_argument("--bar_pos", type=int, default=62)
    p.add_argument("--xbar", type=int, default=40)
    p.add_argument("--lead", type=int, default=5)
    p.add_argument("--safe", type=int, default=8)
    p.add_argument("--prio", type=int, default=1)
    p.add_argument("--align", type=int, default=1)
    p.add_argument("--snake", type=int, default=1)
    p.add_argument("--exper", type=int, default=2)
    p.add_argument("--order", type=int, default=2)
    p.add_argument("--wpf", type=int, default=0)
    p.add_argument("--epf", type=int, default=0)
    p.add_argument("--cpf", type=int, default=1)
    p.add_argument("--sleep", type=int, default=0)
    p.add_argument("--sleep2", type=int, default=0)
    p.add_argument("--stflag", default="sc0 sc1 nt")
    p.add_argument("--wd", type=int, default=1)
    p.add_argument("--amp", default="")
    p.add_argument("--wun", type=int, default=1)
    p.add_argument("--early", type=int, default=1)
    p.add_argument("--nearly", type=int, default=1)
    p.add_argument("--padf", type=int, default=1)
    p.add_argument("--kd", default="")
    p.add_argument("--lastflag", default=None)
    p.add_argument("--jrot", type=int, default=0)
    p.add_argument("--pt", default="")
    p.add_argument("--sg", type=int, default=0)
    p.add_argument("--addd", type=int, default=0)
    p.add_argument("--onlyw", type=int, default=-1)
    p.add_argument("--onlyb", type=int, default=-1)
    p.add_argument("--help2", dest="help", type=int, default=0)
    p.add_argument("--pg", type=int, default=1)
    p.add_argument("--alead", type=int, default=20)
    p.add_argument("--entry_last", type=int, default=0)
    p.add_argument("--pad4", type=int, default=0)
    p.add_argument("--lx", type=int, default=-1)
    p.add_argument("--al8", type=int, default=0)
    p.add_argument("--shift4", type=int, default=0)
    p.add_argument("--rush", type=int, default=30)
    p.add_argument("--fill", type=int, default=0)
    p.add_argument("--pads", type=int, default=1)
    p.add_argument("--nstage", type=int, default=5)
    p.add_argument("--spec", type=int, default=1)
    p.add_argument("--stprio", type=int, default=0)
    p.add_argument("--mov64", type=int, default=1)
    p.add_argument("--xflag", default="")
    p.add_argument("--wflag", default="")
    p.add_argument("--fixd", type=int, default=0)
    p.add_argument("--wbl2", type=int, default=0)
    p.add_argument("--bench", action="store_true")
    p.add_argument("--drop", default="")
    p.add_argument("--cmpd", type=int, default=4)
    p.add_argument("--updstep", type=int, default=1)
    p.add_argument("--xthr", type=int, default=2)
    p.add_argument("--cbar", type=int, default=0)
    p.add_argument("--w2wait", type=int, default=1)
    p.add_argument("--xb", default="3:1,4:2,5:4,6:8,8:3,9:12")
    cfg = p.parse_args()
    cfg.xb = [tuple(int(v) for v in e.split(":")) for e in cfg.xb.split(",")]
    WD = cfg.wd
    cfg.kd = "".join(f"  .amdhsa_{e}\n" for e in cfg.kd.split(",") if e)
    if cfg.lastflag is None: cfg.lastflag = cfg.stflag
    if cfg.lastflag: cfg.lastflag = " " + cfg.lastflag
    if cfg.stflag: cfg.stflag = " " + cfg.stflag
    if cfg.xflag: cfg.xflag = " " + cfg.xflag
    if cfg.wflag: cfg.wflag = " " + cfg.wflag
    open(cfg.o, "w").write(gen(cfg))
```

```python
import sys, argparse

NAME = "standalone__dilated_atrous__vision"
XBYTES = 224 * 224 * 96 * 2
WBYTES = 25 * 96 * 96 * 2
ROWB = 224 * 192
PROW = 2 * ROWB
XCH = 352 * 64
XROW = 20 * 64
WBASE = 3 * XCH
WBUF = 5 * 6144
FLAGS = WBASE + 3 * WBUF
LDS_TOTAL = FLAGS + 2048
SROW = 16 * 208
assert 13 * SROW <= 2 * XCH

class Asm:
    def __init__(self):
        self.lines = []
    def __call__(self, s):
        self.lines.append("    " + s)
    def label(self, l):
        self.lines.append(l + ":")
    def comment(self, s):
        self.lines.append("    ; " + s)
    def text(self):
        return "\n".join(self.lines) + "\n"

def vr(b, n):
    return f"v[{b}:{b+n-1}]"

V_XL = 1
V_XA = (2, 3)
V_WA = (4, 5, 6)
V_SA, V_SC = 7, 8
V_GA, V_GB = 9, 10
V_T = 11
V_XB = (22, 23)
V_CP = 25
V_LF = 26
V_PV = 27
V_F = 28
V_X = 32
V_W = 76
V_ACC = 136
V_EXTRA = V_ACC + 84
V_END = V_EXTRA + 32

TYPES = {
    0: (range(0, 6), range(0, 7), range(0, 6)),
    1: (range(0, 6), range(1, 7), range(0, 7)),
    2: (range(0, 7), range(1, 7), range(1, 7)),
    3: (range(0, 6), range(0, 6), range(0, 6)),
}
OFF = {0: 0, 1: 1, 2: 1, 3: 0}
SPECIAL = {0: 6, 1: 0, 2: 0, 3: None}
LASTHEAD = {
    0: [(0, 0), (0, 1), (6, 1), (0, 2)],
    1: [(0, 0), (1, 0), (1, 1), (0, 2), (1, 2)],
    2: [(0, 0), (1, 0), (1, 1), (2, 0), (1, 2), (2, 1), (2, 2)],
    3: [(0, 0), (0, 1), (1, 0), (0, 2), (1, 1), (1, 2)],
}

def acc(rho, t): return V_ACC + 4 * (rho * 3 + t)
def wreg(i, t): return V_W + 4 * (i * 3 + t)
def xreg(q): return V_X + 4 * q

def chain(rho, t, rev):
    r = list(range(5))
    if rev: r.reverse()
    return [(rho, i, t, rho + i) for i in r]

def steady_order(var, cfg, par=(1, 1, 1)):
    ms = []
    for t in range(3):
        for j, rho in enumerate(TYPES[var][t]): ms += chain(rho, t, cfg.snake and j % 2 == par[t])
    return ms

DIRECT = {0: (5,), 1: (6, 5), 2: (6,), 3: (5,)}

def last_tiles(var):
    order = list(LASTHEAD[var])
    rows = [r for r in range(7) if r not in DIRECT[var]] + list(DIRECT[var])
    for r in rows:
        for t in ((0, 1, 2) if r not in DIRECT[var] else (1, 2, 0)):
            if r in TYPES[var][t] and (r, t) not in order: order.append((r, t))
    return order

def last_order(var, cfg, par=1):
    ms = []
    for j, (r, t) in enumerate(last_tiles(var)): ms += chain(r, t, cfg.snake and j % 2 == par and j >= 4)
    return ms

def uses(ms):
    first, last = {}, {}
    for k, (rho, i, t, q) in enumerate(ms):
        for key in (("w", i, t, 0), ("w", i, t, 1), ("x", q)):
            first.setdefault(key, k); last[key] = k
    return first, last

def read_text(nm):
    if nm[0] == "x":
        q = nm[1]
        return f"ds_read_b128 {vr(xreg(q),4)}, v{V_XA[q & 1]} offset:{q*XROW}"
    _, i, t, h = nm
    return f"ds_read_b64_tr_b16 {vr(wreg(i,t)+2*h,2)}, v{V_WA[t]} offset:{i*6144 + h*768}"

def edf(reads, lo, hi, lead, busy=()):
    placed, pending = {}, list(reads)
    for k in range(lo, hi):
        avail = [r for r in pending if r[1] <= k]
        if not avail: continue
        r = min(avail, key=lambda r: r[2])
        placed[k] = r[0]
        pending.remove(r)
        assert r[2] - k >= lead, (r, k)
    assert not pending, pending
    return placed

def mfma_text(m):
    rho, i, t, q = m
    return f"v_mfma_f32_16x16x32_bf16 {vr(acc(rho,t),4)}, {vr(wreg(i,t),4)}, {vr(xreg(q),4)}, {vr(acc(rho,t),4)}"

class LdsQ:
    def __init__(self, a, safe):
        self.a, self.safe = a, safe
        self.ops = []
        self.done = 0
        self.waits = []
    def issue(self, name, time, text=None):
        self.ops.append((name, time))
        if text: self.a(text)
    def need(self, names, time):
        idx = max(max(j for j, (nm, _) in enumerate(self.ops) if nm == n) for n in names) + 1
        if idx <= self.done: return
        for j, (nm, tm) in enumerate(self.ops):
            if tm <= time - 1 - self.safe: idx = max(idx, j + 1)
        cnt = len(self.ops) - idx
        if cnt > 14:
            idx += cnt - 14; cnt = 14
        self.a(f"s_waitcnt lgkmcnt({cnt})")
        self.waits.append((time, cnt, len(self.ops)))
        self.done = idx

WD = 1
def poll(a, label, vaddr, vtmp, sneed, sleep, wd=True):
    a.label(label)
    if WD and wd:
        a("s_add_u32 s94, s94, 1")
        a("s_bitcmp1_b32 s94, 18")
        a("s_cbranch_scc1 L_exit")
    a(f"ds_read_b32 v{vtmp}, v{vaddr}")
    a("s_waitcnt lgkmcnt(0)")
    a(f"v_cmp_gt_u32 vcc, {sneed}, v{vtmp}")
    if sleep:
        a(f"s_cbranch_vccz {label}_ok")
        a(f"s_sleep {sleep}")
        a(f"s_branch {label}")
        a.label(label + "_ok")
    else:
        a(f"s_cbranch_vccnz {label}")

def isize(l):
    l = l.strip()
    op = l.split()[0]
    if op.startswith(("v_mfma", "ds_", "buffer_", "v_cvt_pk")) or op.endswith("_e64"): return 8
    import re
    for tok in re.split(r"[ ,]+", l)[1:]:
        if re.fullmatch(r"-?\d+|0x[0-9a-f]+", tok) and not op.startswith(("s_waitcnt", "s_nop")):
            v = int(tok, 0)
            if not (-16 <= v <= 64): return 8
    return 4

def align8(lines):
    out = []
    for l in lines:
        op = l.strip().split()[0]
        if op.startswith("v_") and isize(l) == 4:
            l = l.replace(op, op + "_e64", 1)
        out.append(l)
    res, off = [], 0
    for l in out:
        sz = isize(l)
        if sz == 8 and off % 8 == 4:
            res.append("    s_nop 0"); off += 4
        res.append(l); off += sz
    if off % 8 == 4: res.append("    s_nop 0")
    return res

def emit_variant(a, fa, var, cfg):
    bar = cfg.bar_pos if var != 3 else cfg.bar_pos - 3
    best = None
    for par in [(p0, 1, p2) for p0 in (1, 0) for p2 in (1, 0)]:
        ms = steady_order(var, cfg, par)
        n = len(ms)
        first, last = uses(ms)
        reads = [(key, max(last[key], bar, n if (key[0] == "w" and key[2] == 2) else 0), n + first[key]) for key in first]
        placed = edf(reads, bar, n + bar - 16, 0)
        ld = min(n + first[nm] - k for k, nm in placed.items())
        if best is None or ld > best[0]: best = (ld, par, ms, first, last, placed)
    ld, par, ms, first, last, placed = best
    print(f"variant {var}: snake parity {par}, min lead {ld}", file=sys.stderr)
    tail = [(k, placed[k]) for k in sorted(placed) if k < n]
    head = [(k - n, placed[k]) for k in sorted(placed) if k >= n]
    slow = []
    hb, tb = Asm(), Asm()
    q = LdsQ(hb, cfg.safe)
    for k, nm in tail: q.issue(nm, k - n)
    headd, taild = dict(head), dict(tail)
    extra = {}
    def put(k, s): extra.setdefault(k, []).append(s)
    krel = max(k for k, nm in head) + 1
    put(krel - 1, f"v_add_u32 v{V_PV}, 1, v{V_PV}")
    upd = (["s_bitcmp1_b32 s40, s46", f"s_cselect_b32 s42, {XCH}, 0",
            "s_bitcmp1_b32 s50, s46", "s_cselect_b32 s51, s53, 64", "s_add_u32 s42, s42, s51"] if cfg.jrot else
           ["s_bitcmp1_b32 s40, s46", f"s_cselect_b32 s42, {XCH - 4*64}, 64"]) + [
           "s_bitcmp1_b32 s41, s46", "s_cselect_b32 s43, s44, s45",
           "s_cmp_eq_u32 s46, 14", "s_cselect_b32 s49, 1000, s46",
           f"v_add_u32 v{V_XL}, s42, v{V_XL}", f"v_lshrrev_b32 v{V_T}, 3, v{V_XL}", f"v_and_b32 v{V_T}, 32, v{V_T}",
           f"v_xor_b32 v{V_XA[0]}, v{V_XL}, v{V_T}", f"v_xor_b32 v{V_XA[1]}, 32, v{V_XA[0]}"]
    upd += [f"v_add_u32 v{V_WA[t]}, s43, v{V_WA[t]}" for t in range(3)]
    b0 = krel + 2
    for j, u in enumerate(upd): put(b0 + cfg.updstep * j, u)
    kflag = bar - cfg.cmpd - 9
    assert b0 + cfg.updstep * len(upd) <= kflag
    cur = hb
    for k, m in enumerate(ms):
        rho, i, t, qq = m
        q.need([("w", i, t, 0), ("w", i, t, 1), ("x", qq)], k)
        cur(mfma_text(m))
        D = cfg.drop
        for s in extra.get(k, []): cur(s)
        if k == krel: q.issue(("rel",), k, f"ds_write_b32 v{V_CP}, v{V_PV}")
        if k == kflag: q.issue(("flag",), k, f"ds_read_b32 v{V_F}, v{V_LF}")
        if k == bar - cfg.cmpd - 1: q.need([("flag",)], k + 1)
        if k == bar - cfg.cmpd: cur(f"v_cmp_gt_u32 vcc, s49, v{V_F}")
        if k == bar:
            cur = tb; q.a = tb
        drop = lambda nm: ("l" in D and k in taild) or ("w" in D and nm[0] == "w" and k in taild) or ("x" in D and nm[0] == "x")
        if k in headd: q.issue(headd[k], k, read_text(headd[k]) if not drop(headd[k]) else None)
        if k in taild: q.issue(("next",) + taild[k], k, read_text(taild[k]) if not drop(taild[k]) else None)
        if k == n - 9: cur("s_add_u32 s46, s46, 1")
    kinds = ("w", "x") if ((var < 2 and cfg.order == 1) or cfg.order == 3) else ("x", "w")
    ent = [[nm for _, nm in sorted(tail, key=lambda e: first[e[1]]) if nm[0] == kd] for kd in kinds]
    late = ent[1]
    def entry_ok(m):
        done = len(late) - m
        wi = 0
        for k, (rho, i, t, qq) in enumerate(ms):
            while wi < len(q.waits) and q.waits[wi][0] <= k:
                _, cnt, nops = q.waits[wi]; wi += 1
                body_ops = nops - len(tail)
                done = max(done, len(late) - max(0, cnt - body_ops))
            for nm in (("w", i, t, 0), ("w", i, t, 1), ("x", qq)):
                if nm in late and late.index(nm) >= done: return False
        return True
    ment = max(mm for mm in range(min(len(late), 14) + 1) if entry_ok(mm))
    def emit_entry():
        a.label(f"L_pro{var}")
        if cfg.amp == "pt" and cfg.pt == "lpro":
            a("s_memrealtime s[86:87]")
            a("s_waitcnt lgkmcnt(0)")
        poll(a, f"L_p0_{var}", 16 if kinds[0] == "x" else 17, V_F, 1, 0)
        for nm in ent[0]: a(read_text(nm))
        poll(a, f"L_p1_{var}", 16 if kinds[1] == "x" else 17, V_F, 1, 0)
        if cfg.diag: stamp(a, 3)
        if cfg.amp and cfg.amp != "pt":
            a("s_memrealtime s[86:87]")
            a("s_waitcnt lgkmcnt(0)")
        for nm in late: a(read_text(nm))
        a(f"s_waitcnt lgkmcnt({ment})")
        a(f"s_branch L_head{var}")
    def emit_slow(a=a):
        if cfg.amp == "stall":
            a.label(f"L_slow{var}")
            a("s_memrealtime s[76:77]")
            poll(a, f"L_slowb{var}", V_LF, V_F, "s49", 0)
            a("s_memrealtime s[78:79]")
            a("s_waitcnt lgkmcnt(0)")
            a("s_sub_u32 s78, s78, s76")
            if cfg.sg:
                a(f"s_cmp_eq_u32 s46, {cfg.sg}")
                a("s_cselect_b32 s78, s78, 0")
            a("s_add_u32 s85, s85, s78")
        else:
            poll(a, f"L_slow{var}", V_LF, V_F, "s49", 0)
        a("s_cmp_eq_u32 s46, 14")
        a(f"s_cbranch_scc1 L_fin{var}")
        a(f"s_branch L_top{var}")
    if not cfg.entry_last: emit_entry()
    if cfg.al8:
        hb.lines = align8(hb.lines); tb.lines = align8(tb.lines)
    if cfg.align: a(".p2align 6")
    if cfg.pads:
        a.label(f"L_pad{var}")
        a("s_branch L_compute")
        a("s_nop 0")
    a.label(f"L_top{var}")
    a.lines += tb.lines
    a.label(f"L_head{var}")
    a.lines += hb.lines
    a(f"s_cbranch_vccz L_top{var}")
    a("s_min_u32 s49, s49, 15")
    a(f"v_cmp_gt_u32 vcc, s49, v{V_F}")
    a(f"s_cbranch_vccz L_fin{var}")
    emit_slow()
    a = fa
    a(".p2align 12")
    a.label(f"L_padf{var}")
    a("s_branch L_store2")
    a("s_nop 0")
    a.label(f"L_fin{var}")
    a.lines += tb.lines
    if cfg.diag: stamp(a, 4)
    if cfg.cpf: a("s_waitcnt vmcnt(0)")
    rows = TYPES[var]
    down = var == 0
    prow = sorted(set(rows[1]) | set(rows[2]), reverse=down)
    lastrow = prow[-1]
    srow2 = sorted(rows[0], reverse=not down)
    def build(pa, pb):
        out = []
        for j, r in enumerate(rows[0]):
            out += [m + (13, 0) for m in chain(r, 0, cfg.snake and j % 2 == pa)]
        for j, r in enumerate(srow2):
            out += [m + (14, 0) for m in chain(r, 0, cfg.snake and j % 2 == pb)]
        keep = set(range(srow2[-1], srow2[-1] + 5))
        flip = 0
        tiles = []
        for r in prow:
            ts = [t for t in ((1, 2) if flip == 0 else (2, 1)) if r in rows[t]]
            if r == lastrow: ts = [1, 2]
            for j, t in enumerate(ts):
                gs = (14, 13) if j == 0 else (13, 14)
                for g in gs:
                    for m in chain(r, t, (j == 1) != down):
                        out.append(m + (g, 0 if (g == 14 and m[3] in keep) else 1))
                tiles.append((r, t))
            flip = 0 if ts[-1] == 1 else 1
        return out, tiles
    def names(m):
        rho, i, t, qq, g, occ = m
        return [("w", g, i, t, 0), ("w", g, i, t, 1), ("x", g, qq, occ)]
    frag = lambda nm: nm if nm[0] == "x" else nm[:4]
    conv = lambda nm: ("x", 13, nm[1], 0) if nm[0] == "x" else ("w", 13) + nm[1:]
    pre = [(k - n, conv(nm)) for k, nm in tail]
    prenames = set(nm for _, nm in pre)
    slots = [V_X + 4 * j for j in range(26)] + [V_EXTRA + 4 * j for j in range(8)]
    best = None
    for pa in (1, 0):
      for pb in (1, 0):
        ls, ptiles = build(pa, pb)
        lf, ll = {}, {}
        for k, m in enumerate(ls):
            for nm in names(m):
                lf.setdefault(nm, k); ll[nm] = k
        free = {sl: 0 for sl in slots}
        regs = {}
        for nm in prenames:
            sl = xreg(nm[2]) if nm[0] == "x" else wreg(nm[2], nm[3])
            regs[frag(nm)] = sl
            free[sl] = max(free[sl], ll.get(nm, 0))
        rds, early = [], {}
        for nm in sorted(lf, key=lambda v: lf[v]):
            if nm in prenames: continue
            fr = frag(nm)
            if fr not in regs:
                ok = [sl for sl in slots if free[sl] <= lf[nm] - cfg.alead]
                sl = max(ok, key=lambda v: free[v]) if ok else min(slots, key=lambda v: free[v])
                regs[fr] = sl; early[fr] = free[sl]; free[sl] = ll[nm]
            e = early.get(fr, 0)
            if nm[0] == "x" and nm[1] == 14: e = max(e, 6)
            rds.append((nm, e, lf[nm]))
        try: lp = edf(rds, 0, len(ls), 0)
        except AssertionError: continue
        ld2 = min([lf[nm] - k for k, nm in lp.items()] + [lf[nm] - k for k, nm in pre if nm in lf])
        if best is None or ld2 > best[0]: best = (ld2, (pa, pb), ls, lf, lp, regs, ptiles)
    ld2, pars, ls, lf, lplaced, regs, ptiles = best
    print(f"   final segment: parity {pars} min lead {ld2} reads {len(lplaced)}", file=sys.stderr)
    def rd_text(nm):
        if nm[0] == "x":
            _, g, qq, occ = nm
            return f"ds_read_b128 {vr(regs[nm],4)}, v{(V_XA if g == 13 else V_XB)[qq & 1]} offset:{qq*XROW}"
        _, g, i, t, h = nm
        return f"ds_read_b64_tr_b16 {vr(regs[frag(nm)]+2*h,2)}, v{V_WA[t]} offset:{(g-13)*WBUF + i*6144 + h*768}"
    n2 = len(ls)
    q = LdsQ(a, cfg.safe)
    for k, nm in pre: q.issue(nm, k)
    endk = {}
    for k, m in enumerate(ls): endk[(m[0], m[2])] = k
    def cvt2(D, S, tile):
        return [(tile, f"v_cvt_pk_bf16_f32 v{D}, v{S}, v{S+1}"), (tile, f"v_cvt_pk_bf16_f32 v{D+1}, v{S+2}, v{S+3}")]
    seq = [(None, f"v_add_u32 v{V_XL}, {'s54' if cfg.jrot else 64}, v{V_XL}"), (None, f"v_lshrrev_b32 v{V_T}, 3, v{V_XL}"), (None, f"v_and_b32 v{V_T}, 32, v{V_T}"),
           (None, f"v_xor_b32 v{V_XB[0]}, v{V_XL}, v{V_T}"), (None, f"v_xor_b32 v{V_XB[1]}, 32, v{V_XB[0]}")]
    for j, r in enumerate(srow2):
        S = acc(r, 0)
        seq += cvt2(S, S, (r, 0))
        seq += [(None, f"v_mov_b32 v{V_PV}, {16 + j}"), (None, f"ds_write_b64 v{V_GB}, {vr(S,2)} offset:{r*SROW}"),
                (None, f"ds_write_b32 v{V_CP}, v{V_PV}")]
    kfull, seen = 0, set()
    for (r, t) in ptiles:
        S = acc(r, t)
        if r != lastrow:
            seq += cvt2(S, S, (r, t))
            pv = None
            if not (r in rows[1] and r in rows[2]): pv = 24
            elif r in seen:
                pv = 25 + kfull; kfull += 1
            seen.add(r)
            if pv: seq.append((None, f"v_mov_b32 v{V_PV}, {pv}"))
            seq.append((None, f"ds_write_b64 v{V_GA}, {vr(S,2)} offset:{r*SROW + (32 if t == 2 else 0)}"))
            if pv: seq.append((None, f"ds_write_b32 v{V_CP}, v{V_PV}"))
        elif t == 1:
            seq += cvt2(S, S, (r, t))
            seq.append((None, f"s_add_u32 s48, s47, {r*PROW}"))
        else:
            A = acc(r, 1)
            seq += cvt2(A + 2, S, (r, t))
            seq.append(("W2", f"v_permlane16_swap_b32 v{A}, v{A+2}"))
            seq.append((None, f"v_permlane16_swap_b32 v{A+1}, v{A+3}"))
            seq.append((None, f"buffer_store_dwordx4 {vr(A,4)}, v{V_SA}, s[24:27], s48 offen{cfg.lastflag}"))
    assert kfull == 5
    def states(frm):
        c = 0
        for l in a.lines[frm + 1:]:
            l = l.strip()
            if l.endswith(":") or l.startswith(";") or l.startswith("."): continue
            c += int(l.split()[1]) + 1 if l.startswith("s_nop") else 1
        return c
    done_at = {}
    last_valu = [0]
    def missing(dep):
        if dep is None: return 0
        if dep == "W2": return max(0, 2 - states(last_valu[0]))
        if dep not in done_at: return None
        return max(0, 8 - states(done_at[dep]))
    nl = [0]
    def emit_ex(txt, k):
        for key, pat in (("C", "v_cvt"), ("P", "v_permlane"), ("V", "ds_write_b64"), ("F", "ds_write_b32"), ("S", "buffer_store")):
            if key in cfg.drop and txt.startswith(pat): return
        if txt.startswith("ds_"):
            nl[0] += 1; q.issue(("st", nl[0]), k, txt)
        else: a(txt)
        if txt.startswith("v_cvt"): last_valu[0] = len(a.lines) - 1
    for k, m in enumerate(ls):
        rho, i, t, qq, g, occ = m
        q.need(names(m), k)
        a(f"v_mfma_f32_16x16x32_bf16 {vr(acc(rho,t),4)}, {vr(regs[('w',g,i,t)],4)}, {vr(regs[('x',g,qq,occ)],4)}, {vr(acc(rho,t),4)}")
        if endk[(rho, t)] == k: done_at[(rho, t)] = len(a.lines) - 1
        cnt = 0
        if k in lplaced:
            q.issue(lplaced[k], k, rd_text(lplaced[k])); cnt += 1
        lim = cfg.exper if (k >= n2 - cfg.rush or k < 6) else 1
        if k < 6: cnt = 1
        while seq and cnt < lim and k < n2 - 1:
            miss = missing(seq[0][0])
            if miss == 0:
                emit_ex(seq.pop(0)[1], k); cnt += 1
            else:
                if miss is not None and miss > 1 and cnt == 0 and k >= n2 - cfg.fill: a("s_nop 1")
                break
    while seq:
        miss = missing(seq[0][0])
        if miss: a(f"s_nop {miss - 1}")
        emit_ex(seq.pop(0)[1], n2)
    if cfg.diag:
        stamp(a, 5)
        a("s_waitcnt vmcnt(0)")
        stamp(a, 6)
        a("s_branch L_dump")
    elif cfg.amp:
        if var == 0: a.label("L_ampall")
        a("s_waitcnt vmcnt(0)")
        a("s_memrealtime s[88:89]")
        a("s_waitcnt lgkmcnt(0)")
        if cfg.amp in ("span", "skew"):
            a("v_mov_b32 v4, 0")
            a("buffer_load_dwordx2 v[6:7], v4, s[80:83], 0 offen sc0 sc1")
            a("s_waitcnt vmcnt(0)")
            a("v_readfirstlane_b32 s86, v6")
            a("v_readfirstlane_b32 s58, v7")
            a("s_nop 3")
            a("s_not_b32 s58, s58")
        lo, hi = {"pro": (58, 86), "all": (58, 88), "loop": (86, 88), "none": (58, 58), "span": (58, 88), "skew": (58, 86), "stall": (58, 58), "pt": (58, 86)}[cfg.amp]
        a(f"s_sub_u32 s90, s{hi}, s{lo}")
        a("s_mul_i32 s90, s90, 10")
        if cfg.fixd: a(f"s_mov_b32 s90, {cfg.fixd}")
        if cfg.amp == "stall": a("s_mul_i32 s90, s85, 10")
        if cfg.onlyw >= 0:
            a(f"s_cmp_eq_u32 s32, {cfg.onlyw}")
            a("s_cselect_b32 s90, s90, 0")
        if cfg.onlyb >= 0:
            a(f"s_cmp_eq_u32 s2, {cfg.onlyb}")
            a("s_cselect_b32 s90, s90, 0")
        if cfg.addd: a(f"s_cselect_b32 s91, {cfg.addd}, 0"); a("s_add_u32 s90, s90, s91")
        if cfg.wbl2:
            a("buffer_wbl2 sc1")
        a.label(f"L_amp{var}")
        a("s_memrealtime s[76:77]")
        a("s_waitcnt lgkmcnt(0)")
        a("s_sub_u32 s91, s76, s88")
        a("s_cmp_lt_u32 s91, s90")
        a(f"s_cbranch_scc1 L_amp{var}")
        a("s_endpgm")
    else:
        a("s_endpgm")

def stamp(a, idx):
    a(f"s_memtime s[{60+2*idx}:{61+2*idx}]")
    if idx in (3, 5):
        a(f"s_memrealtime s[{86 if idx == 3 else 88}:{87 if idx == 3 else 89}]")
    a("s_waitcnt lgkmcnt(0)")

def dump_stamps(a, cfg):
    a.label("L_dump")
    a("s_memrealtime s[76:77]")
    a("s_getreg_b32 s78, hwreg(HW_REG_HW_ID)")
    a("s_getreg_b32 s79, hwreg(HW_REG_XCC_ID)")
    a("s_waitcnt lgkmcnt(0)")
    a("s_mov_b32 s80, s12")
    a("s_mov_b32 s81, s13")
    a("s_mov_b32 s82, 0x100000")
    a("s_mov_b32 s83, 0x20000")
    a("s_lshl_b32 s84, s2, 3")
    a("s_add_u32 s84, s84, s32")
    a("s_lshl_b32 s84, s84, 6")
    a("v_mov_b32 v4, 0")
    for k, s in enumerate([60, 62, 64, 66, 68, 70, 72, 74, 76, 77, 78, 79, 58, 59, 86, 88]):
        a(f"v_mov_b32 v5, s{s}")
        a(f"buffer_store_dword v5, v4, s[80:83], s84 offen offset:{4*k}")
        a("s_nop 1")
    a("v_and_b32 v1, 63, v0")
    a("v_lshlrev_b32 v4, 2, v1")
    a("v_cmp_gt_u32 vcc, 16, v1")
    a("s_and_saveexec_b64 s[92:93], vcc")
    a("s_lshl_b32 s84, s84, 2")
    a("s_add_u32 s84, s84, 0x40000")
    for k in range(3):
        a(f"buffer_store_dword v{44+k}, v4, s[80:83], s84 offen offset:{64*k}")
    a("s_waitcnt vmcnt(0)")
    a("s_endpgm")

def srd(a, d, p, size):
    a(f"s_mov_b32 s{d}, s{p}")
    a(f"s_and_b32 s{d+1}, s{p+1}, 0xffff")
    a(f"s_mov_b32 s{d+2}, {size}")
    a(f"s_mov_b32 s{d+3}, 0x20000")

def gen(cfg):
    a = Asm()
    hdr = open("standalone__dilated_atrous__vision.s.ref").read().splitlines()
    head = [l for l in hdr[:8] if l.startswith(";") and "@launch" not in l]
    out = "\n".join(head) + "\n"
    out += f"; @launch grid=(256,1,1) block=(512,1,1) lds={LDS_TOTAL}\n"
    out += f""".amdgcn_target "amdgcn-amd-amdhsa--gfx950"
.text
.globl {NAME}_kernel
{".p2align 12" + chr(10) if cfg.pg else ""}.p2align 8
.type {NAME}_kernel,@function
{NAME}_kernel:
"""
    def mark(name):
        if cfg.amp == "pt" and cfg.pt == name:
            a("s_memrealtime s[86:87]")
            a("s_waitcnt lgkmcnt(0)")
    def trace(reg, idx):
        if cfg.trace:
            a("s_memtime s[90:91]")
            a(f"s_mov_b32 m0, {idx}")
            a("s_waitcnt lgkmcnt(0)")
            a(f"v_writelane_b32 v{reg}, s90, m0")
    if cfg.diag:
        a("s_memtime s[60:61]")
        a("s_memrealtime s[58:59]")
        a("s_load_dwordx2 s[12:13], s[0:1], 32")
    if cfg.amp: a("s_memrealtime s[58:59]")
    if cfg.amp == "pt": a("s_memrealtime s[86:87]")
    if cfg.amp in ("span", "skew"): a("s_load_dwordx2 s[12:13], s[0:1], 24")
    a("s_load_dwordx2 s[16:17], s[0:1], 0")
    a("s_load_dwordx2 s[20:21], s[0:1], 8")
    a("s_load_dwordx2 s[24:25], s[0:1], 16")
    if WD: a("s_mov_b32 s94, 0")
    a("s_cmp_ge_u32 s2, 256")
    a("s_cbranch_scc1 L_exit")
    if cfg.lx < 0:
        a("s_and_b32 s28, s2, 1")
        a("s_bfe_u32 s3, s2, 0x20001")
        a("s_lshl_b32 s3, s3, 5")
        a("s_lshr_b32 s33, s2, 3")
        a("s_add_u32 s3, s3, s33")
        a("s_cmp_ge_u32 s3, 126")
        a("s_cbranch_scc1 " + ("L_help" if cfg.help else "L_exit"))
    else:
        a("s_and_b32 s3, s2, 7")
        a(f"s_sub_u32 s3, s3, {cfg.lx + 1}")
        a("s_and_b32 s3, s3, 7")
        a("s_lshl_b32 s3, s3, 5")
        a("s_lshr_b32 s33, s2, 3")
        a("s_add_u32 s3, s3, s33")
        a("s_cmp_ge_u32 s3, 252")
        a("s_cbranch_scc1 L_exit")
        a("s_cmp_ge_u32 s3, 224")
        a("s_cselect_b32 s33, 14, 112")
        a("s_cselect_b32 s34, 224, 0")
        a("s_cselect_b32 s29, 112, 0")
        a("s_sub_u32 s3, s3, s34")
        a("s_cmp_ge_u32 s3, s33")
        a("s_cselect_b32 s28, 1, 0")
        a("s_cselect_b32 s33, s33, 0")
        a("s_sub_u32 s3, s3, s33")
        a("s_add_u32 s3, s3, s29")
    a("v_lshrrev_b32 v2, 6, v0")
    a("v_and_b32 v1, 63, v0")
    a("v_readfirstlane_b32 s32, v2")
    a("v_lshlrev_b32 v30, 2, v0")
    a(f"v_add_u32 v30, {FLAGS}, v30")
    a("v_mov_b32 v31, 0")
    a("ds_write_b32 v30, v31")
    a("s_mul_i32 s33, s3, 4682")
    a("s_lshr_b32 s33, s33, 16")
    a("s_mul_i32 s34, s33, 14")
    a("s_sub_u32 s34, s3, s34")
    a("s_and_b32 s29, s34, 1")
    a("s_lshr_b32 s30, s34, 1")
    a("s_lshl_b32 s30, s30, 4")
    a("s_mul_i32 s31, s33, 25")
    a("s_lshr_b32 s31, s31, 1")
    a("s_and_b32 s34, s33, 1")
    a("s_lshl_b32 s35, s31, 1")
    a("s_add_u32 s35, s35, s28")
    a(f"s_mul_i32 s35, s35, {ROWB}")
    a("s_lshl_b32 s36, s30, 1")
    a("s_add_u32 s36, s36, s29")
    a("s_mul_i32 s36, s36, 192")
    a("s_lshl_b32 s52, s29, 1")
    a("s_sub_u32 s52, 2, s52")
    if cfg.jrot == 1:
        a("s_and_b32 s28, s2, 7")
        a("s_cmp_ge_u32 s28, 5")
        a("s_cselect_b32 s37, 4, 0")
        a("s_sub_u32 s28, s28, s37")
    elif cfg.jrot == 2:
        a("s_mul_i32 s37, s2, 205")
        a("s_lshr_b32 s37, s37, 10")
        a("s_mul_i32 s37, s37, 5")
        a("s_sub_u32 s28, s2, s37")
    a("s_cmp_ge_u32 s32, 4")
    if cfg.cpf:
        a("s_cbranch_scc0 L_ld")
        a("s_bfe_u32 s31, s32, 0x10001")
        a("s_lshl1_add_u32 s31, s34, s31")
        a("s_cmp_eq_u32 s33, 8")
        a("s_cselect_b32 s31, 3, s31")
        a("s_getpc_b64 s[38:39]")
        a.label("L_pc")
        a("s_lshr_b32 s37, s2, 1")
        a("s_and_b32 s37, s37, 0x7c")
        a("s_add_u32 s37, s37, s32")
        a("s_min_u32 s37, s37, (L_end-L_pc)/256")
        a("s_lshl_b32 s37, s37, 8")
        a("s_add_u32 s38, s38, s37")
        a("s_addc_u32 s39, s39, 0")
        a("v_mov_b32 v12, s38")
        a("v_mov_b32 v13, s39")
        a("global_load_dword v14, v[12:13], off")
        a("global_load_dword v15, v[12:13], off offset:128")
        if cfg.pads:
            if cfg.pad4:
                a("s_cmp_eq_u32 s32, 4")
                a("s_cbranch_scc1 L_padl")
            a("s_bitcmp1_b32 s32, 0")
            a("s_cbranch_scc0 L_compute")
            a("s_cmp_eq_u32 s31, 0")
            a("s_cbranch_scc1 L_pad0")
            a("s_cmp_eq_u32 s31, 1")
            a("s_cbranch_scc1 L_pad1")
            a("s_cmp_eq_u32 s31, 2")
            a("s_cbranch_scc1 L_pad2")
            a("s_branch L_pad3")
        else:
            a("s_branch L_compute")
        a.label("L_ld")
    else:
        a("s_cbranch_scc1 L_compute")
    if cfg.bench:
        a("v_mov_b32 v31, 100")
        a("ds_write_b32 v30, v31")
        a("s_waitcnt lgkmcnt(0)")
        a("s_barrier")
        a("s_branch L_dump")
    a("s_add_u32 s37, s35, s36")
    a(f"s_sub_u32 s37, s37, {2*PROW + 2*384}")
    a("s_sub_u32 s38, s30, 2")
    a("s_cmp_eq_u32 s29, 0")
    a("s_cselect_b32 s14, 32, -32")
    a("s_cselect_b32 s15, 0, 320")
    a(f"s_mul_i32 s10, s14, {8*PROW//32}")
    a("s_and_b32 s11, s32, 1")
    a("s_lshl_b32 s39, s11, 4")
    a("s_add_u32 s15, s15, s39")
    a("v_lshrrev_b32 v13, 2, v1")
    a("v_add_u32 v13, s15, v13")
    a("v_lshrrev_b32 v14, 3, v1")
    a("v_and_b32 v14, 2, v14")
    a("v_and_b32 v15, 3, v1")
    a("v_xor_b32 v14, v14, v15")
    a("v_lshlrev_b32 v14, 4, v14")
    a("v_add_u32 v14, s37, v14")
    a("v_bfrev_b32 v19, 1")
    a("s_movk_i32 s39, 3277")
    a(f"s_mov_b32 s49, {PROW}")
    a("s_movk_i32 s50, 384")
    a("s_movk_i32 s51, 112")
    for b in range(5):
        a("v_mul_u32_u24 v15, s39, v13")
        a("v_lshrrev_b32 v15, 16, v15")
        a("v_mul_u32_u24 v16, 20, v15")
        a("v_sub_u32 v16, v13, v16")
        a("v_add_u32 v17, s38, v16")
        a("v_cmp_gt_u32 vcc, s51, v17")
        a("v_mad_u32_u24 v18, v15, s49, v14")
        a("v_mad_u32_u24 v18, v16, s50, v18")
        a(f"v_cndmask_b32 v{2+b}, v19, v18, vcc")
        if b < 4: a("v_add_u32 v13, s14, v13")
        a(f"v_add_u32 v{7+b}, s10, v{2+b}")
    a("v_add_u32 v12, s10, v7")
    a("s_lshl_b32 s57, s52, 6")
    a("s_lshl_b32 s56, s15, 6")
    a("s_lshl_b32 s14, s14, 6")
    a("v_lshlrev_b32 v20, 4, v1")
    a("v_cmp_gt_u32 vcc, 32, v1")
    a("v_xor_b32 v22, 32, v20")
    a("s_lshr_b32 s39, s2, 2")
    a("v_cndmask_b32 v21, v22, v20, vcc")
    a("s_and_b32 s39, s39, 28")
    a("s_lshr_b32 s39, 0x21043210, s39")
    a("s_and_b32 s39, s39, 7")
    a("s_mul_i32 s38, s11, 5")
    a("s_add_u32 s39, s39, s38")
    a("s_mul_i32 s40, s39, 3072")
    a("s_lshr_b32 s41, s39, 1")
    a(f"s_mul_i32 s41, s41, {92160 - 6144}")
    a("s_add_u32 s41, s41, s40")
    a("s_movk_i32 s42, 3072")
    a("s_bitcmp1_b32 s39, 0")
    a(f"s_cselect_b32 s42, {92160 - 3072}, s42")
    a("s_mov_b32 s43, 4")
    a("s_cmp_ge_u32 s32, 2")
    a("s_cselect_b32 s95, 1, 0")
    a(f"s_cselect_b32 s44, -1, {5 - cfg.nearly}")
    a(f"s_mul_i32 s54, s95, {WBUF}")
    a(f"s_add_u32 s54, s54, {WBASE}")
    if cfg.jrot:
        a("s_add_u32 s37, s95, s28")
        a("s_cmp_eq_u32 s37, 5")
        a("s_cselect_b32 s37, 0, s37")
        a("s_mul_i32 s37, s37, 3")
    else: a("s_mul_i32 s37, s95, 3")
    a("s_add_u32 s37, s37, s52")
    a("s_mul_i32 s37, s37, 6144")
    a("s_mov_b32 s55, 0")
    a("s_mov_b32 s15, 15")
    a(f"s_mov_b32 s18, {XBYTES}")
    a("s_mov_b32 s19, 0x20000")
    a(f"s_mov_b32 s22, {WBYTES}")
    a("s_mov_b32 s23, s19")
    a("s_waitcnt lgkmcnt(0)")
    if cfg.diag: stamp(a, 1)
    mark("karg")
    a("s_cmp_eq_u32 s95, 1")
    a("s_cbranch_scc0 L_w_early")
    a.label("L_x_loop")
    for blk in range(4):
        a(f"s_bitcmp1_b32 s15, {blk}")
        a(f"s_cbranch_scc0 " + (f"L_x{blk}" if blk < 3 else "L_x_next"))
        for k in range(3 * blk, min(3 * blk + 3, 11)):
            a("s_mov_b32 m0, s56")
            a("s_add_u32 s56, s56, s14")
            a(f"buffer_load_dwordx4 v{2+k}, s[16:19], s57 offen{cfg.xflag} lds")
        if blk < 3: a.label(f"L_x{blk}")
    a("s_cmp_lg_u32 s55, 0")
    a("s_cbranch_scc1 L_x_sig")
    if cfg.diag: stamp(a, 2)
    mark("xi")
    a("s_barrier")
    a("v_mov_b32 v26, 1")
    a("s_waitcnt vmcnt(0)")
    a("ds_write_b32 v30, v26")
    trace(45, 0)
    mark("x0")
    a("s_branch L_w_step" if cfg.early == 2 else "s_branch L_w_it")
    a.label("L_w_early")
    if cfg.early == 2:
        a(f"s_add_u32 m0, s40, {WBASE + WBUF}")
        a("s_add_u32 s50, s37, s41")
        a("s_addk_i32 s50, 18432")
        for k in range(3):
            a(f"buffer_load_dwordx4 v{20+k}, s[20:23], s50 offen offset:{k*1024}{cfg.wflag} lds")
    if cfg.early == 0: a("s_barrier")
    a.label("L_w_it")
    a("s_add_u32 m0, s54, s40")
    a("s_add_u32 s50, s37, s41")
    for k in range(3):
        a(f"buffer_load_dwordx4 v{20+k}, s[20:23], s50 offen offset:{k*1024}{cfg.wflag} lds")
    if cfg.early:
        a("s_cmp_lg_u32 s43, s44")
        a("s_cbranch_scc1 L_w_step")
        a("s_barrier")
        a("s_mov_b32 s44, -1")
    a.label("L_w_step")
    a("s_addk_i32 s40, 3072")
    a("s_add_u32 s41, s41, s42")
    a(f"s_xor_b32 s42, s42, {3072 ^ (92160 - 3072)}")
    a(f"s_cmpk_eq_u32 s40, {WBUF}")
    a("s_cselect_b32 s40, 0, s40")
    a("s_cselect_b32 s41, 0, s41")
    a("s_sub_u32 s43, s43, 1")
    a("s_cbranch_scc0 L_w_it")
    a("s_cmp_lg_u32 s55, 0")
    a("s_cbranch_scc1 L_w_adv")
    a("s_cmp_eq_u32 s95, 1")
    a("s_cbranch_scc1 L_x_w1")
    a("s_mov_b32 s55, s32")
    a("s_mov_b32 s53, s32")
    a(f"s_mul_i32 s50, s32, {WBUF}")
    a("s_add_u32 s54, s54, s50")
    a("v_mov_b32 v31, s32")
    a.label("L_w_adv")
    trace(44, "s55")
    a("v_add_u32 v31, 2, v31")
    a("s_waitcnt vmcnt(0)")
    a("ds_write_b32 v30, v31")
    trace(45, "s55")
    if cfg.amp == "pt" and cfg.pt == "w0":
        a("s_cmp_ge_u32 s55, 2")
        a("s_cbranch_scc1 L_pw")
        mark("w0")
        a.label("L_pw")
    a(f"s_sub_u32 s54, s54, {WBUF}")
    a(f"s_cmp_lt_u32 s54, {WBASE}")
    a(f"s_cselect_b32 s50, {3*WBUF}, 0")
    a("s_add_u32 s54, s54, s50")
    a("s_add_u32 s53, s53, 2")
    a("s_cmp_ge_u32 s53, 5")
    a("s_cselect_b32 s50, 5, 0")
    a("s_sub_u32 s53, s53, s50")
    a("s_lshr_b32 s50, s50, 2")
    a("s_add_u32 s52, s52, s50")
    a("s_cmp_eq_u32 s52, 3")
    a("s_cselect_b32 s52, 0, s52")
    if cfg.jrot:
        a("s_add_u32 s37, s53, s28")
        a("s_cmp_ge_u32 s37, 5")
        a("s_cselect_b32 s50, 5, 0")
        a("s_sub_u32 s37, s37, s50")
        a("s_mul_i32 s37, s37, 3")
    else: a("s_mul_i32 s37, s53, 3")
    a("s_add_u32 s37, s37, s52")
    a("s_mul_i32 s37, s37, 6144")
    a(f"s_mov_b32 s45, {3072 ^ (92160 - 3072)}" if cfg.wun else "s_mov_b32 s43, 9")
    a("s_mov_b32 s51, s55")
    a("s_add_u32 s55, s55, 2")
    if cfg.w2wait: a("s_max_u32 s51, s51, 1")
    else:
        a("s_cmp_eq_u32 s51, 0")
        a("s_cbranch_scc1 " + ("L_w_full" if cfg.wun else "L_w_it"))
    a("s_cmp_ge_u32 s55, 15")
    a("s_cbranch_scc1 L_store")
    a("v_and_b32 v23, 3, v1")
    a("v_mul_u32_u24 v23, 260, v23")
    a(f"v_add_u32 v23, {FLAGS + 1024}, v23")
    poll(a, "L_w_poll", 23, 24, "s51", cfg.sleep)
    trace(46, "s55")
    if cfg.wun:
        a.label("L_w_full")
        for hh in range(10):
            a("s_add_u32 m0, s54, s40")
            a("s_add_u32 s50, s37, s41")
            a(f"buffer_load_dwordx4 v20, s[20:23], s50 offen{cfg.wflag} lds")
            a("s_addk_i32 s40, 3072")
            a("s_add_u32 s41, s41, s42")
            a(f"buffer_load_dwordx4 v21, s[20:23], s50 offen offset:1024{cfg.wflag} lds")
            a("s_xor_b32 s42, s42, s45")
            a(f"s_cmpk_eq_u32 s40, {WBUF}")
            a(f"buffer_load_dwordx4 v22, s[20:23], s50 offen offset:2048{cfg.wflag} lds")
            a("s_cselect_b32 s40, 0, s40")
            a("s_cselect_b32 s41, 0, s41")
        a("s_branch L_w_adv")
    else:
        a("s_branch L_w_it")
    if cfg.pad4:
        a.label("L_padl")
        a("s_branch L_compute")
    a.label("L_x_w1")
    C = sum(((thr << 4) | m) << (8 * k) for k, (thr, m) in enumerate(cfg.xb))
    assert len(cfg.xb) <= 8
    a(f"s_mov_b32 s92, {C & 0xffffffff:#x}")
    a(f"s_mov_b32 s93, {C >> 32:#x}")
    a("s_mov_b32 s55, 1")
    if cfg.trace: a("s_mov_b32 s51, 1")
    a.label("L_x_sig")
    a("v_add_u32 v31, 5, v31")
    a("s_waitcnt vmcnt(0)")
    a("ds_write_b32 v30, v31")
    trace(45, "s51")
    if cfg.amp == "pt" and cfg.pt == "w1":
        a("s_cmp_lg_u32 s15, 15")
        a("s_cbranch_scc1 L_px")
        mark("w1")
        a.label("L_px")
    a("s_mul_i32 s50, s14, -11")
    a("s_add_u32 s56, s56, s50")
    a(f"s_add_u32 s56, s56, {XCH}")
    a("s_add_u32 s57, s57, 64")
    a("s_cmp_eq_u32 s57, 192")
    a("s_cselect_b32 s57, 0, s57")
    a.label("L_x_next")
    a("s_and_b32 s15, s92, 15")
    a("s_cbranch_scc0 L_xdone")
    a("s_bfe_u32 s51, s92, 0x40004")
    a("s_lshr_b64 s[92:93], s[92:93], 8")
    a("v_and_b32 v22, 1, v1")
    a(f"v_mul_u32_u24 v22, 260, v22")
    a(f"v_add_u32 v22, {FLAGS}, v22")
    poll(a, "L_x_poll", 22, 23, "s51", cfg.sleep)
    trace(44, "s51")
    a("s_branch L_x_loop")
    if cfg.help:
        a.label("L_help")
        a("v_and_b32 v1, 63, v0")
        a("v_lshrrev_b32 v2, 6, v0")
        a("v_mul_u32_u24 v3, 43, v1")
        a("v_readfirstlane_b32 s32, v2")
        a("v_lshrrev_b32 v3, 9, v3")
        a("v_mul_u32_u24 v4, 12, v3")
        a("v_sub_u32 v4, v1, v4")
        a("v_mul_u32_u24 v3, 92160, v3")
        a("v_lshl_add_u32 v3, v4, 7, v3")
        a("s_and_b32 s33, s2, 1")
        a("s_and_b32 s3, s3, 1")
        a("s_lshl1_add_u32 s33, s3, s33")
        a("s_mulk_i32 s33, 1536")
        a("s_lshr_b32 s34, s32, 1")
        a("s_add_u32 s34, s34, 1")
        a("s_mul_i32 s34, s34, 3")
        a("s_and_b32 s35, s32, 1")
        a("s_lshl1_add_u32 s34, s35, s34")
        a("s_mulk_i32 s34, 6144")
        a("s_add_u32 s34, s34, s33")
        a("s_min_u32 s35, s32, 4")
        a("s_mul_i32 s35, s35, 3")
        a("s_add_u32 s35, s35, 1")
        a("s_mulk_i32 s35, 6144")
        a("s_add_u32 s35, s35, s33")
        a("s_waitcnt lgkmcnt(0)")
        a(f"s_mov_b32 s22, {WBYTES}"); a("s_mov_b32 s23, 0x20000")
        a("buffer_load_dword v5, v3, s[20:23], s34 offen")
        a("buffer_load_dword v6, v3, s[20:23], s35 offen")
        a("s_waitcnt vmcnt(0)")
        a("s_endpgm")
    a.label("L_xdone")
    if cfg.padf:
        a("s_lshl1_add_u32 s39, s34, s11")
        a("s_cmp_eq_u32 s33, 8")
        a("s_cselect_b32 s39, 3, s39")
        for var in range(3):
            a(f"s_cmp_eq_u32 s39, {var}")
            a(f"s_cbranch_scc1 L_padf{var}")
        a("s_branch L_padf3")
    a.label("L_store")
    a.label("L_store2")
    a(f"s_mov_b32 s26, {XBYTES}")
    a("s_mov_b32 s27, 0x20000")
    a("s_movk_i32 s49, 208")
    a("s_movk_i32 s50, 384")
    a("v_lshrrev_b32 v11, 2, v1")
    a("v_and_b32 v12, 3, v1")
    a("v_lshlrev_b32 v12, 4, v12")
    a("v_mad_u32_u24 v5, v11, s50, v12")
    a("v_mad_u32_u24 v2, v11, s49, v12")
    a("v_and_b32 v10, 1, v1")
    a("v_mul_u32_u24 v10, 260, v10")
    a("s_lshl_b32 s39, s95, 9")
    a(f"s_add_u32 s39, s39, {FLAGS + 1024}")
    a("v_add_u32 v10, s39, v10")
    a("s_add_u32 s45, s35, s36")
    a("s_or_b32 s38, s34, s95")
    a("s_cmp_eq_u32 s33, 8")
    a("s_cselect_b32 s38, 1, s38")
    a("s_cselect_b32 s43, 6, 7")
    a("s_xor_b32 s38, s38, 1")
    a("s_andn2_b32 s44, s34, s95")
    a("s_add_u32 s39, s34, 6")
    a("s_mul_i32 s39, s39, s95")
    a("s_add_u32 s39, s39, s44")
    a("s_add_u32 s39, s39, 5")
    a("s_cmp_eq_u32 s38, 1")
    a("s_cselect_b32 s39, 0, s39")
    a("s_cselect_b32 s42, 1, -1")
    def rowsetup():
        a("s_mul_i32 s40, s11, s42")
        a("s_add_u32 s39, s39, s40")
        a(f"s_mul_i32 s47, s39, {PROW}")
        a("s_add_u32 s47, s47, s45")
        a(f"s_mul_i32 s48, s39, {SROW}")
        a("v_add_u32 v12, s48, v2")
        a(f"s_mul_i32 s40, s42, {2*PROW}")
        a(f"s_mul_i32 s41, s42, {2*SROW}")
    rowsetup()
    a("s_add_u32 s51, s11, 16")
    a("s_add_u32 s44, s44, 22")
    a.label("L_st_m")
    poll(a, "L_st_mp", 10, 11, "s51", cfg.sleep)
    a(f"ds_read_b128 {vr(16,4)}, v12 offset:64")
    a("v_add_u32 v12, s41, v12")
    a("s_add_u32 s51, s51, 2")
    a("s_waitcnt lgkmcnt(0)")
    a(f"buffer_store_dwordx4 {vr(16,4)}, v5, s[24:27], s47 offen offset:64{cfg.stflag}")
    a("s_add_u32 s47, s47, s40")
    a("s_cmp_lt_u32 s51, s44")
    a("s_cbranch_scc1 L_st_m")
    if cfg.stprio: a(f"s_setprio {cfg.stprio}")
    a("s_cmp_eq_u32 s95, 1")
    a("s_cselect_b32 s39, s43, s34")
    a("s_cmp_eq_u32 s38, 1")
    a("s_cselect_b32 s39, 5, s39")
    a("s_sub_u32 s42, 0, s42")
    rowsetup()
    a("s_add_u32 s51, s11, 25")
    a("s_and_b32 s38, s38, s11")
    a("s_cbranch_scc0 L_st_go")
    a("v_and_b32 v28, 3, v1")
    a("v_mul_u32_u24 v28, 260, v28")
    a(f"v_add_u32 v28, {FLAGS + 1024}, v28")
    a(f"s_add_u32 s45, s45, {6*PROW}")
    poll(a, "L_st_s1", 28, 11, 24, cfg.sleep2)
    for k in range(2): a(f"ds_read_b128 {vr(16+4*k,4)}, v2 offset:{6*SROW + 128*k}")
    for k in range(2):
        a(f"s_waitcnt lgkmcnt({1-k})")
        a(f"buffer_store_dwordx4 {vr(16+4*k,4)}, v5, s[24:27], s45 offen offset:{128*k}{cfg.stflag}")
    a.label("L_st_go")
    poll(a, "L_st_p1", 10, 11, "s51", cfg.sleep2)
    for k in range(2): a(f"ds_read_b128 {vr(16+4*k,4)}, v12 offset:{128*k}")
    a("v_add_u32 v12, s41, v12")
    a("s_add_u32 s51, s51, 2")
    for k in range(2):
        a(f"s_waitcnt lgkmcnt({1-k})")
        a(f"buffer_store_dwordx4 {vr(16+4*k,4)}, v5, s[24:27], s47 offen offset:{128*k}{cfg.stflag}")
    a("s_add_u32 s47, s47, s40")
    a("s_cmp_lt_u32 s51, 30")
    a("s_cbranch_scc1 L_st_go")
    a.label("L_st_end")
    if cfg.amp in ("all", "pt"): a("s_branch L_ampall")
    if cfg.diag:
        stamp(a, 5)
        a("s_waitcnt vmcnt(0)")
        stamp(a, 6)
        dump_stamps(a, cfg)
    a.label("L_exit")
    a("s_endpgm")
    a.label("L_compute")
    if cfg.cbar == 0:
        a("s_waitcnt lgkmcnt(0)")
        a("s_barrier")
    a("s_sub_u32 s37, s32, 4")
    a("s_and_b32 s38, s37, 1")
    a("s_lshr_b32 s37, s37, 1")
    a("s_add_u32 s39, s34, 6")
    a("s_mul_i32 s49, s37, s39")
    a(f"v_mov_b32 v{V_CP}, v30")
    a(f"v_mov_b32 v{V_PV}, 0")
    a("v_and_b32 v32, 15, v1")
    a("v_lshrrev_b32 v33, 4, v1")
    a("v_and_b32 v34, 1, v33")
    a("v_lshrrev_b32 v35, 1, v33")
    a("v_bfe_u32 v36, v1, 2, 2")
    a("v_and_b32 v37, 3, v1")
    a(f"v_mul_u32_u24 v{V_LF}, 260, v37")
    a(f"v_add_u32 v{V_LF}, {FLAGS}, v{V_LF}")
    a(f"v_or_b32 v16, 512, v{V_LF}")
    a(f"v_xor_b32 v17, 512, v16")
    a("s_lshl_b32 s39, s38, 7")
    a("v_lshlrev_b32 v40, 5, v34")
    a("v_lshl_add_u32 v40, v35, 4, v40")
    a("v_add_u32 v40, s39, v40")
    a("s_lshl_b32 s39, s38, 5")
    a("s_add_u32 s39, s39, 64")
    a("v_lshlrev_b32 v41, 3, v33")
    a("v_add_u32 v41, s39, v41")
    a("v_mul_u32_u24 v38, 384, v32")
    a("v_add_u32 v38, s36, v38")
    a(f"v_add_u32 v{V_SA}, v38, v40")
    a(f"v_add_u32 v{V_SC}, v38, v41")
    a("v_mul_u32_u24 v38, 208, v32")
    a(f"s_mul_i32 s39, s49, {SROW}")
    a("v_add_u32 v38, s39, v38")
    a("s_lshl_b32 s39, s38, 7")
    a(f"v_lshl_add_u32 v{V_GA}, v33, 3, v38")
    a(f"v_add_u32 v{V_GA}, s39, v{V_GA}")
    a(f"v_add_u32 v{V_GB}, v38, v41")
    a(f"s_mul_i32 s47, s49, {PROW}")
    a("s_add_u32 s47, s47, s35")
    a("v_lshl_add_u32 v38, v33, 3, v36")
    a("v_mul_u32_u24 v38, 192, v38")
    a("v_lshl_add_u32 v38, v37, 3, v38")
    a(f"v_add_u32 v38, {WBASE}, v38")
    a("s_add_u32 s39, s38, 2")
    a("v_xor_b32 v39, s39, v34")
    a(f"v_lshl_add_u32 v{V_WA[0]}, v39, 5, v38")
    a("s_lshl_b32 s39, s38, 2")
    a("v_xor_b32 v39, s39, v34")
    a(f"v_lshl_add_u32 v{V_WA[1]}, v39, 5, v38")
    a("v_xor_b32 v39, 1, v39")
    a(f"v_lshl_add_u32 v{V_WA[2]}, v39, 5, v38")
    a("v_lshlrev_b32 v38, 6, v32")
    a("v_lshl_add_u32 v38, v33, 4, v38")
    a(f"s_mul_i32 s39, s49, {XROW}")
    if cfg.jrot:
        a("s_lshl_b32 s50, s28, 6")
        a("s_add_u32 s39, s39, s50")
    a(f"v_add_u32 v{V_XL}, s39, v38")
    if cfg.jrot:
        a(f"s_lshr_b32 s50, {sum(1 << (h + 1) for h in (5, 10, 15))}, s28")
        a("s_movk_i32 s53, -256")
        a("s_bitcmp1_b32 s50, 15")
        a("s_cselect_b32 s54, s53, 64")
    a(f"v_lshrrev_b32 v{V_T}, 3, v{V_XL}")
    a(f"v_and_b32 v{V_T}, 32, v{V_T}")
    a(f"v_xor_b32 v{V_XA[0]}, v{V_XL}, v{V_T}")
    a(f"v_xor_b32 v{V_XA[1]}, 32, v{V_XA[0]}")
    if cfg.mov64:
        for k in range(0, 84, 2): a(f"v_mov_b64 {vr(V_ACC+k,2)}, 0")
    else:
        for k in range(84): a(f"v_mov_b32 v{V_ACC+k}, 0")
    a(f"s_mov_b32 s40, {(1 << 6) | (1 << 11)}")
    a(f"s_mov_b32 s41, {sum(1 << (h + 1) for h in (3, 6, 9, 12))}")
    a(f"s_mov_b32 s44, {(-2*WBUF) & 0xffffffff}")
    a(f"s_mov_b32 s45, {WBUF}")
    a("s_mov_b32 s46, 2")
    if cfg.amp == "stall": a("s_mov_b32 s85, 0")
    if cfg.cbar == 1:
        a("s_waitcnt lgkmcnt(0)")
        a("s_barrier")
    if cfg.diag: stamp(a, 1)
    a(f"s_mov_b32 s26, {XBYTES}")
    a("s_mov_b32 s27, 0x20000")
    if cfg.prio: a(f"s_setprio {cfg.prio}")
    if cfg.amp in ("span", "skew"): srd(a, 80, 12, 256)
    for var in (1, 2, 3):
        a(f"s_cmp_eq_u32 s31, {var}")
        a(f"s_cbranch_scc1 L_pro{var}")
    if cfg.pads: a("s_branch L_pro0")
    fa = Asm()
    for var in range(4):
        if var % 2 == 0: a(".p2align 12")
        emit_variant(a, fa, var, cfg)
    a.lines += fa.lines
    a.label("L_end")
    for _ in range(100): a("s_endpgm")
    out += a.text()
    nv = (V_END + 7) // 8 * 8
    out += f""".section .rodata,"a"
.p2align 6
.amdhsa_kernel {NAME}_kernel
  .amdhsa_next_free_vgpr {nv}
  .amdhsa_next_free_sgpr 96
  .amdhsa_accum_offset {nv}
  .amdhsa_group_segment_fixed_size 0
  .amdhsa_kernarg_size 40
  .amdhsa_user_sgpr_count 2
  .amdhsa_user_sgpr_kernarg_segment_ptr 1
  .amdhsa_system_sgpr_workgroup_id_x 1
{cfg.kd}.end_amdhsa_kernel
"""
    return out

if __name__ == "__main__":
    p = argparse.ArgumentParser()
    p.add_argument("-o", default="standalone__dilated_atrous__vision.s")
    p.add_argument("--diag", action="store_true")
    p.add_argument("--trace", action="store_true")
    p.add_argument("--bar_pos", type=int, default=62)
    p.add_argument("--xbar", type=int, default=40)
    p.add_argument("--lead", type=int, default=5)
    p.add_argument("--safe", type=int, default=8)
    p.add_argument("--prio", type=int, default=1)
    p.add_argument("--align", type=int, default=1)
    p.add_argument("--snake", type=int, default=1)
    p.add_argument("--exper", type=int, default=2)
    p.add_argument("--order", type=int, default=2)
    p.add_argument("--wpf", type=int, default=0)
    p.add_argument("--epf", type=int, default=0)
    p.add_argument("--cpf", type=int, default=1)
    p.add_argument("--sleep", type=int, default=0)
    p.add_argument("--sleep2", type=int, default=0)
    p.add_argument("--stflag", default="sc0 sc1 nt")
    p.add_argument("--wd", type=int, default=1)
    p.add_argument("--amp", default="")
    p.add_argument("--wun", type=int, default=0)
    p.add_argument("--early", type=int, default=1)
    p.add_argument("--nearly", type=int, default=1)
    p.add_argument("--padf", type=int, default=1)
    p.add_argument("--kd", default="")
    p.add_argument("--lastflag", default=None)
    p.add_argument("--jrot", type=int, default=0)
    p.add_argument("--pt", default="")
    p.add_argument("--sg", type=int, default=0)
    p.add_argument("--addd", type=int, default=0)
    p.add_argument("--onlyw", type=int, default=-1)
    p.add_argument("--onlyb", type=int, default=-1)
    p.add_argument("--help2", dest="help", type=int, default=0)
    p.add_argument("--pg", type=int, default=1)
    p.add_argument("--alead", type=int, default=20)
    p.add_argument("--entry_last", type=int, default=0)
    p.add_argument("--pad4", type=int, default=0)
    p.add_argument("--lx", type=int, default=-1)
    p.add_argument("--al8", type=int, default=0)
    p.add_argument("--shift4", type=int, default=0)
    p.add_argument("--rush", type=int, default=30)
    p.add_argument("--fill", type=int, default=0)
    p.add_argument("--pads", type=int, default=1)
    p.add_argument("--nstage", type=int, default=5)
    p.add_argument("--spec", type=int, default=1)
    p.add_argument("--stprio", type=int, default=0)
    p.add_argument("--mov64", type=int, default=1)
    p.add_argument("--xflag", default="")
    p.add_argument("--wflag", default="")
    p.add_argument("--fixd", type=int, default=0)
    p.add_argument("--wbl2", type=int, default=0)
    p.add_argument("--bench", action="store_true")
    p.add_argument("--drop", default="")
    p.add_argument("--cmpd", type=int, default=4)
    p.add_argument("--updstep", type=int, default=1)
    p.add_argument("--xthr", type=int, default=2)
    p.add_argument("--cbar", type=int, default=0)
    p.add_argument("--w2wait", type=int, default=0)
    p.add_argument("--xb", default="3:1,4:2,5:4,6:8,8:3,9:12")
    cfg = p.parse_args()
    cfg.xb = [tuple(int(v) for v in e.split(":")) for e in cfg.xb.split(",")]
    WD = cfg.wd
    cfg.kd = "".join(f"  .amdhsa_{e}\n" for e in cfg.kd.split(",") if e)
    if cfg.lastflag is None: cfg.lastflag = cfg.stflag
    if cfg.lastflag: cfg.lastflag = " " + cfg.lastflag
    if cfg.stflag: cfg.stflag = " " + cfg.stflag
    if cfg.xflag: cfg.xflag = " " + cfg.xflag
    if cfg.wflag: cfg.wflag = " " + cfg.wflag
    open(cfg.o, "w").write(gen(cfg))
```

```python
import sys, argparse

NAME = "standalone__dilated_atrous__vision"
XBYTES = 224 * 224 * 96 * 2
WBYTES = 25 * 96 * 96 * 2
ROWB = 224 * 192
PROW = 2 * ROWB
XCH = 352 * 64
XROW = 20 * 64
WBASE = 3 * XCH
WBUF = 5 * 6144
FLAGS = WBASE + 3 * WBUF
LDS_TOTAL = FLAGS + 2048
SROW = 16 * 208
assert 13 * SROW <= 2 * XCH

class Asm:
    def __init__(self):
        self.lines = []
    def __call__(self, s):
        self.lines.append("    " + s)
    def label(self, l):
        self.lines.append(l + ":")
    def comment(self, s):
        self.lines.append("    ; " + s)
    def text(self):
        return "\n".join(self.lines) + "\n"

def vr(b, n):
    return f"v[{b}:{b+n-1}]"

V_XL = 1
V_XA = (2, 3)
V_WA = (4, 5, 6)
V_SA, V_SC = 7, 8
V_GA, V_GB = 9, 10
V_T = 11
V_XB = (22, 23)
V_CP = 25
V_LF = 26
V_PV = 27
V_F = 28
V_X = 32
V_W = 76
V_ACC = 136
V_EXTRA = V_ACC + 84
V_END = V_EXTRA + 32

TYPES = {
    0: (range(0, 6), range(0, 7), range(0, 6)),
    1: (range(0, 6), range(1, 7), range(0, 7)),
    2: (range(0, 7), range(1, 7), range(1, 7)),
    3: (range(0, 6), range(0, 6), range(0, 6)),
}
OFF = {0: 0, 1: 1, 2: 1, 3: 0}
SPECIAL = {0: 6, 1: 0, 2: 0, 3: None}
LASTHEAD = {
    0: [(0, 0), (0, 1), (6, 1), (0, 2)],
    1: [(0, 0), (1, 0), (1, 1), (0, 2), (1, 2)],
    2: [(0, 0), (1, 0), (1, 1), (2, 0), (1, 2), (2, 1), (2, 2)],
    3: [(0, 0), (0, 1), (1, 0), (0, 2), (1, 1), (1, 2)],
}

def acc(rho, t): return V_ACC + 4 * (rho * 3 + t)
def wreg(i, t): return V_W + 4 * (i * 3 + t)
def xreg(q): return V_X + 4 * q

def chain(rho, t, rev):
    r = list(range(5))
    if rev: r.reverse()
    return [(rho, i, t, rho + i) for i in r]

def steady_order(var, cfg, par=(1, 1, 1)):
    ms = []
    for t in range(3):
        for j, rho in enumerate(TYPES[var][t]): ms += chain(rho, t, cfg.snake and j % 2 == par[t])
    return ms

DIRECT = {0: (5,), 1: (6, 5), 2: (6,), 3: (5,)}

def last_tiles(var):
    order = list(LASTHEAD[var])
    rows = [r for r in range(7) if r not in DIRECT[var]] + list(DIRECT[var])
    for r in rows:
        for t in ((0, 1, 2) if r not in DIRECT[var] else (1, 2, 0)):
            if r in TYPES[var][t] and (r, t) not in order: order.append((r, t))
    return order

def last_order(var, cfg, par=1):
    ms = []
    for j, (r, t) in enumerate(last_tiles(var)): ms += chain(r, t, cfg.snake and j % 2 == par and j >= 4)
    return ms

def uses(ms):
    first, last = {}, {}
    for k, (rho, i, t, q) in enumerate(ms):
        for key in (("w", i, t, 0), ("w", i, t, 1), ("x", q)):
            first.setdefault(key, k); last[key] = k
    return first, last

def read_text(nm):
    if nm[0] == "x":
        q = nm[1]
        return f"ds_read_b128 {vr(xreg(q),4)}, v{V_XA[q & 1]} offset:{q*XROW}"
    _, i, t, h = nm
    return f"ds_read_b64_tr_b16 {vr(wreg(i,t)+2*h,2)}, v{V_WA[t]} offset:{i*6144 + h*768}"

def edf(reads, lo, hi, lead, busy=()):
    placed, pending = {}, list(reads)
    for k in range(lo, hi):
        avail = [r for r in pending if r[1] <= k]
        if not avail: continue
        r = min(avail, key=lambda r: r[2])
        placed[k] = r[0]
        pending.remove(r)
        assert r[2] - k >= lead, (r, k)
    assert not pending, pending
    return placed

def mfma_text(m):
    rho, i, t, q = m
    return f"v_mfma_f32_16x16x32_bf16 {vr(acc(rho,t),4)}, {vr(wreg(i,t),4)}, {vr(xreg(q),4)}, {vr(acc(rho,t),4)}"

class LdsQ:
    def __init__(self, a, safe):
        self.a, self.safe = a, safe
        self.ops = []
        self.done = 0
        self.waits = []
    def issue(self, name, time, text=None):
        self.ops.append((name, time))
        if text: self.a(text)
    def need(self, names, time):
        idx = max(max(j for j, (nm, _) in enumerate(self.ops) if nm == n) for n in names) + 1
        if idx <= self.done: return
        for j, (nm, tm) in enumerate(self.ops):
            if tm <= time - 1 - self.safe: idx = max(idx, j + 1)
        cnt = len(self.ops) - idx
        if cnt > 14:
            idx += cnt - 14; cnt = 14
        self.a(f"s_waitcnt lgkmcnt({cnt})")
        self.waits.append((time, cnt, len(self.ops)))
        self.done = idx

WD = 1
def poll(a, label, vaddr, vtmp, sneed, sleep, wd=True):
    a.label(label)
    if WD and wd:
        a("s_add_u32 s94, s94, 1")
        a("s_bitcmp1_b32 s94, 18")
        a("s_cbranch_scc1 L_exit")
    a(f"ds_read_b32 v{vtmp}, v{vaddr}")
    a("s_waitcnt lgkmcnt(0)")
    a(f"v_cmp_gt_u32 vcc, {sneed}, v{vtmp}")
    if sleep:
        a(f"s_cbranch_vccz {label}_ok")
        a(f"s_sleep {sleep}")
        a(f"s_branch {label}")
        a.label(label + "_ok")
    else:
        a(f"s_cbranch_vccnz {label}")

def isize(l):
    l = l.strip()
    op = l.split()[0]
    if op.startswith(("v_mfma", "ds_", "buffer_", "v_cvt_pk")) or op.endswith("_e64"): return 8
    import re
    for tok in re.split(r"[ ,]+", l)[1:]:
        if re.fullmatch(r"-?\d+|0x[0-9a-f]+", tok) and not op.startswith(("s_waitcnt", "s_nop")):
            v = int(tok, 0)
            if not (-16 <= v <= 64): return 8
    return 4

def align8(lines):
    out = []
    for l in lines:
        op = l.strip().split()[0]
        if op.startswith("v_") and isize(l) == 4:
            l = l.replace(op, op + "_e64", 1)
        out.append(l)
    res, off = [], 0
    for l in out:
        sz = isize(l)
        if sz == 8 and off % 8 == 4:
            res.append("    s_nop 0"); off += 4
        res.append(l); off += sz
    if off % 8 == 4: res.append("    s_nop 0")
    return res

def emit_variant(a, fa, var, cfg):
    bar = cfg.bar_pos if var != 3 else cfg.bar_pos - 3
    best = None
    for par in [(p0, 1, p2) for p0 in (1, 0) for p2 in (1, 0)]:
        ms = steady_order(var, cfg, par)
        n = len(ms)
        first, last = uses(ms)
        reads = [(key, max(last[key], bar, n if (key[0] == "w" and key[2] == 2) else 0), n + first[key]) for key in first]
        placed = edf(reads, bar, n + bar - 16, 0)
        ld = min(n + first[nm] - k for k, nm in placed.items())
        if best is None or ld > best[0]: best = (ld, par, ms, first, last, placed)
    ld, par, ms, first, last, placed = best
    print(f"variant {var}: snake parity {par}, min lead {ld}", file=sys.stderr)
    tail = [(k, placed[k]) for k in sorted(placed) if k < n]
    head = [(k - n, placed[k]) for k in sorted(placed) if k >= n]
    slow = []
    hb, tb = Asm(), Asm()
    q = LdsQ(hb, cfg.safe)
    for k, nm in tail: q.issue(nm, k - n)
    headd, taild = dict(head), dict(tail)
    extra = {}
    def put(k, s): extra.setdefault(k, []).append(s)
    krel = max(k for k, nm in head) + 1
    put(krel - 1, f"v_add_u32 v{V_PV}, 1, v{V_PV}")
    upd = (["s_bitcmp1_b32 s40, s46", f"s_cselect_b32 s42, {XCH}, 0",
            "s_bitcmp1_b32 s50, s46", "s_cselect_b32 s51, s53, 64", "s_add_u32 s42, s42, s51"] if cfg.jrot else
           ["s_bitcmp1_b32 s40, s46", f"s_cselect_b32 s42, {XCH - 4*64}, 64"]) + [
           "s_bitcmp1_b32 s41, s46", "s_cselect_b32 s43, s44, s45",
           "s_cmp_eq_u32 s46, 14", "s_cselect_b32 s49, 1000, s46",
           f"v_add_u32 v{V_XL}, s42, v{V_XL}", f"v_lshrrev_b32 v{V_T}, 3, v{V_XL}", f"v_and_b32 v{V_T}, 32, v{V_T}",
           f"v_xor_b32 v{V_XA[0]}, v{V_XL}, v{V_T}", f"v_xor_b32 v{V_XA[1]}, 32, v{V_XA[0]}"]
    upd += [f"v_add_u32 v{V_WA[t]}, s43, v{V_WA[t]}" for t in range(3)]
    b0 = krel + 2
    for j, u in enumerate(upd): put(b0 + cfg.updstep * j, u)
    kflag = bar - cfg.cmpd - 9
    assert b0 + cfg.updstep * len(upd) <= kflag
    cur = hb
    for k, m in enumerate(ms):
        rho, i, t, qq = m
        q.need([("w", i, t, 0), ("w", i, t, 1), ("x", qq)], k)
        cur(mfma_text(m))
        D = cfg.drop
        for s in extra.get(k, []): cur(s)
        if k == krel: q.issue(("rel",), k, f"ds_write_b32 v{V_CP}, v{V_PV}")
        if k == kflag: q.issue(("flag",), k, f"ds_read_b32 v{V_F}, v{V_LF}")
        if k == bar - cfg.cmpd - 1: q.need([("flag",)], k + 1)
        if k == bar - cfg.cmpd: cur(f"v_cmp_gt_u32 vcc, s49, v{V_F}")
        if k == bar:
            cur = tb; q.a = tb
        drop = lambda nm: ("l" in D and k in taild) or ("w" in D and nm[0] == "w" and k in taild) or ("x" in D and nm[0] == "x")
        if k in headd: q.issue(headd[k], k, read_text(headd[k]) if not drop(headd[k]) else None)
        if k in taild: q.issue(("next",) + taild[k], k, read_text(taild[k]) if not drop(taild[k]) else None)
        if k == n - 9: cur("s_add_u32 s46, s46, 1")
    kinds = ("w", "x") if ((var < 2 and cfg.order == 1) or cfg.order == 3) else ("x", "w")
    ent = [[nm for _, nm in sorted(tail, key=lambda e: first[e[1]]) if nm[0] == kd] for kd in kinds]
    late = ent[1]
    def entry_ok(m):
        done = len(late) - m
        wi = 0
        for k, (rho, i, t, qq) in enumerate(ms):
            while wi < len(q.waits) and q.waits[wi][0] <= k:
                _, cnt, nops = q.waits[wi]; wi += 1
                body_ops = nops - len(tail)
                done = max(done, len(late) - max(0, cnt - body_ops))
            for nm in (("w", i, t, 0), ("w", i, t, 1), ("x", qq)):
                if nm in late and late.index(nm) >= done: return False
        return True
    ment = max(mm for mm in range(min(len(late), 14) + 1) if entry_ok(mm))
    def emit_entry():
        a.label(f"L_pro{var}")
        if cfg.amp == "pt" and cfg.pt == "lpro":
            a("s_memrealtime s[86:87]")
            a("s_waitcnt lgkmcnt(0)")
        poll(a, f"L_p0_{var}", 16 if kinds[0] == "x" else 17, V_F, 1, 0)
        for nm in ent[0]: a(read_text(nm))
        poll(a, f"L_p1_{var}", 16 if kinds[1] == "x" else 17, V_F, 1, 0)
        if cfg.diag: stamp(a, 3)
        if cfg.amp and cfg.amp != "pt":
            a("s_memrealtime s[86:87]")
            a("s_waitcnt lgkmcnt(0)")
        if cfg.prio and cfg.plate: a(f"s_setprio {cfg.prio}")
        for nm in late: a(read_text(nm))
        a(f"s_waitcnt lgkmcnt({ment})")
        a(f"s_branch L_head{var}")
    def emit_slow(a=a):
        if cfg.amp == "stall":
            a.label(f"L_slow{var}")
            a("s_memrealtime s[76:77]")
            poll(a, f"L_slowb{var}", V_LF, V_F, "s49", 0)
            a("s_memrealtime s[78:79]")
            a("s_waitcnt lgkmcnt(0)")
            a("s_sub_u32 s78, s78, s76")
            if cfg.sg:
                a(f"s_cmp_eq_u32 s46, {cfg.sg}")
                a("s_cselect_b32 s78, s78, 0")
            a("s_add_u32 s85, s85, s78")
        else:
            poll(a, f"L_slow{var}", V_LF, V_F, "s49", 0)
        a("s_cmp_eq_u32 s46, 14")
        a(f"s_cbranch_scc1 L_fin{var}")
        a(f"s_branch L_top{var}")
    if not cfg.entry_last: emit_entry()
    if cfg.al8:
        hb.lines = align8(hb.lines); tb.lines = align8(tb.lines)
    if cfg.align: a(".p2align 6")
    if cfg.pads:
        a.label(f"L_pad{var}")
        a("s_branch L_compute")
        a("s_nop 0")
    a.label(f"L_top{var}")
    a.lines += tb.lines
    a.label(f"L_head{var}")
    a.lines += hb.lines
    a(f"s_cbranch_vccz L_top{var}")
    a("s_min_u32 s49, s49, 15")
    a(f"v_cmp_gt_u32 vcc, s49, v{V_F}")
    a(f"s_cbranch_vccz L_fin{var}")
    emit_slow()
    a = fa
    a(".p2align 12")
    a.label(f"L_padf{var}")
    a("s_branch L_store2")
    a("s_nop 0")
    a.label(f"L_fin{var}")
    a.lines += tb.lines
    if cfg.diag: stamp(a, 4)
    if cfg.cpf: a("s_waitcnt vmcnt(0)")
    rows = TYPES[var]
    down = var == 0
    prow = sorted(set(rows[1]) | set(rows[2]), reverse=down)
    lastrow = prow[-1]
    srow2 = sorted(rows[0], reverse=not down)
    def build(pa, pb):
        out = []
        for j, r in enumerate(rows[0]):
            out += [m + (13, 0) for m in chain(r, 0, cfg.snake and j % 2 == pa)]
        for j, r in enumerate(srow2):
            out += [m + (14, 0) for m in chain(r, 0, cfg.snake and j % 2 == pb)]
        keep = set(range(srow2[-1], srow2[-1] + 5))
        flip = 0
        tiles = []
        for r in prow:
            ts = [t for t in ((1, 2) if flip == 0 else (2, 1)) if r in rows[t]]
            if r == lastrow: ts = [1, 2]
            for j, t in enumerate(ts):
                gs = (14, 13) if j == 0 else (13, 14)
                for g in gs:
                    for m in chain(r, t, (j == 1) != down):
                        out.append(m + (g, 0 if (g == 14 and m[3] in keep) else 1))
                tiles.append((r, t))
            flip = 0 if ts[-1] == 1 else 1
        return out, tiles
    def names(m):
        rho, i, t, qq, g, occ = m
        return [("w", g, i, t, 0), ("w", g, i, t, 1), ("x", g, qq, occ)]
    frag = lambda nm: nm if nm[0] == "x" else nm[:4]
    conv = lambda nm: ("x", 13, nm[1], 0) if nm[0] == "x" else ("w", 13) + nm[1:]
    pre = [(k - n, conv(nm)) for k, nm in tail]
    prenames = set(nm for _, nm in pre)
    slots = [V_X + 4 * j for j in range(26)] + [V_EXTRA + 4 * j for j in range(8)]
    best = None
    for pa in (1, 0):
      for pb in (1, 0):
        ls, ptiles = build(pa, pb)
        lf, ll = {}, {}
        for k, m in enumerate(ls):
            for nm in names(m):
                lf.setdefault(nm, k); ll[nm] = k
        free = {sl: 0 for sl in slots}
        regs = {}
        for nm in prenames:
            sl = xreg(nm[2]) if nm[0] == "x" else wreg(nm[2], nm[3])
            regs[frag(nm)] = sl
            free[sl] = max(free[sl], ll.get(nm, 0))
        rds, early = [], {}
        for nm in sorted(lf, key=lambda v: lf[v]):
            if nm in prenames: continue
            fr = frag(nm)
            if fr not in regs:
                ok = [sl for sl in slots if free[sl] <= lf[nm] - cfg.alead]
                sl = max(ok, key=lambda v: free[v]) if ok else min(slots, key=lambda v: free[v])
                regs[fr] = sl; early[fr] = free[sl]; free[sl] = ll[nm]
            e = early.get(fr, 0)
            if nm[0] == "x" and nm[1] == 14: e = max(e, 6)
            rds.append((nm, e, lf[nm]))
        try: lp = edf(rds, 0, len(ls), 0)
        except AssertionError: continue
        ld2 = min([lf[nm] - k for k, nm in lp.items()] + [lf[nm] - k for k, nm in pre if nm in lf])
        if best is None or ld2 > best[0]: best = (ld2, (pa, pb), ls, lf, lp, regs, ptiles)
    ld2, pars, ls, lf, lplaced, regs, ptiles = best
    print(f"   final segment: parity {pars} min lead {ld2} reads {len(lplaced)}", file=sys.stderr)
    def rd_text(nm):
        if nm[0] == "x":
            _, g, qq, occ = nm
            return f"ds_read_b128 {vr(regs[nm],4)}, v{(V_XA if g == 13 else V_XB)[qq & 1]} offset:{qq*XROW}"
        _, g, i, t, h = nm
        return f"ds_read_b64_tr_b16 {vr(regs[frag(nm)]+2*h,2)}, v{V_WA[t]} offset:{(g-13)*WBUF + i*6144 + h*768}"
    n2 = len(ls)
    q = LdsQ(a, cfg.safe)
    for k, nm in pre: q.issue(nm, k)
    endk = {}
    for k, m in enumerate(ls): endk[(m[0], m[2])] = k
    def cvt2(D, S, tile):
        return [(tile, f"v_cvt_pk_bf16_f32 v{D}, v{S}, v{S+1}"), (tile, f"v_cvt_pk_bf16_f32 v{D+1}, v{S+2}, v{S+3}")]
    seq = [(None, f"v_add_u32 v{V_XL}, {'s54' if cfg.jrot else 64}, v{V_XL}"), (None, f"v_lshrrev_b32 v{V_T}, 3, v{V_XL}"), (None, f"v_and_b32 v{V_T}, 32, v{V_T}"),
           (None, f"v_xor_b32 v{V_XB[0]}, v{V_XL}, v{V_T}"), (None, f"v_xor_b32 v{V_XB[1]}, 32, v{V_XB[0]}")]
    for j, r in enumerate(srow2):
        S = acc(r, 0)
        seq += cvt2(S, S, (r, 0))
        seq += [(None, f"v_mov_b32 v{V_PV}, {16 + j}"), (None, f"ds_write_b64 v{V_GB}, {vr(S,2)} offset:{r*SROW}"),
                (None, f"ds_write_b32 v{V_CP}, v{V_PV}")]
    kfull, seen = 0, set()
    for (r, t) in ptiles:
        S = acc(r, t)
        if r != lastrow:
            seq += cvt2(S, S, (r, t))
            pv = None
            if not (r in rows[1] and r in rows[2]): pv = 24
            elif r in seen:
                pv = 25 + kfull; kfull += 1
            seen.add(r)
            if pv: seq.append((None, f"v_mov_b32 v{V_PV}, {pv}"))
            seq.append((None, f"ds_write_b64 v{V_GA}, {vr(S,2)} offset:{r*SROW + (32 if t == 2 else 0)}"))
            if pv: seq.append((None, f"ds_write_b32 v{V_CP}, v{V_PV}"))
        elif t == 1:
            seq += cvt2(S, S, (r, t))
            seq.append((None, f"s_add_u32 s48, s47, {r*PROW}"))
        else:
            A = acc(r, 1)
            seq += cvt2(A + 2, S, (r, t))
            seq.append(("W2", f"v_permlane16_swap_b32 v{A}, v{A+2}"))
            seq.append((None, f"v_permlane16_swap_b32 v{A+1}, v{A+3}"))
            seq.append((None, f"buffer_store_dwordx4 {vr(A,4)}, v{V_SA}, s[24:27], s48 offen{cfg.lastflag}"))
    assert kfull == 5
    def states(frm):
        c = 0
        for l in a.lines[frm + 1:]:
            l = l.strip()
            if l.endswith(":") or l.startswith(";") or l.startswith("."): continue
            c += int(l.split()[1]) + 1 if l.startswith("s_nop") else 1
        return c
    done_at = {}
    last_valu = [0]
    def missing(dep):
        if dep is None: return 0
        if dep == "W2": return max(0, 2 - states(last_valu[0]))
        if dep not in done_at: return None
        return max(0, 8 - states(done_at[dep]))
    nl = [0]
    def emit_ex(txt, k):
        for key, pat in (("C", "v_cvt"), ("P", "v_permlane"), ("V", "ds_write_b64"), ("F", "ds_write_b32"), ("S", "buffer_store")):
            if key in cfg.drop and txt.startswith(pat): return
        if txt.startswith("ds_"):
            nl[0] += 1; q.issue(("st", nl[0]), k, txt)
        else: a(txt)
        if txt.startswith("v_cvt"): last_valu[0] = len(a.lines) - 1
    for k, m in enumerate(ls):
        rho, i, t, qq, g, occ = m
        q.need(names(m), k)
        a(f"v_mfma_f32_16x16x32_bf16 {vr(acc(rho,t),4)}, {vr(regs[('w',g,i,t)],4)}, {vr(regs[('x',g,qq,occ)],4)}, {vr(acc(rho,t),4)}")
        if endk[(rho, t)] == k: done_at[(rho, t)] = len(a.lines) - 1
        cnt = 0
        if k in lplaced:
            q.issue(lplaced[k], k, rd_text(lplaced[k])); cnt += 1
        lim = cfg.exper if (k >= n2 - cfg.rush or k < 6) else 1
        if k < 6: cnt = 1
        while seq and cnt < lim and k < n2 - 1:
            miss = missing(seq[0][0])
            if miss == 0:
                emit_ex(seq.pop(0)[1], k); cnt += 1
            else:
                if miss is not None and miss > 1 and cnt == 0 and k >= n2 - cfg.fill: a("s_nop 1")
                break
    while seq:
        miss = missing(seq[0][0])
        if miss: a(f"s_nop {miss - 1}")
        emit_ex(seq.pop(0)[1], n2)
    if cfg.diag:
        stamp(a, 5)
        a("s_waitcnt vmcnt(0)")
        stamp(a, 6)
        a("s_branch L_dump")
    elif cfg.amp:
        if var == 0: a.label("L_ampall")
        a("s_waitcnt vmcnt(0)")
        a("s_memrealtime s[88:89]")
        a("s_waitcnt lgkmcnt(0)")
        if cfg.amp in ("span", "skew"):
            a("v_mov_b32 v4, 0")
            a("buffer_load_dwordx2 v[6:7], v4, s[80:83], 0 offen sc0 sc1")
            a("s_waitcnt vmcnt(0)")
            a("v_readfirstlane_b32 s86, v6")
            a("v_readfirstlane_b32 s58, v7")
            a("s_nop 3")
            a("s_not_b32 s58, s58")
        lo, hi = {"pro": (58, 86), "all": (58, 88), "loop": (86, 88), "none": (58, 58), "span": (58, 88), "skew": (58, 86), "stall": (58, 58), "pt": (58, 86)}[cfg.amp]
        a(f"s_sub_u32 s90, s{hi}, s{lo}")
        a("s_mul_i32 s90, s90, 10")
        if cfg.fixd: a(f"s_mov_b32 s90, {cfg.fixd}")
        if cfg.amp == "stall": a("s_mul_i32 s90, s85, 10")
        if cfg.onlyw >= 0:
            a(f"s_cmp_eq_u32 s32, {cfg.onlyw}")
            a("s_cselect_b32 s90, s90, 0")
        if cfg.onlyb >= 0:
            a(f"s_cmp_eq_u32 s2, {cfg.onlyb}")
            a("s_cselect_b32 s90, s90, 0")
        if cfg.addd: a(f"s_cselect_b32 s91, {cfg.addd}, 0"); a("s_add_u32 s90, s90, s91")
        if cfg.wbl2:
            a("buffer_wbl2 sc1")
        a.label(f"L_amp{var}")
        a("s_memrealtime s[76:77]")
        a("s_waitcnt lgkmcnt(0)")
        a("s_sub_u32 s91, s76, s88")
        a("s_cmp_lt_u32 s91, s90")
        a(f"s_cbranch_scc1 L_amp{var}")
        a("s_endpgm")
    else:
        a("s_endpgm")

def stamp(a, idx):
    a(f"s_memtime s[{60+2*idx}:{61+2*idx}]")
    if idx in (3, 5):
        a(f"s_memrealtime s[{86 if idx == 3 else 88}:{87 if idx == 3 else 89}]")
    a("s_waitcnt lgkmcnt(0)")

def dump_stamps(a, cfg):
    a.label("L_dump")
    a("s_memrealtime s[76:77]")
    a("s_getreg_b32 s78, hwreg(HW_REG_HW_ID)")
    a("s_getreg_b32 s79, hwreg(HW_REG_XCC_ID)")
    a("s_waitcnt lgkmcnt(0)")
    a("s_mov_b32 s80, s12")
    a("s_mov_b32 s81, s13")
    a("s_mov_b32 s82, 0x100000")
    a("s_mov_b32 s83, 0x20000")
    a("s_lshl_b32 s84, s2, 3")
    a("s_add_u32 s84, s84, s32")
    a("s_lshl_b32 s84, s84, 6")
    a("v_mov_b32 v4, 0")
    for k, s in enumerate([60, 62, 64, 66, 68, 70, 72, 74, 76, 77, 78, 79, 58, 59, 86, 88]):
        a(f"v_mov_b32 v5, s{s}")
        a(f"buffer_store_dword v5, v4, s[80:83], s84 offen offset:{4*k}")
        a("s_nop 1")
    a("v_and_b32 v1, 63, v0")
    a("v_lshlrev_b32 v4, 2, v1")
    a("v_cmp_gt_u32 vcc, 16, v1")
    a("s_and_saveexec_b64 s[92:93], vcc")
    a("s_lshl_b32 s84, s84, 2")
    a("s_add_u32 s84, s84, 0x40000")
    for k in range(3):
        a(f"buffer_store_dword v{44+k}, v4, s[80:83], s84 offen offset:{64*k}")
    a("s_waitcnt vmcnt(0)")
    a("s_endpgm")

def srd(a, d, p, size):
    a(f"s_mov_b32 s{d}, s{p}")
    a(f"s_and_b32 s{d+1}, s{p+1}, 0xffff")
    a(f"s_mov_b32 s{d+2}, {size}")
    a(f"s_mov_b32 s{d+3}, 0x20000")

def gen(cfg):
    a = Asm()
    hdr = open("standalone__dilated_atrous__vision.s.ref").read().splitlines()
    head = [l for l in hdr[:8] if l.startswith(";") and "@launch" not in l]
    out = "\n".join(head) + "\n"
    out += f"; @launch grid=(256,1,1) block=(512,1,1) lds={LDS_TOTAL}\n"
    out += """;
; Dilated 5x5 convolution (rate 2) as an implicit GEMM on v_mfma_f32_16x16x32_bf16, fp32 accumulation.
;               five kernel rows from registers, weights are read with ds_read_b64_tr_b16
; The text below is emitted by a generator script (schedule, waits and register assignment derived there).
"""
    out += f""".amdgcn_target "amdgcn-amd-amdhsa--gfx950"
.text
.globl {NAME}_kernel
{".p2align 12" + chr(10) if cfg.pg else ""}.p2align 8
.type {NAME}_kernel,@function
{NAME}_kernel:
"""
    def mark(name):
        if cfg.amp == "pt" and cfg.pt == name:
            a("s_memrealtime s[86:87]")
            a("s_waitcnt lgkmcnt(0)")
    def trace(reg, idx):
        if cfg.trace:
            a("s_memtime s[90:91]")
            a(f"s_mov_b32 m0, {idx}")
            a("s_waitcnt lgkmcnt(0)")
            a(f"v_writelane_b32 v{reg}, s90, m0")
    if cfg.diag:
        a("s_memtime s[60:61]")
        a("s_memrealtime s[58:59]")
        a("s_load_dwordx2 s[12:13], s[0:1], 32")
    if cfg.amp: a("s_memrealtime s[58:59]")
    if cfg.amp == "pt": a("s_memrealtime s[86:87]")
    if cfg.amp in ("span", "skew"): a("s_load_dwordx2 s[12:13], s[0:1], 24")
    a("s_load_dwordx2 s[16:17], s[0:1], 0")
    a("s_load_dwordx2 s[20:21], s[0:1], 8")
    a("s_load_dwordx2 s[24:25], s[0:1], 16")
    if WD: a("s_mov_b32 s94, 0")
    a("s_cmp_ge_u32 s2, 256")
    a("s_cbranch_scc1 L_exit")
    if cfg.lx < 0:
        a("s_and_b32 s28, s2, 1")
        a("s_bfe_u32 s3, s2, 0x20001")
        a("s_lshl_b32 s3, s3, 5")
        a("s_lshr_b32 s33, s2, 3")
        a("s_add_u32 s3, s3, s33")
        a("s_cmp_ge_u32 s3, 126")
        a("s_cbranch_scc1 " + ("L_help" if cfg.help else "L_exit"))
    else:
        a("s_and_b32 s3, s2, 7")
        a(f"s_sub_u32 s3, s3, {cfg.lx + 1}")
        a("s_and_b32 s3, s3, 7")
        a("s_lshl_b32 s3, s3, 5")
        a("s_lshr_b32 s33, s2, 3")
        a("s_add_u32 s3, s3, s33")
        a("s_cmp_ge_u32 s3, 252")
        a("s_cbranch_scc1 L_exit")
        a("s_cmp_ge_u32 s3, 224")
        a("s_cselect_b32 s33, 14, 112")
        a("s_cselect_b32 s34, 224, 0")
        a("s_cselect_b32 s29, 112, 0")
        a("s_sub_u32 s3, s3, s34")
        a("s_cmp_ge_u32 s3, s33")
        a("s_cselect_b32 s28, 1, 0")
        a("s_cselect_b32 s33, s33, 0")
        a("s_sub_u32 s3, s3, s33")
        a("s_add_u32 s3, s3, s29")
    a("v_lshrrev_b32 v2, 6, v0")
    a("v_and_b32 v1, 63, v0")
    a("v_readfirstlane_b32 s32, v2")
    a("v_lshlrev_b32 v30, 2, v0")
    a(f"v_add_u32 v30, {FLAGS}, v30")
    a("v_mov_b32 v31, 0")
    a("ds_write_b32 v30, v31")
    a("s_mul_i32 s33, s3, 4682")
    a("s_lshr_b32 s33, s33, 16")
    a("s_mul_i32 s34, s33, 14")
    a("s_sub_u32 s34, s3, s34")
    a("s_and_b32 s29, s34, 1")
    a("s_lshr_b32 s30, s34, 1")
    a("s_lshl_b32 s30, s30, 4")
    a("s_mul_i32 s31, s33, 25")
    a("s_lshr_b32 s31, s31, 1")
    a("s_and_b32 s34, s33, 1")
    a("s_lshl_b32 s35, s31, 1")
    a("s_add_u32 s35, s35, s28")
    a(f"s_mul_i32 s35, s35, {ROWB}")
    a("s_lshl_b32 s36, s30, 1")
    a("s_add_u32 s36, s36, s29")
    a("s_mul_i32 s36, s36, 192")
    a("s_lshl_b32 s52, s29, 1")
    a("s_sub_u32 s52, 2, s52")
    if cfg.jrot == 1:
        a("s_and_b32 s28, s2, 7")
        a("s_cmp_ge_u32 s28, 5")
        a("s_cselect_b32 s37, 4, 0")
        a("s_sub_u32 s28, s28, s37")
    elif cfg.jrot == 2:
        a("s_mul_i32 s37, s2, 205")
        a("s_lshr_b32 s37, s37, 10")
        a("s_mul_i32 s37, s37, 5")
        a("s_sub_u32 s28, s2, s37")
    a("s_cmp_ge_u32 s32, 4")
    if cfg.cpf:
        a("s_cbranch_scc0 L_ld")
        a("s_bfe_u32 s31, s32, 0x10001")
        a("s_lshl1_add_u32 s31, s34, s31")
        a("s_cmp_eq_u32 s33, 8")
        a("s_cselect_b32 s31, 3, s31")
        a("s_getpc_b64 s[38:39]")
        a.label("L_pc")
        a("s_lshr_b32 s37, s2, 1")
        a("s_and_b32 s37, s37, 0x7c")
        a("s_add_u32 s37, s37, s32")
        a("s_min_u32 s37, s37, (L_end-L_pc)/256")
        a("s_lshl_b32 s37, s37, 8")
        a("s_add_u32 s38, s38, s37")
        a("s_addc_u32 s39, s39, 0")
        a("v_mov_b32 v12, s38")
        a("v_mov_b32 v13, s39")
        a("global_load_dword v14, v[12:13], off")
        a("global_load_dword v15, v[12:13], off offset:128")
        if cfg.pads:
            if cfg.pad4:
                a("s_cmp_eq_u32 s32, 4")
                a("s_cbranch_scc1 L_padl")
            a("s_bitcmp1_b32 s32, 0")
            a("s_cbranch_scc0 L_compute")
            a("s_cmp_eq_u32 s31, 0")
            a("s_cbranch_scc1 L_pad0")
            a("s_cmp_eq_u32 s31, 1")
            a("s_cbranch_scc1 L_pad1")
            a("s_cmp_eq_u32 s31, 2")
            a("s_cbranch_scc1 L_pad2")
            a("s_branch L_pad3")
        else:
            a("s_branch L_compute")
        a.label("L_ld")
    else:
        a("s_cbranch_scc1 L_compute")
    if cfg.bench:
        a("v_mov_b32 v31, 100")
        a("ds_write_b32 v30, v31")
        a("s_waitcnt lgkmcnt(0)")
        a("s_barrier")
        a("s_branch L_dump")
    a("s_add_u32 s37, s35, s36")
    a(f"s_sub_u32 s37, s37, {2*PROW + 2*384}")
    a("s_sub_u32 s38, s30, 2")
    a("s_cmp_eq_u32 s29, 0")
    a("s_cselect_b32 s14, 32, -32")
    a("s_cselect_b32 s15, 0, 320")
    a(f"s_mul_i32 s10, s14, {8*PROW//32}")
    a("s_and_b32 s11, s32, 1")
    a("s_lshl_b32 s39, s11, 4")
    a("s_add_u32 s15, s15, s39")
    a("v_lshrrev_b32 v13, 2, v1")
    a("v_add_u32 v13, s15, v13")
    a("v_lshrrev_b32 v14, 3, v1")
    a("v_and_b32 v14, 2, v14")
    a("v_and_b32 v15, 3, v1")
    a("v_xor_b32 v14, v14, v15")
    a("v_lshlrev_b32 v14, 4, v14")
    a("v_add_u32 v14, s37, v14")
    a("v_bfrev_b32 v19, 1")
    a("s_movk_i32 s39, 3277")
    a(f"s_mov_b32 s49, {PROW}")
    a("s_movk_i32 s50, 384")
    a("s_movk_i32 s51, 112")
    for b in range(5):
        a("v_mul_u32_u24 v15, s39, v13")
        a("v_lshrrev_b32 v15, 16, v15")
        a("v_mul_u32_u24 v16, 20, v15")
        a("v_sub_u32 v16, v13, v16")
        a("v_add_u32 v17, s38, v16")
        a("v_cmp_gt_u32 vcc, s51, v17")
        a("v_mad_u32_u24 v18, v15, s49, v14")
        a("v_mad_u32_u24 v18, v16, s50, v18")
        a(f"v_cndmask_b32 v{2+b}, v19, v18, vcc")
        if b < 4: a("v_add_u32 v13, s14, v13")
        a(f"v_add_u32 v{7+b}, s10, v{2+b}")
    a("v_add_u32 v12, s10, v7")
    a("s_lshl_b32 s57, s52, 6")
    a("s_lshl_b32 s56, s15, 6")
    a("s_lshl_b32 s14, s14, 6")
    a("v_lshlrev_b32 v20, 4, v1")
    a("v_cmp_gt_u32 vcc, 32, v1")
    a("v_xor_b32 v22, 32, v20")
    a("s_lshr_b32 s39, s2, 2")
    a("v_cndmask_b32 v21, v22, v20, vcc")
    a("s_and_b32 s39, s39, 28")
    a("s_lshr_b32 s39, 0x21043210, s39")
    a("s_and_b32 s39, s39, 7")
    a("s_mul_i32 s38, s11, 5")
    a("s_add_u32 s39, s39, s38")
    a("s_mul_i32 s40, s39, 3072")
    a("s_lshr_b32 s41, s39, 1")
    a(f"s_mul_i32 s41, s41, {92160 - 6144}")
    a("s_add_u32 s41, s41, s40")
    a("s_movk_i32 s42, 3072")
    a("s_bitcmp1_b32 s39, 0")
    a(f"s_cselect_b32 s42, {92160 - 3072}, s42")
    a("s_mov_b32 s43, 4")
    a("s_cmp_ge_u32 s32, 2")
    a("s_cselect_b32 s95, 1, 0")
    a(f"s_cselect_b32 s44, -1, {5 - cfg.nearly}")
    a(f"s_mul_i32 s54, s95, {WBUF}")
    a(f"s_add_u32 s54, s54, {WBASE}")
    if cfg.jrot:
        a("s_add_u32 s37, s95, s28")
        a("s_cmp_eq_u32 s37, 5")
        a("s_cselect_b32 s37, 0, s37")
        a("s_mul_i32 s37, s37, 3")
    else: a("s_mul_i32 s37, s95, 3")
    a("s_add_u32 s37, s37, s52")
    a("s_mul_i32 s37, s37, 6144")
    a("s_mov_b32 s55, 0")
    a("s_mov_b32 s15, 15")
    a(f"s_mov_b32 s18, {XBYTES}")
    a("s_mov_b32 s19, 0x20000")
    a(f"s_mov_b32 s22, {WBYTES}")
    a("s_mov_b32 s23, s19")
    a("s_waitcnt lgkmcnt(0)")
    if cfg.diag: stamp(a, 1)
    mark("karg")
    a("s_cmp_eq_u32 s95, 1")
    a("s_cbranch_scc0 L_w_early")
    a.label("L_x_loop")
    for blk in range(4):
        a(f"s_bitcmp1_b32 s15, {blk}")
        a(f"s_cbranch_scc0 " + (f"L_x{blk}" if blk < 3 else "L_x_next"))
        for k in range(3 * blk, min(3 * blk + 3, 11)):
            a("s_mov_b32 m0, s56")
            a("s_add_u32 s56, s56, s14")
            a(f"buffer_load_dwordx4 v{2+k}, s[16:19], s57 offen{cfg.xflag} lds")
        if blk < 3: a.label(f"L_x{blk}")
    a("s_cmp_lg_u32 s55, 0")
    a("s_cbranch_scc1 L_x_sig")
    if cfg.diag: stamp(a, 2)
    mark("xi")
    a("s_barrier")
    a("v_mov_b32 v26, 1")
    a("s_waitcnt vmcnt(0)")
    a("ds_write_b32 v30, v26")
    trace(45, 0)
    mark("x0")
    a("s_branch L_w_step" if cfg.early == 2 else "s_branch L_w_it")
    a.label("L_w_early")
    if cfg.early == 2:
        a(f"s_add_u32 m0, s40, {WBASE + WBUF}")
        a("s_add_u32 s50, s37, s41")
        a("s_addk_i32 s50, 18432")
        for k in range(3):
            a(f"buffer_load_dwordx4 v{20+k}, s[20:23], s50 offen offset:{k*1024}{cfg.wflag} lds")
    if cfg.early == 0: a("s_barrier")
    a.label("L_w_it")
    a("s_add_u32 m0, s54, s40")
    a("s_add_u32 s50, s37, s41")
    for k in range(3):
        a(f"buffer_load_dwordx4 v{20+k}, s[20:23], s50 offen offset:{k*1024}{cfg.wflag} lds")
    if cfg.early:
        a("s_cmp_lg_u32 s43, s44")
        a("s_cbranch_scc1 L_w_step")
        a("s_barrier")
        a("s_mov_b32 s44, -1")
    a.label("L_w_step")
    a("s_addk_i32 s40, 3072")
    a("s_add_u32 s41, s41, s42")
    a(f"s_xor_b32 s42, s42, {3072 ^ (92160 - 3072)}")
    a(f"s_cmpk_eq_u32 s40, {WBUF}")
    a("s_cselect_b32 s40, 0, s40")
    a("s_cselect_b32 s41, 0, s41")
    a("s_sub_u32 s43, s43, 1")
    a("s_cbranch_scc0 L_w_it")
    a("s_cmp_lg_u32 s55, 0")
    a("s_cbranch_scc1 L_w_adv")
    a("s_cmp_eq_u32 s95, 1")
    a("s_cbranch_scc1 L_x_w1")
    a("s_mov_b32 s55, s32")
    a("s_mov_b32 s53, s32")
    a(f"s_mul_i32 s50, s32, {WBUF}")
    a("s_add_u32 s54, s54, s50")
    a("v_mov_b32 v31, s32")
    a.label("L_w_adv")
    trace(44, "s55")
    a("v_add_u32 v31, 2, v31")
    a("s_waitcnt vmcnt(0)")
    a("ds_write_b32 v30, v31")
    trace(45, "s55")
    if cfg.amp == "pt" and cfg.pt == "w0":
        a("s_cmp_ge_u32 s55, 2")
        a("s_cbranch_scc1 L_pw")
        mark("w0")
        a.label("L_pw")
    a(f"s_sub_u32 s54, s54, {WBUF}")
    a(f"s_cmp_lt_u32 s54, {WBASE}")
    a(f"s_cselect_b32 s50, {3*WBUF}, 0")
    a("s_add_u32 s54, s54, s50")
    a("s_add_u32 s53, s53, 2")
    a("s_cmp_ge_u32 s53, 5")
    a("s_cselect_b32 s50, 5, 0")
    a("s_sub_u32 s53, s53, s50")
    a("s_lshr_b32 s50, s50, 2")
    a("s_add_u32 s52, s52, s50")
    a("s_cmp_eq_u32 s52, 3")
    a("s_cselect_b32 s52, 0, s52")
    if cfg.jrot:
        a("s_add_u32 s37, s53, s28")
        a("s_cmp_ge_u32 s37, 5")
        a("s_cselect_b32 s50, 5, 0")
        a("s_sub_u32 s37, s37, s50")
        a("s_mul_i32 s37, s37, 3")
    else: a("s_mul_i32 s37, s53, 3")
    a("s_add_u32 s37, s37, s52")
    a("s_mul_i32 s37, s37, 6144")
    a(f"s_mov_b32 s45, {3072 ^ (92160 - 3072)}" if cfg.wun else "s_mov_b32 s43, 9")
    a("s_mov_b32 s51, s55")
    a("s_add_u32 s55, s55, 2")
    if cfg.w2wait: a("s_max_u32 s51, s51, 1")
    else:
        a("s_cmp_eq_u32 s51, 0")
        a("s_cbranch_scc1 " + ("L_w_full" if cfg.wun else "L_w_it"))
    a("s_cmp_ge_u32 s55, 15")
    a("s_cbranch_scc1 L_store")
    a("v_and_b32 v23, 3, v1")
    a("v_mul_u32_u24 v23, 260, v23")
    a(f"v_add_u32 v23, {FLAGS + 1024}, v23")
    poll(a, "L_w_poll", 23, 24, "s51", cfg.sleep)
    trace(46, "s55")
    if cfg.wun:
        a.label("L_w_full")
        for hh in range(10):
            a("s_add_u32 m0, s54, s40")
            a("s_add_u32 s50, s37, s41")
            a(f"buffer_load_dwordx4 v20, s[20:23], s50 offen{cfg.wflag} lds")
            a("s_addk_i32 s40, 3072")
            a("s_add_u32 s41, s41, s42")
            a(f"buffer_load_dwordx4 v21, s[20:23], s50 offen offset:1024{cfg.wflag} lds")
            a("s_xor_b32 s42, s42, s45")
            a(f"s_cmpk_eq_u32 s40, {WBUF}")
            a(f"buffer_load_dwordx4 v22, s[20:23], s50 offen offset:2048{cfg.wflag} lds")
            a("s_cselect_b32 s40, 0, s40")
            a("s_cselect_b32 s41, 0, s41")
        a("s_branch L_w_adv")
    else:
        a("s_branch L_w_it")
    if cfg.pad4:
        a.label("L_padl")
        a("s_branch L_compute")
    a.label("L_x_w1")
    C = sum(((thr << 4) | m) << (8 * k) for k, (thr, m) in enumerate(cfg.xb))
    assert len(cfg.xb) <= 8
    a(f"s_mov_b32 s92, {C & 0xffffffff:#x}")
    a(f"s_mov_b32 s93, {C >> 32:#x}")
    a("s_mov_b32 s55, 1")
    if cfg.trace: a("s_mov_b32 s51, 1")
    a.label("L_x_sig")
    a("v_add_u32 v31, 5, v31")
    a("s_waitcnt vmcnt(0)")
    a("ds_write_b32 v30, v31")
    trace(45, "s51")
    if cfg.amp == "pt" and cfg.pt == "w1":
        a("s_cmp_lg_u32 s15, 15")
        a("s_cbranch_scc1 L_px")
        mark("w1")
        a.label("L_px")
    a("s_mul_i32 s50, s14, -11")
    a("s_add_u32 s56, s56, s50")
    a(f"s_add_u32 s56, s56, {XCH}")
    a("s_add_u32 s57, s57, 64")
    a("s_cmp_eq_u32 s57, 192")
    a("s_cselect_b32 s57, 0, s57")
    a.label("L_x_next")
    a("s_and_b32 s15, s92, 15")
    a("s_cbranch_scc0 L_xdone")
    a("s_bfe_u32 s51, s92, 0x40004")
    a("s_lshr_b64 s[92:93], s[92:93], 8")
    a("v_and_b32 v22, 1, v1")
    a(f"v_mul_u32_u24 v22, 260, v22")
    a(f"v_add_u32 v22, {FLAGS}, v22")
    poll(a, "L_x_poll", 22, 23, "s51", cfg.sleep)
    trace(44, "s51")
    a("s_branch L_x_loop")
    if cfg.help:
        a.label("L_help")
        a("v_and_b32 v1, 63, v0")
        a("v_lshrrev_b32 v2, 6, v0")
        a("v_mul_u32_u24 v3, 43, v1")
        a("v_readfirstlane_b32 s32, v2")
        a("v_lshrrev_b32 v3, 9, v3")
        a("v_mul_u32_u24 v4, 12, v3")
        a("v_sub_u32 v4, v1, v4")
        a("v_mul_u32_u24 v3, 92160, v3")
        a("v_lshl_add_u32 v3, v4, 7, v3")
        a("s_and_b32 s33, s2, 1")
        a("s_and_b32 s3, s3, 1")
        a("s_lshl1_add_u32 s33, s3, s33")
        a("s_mulk_i32 s33, 1536")
        a("s_lshr_b32 s34, s32, 1")
        a("s_add_u32 s34, s34, 1")
        a("s_mul_i32 s34, s34, 3")
        a("s_and_b32 s35, s32, 1")
        a("s_lshl1_add_u32 s34, s35, s34")
        a("s_mulk_i32 s34, 6144")
        a("s_add_u32 s34, s34, s33")
        a("s_min_u32 s35, s32, 4")
        a("s_mul_i32 s35, s35, 3")
        a("s_add_u32 s35, s35, 1")
        a("s_mulk_i32 s35, 6144")
        a("s_add_u32 s35, s35, s33")
        a("s_waitcnt lgkmcnt(0)")
        a(f"s_mov_b32 s22, {WBYTES}"); a("s_mov_b32 s23, 0x20000")
        a("buffer_load_dword v5, v3, s[20:23], s34 offen")
        a("buffer_load_dword v6, v3, s[20:23], s35 offen")
        a("s_waitcnt vmcnt(0)")
        a("s_endpgm")
    a.label("L_xdone")
    if cfg.padf:
        a("s_lshl1_add_u32 s39, s34, s11")
        a("s_cmp_eq_u32 s33, 8")
        a("s_cselect_b32 s39, 3, s39")
        for var in range(3):
            a(f"s_cmp_eq_u32 s39, {var}")
            a(f"s_cbranch_scc1 L_padf{var}")
        a("s_branch L_padf3")
    a.label("L_store")
    a.label("L_store2")
    a(f"s_mov_b32 s26, {XBYTES}")
    a("s_mov_b32 s27, 0x20000")
    a("s_movk_i32 s49, 208")
    a("s_movk_i32 s50, 384")
    a("v_lshrrev_b32 v11, 2, v1")
    a("v_and_b32 v12, 3, v1")
    a("v_lshlrev_b32 v12, 4, v12")
    a("v_mad_u32_u24 v5, v11, s50, v12")
    a("v_mad_u32_u24 v2, v11, s49, v12")
    a("v_and_b32 v10, 1, v1")
    a("v_mul_u32_u24 v10, 260, v10")
    a("s_lshl_b32 s39, s95, 9")
    a(f"s_add_u32 s39, s39, {FLAGS + 1024}")
    a("v_add_u32 v10, s39, v10")
    a("s_add_u32 s45, s35, s36")
    a("s_or_b32 s38, s34, s95")
    a("s_cmp_eq_u32 s33, 8")
    a("s_cselect_b32 s38, 1, s38")
    a("s_cselect_b32 s43, 6, 7")
    a("s_xor_b32 s38, s38, 1")
    a("s_andn2_b32 s44, s34, s95")
    a("s_add_u32 s39, s34, 6")
    a("s_mul_i32 s39, s39, s95")
    a("s_add_u32 s39, s39, s44")
    a("s_add_u32 s39, s39, 5")
    a("s_cmp_eq_u32 s38, 1")
    a("s_cselect_b32 s39, 0, s39")
    a("s_cselect_b32 s42, 1, -1")
    def rowsetup():
        a("s_mul_i32 s40, s11, s42")
        a("s_add_u32 s39, s39, s40")
        a(f"s_mul_i32 s47, s39, {PROW}")
        a("s_add_u32 s47, s47, s45")
        a(f"s_mul_i32 s48, s39, {SROW}")
        a("v_add_u32 v12, s48, v2")
        a(f"s_mul_i32 s40, s42, {2*PROW}")
        a(f"s_mul_i32 s41, s42, {2*SROW}")
    rowsetup()
    a("s_add_u32 s51, s11, 16")
    a("s_add_u32 s44, s44, 22")
    a.label("L_st_m")
    poll(a, "L_st_mp", 10, 11, "s51", cfg.sleep)
    a(f"ds_read_b128 {vr(16,4)}, v12 offset:64")
    a("v_add_u32 v12, s41, v12")
    a("s_add_u32 s51, s51, 2")
    a("s_waitcnt lgkmcnt(0)")
    a(f"buffer_store_dwordx4 {vr(16,4)}, v5, s[24:27], s47 offen offset:64{cfg.stflag}")
    a("s_add_u32 s47, s47, s40")
    a("s_cmp_lt_u32 s51, s44")
    a("s_cbranch_scc1 L_st_m")
    if cfg.stprio: a(f"s_setprio {cfg.stprio}")
    a("s_cmp_eq_u32 s95, 1")
    a("s_cselect_b32 s39, s43, s34")
    a("s_cmp_eq_u32 s38, 1")
    a("s_cselect_b32 s39, 5, s39")
    a("s_sub_u32 s42, 0, s42")
    rowsetup()
    a("s_add_u32 s51, s11, 25")
    a("s_and_b32 s38, s38, s11")
    a("s_cbranch_scc0 L_st_go")
    a("v_and_b32 v28, 3, v1")
    a("v_mul_u32_u24 v28, 260, v28")
    a(f"v_add_u32 v28, {FLAGS + 1024}, v28")
    a(f"s_add_u32 s45, s45, {6*PROW}")
    poll(a, "L_st_s1", 28, 11, 24, cfg.sleep2)
    for k in range(2): a(f"ds_read_b128 {vr(16+4*k,4)}, v2 offset:{6*SROW + 128*k}")
    for k in range(2):
        a(f"s_waitcnt lgkmcnt({1-k})")
        a(f"buffer_store_dwordx4 {vr(16+4*k,4)}, v5, s[24:27], s45 offen offset:{128*k}{cfg.stflag}")
    a.label("L_st_go")
    poll(a, "L_st_p1", 10, 11, "s51", cfg.sleep2)
    for k in range(2): a(f"ds_read_b128 {vr(16+4*k,4)}, v12 offset:{128*k}")
    a("v_add_u32 v12, s41, v12")
    a("s_add_u32 s51, s51, 2")
    for k in range(2):
        a(f"s_waitcnt lgkmcnt({1-k})")
        a(f"buffer_store_dwordx4 {vr(16+4*k,4)}, v5, s[24:27], s47 offen offset:{128*k}{cfg.stflag}")
    a("s_add_u32 s47, s47, s40")
    a("s_cmp_lt_u32 s51, 30")
    a("s_cbranch_scc1 L_st_go")
    a.label("L_st_end")
    if cfg.amp in ("all", "pt"): a("s_branch L_ampall")
    if cfg.diag:
        stamp(a, 5)
        a("s_waitcnt vmcnt(0)")
        stamp(a, 6)
        dump_stamps(a, cfg)
    a.label("L_exit")
    a("s_endpgm")
    a.label("L_compute")
    if cfg.cbar == 0:
        a("s_waitcnt lgkmcnt(0)")
        a("s_barrier")
    a("s_sub_u32 s37, s32, 4")
    a("s_and_b32 s38, s37, 1")
    a("s_lshr_b32 s37, s37, 1")
    a("s_add_u32 s39, s34, 6")
    a("s_mul_i32 s49, s37, s39")
    a(f"v_mov_b32 v{V_CP}, v30")
    a(f"v_mov_b32 v{V_PV}, 0")
    a("v_and_b32 v32, 15, v1")
    a("v_lshrrev_b32 v33, 4, v1")
    a("v_and_b32 v34, 1, v33")
    a("v_lshrrev_b32 v35, 1, v33")
    a("v_bfe_u32 v36, v1, 2, 2")
    a("v_and_b32 v37, 3, v1")
    a(f"v_mul_u32_u24 v{V_LF}, 260, v37")
    a(f"v_add_u32 v{V_LF}, {FLAGS}, v{V_LF}")
    a(f"v_or_b32 v16, 512, v{V_LF}")
    a(f"v_xor_b32 v17, 512, v16")
    a("s_lshl_b32 s39, s38, 7")
    a("v_lshlrev_b32 v40, 5, v34")
    a("v_lshl_add_u32 v40, v35, 4, v40")
    a("v_add_u32 v40, s39, v40")
    a("s_lshl_b32 s39, s38, 5")
    a("s_add_u32 s39, s39, 64")
    a("v_lshlrev_b32 v41, 3, v33")
    a("v_add_u32 v41, s39, v41")
    a("v_mul_u32_u24 v38, 384, v32")
    a("v_add_u32 v38, s36, v38")
    a(f"v_add_u32 v{V_SA}, v38, v40")
    a(f"v_add_u32 v{V_SC}, v38, v41")
    a("v_mul_u32_u24 v38, 208, v32")
    a(f"s_mul_i32 s39, s49, {SROW}")
    a("v_add_u32 v38, s39, v38")
    a("s_lshl_b32 s39, s38, 7")
    a(f"v_lshl_add_u32 v{V_GA}, v33, 3, v38")
    a(f"v_add_u32 v{V_GA}, s39, v{V_GA}")
    a(f"v_add_u32 v{V_GB}, v38, v41")
    a(f"s_mul_i32 s47, s49, {PROW}")
    a("s_add_u32 s47, s47, s35")
    a("v_lshl_add_u32 v38, v33, 3, v36")
    a("v_mul_u32_u24 v38, 192, v38")
    a("v_lshl_add_u32 v38, v37, 3, v38")
    a(f"v_add_u32 v38, {WBASE}, v38")
    a("s_add_u32 s39, s38, 2")
    a("v_xor_b32 v39, s39, v34")
    a(f"v_lshl_add_u32 v{V_WA[0]}, v39, 5, v38")
    a("s_lshl_b32 s39, s38, 2")
    a("v_xor_b32 v39, s39, v34")
    a(f"v_lshl_add_u32 v{V_WA[1]}, v39, 5, v38")
    a("v_xor_b32 v39, 1, v39")
    a(f"v_lshl_add_u32 v{V_WA[2]}, v39, 5, v38")
    a("v_lshlrev_b32 v38, 6, v32")
    a("v_lshl_add_u32 v38, v33, 4, v38")
    a(f"s_mul_i32 s39, s49, {XROW}")
    if cfg.jrot:
        a("s_lshl_b32 s50, s28, 6")
        a("s_add_u32 s39, s39, s50")
    a(f"v_add_u32 v{V_XL}, s39, v38")
    if cfg.jrot:
        a(f"s_lshr_b32 s50, {sum(1 << (h + 1) for h in (5, 10, 15))}, s28")
        a("s_movk_i32 s53, -256")
        a("s_bitcmp1_b32 s50, 15")
        a("s_cselect_b32 s54, s53, 64")
    a(f"v_lshrrev_b32 v{V_T}, 3, v{V_XL}")
    a(f"v_and_b32 v{V_T}, 32, v{V_T}")
    a(f"v_xor_b32 v{V_XA[0]}, v{V_XL}, v{V_T}")
    a(f"v_xor_b32 v{V_XA[1]}, 32, v{V_XA[0]}")
    if cfg.mov64:
        for k in range(0, 84, 2): a(f"v_mov_b64 {vr(V_ACC+k,2)}, 0")
    else:
        for k in range(84): a(f"v_mov_b32 v{V_ACC+k}, 0")
    a(f"s_mov_b32 s40, {(1 << 6) | (1 << 11)}")
    a(f"s_mov_b32 s41, {sum(1 << (h + 1) for h in (3, 6, 9, 12))}")
    a(f"s_mov_b32 s44, {(-2*WBUF) & 0xffffffff}")
    a(f"s_mov_b32 s45, {WBUF}")
    a("s_mov_b32 s46, 2")
    if cfg.amp == "stall": a("s_mov_b32 s85, 0")
    if cfg.cbar == 1:
        a("s_waitcnt lgkmcnt(0)")
        a("s_barrier")
    if cfg.diag: stamp(a, 1)
    a(f"s_mov_b32 s26, {XBYTES}")
    a("s_mov_b32 s27, 0x20000")
    if cfg.prio and not cfg.plate: a(f"s_setprio {cfg.prio}")
    if cfg.amp in ("span", "skew"): srd(a, 80, 12, 256)
    for var in (1, 2, 3):
        a(f"s_cmp_eq_u32 s31, {var}")
        a(f"s_cbranch_scc1 L_pro{var}")
    if cfg.pads: a("s_branch L_pro0")
    fa = Asm()
    for var in range(4):
        if var % 2 == 0: a(".p2align 12")
        emit_variant(a, fa, var, cfg)
    a.lines += fa.lines
    a.label("L_end")
    for _ in range(100): a("s_endpgm")
    out += a.text()
    nv = (V_END + 7) // 8 * 8
    out += f""".section .rodata,"a"
.p2align 6
.amdhsa_kernel {NAME}_kernel
  .amdhsa_next_free_vgpr {nv}
  .amdhsa_next_free_sgpr 96
  .amdhsa_accum_offset {nv}
  .amdhsa_group_segment_fixed_size 0
  .amdhsa_kernarg_size 40
  .amdhsa_user_sgpr_count 2
  .amdhsa_user_sgpr_kernarg_segment_ptr 1
  .amdhsa_system_sgpr_workgroup_id_x 1
{cfg.kd}.end_amdhsa_kernel
"""
    return out

if __name__ == "__main__":
    p = argparse.ArgumentParser()
    p.add_argument("-o", default="standalone__dilated_atrous__vision.s")
    p.add_argument("--diag", action="store_true")
    p.add_argument("--trace", action="store_true")
    p.add_argument("--bar_pos", type=int, default=62)
    p.add_argument("--xbar", type=int, default=40)
    p.add_argument("--lead", type=int, default=5)
    p.add_argument("--safe", type=int, default=8)
    p.add_argument("--prio", type=int, default=1)
    p.add_argument("--align", type=int, default=1)
    p.add_argument("--snake", type=int, default=1)
    p.add_argument("--exper", type=int, default=2)
    p.add_argument("--order", type=int, default=2)
    p.add_argument("--wpf", type=int, default=0)
    p.add_argument("--epf", type=int, default=0)
    p.add_argument("--cpf", type=int, default=1)
    p.add_argument("--sleep", type=int, default=0)
    p.add_argument("--sleep2", type=int, default=0)
    p.add_argument("--stflag", default="sc0 sc1 nt")
    p.add_argument("--wd", type=int, default=0)
    p.add_argument("--amp", default="")
    p.add_argument("--plate", type=int, default=0)
    p.add_argument("--wun", type=int, default=0)
    p.add_argument("--early", type=int, default=1)
    p.add_argument("--nearly", type=int, default=1)
    p.add_argument("--padf", type=int, default=1)
    p.add_argument("--kd", default="")
    p.add_argument("--lastflag", default=None)
    p.add_argument("--jrot", type=int, default=0)
    p.add_argument("--pt", default="")
    p.add_argument("--sg", type=int, default=0)
    p.add_argument("--addd", type=int, default=0)
    p.add_argument("--onlyw", type=int, default=-1)
    p.add_argument("--onlyb", type=int, default=-1)
    p.add_argument("--help2", dest="help", type=int, default=0)
    p.add_argument("--pg", type=int, default=1)
    p.add_argument("--alead", type=int, default=20)
    p.add_argument("--entry_last", type=int, default=0)
    p.add_argument("--pad4", type=int, default=0)
    p.add_argument("--lx", type=int, default=-1)
    p.add_argument("--al8", type=int, default=0)
    p.add_argument("--shift4", type=int, default=0)
    p.add_argument("--rush", type=int, default=30)
    p.add_argument("--fill", type=int, default=0)
    p.add_argument("--pads", type=int, default=1)
    p.add_argument("--nstage", type=int, default=5)
    p.add_argument("--spec", type=int, default=1)
    p.add_argument("--stprio", type=int, default=0)
    p.add_argument("--mov64", type=int, default=1)
    p.add_argument("--xflag", default="")
    p.add_argument("--wflag", default="")
    p.add_argument("--fixd", type=int, default=0)
    p.add_argument("--wbl2", type=int, default=0)
    p.add_argument("--bench", action="store_true")
    p.add_argument("--drop", default="")
    p.add_argument("--cmpd", type=int, default=4)
    p.add_argument("--updstep", type=int, default=1)
    p.add_argument("--xthr", type=int, default=2)
    p.add_argument("--cbar", type=int, default=0)
    p.add_argument("--w2wait", type=int, default=1)
    p.add_argument("--xb", default="3:1,4:2,5:4,6:8,8:3,9:12")
    cfg = p.parse_args()
    cfg.xb = [tuple(int(v) for v in e.split(":")) for e in cfg.xb.split(",")]
    WD = cfg.wd
    cfg.kd = "".join(f"  .amdhsa_{e}\n" for e in cfg.kd.split(",") if e)
    if cfg.lastflag is None: cfg.lastflag = cfg.stflag
    if cfg.lastflag: cfg.lastflag = " " + cfg.lastflag
    if cfg.stflag: cfg.stflag = " " + cfg.stflag
    if cfg.xflag: cfg.xflag = " " + cfg.xflag
    if cfg.wflag: cfg.wflag = " " + cfg.wflag
    open(cfg.o, "w").write(gen(cfg))
```
